```python
import torch

def _softmax(x, axis=-1):
    return torch.softmax(x, dim=axis)

def _gelu(x):
    return torch.nn.functional.gelu(x, approximate='tanh')

def _silu(x):
    return torch.nn.functional.silu(x)

def _sigmoid(x):
    return torch.sigmoid(x)

def _layernorm(x, axis=-1, eps=1e-05):
    m = x.mean(dim=axis, keepdim=True)
    v = x.var(dim=axis, keepdim=True, unbiased=False)
    return (x - m) / torch.sqrt(v + eps)

def _scatter_add(tgt, idx, src, axis=0):
    return tgt.clone().index_add_(axis, idx, src)

def _segment_sum(src, seg, n):
    out = torch.zeros((n,) + src.shape[1:], dtype=src.dtype)
    return out.index_add_(0, seg, src)

def _pad(x, pw):
    flat = tuple((v for pair in reversed(pw) for v in pair))
    return torch.nn.functional.pad(x, flat)
kernel_name = 'parallel_sum__memory_aug_recurrent_mem_tr__geglu_ffn__prompt'

def setup_inputs():

    _w = lambda a: (lambda t: t.to(torch.bfloat16) if t.is_floating_point() else t)(torch.as_tensor(a))

    def _A_setup():
        B, S, Dm = (1, 2048, 640)
        H, Dh = (32, 192)
        M, seg = (8, 32)
        seg = min(seg, S)
        S = S // seg * seg
        return {'x': _w((lambda *s: torch.randn(*s, dtype=torch.bfloat16) * 0.05)(B, S, Dm)), 'mem0': _w((lambda *s: torch.randn(*s, dtype=torch.bfloat16) * 1.6)(B, M, Dm)), 'Wq': _w((lambda *s: torch.randn(*s, dtype=torch.bfloat16) * 0.8)(Dm, H, Dh) * Dm ** (-0.5)), 'Wk': _w((lambda *s: torch.randn(*s, dtype=torch.bfloat16) * 0.8)(Dm, H, Dh) * Dm ** (-0.5)), 'Wv': _w((lambda *s: torch.randn(*s, dtype=torch.bfloat16) * 1.6)(Dm, H, Dh) * Dm ** (-0.5)), 'Wo': _w((lambda *s: torch.randn(*s, dtype=torch.bfloat16) * 1.6)(H, Dh, Dm) * (H * Dh) ** (-0.5)), 'seg_len': seg}
    _A_in = _A_setup()

    def _B_setup():
        B, S, D, F = (1, 2048, 640, 1536)
        return {'x': _w((lambda *s: torch.randn(*s, dtype=torch.bfloat16) * 0.05)(B, S, D)), 'w_gate': _w((lambda *s: torch.randn(*s, dtype=torch.bfloat16) * 0.05)(D, F)), 'w_up': _w((lambda *s: torch.randn(*s, dtype=torch.bfloat16) * 0.05)(D, F)), 'w_down': _w((lambda *s: torch.randn(*s, dtype=torch.bfloat16) * 0.05)(F, D))}
    _B_in = _B_setup()
    return {'A_x': _A_in['x'], 'A_mem0': _A_in['mem0'], 'A_Wq': _A_in['Wq'], 'A_Wk': _A_in['Wk'], 'A_Wv': _A_in['Wv'], 'A_Wo': _A_in['Wo'], 'A_seg_len': _A_in['seg_len'], 'B_x': _B_in['x'], 'B_w_gate': _B_in['w_gate'], 'B_w_up': _B_in['w_up'], 'B_w_down': _B_in['w_down']}

def reference(A_x, A_mem0, A_Wq, A_Wk, A_Wv, A_Wo, A_seg_len, B_x, B_w_gate, B_w_up, B_w_down):

    def _A_ref(x, mem0, Wq, Wk, Wv, Wo, seg_len):
        B, S, Dm = x.shape
        H, Dh = (Wq.shape[1], Wq.shape[2])
        M = mem0.shape[1]
        scale = Dh ** (-0.5)
        n_seg = S // seg_len
        L = M + seg_len
        idx = torch.arange(L)
        mask = (idx[:, None] < M) | (idx[:, None] >= idx[None, :])
        mem = mem0
        outs = []
        for s in range(n_seg):
            xs = x[:, s * seg_len:(s + 1) * seg_len, :].clone()
            h = torch.concatenate([mem, xs], axis=1)
            q = torch.einsum('btd,dhe->bhte', h, Wq)
            k = torch.einsum('btd,dhe->bhte', h, Wk)
            v = torch.einsum('btd,dhe->bhte', h, Wv)
            scores = torch.einsum('bhqe,bhke->bhqk', q, k) * scale
            scores = torch.where(mask[None, None], scores, -1000000000.0)
            p = _softmax(scores, axis=-1)
            o = torch.einsum('bhqk,bhke->bhqe', p, v)
            o = torch.einsum('bhte,hed->btd', o, Wo)
            mem = o[:, :M, :].clone()
            outs.append(o[:, M:, :])
        return torch.concatenate(outs, axis=1)

    def _B_ref(x, w_gate, w_up, w_down):
        return _gelu(x @ w_gate) * (x @ w_up) @ w_down
    x = A_x
    xn = _layernorm(x, axis=-1)
    return x + _A_ref(xn, A_mem0, A_Wq, A_Wk, A_Wv, A_Wo, A_seg_len) + _B_ref(xn, B_w_gate, B_w_up, B_w_down)
```

```python
import re

REG_RE = re.compile(r'(?<![\w.])([vas])(?:(\d+)|\[(\d+):(\d+)\])(?![\w])')

def regs_of(tok):
    out = []
    t = tok.strip()
    for m in REG_RE.finditer(t):
        f = m.group(1)
        if m.group(2) is not None:
            out.append((f, int(m.group(2))))
        else:
            for i in range(int(m.group(3)), int(m.group(4)) + 1):
                out.append((f, i))
    if re.search(r'\bvcc\b', t): out += [('s', 106), ('s', 107)]
    if re.search(r'\bvcc_lo\b', t): out += [('s', 106)]
    if re.search(r'\bvcc_hi\b', t): out += [('s', 107)]
    if re.search(r'\bexec\b', t): out += [('s', 126), ('s', 127)]
    if re.search(r'\bexec_lo\b', t): out += [('s', 126)]
    if re.search(r'\bexec_hi\b', t): out += [('s', 127)]
    if re.search(r'\bm0\b', t): out += [('s', 124)]
    return out

TRANS = ('v_exp_f32', 'v_log_f32', 'v_rcp_f32', 'v_rsq_f32', 'v_sqrt_f32', 'v_sin_f32', 'v_cos_f32', 'v_rcp_iflag_f32')

class Ins:
    __slots__ = ('text', 'op', 'kind', 'wr', 'rd', 'states', 'dpp', 'passes', 'srcc', 'stdata', 'lds_dma')
    def __init__(self, text):
        self.text = text
        body = text.split(';')[0].strip()
        parts = body.split(None, 1)
        op = parts[0]
        self.op = op
        ops = []
        if len(parts) > 1:
            depth = 0; cur = ''
            for ch in parts[1]:
                if ch == '[': depth += 1
                if ch == ']': depth -= 1
                if ch == ',' and depth == 0:
                    ops.append(cur); cur = ''
                else:
                    cur += ch
            ops.append(cur)
        self.wr = []; self.rd = []; self.states = 1; self.dpp = False; self.passes = 0; self.srcc = []; self.stdata = []; self.lds_dma = False
        base = op
        for suf in ('_e32', '_e64', '_dpp', '_sdwa'):
            if base.endswith(suf): base = base[:-len(suf)]
        if op.endswith('_dpp') or ' row_' in body or 'quad_perm' in body or 'row_ror' in body: self.dpp = True
        R = lambda i: regs_of(ops[i]) if i < len(ops) else []
        if op == 's_nop':
            self.kind = 'nop'; self.states = int(ops[0], 0) + 1
        elif op.startswith('v_mfma') or op.startswith('v_smfmac'):
            self.kind = 'mfma'
            self.wr = R(0); self.rd = R(1) + R(2) + R(3); self.srcc = R(3) if op.startswith('v_mfma') else R(0)
            if op.startswith('v_smfmac'): self.rd += R(0)
            self.passes = 8 if '32x32' in op else 4
        elif op.startswith('ds_'):
            self.kind = 'ds'
            if op.startswith('ds_read') or op.startswith('ds_bpermute') or op.startswith('ds_swizzle') or op.startswith('ds_permute'):
                self.wr = R(0); self.rd = sum((R(i) for i in range(1, len(ops))), [])
            else:
                self.rd = sum((R(i) for i in range(len(ops))), [])
        elif op.startswith('buffer_') or op.startswith('global_') or op.startswith('flat_'):
            self.kind = 'vmem'
            allr = [R(i) for i in range(len(ops))]
            islds = bool(re.search(r'\blds\b', body)) or '_lds_' in op
            if op in ('buffer_inv', 'buffer_wbl2'):
                pass
            elif islds:
                self.lds_dma = True
                self.rd = sum(allr, []) + [('s', 124)]
            elif '_load' in op:
                self.wr = allr[0]; self.rd = sum(allr[1:], [])
            elif '_store' in op:
                self.rd = sum(allr, [])
                self.stdata = allr[0] if op.startswith('buffer_') else allr[1]
            elif '_atomic' in op:
                self.rd = sum(allr, [])
                if 'sc0' in body: self.wr = allr[0]
            else:
                raise ValueError(text)
        elif op.startswith('s_'):
            self.kind = 'salu'
            if op.startswith('s_load') or op.startswith('s_memtime') or op.startswith('s_memrealtime') or op.startswith('s_buffer_load'):
                self.kind = 'smem'; self.wr = R(0); self.rd = sum((R(i) for i in range(1, len(ops))), [])
            elif op.startswith('s_cmp') or op.startswith('s_bitcmp') or op.startswith('s_cbranch') or op in ('s_branch', 's_waitcnt', 's_barrier', 's_sleep', 's_setprio', 's_endpgm', 's_setpc_b64'):
                self.rd = sum((R(i) for i in range(len(ops))), [])
            else:
                self.wr = R(0); self.rd = sum((R(i) for i in range(1, len(ops))), [])
                if 'saveexec' in op: self.wr += [('s', 126), ('s', 127)]; self.rd += [('s', 126), ('s', 127)]
        elif op.startswith('v_'):
            self.kind = 'valu'
            if base in TRANS: self.kind = 'trans'
            if base.startswith('v_permlane') and 'swap' in base:
                self.kind = 'permlane'
                self.wr = R(0) + R(1); self.rd = R(0) + R(1)
            elif base in ('v_readfirstlane_b32', 'v_readlane_b32'):
                self.kind = 'readlane'
                self.wr = R(0); self.rd = sum((R(i) for i in range(1, len(ops))), [])
            elif base.startswith('v_cmp'):
                self.wr = R(0); self.rd = sum((R(i) for i in range(1, len(ops))), [])
                if base.startswith('v_cmpx'): self.wr += [('s', 126), ('s', 127)]
            elif base in ('v_add_co_u32', 'v_sub_co_u32', 'v_addc_co_u32', 'v_subb_co_u32', 'v_subrev_co_u32'):
                self.wr = R(0) + R(1); self.rd = sum((R(i) for i in range(2, len(ops))), [])
            else:
                self.wr = R(0); self.rd = sum((R(i) for i in range(1, len(ops))), [])
                if base in ('v_fmac_f32', 'v_pk_fmac_f16', 'v_mac_f32', 'v_writelane_b32', 'v_dot2c_f32_bf16') or self.dpp:
                    self.rd += R(0)
                if base == 'v_cndmask_b32' and len(ops) == 3:
                    self.rd += [('s', 106), ('s', 107)]
        else:
            raise ValueError("unknown op: " + text)

VALU_KINDS = ('valu', 'trans', 'permlane', 'readlane')

class Asm:
    def __init__(self):
        self.items = []
        self.uid = 0
    def __call__(self, text):
        for ln in text.split('\n'):
            s = ln.strip()
            if not s or s.startswith(';'):
                continue
            if s.endswith(':') and ' ' not in s:
                self.items.append(('label', s[:-1]))
            elif s.startswith('.'):
                self.items.append(('raw', s))
            else:
                self.items.append(('ins', s))
    def label(self, name): self.items.append(('label', name))
    def newlabel(self, p='L'):
        self.uid += 1
        return f'{p}_{self.uid}'
    def raw(self, t): self.items.append(('raw', t))
    def comment(self, t): self.items.append(('raw', '; ' + t))

    def finalize(self):
        out = []
        hist = []
        pos = 0
        def need(ins):
            req = 0
            rd = set(ins.rd); wr = set(ins.wr)
            for (p, h) in hist:
                dist = pos - p - h.states
                hw = set(h.wr)
                r = 0
                if h.kind == 'mfma':
                    ps = h.passes
                    full = {4: 8, 8: 12}[ps]
                    if ins.kind == 'mfma':
                        ab = set(ins.rd) - set(ins.srcc)
                        a_b = set()
                        if hw & ab: r = max(r, full)
                        if hw & set(ins.srcc):
                            if set(ins.srcc) == hw and ins.passes == ps: r = max(r, 0)
                            else: r = max(r, {4: 6, 8: 10}[ps])
                        if hw & wr and not (set(ins.srcc) == hw and wr == hw):
                            r = max(r, {4: 6, 8: 10}[ps])
                    elif ins.kind in VALU_KINDS or ins.kind in ('vmem', 'ds'):
                        if hw & (rd | wr): r = max(r, full)
                    if ins.kind in VALU_KINDS and set(h.srcc) & wr:
                        r = max(r, {4: 3, 8: 7}[ps])
                elif h.kind in VALU_KINDS:
                    vv = {x for x in hw if x[0] in 'va'}
                    ss = {x for x in hw if x[0] == 's'}
                    if ins.kind == 'mfma' and vv & rd: r = max(r, 2)
                    if ins.dpp and vv & rd: r = max(r, 2)
                    if ins.kind == 'permlane' and vv & rd: r = max(r, 2)
                    if ins.kind == 'readlane' and vv & rd: r = max(r, 1)
                    if h.kind == 'trans' and ins.kind in VALU_KINDS + ('mfma',) and vv & rd: r = max(r, 1 if ins.kind != 'mfma' else 2)
                    if ss:
                        if ins.kind in VALU_KINDS and ss & rd: r = max(r, 2)
                        if ins.kind == 'readlane' and ss & rd: r = max(r, 4)
                        if ins.kind == 'vmem' and ss & rd: r = max(r, 5)
                        if ('s', 126) in ss:
                            if ins.dpp: r = max(r, 5)
                            if ins.kind == 'mfma': r = max(r, 4)
                            if ins.kind in ('readlane', 'permlane'): r = max(r, 4)
                        if ins.kind in ('salu',) and ss & rd: r = max(r, 1)
                elif h.kind == 'salu':
                    if ('s', 124) in hw and ins.lds_dma: r = max(r, 1)
                    if ('s', 126) in hw and (ins.dpp or ins.kind == 'permlane'): r = max(r, 1)
                elif h.kind == 'vmem' and h.stdata:
                    if set(h.stdata) & wr and len(h.stdata) >= 3:
                        r = max(r, 2 if ins.kind in VALU_KINDS else 1)
                if r - dist > req: req = r - dist
            return req
        def flush_all():
            req = 0
            for (p, h) in hist:
                dist = pos - p - h.states
                r = 0
                if h.kind == 'mfma': r = {4: 8, 8: 12}[h.passes]
                elif h.kind in VALU_KINDS:
                    r = 2
                    if any(x[0] == 's' for x in h.wr): r = 5
                elif h.kind == 'salu' and (('s', 124) in h.wr): r = 1
                elif h.kind == 'vmem' and h.stdata and len(h.stdata) >= 3: r = 2
                req = max(req, r - dist)
            return req
        def emit_nops(n):
            nonlocal pos
            while n > 0:
                k = min(n, 16)
                t = f's_nop {k-1}'
                out.append('  ' + t)
                hist.append((pos, Ins(t))); pos += k
                n -= k
        for kind, t in self.items:
            if kind == 'raw':
                out.append(t)
            elif kind == 'label':
                n = flush_all()
                if n > 0: emit_nops(n)
                out.append(t + ':')
                hist = []
            else:
                ins = Ins(t)
                if ins.op.startswith('s_cbranch') or ins.op in ('s_branch', 's_setpc_b64'):
                    n = flush_all() - 1
                    if n > 0: emit_nops(n)
                else:
                    n = need(ins)
                    if n > 0: emit_nops(n)
                out.append('  ' + t)
                hist.append((pos, ins)); pos += ins.states
                if len(hist) > 40: hist = hist[-40:]
        return '\n'.join(out) + '\n'
```

```python
from asmlib import *
from layout import *

def srd(a, s, ptr_lo, size):
    a(f"""s_mov_b32 s{s}, s{ptr_lo}
s_and_b32 s{s+1}, s{ptr_lo+1}, 0xffff
s_mov_b32 s{s+2}, {size}
s_mov_b32 s{s+3}, 0x00020000""")

def kernel_header(a, name):
    a.raw(f".globl {name}\n.p2align 8\n.type {name},@function\n{name}:")

def kernel_desc(name, vgpr, sgpr, accum):
    return f""".p2align 6
.amdhsa_kernel {name}
  .amdhsa_next_free_vgpr {vgpr}
  .amdhsa_next_free_sgpr {sgpr}
  .amdhsa_accum_offset {accum}
  .amdhsa_group_segment_fixed_size 0
  .amdhsa_kernarg_size 112
  .amdhsa_user_sgpr_count 2
  .amdhsa_user_sgpr_kernarg_segment_ptr 1
  .amdhsa_system_sgpr_workgroup_id_x 1
.end_amdhsa_kernel
"""

def vr(b, n=4): return f"v[{b}:{b+n-1}]"
def ar(b, n=4): return f"a[{b}:{b+n-1}]"

class WReg:
    def __init__(self, abase, acount, vbase):
        self.abase=abase; self.acount=acount; self.vbase=vbase
    def quad(self, f):
        r = f*4
        if r < self.acount: return ar(self.abase + r)
        return vr(self.vbase + r - self.acount)
    def pair(self, f, k):
        r = f*4 + 2*k
        if r < self.acount: return ar(self.abase + r, 2)
        return vr(self.vbase + r - self.acount, 2)

def load_w(a, frags, wreg, v_goff, v_tr, s_tmp, ldsbase_s, perm, nslot=32, grp=4):
    N = len(frags)
    second = 512 if perm else 128
    def issue(f):
        sr, (sc, imm) = frags[f]
        a(f"s_add_u32 s{s_tmp}, s{sc}, {imm}")
        a(f"s_add_u32 m0, s{ldsbase_s}, {(f % nslot)*1024}")
        a(f"buffer_load_dwordx4 v{v_goff}, s[{sr}:{sr+3}], s{s_tmp} offen lds")
    issued = 0
    while issued < min(N, nslot):
        issue(issued); issued += 1
    done = 0
    while done < N:
        g = min(grp, N - done)
        inflight_after = issued - (done + g)
        a(f"s_waitcnt vmcnt({inflight_after})")
        for f in range(done, done + g):
            o = (f % nslot)*1024
            a(f"ds_read_b64_tr_b16 {wreg.pair(f,0)}, v{v_tr} offset:{o}")
            a(f"ds_read_b64_tr_b16 {wreg.pair(f,1)}, v{v_tr} offset:{o+second}")
        done += g
        if issued < N:
            a("s_waitcnt lgkmcnt(0)")
            k = 0
            while issued < N and k < g:
                issue(issued); issued += 1; k += 1
    a("s_waitcnt lgkmcnt(0)")

def lane_setup(a, v_lane, v_g, v_n, s_wave, vtid='v0'):
    a(f"""v_lshrrev_b32 v{v_g}, 6, {vtid}
s_nop 0
v_readfirstlane_b32 s{s_wave}, v{v_g}
v_and_b32 v{v_lane}, 63, {vtid}
v_lshrrev_b32 v{v_g}, 4, v{v_lane}
v_and_b32 v{v_n}, 15, v{v_lane}""")

def w_addr_setup(a, v_lane, v_goff, v_tr, stride, perm, s_ldsbase, vt):
    a(f"""v_lshrrev_b32 v{vt}, 1, v{v_lane}
s_mov_b32 s{s_ldsbase+1}, {stride}
v_mul_lo_u32 v{v_goff}, v{vt}, s{s_ldsbase+1}
v_and_b32 v{vt}, 1, v{v_lane}
v_lshlrev_b32 v{vt}, 4, v{vt}
v_add_u32 v{v_goff}, v{v_goff}, v{vt}
v_lshrrev_b32 v{v_tr}, 4, v{v_lane}
v_lshlrev_b32 v{v_tr}, {2 if perm else 3}, v{v_tr}
v_bfe_u32 v{vt}, v{v_lane}, 2, 2
v_add_u32 v{v_tr}, v{v_tr}, v{vt}
v_lshlrev_b32 v{v_tr}, 5, v{v_tr}
v_and_b32 v{vt}, 3, v{v_lane}
v_lshlrev_b32 v{vt}, 3, v{vt}
v_add_u32 v{v_tr}, v{v_tr}, v{vt}
v_add_u32 v{v_tr}, s{s_ldsbase}, v{v_tr}""")
```

```python
from gen_common import *
import struct
def f2u(f): return struct.unpack('<I', struct.pack('<f', f))[0]

S_WS=4; S_W0=8; S_W1=12; S_X=16; S_WAVE=20; S_LB=21; S_COL=24; S_OUT=28; S_CNT=30; S_XG=31; S_WS_SLOT=32; S_T=33; S_RUN=34; S_T2=35; S_RSLOT=36; S_XRUN=37
V_LANE=1; V_G=2; V_N=3; V_GOFF=4; V_TR=5; V_T=6; V_L16=7; V_XA=8; V_XB=9; V_RING=10; V_ACC=26; V_EPI=58; V_GT=66; V_XO=90; V_XL=92; V_W=96

import os
OPT=lambda k,d: type(d)(os.environ.get(k,d))
def emit_panel(a, kind, pfx, sc1=True, ntiles=128):
    sc1 = OPT('SC1',1) and sc1
    SC = " sc1" if sc1 else ""
    if kind == 'down':
        KS, T, stride, perm = 48, 1, D*2, True
        xbase = HF
    elif kind == 'qkv':
        KS, T, stride, perm = 20, 4, H*E*2, False
        xbase = XN
    else:
        KS, T, stride, perm = 20, 4, F*2, False
        xbase = XN
    XT = KS*1024; n4 = KS//4; LOOK = OPT('LOOKD',3) if kind=='down' else OPT('LOOK',3)
    NR = 4 if LOOK<=3 else (LOOK+1 if KS%(LOOK+1)==0 else None)
    assert KS % NR == 0
    wreg = WReg(0, 256, V_W)
    RING0 = V_RING if NR==4 else 170
    if OPT('STAMP',0): a("s_memtime s[58:59]")
    a(f"s_lshl_b32 s{S_LB}, s{S_WAVE}, 15")
    w_addr_setup(a, V_LANE, V_GOFF, V_TR, stride, perm, S_LB, V_T)
    frags = []
    for T_ in range(T):
        for p in range(KS):
            sr = S_W0 if (T_ < 2 or kind != 'ffnup') else S_W1
            frags.append((sr, (S_COL+T_, p*32*stride)))
    load_w(a, frags, wreg, V_GOFF, V_TR, S_T, S_LB, perm)
    def wq(T_, p): return wreg.quad(T_*KS + p)
    a("s_barrier")
    a(f"v_lshlrev_b32 v{V_L16}, 4, v{V_LANE}")
    a(f"s_mul_i32 s{S_T}, s{S_WAVE}, {n4*1024}")
    a(f"s_add_u32 s{S_XG}, s{S_T}, {xbase}")
    a(f"s_mov_b32 s{S_WS_SLOT}, s{S_T}")
    def dma():
        k = 0
        while k < n4:
            a(f"s_add_u32 m0, s{S_WS_SLOT}, {k*1024}")
            a(f"s_add_u32 s{S_T}, s{S_XG}, {k*1024}")
            for j in range(min(4, n4-k)):
                a(f"buffer_load_dwordx4 v{V_L16}, s[{S_WS}:{S_WS+3}], s{S_T} offen offset:{j*1024} lds")
            k += 4
        a(f"s_add_u32 s{S_XG}, s{S_XG}, {XT}")
        a(f"s_add_u32 s{S_WS_SLOT}, s{S_WS_SLOT}, {XT}")
        a(f"s_sub_u32 s{S_T}, s{S_WS_SLOT}, {NSL*XT}")
        a(f"s_cmp_ge_u32 s{S_WS_SLOT}, {NSL*XT}")
        a(f"s_cselect_b32 s{S_WS_SLOT}, s{S_T}, s{S_WS_SLOT}")
    NSL = OPT('NSLD',3) if kind=='down' else OPT('NSL',3)
    assert NSL*XT <= 160*1024
    STAMP = OPT('STAMP',0)
    if STAMP: a("s_memtime s[60:61]")
    for _ in range(NSL-1): dma()
    a(f"s_mov_b32 s{S_RSLOT}, {XT}")
    a(f"v_mov_b32 v{V_XA}, v{V_L16}")
    a(f"s_mov_b32 s{S_RUN}, 0")
    a(f"s_mov_b32 s{S_XRUN}, 0")
    if kind == 'ffnup':
        k = 2*0.7978845608028654*1.4426950408889634
        a(f"v_mov_b32 v{V_GT+16}, 0x{f2u(-k*0.044715):08x}")
        a(f"v_mov_b32 v{V_GT+17}, 0x{f2u(-k):08x}")
    if kind == 'down':
        a(f"v_mul_u32_u24 v{V_XO}, 1280, v{V_N}")
        a(f"v_lshlrev_b32 v{V_T}, 3, v{V_G}")
        a(f"v_add_u32 v{V_XO}, v{V_XO}, v{V_T}")
    a(f"s_waitcnt vmcnt({(NSL-2)*n4})")
    a("s_barrier")
    vx = [V_XA, V_XB]
    for pn in range(LOOK):
        a(f"ds_read_b128 {vr(RING0+4*(pn%NR))}, v{V_XA} offset:{pn*1024}")
    def epilogue(q, odd):
        ac = V_ACC + 16*q
        L = []
        if kind == 'qkv':
            for j in range(2):
                for r in range(4):
                    T_ = 2*j + (r >> 1)
                    L.append(f"v_cvt_pk_bf16_f32 v{V_EPI+4*j+r}, v{ac+4*T_+2*(r&1)}, v{ac+4*T_+2*(r&1)+1}")
                L.append(f"s_add_u32 s{S_T2}, s{S_RUN}, s{S_OUT+j}")
                L.append(f"buffer_store_dwordx4 {vr(V_EPI+4*j)}, v{V_L16}, s[{S_WS}:{S_WS+3}], s{S_T2} offen{SC}")
            L.append(f"s_add_u32 s{S_RUN}, s{S_RUN}, {6144 if not odd else 384*1024-6144}")
        elif kind == 'ffnup':
            for e in range(8):
                g = ac + e; u = ac + 8 + e; t = V_GT + e
                L += [f"v_mul_f32 v{t}, v{g}, v{g}",
                      f"v_fma_f32 v{t}, v{t}, v{V_GT+16}, v{V_GT+17}",
                      f"v_mul_f32 v{t}, v{t}, v{g}",
                      f"v_exp_f32 v{t}, v{t}",
                      f"v_add_f32 v{t}, 1.0, v{t}",
                      f"v_rcp_f32 v{t}, v{t}",
                      f"v_mul_f32 v{V_GT+8+e}, v{g}, v{u}"]
            for e in range(8):
                L.append(f"v_mul_f32 v{V_GT+e}, v{V_GT+e}, v{V_GT+8+e}")
            for r in range(4):
                L.append(f"v_cvt_pk_bf16_f32 v{V_EPI+r}, v{V_GT+2*r}, v{V_GT+2*r+1}")
            L.append(f"s_add_u32 s{S_T2}, s{S_RUN}, s{S_OUT}")
            L.append(f"buffer_store_dwordx4 {vr(V_EPI)}, v{V_L16}, s[{S_WS}:{S_WS+3}], s{S_T2} offen{SC}")
            L.append(f"s_add_u32 s{S_RUN}, s{S_RUN}, {48*1024}")
        else:
            xl = V_XL + 2*q
            L.append(f"s_waitcnt vmcnt(XWAIT)")
            L += [f"v_lshlrev_b32 v{V_EPI}, 16, v{xl}", f"v_and_b32 v{V_EPI+1}, 0xffff0000, v{xl}",
                  f"v_lshlrev_b32 v{V_EPI+2}, 16, v{xl+1}", f"v_and_b32 v{V_EPI+3}, 0xffff0000, v{xl+1}"]
            for r in range(4):
                L.append(f"v_add_f32 v{V_EPI+r}, v{V_EPI+r}, v{ac+r}")
            L.append(f"s_add_u32 s{S_T2}, s{S_RUN}, s{S_OUT}")
            L.append(f"buffer_store_dwordx4 {vr(V_EPI)}, v{V_L16}, s[{S_WS}:{S_WS+3}], s{S_T2} offen{SC}")
            L.append(f"s_add_u32 s{S_RUN}, s{S_RUN}, {1024 if not odd else 80*1024-1024}")
        return L
    NST = {'qkv': 2, 'ffnup': 1, 'down': 1}[kind]
    def body(q, epi, tidx=None):
        ac = V_ACC + 16*q
        E_ = epilogue(1-q, odd=(1-q) == 1) if epi else []
        E_ = [x.replace('XWAIT', str(n4+1)) for x in E_]
        per = -(-len(E_) // (KS - 6)) if E_ else 0
        if kind == 'down':
            xl = V_XL + 2*q
            a(f"s_add_u32 s{S_T2}, s{S_XRUN}, s{S_OUT+1}")
            a(f"buffer_load_dwordx2 {vr(xl,2)}, v{V_XO}, s[{S_X}:{S_X+3}], s{S_T2} offen")
            a(f"s_add_u32 s{S_XRUN}, s{S_XRUN}, {16*1280}")
        for p in range(KS):
            pn = p + LOOK
            if pn == KS:
                per_tile_ld = 1 if kind == 'down' else 0
                ntl = NSL-2
                if tidx is None:
                    w = (NSL-3)*n4 + ntl*(NST+per_tile_ld)
                else:
                    ks = [k for k in range(tidx-ntl+1, tidx+1) if k >= 0]
                    w = (NSL-3)*n4 + sum((NST if k >= 1 else 0) + per_tile_ld for k in ks)
                a(f"s_waitcnt vmcnt({w})")
                a("s_barrier")
                a(f"v_add_u32 v{vx[1-q]}, s{S_RSLOT}, v{V_L16}")
                a(f"s_add_u32 s{S_RSLOT}, s{S_RSLOT}, {XT}")
                a(f"s_cmp_ge_u32 s{S_RSLOT}, {NSL*XT}")
                a(f"s_cselect_b32 s{S_RSLOT}, 0, s{S_RSLOT}")
                dma()
            if pn < KS:
                a(f"ds_read_b128 {vr(RING0+4*(pn%NR))}, v{vx[q]} offset:{pn*1024}")
            else:
                a(f"ds_read_b128 {vr(RING0+4*(pn%NR))}, v{vx[1-q]} offset:{(pn-KS)*1024}")
            a(f"s_waitcnt lgkmcnt({LOOK})")
            for T_ in range(T):
                c = "0" if p == 0 else vr(ac+4*T_)
                a(f"v_mfma_f32_16x16x32_bf16 {vr(ac+4*T_)}, {wq(T_,p)}, {vr(RING0+4*(p%NR))}, {c}")
            if p >= 2:
                for _ in range(per):
                    if E_: a(E_.pop(0))
        while E_: a(E_.pop(0))
    body(0, False, tidx=0)
    npeel = 0
    t = 1
    while t < NSL-1 or (t % 2 == 0):
        body(t % 2, True, tidx=t); t += 1
    a(f"s_mov_b32 s{S_CNT}, {(ntiles-1-t)//2}")
    lp = f"{pfx}_LOOP"
    a.label(lp)
    body(1, True)
    body(0, True)
    a(f"s_sub_u32 s{S_CNT}, s{S_CNT}, 1")
    a(f"s_cmp_lg_u32 s{S_CNT}, 0")
    a(f"s_cbranch_scc1 {lp}")
    body(1, True)
    a("s_nop 7")
    for x in epilogue(1, odd=True):
        a(x.replace('XWAIT', '0'))
    a("s_waitcnt vmcnt(0) lgkmcnt(0)")
    if STAMP:
        a(f"""s_memtime s[62:63]
s_load_dwordx2 s[56:57], s[0:1], {KA['dbg']}
s_waitcnt lgkmcnt(0)
s_sub_u32 s60, s60, s58
s_sub_u32 s62, s62, s58
v_mov_b32 v10, s60
v_mov_b32 v11, s62
s_lshl_b32 s33, s2, 3
s_cmp_lt_u32 s2, 16
s_cselect_b32 s33, s33, 248
v_mov_b32 v12, s33
s_mov_b64 exec, 1
global_store_dwordx2 v12, v[10:11], s[56:57]
s_waitcnt vmcnt(0)""")

def panel_role_setup(a, kind, s_role):
    if kind == 'qkv':
        a(f"""s_mul_i32 s40, s{s_role}, 2731
s_lshr_b32 s40, s40, 16
s_mul_i32 s41, s40, 24
s_sub_u32 s41, s{s_role}, s41
s_mov_b32 s42, {KA['wk']}
s_cmp_eq_u32 s40, 1
s_cselect_b32 s42, {KA['wv']}, s42
s_cmp_eq_u32 s40, 2
s_cselect_b32 s42, {KA['wq']}, s42
s_add_u32 s44, s0, s42
s_addc_u32 s45, s1, 0
s_load_dwordx2 s[46:47], s[44:45], 0
s_mov_b32 s43, {KX}
s_cmp_eq_u32 s40, 1
s_cselect_b32 s43, {VX}, s43
s_cmp_eq_u32 s40, 2
s_cselect_b32 s43, {QX}, s43
s_waitcnt lgkmcnt(0)""")
        srd(a, S_W0, 46, D*H*E*2)
        srd(a, S_W1, 46, D*H*E*2)
        a(f"""s_lshl_b32 s48, s41, 8
s_lshl_b32 s49, s{S_WAVE}, 6
s_add_u32 s48, s48, s49
s_lshl_b32 s48, s48, 1
s_mov_b32 s{S_COL}, s48
s_add_u32 s{S_COL+1}, s48, 32
s_add_u32 s{S_COL+2}, s48, 64
s_add_u32 s{S_COL+3}, s48, 96""")
        for j in range(2):
            a(f"""s_lshl_b32 s48, s41, 3
s_lshl_b32 s49, s{S_WAVE}, 1
s_add_u32 s48, s48, s49
s_add_u32 s48, s48, {j}
s_mul_i32 s49, s48, 10923
s_lshr_b32 s49, s49, 16
s_mul_i32 s50, s49, 6
s_sub_u32 s50, s48, s50
s_mul_i32 s49, s49, 12
s_add_u32 s49, s49, s50
s_lshl_b32 s49, s49, 10
s_add_u32 s{S_OUT+j}, s49, s43""")
    elif kind == 'ffnup':
        a(f"""s_load_dwordx2 s[46:47], s[0:1], {KA['wg']}
s_load_dwordx2 s[48:49], s[0:1], {KA['wu']}
s_waitcnt lgkmcnt(0)""")
        srd(a, S_W0, 46, D*F*2)
        srd(a, S_W1, 48, D*F*2)
        a(f"""s_lshl_b32 s48, s{s_role}, 2
s_add_u32 s48, s48, s{S_WAVE}
s_lshl_b32 s49, s48, 6
s_mov_b32 s{S_COL}, s49
s_add_u32 s{S_COL+1}, s49, 32
s_mov_b32 s{S_COL+2}, s49
s_add_u32 s{S_COL+3}, s49, 32
s_lshl_b32 s49, s48, 10
s_add_u32 s{S_OUT}, s49, {HF}""")
    else:
        a(f"""s_load_dwordx2 s[46:47], s[0:1], {KA['wd']}
s_load_dwordx2 s[48:49], s[0:1], {KA['x']}
s_waitcnt lgkmcnt(0)""")
        srd(a, S_W0, 46, F*D*2)
        srd(a, S_X, 48, S*D*2)
        a(f"""s_lshl_b32 s48, s{s_role}, 2
s_add_u32 s48, s48, s{S_WAVE}
s_lshl_b32 s{S_COL}, s48, 5
s_mov_b32 s{S_OUT+1}, s{S_COL}
s_lshl_b32 s49, s48, 11
s_add_u32 s{S_OUT}, s49, {BASE}""")

def gen_panel_kernel():
    a = Asm(); name = "panel_kernel"
    kernel_header(a, name)
    a(f"""s_cmp_ge_u32 s2, 84
s_cbranch_scc1 PK_END
s_load_dwordx2 s[38:39], s[0:1], {KA['ws']}
s_waitcnt lgkmcnt(0)""")
    srd(a, S_WS, 38, WS_SIZE)
    lane_setup(a, V_LANE, V_G, V_N, S_WAVE)
    a("s_cmp_ge_u32 s2, 72\ns_cbranch_scc1 PK_UP")
    a("s_mov_b32 s51, s2")
    panel_role_setup(a, 'qkv', 51)
    emit_panel(a, 'qkv', 'PKQ')
    a("s_endpgm")
    a.label("PK_UP")
    a("s_sub_u32 s51, s2, 72")
    panel_role_setup(a, 'ffnup', 51)
    emit_panel(a, 'ffnup', 'PKU')
    a.label("PK_END")
    a("s_endpgm")
    return name, a.finalize(), kernel_desc(name, 512, 64, 256)

def gen_down_kernel():
    a = Asm(); name = "down_kernel"
    kernel_header(a, name)
    a(f"""s_cmp_ge_u32 s2, 10
s_cbranch_scc1 DK_END
s_load_dwordx2 s[38:39], s[0:1], {KA['ws']}
s_waitcnt lgkmcnt(0)""")
    srd(a, S_WS, 38, WS_SIZE)
    lane_setup(a, V_LANE, V_G, V_N, S_WAVE)
    a("s_mov_b32 s51, s2")
    panel_role_setup(a, 'down', 51)
    emit_panel(a, 'down', 'PKD')
    a.label("DK_END")
    a("s_endpgm")
    return name, a.finalize(), kernel_desc(name, 512, 64, 256)
```

```python
from gen_common import *

def gen_prep():
    a = Asm(); name = "prep_kernel"
    kernel_header(a, name)
    a(f"""s_cmp_ge_u32 s2, 256
s_cbranch_scc1 PREP_END
s_load_dwordx2 s[4:5], s[0:1], {KA['x']}
s_load_dwordx2 s[6:7], s[0:1], {KA['ws']}
s_waitcnt lgkmcnt(0)""")
    srd(a, 8, 4, S*D*2)
    srd(a, 12, 6, WS_SIZE)
    lane_setup(a, 1, 2, 3, 20)
    a(f"""s_mov_b32 s21, 0
s_cmp_lt_u32 s2, 128
s_cselect_b32 s21, 1, 0
s_cmp_eq_u32 s20, 0
s_cselect_b32 s21, s21, 0
s_cmp_eq_u32 s21, 0
s_cbranch_scc1 PREP_NOLOAD
s_lshl_b32 s22, s2, 4
v_add_u32 v4, s22, v3
v_mul_u32_u24 v4, 1280, v4
v_lshlrev_b32 v5, 4, v2
v_add_u32 v4, v4, v5""")
    for p in range(20):
        a(f"buffer_load_dwordx4 {vr(16+4*p)}, v4, s[8:11], 0 offen offset:{p*64}")
    a.label("PREP_NOLOAD")
    a(f"""s_lshl_b32 s22, s2, 8
v_add_u32 v6, s22, v0
v_lshlrev_b32 v6, 4, v6
v_mov_b32 v8, -1
v_mov_b32 v9, -1
v_mov_b32 v10, -1
v_mov_b32 v11, -1
v_mov_b32 v12, 0
v_mov_b32 v13, 0
v_mov_b32 v14, 0
v_mov_b32 v15, 0""")
    for slot in range(4):
        a(f"s_mov_b32 s23, {RING + slot*RING_SLOT}")
        a(f"buffer_store_dwordx4 {vr(8)}, v6, s[12:15], s23 offen")
    n2 = (SLOT_PHYS - MB)//16//256
    a(f"""s_cmp_ge_u32 s2, {n2}
s_cbranch_scc1 PREP_NO2""")
    for slot in range(4):
        a(f"s_mov_b32 s23, {RING + slot*RING_SLOT + MB}")
        a(f"buffer_store_dwordx4 {vr(8)}, v6, s[12:15], s23 offen")
    a.label("PREP_NO2")
    a(f"""s_cmp_ge_u32 s2, {FLAGS_SIZE//16//256}
s_cbranch_scc1 PREP_NO3
s_mov_b32 s23, {FLAGS}
buffer_store_dwordx4 {vr(12)}, v6, s[12:15], s23 offen""")
    a.label("PREP_NO3")
    a(f"""s_cmp_eq_u32 s21, 0
s_cbranch_scc1 PREP_END
s_waitcnt vmcnt(0)""")
    for r in range(80):
        a(f"v_lshlrev_b32 v{96+2*r}, 16, v{16+r}")
        a(f"v_and_b32 v{97+2*r}, 0xffff0000, v{16+r}")
    for k in range(4): a(f"v_add_f32 v{4+k}, v{96+k}, v{100+k}")
    for i in range(8, 160): a(f"v_add_f32 v{4+(i%4)}, v{4+(i%4)}, v{96+i}")
    a("v_add_f32 v4, v4, v5\nv_add_f32 v6, v6, v7\nv_add_f32 v4, v4, v6")
    def xreduce(r, t):
        a(f"v_mov_b32 v{t}, v{r}\nv_permlane16_swap_b32 v{r}, v{t}\nv_add_f32 v{r}, v{r}, v{t}")
        a(f"v_mov_b32 v{t}, v{r}\nv_permlane32_swap_b32 v{r}, v{t}\nv_add_f32 v{r}, v{r}, v{t}")
    xreduce(4, 5)
    a(f"s_mov_b32 s24, 0x{__import__('struct').unpack('<I', __import__('struct').pack('<f', 1.0/640))[0]:08x}")
    a("v_mul_f32 v4, s24, v4")
    for i in range(160): a(f"v_sub_f32 v{96+i}, v{96+i}, v4")
    for k in range(4): a(f"v_mul_f32 v{8+k}, v{96+k}, v{96+k}")
    for i in range(4, 160): a(f"v_fmac_f32 v{8+(i%4)}, v{96+i}, v{96+i}")
    a("v_add_f32 v8, v8, v9\nv_add_f32 v10, v10, v11\nv_add_f32 v8, v8, v10")
    xreduce(8, 9)
    a("v_mul_f32 v8, s24, v8")
    a("v_add_f32 v8, 0x3727c5ac, v8")
    a("v_rsq_f32 v8, v8")
    for r in range(80):
        a(f"v_mul_f32 v{96+2*r}, v{96+2*r}, v8")
        a(f"v_mul_f32 v{97+2*r}, v{97+2*r}, v8")
        a(f"v_cvt_pk_bf16_f32 v{16+r}, v{96+2*r}, v{97+2*r}")
    a(f"""s_mul_i32 s22, s2, {20*1024}
s_add_u32 s22, s22, {XN}
v_lshlrev_b32 v4, 4, v1""")
    for p in range(20):
        if p % 4 == 0 and p > 0:
            a("s_add_u32 s22, s22, 4096")
        a(f"buffer_store_dwordx4 {vr(16+4*p)}, v4, s[12:15], s22 offen offset:{(p%4)*1024}")
    a.label("PREP_END")
    a("s_endpgm")
    return name, a.finalize(), kernel_desc(name, 256, 64, 256)
```

```python
from gen_common import *
import struct, os
OPT=lambda k,d: type(d)(os.environ.get(k,d))
def f2u(f): return struct.unpack('<I', struct.pack('<f', f))[0]

S_WS=4; S_WQ=8; S_WK=12; S_WV=16; S_WO=20
S_WAVE=24; S_H=25; S_C=26; S_J=27; S_STEP=28
S_P=29; S_CUR=30; S_N=31; S_NN=32
S_HI32=20
S_M8=34; S_H8=38
S_T=40; S_T2=41; S_T3=42; S_RETRY=43
S_KVG=44; S_UXG=45; S_UYG=46; S_KMG=47; S_RSB=48; S_KVL=49; S_KVR=50; S_RED=51; S_RSP=52; S_FLG=53
S_LB=54
S_COL=56
S_SCALE=60; S_MAXR=61
S_TS=62
S_M0=88
S_MODE=57
S_REF0=98
S_REF2=36
S_NOW=58
L_MEM=0; L_QKV=10240; L_KV=20480; KVB=24576
LDS_REC=131072
V_LANE=1; V_G=2; V_N=3; V_T=4; V_T2=5; V_L16=6
V_AGO=7; V_AGL=10; V_MRD=11; V_AST=12; V_KMS=15; V_APO=16; V_APL=19
V_RQ=20; V_RK=23; V_RV=26; V_RSO=28; V_L4=29; V_AGS=30; V_ZERO=31
V_NINF=248
V_POLL=32; V_RING=48; V_ACC=80; V_PK=92; V_KXF=100; V_QF=148; V_KF=172; V_VF=196; V_S=220; V_UXF=232
V_Y=48; V_PU=64; V_UA=48; V_YF=220; V_SM=148
NT = [4, 4, 2]; T0 = [0, 4, 8]; P0 = [0, 2, 4]
KVX = L_KV ^ (L_KV+KVB)

def poll_check(a, regs, vt):
    r = list(regs)
    a(f"v_max3_u32 v{vt}, v{r[0]}, v{r[1]}, v{r[2]}")
    i = 3
    while i < len(r):
        if i + 1 < len(r):
            a(f"v_max3_u32 v{vt}, v{vt}, v{r[i]}, v{r[i+1]}"); i += 2
        else:
            a(f"v_max_u32 v{vt}, v{vt}, v{r[i]}"); i += 1
    a(f"v_cmp_eq_u32 vcc, -1, v{vt}")

def sleep(a, n):
    while n > 0:
        k = min(n, 127); a(f"s_sleep {k}"); n -= k

def mark(a, reg):
    a(f"s_memtime s[{reg}:{reg+1}]")

def wait_until(a, ref, delta):
    if delta <= 0: return
    a.uid += 1
    L = f"WU_{a.uid}"
    a.label(L)
    a(f"""s_memtime s[{S_NOW}:{S_NOW+1}]
s_waitcnt lgkmcnt(0)
s_sub_u32 s{S_NOW}, s{S_NOW}, s{ref}
s_cmp_ge_u32 s{S_NOW}, {delta}
s_cbranch_scc1 {L}_D
s_sub_u32 s{S_NOW}, {delta}, s{S_NOW}
s_cmp_lt_u32 s{S_NOW}, 96
s_cbranch_scc1 {L}
s_sleep 1
s_branch {L}""")
    a.label(f"{L}_D")

def stamp(a, idx):
    if OPT('STAMP', 0):
        a(f"s_memtime s[{S_TS+2*idx}:{S_TS+2*idx+1}]")
        a("s_waitcnt lgkmcnt(0)")

def racc(a, k):
    if OPT('STAMP', 0): a(f"s_add_u32 s{k}, s{k}, s{S_RETRY}")

def nearmap_v(a, v, vt):
    a(f"""v_lshrrev_b32 v{vt}, 13, v{v}
v_lshlrev_b32 v{vt}, 14, v{vt}
v_and_b32 v{v}, 0x1fff, v{v}
v_or_b32 v{v}, v{v}, v{vt}""")

def oob_mask(a, v, nlanes):
    a(f"""v_mov_b32 v{V_T}, 0x80000000
v_cmp_gt_u32 vcc, {nlanes}, v{V_LANE}
v_cndmask_b32 v{v}, v{V_T}, v{v}, vcc""")

def poll_loop(a, lbl, loads, nreg, acc, pre_issued=False):
    a(f"s_mov_b32 s{S_RETRY}, 0")
    if pre_issued:
        a(f"s_branch {lbl}_W")
    a.label(lbl)
    for x in loads: a(x)
    if pre_issued: a.label(f"{lbl}_W")
    a("s_waitcnt vmcnt(0)")
    poll_check(a, range(V_POLL, V_POLL+nreg), V_T)
    a(f"""s_cbranch_vccz {lbl}_OK
s_add_u32 s{S_RETRY}, s{S_RETRY}, 1
s_cmp_lt_u32 s{S_RETRY}, s{S_MAXR}
s_cbranch_scc1 {lbl}
s_mov_b32 s{S_MAXR}, 0""")
    a.label(f"{lbl}_OK")
    racc(a, acc)

def store_mode(a, lines):
    if OPT('AFAST', 1) == 0:
        for x in lines: a(x.replace(' SCX', ' sc1'))
        return
    a.uid += 1
    L = f"SM_{a.uid}"
    a(f"s_cmp_eq_u32 s{S_MODE}, 0")
    a(f"s_cbranch_scc1 {L}_S")
    for x in lines: a(x.replace(' SCX', ''))
    a(f"s_branch {L}_E")
    a.label(f"{L}_S")
    for x in lines: a(x.replace(' SCX', ' sc1'))
    a.label(f"{L}_E")

def wait_mode(a, ref, fast, slow):
    if OPT('AFAST', 1) == 0:
        wait_until(a, ref, slow); return
    a.uid += 1
    L = f"WM_{a.uid}"
    a(f"s_cmp_eq_u32 s{S_MODE}, 0")
    a(f"s_cbranch_scc1 {L}_S")
    wait_until(a, ref, fast)
    a(f"s_branch {L}_E")
    a.label(f"{L}_S")
    wait_until(a, ref, slow)
    a.label(f"{L}_E")

def ag_poll(a, pfx, w):
    wait_until(a, S_REF2, OPT('T_AG', 400))
    if OPT('AG4', 1):
        loads = [f"buffer_load_dwordx4 {vr(V_POLL+4*k)}, v{V_AGO+k}, s[{S_WS}:{S_WS+3}], s{S_P} offen sc1" for k in range(3)]
        poll_loop(a, f"{pfx}_AGP", loads, 12, 92)
        a(f"ds_write_b128 v{V_AGL}, {vr(V_POLL)}")
        a(f"ds_write_b128 v{V_AGL}, {vr(V_POLL+4)} offset:1024")
        a("s_mov_b32 exec_hi, 0")
        a(f"ds_write_b128 v{V_AGL}, {vr(V_POLL+8)} offset:2048")
        a("s_mov_b64 exec, -1")
        return
    if w != 3: return
    loads = []
    for k in range(10):
        if k < 4: loads.append(f"buffer_load_dwordx4 {vr(V_POLL+4*k)}, v{V_AGO}, s[{S_WS}:{S_WS+3}], s{S_P} offen offset:{k*1024} sc1")
        elif k < 8: loads.append(f"buffer_load_dwordx4 {vr(V_POLL+4*k)}, v{V_AGO+1}, s[{S_WS}:{S_WS+3}], s{S_P} offen offset:{(k-4)*1024} sc1")
        else: loads.append(f"buffer_load_dwordx4 {vr(V_POLL+4*k)}, v{V_AGO+2}, s[{S_WS}:{S_WS+3}], s{S_P} offen offset:{(k-8)*1024} sc1")
    poll_loop(a, f"{pfx}_AGP", loads, 40, 92)
    for k in range(10):
        a(f"ds_write_b128 v{V_L16}, {vr(V_POLL+4*k)} offset:{L_MEM + k*1024}")

def rotate_slots(a):
    a(f"""s_mov_b32 s{S_T}, s{S_P}
s_mov_b32 s{S_P}, s{S_CUR}
s_mov_b32 s{S_CUR}, s{S_N}
s_mov_b32 s{S_N}, s{S_NN}
s_mov_b32 s{S_NN}, s{S_T}""")

def proj_stage(a, ntile, wquad):
    NRING = 8
    for p in range(min(NRING, 20)):
        a(f"ds_read_b128 {vr(V_RING+4*p)}, v{V_MRD} offset:{L_MEM + p*512}")
    for p in range(20):
        outstanding = min(NRING, 20 - p)
        a(f"s_waitcnt lgkmcnt({outstanding-1})")
        for t in range(ntile):
            c = "0" if p == 0 else vr(V_ACC+4*t)
            a(f"v_mfma_f32_16x16x32_bf16 {vr(V_ACC+4*t)}, {wquad(t,p)}, {vr(V_RING+4*(p%NRING))}, {c}")
        if p + NRING < 20:
            a(f"ds_read_b128 {vr(V_RING+4*(p%NRING))}, v{V_MRD} offset:{L_MEM + (p+NRING)*512}")

def idle_phase(a, w, woq):
    nt = NT[w]
    a(f"v_add_u32 v{V_T}, s{S_KVR}, v{V_L16}")
    for f in range(12):
        a(f"ds_read_b128 {vr(V_QF+4*f)}, v{V_T} offset:{12288 + f*1024}")
        if f == 7: a("s_waitcnt lgkmcnt(4)")
    a("s_waitcnt lgkmcnt(0)")
    for f in range(12):
        a(f"ds_read_b128 {vr(V_KXF+4*f)}, v{V_T} offset:{f*1024}")
    for p in range(6):
        for t in range(nt):
            for tt in range(2):
                d = V_UA + 8*t + 4*tt
                c = "0" if p == 0 else vr(d)
                a(f"v_mfma_f32_16x16x32_bf16 {vr(d)}, {vr(V_QF+4*(tt*6+p))}, {woq(t,p)}, {c}")
    for t in range(nt):
        for k in range(4):
            tt = k >> 1
            d = V_UA + 8*t + 4*tt + 2*(k & 1)
            a(f"v_cvt_pk_bf16_f32 v{V_UXF+4*t+k}, v{d}, v{d+1}")
        a(f"s_add_u32 s{S_T}, s{S_UXG}, {t*1024}")
        if OPT('UXST', 0): a(f"buffer_store_dwordx4 {vr(V_UXF+4*t)}, v{V_L16}, s[{S_WS}:{S_WS+3}], s{S_T} offen sc1")
    a(f"s_add_u32 s{S_UXG}, s{S_UXG}, {32*40*1024}")
    a("s_waitcnt lgkmcnt(0)")
    a(f"s_xor_b32 s{S_KVR}, s{S_KVR}, {KVX}")

def kv_dma(a):
    a(f"s_lshl_b32 s{S_T2}, s{S_WAVE}, 12")
    a(f"s_add_u32 s{S_T2}, s{S_T2}, s{S_KVL}")
    a(f"s_mov_b32 m0, s{S_T2}")
    for j in range(4):
        a(f"buffer_load_dwordx4 v{V_L16}, s[{S_WS}:{S_WS+3}], s{S_KVG} offen offset:{j*1024} sc1 lds")
    a(f"s_add_u32 m0, s{S_T2}, 12288")
    a(f"s_add_u32 s{S_T}, s{S_KVG}, {VX-KX}")
    for j in range(4):
        a(f"buffer_load_dwordx4 v{V_L16}, s[{S_WS}:{S_WS+3}], s{S_T} offen offset:{j*1024} sc1 lds")
    a(f"s_add_u32 s{S_KVG}, s{S_KVG}, {32*12288}")
    a(f"s_xor_b32 s{S_KVL}, s{S_KVL}, {KVX}")

def softmax(a, inter):
    X = V_SM; MX = V_SM+6; TM = V_SM+7; RS_ = V_SM+8; PT = V_SM+12; PM = V_SM+10
    L = []
    for r in range(4): L.append(f"v_cndmask_b32 v{X+r}, v{V_S+4+r}, v{V_S+8+r}, s[{S_H8}:{S_H8+1}]")
    L.append(f"v_cndmask_b32 v{X+4}, v{V_S}, v{V_S+2}, s[{S_H8}:{S_H8+1}]")
    L.append(f"v_cndmask_b32 v{X+5}, v{V_S+1}, v{V_S+3}, s[{S_H8}:{S_H8+1}]")
    L.append(f"v_cndmask_b32 v{X+4}, v{X+4}, v{V_NINF}, s[{S_HI32}:{S_HI32+1}]")
    L.append(f"v_cndmask_b32 v{X+5}, v{X+5}, v{V_NINF}, s[{S_HI32}:{S_HI32+1}]")
    L.append(f"v_max3_f32 v{MX}, v{X}, v{X+1}, v{X+2}")
    L.append(f"v_max3_f32 v{TM}, v{X+3}, v{X+4}, v{X+5}")
    L.append(f"v_max_f32 v{MX}, v{MX}, v{TM}")
    L.append(f"v_max_f32_dpp v{MX}, v{MX}, v{MX} row_ror:8 row_mask:0xf bank_mask:0xf")
    L += [f"v_mov_b32 v{TM}, v{MX}", f"v_permlane16_swap_b32 v{MX}, v{TM}", f"v_max_f32 v{MX}, v{MX}, v{TM}"]
    L += [f"v_mov_b32 v{TM}, v{MX}", f"v_permlane32_swap_b32 v{MX}, v{TM}", f"v_max_f32 v{MX}, v{MX}, v{TM}"]
    L.append(f"v_mul_f32 v{MX}, s{S_SCALE}, v{MX}")
    for j in range(6): L.append(f"v_fma_f32 v{X+j}, v{X+j}, s{S_SCALE}, -v{MX}")
    for j in range(6): L.append(f"v_exp_f32 v{X+j}, v{X+j}")
    L.append(f"v_add_f32 v{RS_}, v{X}, v{X+1}")
    L.append(f"v_add_f32 v{TM}, v{X+2}, v{X+3}")
    L.append(f"v_add_f32 v{RS_+1}, v{X+4}, v{X+5}")
    L.append(f"v_add_f32 v{RS_}, v{RS_}, v{TM}")
    L.append(f"v_add_f32 v{RS_}, v{RS_}, v{RS_+1}")
    L.append(f"v_add_f32_dpp v{RS_}, v{RS_}, v{RS_} row_ror:8 row_mask:0xf bank_mask:0xf")
    L += [f"v_mov_b32 v{TM}, v{RS_}", f"v_permlane16_swap_b32 v{RS_}, v{TM}", f"v_add_f32 v{RS_}, v{RS_}, v{TM}"]
    L += [f"v_mov_b32 v{TM}, v{RS_}", f"v_permlane32_swap_b32 v{RS_}, v{TM}", f"v_add_f32 v{RS_}, v{RS_}, v{TM}"]
    L.append(f"v_rcp_f32 v{RS_}, v{RS_}")
    for j in range(6): L.append(f"v_mul_f32 v{X+j}, v{X+j}, v{RS_}")
    L.append(f"v_cvt_pk_bf16_f32 v{PT}, v{X}, v{X+1}")
    L.append(f"v_cvt_pk_bf16_f32 v{PT+1}, v{X+2}, v{X+3}")
    L.append(f"v_cvt_pk_bf16_f32 v{PM}, v{X+4}, v{X+5}")
    L.append(f"v_mov_b32_dpp v{PT+2}, v{PT} row_ror:8 row_mask:0xf bank_mask:0xf")
    L.append(f"v_mov_b32_dpp v{PT+3}, v{PT+1} row_ror:8 row_mask:0xf bank_mask:0xf")
    L.append(f"v_mov_b32_dpp v{PM+1}, v{PM} row_ror:8 row_mask:0xf bank_mask:0xf")
    inter = list(inter)
    step = max(1, len(L) // max(1, len(inter)))
    for i, x in enumerate(L):
        if inter and i % step == 0: a(inter.pop(0))
        a(x)
    for x in inter: a(x)
    return PT, PM

def gi(a, v):
    a(f"""v_lshlrev_b32 v{v}, 7, v{V_G}
v_and_b32 v{V_T}, 7, v{V_LANE}
v_lshlrev_b32 v{V_T}, 4, v{V_T}
v_add_u32 v{v}, v{v}, v{V_T}""")

def rs_lane(a, v):
    a(f"""v_lshrrev_b32 v{v}, 1, v{V_G}
v_lshlrev_b32 v{v}, 14, v{v}
v_and_b32 v{V_T}, 1, v{V_G}
v_lshlrev_b32 v{V_T}, 12, v{V_T}
v_add_u32 v{v}, v{v}, v{V_T}
v_and_b32 v{V_T}, 7, v{V_LANE}
v_lshlrev_b32 v{V_T}, 4, v{V_T}
v_add_u32 v{v}, v{v}, v{V_T}
s_lshl_b32 s{S_T}, s{S_H}, 7
v_add_u32 v{v}, s{S_T}, v{v}""")

def main_wave(a, w):
    pfx = f"RM{w}"
    nt = NT[w]
    wreg = WReg(0, 256, 0)
    wq = lambda p: wreg.quad(p); wk = lambda p: wreg.quad(20+p)
    woq = lambda t, p: wreg.quad(40 + t*6 + p)
    a(f"s_lshl_b32 s{S_LB}, s{S_WAVE}, 15")
    w_addr_setup(a, V_LANE, V_POLL, V_POLL+1, H*E*2, True, S_LB, V_T)
    a(f"""s_mul_i32 s{S_COL}, s{S_H}, 384
s_mul_i32 s{S_T}, s{S_C}, 96
s_add_u32 s{S_COL}, s{S_COL}, s{S_T}
s_add_u32 s{S_COL}, s{S_COL}, {w*32}""")
    frags = [(S_WQ, (S_COL, p*32*H*E*2)) for p in range(20)] + [(S_WK, (S_COL, p*32*H*E*2)) for p in range(20)]
    load_w(a, frags, wreg, V_POLL, V_POLL+1, S_T, S_LB, True)
    w_addr_setup(a, V_LANE, V_POLL, V_POLL+1, D*2, True, S_LB, V_T)
    a(f"""s_mul_i32 s{S_COL}, s{S_H}, {192*1280}
s_mul_i32 s{S_T}, s{S_C}, 320
s_add_u32 s{S_COL}, s{S_COL}, s{S_T}
s_add_u32 s{S_COL}, s{S_COL}, {T0[w]*32}""")
    frags = [(S_WO, (S_COL, t*32 + p*32*1280)) for t in range(nt) for p in range(6)]
    class W2:
        def pair(self, f, k): return wreg.pair(40+f, k)
    load_w(a, frags, W2(), V_POLL, V_POLL+1, S_T, S_LB, True)
    if OPT('STAMP', 0): a("s_memtime s[78:79]\ns_waitcnt lgkmcnt(0)\ns_sub_u32 s95, s78, s100")
    common_setup(a, w)
    gi(a, V_AST)
    a(f"""v_add_u32 v{V_KMS}, {w*1024}, v{V_AST}
s_mul_i32 s{S_T}, s{S_C}, 3
s_add_u32 s{S_T}, s{S_T}, {w}
s_lshl_b32 s{S_T}, s{S_T}, 9
s_mul_i32 s{S_T2}, s{S_H}, 9216
s_add_u32 s{S_T}, s{S_T}, s{S_T2}
v_add_u32 v{V_AST}, s{S_T}, v{V_AST}""")
    nearmap_v(a, V_AST, V_T)
    a(f"""s_add_u32 s{S_T}, s{S_T2}, {w*2048}
v_add_u32 v{V_APO}, s{S_T}, v{V_L16}
v_add_u32 v{V_APO+1}, 1024, v{V_APO}
v_add_u32 v{V_APL}, {L_QKV + w*2048}, v{V_L16}""")
    nearmap_v(a, V_APO, V_T); nearmap_v(a, V_APO+1, V_T)
    gi(a, V_RQ)
    a(f"""v_lshrrev_b32 v{V_RV}, 1, v{V_RQ}
v_add_u32 v{V_RQ}, {L_QKV}, v{V_RQ}
v_add_u32 v{V_RQ+1}, 2048, v{V_RQ}
v_add_u32 v{V_RQ+2}, 4096, v{V_RQ}
v_add_u32 v{V_RK}, 8, v{V_RQ}
v_add_u32 v{V_RK+1}, 2048, v{V_RK}
v_add_u32 v{V_RK+2}, 4096, v{V_RK}
v_add_u32 v{V_RV}, {L_QKV+6144}, v{V_RV}
v_add_u32 v{V_RV+1}, 2048, v{V_RV}""")
    rs_lane(a, V_RSO)
    a(f"""s_mul_i32 s{S_RSB}, s{S_C}, {5*32768}
s_add_u32 s{S_RSB}, s{S_RSB}, {nearmap(RS_LOG) + P0[w]*32768}
s_mul_i32 s{S_T}, s{S_H}, 12288
s_add_u32 s{S_KVG}, s{S_T}, {KX + w*4096}
s_mul_i32 s{S_T}, s{S_H}, 40
s_mul_i32 s{S_T2}, s{S_C}, 10
s_add_u32 s{S_T}, s{S_T}, s{S_T2}
s_add_u32 s{S_T}, s{S_T}, {T0[w]}
s_lshl_b32 s{S_UXG}, s{S_T}, 10
s_add_u32 s{S_UXG}, s{S_UXG}, {UX}
s_lshl_b32 s{S_UYG}, s{S_T}, 8
s_add_u32 s{S_UYG}, s{S_UYG}, {UY}
s_mul_i32 s{S_KMG}, s{S_H}, 3072
s_add_u32 s{S_KMG}, s{S_KMG}, {KM}
s_mov_b32 s{S_KVL}, {L_KV}
s_mov_b32 s{S_KVR}, {L_KV}""")
    read_polarity(a, pfx)
    a("s_barrier")
    kv_dma(a); kv_dma(a)
    mem0_stage(a, w)
    a("s_waitcnt vmcnt(0) lgkmcnt(0)")
    a("s_barrier")
    idle_phase(a, w, woq)
    stamp(a, 0)
    if OPT('STAMP', 0): a(f"s_sub_u32 s101, s{S_TS}, s100")
    a(f"s_branch {pfx}_B0")
    a.label(f"{pfx}_LOOP")
    stamp(a, 0)
    if OPT('AG4', 1): ag_poll(a, pfx, w)
    a.label(f"{pfx}_B0")
    a("s_waitcnt lgkmcnt(0)")
    a("s_barrier")
    mark(a, S_REF0)
    stamp(a, 1)
    proj_stage(a, 2, lambda t, p: wq(p) if t == 0 else wk(p))
    for k in range(4):
        a(f"v_cvt_pk_bf16_f32 v{V_PK+k}, v{V_ACC+2*k}, v{V_ACC+2*k+1}")
    a(f"s_mov_b64 exec, s[{S_M8}:{S_M8+1}]")
    store_mode(a, [f"buffer_store_dwordx4 {vr(V_PK)}, v{V_AST}, s[{S_WS}:{S_WS+3}], s{S_CUR} offen SCX"])
    a("s_mov_b64 exec, -1")
    stamp(a, 2)
    wait_mode(a, S_REF0, OPT('T_AF', 0), OPT('T_A', 1150))
    loads = [f"buffer_load_dwordx4 {vr(V_POLL+4*k)}, v{V_APO+k}, s[{S_WS}:{S_WS+3}], s{S_CUR} offen sc1" for k in range(2)]
    poll_loop(a, f"{pfx}_AP", loads, 8, 93)
    a(f"ds_write_b128 v{V_APL}, {vr(V_POLL)}")
    a(f"ds_write_b128 v{V_APL}, {vr(V_POLL+4)} offset:1024")
    a("s_waitcnt lgkmcnt(0)")
    stamp(a, 3)
    a("s_barrier")
    stamp(a, 4)
    for p in range(6):
        o = (p & 1)*128
        a(f"ds_read2_b64 {vr(V_QF+4*p)}, v{V_RQ+(p>>1)} offset0:{o} offset1:{o+64}")
        a(f"ds_read2_b64 {vr(V_KF+4*p)}, v{V_RK+(p>>1)} offset0:{o} offset1:{o+64}")
    for p in range(6):
        a(f"s_waitcnt lgkmcnt({2*(5-p)})")
        for u, A_ in enumerate((vr(V_KXF+4*p), vr(V_KXF+4*(6+p)), vr(V_KF+4*p))):
            d = V_S + (4 if u == 0 else 8 if u == 1 else 0)
            c = "0" if p == 0 else vr(d)
            a(f"v_mfma_f32_16x16x32_bf16 {vr(d)}, {A_}, {vr(V_QF+4*p)}, {c}")
    a("s_barrier")
    stamp(a, 5)
    for p in range(6):
        if p < 4: a(f"ds_read2_b64 {vr(V_VF+4*p)}, v{V_RV} offset0:{64*p} offset1:{64*p+32}")
        else: a(f"ds_read2_b64 {vr(V_VF+4*p)}, v{V_RV+1} offset0:{64*(p-4)} offset1:{64*(p-4)+32}")
    ym = []
    for p in range(6):
        for t in range(nt):
            c = "0" if p == 0 else vr(V_Y+4*t)
            pre = f"s_waitcnt lgkmcnt({5-p})\n" if t == 0 else ""
            ym.append(pre + f"v_mfma_f32_16x16x32_bf16 {vr(V_Y+4*t)}, {vr(V_VF+4*p)}, {woq(t,p)}, {c}")
    PT, PM = softmax(a, ym)
    for t in range(nt):
        a(f"v_mfma_f32_16x16x32_bf16 {vr(V_PU+4*t)}, {vr(V_UXF+4*t)}, {vr(PT)}, 0")
    for t in range(nt):
        a(f"v_cvt_pk_bf16_f32 v{V_YF+2*t}, v{V_Y+4*t}, v{V_Y+4*t+1}")
        a(f"v_cvt_pk_bf16_f32 v{V_YF+2*t+1}, v{V_Y+4*t+2}, v{V_Y+4*t+3}")
    for t in range(nt):
        a(f"v_mfma_f32_16x16x16_bf16 {vr(V_PU+4*t)}, {vr(V_YF+2*t,2)}, {vr(PM,2)}, {vr(V_PU+4*t)}")
    for t in range(nt):
        a(f"v_cvt_pk_bf16_f32 v{V_Y+2*t}, v{V_PU+4*t}, v{V_PU+4*t+1}")
        a(f"v_cvt_pk_bf16_f32 v{V_Y+2*t+1}, v{V_PU+4*t+2}, v{V_PU+4*t+3}")
    a(f"s_add_u32 s{S_T}, s{S_CUR}, s{S_RSB}")
    a(f"s_mov_b64 exec, s[{S_M8}:{S_M8+1}]")
    for P in range(nt//2):
        if P > 0: a(f"s_add_u32 s{S_T}, s{S_T}, 32768")
        a(f"buffer_store_dwordx4 {vr(V_Y+4*P)}, v{V_RSO}, s[{S_WS}:{S_WS+3}], s{S_T} offen sc1")
    stamp(a, 6)
    a(f"s_cmp_lg_u32 s{S_C}, 0")
    a(f"s_cbranch_scc1 {pfx}_NOKM")
    for k in range(2):
        a(f"buffer_store_dwordx4 {vr(V_KF+4*(2*w+k))}, v{V_KMS}, s[{S_WS}:{S_WS+3}], s{S_KMG} offen offset:{k*512} sc1")
    a.label(f"{pfx}_NOKM")
    a("s_mov_b64 exec, -1")
    a(f"s_add_u32 s{S_KMG}, s{S_KMG}, {32*3072}")
    a("s_mov_b32 exec_hi, 0")
    for t in range(nt if not OPT('NOUY', 0) else 0):
        a(f"buffer_store_dwordx2 {vr(V_YF+2*t,2)}, v{V_L4}, s[{S_WS}:{S_WS+3}], s{S_UYG} offen offset:{t*256} sc1")
    a("s_mov_b64 exec, -1")
    a(f"s_add_u32 s{S_UYG}, s{S_UYG}, {32*40*256}")
    a(f"s_add_u32 s{S_STEP}, s{S_STEP}, 1")
    a(f"s_cmp_ge_u32 s{S_STEP}, 64")
    a(f"s_cbranch_scc1 {pfx}_DONE")
    if not OPT('NODMA', 0): kv_dma(a)
    stamp(a, 7)
    idle_phase(a, w, woq)
    rotate_slots(a)
    stamp_acc(a)
    a("s_barrier")
    mark(a, S_REF2)
    a(f"s_branch {pfx}_LOOP")
    a.label(f"{pfx}_DONE")
    a("s_waitcnt vmcnt(0)")
    a("s_barrier")
    stamp_out(a, w)
    a("s_endpgm")

def stamp_acc(a):
    if not OPT('STAMP', 0): return
    a(f"s_memtime s[{S_TS+16}:{S_TS+17}]")
    a("s_waitcnt lgkmcnt(0)")
    for k in range(8):
        a(f"s_sub_u32 s{S_T}, s{S_TS+2*k+2}, s{S_TS+2*k}")
        a(f"s_add_u32 s{80+k}, s{80+k}, s{S_T}")

def stamp_out(a, w):
    if not OPT('STAMP', 0): return
    a.uid += 1
    L = f"STO_{w}_{a.uid}"
    a(f"""s_cmp_lg_u32 s{S_J}, {OPT('STAMPROLE', 0)}
s_cbranch_scc1 {L}
s_load_dwordx2 s[96:97], s[0:1], {KA['dbg']}
s_waitcnt lgkmcnt(0)
s_mov_b64 exec, 1""")
    for k in range(8):
        a(f"v_mov_b32 v10, s{80+k}\nv_mov_b32 v11, {64 + w*48 + k*4}\nglobal_store_dword v11, v10, s[96:97]\ns_waitcnt vmcnt(0)")
    if w == 0:
        a(f"v_mov_b32 v10, s95\nv_mov_b32 v11, 40\nglobal_store_dword v11, v10, s[96:97]\ns_waitcnt vmcnt(0)")
        a(f"v_mov_b32 v10, s101\nv_mov_b32 v11, 44\nglobal_store_dword v11, v10, s[96:97]\ns_waitcnt vmcnt(0)")
    for k in range(3):
        a(f"v_mov_b32 v10, s{92+k}\nv_mov_b32 v11, {64 + w*48 + 32 + k*4}\nglobal_store_dword v11, v10, s[96:97]\ns_waitcnt vmcnt(0)")
    a.label(L)

def common_setup(a, w):
    a(f"""v_lshlrev_b32 v{V_L16}, 4, v{V_LANE}
v_lshlrev_b32 v{V_L4}, 3, v{V_LANE}
v_mov_b32 v{V_ZERO}, 0
s_mov_b32 s{S_M8}, 0x00ff00ff
s_mov_b32 s{S_M8+1}, 0x00ff00ff
s_mov_b32 s{S_H8}, 0xff00ff00
s_mov_b32 s{S_H8+1}, 0xff00ff00
s_mov_b32 s{S_HI32}, 0
s_mov_b32 s{S_HI32+1}, -1
v_mov_b32 v{V_NINF}, 0xff800000
s_mov_b32 s{S_SCALE}, 0x{f2u(192**-0.5*1.4426950408889634):08x}
s_mov_b32 s{S_MAXR}, {OPT('MAXRETRY', 100000)}
s_mov_b32 s{S_STEP}, 0""")
    for k in range(8): a(f"s_mov_b32 s{80+k}, 0")
    for k in range(92, 95): a(f"s_mov_b32 s{k}, 0")
    if OPT('AG4', 1):
        for k in range(3):
            a(f"v_add_u32 v{V_AGO+k}, {AG_LOG + w*2560 + k*1024}, v{V_L16}")
            nearmap_v(a, V_AGO+k, V_T2)
        oob_mask(a, V_AGO+2, 32)
    else:
        for k in range(3):
            a(f"v_add_u32 v{V_AGO+k}, {nearmap(AG_LOG + k*4096)}, v{V_L16}")
    a(f"v_add_u32 v{V_AGL}, {L_MEM + w*2560}, v{V_L16}")
    gi(a, V_MRD)

def mem0_stage(a, w):
    for k in range(3):
        a(f"""v_add_u32 v{V_T}, {160*w + 64*k}, v{V_LANE}
v_and_b32 v{V_T2}, 7, v{V_T}
v_mul_u32_u24 v{V_T2}, 1280, v{V_T2}
v_lshrrev_b32 v{V_POLL+12}, 5, v{V_T}
v_lshlrev_b32 v{V_POLL+12}, 6, v{V_POLL+12}
v_add_u32 v{V_T2}, v{V_T2}, v{V_POLL+12}
v_bfe_u32 v{V_T}, v{V_T}, 3, 2
v_lshlrev_b32 v{V_T}, 3, v{V_T}
v_add_u32 v{V_T}, v{V_T}, v{V_T2}""")
        a(f"buffer_load_dwordx2 {vr(V_POLL+4*k,2)}, v{V_T}, s[{S_M0}:{S_M0+3}], 0 offen")
        a(f"buffer_load_dwordx2 {vr(V_POLL+4*k+2,2)}, v{V_T}, s[{S_M0}:{S_M0+3}], 0 offen offset:32")
    a("s_waitcnt vmcnt(0)")
    a(f"ds_write_b128 v{V_AGL}, {vr(V_POLL)}")
    a(f"ds_write_b128 v{V_AGL}, {vr(V_POLL+4)} offset:1024")
    a("s_mov_b32 exec_hi, 0")
    a(f"ds_write_b128 v{V_AGL}, {vr(V_POLL+8)} offset:2048")
    a("s_mov_b64 exec, -1")

def service_wave(a):
    w = 3; pfx = "RS3"
    wreg = WReg(0, 256, 0)
    a(f"s_lshl_b32 s{S_LB}, s{S_WAVE}, 15")
    w_addr_setup(a, V_LANE, V_POLL, V_POLL+1, H*E*2, True, S_LB, V_T)
    a(f"""s_mul_i32 s{S_COL}, s{S_H}, 384
s_mul_i32 s{S_T}, s{S_C}, 96
s_add_u32 s{S_COL}, s{S_COL}, s{S_T}""")
    frags = [(S_WV, (S_COL, t*32 + p*32*H*E*2)) for t in range(3) for p in range(20)]
    load_w(a, frags, wreg, V_POLL, V_POLL+1, S_T, S_LB, True)
    common_setup(a, w)
    PQ = V_KXF; PV_ = V_KXF+2; R = V_KXF+6; SEL = V_KXF+8; ONES = V_KXF+12
    gi(a, V_AST)
    a(f"""v_lshrrev_b32 v{V_AST}, 1, v{V_AST}
s_mul_i32 s{S_T2}, s{S_H}, 9216
s_mul_i32 s{S_T}, s{S_C}, 768
s_add_u32 s{S_T}, s{S_T}, s{S_T2}
s_add_u32 s{S_T}, s{S_T}, 6144
v_add_u32 v{V_AST}, s{S_T}, v{V_AST}
v_add_u32 v{V_AST+1}, 256, v{V_AST}
v_add_u32 v{V_AST+2}, 512, v{V_AST}
v_add_u32 v{PV_}, s{S_T}, v{V_L16}
s_mul_i32 s{S_T}, s{S_C}, 1536
s_add_u32 s{S_T}, s{S_T}, s{S_T2}
v_add_u32 v{PQ}, s{S_T}, v{V_L16}
v_add_u32 v{PQ+1}, 1024, v{PQ}""")
    for r in (V_AST, V_AST+1, V_AST+2, PV_, PQ, PQ+1): nearmap_v(a, r, V_T)
    oob_mask(a, PV_, 48); oob_mask(a, PQ+1, 32)
    for k in range(3):
        a(f"v_add_u32 v{V_APO+k}, s{S_T2}, v{V_L16}")
        a(f"v_add_u32 v{V_APO+k}, {6144 + k*1024}, v{V_APO+k}")
        nearmap_v(a, V_APO+k, V_T)
    a(f"v_add_u32 v{V_APL}, {L_QKV + 6144}, v{V_L16}")
    rs_lane(a, R)
    a(f"""s_mul_i32 s{S_RSB}, s{S_C}, {5*32768}
s_add_u32 s{S_RSB}, s{S_RSB}, {nearmap(RS_LOG)}
s_lshr_b32 s{S_T}, s{S_J}, 5
s_and_b32 s{S_T2}, s{S_J}, 31
s_mul_i32 s{S_T}, s{S_T}, 20
s_add_u32 s{S_T}, s{S_T}, s{S_T2}
s_cmp_lt_u32 s{S_T2}, 20
s_cselect_b32 s{S_RED}, 1, 0
s_sub_u32 s{S_T3}, s{S_T}, 20
s_cmp_eq_u32 s{S_RED}, 1
s_cselect_b32 s{S_T}, s{S_T}, s{S_T3}
s_lshr_b32 s{S_T2}, s{S_T}, 1
s_lshl_b32 s{S_T2}, s{S_T2}, 14
s_and_b32 s{S_T3}, s{S_T}, 1
s_lshl_b32 s{S_T3}, s{S_T3}, 12
s_add_u32 s{S_RSP}, s{S_T2}, s{S_T3}
s_add_u32 s{S_RSP}, s{S_RSP}, {nearmap(RS_LOG)}
s_lshl_b32 s{S_T}, s{S_T}, 7
v_add_u32 v{V_AGS}, s{S_T}, v{V_L16}
v_add_u32 v{V_AGS}, {AG_LOG}, v{V_AGS}""")
    nearmap_v(a, V_AGS, V_T)
    a(f"s_lshl_b32 s{S_T}, s{S_RED}, 3")
    a(f"v_mov_b32 v{V_T}, 0x80000000")
    a(f"v_cmp_gt_u32 vcc, s{S_T}, v{V_LANE}")
    a(f"v_cndmask_b32 v{V_AGS}, v{V_T}, v{V_AGS}, vcc")
    for k in range(4):
        a(f"""v_mov_b32 v{SEL+k}, 0
v_mov_b32 v{V_T}, 0x3f80
v_cmp_eq_u32 vcc, {2*k}, v{V_N}
v_cndmask_b32 v{SEL+k}, v{SEL+k}, v{V_T}, vcc
v_mov_b32 v{V_T}, 0x3f800000
v_cmp_eq_u32 vcc, {2*k+1}, v{V_N}
v_cndmask_b32 v{SEL+k}, v{SEL+k}, v{V_T}, vcc""")
    for k in range(4): a(f"v_mov_b32 v{ONES+k}, -1")
    a(f"v_mov_b32 v{ONES+4}, 1")
    a(f"s_lshl_b32 s{S_FLG}, s{S_J}, 2")
    a(f"s_add_u32 s{S_FLG}, s{S_FLG}, {FLAGS + 4096}")
    read_polarity(a, pfx)
    a("s_barrier")
    mem0_stage(a, w)
    a("s_waitcnt vmcnt(0) lgkmcnt(0)")
    a("s_barrier")
    stamp(a, 0)
    a(f"s_branch {pfx}_B0")
    a.label(f"{pfx}_LOOP")
    stamp(a, 0)
    ag_poll(a, pfx, 3)
    a.label(f"{pfx}_B0")
    a("s_waitcnt lgkmcnt(0)")
    a("s_barrier")
    mark(a, S_REF0)
    stamp(a, 1)
    proj_stage(a, 3, lambda t, p: wreg.quad(t*20+p))
    for t in range(3):
        for k in range(2):
            a(f"v_cvt_pk_bf16_f32 v{V_PK+2*t+k}, v{V_ACC+4*t+2*k}, v{V_ACC+4*t+2*k+1}")
    a(f"s_mov_b64 exec, s[{S_M8}:{S_M8+1}]")
    store_mode(a, [f"buffer_store_dwordx2 {vr(V_PK+2*t,2)}, v{V_AST+t}, s[{S_WS}:{S_WS+3}], s{S_CUR} offen SCX" for t in range(3)])
    a("s_mov_b64 exec, -1")
    stamp(a, 2)
    wait_mode(a, S_REF0, OPT('T_VF', 0), OPT('T_V', 1500))
    loads = [f"buffer_load_dwordx4 {vr(V_POLL+4*k)}, v{V_APO+k}, s[{S_WS}:{S_WS+3}], s{S_CUR} offen sc1" for k in range(3)]
    for x in loads: a(x)
    if OPT('STAMP', 0): a(f"s_memtime s[{S_TS+6}:{S_TS+7}]")
    a("s_barrier")
    if OPT('STAMP', 0): a(f"s_memtime s[{S_TS+8}:{S_TS+9}]")
    poll_loop(a, f"{pfx}_VP", loads, 12, 93, pre_issued=True)
    for k in range(3):
        a(f"ds_write_b128 v{V_APL}, {vr(V_POLL+4*k)} offset:{k*1024}")
    a("s_waitcnt lgkmcnt(0)")
    a("s_barrier")
    mark(a, 96)
    stamp(a, 5)
    a(f"s_cmp_eq_u32 s{S_STEP}, 0")
    a(f"s_cbranch_scc1 {pfx}_NOFLAG")
    a("s_mov_b64 exec, 1")
    a(f"buffer_store_dword v{ONES+4}, v{V_ZERO}, s[{S_WS}:{S_WS+3}], s{S_FLG} offen sc1")
    a("s_mov_b64 exec, -1")
    a(f"s_add_u32 s{S_FLG}, s{S_FLG}, 512")
    a.label(f"{pfx}_NOFLAG")
    store_mode(a, [f"buffer_store_dwordx4 {vr(ONES)}, v{r}, s[{S_WS}:{S_WS+3}], s{S_NN} offen SCX" for r in (PQ, PQ+1, PV_)])
    a(f"s_add_u32 s{S_T}, s{S_NN}, s{S_RSB}")
    a(f"s_mov_b64 exec, s[{S_M8}:{S_M8+1}]")
    for P in range(5):
        if P > 0: a(f"s_add_u32 s{S_T}, s{S_T}, 32768")
        a(f"buffer_store_dwordx4 {vr(ONES)}, v{R}, s[{S_WS}:{S_WS+3}], s{S_T} offen sc1")
    a("s_mov_b64 exec, -1")
    a(f"buffer_store_dwordx4 {vr(ONES)}, v{V_AGS}, s[{S_WS}:{S_WS+3}], s{S_NN} offen sc1")
    stamp(a, 6)
    wait_until(a, 96, OPT('T_RS', 1450))
    a(f"s_add_u32 s{S_T2}, s{S_CUR}, s{S_RSP}")
    loads = [f"buffer_load_dwordx4 {vr(V_POLL+4*q)}, v{V_L16}, s[{S_WS}:{S_WS+3}], s{S_T2} offen offset:{q*1024} sc1" for q in range(4)]
    poll_loop(a, f"{pfx}_RP", loads, 16, 94)
    stamp(a, 7)
    for q in range(4):
        c = "0" if q == 0 else vr(V_ACC)
        a(f"v_mfma_f32_16x16x32_bf16 {vr(V_ACC)}, {vr(SEL)}, {vr(V_POLL+4*q)}, {c}")
    for r in range(4):
        a(f"v_add_f32_dpp v{V_ACC+4+r}, v{V_ACC+r}, v{V_ACC+r} row_ror:8 row_mask:0xf bank_mask:0xf")
    a(f"v_cvt_pk_bf16_f32 v{V_PK}, v{V_ACC+4}, v{V_ACC+5}")
    a(f"v_cvt_pk_bf16_f32 v{V_PK+1}, v{V_ACC+6}, v{V_ACC+7}")
    a(f"v_mov_b32 v{V_PK+2}, v{V_PK}\nv_mov_b32 v{V_PK+3}, v{V_PK+1}")
    a(f"v_mov_b32 v{V_PK+4}, v{V_PK}\nv_mov_b32 v{V_PK+5}, v{V_PK+1}")
    a(f"v_permlane16_swap_b32 v{V_PK+4}, v{V_PK+2}")
    a(f"v_permlane16_swap_b32 v{V_PK+5}, v{V_PK+3}")
    a(f"buffer_store_dwordx4 {vr(V_PK)}, v{V_AGS}, s[{S_WS}:{S_WS+3}], s{S_CUR} offen sc1")
    a(f"s_add_u32 s{S_STEP}, s{S_STEP}, 1")
    a(f"s_cmp_ge_u32 s{S_STEP}, 64")
    a(f"s_cbranch_scc1 {pfx}_DONE")
    rotate_slots(a)
    stamp_acc(a)
    a("s_barrier")
    mark(a, S_REF2)
    a(f"s_branch {pfx}_LOOP")
    a.label(f"{pfx}_DONE")
    a("s_waitcnt vmcnt(0)")
    a("s_barrier")
    a("s_mov_b64 exec, 1")
    a(f"buffer_store_dword v{ONES+4}, v{V_ZERO}, s[{S_WS}:{S_WS+3}], s{S_FLG} offen sc1")
    a("s_waitcnt vmcnt(0)")
    stamp_out(a, 3)
    a("s_endpgm")

def rec_entry(a):
    a(f"""s_load_dwordx4 s[64:67], s[0:1], {KA['wq']}
s_load_dwordx4 s[68:71], s[0:1], {KA['wv']}
s_load_dwordx2 s[72:73], s[0:1], {KA['mem0']}
s_waitcnt lgkmcnt(0)""")
    srd(a, S_WQ, 64, D*H*E*2); srd(a, S_WK, 66, D*H*E*2); srd(a, S_WV, 68, D*H*E*2); srd(a, S_WO, 70, D*H*E*2)
    srd(a, S_M0, 72, M*D*2)
    a(f"s_lshr_b32 s{S_H}, s{S_J}, 2\ns_and_b32 s{S_C}, s{S_J}, 3")

def probe(a, s_k, s_xcc, lbl):
    a(f"""s_mov_b64 exec, 1
v_mov_b32 v10, -1
s_lshl_b32 s{S_T}, s{s_k}, 21
s_add_u32 s{S_T}, s{S_T}, {RING + 77*16384 + 4096}
v_mov_b32 v11, s{S_T}
v_add_u32 v13, 8192, v11
s_mov_b32 s{S_T2}, 0
s_mov_b32 s84, 0
s_mov_b32 s85, 0""")
    a.label(f"{lbl}_R")
    a(f"""buffer_store_dword v10, v11, s[{S_WS}:{S_WS+3}], 0 offen sc1
buffer_store_dword v10, v13, s[{S_WS}:{S_WS+3}], 0 offen sc1
s_waitcnt vmcnt(0)
s_sleep 12""")
    for hsel in range(2):
        a(f"""s_memtime s[80:81]
s_waitcnt lgkmcnt(0)
buffer_load_dword v12, v{11 if hsel == 0 else 13}, s[{S_WS}:{S_WS+3}], 0 offen sc1
s_waitcnt vmcnt(0)
s_memtime s[82:83]
s_waitcnt lgkmcnt(0)
s_sub_u32 s{86+hsel}, s82, s80""")
    a(f"""s_cmp_eq_u32 s{S_T2}, 0
s_cbranch_scc1 {lbl}_S
s_add_u32 s84, s84, s86
s_add_u32 s85, s85, s87""")
    a.label(f"{lbl}_S")
    a(f"""s_add_u32 s{S_T2}, s{S_T2}, 1
s_cmp_lt_u32 s{S_T2}, 3
s_cbranch_scc1 {lbl}_R
s_cmp_lt_u32 s85, s84
s_cselect_b32 s{S_T3}, 1, 0
s_lshr_b32 s{S_T}, s{s_xcc}, 2
s_xor_b32 s{S_T3}, s{S_T3}, s{S_T}
s_and_b32 s{S_T3}, s{S_T3}, 1
s_or_b32 s{S_T3}, s{S_T3}, 2
v_mov_b32 v10, s{S_T3}
s_lshl_b32 s{S_T}, s{s_k}, 2
s_add_u32 s{S_T}, s{S_T}, {FLAGS}
v_mov_b32 v11, s{S_T}
buffer_store_dword v10, v11, s[{S_WS}:{S_WS+3}], 0 offen sc1
s_waitcnt vmcnt(0)
s_mov_b64 exec, -1""")

def rec_dispatch(a):
    a(f"""s_cmp_eq_u32 s{S_WAVE}, 0
s_cbranch_scc1 RK_W0
s_cmp_eq_u32 s{S_WAVE}, 1
s_cbranch_scc1 RK_W1
s_cmp_eq_u32 s{S_WAVE}, 2
s_cbranch_scc1 RK_W2
s_branch RK_W3""")
    for w in range(3):
        a.label(f"RK_W{w}")
        main_wave(a, w)
    a.label("RK_W3")
    service_wave(a)

def gen_rec_kernel():
    a = Asm(); name = "rec_kernel"
    kernel_header(a, name)
    if OPT('STAMP', 0): a("s_memtime s[100:101]")
    a(f"""s_cmp_ge_u32 s2, 256
s_cbranch_scc1 RK_END
s_load_dwordx2 s[74:75], s[0:1], {KA['ws']}
s_load_dwordx2 s[76:77], s[0:1], {KA['dbg']}
s_getreg_b32 s78, hwreg(HW_REG_XCC_ID)
s_and_b32 s78, s78, 15
s_waitcnt lgkmcnt(0)""")
    srd(a, S_WS, 74, WS_SIZE)
    lane_setup(a, V_LANE, V_G, V_N, S_WAVE)
    a(f"""s_cmp_lg_u32 s{S_WAVE}, 0
s_cbranch_scc1 RK_NORANK
v_mov_b32 v10, 1
s_lshl_b32 s79, s78, 2
v_mov_b32 v11, s79
s_mov_b64 exec, 1
global_atomic_add v12, v11, v10, s[76:77] sc0 sc1
s_waitcnt vmcnt(0)
v_mov_b32 v11, 0
ds_write_b32 v11, v12
s_waitcnt lgkmcnt(0)
s_mov_b64 exec, -1""")
    a.label("RK_NORANK")
    a(f"""s_barrier
v_mov_b32 v11, 0
ds_read_b32 v12, v11
s_waitcnt lgkmcnt(0)
v_readfirstlane_b32 s79, v12
s_barrier
s_cmp_lt_u32 s78, 4
s_cbranch_scc1 RK_REC
s_cmp_lg_u32 s78, 4
s_cbranch_scc1 RK_END
s_cmp_ge_u32 s79, 4
s_cbranch_scc1 RK_END
s_cmp_lg_u32 s{S_WAVE}, 0
s_cbranch_scc1 RK_END""")
    probe(a, 79, 78, "RK_PR")
    a("s_endpgm")
    a.label("RK_REC")
    a(f"""s_cmp_ge_u32 s79, 32
s_cbranch_scc1 RK_END
s_lshl_b32 s{S_J}, s78, 5
s_add_u32 s{S_J}, s{S_J}, s79""")
    rec_entry(a)
    rec_dispatch(a)
    a.label("RK_END")
    a("s_endpgm")
    return name, a.finalize(), kernel_desc(name, 512, 102, 256)

def read_mode(a, pfx):
    a(f"s_load_dwordx2 s[96:97], s[0:1], {KA['dbg']}")
    a("s_waitcnt lgkmcnt(0)")
    a(f"s_mov_b32 s{S_RETRY}, 0")
    a(f"v_and_b32 v{V_T2}, 7, v{V_LANE}")
    a(f"v_lshlrev_b32 v{V_T2}, 2, v{V_T2}")
    a.label(f"{pfx}_MD")
    a(f"""global_load_dword v{V_T}, v{V_T2}, s[96:97] sc1
s_waitcnt vmcnt(0)
v_cmp_eq_u32 vcc, 32, v{V_T}
s_cmp_eq_u64 vcc, exec
s_cselect_b32 s{S_MODE}, 1, 0
v_add_u32_dpp v{V_T}, v{V_T}, v{V_T} row_ror:4 row_mask:0xf bank_mask:0xf
v_add_u32_dpp v{V_T}, v{V_T}, v{V_T} row_ror:2 row_mask:0xf bank_mask:0xf
v_add_u32_dpp v{V_T}, v{V_T}, v{V_T} row_ror:1 row_mask:0xf bank_mask:0xf
v_readfirstlane_b32 s{S_T3}, v{V_T}
s_cmp_ge_u32 s{S_T3}, 256
s_cbranch_scc1 {pfx}_MDOK
s_sleep 8
s_add_u32 s{S_RETRY}, s{S_RETRY}, 1
s_cmp_lt_u32 s{S_RETRY}, 200000
s_cbranch_scc1 {pfx}_MD
s_mov_b32 s{S_MODE}, 0""")
    a.label(f"{pfx}_MDOK")
    if OPT('FORCESLOW', 0): a(f"s_mov_b32 s{S_MODE}, 0")

def read_polarity(a, pfx):
    read_mode(a, pfx)
    a(f"v_mov_b32 v{V_T2}, {FLAGS}")
    a(f"s_mov_b32 s{S_RETRY}, 0")
    a.label(f"{pfx}_POL")
    a(f"""buffer_load_dwordx4 {vr(V_POLL+8)}, v{V_T2}, s[{S_WS}:{S_WS+3}], 0 offen sc1
s_waitcnt vmcnt(0)
v_min3_u32 v{V_T}, v{V_POLL+8}, v{V_POLL+9}, v{V_POLL+10}
v_min_u32 v{V_T}, v{V_T}, v{V_POLL+11}
v_readfirstlane_b32 s{S_T3}, v{V_T}
s_cmp_lg_u32 s{S_T3}, 0
s_cbranch_scc1 {pfx}_POLOK
s_sleep 8
s_add_u32 s{S_RETRY}, s{S_RETRY}, 1
s_cmp_lt_u32 s{S_RETRY}, 200000
s_cbranch_scc1 {pfx}_POL""")
    a.label(f"{pfx}_POLOK")
    for k, s in enumerate((S_CUR, S_N, S_NN, S_P)):
        a(f"v_readfirstlane_b32 s{S_T}, v{V_POLL+8+k}")
        if OPT('FLIPPOL', 0): a(f"s_xor_b32 s{S_T}, s{S_T}, 1")
        a(f"""s_and_b32 s{S_T}, s{S_T}, 1
s_lshl_b32 s{S_T}, s{S_T}, 13
s_add_u32 s{s}, s{S_T}, {RING + k*RING_SLOT}""")
```

```python
from gen_common import *
import struct, os
OPT=lambda k,d: type(d)(os.environ.get(k,d))
def f2u(f): return struct.unpack('<I', struct.pack('<f', f))[0]

US_WS=4; US_WO=8; US_WAVE=20; US_LB=21; US_COL=24; US_H=25; US_CNT=26; US_XG=27; US_WSL=28; US_RSL=29; US_OUT=30; US_T=31; US_T2=32
UV_LANE=1; UV_G=2; UV_N=3; UV_GOFF=4; UV_TR=5; UV_T=6; UV_L16=7; UV_RA=8
UV_A=16
UV_ACC=112
UV_PK=128

def emit_upanel(a, pfx, wait_hook=None, done_hook=None):
    NSL = 4; XT = 12288
    wreg = WReg(0, 240, 0)
    a(f"s_lshl_b32 s{US_LB}, s{US_WAVE}, 15")
    w_addr_setup(a, UV_LANE, UV_GOFF, UV_TR, D*2, True, US_LB, UV_T)
    a(f"""s_mul_i32 s{US_COL}, s{US_H}, {192*1280}
s_mul_i32 s{US_T}, s{US_WAVE}, 320
s_add_u32 s{US_COL}, s{US_COL}, s{US_T}""")
    frags = [(US_WO, (US_COL, t*32 + p*32*1280)) for t in range(10) for p in range(6)]
    load_w(a, frags, wreg, UV_GOFF, UV_TR, US_T, US_LB, True)
    a("s_barrier")
    a(f"""v_lshlrev_b32 v{UV_L16}, 4, v{UV_LANE}
s_mul_i32 s{US_T}, s{US_H}, 12288
s_mul_i32 s{US_T2}, s{US_WAVE}, 3072
s_add_u32 s{US_XG}, s{US_T}, s{US_T2}
s_add_u32 s{US_XG}, s{US_XG}, {VX}
s_mov_b32 s{US_WSL}, s{US_T2}
s_mov_b32 s{US_RSL}, 0
s_mul_i32 s{US_T}, s{US_H}, 40
s_mul_i32 s{US_T2}, s{US_WAVE}, 10
s_add_u32 s{US_T}, s{US_T}, s{US_T2}
s_lshl_b32 s{US_OUT}, s{US_T}, 10
s_add_u32 s{US_OUT}, s{US_OUT}, {UX}""")
    def dma():
        if wait_hook: wait_hook(a)
        a(f"s_mov_b32 m0, s{US_WSL}")
        for j in range(3):
            a(f"buffer_load_dwordx4 v{UV_L16}, s[{US_WS}:{US_WS+3}], s{US_XG} offen offset:{j*1024} sc1 lds")
        a(f"s_add_u32 s{US_XG}, s{US_XG}, {32*12288}")
        a(f"s_add_u32 s{US_WSL}, s{US_WSL}, {XT}")
        a(f"s_sub_u32 s{US_T}, s{US_WSL}, {NSL*XT}")
        a(f"s_cmp_ge_u32 s{US_WSL}, {NSL*XT}")
        a(f"s_cselect_b32 s{US_WSL}, s{US_T}, s{US_WSL}")
    for _ in range(NSL-1): dma()
    a(f"s_mov_b32 s{US_CNT}, 0")
    lp = f"{pfx}_LOOP"
    a.label(lp)
    a(f"s_cmp_lt_u32 s{US_CNT}, 3")
    a(f"s_cbranch_scc1 {pfx}_W0")
    a("s_waitcnt vmcnt(36)")
    a(f"s_branch {pfx}_W1")
    a.label(f"{pfx}_W0")
    a("s_waitcnt vmcnt(0)")
    a.label(f"{pfx}_W1")
    a("s_barrier")
    dma()
    a(f"v_add_u32 v{UV_RA}, s{US_RSL}, v{UV_L16}")
    for f in range(12):
        a(f"ds_read_b128 {vr(UV_A+4*f)}, v{UV_RA} offset:{f*1024}")
    a(f"s_add_u32 s{US_RSL}, s{US_RSL}, {XT}")
    a(f"s_cmp_ge_u32 s{US_RSL}, {NSL*XT}")
    a(f"s_cselect_b32 s{US_RSL}, 0, s{US_RSL}")
    a("s_waitcnt lgkmcnt(0)")
    def epi(t):
        ac = UV_ACC + 8*(t & 1); pk = UV_PK + 4*(t & 1)
        L = []
        for k in range(4):
            d = ac + 4*(k >> 1) + 2*(k & 1)
            L.append(f"v_cvt_pk_bf16_f32 v{pk+k}, v{d}, v{d+1}")
        L.append(f"s_add_u32 s{US_T}, s{US_OUT}, {t*1024}")
        L.append(f"buffer_store_dwordx4 {vr(pk)}, v{UV_L16}, s[{US_WS}:{US_WS+3}], s{US_T} offen sc1")
        return L
    for t in range(10):
        ac = UV_ACC + 8*(t & 1)
        E_ = epi(t-1) if t > 0 else []
        for p in range(6):
            for tt in range(2):
                d = ac + 4*tt
                c = "0" if p == 0 else vr(d)
                a(f"v_mfma_f32_16x16x32_bf16 {vr(d)}, {vr(UV_A+4*(tt*6+p))}, {wreg.quad(t*6+p)}, {c}")
            if p >= 3:
                for _ in range(2):
                    if E_: a(E_.pop(0))
        while E_: a(E_.pop(0))
    for x in epi(9): a(x)
    a(f"s_add_u32 s{US_OUT}, s{US_OUT}, {32*40*1024}")
    if done_hook: done_hook(a)
    a(f"s_add_u32 s{US_CNT}, s{US_CNT}, 1")
    a(f"s_cmp_lt_u32 s{US_CNT}, 64")
    a(f"s_cbranch_scc1 {lp}")
    a("s_waitcnt vmcnt(0)")

def gen_upanel_kernel():
    a = Asm(); name = "upanel_kernel"
    kernel_header(a, name)
    a(f"""s_cmp_ge_u32 s2, 32
s_cbranch_scc1 UK_END
s_load_dwordx2 s[38:39], s[0:1], {KA['ws']}
s_load_dwordx2 s[40:41], s[0:1], {KA['wo']}
s_waitcnt lgkmcnt(0)""")
    srd(a, US_WS, 38, WS_SIZE); srd(a, US_WO, 40, H*E*D*2)
    lane_setup(a, UV_LANE, UV_G, UV_N, US_WAVE)
    a(f"s_mov_b32 s{US_H}, s2")
    emit_upanel(a, "UP")
    a.label("UK_END")
    a("s_endpgm")
    return name, a.finalize(), kernel_desc(name, 512, 64, 256)

TS_WS=4; TS_OUT=8; TS_WAVE=20; TS_S=21; TS_I=22; TS_T=23; TS_T2=24; TS_T3=25; TS_SCALE=26
TS_MK=28
TS_HI=36
TV_LANE=1; TV_G=2; TV_N=3; TV_T=4; TV_L16=5; TV_KM=6; TV_NINF=7; TV_L8=8; TV_T2=9; TV_OUTO=10; TV_MA=11; TV_MB=12
TV_Q=16; TV_K=64; TV_M=112; TV_S=136
TV_X=156
TV_P=172

def tok_setup(a):
    a(f"""v_lshlrev_b32 v{TV_L16}, 4, v{TV_LANE}
v_lshlrev_b32 v{TV_L8}, 3, v{TV_LANE}
v_lshlrev_b32 v{TV_KM}, 7, v{TV_G}
v_and_b32 v{TV_T}, 7, v{TV_LANE}
v_lshlrev_b32 v{TV_T}, 4, v{TV_T}
v_add_u32 v{TV_KM}, v{TV_KM}, v{TV_T}
v_mov_b32 v{TV_NINF}, 0xff800000
s_mov_b32 s{TS_SCALE}, 0x{f2u(192**-0.5*1.4426950408889634):08x}
s_mov_b32 s{TS_HI}, 0
s_mov_b32 s{TS_HI+1}, -1
v_lshlrev_b32 v{TV_T}, 2, v{TV_G}""")
    for r in range(4):
        a(f"v_add_u32 v{TV_T2}, {r}, v{TV_T}")
        a(f"v_cmp_gt_u32 s[{TS_MK+2*r}:{TS_MK+2*r+1}], v{TV_T2}, v{TV_N}")
    a(f"""v_mul_u32_u24 v{TV_OUTO}, 1280, v{TV_N}
v_lshlrev_b32 v{TV_T}, 3, v{TV_G}
v_add_u32 v{TV_OUTO}, v{TV_OUTO}, v{TV_T}""")
    a(f"""v_and_b32 v{TV_T}, 31, v{TV_LANE}
v_lshlrev_b32 v{TV_T}, 3, v{TV_T}
v_lshrrev_b32 v{TV_T2}, 5, v{TV_LANE}
v_mul_u32_u24 v{TV_MA}, {40*256}, v{TV_T2}
v_add_u32 v{TV_MA}, v{TV_MA}, v{TV_T}
v_mul_u32_u24 v{TV_MB}, 2560, v{TV_T2}
v_add_u32 v{TV_MB}, v{TV_MB}, v{TV_T}""")

def emit_score(a, pfx, ld=" sc1"):
    W = f"s[{TS_WS}:{TS_WS+3}]"
    a(f"""s_lshl_b32 s{TS_T}, s{TS_I}, 2
s_add_u32 s{TS_T}, s{TS_T}, s{TS_WAVE}
s_lshl_b32 s{TS_T2}, s{TS_S}, 5
s_add_u32 s{TS_T}, s{TS_T}, s{TS_T2}
s_mul_i32 s{TS_T2}, s{TS_T}, 12288
s_add_u32 s{TS_T3}, s{TS_T2}, {QX}""")
    for f in range(12):
        if f and f % 4 == 0: a(f"s_add_u32 s{TS_T3}, s{TS_T3}, 4096")
        a(f"buffer_load_dwordx4 {vr(TV_Q+4*f)}, v{TV_L16}, {W}, s{TS_T3} offen offset:{(f%4)*1024}{ld}")
    a(f"s_add_u32 s{TS_T3}, s{TS_T2}, {KX}")
    for f in range(12):
        if f and f % 4 == 0: a(f"s_add_u32 s{TS_T3}, s{TS_T3}, 4096")
        a(f"buffer_load_dwordx4 {vr(TV_K+4*f)}, v{TV_L16}, {W}, s{TS_T3} offen offset:{(f%4)*1024}{ld}")
    a(f"s_mul_i32 s{TS_T2}, s{TS_T}, 3072")
    a(f"s_add_u32 s{TS_T3}, s{TS_T2}, {KM}")
    for p in range(6):
        a(f"buffer_load_dwordx4 {vr(TV_M+4*p)}, v{TV_KM}, {W}, s{TS_T3} offen offset:{p*512}{ld}")
    a(f"s_mul_i32 s{TS_T2}, s{TS_T}, 2560")
    a(f"s_add_u32 s{TS_T3}, s{TS_T2}, {PF}")
    a("s_waitcnt vmcnt(0)")
    SM0, SM1, X00, X01, X11 = TV_S, TV_S+4, TV_S+8, TV_S+12, TV_S+16
    for p in range(6):
        for d, A_, B_ in ((SM0, TV_M+4*p, TV_Q+4*p), (SM1, TV_M+4*p, TV_Q+4*(6+p)), (X00, TV_K+4*p, TV_Q+4*p),
                          (X01, TV_K+4*p, TV_Q+4*(6+p)), (X11, TV_K+4*(6+p), TV_Q+4*(6+p))):
            c = "0" if p == 0 else vr(d)
            a(f"v_mfma_f32_16x16x32_bf16 {vr(d)}, {vr(A_)}, {vr(B_)}, {c}")
    for tq in range(2):
        sm = SM0 if tq == 0 else SM1
        vals = []
        X = TV_X
        for r in range(4):
            a(f"v_cndmask_b32 v{X+r}, v{sm+r}, v{TV_NINF}, s[{TS_HI}:{TS_HI+1}]")
        if tq == 0:
            for r in range(4): a(f"v_cndmask_b32 v{X+4+r}, v{X00+r}, v{TV_NINF}, s[{TS_MK+2*r}:{TS_MK+2*r+1}]")
            n = 8
        else:
            for r in range(4): a(f"v_mov_b32 v{X+4+r}, v{X01+r}")
            for r in range(4): a(f"v_cndmask_b32 v{X+8+r}, v{X11+r}, v{TV_NINF}, s[{TS_MK+2*r}:{TS_MK+2*r+1}]")
            n = 12
        MX = X+12; TM = X+13
        a(f"v_max3_f32 v{MX}, v{X}, v{X+1}, v{X+2}")
        i = 3
        while i < n:
            if i+1 < n: a(f"v_max3_f32 v{MX}, v{MX}, v{X+i}, v{X+i+1}"); i += 2
            else: a(f"v_max_f32 v{MX}, v{MX}, v{X+i}"); i += 1
        a(f"v_mov_b32 v{TM}, v{MX}\nv_permlane16_swap_b32 v{MX}, v{TM}\nv_max_f32 v{MX}, v{MX}, v{TM}")
        a(f"v_mov_b32 v{TM}, v{MX}\nv_permlane32_swap_b32 v{MX}, v{TM}\nv_max_f32 v{MX}, v{MX}, v{TM}")
        a(f"v_mul_f32 v{MX}, s{TS_SCALE}, v{MX}")
        for j in range(n): a(f"v_fma_f32 v{X+j}, v{X+j}, s{TS_SCALE}, -v{MX}")
        for j in range(n): a(f"v_exp_f32 v{X+j}, v{X+j}")
        SU = X+14
        a(f"v_add_f32 v{SU}, v{X}, v{X+1}")
        for j in range(2, n): a(f"v_add_f32 v{SU}, v{SU}, v{X+j}")
        a(f"v_mov_b32 v{TM}, v{SU}\nv_permlane16_swap_b32 v{SU}, v{TM}\nv_add_f32 v{SU}, v{SU}, v{TM}")
        a(f"v_mov_b32 v{TM}, v{SU}\nv_permlane32_swap_b32 v{SU}, v{TM}\nv_add_f32 v{SU}, v{SU}, v{TM}")
        a(f"v_rcp_f32 v{SU}, v{SU}")
        for j in range(n): a(f"v_mul_f32 v{X+j}, v{X+j}, v{SU}")
        P = TV_P + 8*tq
        a(f"v_cvt_pk_bf16_f32 v{P}, v{X+4}, v{X+5}\nv_cvt_pk_bf16_f32 v{P+1}, v{X+6}, v{X+7}")
        if tq == 0: a(f"v_mov_b32 v{P+2}, 0\nv_mov_b32 v{P+3}, 0")
        else: a(f"v_cvt_pk_bf16_f32 v{P+2}, v{X+8}, v{X+9}\nv_cvt_pk_bf16_f32 v{P+3}, v{X+10}, v{X+11}")
        a(f"v_cvt_pk_bf16_f32 v{P+4}, v{X}, v{X+1}\nv_cvt_pk_bf16_f32 v{P+5}, v{X+2}, v{X+3}")
        a(f"buffer_store_dwordx4 {vr(P)}, v{TV_L16}, {W}, s{TS_T3} offen offset:{tq*1280} sc1")
        a("s_mov_b32 exec_hi, 0")
        a(f"buffer_store_dwordx2 {vr(P+4,2)}, v{TV_L8}, {W}, s{TS_T3} offen offset:{tq*1280+1024} sc1")
        a("s_mov_b64 exec, -1")

PV_ACC=16
PV_BUF=56
PV_MEM=168
PV_BASE=196
PV_RED=208

def emit_pu(a, pfx, ld=" sc1"):
    W = f"s[{TS_WS}:{TS_WS+3}]"
    a(f"""s_lshl_b32 s{TS_T}, s{TS_S}, 5
s_lshl_b32 s{TS_T2}, s{TS_WAVE}, 3
s_add_u32 s{TS_T}, s{TS_T}, s{TS_T2}
s_mul_i32 s40, s{TS_T}, {40*1024}
s_mul_i32 s{TS_T2}, s{TS_I}, {5*1024}
s_add_u32 s40, s40, s{TS_T2}
s_add_u32 s40, s40, {UX}
s_mul_i32 s41, s{TS_T}, 2560
s_add_u32 s41, s41, {PF}
s_mul_i32 s42, s{TS_T}, {40*256}
s_mul_i32 s{TS_T2}, s{TS_I}, {5*256}
s_add_u32 s42, s42, s{TS_T2}
s_add_u32 s42, s42, {UY}""")
    a(f"""s_mul_i32 s43, s{TS_S}, 80
s_mul_i32 s{TS_T2}, s{TS_I}, 10
s_add_u32 s43, s43, s{TS_T2}
s_add_u32 s43, s43, s{TS_WAVE}
s_lshl_b32 s43, s43, 10
s_add_u32 s43, s43, {BASE}""")
    def head_loads(k):
        b = PV_BUF + 28*(k % 4)
        a(f"s_add_u32 s44, s40, {k*40*1024}")
        for t in range(4): a(f"buffer_load_dwordx4 {vr(b+4*t)}, v{TV_L16}, {W}, s44 offen offset:{t*1024}{ld}")
        a(f"s_add_u32 s44, s44, 4096")
        a(f"buffer_load_dwordx4 {vr(b+16)}, v{TV_L16}, {W}, s44 offen{ld}")
        a(f"s_add_u32 s44, s41, {k*2560}")
        a(f"buffer_load_dwordx4 {vr(b+20)}, v{TV_L16}, {W}, s44 offen{ld}")
        a(f"buffer_load_dwordx4 {vr(b+24)}, v{TV_L16}, {W}, s44 offen offset:1280{ld}")
    def mem_loads(qd):
        for hh in range(2):
            a(f"s_add_u32 s44, s42, {(4*qd+2*hh)*40*256}")
            for t in range(5): a(f"buffer_load_dwordx2 {vr(PV_MEM+4*t+2*hh,2)}, v{TV_MA}, {W}, s44 offen offset:{t*256}{ld}")
            a(f"s_add_u32 s44, s41, {(4*qd+2*hh)*2560}")
            for tq in range(2): a(f"buffer_load_dwordx2 {vr(PV_MEM+20+4*tq+2*hh,2)}, v{TV_MB}, {W}, s44 offen offset:{tq*1280+1024}{ld}")
    for k in range(4): head_loads(k)
    mem_loads(0)
    for j in range(3):
        a(f"s_add_u32 s44, s43, {j*4096}")
        a(f"buffer_load_dwordx4 {vr(PV_BASE+4*j)}, v{TV_L16}, {W}, s44 offen{ld}")
    out = [('H', 0)]*7 + [('H', 1)]*7 + [('H', 2)]*7 + [('H', 3)]*7 + [('M', 0)]*14 + [('B', 0)]*3
    def wait_for(tag):
        last = max(i for i, x in enumerate(out) if x == tag)
        n = len(out) - 1 - last
        a(f"s_waitcnt vmcnt({min(n, 63)})")
    for k in range(8):
        b = PV_BUF + 28*(k % 4)
        wait_for(('H', k))
        for t in range(5):
            for tq in range(2):
                d = PV_ACC + 8*t + 4*tq
                c = "0" if k == 0 else vr(d)
                a(f"v_mfma_f32_16x16x32_bf16 {vr(d)}, {vr(b+4*t)}, {vr(b+20+4*tq)}, {c}")
        if k + 4 < 8:
            head_loads(k+4); out += [('H', k+4)]*7
        if k == 3 or k == 7:
            qd = k // 4
            wait_for(('M', qd))
            for t in range(5):
                for tq in range(2):
                    d = PV_ACC + 8*t + 4*tq
                    a(f"v_mfma_f32_16x16x32_bf16 {vr(d)}, {vr(PV_MEM+4*t)}, {vr(PV_MEM+20+4*tq)}, {vr(d)}")
            if k == 3:
                mem_loads(1); out += [('M', 1)]*14
    a(f"s_mul_i32 s44, s{TS_WAVE}, 10240")
    a(f"v_add_u32 v{TV_T}, s44, v{TV_L16}")
    for u in range(10):
        a(f"ds_write_b128 v{TV_T}, {vr(PV_ACC+4*u)} offset:{u*1024}")
    a("s_waitcnt lgkmcnt(0)")
    a("s_barrier")
    a(f"s_lshl_b32 s44, s{TS_WAVE}, 10")
    a(f"v_add_u32 v{TV_T}, s44, v{TV_L16}")
    for j in range(3):
        if j == 2:
            a(f"s_cmp_ge_u32 s{TS_WAVE}, 2")
            a(f"s_cbranch_scc1 {pfx}_RD")
        for k in range(4):
            a(f"ds_read_b128 {vr(PV_RED+4*k)}, v{TV_T} offset:{k*10240 + j*4096}")
        a(f"""s_add_u32 s44, s{TS_WAVE}, {4*j}
s_lshr_b32 s45, s44, 1
s_and_b32 s44, s44, 1
s_mul_i32 s46, s{TS_I}, 5
s_add_u32 s45, s45, s46
s_lshl_b32 s45, s45, 5
s_lshl_b32 s46, s{TS_S}, 1
s_add_u32 s46, s46, s44
s_mul_i32 s46, s46, {16*1280}
s_add_u32 s45, s45, s46""")
        a("s_waitcnt vmcnt(0) lgkmcnt(0)")
        for r in range(4):
            a(f"v_add_f32 v{PV_RED+r}, v{PV_RED+r}, v{PV_RED+4+r}")
            a(f"v_add_f32 v{PV_RED+8+r}, v{PV_RED+8+r}, v{PV_RED+12+r}")
        for r in range(4):
            a(f"v_add_f32 v{PV_RED+r}, v{PV_RED+r}, v{PV_RED+8+r}")
            a(f"v_add_f32 v{PV_RED+r}, v{PV_RED+r}, v{PV_BASE+4*j+r}")
        a(f"v_cvt_pk_bf16_f32 v{PV_RED+4}, v{PV_RED}, v{PV_RED+1}")
        a(f"v_cvt_pk_bf16_f32 v{PV_RED+5}, v{PV_RED+2}, v{PV_RED+3}")
        a(f"buffer_store_dwordx2 {vr(PV_RED+4,2)}, v{TV_OUTO}, s[{TS_OUT}:{TS_OUT+3}], s45 offen")
    a.label(f"{pfx}_RD")
    a("s_barrier")

def gen_tok_kernel(kind):
    a = Asm(); name = f"{kind}_kernel"
    kernel_header(a, name)
    a(f"""s_cmp_ge_u32 s2, 512
s_cbranch_scc1 TK_END_{kind}
s_load_dwordx2 s[38:39], s[0:1], {KA['ws']}
s_load_dwordx2 s[40:41], s[0:1], {KA['out']}
s_waitcnt lgkmcnt(0)""")
    srd(a, TS_WS, 38, WS_SIZE); srd(a, TS_OUT, 40, OUT_BYTES)
    lane_setup(a, TV_LANE, TV_G, TV_N, TS_WAVE)
    tok_setup(a)
    a(f"s_lshr_b32 s{TS_S}, s2, 3\ns_and_b32 s{TS_I}, s2, 7")
    if kind == 'score': emit_score(a, "SC")
    else: emit_pu(a, "PU")
    a.label(f"TK_END_{kind}")
    a("s_endpgm")
    return name, a.finalize(), kernel_desc(name, 256, 64, 256)
```

```python
S=2048; D=640; H=32; E=192; F=1536; SEG=32; NSEG=64; M=8
KB=1024; MB=1024*1024
WS_SIZE = 268435456
OUT_BYTES = S*D*2
KA = dict(x=0, mem0=8, wq=16, wk=24, wv=32, wo=40, seg=48, bx=56, wg=64, wu=72, wd=80, out=88, dbg=96, ws=104)
RING   = 0
RING_SLOT = 2*MB
FLAGS  = 8*MB
FLAGS_SIZE = 64*KB
XN     = 9*MB
KX     = 12*MB
VX     = KX + 24*MB
QX     = VX + 24*MB
HF     = QX + 24*MB
BASE   = HF + 6*MB
KM     = BASE + 5*MB
PF     = KM + 6*MB
UY     = PF + 5*MB
UX     = UY + 20*MB
END    = UX + 80*MB
assert END <= WS_SIZE, END
A_LOG  = 0
RS_LOG = 36*8192
AG_LOG = RS_LOG + 40*8192
SLOT_LOG = AG_LOG + 2*8192
SLOT_PHYS = 78*16384
def nearmap(off): return ((off >> 13) << 14) | (off & 8191)
```

```python
import sys
from gen_common import *
from gen_prep import gen_prep
from gen_panel import gen_panel_kernel, gen_down_kernel
from gen_rec import gen_rec_kernel
from gen_tok import gen_upanel_kernel, gen_tok_kernel

HEADER = open('parallel_sum__memory_aug_recurrent_mem_tr__geglu_ffn__prompt.s.ref').read().split('; Override launch')[0]

def build(kernels, launches):
    out = HEADER
    for (k, g, b, lds) in launches:
        out += f"; @launch kernel={k} grid=({g},1,1) block=({b},1,1) lds={lds}\n"
    out += '.amdgcn_target "amdgcn-amd-amdhsa--gfx950"\n.text\n'
    for n, body, kd in kernels: out += body
    out += '.section .rodata,"a"\n'
    for n, body, kd in kernels: out += kd
    return out

if __name__ == '__main__':
    ks = [gen_prep(), gen_panel_kernel(), gen_down_kernel(), gen_upanel_kernel(), gen_tok_kernel('score'), gen_tok_kernel('pu'), gen_rec_kernel()]
    launches = [("prep_kernel", 256, 256, 0), ("panel_kernel", 84, 256, 131072), ("down_kernel", 10, 256, 147456), ("upanel_kernel", 32, 256, 131072), ("rec_kernel", 256, 256, 131072), ("score_kernel", 512, 256, 0), ("pu_kernel", 512, 256, 40960)]
    open(sys.argv[1] if len(sys.argv) > 1 else 'out.s', 'w').write(build(ks, launches))
```

```python
from asmlib import *
from layout import *

def srd(a, s, ptr_lo, size):
    a(f"""s_mov_b32 s{s}, s{ptr_lo}
s_and_b32 s{s+1}, s{ptr_lo+1}, 0xffff
s_mov_b32 s{s+2}, {size}
s_mov_b32 s{s+3}, 0x00020000""")

def kernel_header(a, name):
    a.raw(f".globl {name}\n.p2align 8\n.type {name},@function\n{name}:")

def kernel_desc(name, vgpr, sgpr, accum):
    return f""".p2align 6
.amdhsa_kernel {name}
  .amdhsa_next_free_vgpr {vgpr}
  .amdhsa_next_free_sgpr {sgpr}
  .amdhsa_accum_offset {accum}
  .amdhsa_group_segment_fixed_size 0
  .amdhsa_kernarg_size 112
  .amdhsa_user_sgpr_count 2
  .amdhsa_user_sgpr_kernarg_segment_ptr 1
  .amdhsa_system_sgpr_workgroup_id_x 1
.end_amdhsa_kernel
"""

def vr(b, n=4): return f"v[{b}:{b+n-1}]"
def ar(b, n=4): return f"a[{b}:{b+n-1}]"

class WReg:
    def __init__(self, abase, acount, vbase):
        self.abase=abase; self.acount=acount; self.vbase=vbase
    def quad(self, f):
        r = f*4
        if r < self.acount: return ar(self.abase + r)
        return vr(self.vbase + r - self.acount)
    def pair(self, f, k):
        r = f*4 + 2*k
        if r < self.acount: return ar(self.abase + r, 2)
        return vr(self.vbase + r - self.acount, 2)

def load_w(a, frags, wreg, v_goff, v_tr, s_tmp, ldsbase_s, perm, nslot=32, grp=4):
    N = len(frags)
    second = 512 if perm else 128
    def issue(f):
        sr, (sc, imm) = frags[f]
        a(f"s_add_u32 s{s_tmp}, s{sc}, {imm}")
        a(f"s_add_u32 m0, s{ldsbase_s}, {(f % nslot)*1024}")
        a(f"buffer_load_dwordx4 v{v_goff}, s[{sr}:{sr+3}], s{s_tmp} offen lds")
    issued = 0
    while issued < min(N, nslot):
        issue(issued); issued += 1
    done = 0
    while done < N:
        g = min(grp, N - done)
        inflight_after = issued - (done + g)
        a(f"s_waitcnt vmcnt({inflight_after})")
        for f in range(done, done + g):
            o = (f % nslot)*1024
            a(f"ds_read_b64_tr_b16 {wreg.pair(f,0)}, v{v_tr} offset:{o}")
            a(f"ds_read_b64_tr_b16 {wreg.pair(f,1)}, v{v_tr} offset:{o+second}")
        done += g
        if issued < N:
            a("s_waitcnt lgkmcnt(0)")
            k = 0
            while issued < N and k < g:
                issue(issued); issued += 1; k += 1
    a("s_waitcnt lgkmcnt(0)")

def lane_setup(a, v_lane, v_g, v_n, s_wave, vtid='v0'):
    a(f"""v_lshrrev_b32 v{v_g}, 6, {vtid}
s_nop 0
v_readfirstlane_b32 s{s_wave}, v{v_g}
v_and_b32 v{v_lane}, 63, {vtid}
v_lshrrev_b32 v{v_g}, 4, v{v_lane}
v_and_b32 v{v_n}, 15, v{v_lane}""")

def w_addr_setup(a, v_lane, v_goff, v_tr, stride, perm, s_ldsbase, vt):
    a(f"""v_lshrrev_b32 v{vt}, 1, v{v_lane}
s_mov_b32 s{s_ldsbase+1}, {stride}
v_mul_lo_u32 v{v_goff}, v{vt}, s{s_ldsbase+1}
v_and_b32 v{vt}, 1, v{v_lane}
v_lshlrev_b32 v{vt}, 4, v{vt}
v_add_u32 v{v_goff}, v{v_goff}, v{vt}
v_lshrrev_b32 v{v_tr}, 4, v{v_lane}
v_lshlrev_b32 v{v_tr}, {2 if perm else 3}, v{v_tr}
v_bfe_u32 v{vt}, v{v_lane}, 2, 2
v_add_u32 v{v_tr}, v{v_tr}, v{vt}
v_lshlrev_b32 v{v_tr}, 5, v{v_tr}
v_and_b32 v{vt}, 3, v{v_lane}
v_lshlrev_b32 v{vt}, 3, v{vt}
v_add_u32 v{v_tr}, v{v_tr}, v{vt}
v_add_u32 v{v_tr}, s{s_ldsbase}, v{v_tr}""")


def wait_words(a, lbl, srd_ws, v_addr, v_tmp, s_thr, s_cache=None, nl=0, s_tmp=None, s_cnt=None, sleep=4, imm_thr=None):
    thr = f"s{s_thr}" if imm_thr is None else str(imm_thr)
    if s_cache is not None:
        a(f"s_cmp_ge_u32 s{s_cache}, {thr}")
        a(f"s_cbranch_scc1 {lbl}_D")
    a(f"s_mov_b32 s{s_cnt}, 0")
    a.label(lbl)
    a(f"buffer_load_dword v{v_tmp}, v{v_addr}, s[{srd_ws}:{srd_ws+3}], 0 offen sc1")
    a("s_waitcnt vmcnt(0)")
    a(f"v_cmp_gt_u32 vcc, {thr}, v{v_tmp}")
    a(f"s_cbranch_vccz {lbl}_K")
    a(f"s_sleep {sleep}")
    a(f"s_add_u32 s{s_cnt}, s{s_cnt}, 1")
    a(f"s_cmp_lt_u32 s{s_cnt}, 0x200000")
    a(f"s_cbranch_scc1 {lbl}")
    a.label(f"{lbl}_K")
    if s_cache is not None:
        a(f"v_readlane_b32 s{s_cache}, v{v_tmp}, 0")
        for l in range(1, nl):
            a(f"v_readlane_b32 s{s_tmp}, v{v_tmp}, {l}")
            a(f"s_min_u32 s{s_cache}, s{s_cache}, s{s_tmp}")
    a.label(f"{lbl}_D")

def publish_word(a, srd_ws, v_val, v_zero, s_off, s_val):
    a(f"v_mov_b32 v{v_val}, s{s_val}")
    a("s_mov_b64 exec, 1")
    a(f"buffer_store_dword v{v_val}, v{v_zero}, s[{srd_ws}:{srd_ws+3}], s{s_off} offen sc1")
    a("s_mov_b64 exec, -1")

import os as _os
def trace(a, idx, s_role, s_t=(98,99), v=(250,251), srd_ws=4, wave_s=None, val=None):
    if not int(_os.environ.get('TRACE', 0)): return
    a(f"s_memrealtime s[{s_t[0]}:{s_t[1]}]")
    a("s_waitcnt lgkmcnt(0)")
    a(f"v_mov_b32 v{v[0]}, s{s_t[0] if val is None else val}")
    a(f"s_lshl_b32 s{s_t[1]}, s{s_role}, 8")
    a(f"s_add_u32 s{s_t[1]}, s{s_t[1]}, {TRACE + idx*4}")
    a(f"v_mov_b32 v{v[1]}, s{s_t[1]}")
    a("s_mov_b64 exec, 1")
    a(f"buffer_store_dword v{v[0]}, v{v[1]}, s[{srd_ws}:{srd_ws+3}], 0 offen")
    a("s_mov_b64 exec, -1")


def load_w2(a, units, dst_pair, nt, stride, perm, v_lane, v_goff, v_tr, vt, s_tmp, s_lb, kb=32):
    lpr = 2*nt
    rows = 64 // lpr
    rb = 32*nt
    sh = {1: 1, 2: 2, 4: 3}[nt]
    a(f"""v_lshrrev_b32 v{vt}, {sh}, v{v_lane}
s_mov_b32 s{s_lb+1}, {stride}
v_mul_lo_u32 v{v_goff}, v{vt}, s{s_lb+1}
v_and_b32 v{vt}, {lpr-1}, v{v_lane}
v_lshlrev_b32 v{vt}, 4, v{vt}
v_add_u32 v{v_goff}, v{v_goff}, v{vt}
v_lshrrev_b32 v{v_tr}, 4, v{v_lane}
v_lshlrev_b32 v{v_tr}, {2 if perm else 3}, v{v_tr}
v_bfe_u32 v{vt}, v{v_lane}, 2, 2
v_add_u32 v{v_tr}, v{v_tr}, v{vt}
v_mul_u32_u24 v{v_tr}, {rb}, v{v_tr}
v_and_b32 v{vt}, 3, v{v_lane}
v_lshlrev_b32 v{vt}, 3, v{vt}
v_add_u32 v{v_tr}, v{v_tr}, v{vt}
v_add_u32 v{v_tr}, s{s_lb}, v{v_tr}""")
    second = (16 if perm else 4) * rb
    nslot = kb // nt
    N = len(units)
    def issue(u):
        sr, sc, imm = units[u]
        for j in range(nt):
            a(f"s_add_u32 s{s_tmp}, s{sc}, {imm + j*rows*stride}")
            a(f"s_add_u32 m0, s{s_lb}, {(u % nslot)*nt*1024 + j*1024}")
            a(f"buffer_load_dwordx4 v{v_goff}, s[{sr}:{sr+3}], s{s_tmp} offen lds")
    issued = 0
    while issued < min(N, nslot):
        issue(issued); issued += 1
    done = 0
    grp = max(1, 4 // nt)
    while done < N:
        g = min(grp, N - done)
        a(f"s_waitcnt vmcnt({(issued - (done + g))*nt})")
        for u in range(done, done + g):
            for T in range(nt):
                o = (u % nslot)*nt*1024 + T*32
                a(f"ds_read_b64_tr_b16 {dst_pair(u,T,0)}, v{v_tr} offset:{o}")
                a(f"ds_read_b64_tr_b16 {dst_pair(u,T,1)}, v{v_tr} offset:{o+second}")
        done += g
        if issued < N:
            a("s_waitcnt lgkmcnt(0)")
            k = 0
            while issued < N and k < g:
                issue(issued); issued += 1; k += 1
    a("s_waitcnt lgkmcnt(0)")
```

```python
from gen_common import *
import gen_panel as P, gen_tok as T, gen_rec as R
import os
OPT=lambda k,d: type(d)(os.environ.get(k,d))

def tok_loop(a):
    from gen_tok import TS_WS, TS_OUT, TS_WAVE, TS_S, TS_I, TS_T, TS_T2, TS_T3, TV_LANE, TV_G, TV_N, TV_T, TV_T2
    V_WA = 13; V_WT = 14; V_Z = 15
    a(f"""s_load_dwordx2 s[40:41], s[0:1], {KA['out']}
s_load_dwordx2 s[48:49], s[0:1], {KA['dbg']}
s_waitcnt lgkmcnt(0)""")
    srd(a, TS_OUT, 40, OUT_BYTES)
    lane_setup(a, TV_LANE, TV_G, TV_N, TS_WAVE)
    T.tok_setup(a)
    a(f"v_mov_b32 v{V_Z}, 0")
    a.label("TOK_LOOP")
    a(f"""s_cmp_lg_u32 s{TS_WAVE}, 0
s_cbranch_scc1 TOK_NT
v_mov_b32 v{V_WT}, 1
v_mov_b32 v{V_WA}, 36
s_mov_b64 exec, 1
global_atomic_add v{V_WT}, v{V_WA}, v{V_WT}, s[48:49] sc0 sc1
s_waitcnt vmcnt(0)
v_mov_b32 v{V_WA}, 65536
ds_write_b32 v{V_WA}, v{V_WT}
s_waitcnt lgkmcnt(0)
s_mov_b64 exec, -1""")
    a.label("TOK_NT")
    a(f"""s_barrier
v_mov_b32 v{V_WA}, 65536
ds_read_b32 v{V_WT}, v{V_WA}
s_waitcnt lgkmcnt(0)
v_readfirstlane_b32 s50, v{V_WT}
s_barrier
s_cmp_ge_u32 s50, 1024
s_cbranch_scc1 TOK_END
s_lshr_b32 s{TS_S}, s50, 4
s_and_b32 s{TS_I}, s50, 15
s_cmp_ge_u32 s{TS_I}, 8
s_cbranch_scc1 TOK_PU""")
    a(f"s_cmp_lg_u32 s{TS_WAVE}, 0")
    a("s_cbranch_scc1 TOK_SC_GO")
    a(f"s_add_u32 s51, s{TS_S}, 1")
    a(f"v_mov_b32 v{V_WA}, {F_RPROG}")
    wait_words(a, "TSC_W0", TS_WS, V_WA, V_WT, 51, s_cnt=52, sleep=24)
    a(f"""s_lshl_b32 s{TS_T}, s{TS_S}, 9
s_add_u32 s{TS_T}, s{TS_T}, {F_REC}
v_lshlrev_b32 v{V_WA}, 2, v{TV_LANE}
v_add_u32 v{V_WA}, s{TS_T}, v{V_WA}""")
    wait_words(a, "TSC_W1", TS_WS, V_WA, V_WT, None, s_cnt=52, sleep=8, imm_thr=1)
    a(f"v_add_u32 v{V_WA}, 256, v{V_WA}")
    wait_words(a, "TSC_W2", TS_WS, V_WA, V_WT, None, s_cnt=52, sleep=8, imm_thr=1)
    a(f"""v_mul_u32_u24 v{V_WT}, 21846, v{TV_LANE}
v_lshrrev_b32 v{V_WT}, 16, v{V_WT}
v_mul_u32_u24 v{V_WA}, 3, v{V_WT}
v_sub_u32 v{V_WA}, v{TV_LANE}, v{V_WA}
v_cmp_eq_u32 vcc, 0, v{V_WT}
v_mov_b32 v{V_WT}, {R_Q0}
v_cndmask_b32 v{V_WT}, 0, v{V_WT}, vcc
v_add_u32 v{V_WA}, v{V_WA}, v{V_WT}
s_mul_i32 s{TS_T}, s{TS_I}, 3
v_add_u32 v{V_WA}, s{TS_T}, v{V_WA}
v_lshlrev_b32 v{V_WA}, {PSH}, v{V_WA}
v_add_u32 v{V_WA}, {F_PROG}, v{V_WA}
s_lshl_b32 s51, s{TS_S}, 1
s_add_u32 s51, s51, 2""")
    wait_words(a, "TSC_W3", TS_WS, V_WA, V_WT, 51, s_cnt=52, sleep=8)
    a.label("TOK_SC_GO")
    a("s_barrier")
    T.emit_score(a, "MSC")
    a("s_waitcnt vmcnt(0)")
    a("s_barrier")
    a(f"""s_cmp_lg_u32 s{TS_WAVE}, 0
s_cbranch_scc1 TOK_LOOP
s_lshl_b32 s{TS_T}, s{TS_S}, 7
s_lshl_b32 s{TS_T2}, s{TS_I}, 2
s_add_u32 s{TS_T}, s{TS_T}, s{TS_T2}
s_add_u32 s{TS_T}, s{TS_T}, {F_SC}
s_mov_b32 s51, 1""")
    publish_word(a, TS_WS, V_WT, V_Z, TS_T, 51)
    a("s_branch TOK_LOOP")
    a.label("TOK_PU")
    a(f"s_sub_u32 s{TS_I}, s{TS_I}, 8")
    a(f"s_cmp_lg_u32 s{TS_WAVE}, 0")
    a("s_cbranch_scc1 TOK_PU_GO")
    a(f"""s_lshl_b32 s{TS_T}, s{TS_S}, 7
s_add_u32 s{TS_T}, s{TS_T}, {F_SC}
v_and_b32 v{V_WA}, 7, v{TV_LANE}
v_lshlrev_b32 v{V_WA}, 2, v{V_WA}
v_add_u32 v{V_WA}, s{TS_T}, v{V_WA}""")
    wait_words(a, "TPU_W0", TS_WS, V_WA, V_WT, None, s_cnt=52, sleep=16, imm_thr=1)
    a(f"""v_and_b32 v{V_WA}, 31, v{TV_LANE}
v_lshlrev_b32 v{V_WA}, {PSH}, v{V_WA}
v_add_u32 v{V_WA}, {F_PROG + (R_U0 << PSH)}, v{V_WA}
s_add_u32 s51, s{TS_S}, 1""")
    wait_words(a, "TPU_W1", TS_WS, V_WA, V_WT, 51, s_cnt=52, sleep=8)
    a(f"""s_mul_i32 s{TS_T}, s{TS_I}, 5
s_lshr_b32 s{TS_T2}, s{TS_T}, 2
s_add_u32 s{TS_T}, s{TS_T}, 4
s_lshr_b32 s{TS_T}, s{TS_T}, 2
v_mov_b32 v{V_WA}, s{TS_T}
v_mov_b32 v{V_WT}, s{TS_T2}
v_and_b32 v{TV_T}, 1, v{TV_LANE}
v_cmp_eq_u32 vcc, 0, v{TV_T}
v_cndmask_b32 v{V_WA}, v{V_WA}, v{V_WT}, vcc
v_lshlrev_b32 v{V_WA}, {PSH}, v{V_WA}
v_add_u32 v{V_WA}, {F_PROG + (R_DN0 << PSH)}, v{V_WA}
s_lshl_b32 s51, s{TS_S}, 1
s_add_u32 s51, s51, 2""")
    wait_words(a, "TPU_W2", TS_WS, V_WA, V_WT, 51, s_cnt=52, sleep=8)
    a.label("TOK_PU_GO")
    a("s_barrier")
    T.emit_pu(a, "MPU")
    a("s_branch TOK_LOOP")
    a.label("TOK_END")
    trace(a, 4, 97)
    a("s_waitcnt vmcnt(0)")
    a("s_endpgm")

def gen_main_kernel():
    a = Asm(); name = "main_kernel"
    kernel_header(a, name)
    if OPT('STAMP', 0): a("s_memtime s[100:101]")
    a(f"""s_cmp_ge_u32 s2, 256
s_cbranch_scc1 MK_END
s_load_dwordx2 s[74:75], s[0:1], {KA['ws']}
s_load_dwordx2 s[76:77], s[0:1], {KA['dbg']}
s_getreg_b32 s78, hwreg(HW_REG_XCC_ID)
s_and_b32 s78, s78, 7
s_waitcnt lgkmcnt(0)""")
    srd(a, 4, 74, WS_SIZE)
    lane_setup(a, 1, 2, 3, 24)
    a(f"""s_cmp_lg_u32 s24, 0
s_cbranch_scc1 MK_NORANK
v_mov_b32 v10, 1
s_lshl_b32 s79, s78, 2
v_mov_b32 v11, s79
s_mov_b64 exec, 1
global_atomic_add v12, v11, v10, s[76:77] sc0 sc1
s_waitcnt vmcnt(0)
v_readfirstlane_b32 s79, v12
s_mov_b32 s80, s78
s_cmp_lt_u32 s79, 32
s_cbranch_scc1 MK_HAVE
v_mov_b32 v11, 32
global_atomic_add v12, v11, v10, s[76:77] sc0 sc1
s_waitcnt vmcnt(0)
v_readfirstlane_b32 s81, v12
s_mov_b64 exec, 0xff
v_lshlrev_b32 v11, 2, v1
s_mov_b32 s82, 0""")
    a.label("MK_OVW")
    a(f"""global_load_dword v12, v11, s[76:77] sc1
s_waitcnt vmcnt(0)
s_mov_b32 s83, 0""")
    for x in range(8):
        a(f"v_readlane_b32 s84, v12, {x}\ns_add_u32 s83, s83, s84")
    a(f"""s_cmp_ge_u32 s83, 256
s_cbranch_scc1 MK_OVK
s_sleep 8
s_add_u32 s82, s82, 1
s_cmp_lt_u32 s82, 0x200000
s_cbranch_scc1 MK_OVW""")
    a.label("MK_OVK")
    for x in range(8):
        a(f"""v_readlane_b32 s84, v12, {x}
s_min_u32 s84, s84, 32
s_sub_u32 s85, 32, s84
s_cmp_lt_u32 s81, s85
s_cbranch_scc0 MK_NX{x}
s_mov_b32 s80, {x}
s_add_u32 s79, s84, s81
s_branch MK_HAVE""")
        a.label(f"MK_NX{x}")
        a("s_sub_u32 s81, s81, s85")
    a("s_mov_b32 s80, 7\ns_mov_b32 s79, 31")
    a.label("MK_HAVE")
    a(f"""s_mov_b64 exec, 1
s_lshl_b32 s80, s80, 8
s_or_b32 s80, s80, s79
v_mov_b32 v12, s80
v_mov_b32 v11, 0
ds_write_b32 v11, v12
s_waitcnt lgkmcnt(0)
s_mov_b64 exec, -1""")
    a.label("MK_NORANK")
    a(f"""s_barrier
v_mov_b32 v11, 0
ds_read_b32 v12, v11
s_waitcnt lgkmcnt(0)
v_readfirstlane_b32 s79, v12
s_barrier
s_lshr_b32 s80, s79, 8
s_and_b32 s79, s79, 255
s_cmp_ge_u32 s80, 4
s_cbranch_scc1 MK_GEMM
s_lshl_b32 s{R.S_J}, s80, 5
s_add_u32 s{R.S_J}, s{R.S_J}, s79""")
    a(f"s_mov_b32 s97, s{R.S_J}")
    trace(a, 0, 97)
    R.rec_entry(a)
    R.rec_dispatch(a, flags=True)
    a.label("MK_GEMM")
    a(f"""s_lshl_b32 s51, s79, 2
s_sub_u32 s80, s80, 4
s_add_u32 s51, s51, s80
s_mov_b32 s{P.S_WAVE}, s24
s_lshl_b32 s{P.S_PROG}, s51, {PSH}
s_add_u32 s{P.S_PROG}, s{P.S_PROG}, {F_PROG}
s_add_u32 s97, s51, 128""")
    trace(a, 0, 97)
    a(f"""s_cmp_lt_u32 s51, {R_UP0}
s_cbranch_scc1 MK_QKV
s_cmp_lt_u32 s51, {R_DN0}
s_cbranch_scc1 MK_UP
s_cmp_lt_u32 s51, {R_U0}
s_cbranch_scc1 MK_DN
s_cmp_lt_u32 s51, {R_PROBE}
s_cbranch_scc1 MK_U
s_cmp_eq_u32 s51, {R_PROBE}
s_cbranch_scc0 MK_TOK""")
    R.probe(a, 24, 78, "MK_PR")
    a("s_branch MK_TOK")
    a.label("MK_QKV")
    P.panel_role_setup(a, 'qkv', 51); P.emit_panel(a, 'qkv', 'MPQ', flags=True)
    a("s_branch MK_TOK")
    a.label("MK_UP")
    a(f"s_sub_u32 s51, s51, {R_UP0}")
    P.panel_role_setup(a, 'ffnup', 51); P.emit_panel(a, 'ffnup', 'MPU2', flags=True)
    a("s_branch MK_TOK")
    a.label("MK_DN")
    a(f"s_sub_u32 s51, s51, {R_DN0}")
    P.panel_role_setup(a, 'down', 51); P.emit_panel(a, 'down', 'MPD', flags=True)
    a("s_branch MK_TOK")
    a.label("MK_U")
    a(f"""s_sub_u32 s{T.US_H}, s51, {R_U0}
s_mov_b32 s{T.US_PROG}, s{P.S_PROG}
s_load_dwordx2 s[40:41], s[0:1], {KA['wo']}
s_waitcnt lgkmcnt(0)""")
    srd(a, T.US_WO, 40, H*E*D*2)
    T.emit_upanel(a, "MUP", flags=True)
    a.label("MK_TOK")
    trace(a, 3, 97)
    a("s_barrier")
    tok_loop(a)
    a.label("MK_END")
    a("s_endpgm")
    return name, a.finalize(), kernel_desc(name, 512, 102, 256)
```

```python
from gen_common import *
import struct
def f2u(f): return struct.unpack('<I', struct.pack('<f', f))[0]

S_WS=4; S_W0=8; S_W1=12; S_X=16; S_WAVE=20; S_LB=21; S_COL=24; S_OUT=28; S_CNT=30; S_XG=31; S_WS_SLOT=32; S_T=33; S_RUN=34; S_T2=35; S_RSLOT=36; S_XRUN=37
V_LANE=1; V_G=2; V_N=3; V_GOFF=4; V_TR=5; V_T=6; V_L16=7; V_XA=8; V_XB=9; V_RING=10; V_ACC=26; V_EPI=58; V_GT=66; V_XO=90; V_XL=92; V_W=96

import os
OPT=lambda k,d: type(d)(os.environ.get(k,d))
S_PROG=52; S_DONE=53; S_CACHE=54; S_THR=55; S_W1T=56; S_W2T=57
V_PV=160; V_PZ=161; V_WA=162; V_WT=163
def emit_panel(a, kind, pfx, sc1=True, ntiles=128, flags=False):
    sc1 = OPT('SC1',1) and sc1
    SC = " sc1" if sc1 else ""
    if kind == 'down':
        KS, T, stride, perm = 48, 1, D*2, True
        xbase = HF
    elif kind == 'qkv':
        KS, T, stride, perm = 20, 4, H*E*2, False
        xbase = XN
    else:
        KS, T, stride, perm = 20, 4, F*2, False
        xbase = XN
    XT = KS*1024; n4 = KS//4; LOOK = OPT('LOOKD',3) if kind=='down' else OPT('LOOK',3)
    NR = 4 if LOOK<=3 else (LOOK+1 if KS%(LOOK+1)==0 else None)
    assert KS % NR == 0
    wreg = WReg(0, 256, V_W)
    RING0 = V_RING if NR==4 else 170
    if OPT('STAMP',0): a("s_memtime s[58:59]")
    a(f"s_lshl_b32 s{S_LB}, s{S_WAVE}, 15")
    if kind == 'qkv':
        units = [(S_W0, S_COL, p*32*stride) for p in range(KS)]
        load_w2(a, units, lambda u, T, k: wreg.pair(T*KS + u, k), 4, stride, perm, V_LANE, V_GOFF, V_TR, V_T, S_T, S_LB)
    elif kind == 'ffnup':
        units = []
        for p in range(KS): units += [(S_W0, S_COL, p*32*stride), (S_W1, S_COL+2, p*32*stride)]
        load_w2(a, units, lambda u, T, k: wreg.pair(((u & 1)*2 + T)*KS + (u >> 1), k), 2, stride, perm, V_LANE, V_GOFF, V_TR, V_T, S_T, S_LB)
    else:
        units = [(S_W0, S_COL, p*32*stride) for p in range(KS)]
        load_w2(a, units, lambda u, T, k: wreg.pair(u, k), 1, stride, perm, V_LANE, V_GOFF, V_TR, V_T, S_T, S_LB)
    def wq(T_, p): return wreg.quad(T_*KS + p)
    if flags: trace(a, 1, 97)
    a("s_barrier")
    a(f"v_lshlrev_b32 v{V_L16}, 4, v{V_LANE}")
    a(f"s_mul_i32 s{S_T}, s{S_WAVE}, {n4*1024}")
    a(f"s_add_u32 s{S_XG}, s{S_T}, {xbase}")
    a(f"s_mov_b32 s{S_WS_SLOT}, s{S_T}")
    def dma():
        if flags and kind == 'down':
            a.uid += 1
            a(f"s_add_u32 s{S_THR}, s{S_THR}, 1")
            a(f"s_min_u32 s{S_W2T}, s{S_THR}, 128")
            wait_words(a, f"{pfx}_WH{a.uid}", S_WS, V_WA, V_WT, S_W2T, S_CACHE, 12, S_W1T, S_CNT+28)
        k = 0
        while k < n4:
            a(f"s_add_u32 m0, s{S_WS_SLOT}, {k*1024}")
            a(f"s_add_u32 s{S_T}, s{S_XG}, {k*1024}")
            for j in range(min(4, n4-k)):
                a(f"buffer_load_dwordx4 v{V_L16}, s[{S_WS}:{S_WS+3}], s{S_T} offen offset:{j*1024} lds")
            k += 4
        a(f"s_add_u32 s{S_XG}, s{S_XG}, {XT}")
        a(f"s_add_u32 s{S_WS_SLOT}, s{S_WS_SLOT}, {XT}")
        a(f"s_sub_u32 s{S_T}, s{S_WS_SLOT}, {NSL*XT}")
        a(f"s_cmp_ge_u32 s{S_WS_SLOT}, {NSL*XT}")
        a(f"s_cselect_b32 s{S_WS_SLOT}, s{S_T}, s{S_WS_SLOT}")
    NSL = OPT('NSLD',3) if kind=='down' else OPT('NSL',3)
    assert NSL*XT <= 160*1024
    STAMP = OPT('STAMP',0) and not flags
    if STAMP: a("s_memtime s[60:61]")
    if flags:
        a(f"s_mov_b32 s{S_DONE}, 0")
        a(f"v_mov_b32 v{V_PZ}, 0")
        a(f"s_mov_b32 s{S_CACHE}, 0")
        a(f"s_mov_b32 s{S_THR}, 0")
        if kind == 'down':
            a(f"v_min_u32 v{V_WA}, 11, v{V_LANE}")
            a(f"v_lshlrev_b32 v{V_WA}, {PSH}, v{V_WA}")
            a(f"v_add_u32 v{V_WA}, {F_PROG + (R_UP0 << PSH)}, v{V_WA}")
    for _ in range(NSL-1): dma()
    a(f"s_mov_b32 s{S_RSLOT}, {XT}")
    a(f"v_mov_b32 v{V_XA}, v{V_L16}")
    a(f"s_mov_b32 s{S_RUN}, 0")
    a(f"s_mov_b32 s{S_XRUN}, 0")
    if kind == 'ffnup':
        k = 2*0.7978845608028654*1.4426950408889634
        a(f"v_mov_b32 v{V_GT+16}, 0x{f2u(-k*0.044715):08x}")
        a(f"v_mov_b32 v{V_GT+17}, 0x{f2u(-k):08x}")
    if kind == 'down':
        a(f"v_mul_u32_u24 v{V_XO}, 1280, v{V_N}")
        a(f"v_lshlrev_b32 v{V_T}, 3, v{V_G}")
        a(f"v_add_u32 v{V_XO}, v{V_XO}, v{V_T}")
    a(f"s_waitcnt vmcnt({(NSL-2)*n4})")
    a("s_barrier")
    vx = [V_XA, V_XB]
    for pn in range(LOOK):
        a(f"ds_read_b128 {vr(RING0+4*(pn%NR))}, v{V_XA} offset:{pn*1024}")
    def epilogue(q, odd):
        ac = V_ACC + 16*q
        L = []
        if kind == 'qkv':
            for j in range(2):
                for r in range(4):
                    T_ = 2*j + (r >> 1)
                    L.append(f"v_cvt_pk_bf16_f32 v{V_EPI+4*j+r}, v{ac+4*T_+2*(r&1)}, v{ac+4*T_+2*(r&1)+1}")
                L.append(f"s_add_u32 s{S_T2}, s{S_RUN}, s{S_OUT+j}")
                L.append(f"buffer_store_dwordx4 {vr(V_EPI+4*j)}, v{V_L16}, s[{S_WS}:{S_WS+3}], s{S_T2} offen{SC}")
            L.append(f"s_add_u32 s{S_RUN}, s{S_RUN}, {6144 if not odd else 384*1024-6144}")
        elif kind == 'ffnup':
            for e in range(8):
                g = ac + e; u = ac + 8 + e; t = V_GT + e
                L += [f"v_mul_f32 v{t}, v{g}, v{g}",
                      f"v_fma_f32 v{t}, v{t}, v{V_GT+16}, v{V_GT+17}",
                      f"v_mul_f32 v{t}, v{t}, v{g}",
                      f"v_exp_f32 v{t}, v{t}",
                      f"v_add_f32 v{t}, 1.0, v{t}",
                      f"v_rcp_f32 v{t}, v{t}",
                      f"v_mul_f32 v{V_GT+8+e}, v{g}, v{u}"]
            for e in range(8):
                L.append(f"v_mul_f32 v{V_GT+e}, v{V_GT+e}, v{V_GT+8+e}")
            for r in range(4):
                L.append(f"v_cvt_pk_bf16_f32 v{V_EPI+r}, v{V_GT+2*r}, v{V_GT+2*r+1}")
            L.append(f"s_add_u32 s{S_T2}, s{S_RUN}, s{S_OUT}")
            L.append(f"buffer_store_dwordx4 {vr(V_EPI)}, v{V_L16}, s[{S_WS}:{S_WS+3}], s{S_T2} offen{SC}")
            L.append(f"s_add_u32 s{S_RUN}, s{S_RUN}, {48*1024}")
        else:
            xl = V_XL + 2*q
            L.append(f"s_waitcnt vmcnt(XWAIT)")
            L += [f"v_lshlrev_b32 v{V_EPI}, 16, v{xl}", f"v_and_b32 v{V_EPI+1}, 0xffff0000, v{xl}",
                  f"v_lshlrev_b32 v{V_EPI+2}, 16, v{xl+1}", f"v_and_b32 v{V_EPI+3}, 0xffff0000, v{xl+1}"]
            for r in range(4):
                L.append(f"v_add_f32 v{V_EPI+r}, v{V_EPI+r}, v{ac+r}")
            L.append(f"s_add_u32 s{S_T2}, s{S_RUN}, s{S_OUT}")
            L.append(f"buffer_store_dwordx4 {vr(V_EPI)}, v{V_L16}, s[{S_WS}:{S_WS+3}], s{S_T2} offen{SC}")
            L.append(f"s_add_u32 s{S_RUN}, s{S_RUN}, {1024 if not odd else 80*1024-1024}")
        return L
    NST = {'qkv': 2, 'ffnup': 1, 'down': 1}[kind]
    NPUB = 1 if flags else 0
    def body(q, epi, tidx=None):
        ac = V_ACC + 16*q
        E_ = epilogue(1-q, odd=(1-q) == 1) if epi else []
        E_ = [x.replace('XWAIT', str(n4+1)) for x in E_]
        per = -(-len(E_) // (KS - 6)) if E_ else 0
        if kind == 'down':
            xl = V_XL + 2*q
            a(f"s_add_u32 s{S_T2}, s{S_XRUN}, s{S_OUT+1}")
            a(f"buffer_load_dwordx2 {vr(xl,2)}, v{V_XO}, s[{S_X}:{S_X+3}], s{S_T2} offen")
            a(f"s_add_u32 s{S_XRUN}, s{S_XRUN}, {16*1280}")
        for p in range(KS):
            pn = p + LOOK
            if pn == KS:
                per_tile_ld = 1 if kind == 'down' else 0
                ntl = NSL-2
                if tidx is None:
                    w = (NSL-3)*n4 + ntl*(NST+per_tile_ld)
                else:
                    ks = [k for k in range(tidx-ntl+1, tidx+1) if k >= 0]
                    w = (NSL-3)*n4 + sum((NST if k >= 1 else 0) + per_tile_ld for k in ks)
                assert NSL == 3 or not flags
                if flags and tidx != 0:
                    a.uid += 1
                    a(f"s_cmp_eq_u32 s{S_WAVE}, 0")
                    a(f"s_cbranch_scc1 {pfx}_SW{a.uid}")
                    a(f"s_waitcnt vmcnt({w})")
                    a(f"s_branch {pfx}_SX{a.uid}")
                    a.label(f"{pfx}_SW{a.uid}")
                    a(f"s_waitcnt vmcnt({w+1})")
                    a.label(f"{pfx}_SX{a.uid}")
                else:
                    a(f"s_waitcnt vmcnt({w})")
                a("s_barrier")
                a(f"v_add_u32 v{vx[1-q]}, s{S_RSLOT}, v{V_L16}")
                a(f"s_add_u32 s{S_RSLOT}, s{S_RSLOT}, {XT}")
                a(f"s_cmp_ge_u32 s{S_RSLOT}, {NSL*XT}")
                a(f"s_cselect_b32 s{S_RSLOT}, 0, s{S_RSLOT}")
                dma()
                if flags:
                    a.uid += 1
                    a(f"s_cmp_lg_u32 s{S_WAVE}, 0")
                    a(f"s_cbranch_scc1 {pfx}_NP{a.uid}")
                    publish_word(a, S_WS, V_PV, V_PZ, S_PROG, S_DONE)
                    a.label(f"{pfx}_NP{a.uid}")
                    if tidx != 0: a(f"s_add_u32 s{S_DONE}, s{S_DONE}, 1")
            if pn < KS:
                a(f"ds_read_b128 {vr(RING0+4*(pn%NR))}, v{vx[q]} offset:{pn*1024}")
            else:
                a(f"ds_read_b128 {vr(RING0+4*(pn%NR))}, v{vx[1-q]} offset:{(pn-KS)*1024}")
            a(f"s_waitcnt lgkmcnt({LOOK})")
            for T_ in range(T):
                c = "0" if p == 0 else vr(ac+4*T_)
                a(f"v_mfma_f32_16x16x32_bf16 {vr(ac+4*T_)}, {wq(T_,p)}, {vr(RING0+4*(p%NR))}, {c}")
            if p >= 2:
                for _ in range(per):
                    if E_: a(E_.pop(0))
        while E_: a(E_.pop(0))
    body(0, False, tidx=0)
    if flags:
        trace(a, 2, 97)
        if int(os.environ.get('TRACE', 0)):
            a("s_memtime s[86:87]\ns_waitcnt lgkmcnt(0)")
            trace(a, 6, 97, val=86)
    npeel = 0
    t = 1
    while t < NSL-1 or (t % 2 == 0):
        body(t % 2, True, tidx=t); t += 1
    a(f"s_mov_b32 s{S_CNT}, {(ntiles-1-t)//2}")
    lp = f"{pfx}_LOOP"
    a.label(lp)
    body(1, True)
    body(0, True)
    a(f"s_sub_u32 s{S_CNT}, s{S_CNT}, 1")
    a(f"s_cmp_lg_u32 s{S_CNT}, 0")
    a(f"s_cbranch_scc1 {lp}")
    body(1, True)
    a("s_nop 7")
    for x in epilogue(1, odd=True):
        a(x.replace('XWAIT', '0'))
    a("s_waitcnt vmcnt(0) lgkmcnt(0)")
    if flags:
        if int(os.environ.get('TRACE', 0)):
            trace(a, 5, 97)
            a("s_memtime s[86:87]\ns_waitcnt lgkmcnt(0)")
            trace(a, 7, 97, val=86)
        a("s_barrier")
        a(f"s_mov_b32 s{S_DONE}, {ntiles}")
        publish_word(a, S_WS, V_PV, V_PZ, S_PROG, S_DONE)
        a("s_waitcnt vmcnt(0)")
    if STAMP:
        a(f"""s_memtime s[62:63]
s_load_dwordx2 s[56:57], s[0:1], {KA['dbg']}
s_waitcnt lgkmcnt(0)
s_sub_u32 s60, s60, s58
s_sub_u32 s62, s62, s58
v_mov_b32 v10, s60
v_mov_b32 v11, s62
s_lshl_b32 s33, s2, 3
s_cmp_lt_u32 s2, 16
s_cselect_b32 s33, s33, 248
v_mov_b32 v12, s33
s_mov_b64 exec, 1
global_store_dwordx2 v12, v[10:11], s[56:57]
s_waitcnt vmcnt(0)""")

def panel_role_setup(a, kind, s_role):
    if kind == 'qkv':
        a(f"""s_mul_i32 s40, s{s_role}, 2731
s_lshr_b32 s40, s40, 16
s_mul_i32 s41, s40, 24
s_sub_u32 s41, s{s_role}, s41
s_mov_b32 s42, {KA['wk']}
s_cmp_eq_u32 s40, 1
s_cselect_b32 s42, {KA['wv']}, s42
s_cmp_eq_u32 s40, 2
s_cselect_b32 s42, {KA['wq']}, s42
s_add_u32 s44, s0, s42
s_addc_u32 s45, s1, 0
s_load_dwordx2 s[46:47], s[44:45], 0
s_mov_b32 s43, {KX}
s_cmp_eq_u32 s40, 1
s_cselect_b32 s43, {VX}, s43
s_cmp_eq_u32 s40, 2
s_cselect_b32 s43, {QX}, s43
s_waitcnt lgkmcnt(0)""")
        srd(a, S_W0, 46, D*H*E*2)
        srd(a, S_W1, 46, D*H*E*2)
        a(f"""s_lshl_b32 s48, s41, 8
s_lshl_b32 s49, s{S_WAVE}, 6
s_add_u32 s48, s48, s49
s_lshl_b32 s48, s48, 1
s_mov_b32 s{S_COL}, s48
s_add_u32 s{S_COL+1}, s48, 32
s_add_u32 s{S_COL+2}, s48, 64
s_add_u32 s{S_COL+3}, s48, 96""")
        for j in range(2):
            a(f"""s_lshl_b32 s48, s41, 3
s_lshl_b32 s49, s{S_WAVE}, 1
s_add_u32 s48, s48, s49
s_add_u32 s48, s48, {j}
s_mul_i32 s49, s48, 10923
s_lshr_b32 s49, s49, 16
s_mul_i32 s50, s49, 6
s_sub_u32 s50, s48, s50
s_mul_i32 s49, s49, 12
s_add_u32 s49, s49, s50
s_lshl_b32 s49, s49, 10
s_add_u32 s{S_OUT+j}, s49, s43""")
    elif kind == 'ffnup':
        a(f"""s_load_dwordx2 s[46:47], s[0:1], {KA['wg']}
s_load_dwordx2 s[48:49], s[0:1], {KA['wu']}
s_waitcnt lgkmcnt(0)""")
        srd(a, S_W0, 46, D*F*2)
        srd(a, S_W1, 48, D*F*2)
        a(f"""s_lshl_b32 s48, s{s_role}, 2
s_add_u32 s48, s48, s{S_WAVE}
s_lshl_b32 s49, s48, 6
s_mov_b32 s{S_COL}, s49
s_add_u32 s{S_COL+1}, s49, 32
s_mov_b32 s{S_COL+2}, s49
s_add_u32 s{S_COL+3}, s49, 32
s_lshl_b32 s49, s48, 10
s_add_u32 s{S_OUT}, s49, {HF}""")
    else:
        a(f"""s_load_dwordx2 s[46:47], s[0:1], {KA['wd']}
s_load_dwordx2 s[48:49], s[0:1], {KA['x']}
s_waitcnt lgkmcnt(0)""")
        srd(a, S_W0, 46, F*D*2)
        srd(a, S_X, 48, S*D*2)
        a(f"""s_lshl_b32 s48, s{s_role}, 2
s_add_u32 s48, s48, s{S_WAVE}
s_lshl_b32 s{S_COL}, s48, 5
s_mov_b32 s{S_OUT+1}, s{S_COL}
s_lshl_b32 s49, s48, 11
s_add_u32 s{S_OUT}, s49, {BASE}""")

def gen_panel_kernel():
    a = Asm(); name = "panel_kernel"
    kernel_header(a, name)
    a(f"""s_cmp_ge_u32 s2, 84
s_cbranch_scc1 PK_END
s_load_dwordx2 s[38:39], s[0:1], {KA['ws']}
s_waitcnt lgkmcnt(0)""")
    srd(a, S_WS, 38, WS_SIZE)
    lane_setup(a, V_LANE, V_G, V_N, S_WAVE)
    a("s_cmp_ge_u32 s2, 72\ns_cbranch_scc1 PK_UP")
    a("s_mov_b32 s51, s2")
    panel_role_setup(a, 'qkv', 51)
    emit_panel(a, 'qkv', 'PKQ')
    a("s_endpgm")
    a.label("PK_UP")
    a("s_sub_u32 s51, s2, 72")
    panel_role_setup(a, 'ffnup', 51)
    emit_panel(a, 'ffnup', 'PKU')
    a.label("PK_END")
    a("s_endpgm")
    return name, a.finalize(), kernel_desc(name, 512, 64, 256)

def gen_down_kernel():
    a = Asm(); name = "down_kernel"
    kernel_header(a, name)
    a(f"""s_cmp_ge_u32 s2, 10
s_cbranch_scc1 DK_END
s_load_dwordx2 s[38:39], s[0:1], {KA['ws']}
s_waitcnt lgkmcnt(0)""")
    srd(a, S_WS, 38, WS_SIZE)
    lane_setup(a, V_LANE, V_G, V_N, S_WAVE)
    a("s_mov_b32 s51, s2")
    panel_role_setup(a, 'down', 51)
    emit_panel(a, 'down', 'PKD')
    a.label("DK_END")
    a("s_endpgm")
    return name, a.finalize(), kernel_desc(name, 512, 64, 256)
```

```python
from gen_common import *
import struct, os
OPT=lambda k,d: type(d)(os.environ.get(k,d))
def f2u(f): return struct.unpack('<I', struct.pack('<f', f))[0]

S_WS=4; S_WQ=8; S_WK=12; S_WV=16; S_WO=20
S_WAVE=24; S_H=25; S_C=26; S_J=27; S_STEP=28
S_P=29; S_CUR=30; S_N=31; S_NN=32
S_HI32=20
S_M8=34; S_H8=38
S_T=40; S_T2=41; S_T3=42; S_RETRY=43
S_KVG=44; S_UXG=45; S_UYG=46; S_KMG=47; S_RSB=48; S_KVL=49; S_KVR=50; S_RED=51; S_RSP=52; S_FLG=53
S_LB=54
S_COL=56
S_SCALE=60; S_MAXR=61
S_TS=62
S_M0=88
S_MODE=57
S_REF0=98
S_REF2=36
S_NOW=58
L_MEM=0; L_QKV=10240; L_KV=20480; KVB=24576
LDS_REC=131072
V_LANE=1; V_G=2; V_N=3; V_T=4; V_T2=5; V_L16=6
V_AGO=7; V_AGL=10; V_MRD=11; V_AST=12; V_KMS=15; V_APO=16; V_APL=19
V_RQ=20; V_RK=23; V_RV=26; V_RSO=28; V_L4=29; V_AGS=30; V_ZERO=31
V_NINF=248; V_KVA=249
V_POLL=32; V_RING=48; V_ACC=80; V_PK=92; V_KXF=100; V_QF=148; V_KF=172; V_VF=196; V_S=220; V_UXF=232
V_Y=48; V_PU=64; V_UA=48; V_YF=220; V_SM=148
NT = [4, 4, 2]; T0 = [0, 4, 8]; P0 = [0, 2, 4]
KVX = L_KV ^ (L_KV+KVB)

def poll_check(a, regs, vt):
    r = list(regs)
    a(f"v_max3_u32 v{vt}, v{r[0]}, v{r[1]}, v{r[2]}")
    i = 3
    while i < len(r):
        if i + 1 < len(r):
            a(f"v_max3_u32 v{vt}, v{vt}, v{r[i]}, v{r[i+1]}"); i += 2
        else:
            a(f"v_max_u32 v{vt}, v{vt}, v{r[i]}"); i += 1
    a(f"v_cmp_eq_u32 vcc, -1, v{vt}")

def sleep(a, n):
    while n > 0:
        k = min(n, 127); a(f"s_sleep {k}"); n -= k

def mark(a, reg):
    a(f"s_memtime s[{reg}:{reg+1}]")

def wait_until(a, ref, delta):
    if delta <= 0: return
    a.uid += 1
    L = f"WU_{a.uid}"
    a.label(L)
    a(f"""s_memtime s[{S_NOW}:{S_NOW+1}]
s_waitcnt lgkmcnt(0)
s_sub_u32 s{S_NOW}, s{S_NOW}, s{ref}
s_cmp_ge_u32 s{S_NOW}, {delta}
s_cbranch_scc1 {L}_D
s_sub_u32 s{S_NOW}, {delta}, s{S_NOW}
s_cmp_lt_u32 s{S_NOW}, 96
s_cbranch_scc1 {L}
s_sleep 1
s_branch {L}""")
    a.label(f"{L}_D")

def stamp(a, idx):
    if OPT('STAMP', 0):
        a(f"s_memtime s[{S_TS+2*idx}:{S_TS+2*idx+1}]")
        a("s_waitcnt lgkmcnt(0)")

def racc(a, k):
    if OPT('STAMP', 0): a(f"s_add_u32 s{k}, s{k}, s{S_RETRY}")

def nearmap_v(a, v, vt):
    a(f"""v_lshrrev_b32 v{vt}, 13, v{v}
v_lshlrev_b32 v{vt}, 14, v{vt}
v_and_b32 v{v}, 0x1fff, v{v}
v_or_b32 v{v}, v{v}, v{vt}""")

def oob_mask(a, v, nlanes):
    a(f"""v_mov_b32 v{V_T}, 0x80000000
v_cmp_gt_u32 vcc, {nlanes}, v{V_LANE}
v_cndmask_b32 v{v}, v{V_T}, v{v}, vcc""")

def poll_loop(a, lbl, loads, nreg, acc, pre_issued=False):
    a(f"s_mov_b32 s{S_RETRY}, 0")
    if pre_issued:
        a(f"s_branch {lbl}_W")
    a.label(lbl)
    for x in loads: a(x)
    if pre_issued: a.label(f"{lbl}_W")
    a("s_waitcnt vmcnt(0)")
    poll_check(a, range(V_POLL, V_POLL+nreg), V_T)
    a(f"""s_cbranch_vccz {lbl}_OK
s_add_u32 s{S_RETRY}, s{S_RETRY}, 1
s_cmp_lt_u32 s{S_RETRY}, s{S_MAXR}
s_cbranch_scc1 {lbl}
s_mov_b32 s{S_MAXR}, 0""")
    a.label(f"{lbl}_OK")
    racc(a, acc)

def store_mode(a, lines):
    if OPT('AFAST', 1) == 0:
        for x in lines: a(x.replace(' SCX', ' sc1'))
        return
    a.uid += 1
    L = f"SM_{a.uid}"
    a(f"s_cmp_eq_u32 s{S_MODE}, 0")
    a(f"s_cbranch_scc1 {L}_S")
    for x in lines: a(x.replace(' SCX', ''))
    a(f"s_branch {L}_E")
    a.label(f"{L}_S")
    for x in lines: a(x.replace(' SCX', ' sc1'))
    a.label(f"{L}_E")

def wait_mode(a, ref, fast, slow):
    if OPT('AFAST', 1) == 0:
        wait_until(a, ref, slow); return
    a.uid += 1
    L = f"WM_{a.uid}"
    a(f"s_cmp_eq_u32 s{S_MODE}, 0")
    a(f"s_cbranch_scc1 {L}_S")
    wait_until(a, ref, fast)
    a(f"s_branch {L}_E")
    a.label(f"{L}_S")
    wait_until(a, ref, slow)
    a.label(f"{L}_E")

def ag_poll(a, pfx, w):
    wait_until(a, S_REF2, OPT('T_AG', 400))
    if OPT('AG4', 1):
        loads = [f"buffer_load_dwordx4 {vr(V_POLL+4*k)}, v{V_AGO+k}, s[{S_WS}:{S_WS+3}], s{S_P} offen sc1" for k in range(3)]
        poll_loop(a, f"{pfx}_AGP", loads, 12, 92)
        a(f"ds_write_b128 v{V_AGL}, {vr(V_POLL)}")
        a(f"ds_write_b128 v{V_AGL}, {vr(V_POLL+4)} offset:1024")
        a("s_mov_b32 exec_hi, 0")
        a(f"ds_write_b128 v{V_AGL}, {vr(V_POLL+8)} offset:2048")
        a("s_mov_b64 exec, -1")
        return
    if w != 3: return
    loads = []
    for k in range(10):
        if k < 4: loads.append(f"buffer_load_dwordx4 {vr(V_POLL+4*k)}, v{V_AGO}, s[{S_WS}:{S_WS+3}], s{S_P} offen offset:{k*1024} sc1")
        elif k < 8: loads.append(f"buffer_load_dwordx4 {vr(V_POLL+4*k)}, v{V_AGO+1}, s[{S_WS}:{S_WS+3}], s{S_P} offen offset:{(k-4)*1024} sc1")
        else: loads.append(f"buffer_load_dwordx4 {vr(V_POLL+4*k)}, v{V_AGO+2}, s[{S_WS}:{S_WS+3}], s{S_P} offen offset:{(k-8)*1024} sc1")
    poll_loop(a, f"{pfx}_AGP", loads, 40, 92)
    for k in range(10):
        a(f"ds_write_b128 v{V_L16}, {vr(V_POLL+4*k)} offset:{L_MEM + k*1024}")

def rotate_slots(a):
    a(f"""s_mov_b32 s{S_T}, s{S_P}
s_mov_b32 s{S_P}, s{S_CUR}
s_mov_b32 s{S_CUR}, s{S_N}
s_mov_b32 s{S_N}, s{S_NN}
s_mov_b32 s{S_NN}, s{S_T}""")

def proj_stage(a, ntile, wquad):
    NRING = 8
    for p in range(min(NRING, 20)):
        a(f"ds_read_b128 {vr(V_RING+4*p)}, v{V_MRD} offset:{L_MEM + p*512}")
    for p in range(20):
        outstanding = min(NRING, 20 - p)
        a(f"s_waitcnt lgkmcnt({outstanding-1})")
        for t in range(ntile):
            c = "0" if p == 0 else vr(V_ACC+4*t)
            a(f"v_mfma_f32_16x16x32_bf16 {vr(V_ACC+4*t)}, {wquad(t,p)}, {vr(V_RING+4*(p%NRING))}, {c}")
        if p + NRING < 20:
            a(f"ds_read_b128 {vr(V_RING+4*(p%NRING))}, v{V_MRD} offset:{L_MEM + (p+NRING)*512}")

def idle_phase(a, w, woq):
    nt = NT[w]
    a(f"v_add_u32 v{V_T}, s{S_KVR}, v{V_L16}")
    for f in range(12):
        a(f"ds_read_b128 {vr(V_QF+4*f)}, v{V_T} offset:{12288 + f*1024}")
        if f == 7: a("s_waitcnt lgkmcnt(4)")
    a("s_waitcnt lgkmcnt(0)")
    for f in range(12):
        a(f"ds_read_b128 {vr(V_KXF+4*f)}, v{V_T} offset:{f*1024}")
    for p in range(6):
        for t in range(nt):
            for tt in range(2):
                d = V_UA + 8*t + 4*tt
                c = "0" if p == 0 else vr(d)
                a(f"v_mfma_f32_16x16x32_bf16 {vr(d)}, {vr(V_QF+4*(tt*6+p))}, {woq(t,p)}, {c}")
    for t in range(nt):
        for k in range(4):
            tt = k >> 1
            d = V_UA + 8*t + 4*tt + 2*(k & 1)
            a(f"v_cvt_pk_bf16_f32 v{V_UXF+4*t+k}, v{d}, v{d+1}")
        a(f"s_add_u32 s{S_T}, s{S_UXG}, {t*1024}")
        if OPT('UXST', 0): a(f"buffer_store_dwordx4 {vr(V_UXF+4*t)}, v{V_L16}, s[{S_WS}:{S_WS+3}], s{S_T} offen sc1")
    a(f"s_add_u32 s{S_UXG}, s{S_UXG}, {32*40*1024}")
    a("s_waitcnt lgkmcnt(0)")
    a(f"s_xor_b32 s{S_KVR}, s{S_KVR}, {KVX}")

S_KVT=33
S_KVC=21
def kv_dma(a, flags=False, pfx=''):
    if flags:
        a.uid += 1
        a(f"s_add_u32 s{S_KVT}, s{S_KVT}, 2")
        a(f"s_min_u32 s{S_T3}, s{S_KVT}, 128")
        wait_words(a, f"{pfx}_WKV{a.uid}", S_WS, V_KVA, V_T, S_T3, 22, 4, S_T2, 23)
    a(f"s_lshl_b32 s{S_T2}, s{S_WAVE}, 12")
    a(f"s_add_u32 s{S_T2}, s{S_T2}, s{S_KVL}")
    a(f"s_mov_b32 m0, s{S_T2}")
    for j in range(4):
        a(f"buffer_load_dwordx4 v{V_L16}, s[{S_WS}:{S_WS+3}], s{S_KVG} offen offset:{j*1024} sc1 lds")
    a(f"s_add_u32 m0, s{S_T2}, 12288")
    a(f"s_add_u32 s{S_T}, s{S_KVG}, {VX-KX}")
    for j in range(4):
        a(f"buffer_load_dwordx4 v{V_L16}, s[{S_WS}:{S_WS+3}], s{S_T} offen offset:{j*1024} sc1 lds")
    a(f"s_add_u32 s{S_KVG}, s{S_KVG}, {32*12288}")
    a(f"s_xor_b32 s{S_KVL}, s{S_KVL}, {KVX}")

def softmax(a, inter):
    X = V_SM; MX = V_SM+6; TM = V_SM+7; RS_ = V_SM+8; PT = V_SM+12; PM = V_SM+10
    L = []
    for r in range(4): L.append(f"v_cndmask_b32 v{X+r}, v{V_S+4+r}, v{V_S+8+r}, s[{S_H8}:{S_H8+1}]")
    L.append(f"v_cndmask_b32 v{X+4}, v{V_S}, v{V_S+2}, s[{S_H8}:{S_H8+1}]")
    L.append(f"v_cndmask_b32 v{X+5}, v{V_S+1}, v{V_S+3}, s[{S_H8}:{S_H8+1}]")
    L.append(f"v_cndmask_b32 v{X+4}, v{X+4}, v{V_NINF}, s[{S_HI32}:{S_HI32+1}]")
    L.append(f"v_cndmask_b32 v{X+5}, v{X+5}, v{V_NINF}, s[{S_HI32}:{S_HI32+1}]")
    L.append(f"v_max3_f32 v{MX}, v{X}, v{X+1}, v{X+2}")
    L.append(f"v_max3_f32 v{TM}, v{X+3}, v{X+4}, v{X+5}")
    L.append(f"v_max_f32 v{MX}, v{MX}, v{TM}")
    L.append(f"v_max_f32_dpp v{MX}, v{MX}, v{MX} row_ror:8 row_mask:0xf bank_mask:0xf")
    L += [f"v_mov_b32 v{TM}, v{MX}", f"v_permlane16_swap_b32 v{MX}, v{TM}", f"v_max_f32 v{MX}, v{MX}, v{TM}"]
    L += [f"v_mov_b32 v{TM}, v{MX}", f"v_permlane32_swap_b32 v{MX}, v{TM}", f"v_max_f32 v{MX}, v{MX}, v{TM}"]
    L.append(f"v_mul_f32 v{MX}, s{S_SCALE}, v{MX}")
    for j in range(6): L.append(f"v_fma_f32 v{X+j}, v{X+j}, s{S_SCALE}, -v{MX}")
    for j in range(6): L.append(f"v_exp_f32 v{X+j}, v{X+j}")
    L.append(f"v_add_f32 v{RS_}, v{X}, v{X+1}")
    L.append(f"v_add_f32 v{TM}, v{X+2}, v{X+3}")
    L.append(f"v_add_f32 v{RS_+1}, v{X+4}, v{X+5}")
    L.append(f"v_add_f32 v{RS_}, v{RS_}, v{TM}")
    L.append(f"v_add_f32 v{RS_}, v{RS_}, v{RS_+1}")
    L.append(f"v_add_f32_dpp v{RS_}, v{RS_}, v{RS_} row_ror:8 row_mask:0xf bank_mask:0xf")
    L += [f"v_mov_b32 v{TM}, v{RS_}", f"v_permlane16_swap_b32 v{RS_}, v{TM}", f"v_add_f32 v{RS_}, v{RS_}, v{TM}"]
    L += [f"v_mov_b32 v{TM}, v{RS_}", f"v_permlane32_swap_b32 v{RS_}, v{TM}", f"v_add_f32 v{RS_}, v{RS_}, v{TM}"]
    L.append(f"v_rcp_f32 v{RS_}, v{RS_}")
    for j in range(6): L.append(f"v_mul_f32 v{X+j}, v{X+j}, v{RS_}")
    L.append(f"v_cvt_pk_bf16_f32 v{PT}, v{X}, v{X+1}")
    L.append(f"v_cvt_pk_bf16_f32 v{PT+1}, v{X+2}, v{X+3}")
    L.append(f"v_cvt_pk_bf16_f32 v{PM}, v{X+4}, v{X+5}")
    L.append(f"v_mov_b32_dpp v{PT+2}, v{PT} row_ror:8 row_mask:0xf bank_mask:0xf")
    L.append(f"v_mov_b32_dpp v{PT+3}, v{PT+1} row_ror:8 row_mask:0xf bank_mask:0xf")
    L.append(f"v_mov_b32_dpp v{PM+1}, v{PM} row_ror:8 row_mask:0xf bank_mask:0xf")
    inter = list(inter)
    step = max(1, len(L) // max(1, len(inter)))
    for i, x in enumerate(L):
        if inter and i % step == 0: a(inter.pop(0))
        a(x)
    for x in inter: a(x)
    return PT, PM

def gi(a, v):
    a(f"""v_lshlrev_b32 v{v}, 7, v{V_G}
v_and_b32 v{V_T}, 7, v{V_LANE}
v_lshlrev_b32 v{V_T}, 4, v{V_T}
v_add_u32 v{v}, v{v}, v{V_T}""")

def rs_lane(a, v):
    a(f"""v_lshrrev_b32 v{v}, 1, v{V_G}
v_lshlrev_b32 v{v}, 14, v{v}
v_and_b32 v{V_T}, 1, v{V_G}
v_lshlrev_b32 v{V_T}, 12, v{V_T}
v_add_u32 v{v}, v{v}, v{V_T}
v_and_b32 v{V_T}, 7, v{V_LANE}
v_lshlrev_b32 v{V_T}, 4, v{V_T}
v_add_u32 v{v}, v{v}, v{V_T}
s_lshl_b32 s{S_T}, s{S_H}, 7
v_add_u32 v{v}, s{S_T}, v{v}""")

def main_wave(a, w, flags=False):
    pfx = f"RM{w}"
    nt = NT[w]
    wreg = WReg(0, 256, 0)
    wq = lambda p: wreg.quad(p); wk = lambda p: wreg.quad(20+p)
    woq = lambda t, p: wreg.quad(40 + t*6 + p)
    a(f"s_lshl_b32 s{S_LB}, s{S_WAVE}, 15")
    w_addr_setup(a, V_LANE, V_POLL, V_POLL+1, H*E*2, True, S_LB, V_T)
    a(f"""s_mul_i32 s{S_COL}, s{S_H}, 384
s_mul_i32 s{S_T}, s{S_C}, 96
s_add_u32 s{S_COL}, s{S_COL}, s{S_T}
s_add_u32 s{S_COL}, s{S_COL}, {w*32}""")
    frags = [(S_WQ, (S_COL, p*32*H*E*2)) for p in range(20)] + [(S_WK, (S_COL, p*32*H*E*2)) for p in range(20)]
    load_w(a, frags, wreg, V_POLL, V_POLL+1, S_T, S_LB, True)
    a(f"""s_mul_i32 s{S_COL}, s{S_H}, {192*1280}
s_mul_i32 s{S_T}, s{S_C}, 320
s_add_u32 s{S_COL}, s{S_COL}, s{S_T}
s_add_u32 s{S_COL}, s{S_COL}, {T0[w]*32}""")
    ng = nt//2
    units = [(S_WO, S_COL, g*64 + p*32*1280) for p in range(6) for g in range(ng)]
    load_w2(a, units, lambda u, T, k: wreg.pair(40 + ((u % ng)*2 + T)*6 + u // ng, k), 2, D*2, True, V_LANE, V_POLL, V_POLL+1, V_T, S_T, S_LB)
    if OPT('STAMP', 0): a("s_memtime s[78:79]\ns_waitcnt lgkmcnt(0)\ns_sub_u32 s95, s78, s100")
    common_setup(a, w)
    gi(a, V_AST)
    a(f"""v_add_u32 v{V_KMS}, {w*1024}, v{V_AST}
s_mul_i32 s{S_T}, s{S_C}, 3
s_add_u32 s{S_T}, s{S_T}, {w}
s_lshl_b32 s{S_T}, s{S_T}, 9
s_mul_i32 s{S_T2}, s{S_H}, 9216
s_add_u32 s{S_T}, s{S_T}, s{S_T2}
v_add_u32 v{V_AST}, s{S_T}, v{V_AST}""")
    nearmap_v(a, V_AST, V_T)
    a(f"""s_add_u32 s{S_T}, s{S_T2}, {w*2048}
v_add_u32 v{V_APO}, s{S_T}, v{V_L16}
v_add_u32 v{V_APO+1}, 1024, v{V_APO}
v_add_u32 v{V_APL}, {L_QKV + w*2048}, v{V_L16}""")
    nearmap_v(a, V_APO, V_T); nearmap_v(a, V_APO+1, V_T)
    gi(a, V_RQ)
    a(f"""v_lshrrev_b32 v{V_RV}, 1, v{V_RQ}
v_add_u32 v{V_RQ}, {L_QKV}, v{V_RQ}
v_add_u32 v{V_RQ+1}, 2048, v{V_RQ}
v_add_u32 v{V_RQ+2}, 4096, v{V_RQ}
v_add_u32 v{V_RK}, 8, v{V_RQ}
v_add_u32 v{V_RK+1}, 2048, v{V_RK}
v_add_u32 v{V_RK+2}, 4096, v{V_RK}
v_add_u32 v{V_RV}, {L_QKV+6144}, v{V_RV}
v_add_u32 v{V_RV+1}, 2048, v{V_RV}""")
    rs_lane(a, V_RSO)
    a(f"""s_mul_i32 s{S_RSB}, s{S_C}, {5*32768}
s_add_u32 s{S_RSB}, s{S_RSB}, {nearmap(RS_LOG) + P0[w]*32768}
s_mul_i32 s{S_T}, s{S_H}, 12288
s_add_u32 s{S_KVG}, s{S_T}, {KX + w*4096}
s_mul_i32 s{S_T}, s{S_H}, 40
s_mul_i32 s{S_T2}, s{S_C}, 10
s_add_u32 s{S_T}, s{S_T}, s{S_T2}
s_add_u32 s{S_T}, s{S_T}, {T0[w]}
s_lshl_b32 s{S_UXG}, s{S_T}, 10
s_add_u32 s{S_UXG}, s{S_UXG}, {UX}
s_lshl_b32 s{S_UYG}, s{S_T}, 8
s_add_u32 s{S_UYG}, s{S_UYG}, {UY}
s_mul_i32 s{S_KMG}, s{S_H}, 3072
s_add_u32 s{S_KMG}, s{S_KMG}, {KM}
s_mov_b32 s{S_KVL}, {L_KV}
s_mov_b32 s{S_KVR}, {L_KV}
s_lshl_b32 s{S_FLG}, s{S_J}, 2
s_add_u32 s{S_FLG}, s{S_FLG}, {F_REC}""")
    if flags:
        a(f"""s_mul_i32 s{S_T}, s{S_H}, 6
s_lshr_b32 s{S_T2}, s{S_T}, 3
s_add_u32 s{S_T}, s{S_T}, 5
s_lshr_b32 s{S_T}, s{S_T}, 3
v_mov_b32 v{V_KVA}, s{S_T}
v_mov_b32 v{V_T}, s{S_T2}
v_and_b32 v{V_T2}, 1, v{V_LANE}
v_cmp_eq_u32 vcc, 0, v{V_T2}
v_cndmask_b32 v{V_KVA}, v{V_KVA}, v{V_T}, vcc
v_cmp_lt_u32 vcc, 1, v{V_LANE}
v_mov_b32 v{V_T}, {R_V0}
v_cndmask_b32 v{V_T}, 0, v{V_T}, vcc
v_add_u32 v{V_KVA}, v{V_KVA}, v{V_T}
v_lshlrev_b32 v{V_KVA}, {PSH}, v{V_KVA}
v_add_u32 v{V_KVA}, {F_PROG}, v{V_KVA}
s_mov_b32 s{S_KVT}, 0
s_mov_b32 s22, 0""")
    if flags and w == 0: trace(a, 1, S_J)
    read_polarity(a, pfx)
    if flags and w == 0: trace(a, 2, S_J)
    a("s_barrier")
    kv_dma(a, flags, pfx); kv_dma(a, flags, pfx)
    if flags and w == 0: trace(a, 3, S_J)
    mem0_stage(a, w)
    a("s_waitcnt vmcnt(0) lgkmcnt(0)")
    a("s_barrier")
    idle_phase(a, w, woq)
    if flags and w == 0:
        trace(a, 4, S_J)
        if int(os.environ.get('TRACE', 0)):
            a("s_memtime s[86:87]\ns_waitcnt lgkmcnt(0)")
            trace(a, 6, S_J, val=86)
    stamp(a, 0)
    if OPT('STAMP', 0): a(f"s_sub_u32 s101, s{S_TS}, s100")
    a(f"s_branch {pfx}_B0")
    a.label(f"{pfx}_LOOP")
    stamp(a, 0)
    if OPT('AG4', 1): ag_poll(a, pfx, w)
    a.label(f"{pfx}_B0")
    a("s_waitcnt lgkmcnt(0)")
    a("s_barrier")
    mark(a, S_REF0)
    stamp(a, 1)
    proj_stage(a, 2, lambda t, p: wq(p) if t == 0 else wk(p))
    for k in range(4):
        a(f"v_cvt_pk_bf16_f32 v{V_PK+k}, v{V_ACC+2*k}, v{V_ACC+2*k+1}")
    a(f"s_mov_b64 exec, s[{S_M8}:{S_M8+1}]")
    store_mode(a, [f"buffer_store_dwordx4 {vr(V_PK)}, v{V_AST}, s[{S_WS}:{S_WS+3}], s{S_CUR} offen SCX"])
    a("s_mov_b64 exec, -1")
    stamp(a, 2)
    wait_mode(a, S_REF0, OPT('T_AF', 0), OPT('T_A', 1150))
    loads = [f"buffer_load_dwordx4 {vr(V_POLL+4*k)}, v{V_APO+k}, s[{S_WS}:{S_WS+3}], s{S_CUR} offen sc1" for k in range(2)]
    poll_loop(a, f"{pfx}_AP", loads, 8, 93)
    a(f"ds_write_b128 v{V_APL}, {vr(V_POLL)}")
    a(f"ds_write_b128 v{V_APL}, {vr(V_POLL+4)} offset:1024")
    a("s_waitcnt lgkmcnt(0)")
    stamp(a, 3)
    a("s_barrier")
    stamp(a, 4)
    for p in range(6):
        o = (p & 1)*128
        a(f"ds_read2_b64 {vr(V_QF+4*p)}, v{V_RQ+(p>>1)} offset0:{o} offset1:{o+64}")
        a(f"ds_read2_b64 {vr(V_KF+4*p)}, v{V_RK+(p>>1)} offset0:{o} offset1:{o+64}")
    for p in range(6):
        a(f"s_waitcnt lgkmcnt({2*(5-p)})")
        for u, A_ in enumerate((vr(V_KXF+4*p), vr(V_KXF+4*(6+p)), vr(V_KF+4*p))):
            d = V_S + (4 if u == 0 else 8 if u == 1 else 0)
            c = "0" if p == 0 else vr(d)
            a(f"v_mfma_f32_16x16x32_bf16 {vr(d)}, {A_}, {vr(V_QF+4*p)}, {c}")
    a("s_barrier")
    stamp(a, 5)
    for p in range(6):
        if p < 4: a(f"ds_read2_b64 {vr(V_VF+4*p)}, v{V_RV} offset0:{64*p} offset1:{64*p+32}")
        else: a(f"ds_read2_b64 {vr(V_VF+4*p)}, v{V_RV+1} offset0:{64*(p-4)} offset1:{64*(p-4)+32}")
    ym = []
    for p in range(6):
        for t in range(nt):
            c = "0" if p == 0 else vr(V_Y+4*t)
            pre = f"s_waitcnt lgkmcnt({5-p})\n" if t == 0 else ""
            ym.append(pre + f"v_mfma_f32_16x16x32_bf16 {vr(V_Y+4*t)}, {vr(V_VF+4*p)}, {woq(t,p)}, {c}")
    PT, PM = softmax(a, ym)
    for t in range(nt):
        a(f"v_mfma_f32_16x16x32_bf16 {vr(V_PU+4*t)}, {vr(V_UXF+4*t)}, {vr(PT)}, 0")
    for t in range(nt):
        a(f"v_cvt_pk_bf16_f32 v{V_YF+2*t}, v{V_Y+4*t}, v{V_Y+4*t+1}")
        a(f"v_cvt_pk_bf16_f32 v{V_YF+2*t+1}, v{V_Y+4*t+2}, v{V_Y+4*t+3}")
    for t in range(nt):
        a(f"v_mfma_f32_16x16x16_bf16 {vr(V_PU+4*t)}, {vr(V_YF+2*t,2)}, {vr(PM,2)}, {vr(V_PU+4*t)}")
    for t in range(nt):
        a(f"v_cvt_pk_bf16_f32 v{V_Y+2*t}, v{V_PU+4*t}, v{V_PU+4*t+1}")
        a(f"v_cvt_pk_bf16_f32 v{V_Y+2*t+1}, v{V_PU+4*t+2}, v{V_PU+4*t+3}")
    a(f"s_add_u32 s{S_T}, s{S_CUR}, s{S_RSB}")
    a(f"s_mov_b64 exec, s[{S_M8}:{S_M8+1}]")
    for P in range(nt//2):
        if P > 0: a(f"s_add_u32 s{S_T}, s{S_T}, 32768")
        a(f"buffer_store_dwordx4 {vr(V_Y+4*P)}, v{V_RSO}, s[{S_WS}:{S_WS+3}], s{S_T} offen sc1")
    stamp(a, 6)
    a(f"s_cmp_lg_u32 s{S_C}, 0")
    a(f"s_cbranch_scc1 {pfx}_NOKM")
    for k in range(2):
        a(f"buffer_store_dwordx4 {vr(V_KF+4*(2*w+k))}, v{V_KMS}, s[{S_WS}:{S_WS+3}], s{S_KMG} offen offset:{k*512} sc1")
    a.label(f"{pfx}_NOKM")
    a("s_mov_b64 exec, -1")
    a(f"s_add_u32 s{S_KMG}, s{S_KMG}, {32*3072}")
    a("s_mov_b32 exec_hi, 0")
    for t in range(nt if not OPT('NOUY', 0) else 0):
        a(f"buffer_store_dwordx2 {vr(V_YF+2*t,2)}, v{V_L4}, s[{S_WS}:{S_WS+3}], s{S_UYG} offen offset:{t*256} sc1")
    a("s_mov_b64 exec, -1")
    a(f"s_add_u32 s{S_UYG}, s{S_UYG}, {32*40*256}")
    if w == 2:
        a(f"s_cmp_eq_u32 s{S_STEP}, 0")
        a(f"s_cbranch_scc1 {pfx}_NOFLAG")
        a(f"v_mov_b32 v{V_T}, 1")
        a("s_mov_b64 exec, 1")
        a(f"buffer_store_dword v{V_T}, v{V_ZERO}, s[{S_WS}:{S_WS+3}], s{S_FLG} offen sc1")
        a(f"s_add_u32 s{S_FLG}, s{S_FLG}, 512")
        a(f"s_cmp_lg_u32 s{S_J}, 0")
        a(f"s_cbranch_scc1 {pfx}_NOPROG")
        a(f"v_mov_b32 v{V_T2}, s{S_STEP}")
        a(f"s_mov_b32 s{S_T}, {F_RPROG}")
        a(f"buffer_store_dword v{V_T2}, v{V_ZERO}, s[{S_WS}:{S_WS+3}], s{S_T} offen sc1")
        a.label(f"{pfx}_NOPROG")
        a("s_mov_b64 exec, -1")
        a.label(f"{pfx}_NOFLAG")
    a(f"s_add_u32 s{S_STEP}, s{S_STEP}, 1")
    a(f"s_cmp_ge_u32 s{S_STEP}, 64")
    a(f"s_cbranch_scc1 {pfx}_DONE")
    if not OPT('NODMA', 0): kv_dma(a, flags, pfx)
    stamp(a, 7)
    idle_phase(a, w, woq)
    rotate_slots(a)
    stamp_acc(a)
    a("s_barrier")
    mark(a, S_REF2)
    a(f"s_branch {pfx}_LOOP")
    a.label(f"{pfx}_DONE")
    a("s_waitcnt vmcnt(0)")
    a("s_barrier")
    if flags and w == 0:
        trace(a, 5, S_J)
        if int(os.environ.get('TRACE', 0)):
            a("s_memtime s[86:87]\ns_waitcnt lgkmcnt(0)")
            trace(a, 7, S_J, val=86)
    if w == 2:
        a(f"v_mov_b32 v{V_T}, 1")
        a("s_mov_b64 exec, 1")
        a(f"buffer_store_dword v{V_T}, v{V_ZERO}, s[{S_WS}:{S_WS+3}], s{S_FLG} offen sc1")
        a(f"s_cmp_lg_u32 s{S_J}, 0")
        a(f"s_cbranch_scc1 {pfx}_NOPROG2")
        a(f"v_mov_b32 v{V_T2}, 64")
        a(f"s_mov_b32 s{S_T}, {F_RPROG}")
        a(f"buffer_store_dword v{V_T2}, v{V_ZERO}, s[{S_WS}:{S_WS+3}], s{S_T} offen sc1")
        a.label(f"{pfx}_NOPROG2")
        a("s_waitcnt vmcnt(0)")
        a("s_mov_b64 exec, -1")
    stamp_out(a, w)
    a("s_endpgm")

def stamp_acc(a):
    if not OPT('STAMP', 0): return
    a(f"s_memtime s[{S_TS+16}:{S_TS+17}]")
    a("s_waitcnt lgkmcnt(0)")
    for k in range(8):
        a(f"s_sub_u32 s{S_T}, s{S_TS+2*k+2}, s{S_TS+2*k}")
        a(f"s_add_u32 s{80+k}, s{80+k}, s{S_T}")

def stamp_out(a, w):
    if not OPT('STAMP', 0): return
    a.uid += 1
    L = f"STO_{w}_{a.uid}"
    a(f"""s_cmp_lg_u32 s{S_J}, {OPT('STAMPROLE', 0)}
s_cbranch_scc1 {L}
s_load_dwordx2 s[96:97], s[0:1], {KA['dbg']}
s_waitcnt lgkmcnt(0)
s_mov_b64 exec, 1""")
    for k in range(8):
        a(f"v_mov_b32 v10, s{80+k}\nv_mov_b32 v11, {64 + w*48 + k*4}\nglobal_store_dword v11, v10, s[96:97]\ns_waitcnt vmcnt(0)")
    if w == 0:
        a(f"v_mov_b32 v10, s95\nv_mov_b32 v11, 40\nglobal_store_dword v11, v10, s[96:97]\ns_waitcnt vmcnt(0)")
        a(f"v_mov_b32 v10, s101\nv_mov_b32 v11, 44\nglobal_store_dword v11, v10, s[96:97]\ns_waitcnt vmcnt(0)")
    for k in range(3):
        a(f"v_mov_b32 v10, s{92+k}\nv_mov_b32 v11, {64 + w*48 + 32 + k*4}\nglobal_store_dword v11, v10, s[96:97]\ns_waitcnt vmcnt(0)")
    a.label(L)

def common_setup(a, w):
    a(f"""v_lshlrev_b32 v{V_L16}, 4, v{V_LANE}
v_lshlrev_b32 v{V_L4}, 3, v{V_LANE}
v_mov_b32 v{V_ZERO}, 0
s_mov_b32 s{S_M8}, 0x00ff00ff
s_mov_b32 s{S_M8+1}, 0x00ff00ff
s_mov_b32 s{S_H8}, 0xff00ff00
s_mov_b32 s{S_H8+1}, 0xff00ff00
s_mov_b32 s{S_HI32}, 0
s_mov_b32 s{S_HI32+1}, -1
v_mov_b32 v{V_NINF}, 0xff800000
s_mov_b32 s{S_SCALE}, 0x{f2u(192**-0.5*1.4426950408889634):08x}
s_mov_b32 s{S_MAXR}, {OPT('MAXRETRY', 100000)}
s_mov_b32 s{S_STEP}, 0""")
    for k in range(8): a(f"s_mov_b32 s{80+k}, 0")
    for k in range(92, 95): a(f"s_mov_b32 s{k}, 0")
    if OPT('AG4', 1):
        for k in range(3):
            a(f"v_add_u32 v{V_AGO+k}, {AG_LOG + w*2560 + k*1024}, v{V_L16}")
            nearmap_v(a, V_AGO+k, V_T2)
        oob_mask(a, V_AGO+2, 32)
    else:
        for k in range(3):
            a(f"v_add_u32 v{V_AGO+k}, {nearmap(AG_LOG + k*4096)}, v{V_L16}")
    a(f"v_add_u32 v{V_AGL}, {L_MEM + w*2560}, v{V_L16}")
    gi(a, V_MRD)

def mem0_stage(a, w):
    for k in range(3):
        a(f"""v_add_u32 v{V_T}, {160*w + 64*k}, v{V_LANE}
v_and_b32 v{V_T2}, 7, v{V_T}
v_mul_u32_u24 v{V_T2}, 1280, v{V_T2}
v_lshrrev_b32 v{V_POLL+12}, 5, v{V_T}
v_lshlrev_b32 v{V_POLL+12}, 6, v{V_POLL+12}
v_add_u32 v{V_T2}, v{V_T2}, v{V_POLL+12}
v_bfe_u32 v{V_T}, v{V_T}, 3, 2
v_lshlrev_b32 v{V_T}, 3, v{V_T}
v_add_u32 v{V_T}, v{V_T}, v{V_T2}""")
        a(f"buffer_load_dwordx2 {vr(V_POLL+4*k,2)}, v{V_T}, s[{S_M0}:{S_M0+3}], 0 offen")
        a(f"buffer_load_dwordx2 {vr(V_POLL+4*k+2,2)}, v{V_T}, s[{S_M0}:{S_M0+3}], 0 offen offset:32")
    a("s_waitcnt vmcnt(0)")
    a(f"ds_write_b128 v{V_AGL}, {vr(V_POLL)}")
    a(f"ds_write_b128 v{V_AGL}, {vr(V_POLL+4)} offset:1024")
    a("s_mov_b32 exec_hi, 0")
    a(f"ds_write_b128 v{V_AGL}, {vr(V_POLL+8)} offset:2048")
    a("s_mov_b64 exec, -1")

def service_wave(a):
    w = 3; pfx = "RS3"
    wreg = WReg(0, 256, 0)
    a(f"s_lshl_b32 s{S_LB}, s{S_WAVE}, 15")
    w_addr_setup(a, V_LANE, V_POLL, V_POLL+1, H*E*2, True, S_LB, V_T)
    a(f"""s_mul_i32 s{S_COL}, s{S_H}, 384
s_mul_i32 s{S_T}, s{S_C}, 96
s_add_u32 s{S_COL}, s{S_COL}, s{S_T}""")
    frags = [(S_WV, (S_COL, t*32 + p*32*H*E*2)) for t in range(3) for p in range(20)]
    load_w(a, frags, wreg, V_POLL, V_POLL+1, S_T, S_LB, True)
    common_setup(a, w)
    PQ = V_KXF; PV_ = V_KXF+2; R = V_KXF+6; SEL = V_KXF+8; ONES = V_KXF+12
    gi(a, V_AST)
    a(f"""v_lshrrev_b32 v{V_AST}, 1, v{V_AST}
s_mul_i32 s{S_T2}, s{S_H}, 9216
s_mul_i32 s{S_T}, s{S_C}, 768
s_add_u32 s{S_T}, s{S_T}, s{S_T2}
s_add_u32 s{S_T}, s{S_T}, 6144
v_add_u32 v{V_AST}, s{S_T}, v{V_AST}
v_add_u32 v{V_AST+1}, 256, v{V_AST}
v_add_u32 v{V_AST+2}, 512, v{V_AST}
v_add_u32 v{PV_}, s{S_T}, v{V_L16}
s_mul_i32 s{S_T}, s{S_C}, 1536
s_add_u32 s{S_T}, s{S_T}, s{S_T2}
v_add_u32 v{PQ}, s{S_T}, v{V_L16}
v_add_u32 v{PQ+1}, 1024, v{PQ}""")
    for r in (V_AST, V_AST+1, V_AST+2, PV_, PQ, PQ+1): nearmap_v(a, r, V_T)
    oob_mask(a, PV_, 48); oob_mask(a, PQ+1, 32)
    for k in range(3):
        a(f"v_add_u32 v{V_APO+k}, s{S_T2}, v{V_L16}")
        a(f"v_add_u32 v{V_APO+k}, {6144 + k*1024}, v{V_APO+k}")
        nearmap_v(a, V_APO+k, V_T)
    a(f"v_add_u32 v{V_APL}, {L_QKV + 6144}, v{V_L16}")
    rs_lane(a, R)
    a(f"""s_mul_i32 s{S_RSB}, s{S_C}, {5*32768}
s_add_u32 s{S_RSB}, s{S_RSB}, {nearmap(RS_LOG)}
s_lshr_b32 s{S_T}, s{S_J}, 5
s_and_b32 s{S_T2}, s{S_J}, 31
s_mul_i32 s{S_T}, s{S_T}, 20
s_add_u32 s{S_T}, s{S_T}, s{S_T2}
s_cmp_lt_u32 s{S_T2}, 20
s_cselect_b32 s{S_RED}, 1, 0
s_sub_u32 s{S_T3}, s{S_T}, 20
s_cmp_eq_u32 s{S_RED}, 1
s_cselect_b32 s{S_T}, s{S_T}, s{S_T3}
s_lshr_b32 s{S_T2}, s{S_T}, 1
s_lshl_b32 s{S_T2}, s{S_T2}, 14
s_and_b32 s{S_T3}, s{S_T}, 1
s_lshl_b32 s{S_T3}, s{S_T3}, 12
s_add_u32 s{S_RSP}, s{S_T2}, s{S_T3}
s_add_u32 s{S_RSP}, s{S_RSP}, {nearmap(RS_LOG)}
s_lshl_b32 s{S_T}, s{S_T}, 7
v_add_u32 v{V_AGS}, s{S_T}, v{V_L16}
v_add_u32 v{V_AGS}, {AG_LOG}, v{V_AGS}""")
    nearmap_v(a, V_AGS, V_T)
    a(f"s_lshl_b32 s{S_T}, s{S_RED}, 3")
    a(f"v_mov_b32 v{V_T}, 0x80000000")
    a(f"v_cmp_gt_u32 vcc, s{S_T}, v{V_LANE}")
    a(f"v_cndmask_b32 v{V_AGS}, v{V_T}, v{V_AGS}, vcc")
    for k in range(4):
        a(f"""v_mov_b32 v{SEL+k}, 0
v_mov_b32 v{V_T}, 0x3f80
v_cmp_eq_u32 vcc, {2*k}, v{V_N}
v_cndmask_b32 v{SEL+k}, v{SEL+k}, v{V_T}, vcc
v_mov_b32 v{V_T}, 0x3f800000
v_cmp_eq_u32 vcc, {2*k+1}, v{V_N}
v_cndmask_b32 v{SEL+k}, v{SEL+k}, v{V_T}, vcc""")
    for k in range(4): a(f"v_mov_b32 v{ONES+k}, -1")
    a(f"v_mov_b32 v{ONES+4}, 1")
    read_polarity(a, pfx)
    a("s_barrier")
    mem0_stage(a, w)
    a("s_waitcnt vmcnt(0) lgkmcnt(0)")
    a("s_barrier")
    stamp(a, 0)
    a(f"s_branch {pfx}_B0")
    a.label(f"{pfx}_LOOP")
    stamp(a, 0)
    ag_poll(a, pfx, 3)
    a.label(f"{pfx}_B0")
    a("s_waitcnt lgkmcnt(0)")
    a("s_barrier")
    mark(a, S_REF0)
    stamp(a, 1)
    proj_stage(a, 3, lambda t, p: wreg.quad(t*20+p))
    for t in range(3):
        for k in range(2):
            a(f"v_cvt_pk_bf16_f32 v{V_PK+2*t+k}, v{V_ACC+4*t+2*k}, v{V_ACC+4*t+2*k+1}")
    a(f"s_mov_b64 exec, s[{S_M8}:{S_M8+1}]")
    store_mode(a, [f"buffer_store_dwordx2 {vr(V_PK+2*t,2)}, v{V_AST+t}, s[{S_WS}:{S_WS+3}], s{S_CUR} offen SCX" for t in range(3)])
    a("s_mov_b64 exec, -1")
    stamp(a, 2)
    wait_mode(a, S_REF0, OPT('T_VF', 0), OPT('T_V', 1500))
    loads = [f"buffer_load_dwordx4 {vr(V_POLL+4*k)}, v{V_APO+k}, s[{S_WS}:{S_WS+3}], s{S_CUR} offen sc1" for k in range(3)]
    for x in loads: a(x)
    if OPT('STAMP', 0): a(f"s_memtime s[{S_TS+6}:{S_TS+7}]")
    a("s_barrier")
    if OPT('STAMP', 0): a(f"s_memtime s[{S_TS+8}:{S_TS+9}]")
    poll_loop(a, f"{pfx}_VP", loads, 12, 93, pre_issued=True)
    for k in range(3):
        a(f"ds_write_b128 v{V_APL}, {vr(V_POLL+4*k)} offset:{k*1024}")
    a("s_waitcnt lgkmcnt(0)")
    a("s_barrier")
    mark(a, 96)
    stamp(a, 5)
    store_mode(a, [f"buffer_store_dwordx4 {vr(ONES)}, v{r}, s[{S_WS}:{S_WS+3}], s{S_NN} offen SCX" for r in (PQ, PQ+1, PV_)])
    a(f"s_add_u32 s{S_T}, s{S_NN}, s{S_RSB}")
    a(f"s_mov_b64 exec, s[{S_M8}:{S_M8+1}]")
    for P in range(5):
        if P > 0: a(f"s_add_u32 s{S_T}, s{S_T}, 32768")
        a(f"buffer_store_dwordx4 {vr(ONES)}, v{R}, s[{S_WS}:{S_WS+3}], s{S_T} offen sc1")
    a("s_mov_b64 exec, -1")
    a(f"buffer_store_dwordx4 {vr(ONES)}, v{V_AGS}, s[{S_WS}:{S_WS+3}], s{S_NN} offen sc1")
    stamp(a, 6)
    wait_until(a, 96, OPT('T_RS', 1450))
    a(f"s_add_u32 s{S_T2}, s{S_CUR}, s{S_RSP}")
    loads = [f"buffer_load_dwordx4 {vr(V_POLL+4*q)}, v{V_L16}, s[{S_WS}:{S_WS+3}], s{S_T2} offen offset:{q*1024} sc1" for q in range(4)]
    poll_loop(a, f"{pfx}_RP", loads, 16, 94)
    stamp(a, 7)
    for q in range(4):
        c = "0" if q == 0 else vr(V_ACC)
        a(f"v_mfma_f32_16x16x32_bf16 {vr(V_ACC)}, {vr(SEL)}, {vr(V_POLL+4*q)}, {c}")
    for r in range(4):
        a(f"v_add_f32_dpp v{V_ACC+4+r}, v{V_ACC+r}, v{V_ACC+r} row_ror:8 row_mask:0xf bank_mask:0xf")
    a(f"v_cvt_pk_bf16_f32 v{V_PK}, v{V_ACC+4}, v{V_ACC+5}")
    a(f"v_cvt_pk_bf16_f32 v{V_PK+1}, v{V_ACC+6}, v{V_ACC+7}")
    a(f"v_mov_b32 v{V_PK+2}, v{V_PK}\nv_mov_b32 v{V_PK+3}, v{V_PK+1}")
    a(f"v_mov_b32 v{V_PK+4}, v{V_PK}\nv_mov_b32 v{V_PK+5}, v{V_PK+1}")
    a(f"v_permlane16_swap_b32 v{V_PK+4}, v{V_PK+2}")
    a(f"v_permlane16_swap_b32 v{V_PK+5}, v{V_PK+3}")
    a(f"buffer_store_dwordx4 {vr(V_PK)}, v{V_AGS}, s[{S_WS}:{S_WS+3}], s{S_CUR} offen sc1")
    a(f"s_add_u32 s{S_STEP}, s{S_STEP}, 1")
    a(f"s_cmp_ge_u32 s{S_STEP}, 64")
    a(f"s_cbranch_scc1 {pfx}_DONE")
    rotate_slots(a)
    stamp_acc(a)
    a("s_barrier")
    mark(a, S_REF2)
    a(f"s_branch {pfx}_LOOP")
    a.label(f"{pfx}_DONE")
    a("s_waitcnt vmcnt(0)")
    a("s_barrier")
    stamp_out(a, 3)
    a("s_endpgm")

def rec_entry(a):
    a(f"""s_load_dwordx4 s[64:67], s[0:1], {KA['wq']}
s_load_dwordx4 s[68:71], s[0:1], {KA['wv']}
s_load_dwordx2 s[72:73], s[0:1], {KA['mem0']}
s_waitcnt lgkmcnt(0)""")
    srd(a, S_WQ, 64, D*H*E*2); srd(a, S_WK, 66, D*H*E*2); srd(a, S_WV, 68, D*H*E*2); srd(a, S_WO, 70, D*H*E*2)
    srd(a, S_M0, 72, M*D*2)
    a(f"s_lshr_b32 s{S_H}, s{S_J}, 2\ns_and_b32 s{S_C}, s{S_J}, 3")

def probe(a, s_k, s_xcc, lbl):
    a(f"""s_mov_b64 exec, 1
v_mov_b32 v10, -1
s_lshl_b32 s{S_T}, s{s_k}, 21
s_add_u32 s{S_T}, s{S_T}, {RING + 77*16384 + 4096}
v_mov_b32 v11, s{S_T}
v_add_u32 v13, 8192, v11
s_mov_b32 s{S_T2}, 0
s_mov_b32 s84, 0
s_mov_b32 s85, 0""")
    a.label(f"{lbl}_R")
    a(f"""buffer_store_dword v10, v11, s[{S_WS}:{S_WS+3}], 0 offen sc1
buffer_store_dword v10, v13, s[{S_WS}:{S_WS+3}], 0 offen sc1
s_waitcnt vmcnt(0)
s_sleep 12""")
    for hsel in range(2):
        a(f"""s_memtime s[80:81]
s_waitcnt lgkmcnt(0)
buffer_load_dword v12, v{11 if hsel == 0 else 13}, s[{S_WS}:{S_WS+3}], 0 offen sc1
s_waitcnt vmcnt(0)
s_memtime s[82:83]
s_waitcnt lgkmcnt(0)
s_sub_u32 s{86+hsel}, s82, s80""")
    a(f"""s_cmp_eq_u32 s{S_T2}, 0
s_cbranch_scc1 {lbl}_S
s_add_u32 s84, s84, s86
s_add_u32 s85, s85, s87""")
    a.label(f"{lbl}_S")
    a(f"""s_add_u32 s{S_T2}, s{S_T2}, 1
s_cmp_lt_u32 s{S_T2}, 3
s_cbranch_scc1 {lbl}_R
s_cmp_lt_u32 s85, s84
s_cselect_b32 s{S_T3}, 1, 0
s_lshr_b32 s{S_T}, s{s_xcc}, 2
s_xor_b32 s{S_T3}, s{S_T3}, s{S_T}
s_and_b32 s{S_T3}, s{S_T3}, 1
s_or_b32 s{S_T3}, s{S_T3}, 2
v_mov_b32 v10, s{S_T3}
s_lshl_b32 s{S_T}, s{s_k}, 2
s_add_u32 s{S_T}, s{S_T}, {FLAGS}
v_mov_b32 v11, s{S_T}
buffer_store_dword v10, v11, s[{S_WS}:{S_WS+3}], 0 offen sc1
s_waitcnt vmcnt(0)
s_mov_b64 exec, -1""")

def rec_dispatch(a, flags=False):
    a(f"""s_cmp_eq_u32 s{S_WAVE}, 0
s_cbranch_scc1 RK_W0
s_cmp_eq_u32 s{S_WAVE}, 1
s_cbranch_scc1 RK_W1
s_cmp_eq_u32 s{S_WAVE}, 2
s_cbranch_scc1 RK_W2
s_branch RK_W3""")
    for w in range(3):
        a.label(f"RK_W{w}")
        main_wave(a, w, flags)
    a.label("RK_W3")
    service_wave(a)

def gen_rec_kernel():
    a = Asm(); name = "rec_kernel"
    kernel_header(a, name)
    if OPT('STAMP', 0): a("s_memtime s[100:101]")
    a(f"""s_cmp_ge_u32 s2, 256
s_cbranch_scc1 RK_END
s_load_dwordx2 s[74:75], s[0:1], {KA['ws']}
s_load_dwordx2 s[76:77], s[0:1], {KA['dbg']}
s_getreg_b32 s78, hwreg(HW_REG_XCC_ID)
s_and_b32 s78, s78, 15
s_waitcnt lgkmcnt(0)""")
    srd(a, S_WS, 74, WS_SIZE)
    lane_setup(a, V_LANE, V_G, V_N, S_WAVE)
    a(f"""s_cmp_lg_u32 s{S_WAVE}, 0
s_cbranch_scc1 RK_NORANK
v_mov_b32 v10, 1
s_lshl_b32 s79, s78, 2
v_mov_b32 v11, s79
s_mov_b64 exec, 1
global_atomic_add v12, v11, v10, s[76:77] sc0 sc1
s_waitcnt vmcnt(0)
v_mov_b32 v11, 0
ds_write_b32 v11, v12
s_waitcnt lgkmcnt(0)
s_mov_b64 exec, -1""")
    a.label("RK_NORANK")
    a(f"""s_barrier
v_mov_b32 v11, 0
ds_read_b32 v12, v11
s_waitcnt lgkmcnt(0)
v_readfirstlane_b32 s79, v12
s_barrier
s_cmp_lt_u32 s78, 4
s_cbranch_scc1 RK_REC
s_cmp_lg_u32 s78, 4
s_cbranch_scc1 RK_END
s_cmp_ge_u32 s79, 4
s_cbranch_scc1 RK_END
s_cmp_lg_u32 s{S_WAVE}, 0
s_cbranch_scc1 RK_END""")
    probe(a, 79, 78, "RK_PR")
    a("s_endpgm")
    a.label("RK_REC")
    a(f"""s_cmp_ge_u32 s79, 32
s_cbranch_scc1 RK_END
s_lshl_b32 s{S_J}, s78, 5
s_add_u32 s{S_J}, s{S_J}, s79""")
    rec_entry(a)
    rec_dispatch(a)
    a.label("RK_END")
    a("s_endpgm")
    return name, a.finalize(), kernel_desc(name, 512, 102, 256)

def read_mode(a, pfx):
    a(f"s_load_dwordx2 s[96:97], s[0:1], {KA['dbg']}")
    a("s_waitcnt lgkmcnt(0)")
    a(f"s_mov_b32 s{S_RETRY}, 0")
    a(f"v_and_b32 v{V_T2}, 7, v{V_LANE}")
    a(f"v_lshlrev_b32 v{V_T2}, 2, v{V_T2}")
    a.label(f"{pfx}_MD")
    a(f"""global_load_dword v{V_T}, v{V_T2}, s[96:97] sc1
s_waitcnt vmcnt(0)
v_cmp_eq_u32 vcc, 32, v{V_T}
s_cmp_eq_u64 vcc, exec
s_cselect_b32 s{S_MODE}, 1, 0
v_add_u32_dpp v{V_T}, v{V_T}, v{V_T} row_ror:4 row_mask:0xf bank_mask:0xf
v_add_u32_dpp v{V_T}, v{V_T}, v{V_T} row_ror:2 row_mask:0xf bank_mask:0xf
v_add_u32_dpp v{V_T}, v{V_T}, v{V_T} row_ror:1 row_mask:0xf bank_mask:0xf
v_readfirstlane_b32 s{S_T3}, v{V_T}
s_cmp_ge_u32 s{S_T3}, 256
s_cbranch_scc1 {pfx}_MDOK
s_sleep 8
s_add_u32 s{S_RETRY}, s{S_RETRY}, 1
s_cmp_lt_u32 s{S_RETRY}, 200000
s_cbranch_scc1 {pfx}_MD
s_mov_b32 s{S_MODE}, 0""")
    a.label(f"{pfx}_MDOK")
    if OPT('FORCESLOW', 0): a(f"s_mov_b32 s{S_MODE}, 0")

def read_polarity(a, pfx):
    read_mode(a, pfx)
    a(f"v_mov_b32 v{V_T2}, {FLAGS}")
    a(f"s_mov_b32 s{S_RETRY}, 0")
    a.label(f"{pfx}_POL")
    a(f"""buffer_load_dwordx4 {vr(V_POLL+8)}, v{V_T2}, s[{S_WS}:{S_WS+3}], 0 offen sc1
s_waitcnt vmcnt(0)
v_min3_u32 v{V_T}, v{V_POLL+8}, v{V_POLL+9}, v{V_POLL+10}
v_min_u32 v{V_T}, v{V_T}, v{V_POLL+11}
v_readfirstlane_b32 s{S_T3}, v{V_T}
s_cmp_lg_u32 s{S_T3}, 0
s_cbranch_scc1 {pfx}_POLOK
s_sleep 8
s_add_u32 s{S_RETRY}, s{S_RETRY}, 1
s_cmp_lt_u32 s{S_RETRY}, 200000
s_cbranch_scc1 {pfx}_POL""")
    a.label(f"{pfx}_POLOK")
    for k, s in enumerate((S_CUR, S_N, S_NN, S_P)):
        a(f"v_readfirstlane_b32 s{S_T}, v{V_POLL+8+k}")
        if OPT('FLIPPOL', 0): a(f"s_xor_b32 s{S_T}, s{S_T}, 1")
        a(f"""s_and_b32 s{S_T}, s{S_T}, 1
s_lshl_b32 s{S_T}, s{S_T}, 13
s_add_u32 s{s}, s{S_T}, {RING + k*RING_SLOT}""")
```

```python
from gen_common import *
import struct, os
OPT=lambda k,d: type(d)(os.environ.get(k,d))
def f2u(f): return struct.unpack('<I', struct.pack('<f', f))[0]

US_WS=4; US_WO=8; US_WAVE=20; US_LB=21; US_COL=24; US_H=25; US_CNT=26; US_XG=27; US_WSL=28; US_RSL=29; US_OUT=30; US_T=31; US_T2=32
UV_LANE=1; UV_G=2; UV_N=3; UV_GOFF=4; UV_TR=5; UV_T=6; UV_L16=7; UV_RA=8
UV_A=16
UV_ACC=112
UV_PK=128

US_PROG=33; US_DONE=34; US_CACHE=35; US_THR=36; US_W1=37; US_W2=42; US_WC=43
UV_PV=9; UV_PZ=10; UV_WA=11; UV_WT=12
def emit_upanel(a, pfx, flags=False):
    NSL = 4; XT = 12288
    wreg = WReg(0, 240, 0)
    a(f"s_lshl_b32 s{US_LB}, s{US_WAVE}, 15")
    a(f"""s_mul_i32 s{US_COL}, s{US_H}, {192*1280}
s_mul_i32 s{US_T}, s{US_WAVE}, 320
s_add_u32 s{US_COL}, s{US_COL}, s{US_T}""")
    units = [(US_WO, US_COL, g*64 + p*32*1280) for p in range(6) for g in range(5)]
    load_w2(a, units, lambda u, T, k: wreg.pair(((u % 5)*2 + T)*6 + u // 5, k), 2, D*2, True, UV_LANE, UV_GOFF, UV_TR, UV_T, US_T, US_LB)
    a("s_barrier")
    a(f"""v_lshlrev_b32 v{UV_L16}, 4, v{UV_LANE}
s_mul_i32 s{US_T}, s{US_H}, 12288
s_mul_i32 s{US_T2}, s{US_WAVE}, 3072
s_add_u32 s{US_XG}, s{US_T}, s{US_T2}
s_add_u32 s{US_XG}, s{US_XG}, {VX}
s_mov_b32 s{US_WSL}, s{US_T2}
s_mov_b32 s{US_RSL}, 0
s_mul_i32 s{US_T}, s{US_H}, 40
s_mul_i32 s{US_T2}, s{US_WAVE}, 10
s_add_u32 s{US_T}, s{US_T}, s{US_T2}
s_lshl_b32 s{US_OUT}, s{US_T}, 10
s_add_u32 s{US_OUT}, s{US_OUT}, {UX}""")
    if flags:
        a(f"""s_mul_i32 s{US_T}, s{US_H}, 6
s_lshr_b32 s{US_T2}, s{US_T}, 3
s_add_u32 s{US_T}, s{US_T}, 5
s_lshr_b32 s{US_T}, s{US_T}, 3
v_mov_b32 v{UV_WA}, s{US_T}
v_mov_b32 v{UV_T}, s{US_T2}
v_cmp_eq_u32 vcc, 0, v{UV_LANE}
v_cndmask_b32 v{UV_WA}, v{UV_WA}, v{UV_T}, vcc
v_lshlrev_b32 v{UV_WA}, {PSH}, v{UV_WA}
v_add_u32 v{UV_WA}, {F_PROG + (R_V0 << PSH)}, v{UV_WA}
v_mov_b32 v{UV_PZ}, 0
s_mov_b32 s{US_DONE}, 0
s_mov_b32 s{US_CACHE}, 0
s_mov_b32 s{US_THR}, 0""")
    def dma():
        if flags:
            a.uid += 1
            a(f"s_add_u32 s{US_THR}, s{US_THR}, 2")
            a(f"s_min_u32 s{US_W2}, s{US_THR}, 128")
            wait_words(a, f"{pfx}_WV{a.uid}", US_WS, UV_WA, UV_WT, US_W2, US_CACHE, 2, US_W1, US_WC)
        a(f"s_mov_b32 m0, s{US_WSL}")
        for j in range(3):
            a(f"buffer_load_dwordx4 v{UV_L16}, s[{US_WS}:{US_WS+3}], s{US_XG} offen offset:{j*1024} sc1 lds")
        a(f"s_add_u32 s{US_XG}, s{US_XG}, {32*12288}")
        a(f"s_add_u32 s{US_WSL}, s{US_WSL}, {XT}")
        a(f"s_sub_u32 s{US_T}, s{US_WSL}, {NSL*XT}")
        a(f"s_cmp_ge_u32 s{US_WSL}, {NSL*XT}")
        a(f"s_cselect_b32 s{US_WSL}, s{US_T}, s{US_WSL}")
    for _ in range(NSL-1): dma()
    a(f"s_mov_b32 s{US_CNT}, 0")
    lp = f"{pfx}_LOOP"
    a.label(lp)
    a(f"s_cmp_lt_u32 s{US_CNT}, 3")
    a(f"s_cbranch_scc1 {pfx}_W0")
    if flags:
        a(f"s_cmp_eq_u32 s{US_WAVE}, 0")
        a(f"s_cbranch_scc1 {pfx}_WZ")
        a("s_waitcnt vmcnt(36)")
        a(f"s_branch {pfx}_W1")
        a.label(f"{pfx}_WZ")
        a("s_waitcnt vmcnt(39)")
    else:
        a("s_waitcnt vmcnt(36)")
    a(f"s_branch {pfx}_W1")
    a.label(f"{pfx}_W0")
    a("s_waitcnt vmcnt(0)")
    a.label(f"{pfx}_W1")
    a("s_barrier")
    if flags:
        a(f"s_sub_u32 s{US_DONE}, s{US_CNT}, 3")
        a(f"s_cmp_lt_u32 s{US_CNT}, 3")
        a(f"s_cselect_b32 s{US_DONE}, 0, s{US_DONE}")
    dma()
    if flags:
        a(f"s_cmp_lg_u32 s{US_WAVE}, 0")
        a(f"s_cbranch_scc1 {pfx}_NPB")
        publish_word(a, US_WS, UV_PV, UV_PZ, US_PROG, US_DONE)
        a.label(f"{pfx}_NPB")
    a(f"v_add_u32 v{UV_RA}, s{US_RSL}, v{UV_L16}")
    for f in range(12):
        a(f"ds_read_b128 {vr(UV_A+4*f)}, v{UV_RA} offset:{f*1024}")
    a(f"s_add_u32 s{US_RSL}, s{US_RSL}, {XT}")
    a(f"s_cmp_ge_u32 s{US_RSL}, {NSL*XT}")
    a(f"s_cselect_b32 s{US_RSL}, 0, s{US_RSL}")
    a("s_waitcnt lgkmcnt(0)")
    def epi(t):
        ac = UV_ACC + 8*(t & 1); pk = UV_PK + 4*(t & 1)
        L = []
        for k in range(4):
            d = ac + 4*(k >> 1) + 2*(k & 1)
            L.append(f"v_cvt_pk_bf16_f32 v{pk+k}, v{d}, v{d+1}")
        L.append(f"s_add_u32 s{US_T}, s{US_OUT}, {t*1024}")
        L.append(f"buffer_store_dwordx4 {vr(pk)}, v{UV_L16}, s[{US_WS}:{US_WS+3}], s{US_T} offen sc1")
        return L
    for t in range(10):
        ac = UV_ACC + 8*(t & 1)
        E_ = epi(t-1) if t > 0 else []
        for p in range(6):
            for tt in range(2):
                d = ac + 4*tt
                c = "0" if p == 0 else vr(d)
                a(f"v_mfma_f32_16x16x32_bf16 {vr(d)}, {vr(UV_A+4*(tt*6+p))}, {wreg.quad(t*6+p)}, {c}")
            if p >= 3:
                for _ in range(2):
                    if E_: a(E_.pop(0))
        while E_: a(E_.pop(0))
    for x in epi(9): a(x)
    a(f"s_add_u32 s{US_OUT}, s{US_OUT}, {32*40*1024}")
    a(f"s_add_u32 s{US_CNT}, s{US_CNT}, 1")
    a(f"s_cmp_lt_u32 s{US_CNT}, 64")
    a(f"s_cbranch_scc1 {lp}")
    a("s_waitcnt vmcnt(0)")
    if flags:
        a("s_barrier")
        a(f"s_mov_b32 s{US_DONE}, 64")
        publish_word(a, US_WS, UV_PV, UV_PZ, US_PROG, US_DONE)
        a("s_waitcnt vmcnt(0)")

def gen_upanel_kernel():
    a = Asm(); name = "upanel_kernel"
    kernel_header(a, name)
    a(f"""s_cmp_ge_u32 s2, 32
s_cbranch_scc1 UK_END
s_load_dwordx2 s[38:39], s[0:1], {KA['ws']}
s_load_dwordx2 s[40:41], s[0:1], {KA['wo']}
s_waitcnt lgkmcnt(0)""")
    srd(a, US_WS, 38, WS_SIZE); srd(a, US_WO, 40, H*E*D*2)
    lane_setup(a, UV_LANE, UV_G, UV_N, US_WAVE)
    a(f"s_mov_b32 s{US_H}, s2")
    emit_upanel(a, "UP")
    a.label("UK_END")
    a("s_endpgm")
    return name, a.finalize(), kernel_desc(name, 512, 64, 256)

TS_WS=4; TS_OUT=8; TS_WAVE=20; TS_S=21; TS_I=22; TS_T=23; TS_T2=24; TS_T3=25; TS_SCALE=26
TS_MK=28
TS_HI=36
TV_LANE=1; TV_G=2; TV_N=3; TV_T=4; TV_L16=5; TV_KM=6; TV_NINF=7; TV_L8=8; TV_T2=9; TV_OUTO=10; TV_MA=11; TV_MB=12
TV_Q=16; TV_K=64; TV_M=112; TV_S=136
TV_X=156
TV_P=172

def tok_setup(a):
    a(f"""v_lshlrev_b32 v{TV_L16}, 4, v{TV_LANE}
v_lshlrev_b32 v{TV_L8}, 3, v{TV_LANE}
v_lshlrev_b32 v{TV_KM}, 7, v{TV_G}
v_and_b32 v{TV_T}, 7, v{TV_LANE}
v_lshlrev_b32 v{TV_T}, 4, v{TV_T}
v_add_u32 v{TV_KM}, v{TV_KM}, v{TV_T}
v_mov_b32 v{TV_NINF}, 0xff800000
s_mov_b32 s{TS_SCALE}, 0x{f2u(192**-0.5*1.4426950408889634):08x}
s_mov_b32 s{TS_HI}, 0
s_mov_b32 s{TS_HI+1}, -1
v_lshlrev_b32 v{TV_T}, 2, v{TV_G}""")
    for r in range(4):
        a(f"v_add_u32 v{TV_T2}, {r}, v{TV_T}")
        a(f"v_cmp_gt_u32 s[{TS_MK+2*r}:{TS_MK+2*r+1}], v{TV_T2}, v{TV_N}")
    a(f"""v_mul_u32_u24 v{TV_OUTO}, 1280, v{TV_N}
v_lshlrev_b32 v{TV_T}, 3, v{TV_G}
v_add_u32 v{TV_OUTO}, v{TV_OUTO}, v{TV_T}""")
    a(f"""v_and_b32 v{TV_T}, 31, v{TV_LANE}
v_lshlrev_b32 v{TV_T}, 3, v{TV_T}
v_lshrrev_b32 v{TV_T2}, 5, v{TV_LANE}
v_mul_u32_u24 v{TV_MA}, {40*256}, v{TV_T2}
v_add_u32 v{TV_MA}, v{TV_MA}, v{TV_T}
v_mul_u32_u24 v{TV_MB}, 2560, v{TV_T2}
v_add_u32 v{TV_MB}, v{TV_MB}, v{TV_T}""")

def emit_score(a, pfx, ld=" sc1"):
    W = f"s[{TS_WS}:{TS_WS+3}]"
    a(f"""s_lshl_b32 s{TS_T}, s{TS_I}, 2
s_add_u32 s{TS_T}, s{TS_T}, s{TS_WAVE}
s_lshl_b32 s{TS_T2}, s{TS_S}, 5
s_add_u32 s{TS_T}, s{TS_T}, s{TS_T2}
s_mul_i32 s{TS_T2}, s{TS_T}, 12288
s_add_u32 s{TS_T3}, s{TS_T2}, {QX}""")
    for f in range(12):
        if f and f % 4 == 0: a(f"s_add_u32 s{TS_T3}, s{TS_T3}, 4096")
        a(f"buffer_load_dwordx4 {vr(TV_Q+4*f)}, v{TV_L16}, {W}, s{TS_T3} offen offset:{(f%4)*1024}{ld}")
    a(f"s_add_u32 s{TS_T3}, s{TS_T2}, {KX}")
    for f in range(12):
        if f and f % 4 == 0: a(f"s_add_u32 s{TS_T3}, s{TS_T3}, 4096")
        a(f"buffer_load_dwordx4 {vr(TV_K+4*f)}, v{TV_L16}, {W}, s{TS_T3} offen offset:{(f%4)*1024}{ld}")
    a(f"s_mul_i32 s{TS_T2}, s{TS_T}, 3072")
    a(f"s_add_u32 s{TS_T3}, s{TS_T2}, {KM}")
    for p in range(6):
        a(f"buffer_load_dwordx4 {vr(TV_M+4*p)}, v{TV_KM}, {W}, s{TS_T3} offen offset:{p*512}{ld}")
    a(f"s_mul_i32 s{TS_T2}, s{TS_T}, 2560")
    a(f"s_add_u32 s{TS_T3}, s{TS_T2}, {PF}")
    a("s_waitcnt vmcnt(0)")
    SM0, SM1, X00, X01, X11 = TV_S, TV_S+4, TV_S+8, TV_S+12, TV_S+16
    for p in range(6):
        for d, A_, B_ in ((SM0, TV_M+4*p, TV_Q+4*p), (SM1, TV_M+4*p, TV_Q+4*(6+p)), (X00, TV_K+4*p, TV_Q+4*p),
                          (X01, TV_K+4*p, TV_Q+4*(6+p)), (X11, TV_K+4*(6+p), TV_Q+4*(6+p))):
            c = "0" if p == 0 else vr(d)
            a(f"v_mfma_f32_16x16x32_bf16 {vr(d)}, {vr(A_)}, {vr(B_)}, {c}")
    for tq in range(2):
        sm = SM0 if tq == 0 else SM1
        vals = []
        X = TV_X
        for r in range(4):
            a(f"v_cndmask_b32 v{X+r}, v{sm+r}, v{TV_NINF}, s[{TS_HI}:{TS_HI+1}]")
        if tq == 0:
            for r in range(4): a(f"v_cndmask_b32 v{X+4+r}, v{X00+r}, v{TV_NINF}, s[{TS_MK+2*r}:{TS_MK+2*r+1}]")
            n = 8
        else:
            for r in range(4): a(f"v_mov_b32 v{X+4+r}, v{X01+r}")
            for r in range(4): a(f"v_cndmask_b32 v{X+8+r}, v{X11+r}, v{TV_NINF}, s[{TS_MK+2*r}:{TS_MK+2*r+1}]")
            n = 12
        MX = X+12; TM = X+13
        a(f"v_max3_f32 v{MX}, v{X}, v{X+1}, v{X+2}")
        i = 3
        while i < n:
            if i+1 < n: a(f"v_max3_f32 v{MX}, v{MX}, v{X+i}, v{X+i+1}"); i += 2
            else: a(f"v_max_f32 v{MX}, v{MX}, v{X+i}"); i += 1
        a(f"v_mov_b32 v{TM}, v{MX}\nv_permlane16_swap_b32 v{MX}, v{TM}\nv_max_f32 v{MX}, v{MX}, v{TM}")
        a(f"v_mov_b32 v{TM}, v{MX}\nv_permlane32_swap_b32 v{MX}, v{TM}\nv_max_f32 v{MX}, v{MX}, v{TM}")
        a(f"v_mul_f32 v{MX}, s{TS_SCALE}, v{MX}")
        for j in range(n): a(f"v_fma_f32 v{X+j}, v{X+j}, s{TS_SCALE}, -v{MX}")
        for j in range(n): a(f"v_exp_f32 v{X+j}, v{X+j}")
        SU = X+14
        a(f"v_add_f32 v{SU}, v{X}, v{X+1}")
        for j in range(2, n): a(f"v_add_f32 v{SU}, v{SU}, v{X+j}")
        a(f"v_mov_b32 v{TM}, v{SU}\nv_permlane16_swap_b32 v{SU}, v{TM}\nv_add_f32 v{SU}, v{SU}, v{TM}")
        a(f"v_mov_b32 v{TM}, v{SU}\nv_permlane32_swap_b32 v{SU}, v{TM}\nv_add_f32 v{SU}, v{SU}, v{TM}")
        a(f"v_rcp_f32 v{SU}, v{SU}")
        for j in range(n): a(f"v_mul_f32 v{X+j}, v{X+j}, v{SU}")
        P = TV_P + 8*tq
        a(f"v_cvt_pk_bf16_f32 v{P}, v{X+4}, v{X+5}\nv_cvt_pk_bf16_f32 v{P+1}, v{X+6}, v{X+7}")
        if tq == 0: a(f"v_mov_b32 v{P+2}, 0\nv_mov_b32 v{P+3}, 0")
        else: a(f"v_cvt_pk_bf16_f32 v{P+2}, v{X+8}, v{X+9}\nv_cvt_pk_bf16_f32 v{P+3}, v{X+10}, v{X+11}")
        a(f"v_cvt_pk_bf16_f32 v{P+4}, v{X}, v{X+1}\nv_cvt_pk_bf16_f32 v{P+5}, v{X+2}, v{X+3}")
        a(f"buffer_store_dwordx4 {vr(P)}, v{TV_L16}, {W}, s{TS_T3} offen offset:{tq*1280} sc1")
        a("s_mov_b32 exec_hi, 0")
        a(f"buffer_store_dwordx2 {vr(P+4,2)}, v{TV_L8}, {W}, s{TS_T3} offen offset:{tq*1280+1024} sc1")
        a("s_mov_b64 exec, -1")

PV_ACC=16
PV_BUF=56
PV_MEM=168
PV_BASE=196
PV_RED=208

def emit_pu(a, pfx, ld=" sc1"):
    W = f"s[{TS_WS}:{TS_WS+3}]"
    a(f"""s_lshl_b32 s{TS_T}, s{TS_S}, 5
s_lshl_b32 s{TS_T2}, s{TS_WAVE}, 3
s_add_u32 s{TS_T}, s{TS_T}, s{TS_T2}
s_mul_i32 s40, s{TS_T}, {40*1024}
s_mul_i32 s{TS_T2}, s{TS_I}, {5*1024}
s_add_u32 s40, s40, s{TS_T2}
s_add_u32 s40, s40, {UX}
s_mul_i32 s41, s{TS_T}, 2560
s_add_u32 s41, s41, {PF}
s_mul_i32 s42, s{TS_T}, {40*256}
s_mul_i32 s{TS_T2}, s{TS_I}, {5*256}
s_add_u32 s42, s42, s{TS_T2}
s_add_u32 s42, s42, {UY}""")
    a(f"""s_mul_i32 s43, s{TS_S}, 80
s_mul_i32 s{TS_T2}, s{TS_I}, 10
s_add_u32 s43, s43, s{TS_T2}
s_add_u32 s43, s43, s{TS_WAVE}
s_lshl_b32 s43, s43, 10
s_add_u32 s43, s43, {BASE}""")
    def head_loads(k):
        b = PV_BUF + 28*(k % 4)
        a(f"s_add_u32 s44, s40, {k*40*1024}")
        for t in range(4): a(f"buffer_load_dwordx4 {vr(b+4*t)}, v{TV_L16}, {W}, s44 offen offset:{t*1024}{ld}")
        a(f"s_add_u32 s44, s44, 4096")
        a(f"buffer_load_dwordx4 {vr(b+16)}, v{TV_L16}, {W}, s44 offen{ld}")
        a(f"s_add_u32 s44, s41, {k*2560}")
        a(f"buffer_load_dwordx4 {vr(b+20)}, v{TV_L16}, {W}, s44 offen{ld}")
        a(f"buffer_load_dwordx4 {vr(b+24)}, v{TV_L16}, {W}, s44 offen offset:1280{ld}")
    def mem_loads(qd):
        for hh in range(2):
            a(f"s_add_u32 s44, s42, {(4*qd+2*hh)*40*256}")
            for t in range(5): a(f"buffer_load_dwordx2 {vr(PV_MEM+4*t+2*hh,2)}, v{TV_MA}, {W}, s44 offen offset:{t*256}{ld}")
            a(f"s_add_u32 s44, s41, {(4*qd+2*hh)*2560}")
            for tq in range(2): a(f"buffer_load_dwordx2 {vr(PV_MEM+20+4*tq+2*hh,2)}, v{TV_MB}, {W}, s44 offen offset:{tq*1280+1024}{ld}")
    for k in range(4): head_loads(k)
    mem_loads(0)
    for j in range(3):
        a(f"s_add_u32 s44, s43, {j*4096}")
        a(f"buffer_load_dwordx4 {vr(PV_BASE+4*j)}, v{TV_L16}, {W}, s44 offen{ld}")
    out = [('H', 0)]*7 + [('H', 1)]*7 + [('H', 2)]*7 + [('H', 3)]*7 + [('M', 0)]*14 + [('B', 0)]*3
    def wait_for(tag):
        last = max(i for i, x in enumerate(out) if x == tag)
        n = len(out) - 1 - last
        a(f"s_waitcnt vmcnt({min(n, 63)})")
    for k in range(8):
        b = PV_BUF + 28*(k % 4)
        wait_for(('H', k))
        for t in range(5):
            for tq in range(2):
                d = PV_ACC + 8*t + 4*tq
                c = "0" if k == 0 else vr(d)
                a(f"v_mfma_f32_16x16x32_bf16 {vr(d)}, {vr(b+4*t)}, {vr(b+20+4*tq)}, {c}")
        if k + 4 < 8:
            head_loads(k+4); out += [('H', k+4)]*7
        if k == 3 or k == 7:
            qd = k // 4
            wait_for(('M', qd))
            for t in range(5):
                for tq in range(2):
                    d = PV_ACC + 8*t + 4*tq
                    a(f"v_mfma_f32_16x16x32_bf16 {vr(d)}, {vr(PV_MEM+4*t)}, {vr(PV_MEM+20+4*tq)}, {vr(d)}")
            if k == 3:
                mem_loads(1); out += [('M', 1)]*14
    a(f"s_mul_i32 s44, s{TS_WAVE}, 10240")
    a(f"v_add_u32 v{TV_T}, s44, v{TV_L16}")
    for u in range(10):
        a(f"ds_write_b128 v{TV_T}, {vr(PV_ACC+4*u)} offset:{u*1024}")
    a("s_waitcnt lgkmcnt(0)")
    a("s_barrier")
    a(f"s_lshl_b32 s44, s{TS_WAVE}, 10")
    a(f"v_add_u32 v{TV_T}, s44, v{TV_L16}")
    for j in range(3):
        if j == 2:
            a(f"s_cmp_ge_u32 s{TS_WAVE}, 2")
            a(f"s_cbranch_scc1 {pfx}_RD")
        for k in range(4):
            a(f"ds_read_b128 {vr(PV_RED+4*k)}, v{TV_T} offset:{k*10240 + j*4096}")
        a(f"""s_add_u32 s44, s{TS_WAVE}, {4*j}
s_lshr_b32 s45, s44, 1
s_and_b32 s44, s44, 1
s_mul_i32 s46, s{TS_I}, 5
s_add_u32 s45, s45, s46
s_lshl_b32 s45, s45, 5
s_lshl_b32 s46, s{TS_S}, 1
s_add_u32 s46, s46, s44
s_mul_i32 s46, s46, {16*1280}
s_add_u32 s45, s45, s46""")
        a("s_waitcnt vmcnt(0) lgkmcnt(0)")
        for r in range(4):
            a(f"v_add_f32 v{PV_RED+r}, v{PV_RED+r}, v{PV_RED+4+r}")
            a(f"v_add_f32 v{PV_RED+8+r}, v{PV_RED+8+r}, v{PV_RED+12+r}")
        for r in range(4):
            a(f"v_add_f32 v{PV_RED+r}, v{PV_RED+r}, v{PV_RED+8+r}")
            a(f"v_add_f32 v{PV_RED+r}, v{PV_RED+r}, v{PV_BASE+4*j+r}")
        a(f"v_cvt_pk_bf16_f32 v{PV_RED+4}, v{PV_RED}, v{PV_RED+1}")
        a(f"v_cvt_pk_bf16_f32 v{PV_RED+5}, v{PV_RED+2}, v{PV_RED+3}")
        a(f"buffer_store_dwordx2 {vr(PV_RED+4,2)}, v{TV_OUTO}, s[{TS_OUT}:{TS_OUT+3}], s45 offen")
    a.label(f"{pfx}_RD")
    a("s_barrier")

def gen_tok_kernel(kind):
    a = Asm(); name = f"{kind}_kernel"
    kernel_header(a, name)
    a(f"""s_cmp_ge_u32 s2, 512
s_cbranch_scc1 TK_END_{kind}
s_load_dwordx2 s[38:39], s[0:1], {KA['ws']}
s_load_dwordx2 s[40:41], s[0:1], {KA['out']}
s_waitcnt lgkmcnt(0)""")
    srd(a, TS_WS, 38, WS_SIZE); srd(a, TS_OUT, 40, OUT_BYTES)
    lane_setup(a, TV_LANE, TV_G, TV_N, TS_WAVE)
    tok_setup(a)
    a(f"s_lshr_b32 s{TS_S}, s2, 3\ns_and_b32 s{TS_I}, s2, 7")
    if kind == 'score': emit_score(a, "SC")
    else: emit_pu(a, "PU")
    a.label(f"TK_END_{kind}")
    a("s_endpgm")
    return name, a.finalize(), kernel_desc(name, 256, 64, 256)
```

```python
S=2048; D=640; H=32; E=192; F=1536; SEG=32; NSEG=64; M=8
KB=1024; MB=1024*1024
WS_SIZE = 268435456
OUT_BYTES = S*D*2
KA = dict(x=0, mem0=8, wq=16, wk=24, wv=32, wo=40, seg=48, bx=56, wg=64, wu=72, wd=80, out=88, dbg=96, ws=104)
RING   = 0
RING_SLOT = 2*MB
FLAGS  = 8*MB
FLAGS_SIZE = 64*KB
XN     = 9*MB
KX     = 12*MB
VX     = KX + 24*MB
QX     = VX + 24*MB
HF     = QX + 24*MB
BASE   = HF + 6*MB
KM     = BASE + 5*MB
PF     = KM + 6*MB
UY     = PF + 5*MB
UX     = UY + 20*MB
END    = UX + 80*MB
assert END <= WS_SIZE, END
A_LOG  = 0
RS_LOG = 36*8192
AG_LOG = RS_LOG + 40*8192
SLOT_LOG = AG_LOG + 6*8192
SLOT_PHYS = 82*16384
PROBE_OFF = 81*16384 + 4096
def nearmap(off): return ((off >> 13) << 14) | (off & 8191)

F_POL  = FLAGS
F_PROG = FLAGS + 49152
PSH = 7
F_REC  = FLAGS + 4096
F_SC   = FLAGS + 40960
R_K0=0; R_V0=24; R_Q0=48; R_UP0=72; R_DN0=84; R_U0=94; R_PROBE=126
F_RPROG = FLAGS + 2048
TRACE = RING + 1536*1024
DB_OVF=32; DB_TICKET=36; DB_INIT=48; DB_POL=52
```

```python
import sys
from gen_common import *
from gen_prep import gen_prep
from gen_panel import gen_panel_kernel, gen_down_kernel
from gen_rec import gen_rec_kernel
from gen_tok import gen_upanel_kernel, gen_tok_kernel

HEADER = open('parallel_sum__memory_aug_recurrent_mem_tr__geglu_ffn__prompt.s.ref').read().split('; Override launch')[0]

def build(kernels, launches):
    out = HEADER
    for (k, g, b, lds) in launches:
        out += f"; @launch kernel={k} grid=({g},1,1) block=({b},1,1) lds={lds}\n"
    out += '.amdgcn_target "amdgcn-amd-amdhsa--gfx950"\n.text\n'
    for n, body, kd in kernels: out += body
    out += '.section .rodata,"a"\n'
    for n, body, kd in kernels: out += kd
    return out

from gen_main import gen_main_kernel
import os
if __name__ == '__main__' and os.environ.get('V','1')=='1':
    ks = [gen_prep(), gen_main_kernel()]
    launches = [('prep_kernel', 256, 256, 0), ('main_kernel', 256, 256, 147456)]
    open(sys.argv[1] if len(sys.argv) > 1 else 'out.s', 'w').write(build(ks, launches))
elif __name__ == '__main__':
    ks = [gen_prep(), gen_panel_kernel(), gen_down_kernel(), gen_upanel_kernel(), gen_tok_kernel('score'), gen_tok_kernel('pu'), gen_rec_kernel()]
    launches = [("prep_kernel", 256, 256, 0), ("panel_kernel", 84, 256, 131072), ("down_kernel", 10, 256, 147456), ("upanel_kernel", 32, 256, 131072), ("rec_kernel", 256, 256, 131072), ("score_kernel", 512, 256, 0), ("pu_kernel", 512, 256, 40960)]
    open(sys.argv[1] if len(sys.argv) > 1 else 'out.s', 'w').write(build(ks, launches))
```

```python
from asmlib import *
from layout import *

def srd(a, s, ptr_lo, size):
    a(f"""s_mov_b32 s{s}, s{ptr_lo}
s_and_b32 s{s+1}, s{ptr_lo+1}, 0xffff
s_mov_b32 s{s+2}, {size}
s_mov_b32 s{s+3}, 0x00020000""")

def kernel_header(a, name):
    a.raw(f".globl {name}\n.p2align 8\n.type {name},@function\n{name}:")

def kernel_desc(name, vgpr, sgpr, accum):
    return f""".p2align 6
.amdhsa_kernel {name}
  .amdhsa_next_free_vgpr {vgpr}
  .amdhsa_next_free_sgpr {sgpr}
  .amdhsa_accum_offset {accum}
  .amdhsa_group_segment_fixed_size 0
  .amdhsa_kernarg_size 112
  .amdhsa_user_sgpr_count 2
  .amdhsa_user_sgpr_kernarg_segment_ptr 1
  .amdhsa_system_sgpr_workgroup_id_x 1
.end_amdhsa_kernel
"""

def vr(b, n=4): return f"v[{b}:{b+n-1}]"
def ar(b, n=4): return f"a[{b}:{b+n-1}]"

class WReg:
    def __init__(self, abase, acount, vbase):
        self.abase=abase; self.acount=acount; self.vbase=vbase
    def quad(self, f):
        r = f*4
        if r < self.acount: return ar(self.abase + r)
        return vr(self.vbase + r - self.acount)
    def pair(self, f, k):
        r = f*4 + 2*k
        if r < self.acount: return ar(self.abase + r, 2)
        return vr(self.vbase + r - self.acount, 2)

def load_w(a, frags, wreg, v_goff, v_tr, s_tmp, ldsbase_s, perm, nslot=32, grp=4):
    N = len(frags)
    second = 512 if perm else 128
    def issue(f):
        sr, (sc, imm) = frags[f]
        a(f"s_add_u32 s{s_tmp}, s{sc}, {imm}")
        a(f"s_add_u32 m0, s{ldsbase_s}, {(f % nslot)*1024}")
        a(f"buffer_load_dwordx4 v{v_goff}, s[{sr}:{sr+3}], s{s_tmp} offen lds")
    issued = 0
    while issued < min(N, nslot):
        issue(issued); issued += 1
    done = 0
    while done < N:
        g = min(grp, N - done)
        inflight_after = issued - (done + g)
        a(f"s_waitcnt vmcnt({inflight_after})")
        for f in range(done, done + g):
            o = (f % nslot)*1024
            a(f"ds_read_b64_tr_b16 {wreg.pair(f,0)}, v{v_tr} offset:{o}")
            a(f"ds_read_b64_tr_b16 {wreg.pair(f,1)}, v{v_tr} offset:{o+second}")
        done += g
        if issued < N:
            a("s_waitcnt lgkmcnt(0)")
            k = 0
            while issued < N and k < g:
                issue(issued); issued += 1; k += 1
    a("s_waitcnt lgkmcnt(0)")

def lane_setup(a, v_lane, v_g, v_n, s_wave, vtid='v0'):
    a(f"""v_lshrrev_b32 v{v_g}, 6, {vtid}
s_nop 0
v_readfirstlane_b32 s{s_wave}, v{v_g}
v_and_b32 v{v_lane}, 63, {vtid}
v_lshrrev_b32 v{v_g}, 4, v{v_lane}
v_and_b32 v{v_n}, 15, v{v_lane}""")

def w_addr_setup(a, v_lane, v_goff, v_tr, stride, perm, s_ldsbase, vt):
    a(f"""v_lshrrev_b32 v{vt}, 1, v{v_lane}
s_mov_b32 s{s_ldsbase+1}, {stride}
v_mul_lo_u32 v{v_goff}, v{vt}, s{s_ldsbase+1}
v_and_b32 v{vt}, 1, v{v_lane}
v_lshlrev_b32 v{vt}, 4, v{vt}
v_add_u32 v{v_goff}, v{v_goff}, v{vt}
v_lshrrev_b32 v{v_tr}, 4, v{v_lane}
v_lshlrev_b32 v{v_tr}, {2 if perm else 3}, v{v_tr}
v_bfe_u32 v{vt}, v{v_lane}, 2, 2
v_add_u32 v{v_tr}, v{v_tr}, v{vt}
v_lshlrev_b32 v{v_tr}, 5, v{v_tr}
v_and_b32 v{vt}, 3, v{v_lane}
v_lshlrev_b32 v{vt}, 3, v{vt}
v_add_u32 v{v_tr}, v{v_tr}, v{vt}
v_add_u32 v{v_tr}, s{s_ldsbase}, v{v_tr}""")


def wait_words(a, lbl, srd_ws, v_addr, v_tmp, s_thr, s_cache=None, nl=0, s_tmp=None, s_cnt=None, sleep=4, imm_thr=None):
    thr = f"s{s_thr}" if imm_thr is None else str(imm_thr)
    if s_cache is not None:
        a(f"s_cmp_ge_u32 s{s_cache}, {thr}")
        a(f"s_cbranch_scc1 {lbl}_D")
    a(f"s_mov_b32 s{s_cnt}, 0")
    a.label(lbl)
    a(f"buffer_load_dword v{v_tmp}, v{v_addr}, s[{srd_ws}:{srd_ws+3}], 0 offen sc1")
    a("s_waitcnt vmcnt(0)")
    a(f"v_cmp_gt_u32 vcc, {thr}, v{v_tmp}")
    a(f"s_cbranch_vccz {lbl}_K")
    a(f"s_sleep {sleep}")
    a(f"s_add_u32 s{s_cnt}, s{s_cnt}, 1")
    a(f"s_cmp_lt_u32 s{s_cnt}, 0x100000")
    a(f"s_cbranch_scc1 {lbl}")
    a.label(f"{lbl}_K")
    if s_cache is not None:
        a(f"v_readlane_b32 s{s_cache}, v{v_tmp}, 0")
        for l in range(1, nl):
            a(f"v_readlane_b32 s{s_tmp}, v{v_tmp}, {l}")
            a(f"s_min_u32 s{s_cache}, s{s_cache}, s{s_tmp}")
    a.label(f"{lbl}_D")

def publish_word(a, srd_ws, v_val, v_zero, s_off, s_val):
    a(f"v_mov_b32 v{v_val}, s{s_val}")
    a("s_mov_b64 exec, 1")
    a(f"buffer_store_dword v{v_val}, v{v_zero}, s[{srd_ws}:{srd_ws+3}], s{s_off} offen sc1")
    a("s_mov_b64 exec, -1")

import os as _os
def trace(a, idx, s_role, s_t=(98,99), v=(250,251), srd_ws=4, wave_s=None, val=None):
    if not int(_os.environ.get('TRACE', 0)): return
    a(f"s_memrealtime s[{s_t[0]}:{s_t[1]}]")
    a("s_waitcnt lgkmcnt(0)")
    a(f"v_mov_b32 v{v[0]}, s{s_t[0] if val is None else val}")
    a(f"s_lshl_b32 s{s_t[1]}, s{s_role}, 8")
    a(f"s_add_u32 s{s_t[1]}, s{s_t[1]}, {TRACE + idx*4}")
    a(f"v_mov_b32 v{v[1]}, s{s_t[1]}")
    a("s_mov_b64 exec, 1")
    a(f"buffer_store_dword v{v[0]}, v{v[1]}, s[{srd_ws}:{srd_ws+3}], 0 offen")
    a("s_mov_b64 exec, -1")


def load_w2(a, units, dst_pair, nt, stride, perm, v_lane, v_goff, v_tr, vt, s_tmp, s_lb, kb=32, mid_hook=None, pre_hook=None):
    lpr = 2*nt
    rows = 64 // lpr
    rb = 32*nt
    sh = {1: 1, 2: 2, 4: 3}[nt]
    a(f"""v_lshrrev_b32 v{vt}, {sh}, v{v_lane}
s_mov_b32 s{s_lb+1}, {stride}
v_mul_lo_u32 v{v_goff}, v{vt}, s{s_lb+1}
v_and_b32 v{vt}, {lpr-1}, v{v_lane}
v_lshlrev_b32 v{vt}, 4, v{vt}
v_add_u32 v{v_goff}, v{v_goff}, v{vt}""")
    if perm == 2:
        a(f"""v_bfe_u32 v{v_tr}, v{v_lane}, 4, 1
v_lshlrev_b32 v{v_tr}, 4, v{v_tr}
v_bfe_u32 v{vt}, v{v_lane}, 5, 1
v_lshlrev_b32 v{vt}, 3, v{vt}
v_add_u32 v{v_tr}, v{v_tr}, v{vt}
v_bfe_u32 v{vt}, v{v_lane}, 2, 1
v_add_u32 v{v_tr}, v{v_tr}, v{vt}
v_bfe_u32 v{vt}, v{v_lane}, 3, 1
v_lshlrev_b32 v{vt}, 2, v{vt}
v_add_u32 v{v_tr}, v{v_tr}, v{vt}""")
    else:
        a(f"""v_lshrrev_b32 v{v_tr}, 4, v{v_lane}
v_lshlrev_b32 v{v_tr}, {2 if perm else 3}, v{v_tr}
v_bfe_u32 v{vt}, v{v_lane}, 2, 2
v_add_u32 v{v_tr}, v{v_tr}, v{vt}""")
    a(f"""v_mul_u32_u24 v{v_tr}, {rb}, v{v_tr}
v_and_b32 v{vt}, 3, v{v_lane}
v_lshlrev_b32 v{vt}, 3, v{vt}
v_add_u32 v{v_tr}, v{v_tr}, v{vt}
v_add_u32 v{v_tr}, s{s_lb}, v{v_tr}""")
    second = (2 if perm == 2 else 16 if perm else 4) * rb
    nslot = kb // nt
    N = len(units)
    def issue(u):
        sr, sc, imm = units[u]
        for j in range(nt):
            a(f"s_add_u32 s{s_tmp}, s{sc}, {imm + j*rows*stride}")
            a(f"s_add_u32 m0, s{s_lb}, {(u % nslot)*nt*1024 + j*1024}")
            a(f"buffer_load_dwordx4 v{v_goff}, s[{sr}:{sr+3}], s{s_tmp} offen lds")
    issued = 0
    if pre_hook: pre_hook()
    while issued < min(N, nslot):
        issue(issued); issued += 1
    if mid_hook: mid_hook()
    done = 0
    grp = max(1, 4 // nt)
    while done < N:
        g = min(grp, N - done)
        a(f"s_waitcnt vmcnt({(issued - (done + g))*nt})")
        for u in range(done, done + g):
            for T in range(nt):
                o = (u % nslot)*nt*1024 + T*32
                a(f"ds_read_b64_tr_b16 {dst_pair(u,T,0)}, v{v_tr} offset:{o}")
                a(f"ds_read_b64_tr_b16 {dst_pair(u,T,1)}, v{v_tr} offset:{o+second}")
        done += g
        if issued < N:
            a("s_waitcnt lgkmcnt(0)")
            k = 0
            while issued < N and k < g:
                issue(issued); issued += 1; k += 1
    a("s_waitcnt lgkmcnt(0)")

def wait_dbg(a, lbl, s_ptr, byte_off, v_a, v_t, s_cnt, s_val, thr=None, mask=None):
    a(f"v_mov_b32 v{v_a}, {byte_off}")
    a(f"s_mov_b32 s{s_cnt}, 0")
    a.label(lbl)
    a(f"global_load_dword v{v_t}, v{v_a}, s[{s_ptr}:{s_ptr+1}] sc1")
    a("s_waitcnt vmcnt(0)")
    a(f"v_readfirstlane_b32 s{s_val}, v{v_t}")
    if thr is not None:
        a(f"s_cmp_ge_u32 s{s_val}, {thr}")
    else:
        a(f"s_and_b32 s{s_cnt+1}, s{s_val}, {mask}")
        a(f"s_cmp_eq_u32 s{s_cnt+1}, {mask}")
    a(f"s_cbranch_scc1 {lbl}_K")
    a("s_sleep 4")
    a(f"s_add_u32 s{s_cnt}, s{s_cnt}, 1")
    a(f"s_cmp_lt_u32 s{s_cnt}, 0x100000")
    a(f"s_cbranch_scc1 {lbl}")
    a.label(f"{lbl}_K")
```

```python
from gen_common import *
import gen_panel as P, gen_tok as T, gen_rec as R
import os
OPT=lambda k,d: type(d)(os.environ.get(k,d))

def tok_loop(a):
    from gen_tok import TS_WS, TS_OUT, TS_WAVE, TS_S, TS_I, TS_T, TS_T2, TS_T3, TV_LANE, TV_G, TV_N, TV_T, TV_T2
    V_WA = 13; V_WT = 14; V_Z = 15
    a(f"""s_load_dwordx2 s[40:41], s[0:1], {KA['out']}
s_load_dwordx2 s[48:49], s[0:1], {KA['dbg']}
s_waitcnt lgkmcnt(0)""")
    srd(a, TS_OUT, 40, OUT_BYTES)
    lane_setup(a, TV_LANE, TV_G, TV_N, TS_WAVE)
    T.tok_setup(a)
    a(f"v_mov_b32 v{V_Z}, 0")
    a.label("TOK_LOOP")
    a(f"""s_cmp_lg_u32 s{TS_WAVE}, 0
s_cbranch_scc1 TOK_NT
v_mov_b32 v{V_WT}, 1
v_mov_b32 v{V_WA}, {DB_TICKET}
s_mov_b64 exec, 1
global_atomic_add v{V_WT}, v{V_WA}, v{V_WT}, s[48:49] sc0 sc1
s_waitcnt vmcnt(0)
v_mov_b32 v{V_WA}, 65536
ds_write_b32 v{V_WA}, v{V_WT}
s_waitcnt lgkmcnt(0)
s_mov_b64 exec, -1""")
    a.label("TOK_NT")
    a(f"""s_barrier
v_mov_b32 v{V_WA}, 65536
ds_read_b32 v{V_WT}, v{V_WA}
s_waitcnt lgkmcnt(0)
v_readfirstlane_b32 s50, v{V_WT}
s_barrier
s_cmp_ge_u32 s50, 1024
s_cbranch_scc1 TOK_END
s_lshr_b32 s{TS_S}, s50, 4
s_and_b32 s{TS_I}, s50, 15
s_cmp_ge_u32 s{TS_I}, 8
s_cbranch_scc1 TOK_PU""")
    a(f"s_cmp_lg_u32 s{TS_WAVE}, 0")
    a("s_cbranch_scc1 TOK_SC_GO")
    a(f"""v_mul_u32_u24 v{V_WT}, 21846, v{TV_LANE}
v_lshrrev_b32 v{V_WT}, 16, v{V_WT}
v_mul_u32_u24 v{V_WA}, 3, v{V_WT}
v_sub_u32 v{V_WA}, v{TV_LANE}, v{V_WA}
v_cmp_eq_u32 vcc, 0, v{V_WT}
v_mov_b32 v{V_WT}, {R_Q0}
v_cndmask_b32 v{V_WT}, 0, v{V_WT}, vcc
v_add_u32 v{V_WA}, v{V_WA}, v{V_WT}
s_mul_i32 s{TS_T}, s{TS_I}, 3
v_add_u32 v{V_WA}, s{TS_T}, v{V_WA}
v_lshlrev_b32 v{V_WA}, {PSH}, v{V_WA}
v_add_u32 v{V_WA}, {F_PROG}, v{V_WA}
s_lshl_b32 s51, s{TS_S}, 1
s_add_u32 s51, s51, 2""")
    wait_words(a, "TSC_W3", TS_WS, V_WA, V_WT, 51, s_cnt=52, sleep=16)
    a.label("TOK_SC_GO")
    a("s_barrier")
    def sc_mid():
        a(f"s_cmp_lg_u32 s{TS_WAVE}, 0")
        a("s_cbranch_scc1 TOK_SC_GO2")
        a(f"s_add_u32 s51, s{TS_S}, 1")
        a(f"v_mov_b32 v{V_WA}, {F_RPROG}")
        wait_words(a, "TSC_W0", TS_WS, V_WA, V_WT, 51, s_cnt=52, sleep=OPT('SL_RP', 10))
        a(f"""v_and_b32 v{V_WA}, 3, v{TV_LANE}
s_lshl_b32 s{TS_T}, s{TS_I}, 2
v_add_u32 v{V_WA}, s{TS_T}, v{V_WA}
v_lshlrev_b32 v{V_WA}, 9, v{V_WA}
v_add_u32 v{V_WA}, {F_REC}, v{V_WA}""")
        wait_words(a, "TSC_W1", TS_WS, V_WA, V_WT, 51, s_cnt=52, sleep=2)
        a.label("TOK_SC_GO2")
        a("s_barrier")
    T.emit_score(a, "MSC", mid=sc_mid)
    a("s_waitcnt vmcnt(0)")
    a("s_barrier")
    a(f"""s_cmp_lg_u32 s{TS_WAVE}, 0
s_cbranch_scc1 TOK_LOOP
s_lshl_b32 s{TS_T}, s{TS_S}, 7
s_lshl_b32 s{TS_T2}, s{TS_I}, 2
s_add_u32 s{TS_T}, s{TS_T}, s{TS_T2}
s_add_u32 s{TS_T}, s{TS_T}, {F_SC}
s_mov_b32 s51, 1""")
    publish_word(a, TS_WS, V_WT, V_Z, TS_T, 51)
    a("s_branch TOK_LOOP")
    a.label("TOK_PU")
    a(f"s_sub_u32 s{TS_I}, s{TS_I}, 8")
    a(f"s_cmp_lg_u32 s{TS_WAVE}, 0")
    a("s_cbranch_scc1 TOK_PU_GO")
    a(f"""v_and_b32 v{V_WA}, 31, v{TV_LANE}
v_lshlrev_b32 v{V_WA}, {PSH}, v{V_WA}
v_add_u32 v{V_WA}, {F_PROG + (R_U0 << PSH)}, v{V_WA}
s_add_u32 s51, s{TS_S}, 1""")
    wait_words(a, "TPU_W1", TS_WS, V_WA, V_WT, 51, s_cnt=52, sleep=16)
    a(f"""s_mul_i32 s{TS_T}, s{TS_I}, 5
s_lshr_b32 s{TS_T2}, s{TS_T}, 2
s_add_u32 s{TS_T}, s{TS_T}, 4
s_lshr_b32 s{TS_T}, s{TS_T}, 2
v_mov_b32 v{V_WA}, s{TS_T}
v_mov_b32 v{V_WT}, s{TS_T2}
v_and_b32 v{TV_T}, 1, v{TV_LANE}
v_cmp_eq_u32 vcc, 0, v{TV_T}
v_cndmask_b32 v{V_WA}, v{V_WA}, v{V_WT}, vcc
v_lshlrev_b32 v{V_WA}, {PSH}, v{V_WA}
v_add_u32 v{V_WA}, {F_PROG + (R_DN0 << PSH)}, v{V_WA}
s_lshl_b32 s51, s{TS_S}, 1
s_add_u32 s51, s51, 2""")
    wait_words(a, "TPU_W2", TS_WS, V_WA, V_WT, 51, s_cnt=52, sleep=16)
    a.label("TOK_PU_GO")
    a("s_barrier")
    def pu_mid():
        a(f"s_cmp_lg_u32 s{TS_WAVE}, 0")
        a("s_cbranch_scc1 TOK_PU_GO2")
        a(f"""s_lshl_b32 s{TS_T}, s{TS_S}, 7
s_add_u32 s{TS_T}, s{TS_T}, {F_SC}
v_and_b32 v{V_WA}, 7, v{TV_LANE}
v_lshlrev_b32 v{V_WA}, 2, v{V_WA}
v_add_u32 v{V_WA}, s{TS_T}, v{V_WA}""")
        wait_words(a, "TPU_W0", TS_WS, V_WA, V_WT, None, s_cnt=52, sleep=OPT('SL_SC', 6), imm_thr=1)
        a(f"""s_add_u32 s51, s{TS_S}, 1
v_lshlrev_b32 v{V_WA}, 7, v{TV_LANE}
v_add_u32 v{V_WA}, {F_REC}, v{V_WA}""")
        wait_words(a, "TPU_W3", TS_WS, V_WA, V_WT, 51, s_cnt=52, sleep=2)
        a(f"v_add_u32 v{V_WA}, 8192, v{V_WA}")
        wait_words(a, "TPU_W4", TS_WS, V_WA, V_WT, 51, s_cnt=52, sleep=2)
        a.label("TOK_PU_GO2")
        a("s_barrier")
    T.emit_pu(a, "MPU", mid=pu_mid)
    a("s_branch TOK_LOOP")
    a.label("TOK_END")
    trace(a, 4, 97)
    a("s_waitcnt vmcnt(0)")
    a("s_endpgm")

def gemm_init(a):
    import struct
    EX = 1024
    a(f"""s_load_dwordx2 s[40:41], s[0:1], {KA['x']}
s_waitcnt lgkmcnt(0)""")
    srd(a, 8, 40, S*D*2)
    a(f"""s_lshl_b32 s42, s51, 4
v_add_u32 v4, s42, v3
v_mul_u32_u24 v4, 1280, v4
v_lshlrev_b32 v5, 4, v2
v_add_u32 v4, v4, v5
s_mul_i32 s42, s24, 320""")
    for p in range(5):
        a(f"buffer_load_dwordx4 {vr(16+4*p)}, v4, s[8:11], s42 offen offset:{p*64}")
    a(f"""s_mul_i32 s43, s51, 9984
v_lshlrev_b32 v6, 4, v0
v_add_u32 v6, s43, v6
v_mov_b32 v8, -1
v_mov_b32 v9, -1
v_mov_b32 v10, -1
v_mov_b32 v11, -1
v_mov_b32 v12, 0
v_mov_b32 v13, 0
v_mov_b32 v14, 0
v_mov_b32 v15, 0""")
    for slot in range(4):
        for r in range(2):
            a(f"s_mov_b32 s44, {RING + slot*RING_SLOT + r*4096}")
            a(f"buffer_store_dwordx4 {vr(8)}, v6, s[4:7], s44 offen sc1")
    a("v_cmp_gt_u32 vcc, 112, v0")
    a("s_and_saveexec_b64 s[46:47], vcc")
    a("s_cbranch_execz GI_NOP3")
    for slot in range(4):
        a(f"s_mov_b32 s44, {RING + slot*RING_SLOT + 8192}")
        a(f"buffer_store_dwordx4 {vr(8)}, v6, s[4:7], s44 offen sc1")
    a.label("GI_NOP3")
    a("s_mov_b64 exec, s[46:47]")
    a(f"""v_cmp_gt_u32 vcc, 32, v0
s_and_saveexec_b64 s[46:47], vcc
s_cbranch_execz GI_NOFL
s_lshl_b32 s43, s51, 9
s_add_u32 s43, s43, {FLAGS}
v_lshlrev_b32 v7, 4, v0
buffer_store_dwordx4 {vr(12)}, v7, s[4:7], s43 offen sc1""")
    a.label("GI_NOFL")
    a("s_mov_b64 exec, s[46:47]")
    a("s_waitcnt vmcnt(8)")
    for r in range(20):
        a(f"v_lshlrev_b32 v{40+2*r}, 16, v{16+r}")
        a(f"v_and_b32 v{41+2*r}, 0xffff0000, v{16+r}")
    for k in range(4): a(f"v_add_f32 v{80+k}, v{40+k}, v{44+k}")
    for i in range(8, 40): a(f"v_add_f32 v{80+(i%4)}, v{80+(i%4)}, v{40+i}")
    a("v_add_f32 v80, v80, v81\nv_add_f32 v82, v82, v83\nv_add_f32 v80, v80, v82")
    def xreduce(r, t):
        a(f"v_mov_b32 v{t}, v{r}\nv_permlane16_swap_b32 v{r}, v{t}\nv_add_f32 v{r}, v{r}, v{t}")
        a(f"v_mov_b32 v{t}, v{r}\nv_permlane32_swap_b32 v{r}, v{t}\nv_add_f32 v{r}, v{r}, v{t}")
    def cross(r, off):
        a(f"""s_lshl_b32 s43, s24, 6
v_lshlrev_b32 v84, 2, v3
v_add_u32 v85, s43, v84
s_mov_b32 exec_hi, 0
s_mov_b32 exec_lo, 0xffff
ds_write_b32 v85, v{r} offset:{EX+off}
s_mov_b64 exec, -1
s_waitcnt lgkmcnt(0)
s_barrier
ds_read_b32 v86, v84 offset:{EX+off}
ds_read_b32 v87, v84 offset:{EX+off+64}
ds_read_b32 v88, v84 offset:{EX+off+128}
ds_read_b32 v89, v84 offset:{EX+off+192}
s_waitcnt lgkmcnt(0)
v_add_f32 v86, v86, v87
v_add_f32 v88, v88, v89
v_add_f32 v{r}, v86, v88""")
    xreduce(80, 81)
    cross(80, 0)
    a(f"s_mov_b32 s45, 0x{struct.unpack('<I', struct.pack('<f', 1.0/640))[0]:08x}")
    a("v_mul_f32 v80, s45, v80")
    for i in range(40): a(f"v_sub_f32 v{40+i}, v{40+i}, v80")
    for k in range(4): a(f"v_mul_f32 v{90+k}, v{40+k}, v{40+k}")
    for i in range(4, 40): a(f"v_fmac_f32 v{90+(i%4)}, v{40+i}, v{40+i}")
    a("v_add_f32 v90, v90, v91\nv_add_f32 v92, v92, v93\nv_add_f32 v90, v90, v92")
    xreduce(90, 91)
    cross(90, 256)
    a("v_mul_f32 v90, s45, v90")
    a("v_add_f32 v90, 0x3727c5ac, v90")
    a("v_rsq_f32 v90, v90")
    for r in range(20):
        a(f"v_mul_f32 v{40+2*r}, v{40+2*r}, v90")
        a(f"v_mul_f32 v{41+2*r}, v{41+2*r}, v90")
        a(f"v_cvt_pk_bf16_f32 v{16+r}, v{40+2*r}, v{41+2*r}")
    a(f"""s_mul_i32 s43, s51, {20*1024}
s_mul_i32 s44, s24, {5*1024}
s_add_u32 s43, s43, s44
s_add_u32 s43, s43, {XN}
v_lshlrev_b32 v4, 4, v1""")
    for p in range(5):
        if p == 4: a("s_add_u32 s43, s43, 4096")
        a(f"buffer_store_dwordx4 {vr(16+4*p)}, v4, s[4:7], s43 offen offset:{(p%4)*1024} sc1")
    a("s_waitcnt vmcnt(0)")
    a("s_barrier")
    a(f"""s_cmp_lg_u32 s24, 0
s_cbranch_scc1 GI_DONE
v_mov_b32 v10, 1
v_mov_b32 v11, {DB_INIT}
s_mov_b64 exec, 1
global_atomic_add v11, v10, s[76:77] sc1
s_mov_b64 exec, -1""")
    a.label("GI_DONE")

def wait_init(a, lbl):
    wait_dbg(a, lbl, 76, DB_INIT, 250, 251, 86, 88, thr=128)

def gen_main_kernel(name="main_kernel"):
    a = Asm()
    kernel_header(a, name)
    if OPT('STAMP', 0): a("s_memtime s[100:101]")
    a(f"""s_cmp_ge_u32 s2, 256
s_cbranch_scc1 MK_END
s_load_dwordx2 s[74:75], s[0:1], {KA['ws']}
s_load_dwordx2 s[76:77], s[0:1], {KA['dbg']}
s_getreg_b32 s78, hwreg(HW_REG_XCC_ID)
s_and_b32 s78, s78, 7
s_waitcnt lgkmcnt(0)""")
    srd(a, 4, 74, WS_SIZE)
    lane_setup(a, 1, 2, 3, 24)
    a(f"""s_cmp_lg_u32 s24, 0
s_cbranch_scc1 MK_NORANK
v_mov_b32 v10, 1
s_lshl_b32 s79, s78, 2
v_mov_b32 v11, s79
s_mov_b64 exec, 1
global_atomic_add v12, v11, v10, s[76:77] sc0 sc1
s_waitcnt vmcnt(0)
v_readfirstlane_b32 s79, v12
s_mov_b32 s80, s78
s_cmp_lt_u32 s79, 32
s_cbranch_scc1 MK_HAVE
v_mov_b32 v11, 32
global_atomic_add v12, v11, v10, s[76:77] sc0 sc1
s_waitcnt vmcnt(0)
v_readfirstlane_b32 s81, v12
s_mov_b64 exec, 0xff
v_lshlrev_b32 v11, 2, v1
s_mov_b32 s82, 0""")
    a.label("MK_OVW")
    a(f"""global_load_dword v12, v11, s[76:77] sc1
s_waitcnt vmcnt(0)
s_mov_b32 s83, 0""")
    for x in range(8):
        a(f"v_readlane_b32 s84, v12, {x}\ns_add_u32 s83, s83, s84")
    a(f"""s_cmp_ge_u32 s83, 256
s_cbranch_scc1 MK_OVK
s_sleep 8
s_add_u32 s82, s82, 1
s_cmp_lt_u32 s82, 0x200000
s_cbranch_scc1 MK_OVW""")
    a.label("MK_OVK")
    for x in range(8):
        a(f"""v_readlane_b32 s84, v12, {x}
s_min_u32 s84, s84, 32
s_sub_u32 s85, 32, s84
s_cmp_lt_u32 s81, s85
s_cbranch_scc0 MK_NX{x}
s_mov_b32 s80, {x}
s_add_u32 s79, s84, s81
s_branch MK_HAVE""")
        a.label(f"MK_NX{x}")
        a("s_sub_u32 s81, s81, s85")
    a("s_mov_b32 s80, 7\ns_mov_b32 s79, 31")
    a.label("MK_HAVE")
    a(f"""s_mov_b64 exec, 1
s_lshl_b32 s80, s80, 8
s_or_b32 s80, s80, s79
v_mov_b32 v12, s80
v_mov_b32 v11, 0
ds_write_b32 v11, v12
s_waitcnt lgkmcnt(0)
s_mov_b64 exec, -1""")
    a.label("MK_NORANK")
    a(f"""s_barrier
v_mov_b32 v11, 0
ds_read_b32 v12, v11
s_waitcnt lgkmcnt(0)
v_readfirstlane_b32 s79, v12
s_barrier
s_lshr_b32 s80, s79, 8
s_and_b32 s79, s79, 255
s_cmp_ge_u32 s80, 4
s_cbranch_scc1 MK_GEMM
s_lshl_b32 s{R.S_J}, s80, 5
s_add_u32 s{R.S_J}, s{R.S_J}, s79""")
    a(f"s_mov_b32 s97, s{R.S_J}")
    trace(a, 0, 97)
    R.INITWAIT[0] = True
    R.rec_entry(a)
    R.rec_dispatch(a, flags=True)
    a.label("MK_GEMM")
    a(f"""s_lshl_b32 s51, s79, 2
s_sub_u32 s80, s80, 4
s_add_u32 s51, s51, s80
s_mov_b32 s{P.S_WAVE}, s24
s_lshl_b32 s{P.S_PROG}, s51, {PSH}
s_add_u32 s{P.S_PROG}, s{P.S_PROG}, {F_PROG}
s_add_u32 s97, s51, 128""")
    trace(a, 0, 97)
    gemm_init(a)
    if OPT('DELAYW', 0):
        a(f"s_cmp_lt_u32 s51, {R_Q0}")
        a("s_cbranch_scc1 MK_NODLY")
        a(f"s_cmp_ge_u32 s51, {R_PROBE}")
        a("s_cbranch_scc1 MK_NODLY")
        n = OPT('DELAYW', 0)
        while n > 0:
            k = min(n, 127); a(f"s_sleep {k}"); n -= k
        a.label("MK_NODLY")
    a(f"""s_cmp_lt_u32 s51, {R_UP0}
s_cbranch_scc1 MK_QKV
s_cmp_lt_u32 s51, {R_DN0}
s_cbranch_scc1 MK_UP
s_cmp_lt_u32 s51, {R_U0}
s_cbranch_scc1 MK_DN
s_cmp_lt_u32 s51, {R_PROBE}
s_cbranch_scc1 MK_U
s_cmp_eq_u32 s51, {R_PROBE}
s_cbranch_scc0 MK_TOK""")
    R.probe(a, 24, 78, "MK_PR", 76)
    a("s_branch MK_TOK")
    a.label("MK_QKV")
    P.panel_role_setup(a, 'qkv', 51); P.emit_panel(a, 'qkv', 'MPQ', flags=True, init_hook=lambda: wait_init(a, "WI_Q"))
    a("s_branch MK_TOK")
    a.label("MK_UP")
    a(f"s_sub_u32 s51, s51, {R_UP0}")
    P.panel_role_setup(a, 'ffnup', 51); P.emit_panel(a, 'ffnup', 'MPU2', flags=True, init_hook=lambda: wait_init(a, "WI_U"))
    a("s_branch MK_TOK")
    a.label("MK_DN")
    a(f"s_sub_u32 s51, s51, {R_DN0}")
    P.panel_role_setup(a, 'down', 51); P.emit_panel(a, 'down', 'MPD', flags=True, init_hook=lambda: wait_init(a, "WI_D"))
    a("s_branch MK_TOK")
    a.label("MK_U")
    a(f"""s_sub_u32 s{T.US_H}, s51, {R_U0}
s_mov_b32 s{T.US_PROG}, s{P.S_PROG}
s_load_dwordx2 s[40:41], s[0:1], {KA['wo']}
s_waitcnt lgkmcnt(0)""")
    srd(a, T.US_WO, 40, H*E*D*2)
    T.emit_upanel(a, "MUP", flags=True, init_hook=lambda: wait_init(a, "WI_UP"))
    a.label("MK_TOK")
    trace(a, 3, 97)
    wait_init(a, "WI_T")
    a("s_barrier")
    tok_loop(a)
    a.label("MK_END")
    a("s_endpgm")
    return name, a.finalize(), kernel_desc(name, 512, 102, 256)
```

```python
from gen_common import *
import struct
def f2u(f): return struct.unpack('<I', struct.pack('<f', f))[0]

S_WS=4; S_W0=8; S_W1=12; S_X=16; S_WAVE=20; S_LB=21; S_COL=24; S_OUT=28; S_CNT=30; S_XG=31; S_WS_SLOT=32; S_T=33; S_RUN=34; S_T2=35; S_RSLOT=36; S_XRUN=37
V_LANE=1; V_G=2; V_N=3; V_GOFF=4; V_TR=5; V_T=6; V_L16=7; V_XA=8; V_XB=9; V_RING=10; V_ACC=26; V_EPI=58; V_GT=66; V_XO=90; V_XL=92; V_W=96

import os
OPT=lambda k,d: type(d)(os.environ.get(k,d))
S_PROG=52; S_DONE=53; S_CACHE=54; S_THR=55; S_W1T=56; S_W2T=57
V_PV=160; V_PZ=161; V_WA=162; V_WT=163; V_RP=164
def emit_panel(a, kind, pfx, sc1=True, ntiles=128, flags=False, init_hook=None):
    sc1 = OPT('SC1',1) and sc1
    SC = " sc1" if sc1 else ""
    if kind == 'down':
        KS, T, stride, perm = 48, 1, D*2, True
        xbase = HF
    elif kind == 'qkv':
        KS, T, stride, perm = 20, 4, H*E*2, False
        xbase = XN
    else:
        KS, T, stride, perm = 20, 4, F*2, False
        xbase = XN
    XT = KS*1024; n4 = KS//4; LOOK = OPT('LOOKD',3) if kind=='down' else OPT('LOOK',3)
    NR = 4 if LOOK<=3 else (LOOK+1 if KS%(LOOK+1)==0 else None)
    assert KS % NR == 0
    wreg = WReg(0, 256, V_W)
    RING0 = V_RING if NR==4 else 170
    if OPT('STAMP',0): a("s_memtime s[58:59]")
    a(f"s_lshl_b32 s{S_LB}, s{S_WAVE}, 15")
    if kind == 'qkv':
        units = [(S_W0, S_COL, p*32*stride) for p in range(KS)]
        load_w2(a, units, lambda u, T, k: wreg.pair(T*KS + u, k), 4, stride, perm, V_LANE, V_GOFF, V_TR, V_T, S_T, S_LB)
    elif kind == 'ffnup':
        units = []
        for p in range(KS): units += [(S_W0, S_COL, p*32*stride), (S_W1, S_COL+2, p*32*stride)]
        load_w2(a, units, lambda u, T, k: wreg.pair(((u & 1)*2 + T)*KS + (u >> 1), k), 2, stride, perm, V_LANE, V_GOFF, V_TR, V_T, S_T, S_LB)
    else:
        units = [(S_W0, S_COL, p*32*stride) for p in range(KS)]
        load_w2(a, units, lambda u, T, k: wreg.pair(u, k), 1, stride, perm, V_LANE, V_GOFF, V_TR, V_T, S_T, S_LB)
    def wq(T_, p): return wreg.quad(T_*KS + p)
    if flags: trace(a, 1, 97)
    if init_hook: init_hook()
    a("v_mov_b32 v165, 0x80000000")
    a("s_barrier")
    a(f"v_lshlrev_b32 v{V_L16}, 4, v{V_LANE}")
    a(f"s_mul_i32 s{S_T}, s{S_WAVE}, {n4*1024}")
    a(f"s_add_u32 s{S_XG}, s{S_T}, {xbase}")
    a(f"s_mov_b32 s{S_WS_SLOT}, s{S_T}")
    def dma():
        if flags and kind == 'down':
            a.uid += 1
            a(f"s_add_u32 s{S_THR}, s{S_THR}, 1")
            a(f"s_min_u32 s{S_W2T}, s{S_THR}, 128")
            wait_words(a, f"{pfx}_WH{a.uid}", S_WS, V_WA, V_WT, S_W2T, S_CACHE, 12, S_W1T, S_CNT+28)
        if flags and OPT('PACE', 0):
            a.uid += 1
            a(f"s_add_u32 s59, s59, 1")
            a(f"s_lshr_b32 s60, s59, 1")
            a(f"s_sub_u32 s60, s60, {OPT('LEAD', 6)}")
            a(f"s_cselect_b32 s60, 0, s60")
            a(f"s_min_u32 s60, s60, 63")
            wait_words(a, f"{pfx}_PC{a.uid}", S_WS, V_RP, V_WT, 60, 61, 1, S_W1T, S_CNT+28, sleep=16)
        k = 0
        while k < n4:
            a(f"s_add_u32 m0, s{S_WS_SLOT}, {k*1024}")
            a(f"s_add_u32 s{S_T}, s{S_XG}, {k*1024}")
            for j in range(min(4, n4-k)):
                a(f"buffer_load_dwordx4 v{V_L16}, s[{S_WS}:{S_WS+3}], s{S_T} offen offset:{j*1024} lds")
            k += 4
        a(f"s_add_u32 s{S_XG}, s{S_XG}, {XT}")
        a(f"s_add_u32 s{S_WS_SLOT}, s{S_WS_SLOT}, {XT}")
        a(f"s_sub_u32 s{S_T}, s{S_WS_SLOT}, {NSL*XT}")
        a(f"s_cmp_ge_u32 s{S_WS_SLOT}, {NSL*XT}")
        a(f"s_cselect_b32 s{S_WS_SLOT}, s{S_T}, s{S_WS_SLOT}")
    NSL = OPT('NSLD',3) if kind=='down' else OPT('NSL',3)
    assert NSL*XT <= 160*1024
    STAMP = OPT('STAMP',0) and not flags
    if STAMP: a("s_memtime s[60:61]")
    if flags:
        a(f"s_mov_b32 s{S_DONE}, 0")
        a(f"v_mov_b32 v{V_PZ}, 0")
        a(f"s_mov_b32 s{S_CACHE}, 0")
        a(f"s_mov_b32 s{S_THR}, 0")
        a("s_mov_b32 s59, 0")
        a("s_mov_b32 s61, 0")
        a(f"v_mov_b32 v{V_RP}, {F_RPROG}")
        if kind == 'down':
            a(f"v_min_u32 v{V_WA}, 11, v{V_LANE}")
            a(f"v_lshlrev_b32 v{V_WA}, {PSH}, v{V_WA}")
            a(f"v_add_u32 v{V_WA}, {F_PROG + (R_UP0 << PSH)}, v{V_WA}")
    for _ in range(NSL-1): dma()
    a(f"s_mov_b32 s{S_RSLOT}, {XT}")
    a(f"v_mov_b32 v{V_XA}, v{V_L16}")
    a(f"s_mov_b32 s{S_RUN}, 0")
    a(f"s_mov_b32 s{S_XRUN}, 0")
    if kind == 'ffnup':
        k = 2*0.7978845608028654*1.4426950408889634
        a(f"v_mov_b32 v{V_GT+16}, 0x{f2u(-k*0.044715):08x}")
        a(f"v_mov_b32 v{V_GT+17}, 0x{f2u(-k):08x}")
    if kind == 'down':
        a(f"v_mul_u32_u24 v{V_XO}, 1280, v{V_N}")
        a(f"v_lshlrev_b32 v{V_T}, 3, v{V_G}")
        a(f"v_add_u32 v{V_XO}, v{V_XO}, v{V_T}")
    a(f"s_waitcnt vmcnt({(NSL-2)*n4})")
    a("s_barrier")
    vx = [V_XA, V_XB]
    for pn in range(LOOK):
        a(f"ds_read_b128 {vr(RING0+4*(pn%NR))}, v{V_XA} offset:{pn*1024}")
    def epilogue(q, odd):
        ac = V_ACC + 16*q
        L = []
        if kind == 'qkv':
            for j in range(2):
                for r in range(4):
                    T_ = 2*j + (r >> 1)
                    L.append(f"v_cvt_pk_bf16_f32 v{V_EPI+4*j+r}, v{ac+4*T_+2*(r&1)}, v{ac+4*T_+2*(r&1)+1}")
                L.append(f"s_add_u32 s{S_T2}, s{S_RUN}, s{S_OUT+j}")
                L.append(f"buffer_store_dwordx4 {vr(V_EPI+4*j)}, v{V_L16 if not OPT('NOQST',0) else 165}, s[{S_WS}:{S_WS+3}], s{S_T2} offen{SC}")
            L.append(f"s_add_u32 s{S_RUN}, s{S_RUN}, {6144 if not odd else 384*1024-6144}")
        elif kind == 'ffnup':
            for e in range(8):
                g = ac + e; u = ac + 8 + e; t = V_GT + e
                L += [f"v_mul_f32 v{t}, v{g}, v{g}",
                      f"v_fma_f32 v{t}, v{t}, v{V_GT+16}, v{V_GT+17}",
                      f"v_mul_f32 v{t}, v{t}, v{g}",
                      f"v_exp_f32 v{t}, v{t}",
                      f"v_add_f32 v{t}, 1.0, v{t}",
                      f"v_rcp_f32 v{t}, v{t}",
                      f"v_mul_f32 v{V_GT+8+e}, v{g}, v{u}"]
            for e in range(8):
                L.append(f"v_mul_f32 v{V_GT+e}, v{V_GT+e}, v{V_GT+8+e}")
            for r in range(4):
                L.append(f"v_cvt_pk_bf16_f32 v{V_EPI+r}, v{V_GT+2*r}, v{V_GT+2*r+1}")
            L.append(f"s_add_u32 s{S_T2}, s{S_RUN}, s{S_OUT}")
            L.append(f"buffer_store_dwordx4 {vr(V_EPI)}, v{V_L16}, s[{S_WS}:{S_WS+3}], s{S_T2} offen{SC}")
            L.append(f"s_add_u32 s{S_RUN}, s{S_RUN}, {48*1024}")
        else:
            xl = V_XL + 2*q
            L.append(f"s_waitcnt vmcnt(XWAIT)")
            L += [f"v_lshlrev_b32 v{V_EPI}, 16, v{xl}", f"v_and_b32 v{V_EPI+1}, 0xffff0000, v{xl}",
                  f"v_lshlrev_b32 v{V_EPI+2}, 16, v{xl+1}", f"v_and_b32 v{V_EPI+3}, 0xffff0000, v{xl+1}"]
            for r in range(4):
                L.append(f"v_add_f32 v{V_EPI+r}, v{V_EPI+r}, v{ac+r}")
            L.append(f"s_add_u32 s{S_T2}, s{S_RUN}, s{S_OUT}")
            L.append(f"buffer_store_dwordx4 {vr(V_EPI)}, v{V_L16}, s[{S_WS}:{S_WS+3}], s{S_T2} offen{SC}")
            L.append(f"s_add_u32 s{S_RUN}, s{S_RUN}, {1024 if not odd else 80*1024-1024}")
        return L
    NST = {'qkv': 2, 'ffnup': 1, 'down': 1}[kind]
    NPUB = 1 if flags else 0
    def body(q, epi, tidx=None):
        ac = V_ACC + 16*q
        E_ = epilogue(1-q, odd=(1-q) == 1) if epi else []
        E_ = [x.replace('XWAIT', str(n4+1)) for x in E_]
        per = -(-len(E_) // (KS - 6)) if E_ else 0
        if kind == 'down':
            xl = V_XL + 2*q
            a(f"s_add_u32 s{S_T2}, s{S_XRUN}, s{S_OUT+1}")
            a(f"buffer_load_dwordx2 {vr(xl,2)}, v{V_XO}, s[{S_X}:{S_X+3}], s{S_T2} offen")
            a(f"s_add_u32 s{S_XRUN}, s{S_XRUN}, {16*1280}")
        for p in range(KS):
            pn = p + LOOK
            if pn == KS:
                per_tile_ld = 1 if kind == 'down' else 0
                ntl = NSL-2
                if tidx is None:
                    w = (NSL-3)*n4 + ntl*(NST+per_tile_ld)
                else:
                    ks = [k for k in range(tidx-ntl+1, tidx+1) if k >= 0]
                    w = (NSL-3)*n4 + sum((NST if k >= 1 else 0) + per_tile_ld for k in ks)
                assert NSL == 3 or not flags
                if flags and tidx != 0:
                    a.uid += 1
                    a(f"s_cmp_eq_u32 s{S_WAVE}, 0")
                    a(f"s_cbranch_scc1 {pfx}_SW{a.uid}")
                    a(f"s_waitcnt vmcnt({w})")
                    a(f"s_branch {pfx}_SX{a.uid}")
                    a.label(f"{pfx}_SW{a.uid}")
                    a(f"s_waitcnt vmcnt({w+1})")
                    a.label(f"{pfx}_SX{a.uid}")
                else:
                    a(f"s_waitcnt vmcnt({w})")
                a("s_barrier")
                a(f"v_add_u32 v{vx[1-q]}, s{S_RSLOT}, v{V_L16}")
                a(f"s_add_u32 s{S_RSLOT}, s{S_RSLOT}, {XT}")
                a(f"s_cmp_ge_u32 s{S_RSLOT}, {NSL*XT}")
                a(f"s_cselect_b32 s{S_RSLOT}, 0, s{S_RSLOT}")
                dma()
                if flags:
                    a.uid += 1
                    a(f"s_cmp_lg_u32 s{S_WAVE}, 0")
                    a(f"s_cbranch_scc1 {pfx}_NP{a.uid}")
                    publish_word(a, S_WS, V_PV, V_PZ, S_PROG, S_DONE)
                    a.label(f"{pfx}_NP{a.uid}")
                    if tidx != 0: a(f"s_add_u32 s{S_DONE}, s{S_DONE}, 1")
            if pn < KS:
                a(f"ds_read_b128 {vr(RING0+4*(pn%NR))}, v{vx[q]} offset:{pn*1024}")
            else:
                a(f"ds_read_b128 {vr(RING0+4*(pn%NR))}, v{vx[1-q]} offset:{(pn-KS)*1024}")
            a(f"s_waitcnt lgkmcnt({LOOK})")
            for T_ in range(T):
                c = "0" if p == 0 else vr(ac+4*T_)
                a(f"v_mfma_f32_16x16x32_bf16 {vr(ac+4*T_)}, {wq(T_,p)}, {vr(RING0+4*(p%NR))}, {c}")
            if p >= 2:
                for _ in range(per):
                    if E_: a(E_.pop(0))
        while E_: a(E_.pop(0))
    body(0, False, tidx=0)
    if flags:
        trace(a, 2, 97)
        if int(os.environ.get('TRACE', 0)):
            a("s_memtime s[86:87]\ns_waitcnt lgkmcnt(0)")
            trace(a, 6, 97, val=86)
    npeel = 0
    t = 1
    while t < NSL-1 or (t % 2 == 0):
        body(t % 2, True, tidx=t); t += 1
    a(f"s_mov_b32 s{S_CNT}, {(ntiles-1-t)//2}")
    lp = f"{pfx}_LOOP"
    a.label(lp)
    body(1, True)
    body(0, True)
    a(f"s_sub_u32 s{S_CNT}, s{S_CNT}, 1")
    a(f"s_cmp_lg_u32 s{S_CNT}, 0")
    a(f"s_cbranch_scc1 {lp}")
    body(1, True)
    a("s_nop 7")
    for x in epilogue(1, odd=True):
        a(x.replace('XWAIT', '0'))
    a("s_waitcnt vmcnt(0) lgkmcnt(0)")
    if flags:
        if int(os.environ.get('TRACE', 0)):
            trace(a, 5, 97)
            a("s_memtime s[86:87]\ns_waitcnt lgkmcnt(0)")
            trace(a, 7, 97, val=86)
        a("s_barrier")
        a(f"s_mov_b32 s{S_DONE}, {ntiles}")
        publish_word(a, S_WS, V_PV, V_PZ, S_PROG, S_DONE)
        a("s_waitcnt vmcnt(0)")
    if STAMP:
        a(f"""s_memtime s[62:63]
s_load_dwordx2 s[56:57], s[0:1], {KA['dbg']}
s_waitcnt lgkmcnt(0)
s_sub_u32 s60, s60, s58
s_sub_u32 s62, s62, s58
v_mov_b32 v10, s60
v_mov_b32 v11, s62
s_lshl_b32 s33, s2, 3
s_cmp_lt_u32 s2, 16
s_cselect_b32 s33, s33, 248
v_mov_b32 v12, s33
s_mov_b64 exec, 1
global_store_dwordx2 v12, v[10:11], s[56:57]
s_waitcnt vmcnt(0)""")

def panel_role_setup(a, kind, s_role):
    if kind == 'qkv':
        a(f"""s_mul_i32 s40, s{s_role}, 2731
s_lshr_b32 s40, s40, 16
s_mul_i32 s41, s40, 24
s_sub_u32 s41, s{s_role}, s41
s_mov_b32 s42, {KA['wk']}
s_cmp_eq_u32 s40, 1
s_cselect_b32 s42, {KA['wv']}, s42
s_cmp_eq_u32 s40, 2
s_cselect_b32 s42, {KA['wq']}, s42
s_add_u32 s44, s0, s42
s_addc_u32 s45, s1, 0
s_load_dwordx2 s[46:47], s[44:45], 0
s_mov_b32 s43, {KX}
s_cmp_eq_u32 s40, 1
s_cselect_b32 s43, {VX}, s43
s_cmp_eq_u32 s40, 2
s_cselect_b32 s43, {QX}, s43
s_waitcnt lgkmcnt(0)""")
        srd(a, S_W0, 46, D*H*E*2)
        srd(a, S_W1, 46, D*H*E*2)
        a(f"""s_lshl_b32 s48, s41, 8
s_lshl_b32 s49, s{S_WAVE}, 6
s_add_u32 s48, s48, s49
s_lshl_b32 s48, s48, 1
s_mov_b32 s{S_COL}, s48
s_add_u32 s{S_COL+1}, s48, 32
s_add_u32 s{S_COL+2}, s48, 64
s_add_u32 s{S_COL+3}, s48, 96""")
        for j in range(2):
            a(f"""s_lshl_b32 s48, s41, 3
s_lshl_b32 s49, s{S_WAVE}, 1
s_add_u32 s48, s48, s49
s_add_u32 s48, s48, {j}
s_mul_i32 s49, s48, 10923
s_lshr_b32 s49, s49, 16
s_mul_i32 s50, s49, 6
s_sub_u32 s50, s48, s50
s_mul_i32 s49, s49, 12
s_add_u32 s49, s49, s50
s_lshl_b32 s49, s49, 10
s_add_u32 s{S_OUT+j}, s49, s43""")
    elif kind == 'ffnup':
        a(f"""s_load_dwordx2 s[46:47], s[0:1], {KA['wg']}
s_load_dwordx2 s[48:49], s[0:1], {KA['wu']}
s_waitcnt lgkmcnt(0)""")
        srd(a, S_W0, 46, D*F*2)
        srd(a, S_W1, 48, D*F*2)
        a(f"""s_lshl_b32 s48, s{s_role}, 2
s_add_u32 s48, s48, s{S_WAVE}
s_lshl_b32 s49, s48, 6
s_mov_b32 s{S_COL}, s49
s_add_u32 s{S_COL+1}, s49, 32
s_mov_b32 s{S_COL+2}, s49
s_add_u32 s{S_COL+3}, s49, 32
s_lshl_b32 s49, s48, 10
s_add_u32 s{S_OUT}, s49, {HF}""")
    else:
        a(f"""s_load_dwordx2 s[46:47], s[0:1], {KA['wd']}
s_load_dwordx2 s[48:49], s[0:1], {KA['x']}
s_waitcnt lgkmcnt(0)""")
        srd(a, S_W0, 46, F*D*2)
        srd(a, S_X, 48, S*D*2)
        a(f"""s_lshl_b32 s48, s{s_role}, 2
s_add_u32 s48, s48, s{S_WAVE}
s_lshl_b32 s{S_COL}, s48, 5
s_mov_b32 s{S_OUT+1}, s{S_COL}
s_lshl_b32 s49, s48, 11
s_add_u32 s{S_OUT}, s49, {BASE}""")

def gen_panel_kernel():
    a = Asm(); name = "panel_kernel"
    kernel_header(a, name)
    a(f"""s_cmp_ge_u32 s2, 84
s_cbranch_scc1 PK_END
s_load_dwordx2 s[38:39], s[0:1], {KA['ws']}
s_waitcnt lgkmcnt(0)""")
    srd(a, S_WS, 38, WS_SIZE)
    lane_setup(a, V_LANE, V_G, V_N, S_WAVE)
    a("s_cmp_ge_u32 s2, 72\ns_cbranch_scc1 PK_UP")
    a("s_mov_b32 s51, s2")
    panel_role_setup(a, 'qkv', 51)
    emit_panel(a, 'qkv', 'PKQ')
    a("s_endpgm")
    a.label("PK_UP")
    a("s_sub_u32 s51, s2, 72")
    panel_role_setup(a, 'ffnup', 51)
    emit_panel(a, 'ffnup', 'PKU')
    a.label("PK_END")
    a("s_endpgm")
    return name, a.finalize(), kernel_desc(name, 512, 64, 256)

def gen_down_kernel():
    a = Asm(); name = "down_kernel"
    kernel_header(a, name)
    a(f"""s_cmp_ge_u32 s2, 10
s_cbranch_scc1 DK_END
s_load_dwordx2 s[38:39], s[0:1], {KA['ws']}
s_waitcnt lgkmcnt(0)""")
    srd(a, S_WS, 38, WS_SIZE)
    lane_setup(a, V_LANE, V_G, V_N, S_WAVE)
    a("s_mov_b32 s51, s2")
    panel_role_setup(a, 'down', 51)
    emit_panel(a, 'down', 'PKD')
    a.label("DK_END")
    a("s_endpgm")
    return name, a.finalize(), kernel_desc(name, 512, 64, 256)
```

```python
from gen_common import *
import struct, os
OPT=lambda k,d: type(d)(os.environ.get(k,d))
def f2u(f): return struct.unpack('<I', struct.pack('<f', f))[0]

S_WS=4; S_WQ=8; S_WK=12; S_WV=16; S_WO=20
S_WAVE=24; S_H=25; S_C=26; S_J=27; S_STEP=28
S_P=29; S_CUR=30; S_N=31; S_NN=32
S_HI32=20
S_MQ=16
S_M8=34; S_H8=38
S_T=40; S_T2=41; S_T3=42; S_RETRY=43
S_KVG=44; S_UXG=45; S_UYG=46; S_KMG=47; S_RSB=48; S_KVL=49; S_KVR=50; S_RED=51; S_RSP=52; S_FLG=53
S_LB=54
S_COL=56
S_SCALE=60; S_MAXR=61
S_TS=62
S_M0=88
S_MODE=57
S_REF0=98
S_REF2=36
S_NOW=58
L_MEM=0; L_QKV=10240; L_KV=20480; KVB=24576
LDS_REC=131072
V_LANE=1; V_G=2; V_N=3; V_T=4; V_T2=5; V_L16=6
V_AGO=7; V_AGL=10; V_MRD=11; V_AST=12; V_KMS=15; V_APO=16; V_APL=19
V_RQ=20; V_IDX=21; V_RV=22; V_RSO=28; V_L4=29; V_AGS=30; V_ZERO=31
V_RSP=80
V_NINF=248; V_KVA=249
V_POLL=32; V_RING=48; V_ACC=88; V_PK=252; V_KXF=100; V_QF=148; V_KF=172; V_VF=196; V_S=220; V_UXF=232
V_Y=48; V_PU=64; V_UA=48; V_YF=220; V_SM=148
NT = [4, 4, 2]; T0 = [0, 4, 8]; P0 = [0, 2, 4]
KVX = L_KV ^ (L_KV+KVB)

def poll_check(a, regs, vt):
    r = list(regs)
    a(f"v_max3_u32 v{vt}, v{r[0]}, v{r[1]}, v{r[2]}")
    i = 3
    while i < len(r):
        if i + 1 < len(r):
            a(f"v_max3_u32 v{vt}, v{vt}, v{r[i]}, v{r[i+1]}"); i += 2
        else:
            a(f"v_max_u32 v{vt}, v{vt}, v{r[i]}"); i += 1
    a(f"v_cmp_eq_u32 vcc, -1, v{vt}")

def sleep(a, n):
    while n > 0:
        k = min(n, 127); a(f"s_sleep {k}"); n -= k

def mark(a, reg):
    a(f"s_memtime s[{reg}:{reg+1}]")

def wait_until(a, ref, delta):
    if delta <= 0: return
    a.uid += 1
    L = f"WU_{a.uid}"
    a.label(L)
    a(f"""s_memtime s[{S_NOW}:{S_NOW+1}]
s_waitcnt lgkmcnt(0)
s_sub_u32 s{S_NOW}, s{S_NOW}, s{ref}
s_cmp_ge_u32 s{S_NOW}, {delta}
s_cbranch_scc1 {L}_D
s_sub_u32 s{S_NOW}, {delta}, s{S_NOW}
s_cmp_lt_u32 s{S_NOW}, 96
s_cbranch_scc1 {L}
s_sleep 1
s_branch {L}""")
    a.label(f"{L}_D")

def stamp(a, idx):
    if OPT('STAMP', 0):
        a(f"s_memtime s[{S_TS+2*idx}:{S_TS+2*idx+1}]")

def racc(a, k):
    if OPT('STAMP', 0): a(f"s_add_u32 s{k}, s{k}, s{S_RETRY}")

def nearmap_v(a, v, vt):
    a(f"""v_lshrrev_b32 v{vt}, 13, v{v}
v_lshlrev_b32 v{vt}, 14, v{vt}
v_and_b32 v{v}, 0x1fff, v{v}
v_or_b32 v{v}, v{v}, v{vt}""")

def oob_mask(a, v, nlanes):
    a(f"""v_mov_b32 v{V_T}, 0x80000000
v_cmp_gt_u32 vcc, {nlanes}, v{V_LANE}
v_cndmask_b32 v{v}, v{V_T}, v{v}, vcc""")

V_AGB=48
def poll_loop(a, lbl, loads, nreg, acc, pre_issued=False, base=None):
    a(f"s_mov_b32 s{S_RETRY}, 0")
    if pre_issued:
        a(f"s_branch {lbl}_W")
    a.label(lbl)
    for x in loads: a(x)
    if pre_issued: a.label(f"{lbl}_W")
    a("s_waitcnt vmcnt(0)")
    b0 = V_POLL if base is None else base
    poll_check(a, range(b0, b0+nreg), V_T)
    a(f"""s_cbranch_vccz {lbl}_OK
s_add_u32 s{S_RETRY}, s{S_RETRY}, 1
s_cmp_lt_u32 s{S_RETRY}, s{S_MAXR}
s_cbranch_scc1 {lbl}
s_mov_b32 s{S_MAXR}, 0""")
    a.label(f"{lbl}_OK")
    racc(a, acc)

CURMODE = [None]
INITWAIT = [False]
def store_mode(a, lines):
    if CURMODE[0] is not None:
        for x in lines: a(x.replace(' SCX', '' if CURMODE[0] else ' sc1'))
        return
    if OPT('AFAST', 1) == 0:
        for x in lines: a(x.replace(' SCX', ' sc1'))
        return
    a.uid += 1
    L = f"SM_{a.uid}"
    a(f"s_cmp_eq_u32 s{S_MODE}, 0")
    a(f"s_cbranch_scc1 {L}_S")
    for x in lines: a(x.replace(' SCX', ''))
    a(f"s_branch {L}_E")
    a.label(f"{L}_S")
    for x in lines: a(x.replace(' SCX', ' sc1'))
    a.label(f"{L}_E")

def wait_mode(a, ref, fast, slow):
    if CURMODE[0] is not None:
        wait_until(a, ref, fast if CURMODE[0] else slow); return
    if OPT('AFAST', 1) == 0:
        wait_until(a, ref, slow); return
    a.uid += 1
    L = f"WM_{a.uid}"
    a(f"s_cmp_eq_u32 s{S_MODE}, 0")
    a(f"s_cbranch_scc1 {L}_S")
    wait_until(a, ref, fast)
    a(f"s_branch {L}_E")
    a.label(f"{L}_S")
    wait_until(a, ref, slow)
    a.label(f"{L}_E")

def ag_poll(a, pfx, w):
    wait_until(a, S_REF2, OPT('T_AG', 650))
    base = (w-2)*5
    loads = []
    for k in range(5):
        kk = base + k
        reg = V_AGO + (0 if kk < 4 else 1 if kk < 8 else 2)
        off = (kk % 4)*1024 if kk < 8 else (kk-8)*1024
        loads.append(f"buffer_load_dwordx4 {vr(V_AGB+4*k)}, v{reg}, s[{S_WS}:{S_WS+3}], s{S_P} offen offset:{off} sc1")
    global V_POLL_CUR
    poll_loop(a, f"{pfx}_AGP", loads, 20, 92, base=V_AGB)
    for k in range(5):
        a(f"ds_write_b128 v{V_L16}, {vr(V_AGB+4*k)} offset:{L_MEM + (base+k)*1024}")

def rotate_slots(a):
    a(f"""s_mov_b32 s{S_T}, s{S_P}
s_mov_b32 s{S_P}, s{S_CUR}
s_mov_b32 s{S_CUR}, s{S_N}
s_mov_b32 s{S_N}, s{S_NN}
s_mov_b32 s{S_NN}, s{S_T}""")

def proj_stage(a, ntile, w8):
    for K in range(10):
        a(f"ds_read_b128 {vr(V_RING+4*K)}, v{V_L16} offset:{L_MEM + K*1024}")
    for t in range(ntile):
        for r in range(4): a(f"v_mov_b32 v{V_ACC+4*t+r}, 0")
    for K in range(10):
        a(f"s_waitcnt lgkmcnt({9-K})")
        for t in range(ntile):
            a(f"v_smfmac_f32_16x16x64_bf16 {vr(V_ACC+4*t)}, {vr(V_RING+4*K)}, {w8(t,K)}, v{V_IDX}")

def pack_pair(x, y, pk):
    L = [f"v_permlane32_swap_b32 v{x+r}, v{y+r}" for r in range(4)]
    L += [f"v_add_f32 v{x+r}, v{x+r}, v{y+r}" for r in range(4)]
    L += [f"v_cvt_pk_bf16_f32 v{pk}, v{x}, v{x+1}", f"v_cvt_pk_bf16_f32 v{pk+1}, v{x+2}, v{x+3}"]
    return L

def idle_phase(a, w, woq):
    nt = NT[w]
    a(f"v_add_u32 v{V_T}, s{S_KVR}, v{V_L16}")
    for f in range(12):
        a(f"ds_read_b128 {vr(V_QF+4*f)}, v{V_T} offset:{12288 + f*1024}")
        if f == 7: a("s_waitcnt lgkmcnt(4)")
    a("s_waitcnt lgkmcnt(0)")
    for f in range(12):
        a(f"ds_read_b128 {vr(V_KXF+4*f)}, v{V_T} offset:{f*1024}")
    for p in range(6):
        for t in range(nt):
            for tt in range(2):
                d = V_UA + 8*t + 4*tt
                c = "0" if p == 0 else vr(d)
                a(f"v_mfma_f32_16x16x32_bf16 {vr(d)}, {vr(V_QF+4*(tt*6+p))}, {woq(t,p)}, {c}")
    for t in range(nt):
        for k in range(4):
            tt = k >> 1
            d = V_UA + 8*t + 4*tt + 2*(k & 1)
            a(f"v_cvt_pk_bf16_f32 v{V_UXF+4*t+k}, v{d}, v{d+1}")
        a(f"s_add_u32 s{S_T}, s{S_UXG}, {t*1024}")
        if OPT('UXST', 0): a(f"buffer_store_dwordx4 {vr(V_UXF+4*t)}, v{V_L16}, s[{S_WS}:{S_WS+3}], s{S_T} offen sc1")
    a(f"s_add_u32 s{S_UXG}, s{S_UXG}, {32*40*1024}")
    a("s_waitcnt lgkmcnt(0)")
    a(f"s_xor_b32 s{S_KVR}, s{S_KVR}, {KVX}")

S_KVT=33
S_KVC=21
def kv_dma(a, flags=False, pfx='', w=0):
    if w < 2:
        if flags:
            a.uid += 1
            a(f"s_add_u32 s{S_KVT}, s{S_KVT}, 2")
            a(f"s_min_u32 s{S_T3}, s{S_KVT}, 128")
            wait_words(a, f"{pfx}_WKV{a.uid}", S_WS, V_KVA, V_T, S_T3, 22, 4, S_T2, 23)
        for k in range(3):
            a(f"s_add_u32 m0, s{S_KVL}, {w*12288 + k*4096}")
            a(f"s_add_u32 s{S_T}, s{S_KVG}, {k*4096}")
            for j in range(4):
                a(f"buffer_load_dwordx4 v{V_L16}, s[{S_WS}:{S_WS+3}], s{S_T} offen offset:{j*1024} sc1 lds")
        a(f"s_add_u32 s{S_KVG}, s{S_KVG}, {32*12288}")
    a(f"s_xor_b32 s{S_KVL}, s{S_KVL}, {KVX}")

def softmax_lists():
    X = V_SM; MX = V_SM+6; TM = V_SM+7; RS_ = V_SM+8; PT = V_SM+12; PM = V_SM+10; T2 = V_SM+16
    L = []
    for r in range(4): L.append(f"v_cndmask_b32 v{X+r}, v{V_S+4+r}, v{V_S+8+r}, s[{S_H8}:{S_H8+1}]")
    L.append(f"v_cndmask_b32 v{X+4}, v{V_S}, v{V_S+2}, s[{S_H8}:{S_H8+1}]")
    L.append(f"v_cndmask_b32 v{X+5}, v{V_S+1}, v{V_S+3}, s[{S_H8}:{S_H8+1}]")
    L.append(f"v_max3_f32 v{MX}, v{X}, v{X+1}, v{X+2}")
    L.append(f"v_max3_f32 v{TM}, v{X+3}, v{X+4}, v{X+5}")
    L.append(f"v_max_f32 v{MX}, v{MX}, v{TM}")
    L.append(f"v_max_f32_dpp v{MX}, v{MX}, v{MX} row_ror:8 row_mask:0xf bank_mask:0xf")
    L += [f"v_mov_b32 v{TM}, v{MX}", f"v_permlane16_swap_b32 v{MX}, v{TM}", f"v_max_f32 v{MX}, v{MX}, v{TM}"]
    L += [f"v_mov_b32 v{TM}, v{MX}", f"v_permlane32_swap_b32 v{MX}, v{TM}", f"v_max_f32 v{MX}, v{MX}, v{TM}"]
    L.append(f"v_mul_f32 v{MX}, s{S_SCALE}, v{MX}")
    for j in range(6): L.append(f"v_fma_f32 v{X+j}, v{X+j}, s{S_SCALE}, -v{MX}")
    for j in range(6): L.append(f"v_exp_f32 v{X+j}, v{X+j}")
    L.append(f"v_cvt_pk_bf16_f32 v{PT}, v{X}, v{X+1}")
    L.append(f"v_cvt_pk_bf16_f32 v{PT+1}, v{X+2}, v{X+3}")
    L.append(f"v_cvt_pk_bf16_f32 v{PM}, v{X+4}, v{X+5}")
    L.append(f"v_mov_b32_dpp v{PT+2}, v{PT} row_ror:8 row_mask:0xf bank_mask:0xf")
    L.append(f"v_mov_b32_dpp v{PT+3}, v{PT+1} row_ror:8 row_mask:0xf bank_mask:0xf")
    L.append(f"v_mov_b32_dpp v{PM+1}, v{PM} row_ror:8 row_mask:0xf bank_mask:0xf")
    M = [f"v_cndmask_b32 v{X+4}, v{X+4}, v{V_ZERO}, s[{S_HI32}:{S_HI32+1}]",
         f"v_cndmask_b32 v{X+5}, v{X+5}, v{V_ZERO}, s[{S_HI32}:{S_HI32+1}]",
         f"v_add_f32 v{RS_}, v{X}, v{X+1}", f"v_add_f32 v{TM}, v{X+2}, v{X+3}", f"v_add_f32 v{RS_+1}, v{X+4}, v{X+5}",
         f"v_add_f32 v{RS_}, v{RS_}, v{TM}", f"v_add_f32 v{RS_}, v{RS_}, v{RS_+1}",
         f"v_add_f32_dpp v{RS_}, v{RS_}, v{RS_} row_ror:8 row_mask:0xf bank_mask:0xf",
         f"v_mov_b32 v{TM}, v{RS_}", f"v_permlane16_swap_b32 v{RS_}, v{TM}", f"v_add_f32 v{RS_}, v{RS_}, v{TM}",
         f"v_mov_b32 v{TM}, v{RS_}", f"v_permlane32_swap_b32 v{RS_}, v{TM}", f"v_add_f32 v{RS_}, v{RS_}, v{TM}",
         f"v_rcp_f32 v{RS_}, v{RS_}"]
    return PT, PM, RS_, L, M

def gi(a, v):
    a(f"""v_lshlrev_b32 v{v}, 7, v{V_G}
v_and_b32 v{V_T}, 7, v{V_LANE}
v_lshlrev_b32 v{V_T}, 4, v{V_T}
v_add_u32 v{v}, v{v}, v{V_T}""")

def rs_lane(a, v):
    a(f"""v_lshrrev_b32 v{v}, 1, v{V_G}
v_lshlrev_b32 v{v}, 14, v{v}
v_and_b32 v{V_T}, 1, v{V_G}
v_lshlrev_b32 v{V_T}, 12, v{V_T}
v_add_u32 v{v}, v{v}, v{V_T}
v_and_b32 v{V_T}, 7, v{V_LANE}
v_lshlrev_b32 v{V_T}, 4, v{V_T}
v_add_u32 v{v}, v{v}, v{V_T}
s_lshl_b32 s{S_T}, s{S_H}, 7
v_add_u32 v{v}, s{S_T}, v{v}""")

def main_wave(a, w, flags=False):
    pfx = f"RM{w}"
    nt = NT[w]
    wreg = WReg(0, 256, 0)
    w8 = lambda t, K: ar((t*20 + 2*K)*4, 8)
    woq = lambda t, p: wreg.quad(40 + t*6 + p)
    a(f"s_lshl_b32 s{S_LB}, s{S_WAVE}, 15")
    a(f"""s_mul_i32 s{S_COL}, s{S_H}, 384
s_mul_i32 s{S_T}, s{S_C}, 96
s_add_u32 s{S_COL}, s{S_COL}, s{S_T}
s_add_u32 s{S_COL}, s{S_COL}, {w*32}""")
    units = []
    for p in range(20): units += [(S_WQ, S_COL, p*32*H*E*2), (S_WK, S_COL, p*32*H*E*2)]
    load_w2(a, units, lambda u, T, k: wreg.pair((u & 1)*20 + (u >> 1), k), 1, H*E*2, 2, V_LANE, V_POLL, V_POLL+1, V_T, S_T, S_LB)
    a(f"""s_mul_i32 s{S_COL}, s{S_H}, {192*1280}
s_mul_i32 s{S_T}, s{S_C}, 320
s_add_u32 s{S_COL}, s{S_COL}, s{S_T}
s_add_u32 s{S_COL}, s{S_COL}, {T0[w]*32}""")
    ng = nt//2
    units = [(S_WO, S_COL, g*64 + p*32*1280) for p in range(6) for g in range(ng)]
    load_w2(a, units, lambda u, T, k: wreg.pair(40 + ((u % ng)*2 + T)*6 + u // ng, k), 2, D*2, True, V_LANE, V_POLL, V_POLL+1, V_T, S_T, S_LB)
    if OPT('STAMP', 0): a("s_memtime s[78:79]\ns_waitcnt lgkmcnt(0)\ns_sub_u32 s95, s78, s100")
    common_setup(a, w)
    gi(a, V_KMS)
    a(f"v_add_u32 v{V_KMS}, {w*1024}, v{V_KMS}")
    a(f"""v_lshrrev_b32 v{V_AST}, 1, v{V_G}
v_mul_u32_u24 v{V_AST}, 3072, v{V_AST}
v_lshlrev_b32 v{V_T}, 4, v{V_N}
v_add_u32 v{V_AST}, v{V_AST}, v{V_T}
v_and_b32 v{V_T}, 1, v{V_G}
v_lshlrev_b32 v{V_T}, 3, v{V_T}
v_add_u32 v{V_AST}, v{V_AST}, v{V_T}
s_mul_i32 s{S_T}, s{S_C}, 3
s_add_u32 s{S_T}, s{S_T}, {w}
s_lshl_b32 s{S_T}, s{S_T}, 8
s_mul_i32 s{S_T2}, s{S_H}, 9216
s_add_u32 s{S_T}, s{S_T}, s{S_T2}
v_add_u32 v{V_AST}, s{S_T}, v{V_AST}""")
    nearmap_v(a, V_AST, V_T)
    a(f"""s_add_u32 s{S_T}, s{S_T2}, {w*2048}
v_add_u32 v{V_APO}, s{S_T}, v{V_L16}
v_add_u32 v{V_APO+1}, 1024, v{V_APO}
v_add_u32 v{V_APL}, {L_QKV + w*2048}, v{V_L16}""")
    nearmap_v(a, V_APO, V_T); nearmap_v(a, V_APO+1, V_T)
    a(f"""v_lshlrev_b32 v{V_RQ}, 2, v{V_G}
v_bfe_u32 v{V_T}, v{V_LANE}, 2, 2
v_add_u32 v{V_RQ}, v{V_RQ}, v{V_T}
v_lshlrev_b32 v{V_RQ}, 4, v{V_RQ}
v_and_b32 v{V_T}, 1, v{V_LANE}
v_lshlrev_b32 v{V_T}, 3, v{V_T}
v_add_u32 v{V_RQ}, v{V_RQ}, v{V_T}
v_add_u32 v{V_RQ}, {L_QKV}, v{V_RQ}""")
    a(f"""v_bfe_u32 v{V_RV}, v{V_LANE}, 5, 1
v_lshlrev_b32 v{V_RV}, 5, v{V_RV}
v_bfe_u32 v{V_T}, v{V_LANE}, 4, 1
v_lshlrev_b32 v{V_T}, 3, v{V_T}
v_add_u32 v{V_RV}, v{V_RV}, v{V_T}
v_bfe_u32 v{V_T}, v{V_LANE}, 2, 1
v_add_u32 v{V_RV}, v{V_RV}, v{V_T}
v_bfe_u32 v{V_T}, v{V_LANE}, 3, 1
v_lshlrev_b32 v{V_T}, 4, v{V_T}
v_add_u32 v{V_RV}, v{V_RV}, v{V_T}
v_bfe_u32 v{V_T}, v{V_LANE}, 1, 1
v_lshlrev_b32 v{V_T}, 1, v{V_T}
v_add_u32 v{V_RV}, v{V_RV}, v{V_T}
v_lshlrev_b32 v{V_RV}, 4, v{V_RV}
v_and_b32 v{V_T}, 1, v{V_LANE}
v_lshlrev_b32 v{V_T}, 3, v{V_T}
v_add_u32 v{V_RV}, v{V_RV}, v{V_T}
v_add_u32 v{V_RV}, {L_QKV+6144}, v{V_RV}""")
    rs_lane(a, V_RSO)
    a(f"""s_mul_i32 s{S_RSB}, s{S_C}, {5*32768}
s_add_u32 s{S_RSB}, s{S_RSB}, {nearmap(RS_LOG) + P0[w]*32768}
s_mul_i32 s{S_T}, s{S_H}, 12288
s_add_u32 s{S_KVG}, s{S_T}, {KX if w == 0 else VX}
s_mul_i32 s{S_T}, s{S_H}, 40
s_mul_i32 s{S_T2}, s{S_C}, 10
s_add_u32 s{S_T}, s{S_T}, s{S_T2}
s_add_u32 s{S_T}, s{S_T}, {T0[w]}
s_lshl_b32 s{S_UXG}, s{S_T}, 10
s_add_u32 s{S_UXG}, s{S_UXG}, {UX}
s_lshl_b32 s{S_UYG}, s{S_T}, 8
s_add_u32 s{S_UYG}, s{S_UYG}, {UY}
s_mul_i32 s{S_KMG}, s{S_H}, 3072
s_add_u32 s{S_KMG}, s{S_KMG}, {KM}
s_mov_b32 s{S_KVL}, {L_KV}
s_mov_b32 s{S_KVR}, {L_KV}
s_lshl_b32 s{S_FLG}, s{S_J}, 7
s_add_u32 s{S_FLG}, s{S_FLG}, {F_REC}""")
    if flags:
        a(f"""s_mul_i32 s{S_T}, s{S_H}, 6
s_lshr_b32 s{S_T2}, s{S_T}, 3
s_add_u32 s{S_T}, s{S_T}, 5
s_lshr_b32 s{S_T}, s{S_T}, 3
v_mov_b32 v{V_KVA}, s{S_T}
v_mov_b32 v{V_T}, s{S_T2}
v_and_b32 v{V_T2}, 1, v{V_LANE}
v_cmp_eq_u32 vcc, 0, v{V_T2}
v_cndmask_b32 v{V_KVA}, v{V_KVA}, v{V_T}, vcc
v_cmp_lt_u32 vcc, 1, v{V_LANE}
v_mov_b32 v{V_T}, {R_V0}
v_cndmask_b32 v{V_T}, 0, v{V_T}, vcc
v_add_u32 v{V_KVA}, v{V_KVA}, v{V_T}
v_lshlrev_b32 v{V_KVA}, {PSH}, v{V_KVA}
v_add_u32 v{V_KVA}, {F_PROG}, v{V_KVA}
s_mov_b32 s{S_KVT}, 0
s_mov_b32 s22, 0""")
    if flags and w == 0: trace(a, 1, S_J)
    read_polarity(a, pfx)
    if flags and w == 0: trace(a, 2, S_J)
    a("s_barrier")
    mem0_stage(a, w)
    kv_dma(a, flags, pfx, w)
    if flags and w == 0: trace(a, 3, S_J)
    a("s_waitcnt vmcnt(0) lgkmcnt(0)")
    a("s_barrier")
    idle_phase(a, w, woq)
    kv_dma(a, flags, pfx, w)
    if flags and w == 0:
        trace(a, 4, S_J)
        if int(os.environ.get('TRACE', 0)):
            a("s_memtime s[86:87]\ns_waitcnt lgkmcnt(0)")
            trace(a, 6, S_J, val=86)
    stamp(a, 0)
    if OPT('STAMP', 0): a(f"s_waitcnt lgkmcnt(0)\ns_sub_u32 s101, s{S_TS}, s100")
    pfx0 = pfx
    a(f"s_cmp_eq_u32 s{S_MODE}, 0")
    a(f"s_cbranch_scc1 {pfx0}S_B0")
    a(f"s_branch {pfx0}F_B0")
    for mode in (1, 0):
        CURMODE[0] = mode
        pfx = pfx0 + ("F" if mode else "S")
        main_loop(a, w, flags, pfx, nt, w8, woq)
    CURMODE[0] = None

def main_loop(a, w, flags, pfx, nt, w8, woq):
    wo8 = lambda t, K: ar((40 + t*6 + 2*K)*4, 8)
    a.label(f"{pfx}_LOOP")
    stamp(a, 0)
    if w == 2: ag_poll(a, pfx, w)
    a.label(f"{pfx}_B0")
    a("s_waitcnt lgkmcnt(0)")
    a("s_barrier")
    mark(a, S_REF0)
    stamp(a, 1)
    proj_stage(a, 2, w8)
    for x in pack_pair(V_ACC, V_ACC+4, V_PK): a(x)
    store_mode(a, [f"buffer_store_dwordx2 {vr(V_PK,2)}, v{V_AST}, s[{S_WS}:{S_WS+3}], s{S_CUR} offen SCX"])
    stamp(a, 2)
    for t in range(nt):
        for r in range(4): a(f"v_mov_b32 v{V_Y+4*t+r}, 0")
    wait_mode(a, S_REF0, OPT('T_AF', 0), OPT('T_A', 1150))
    loads = [f"buffer_load_dwordx4 {vr(V_POLL+4*k)}, v{V_APO+k}, s[{S_WS}:{S_WS+3}], s{S_CUR} offen sc1" for k in range(2)]
    poll_loop(a, f"{pfx}_AP", loads, 8, 93)
    a(f"ds_write_b128 v{V_APL}, {vr(V_POLL)}")
    a(f"ds_write_b128 v{V_APL}, {vr(V_POLL+4)} offset:1024")
    a("s_waitcnt lgkmcnt(0)")
    stamp(a, 3)
    a("s_barrier")
    stamp(a, 4)
    reads = []
    for p in range(6):
        for (reg, typ) in ((V_QF, 0), (V_KF, 1)):
            for k in range(2):
                reads.append(f"ds_read_b64_tr_b16 {vr(reg+4*p+2*k,2)}, v{V_RQ} offset:{typ*3072 + (2*p+k)*256}")
    vreads = [f"ds_read_b64_tr_b16 {vr(V_VF+4*K+2*k,2)}, v{V_RV} offset:{K*1024 + k*64}" for K in range(3) for k in range(2)]
    TWOB = OPT('TWOB', 1)
    if not TWOB: reads += vreads
    issued = 0
    def iss(n):
        nonlocal issued
        for _ in range(n):
            if issued < len(reads): a(reads[issued]); issued += 1
    iss(12)
    for p in range(6):
        a(f"s_waitcnt lgkmcnt({issued - (4*p+4)})")
        for u, A_ in enumerate((vr(V_KXF+4*p), vr(V_KXF+4*(6+p)), vr(V_KF+4*p))):
            d = V_S + (4 if u == 0 else 8 if u == 1 else 0)
            c = "0" if p == 0 else vr(d)
            a(f"v_mfma_f32_16x16x32_bf16 {vr(d)}, {A_}, {vr(V_QF+4*p)}, {c}")
        iss(4)
    if TWOB:
        a("s_barrier")
        for x in vreads: a(x)
    stamp(a, 5)
    ym = []
    for K in range(3):
        for t in range(nt):
            pre = f"s_waitcnt lgkmcnt({6 - (2*K + 2)})\n" if t == 0 else ""
            ym.append(pre + f"v_smfmac_f32_16x16x64_bf16 {vr(V_Y+4*t)}, {vr(V_VF+4*K)}, {wo8(t,K)}, v{V_IDX}")
    PT, PM, RS_, L1, L2 = softmax_lists()
    yc = [f"v_cvt_pk_bf16_f32 v{V_YF+2*t+k}, v{V_Y+4*t+2*k}, v{V_Y+4*t+2*k+1}" for t in range(nt) for k in range(2)]
    step = max(1, (len(L1)-6) // len(ym))
    for i, x in enumerate(L1):
        if ym and i >= 2 and (i-2) % step == 0: a(ym.pop(0))
        a(x)
    while ym: a(ym.pop(0))
    for t in range(nt):
        a(f"v_mfma_f32_16x16x32_bf16 {vr(V_PU+4*t)}, {vr(V_UXF+4*t)}, {vr(PT)}, 0")
        for _ in range(2):
            if yc: a(yc.pop(0))
    for t in range(nt):
        a(f"v_mfma_f32_16x16x16_bf16 {vr(V_PU+4*t)}, {vr(V_YF+2*t,2)}, {vr(PM,2)}, {vr(V_PU+4*t)}")
        for _ in range(4):
            if L2: a(L2.pop(0))
    while L2: a(L2.pop(0))
    a(f"v_mov_b32 v{RS_+1}, v{RS_}")
    for t in range(nt):
        for r in range(0, 4, 2): a(f"v_pk_mul_f32 {vr(V_PU+4*t+r,2)}, {vr(V_PU+4*t+r,2)}, {vr(RS_,2)}")
    for t in range(nt):
        a(f"v_cvt_pk_bf16_f32 v{V_RSP+2*t}, v{V_PU+4*t}, v{V_PU+4*t+1}")
        a(f"v_cvt_pk_bf16_f32 v{V_RSP+2*t+1}, v{V_PU+4*t+2}, v{V_PU+4*t+3}")
    a(f"s_add_u32 s{S_T}, s{S_CUR}, s{S_RSB}")
    a(f"s_mov_b64 exec, s[{S_M8}:{S_M8+1}]")
    for P in range(nt//2):
        if P > 0: a(f"s_add_u32 s{S_T}, s{S_T}, 32768")
        a(f"buffer_store_dwordx4 {vr(V_RSP+4*P)}, v{V_RSO}, s[{S_WS}:{S_WS+3}], s{S_T} offen sc1")
    stamp(a, 6)
    a("s_mov_b64 exec, -1")
    if w < 2 and not OPT('NODMA', 0):
        a(f"s_cmp_eq_u32 s{S_STEP}, 63")
        a(f"s_cbranch_scc1 {pfx}_NODMA")
        kv_dma(a, flags, pfx, w)
        a.label(f"{pfx}_NODMA")
    a(f"s_mov_b64 exec, s[{S_M8}:{S_M8+1}]")
    a(f"s_cmp_lg_u32 s{S_C}, 0")
    a(f"s_cbranch_scc1 {pfx}_NOKM")
    for k in range(2 if not OPT('NOKM', 0) else 0):
        a(f"buffer_store_dwordx4 {vr(V_KF+4*(2*w+k))}, v{V_KMS}, s[{S_WS}:{S_WS+3}], s{S_KMG} offen offset:{k*512} sc1")
    a.label(f"{pfx}_NOKM")
    a("s_mov_b64 exec, -1")
    a(f"s_add_u32 s{S_KMG}, s{S_KMG}, {32*3072}")
    for t in range(nt):
        for r in range(4): a(f"v_mov_b32 v{V_PU+r}, v{V_Y+4*t+r}")
        for r in range(4): a(f"v_permlane32_swap_b32 v{V_Y+4*t+r}, v{V_PU+r}")
        for r in range(4): a(f"v_add_f32 v{V_Y+4*t+r}, v{V_Y+4*t+r}, v{V_PU+r}")
        a(f"v_cvt_pk_bf16_f32 v{V_YF+2*t}, v{V_Y+4*t}, v{V_Y+4*t+1}")
        a(f"v_cvt_pk_bf16_f32 v{V_YF+2*t+1}, v{V_Y+4*t+2}, v{V_Y+4*t+3}")
    a("s_mov_b32 exec_hi, 0")
    for t in range(nt if not OPT('NOUY', 0) else 0):
        a(f"buffer_store_dwordx2 {vr(V_YF+2*t,2)}, v{V_L4}, s[{S_WS}:{S_WS+3}], s{S_UYG} offen offset:{t*256} sc1")
    a("s_mov_b64 exec, -1")
    a(f"s_add_u32 s{S_UYG}, s{S_UYG}, {32*40*256}")
    if w == 2 and not OPT('NOFLG', 0):
        a(f"v_mov_b32 v{V_T}, s{S_STEP}")
        a("s_mov_b64 exec, 1")
        a(f"buffer_store_dword v{V_T}, v{V_ZERO}, s[{S_WS}:{S_WS+3}], s{S_FLG} offen sc1")
        a(f"s_cmp_lg_u32 s{S_J}, 0")
        a(f"s_cbranch_scc1 {pfx}_NOPROG")
        a(f"s_mov_b32 s{S_T}, {F_RPROG}")
        a(f"buffer_store_dword v{V_T}, v{V_ZERO}, s[{S_WS}:{S_WS+3}], s{S_T} offen sc1")
        a.label(f"{pfx}_NOPROG")
        a("s_mov_b64 exec, -1")
    a(f"s_add_u32 s{S_STEP}, s{S_STEP}, 1")
    a(f"s_cmp_ge_u32 s{S_STEP}, 64")
    a(f"s_cbranch_scc1 {pfx}_DONE")
    stamp(a, 7)
    idle_phase(a, w, woq)
    rotate_slots(a)
    stamp_acc(a)
    a("s_barrier")
    mark(a, S_REF2)
    a(f"s_branch {pfx}_LOOP")
    a.label(f"{pfx}_DONE")
    a("s_waitcnt vmcnt(0)")
    a("s_barrier")
    if flags and w == 0:
        trace(a, 5, S_J)
        if int(os.environ.get('TRACE', 0)):
            a("s_memtime s[86:87]\ns_waitcnt lgkmcnt(0)")
            trace(a, 7, S_J, val=86)
    if w == 2:
        a(f"v_mov_b32 v{V_T}, 64")
        a("s_mov_b64 exec, 1")
        a(f"buffer_store_dword v{V_T}, v{V_ZERO}, s[{S_WS}:{S_WS+3}], s{S_FLG} offen sc1")
        a(f"s_cmp_lg_u32 s{S_J}, 0")
        a(f"s_cbranch_scc1 {pfx}_NOPROG2")
        a(f"s_mov_b32 s{S_T}, {F_RPROG}")
        a(f"buffer_store_dword v{V_T}, v{V_ZERO}, s[{S_WS}:{S_WS+3}], s{S_T} offen sc1")
        a.label(f"{pfx}_NOPROG2")
        a("s_waitcnt vmcnt(0)")
        a("s_mov_b64 exec, -1")
    stamp_out(a, w)
    a("s_endpgm")

def stamp_acc(a):
    if not OPT('STAMP', 0): return
    a(f"s_memtime s[{S_TS+16}:{S_TS+17}]")
    a("s_waitcnt lgkmcnt(0)")
    for k in range(8):
        a(f"s_sub_u32 s{S_T}, s{S_TS+2*k+2}, s{S_TS+2*k}")
        a(f"s_add_u32 s{80+k}, s{80+k}, s{S_T}")

def stamp_out(a, w):
    if not OPT('STAMP', 0): return
    a.uid += 1
    L = f"STO_{w}_{a.uid}"
    a(f"""s_cmp_lg_u32 s{S_J}, {OPT('STAMPROLE', 0)}
s_cbranch_scc1 {L}
s_waitcnt lgkmcnt(0)
s_load_dwordx2 s[96:97], s[0:1], {KA['dbg']}
s_waitcnt lgkmcnt(0)
s_mov_b64 exec, 1""")
    for k in range(8):
        a(f"v_mov_b32 v10, s{80+k}\nv_mov_b32 v11, {64 + w*48 + k*4}\nglobal_store_dword v11, v10, s[96:97]\ns_waitcnt vmcnt(0)")
    if w == 0:
        a(f"v_mov_b32 v10, s95\nv_mov_b32 v11, 40\nglobal_store_dword v11, v10, s[96:97]\ns_waitcnt vmcnt(0)")
        a(f"v_mov_b32 v10, s101\nv_mov_b32 v11, 44\nglobal_store_dword v11, v10, s[96:97]\ns_waitcnt vmcnt(0)")
    for k in range(3):
        a(f"v_mov_b32 v10, s{92+k}\nv_mov_b32 v11, {64 + w*48 + 32 + k*4}\nglobal_store_dword v11, v10, s[96:97]\ns_waitcnt vmcnt(0)")
    a.label(L)

def common_setup(a, w):
    a(f"""v_lshlrev_b32 v{V_L16}, 4, v{V_LANE}
v_lshlrev_b32 v{V_L4}, 3, v{V_LANE}
v_mov_b32 v{V_ZERO}, 0
s_mov_b32 s{S_M8}, 0x00ff00ff
s_mov_b32 s{S_M8+1}, 0x00ff00ff
s_mov_b32 s{S_H8}, 0xff00ff00
s_mov_b32 s{S_H8+1}, 0xff00ff00
s_mov_b32 s{S_HI32}, 0
s_mov_b32 s{S_HI32+1}, -1
v_mov_b32 v{V_NINF}, 0xff800000
s_mov_b32 s{S_MQ}, 0x0000ffff
s_mov_b32 s{S_MQ+1}, 0x0000ffff
v_mov_b32 v{V_IDX}, 0x44444444
v_mov_b32 v{V_T}, 0xeeeeeeee
v_cndmask_b32 v{V_IDX}, v{V_IDX}, v{V_T}, s[{S_H8}:{S_H8+1}]
s_mov_b32 s{S_SCALE}, 0x{f2u(192**-0.5*1.4426950408889634):08x}
s_mov_b32 s{S_MAXR}, {OPT('MAXRETRY', 100000)}
s_mov_b32 s{S_STEP}, 0""")
    for k in range(8): a(f"s_mov_b32 s{80+k}, 0")
    for k in range(92, 95): a(f"s_mov_b32 s{k}, 0")
    for k in range(3):
        a(f"v_add_u32 v{V_AGO+k}, {nearmap(AG_LOG + k*4096)}, v{V_L16}")
    a(f"v_add_u32 v{V_AGL}, {L_MEM + w*2560}, v{V_L16}")

def mem0_stage(a, w):
    for k in range(3):
        a(f"""v_add_u32 v{V_T}, {160*w + 64*k}, v{V_LANE}
v_and_b32 v{V_T2}, 7, v{V_T}
v_mul_u32_u24 v{V_T2}, 1280, v{V_T2}
v_lshrrev_b32 v{V_POLL+12}, 5, v{V_T}
v_lshlrev_b32 v{V_POLL+12}, 6, v{V_POLL+12}
v_add_u32 v{V_T2}, v{V_T2}, v{V_POLL+12}
v_bfe_u32 v{V_T}, v{V_T}, 3, 2
v_lshlrev_b32 v{V_T}, 3, v{V_T}
v_add_u32 v{V_T}, v{V_T}, v{V_T2}""")
        a(f"buffer_load_dwordx2 {vr(V_POLL+4*k,2)}, v{V_T}, s[{S_M0}:{S_M0+3}], 0 offen")
        a(f"buffer_load_dwordx2 {vr(V_POLL+4*k+2,2)}, v{V_T}, s[{S_M0}:{S_M0+3}], 0 offen offset:32")
    a("s_waitcnt vmcnt(0)")
    a(f"ds_write_b128 v{V_AGL}, {vr(V_POLL)}")
    a(f"ds_write_b128 v{V_AGL}, {vr(V_POLL+4)} offset:1024")
    a("s_mov_b32 exec_hi, 0")
    a(f"ds_write_b128 v{V_AGL}, {vr(V_POLL+8)} offset:2048")
    a("s_mov_b64 exec, -1")

def service_wave(a):
    w = 3; pfx = "RS3"
    wreg = WReg(0, 256, 0)
    a(f"s_lshl_b32 s{S_LB}, s{S_WAVE}, 15")
    a(f"""s_mul_i32 s{S_COL}, s{S_H}, 384
s_mul_i32 s{S_T}, s{S_C}, 96
s_add_u32 s{S_COL}, s{S_COL}, s{S_T}""")
    units = [(S_WV, S_COL, t*32 + p*32*H*E*2) for p in range(20) for t in range(3)]
    load_w2(a, units, lambda u, T, k: wreg.pair((u % 3)*20 + u // 3, k), 1, H*E*2, 2, V_LANE, V_POLL, V_POLL+1, V_T, S_T, S_LB)
    common_setup(a, w)
    PQ = V_KXF; PV_ = V_KXF+2; R = V_KXF+6; SEL = V_KXF+8; ONES = V_KXF+12
    a(f"""v_lshrrev_b32 v{V_AST}, 1, v{V_G}
v_lshlrev_b32 v{V_AST}, 8, v{V_AST}
v_lshlrev_b32 v{V_T}, 4, v{V_N}
v_add_u32 v{V_AST}, v{V_AST}, v{V_T}
v_and_b32 v{V_T}, 1, v{V_G}
v_lshlrev_b32 v{V_T}, 3, v{V_T}
v_add_u32 v{V_AST}, v{V_AST}, v{V_T}
v_lshlrev_b32 v{V_AST+1}, 4, v{V_N}
v_add_u32 v{V_AST+1}, v{V_AST+1}, v{V_T}
s_mul_i32 s{S_T2}, s{S_H}, 9216
s_mul_i32 s{S_T}, s{S_C}, 768
s_add_u32 s{S_T}, s{S_T}, s{S_T2}
v_add_u32 v{PQ}, s{S_T}, v{V_L16}
v_add_u32 v{PQ+1}, 3072, v{PQ}
v_add_u32 v{PV_}, 6144, v{PQ}
s_add_u32 s{S_T}, s{S_T}, 6144
v_add_u32 v{V_AST}, s{S_T}, v{V_AST}
v_add_u32 v{V_AST+1}, s{S_T}, v{V_AST+1}
v_add_u32 v{V_AST+1}, 512, v{V_AST+1}""")
    for r in (V_AST, V_AST+1, PV_, PQ, PQ+1): nearmap_v(a, r, V_T)
    oob_mask(a, PV_, 48); oob_mask(a, PQ+1, 48); oob_mask(a, PQ, 48); oob_mask(a, V_AST+1, 32)
    for k in range(3):
        a(f"v_add_u32 v{V_APO+k}, s{S_T2}, v{V_L16}")
        a(f"v_add_u32 v{V_APO+k}, {6144 + k*1024}, v{V_APO+k}")
        nearmap_v(a, V_APO+k, V_T)
    a(f"v_add_u32 v{V_APL}, {L_QKV + 6144}, v{V_L16}")
    rs_lane(a, R)
    a(f"""s_mul_i32 s{S_RSB}, s{S_C}, {5*32768}
s_add_u32 s{S_RSB}, s{S_RSB}, {nearmap(RS_LOG)}
s_lshr_b32 s{S_T}, s{S_J}, 5
s_and_b32 s{S_T2}, s{S_J}, 31
s_mul_i32 s{S_T}, s{S_T}, 20
s_add_u32 s{S_T}, s{S_T}, s{S_T2}
s_cmp_lt_u32 s{S_T2}, 20
s_cselect_b32 s{S_RED}, 1, 0
s_sub_u32 s{S_T3}, s{S_T}, 20
s_cmp_eq_u32 s{S_RED}, 1
s_cselect_b32 s{S_T}, s{S_T}, s{S_T3}
s_lshr_b32 s{S_T2}, s{S_T}, 1
s_lshl_b32 s{S_T2}, s{S_T2}, 14
s_and_b32 s{S_T3}, s{S_T}, 1
s_lshl_b32 s{S_T3}, s{S_T3}, 12
s_add_u32 s{S_RSP}, s{S_T2}, s{S_T3}
s_add_u32 s{S_RSP}, s{S_RSP}, {nearmap(RS_LOG)}
s_lshl_b32 s{S_T}, s{S_T}, 7
v_add_u32 v{V_AGS}, s{S_T}, v{V_L16}
v_add_u32 v{V_AGS}, {AG_LOG}, v{V_AGS}""")
    nearmap_v(a, V_AGS, V_T)
    a(f"s_lshl_b32 s{S_T}, s{S_RED}, 3")
    a(f"v_mov_b32 v{V_T}, 0x80000000")
    a(f"v_cmp_gt_u32 vcc, s{S_T}, v{V_LANE}")
    a(f"v_cndmask_b32 v{V_AGS}, v{V_T}, v{V_AGS}, vcc")
    for k in range(4):
        a(f"""v_mov_b32 v{SEL+k}, 0
v_mov_b32 v{V_T}, 0x3f80
v_cmp_eq_u32 vcc, {2*k}, v{V_N}
v_cndmask_b32 v{SEL+k}, v{SEL+k}, v{V_T}, vcc
v_mov_b32 v{V_T}, 0x3f800000
v_cmp_eq_u32 vcc, {2*k+1}, v{V_N}
v_cndmask_b32 v{SEL+k}, v{SEL+k}, v{V_T}, vcc""")
    for k in range(4): a(f"v_mov_b32 v{ONES+k}, -1")
    a(f"v_mov_b32 v{ONES+4}, 1")
    read_polarity(a, pfx)
    a("s_barrier")
    mem0_stage(a, w)
    a("s_waitcnt vmcnt(0) lgkmcnt(0)")
    a("s_barrier")
    stamp(a, 0)
    pfx0 = pfx
    a(f"s_cmp_eq_u32 s{S_MODE}, 0")
    a(f"s_cbranch_scc1 {pfx0}S_B0")
    a(f"s_branch {pfx0}F_B0")
    for mode in (1, 0):
        CURMODE[0] = mode
        pfx = pfx0 + ("F" if mode else "S")
        service_loop(a, pfx, PQ, PV_, R, SEL, ONES)
    CURMODE[0] = None

def service_loop(a, pfx, PQ, PV_, R, SEL, ONES):
    a.label(f"{pfx}_LOOP")
    stamp(a, 0)
    ag_poll(a, pfx, 3)
    a.label(f"{pfx}_B0")
    a("s_waitcnt lgkmcnt(0)")
    a("s_barrier")
    mark(a, S_REF0)
    stamp(a, 1)
    SP = 140
    w8s = lambda t, K: ar((t*20 + 2*K)*4, 8)
    for K in range(10):
        a(f"ds_read_b128 {vr(V_RING+4*K)}, v{V_L16} offset:{L_MEM + K*1024}")
    for r in range(12): a(f"v_mov_b32 v{V_ACC+r}, 0")
    for K in range(10):
        a(f"s_waitcnt lgkmcnt({9-K})")
        for t in range(2):
            a(f"v_smfmac_f32_16x16x64_bf16 {vr(V_ACC+4*t)}, {vr(V_RING+4*K)}, {w8s(t,K)}, v{V_IDX}")
    P01 = pack_pair(V_ACC, V_ACC+4, SP)
    for K in range(10):
        a(f"v_smfmac_f32_16x16x64_bf16 {vr(V_ACC+8)}, {vr(V_RING+4*K)}, {w8s(2,K)}, v{V_IDX}")
        if K >= 2 and P01: a(P01.pop(0))
        if K >= 6 and P01: a(P01.pop(0))
    while P01: a(P01.pop(0))
    store_mode(a, [f"buffer_store_dwordx2 {vr(SP,2)}, v{V_AST}, s[{S_WS}:{S_WS+3}], s{S_CUR} offen SCX"])
    for r in range(4): a(f"v_mov_b32 v{SP+8+r}, v{V_ACC+8+r}")
    for x in pack_pair(V_ACC+8, SP+8, SP+4): a(x)
    store_mode(a, [f"buffer_store_dwordx2 {vr(SP+4,2)}, v{V_AST+1}, s[{S_WS}:{S_WS+3}], s{S_CUR} offen SCX"])
    stamp(a, 2)
    wait_mode(a, S_REF0, OPT('T_VF', 1300), OPT('T_V', 1500))
    loads = [f"buffer_load_dwordx4 {vr(V_POLL+4*k)}, v{V_APO+k}, s[{S_WS}:{S_WS+3}], s{S_CUR} offen sc1" for k in range(3)]
    if OPT('TWOB', 1):
        for x in loads: a(x)
        stamp(a, 3)
        a("s_barrier")
        stamp(a, 4)
        poll_loop(a, f"{pfx}_VP", loads, 12, 93, pre_issued=True)
        for k in range(3):
            a(f"ds_write_b128 v{V_APL}, {vr(V_POLL+4*k)} offset:{k*1024}")
        a("s_waitcnt lgkmcnt(0)")
        a("s_barrier")
        mark(a, 96)
        stamp(a, 5)
    else:
        poll_loop(a, f"{pfx}_VP", loads, 12, 93)
        for k in range(3):
            a(f"ds_write_b128 v{V_APL}, {vr(V_POLL+4*k)} offset:{k*1024}")
        a("s_waitcnt lgkmcnt(0)")
        stamp(a, 3)
        a("s_barrier")
        mark(a, 96)
        stamp(a, 4)
        stamp(a, 5)
    a(f"s_cmp_eq_u32 s{S_STEP}, 63")
    a(f"s_cbranch_scc1 {pfx}_DONE")
    store_mode(a, [f"buffer_store_dwordx4 {vr(ONES)}, v{r}, s[{S_WS}:{S_WS+3}], s{S_NN} offen SCX" for r in (PQ, PQ+1, PV_)])
    a(f"s_add_u32 s{S_T}, s{S_NN}, s{S_RSB}")
    a(f"s_mov_b64 exec, s[{S_M8}:{S_M8+1}]")
    for P in range(5):
        if P > 0: a(f"s_add_u32 s{S_T}, s{S_T}, 32768")
        a(f"buffer_store_dwordx4 {vr(ONES)}, v{R}, s[{S_WS}:{S_WS+3}], s{S_T} offen sc1")
    a("s_mov_b64 exec, -1")
    a(f"buffer_store_dwordx4 {vr(ONES)}, v{V_AGS}, s[{S_WS}:{S_WS+3}], s{S_NN} offen sc1")
    stamp(a, 6)
    wait_until(a, 96, OPT('T_RS', 1350))
    a(f"s_add_u32 s{S_T2}, s{S_CUR}, s{S_RSP}")
    loads = [f"buffer_load_dwordx4 {vr(V_POLL+4*q)}, v{V_L16}, s[{S_WS}:{S_WS+3}], s{S_T2} offen offset:{q*1024} sc1" for q in range(4)]
    poll_loop(a, f"{pfx}_RP", loads, 16, 94)
    stamp(a, 7)
    for q in range(4):
        c = "0" if q == 0 else vr(V_ACC)
        a(f"v_mfma_f32_16x16x32_bf16 {vr(V_ACC)}, {vr(SEL)}, {vr(V_POLL+4*q)}, {c}")
    for r in range(4):
        a(f"v_add_f32_dpp v{V_ACC+4+r}, v{V_ACC+r}, v{V_ACC+r} row_ror:8 row_mask:0xf bank_mask:0xf")
    APK = 160
    a(f"v_cvt_pk_bf16_f32 v{APK}, v{V_ACC+4}, v{V_ACC+5}")
    a(f"v_cvt_pk_bf16_f32 v{APK+1}, v{V_ACC+6}, v{V_ACC+7}")
    a(f"v_mov_b32 v{APK+2}, v{APK}\nv_mov_b32 v{APK+3}, v{APK+1}")
    a(f"v_mov_b32 v{APK+4}, v{APK}\nv_mov_b32 v{APK+5}, v{APK+1}")
    a(f"v_permlane16_swap_b32 v{APK+4}, v{APK+2}")
    a(f"v_permlane16_swap_b32 v{APK+5}, v{APK+3}")
    a(f"buffer_store_dwordx4 {vr(APK)}, v{V_AGS}, s[{S_WS}:{S_WS+3}], s{S_CUR} offen sc1")
    a(f"s_add_u32 s{S_STEP}, s{S_STEP}, 1")
    a(f"s_cmp_ge_u32 s{S_STEP}, 64")
    a(f"s_cbranch_scc1 {pfx}_DONE")
    rotate_slots(a)
    stamp_acc(a)
    a("s_barrier")
    mark(a, S_REF2)
    a(f"s_branch {pfx}_LOOP")
    a.label(f"{pfx}_DONE")
    a("s_waitcnt vmcnt(0)")
    a("s_barrier")
    stamp_out(a, 3)
    a("s_endpgm")

def rec_entry(a):
    a(f"""s_load_dwordx4 s[64:67], s[0:1], {KA['wq']}
s_load_dwordx4 s[68:71], s[0:1], {KA['wv']}
s_load_dwordx2 s[72:73], s[0:1], {KA['mem0']}
s_waitcnt lgkmcnt(0)""")
    srd(a, S_WQ, 64, D*H*E*2); srd(a, S_WK, 66, D*H*E*2); srd(a, S_WV, 68, D*H*E*2); srd(a, S_WO, 70, D*H*E*2)
    srd(a, S_M0, 72, M*D*2)
    a(f"s_lshr_b32 s{S_H}, s{S_J}, 2\ns_and_b32 s{S_C}, s{S_J}, 3")

def probe(a, s_k, s_xcc, lbl, s_dbg):
    a(f"""s_mov_b64 exec, 1
v_mov_b32 v10, -1
s_lshl_b32 s{S_T}, s{s_k}, 21
s_add_u32 s{S_T}, s{S_T}, {RING + 77*16384 + 4096}
v_mov_b32 v11, s{S_T}
v_add_u32 v13, 8192, v11
s_mov_b32 s{S_T2}, 0
s_mov_b32 s84, 0
s_mov_b32 s85, 0""")
    a.label(f"{lbl}_R")
    a(f"""buffer_store_dword v10, v11, s[{S_WS}:{S_WS+3}], 0 offen sc1
buffer_store_dword v10, v13, s[{S_WS}:{S_WS+3}], 0 offen sc1
s_waitcnt vmcnt(0)
s_sleep 12""")
    for hsel in range(2):
        a(f"""s_memtime s[80:81]
s_waitcnt lgkmcnt(0)
buffer_load_dword v12, v{11 if hsel == 0 else 13}, s[{S_WS}:{S_WS+3}], 0 offen sc1
s_waitcnt vmcnt(0)
s_memtime s[82:83]
s_waitcnt lgkmcnt(0)
s_sub_u32 s{86+hsel}, s82, s80""")
    a(f"""s_cmp_eq_u32 s{S_T2}, 0
s_cbranch_scc1 {lbl}_S
s_add_u32 s84, s84, s86
s_add_u32 s85, s85, s87""")
    a.label(f"{lbl}_S")
    a(f"""s_add_u32 s{S_T2}, s{S_T2}, 1
s_cmp_lt_u32 s{S_T2}, 3
s_cbranch_scc1 {lbl}_R
s_cmp_lt_u32 s85, s84
s_cselect_b32 s{S_T3}, 1, 0
s_lshr_b32 s{S_T}, s{s_xcc}, 2
s_xor_b32 s{S_T3}, s{S_T3}, s{S_T}
s_and_b32 s{S_T3}, s{S_T3}, 1
s_or_b32 s{S_T3}, s{S_T3}, 2
s_lshl_b32 s{S_T}, s{s_k}, 1
s_lshl_b32 s{S_T3}, s{S_T3}, s{S_T}
v_mov_b32 v10, s{S_T3}
v_mov_b32 v11, {DB_POL}
global_atomic_or v11, v10, s[{s_dbg}:{s_dbg+1}] sc1
s_waitcnt vmcnt(0)
s_mov_b64 exec, -1""")

def rec_dispatch(a, flags=False):
    a(f"""s_cmp_eq_u32 s{S_WAVE}, 0
s_cbranch_scc1 RK_W0
s_cmp_eq_u32 s{S_WAVE}, 1
s_cbranch_scc1 RK_W1
s_cmp_eq_u32 s{S_WAVE}, 2
s_cbranch_scc1 RK_W2
s_branch RK_W3""")
    for w in range(3):
        a.label(f"RK_W{w}")
        main_wave(a, w, flags)
    a.label("RK_W3")
    service_wave(a)

def gen_rec_kernel():
    a = Asm(); name = "rec_kernel"
    kernel_header(a, name)
    if OPT('STAMP', 0): a("s_memtime s[100:101]")
    a(f"""s_cmp_ge_u32 s2, 256
s_cbranch_scc1 RK_END
s_load_dwordx2 s[74:75], s[0:1], {KA['ws']}
s_load_dwordx2 s[76:77], s[0:1], {KA['dbg']}
s_getreg_b32 s78, hwreg(HW_REG_XCC_ID)
s_and_b32 s78, s78, 15
s_waitcnt lgkmcnt(0)""")
    srd(a, S_WS, 74, WS_SIZE)
    lane_setup(a, V_LANE, V_G, V_N, S_WAVE)
    a(f"""s_cmp_lg_u32 s{S_WAVE}, 0
s_cbranch_scc1 RK_NORANK
v_mov_b32 v10, 1
s_lshl_b32 s79, s78, 2
v_mov_b32 v11, s79
s_mov_b64 exec, 1
global_atomic_add v12, v11, v10, s[76:77] sc0 sc1
s_waitcnt vmcnt(0)
v_mov_b32 v11, 0
ds_write_b32 v11, v12
s_waitcnt lgkmcnt(0)
s_mov_b64 exec, -1""")
    a.label("RK_NORANK")
    a(f"""s_barrier
v_mov_b32 v11, 0
ds_read_b32 v12, v11
s_waitcnt lgkmcnt(0)
v_readfirstlane_b32 s79, v12
s_barrier
s_cmp_lt_u32 s78, 4
s_cbranch_scc1 RK_REC
s_cmp_lg_u32 s78, 4
s_cbranch_scc1 RK_END
s_cmp_ge_u32 s79, 4
s_cbranch_scc1 RK_END
s_cmp_lg_u32 s{S_WAVE}, 0
s_cbranch_scc1 RK_END""")
    probe(a, 79, 78, "RK_PR", 76)
    a("s_endpgm")
    a.label("RK_REC")
    a(f"""s_cmp_ge_u32 s79, 32
s_cbranch_scc1 RK_END
s_lshl_b32 s{S_J}, s78, 5
s_add_u32 s{S_J}, s{S_J}, s79""")
    rec_entry(a)
    rec_dispatch(a)
    a.label("RK_END")
    a("s_endpgm")
    return name, a.finalize(), kernel_desc(name, 512, 102, 256)

def read_mode(a, pfx):
    a(f"s_load_dwordx2 s[96:97], s[0:1], {KA['dbg']}")
    a("s_waitcnt lgkmcnt(0)")
    a(f"s_mov_b32 s{S_RETRY}, 0")
    a(f"v_and_b32 v{V_T2}, 7, v{V_LANE}")
    a(f"v_lshlrev_b32 v{V_T2}, 2, v{V_T2}")
    a.label(f"{pfx}_MD")
    a(f"""global_load_dword v{V_T}, v{V_T2}, s[96:97] sc1
s_waitcnt vmcnt(0)
v_cmp_eq_u32 vcc, 32, v{V_T}
s_cmp_eq_u64 vcc, exec
s_cselect_b32 s{S_MODE}, 1, 0
v_add_u32_dpp v{V_T}, v{V_T}, v{V_T} row_ror:4 row_mask:0xf bank_mask:0xf
v_add_u32_dpp v{V_T}, v{V_T}, v{V_T} row_ror:2 row_mask:0xf bank_mask:0xf
v_add_u32_dpp v{V_T}, v{V_T}, v{V_T} row_ror:1 row_mask:0xf bank_mask:0xf
v_readfirstlane_b32 s{S_T3}, v{V_T}
s_cmp_ge_u32 s{S_T3}, 256
s_cbranch_scc1 {pfx}_MDOK
s_sleep 8
s_add_u32 s{S_RETRY}, s{S_RETRY}, 1
s_cmp_lt_u32 s{S_RETRY}, 200000
s_cbranch_scc1 {pfx}_MD
s_mov_b32 s{S_MODE}, 0""")
    a.label(f"{pfx}_MDOK")
    if OPT('FORCESLOW', 0): a(f"s_mov_b32 s{S_MODE}, 0")

def read_polarity(a, pfx):
    read_mode(a, pfx)
    if INITWAIT[0]:
        wait_dbg(a, f"{pfx}_INI", 96, DB_INIT, V_T2, V_T, S_RETRY+0, S_T3, thr=128) if False else None
        a(f"v_mov_b32 v{V_T2}, {DB_INIT}")
        a(f"s_mov_b32 s{S_RETRY}, 0")
        a.label(f"{pfx}_INI")
        a(f"""global_load_dword v{V_T}, v{V_T2}, s[96:97] sc1
s_waitcnt vmcnt(0)
v_readfirstlane_b32 s{S_T3}, v{V_T}
s_cmp_ge_u32 s{S_T3}, 128
s_cbranch_scc1 {pfx}_INIK
s_sleep 4
s_add_u32 s{S_RETRY}, s{S_RETRY}, 1
s_cmp_lt_u32 s{S_RETRY}, 0x400000
s_cbranch_scc1 {pfx}_INI""")
        a.label(f"{pfx}_INIK")
    a(f"v_mov_b32 v{V_T2}, {DB_POL}")
    a(f"s_mov_b32 s{S_RETRY}, 0")
    a.label(f"{pfx}_POL")
    a(f"""global_load_dword v{V_T}, v{V_T2}, s[96:97] sc1
s_waitcnt vmcnt(0)
v_readfirstlane_b32 s{S_T3}, v{V_T}
s_and_b32 s{S_T}, s{S_T3}, 0xaa
s_cmp_eq_u32 s{S_T}, 0xaa
s_cbranch_scc1 {pfx}_POLOK
s_sleep 4
s_add_u32 s{S_RETRY}, s{S_RETRY}, 1
s_cmp_lt_u32 s{S_RETRY}, 0x400000
s_cbranch_scc1 {pfx}_POL""")
    a.label(f"{pfx}_POLOK")
    if OPT('FLIPPOL', 0): a(f"s_xor_b32 s{S_T3}, s{S_T3}, 0x55")
    for k, s in enumerate((S_CUR, S_N, S_NN, S_P)):
        a(f"""s_bfe_u32 s{S_T}, s{S_T3}, {(1<<16) | (2*k)}
s_lshl_b32 s{S_T}, s{S_T}, 13
s_add_u32 s{s}, s{S_T}, {RING + k*RING_SLOT}""")
```

```python
from gen_common import *
import struct, os
OPT=lambda k,d: type(d)(os.environ.get(k,d))
def f2u(f): return struct.unpack('<I', struct.pack('<f', f))[0]

US_WS=4; US_WO=8; US_WAVE=20; US_LB=21; US_COL=24; US_H=25; US_CNT=26; US_XG=27; US_WSL=28; US_RSL=29; US_OUT=30; US_T=31; US_T2=32
UV_LANE=1; UV_G=2; UV_N=3; UV_GOFF=4; UV_TR=5; UV_T=6; UV_L16=7; UV_RA=8
UV_A=16
UV_ACC=112
UV_PK=128

US_PROG=33; US_DONE=34; US_CACHE=35; US_THR=36; US_W1=37; US_W2=42; US_WC=43
UV_PV=9; UV_PZ=10; UV_WA=11; UV_WT=12
def emit_upanel(a, pfx, flags=False, init_hook=None, mid_hook=None, pre_hook=None):
    NSL = 4; XT = 12288
    wreg = WReg(0, 240, 0)
    a(f"s_lshl_b32 s{US_LB}, s{US_WAVE}, 15")
    a(f"""s_mul_i32 s{US_COL}, s{US_H}, {192*1280}
s_mul_i32 s{US_T}, s{US_WAVE}, 320
s_add_u32 s{US_COL}, s{US_COL}, s{US_T}""")
    units = [(US_WO, US_COL, g*64 + p*32*1280) for p in range(6) for g in range(5)]
    load_w2(a, units, lambda u, T, k: wreg.pair(((u % 5)*2 + T)*6 + u // 5, k), 2, D*2, True, UV_LANE, UV_GOFF, UV_TR, UV_T, US_T, US_LB, mid_hook=mid_hook, pre_hook=pre_hook)
    if init_hook: init_hook()
    a("s_barrier")
    a("v_mov_b32 v14, 0x80000000")
    a(f"""v_lshlrev_b32 v{UV_L16}, 4, v{UV_LANE}
s_mul_i32 s{US_T}, s{US_H}, 12288
s_mul_i32 s{US_T2}, s{US_WAVE}, 3072
s_add_u32 s{US_XG}, s{US_T}, s{US_T2}
s_add_u32 s{US_XG}, s{US_XG}, {VX}
s_mov_b32 s{US_WSL}, s{US_T2}
s_mov_b32 s{US_RSL}, 0
s_mul_i32 s{US_T}, s{US_H}, 40
s_mul_i32 s{US_T2}, s{US_WAVE}, 10
s_add_u32 s{US_T}, s{US_T}, s{US_T2}
s_lshl_b32 s{US_OUT}, s{US_T}, 10
s_add_u32 s{US_OUT}, s{US_OUT}, {UX}""")
    if flags:
        a(f"""s_mul_i32 s{US_T}, s{US_H}, 6
s_lshr_b32 s{US_T2}, s{US_T}, 3
s_add_u32 s{US_T}, s{US_T}, 5
s_lshr_b32 s{US_T}, s{US_T}, 3
v_mov_b32 v{UV_WA}, s{US_T}
v_mov_b32 v{UV_T}, s{US_T2}
v_cmp_eq_u32 vcc, 0, v{UV_LANE}
v_cndmask_b32 v{UV_WA}, v{UV_WA}, v{UV_T}, vcc
v_lshlrev_b32 v{UV_WA}, {PSH}, v{UV_WA}
v_add_u32 v{UV_WA}, {F_PROG + (R_V0 << PSH)}, v{UV_WA}
v_mov_b32 v{UV_PZ}, 0
s_mov_b32 s{US_DONE}, 0
s_mov_b32 s{US_CACHE}, 0
s_mov_b32 s{US_THR}, 0""")
    if flags:
        a("s_mov_b32 s59, 0")
        a("s_mov_b32 s61, 0")
        a(f"v_mov_b32 v13, {F_RPROG}")
    def dma():
        if flags and OPT('PACE', 0):
            a.uid += 1
            a(f"s_add_u32 s59, s59, 1")
            a(f"s_sub_u32 s60, s59, {OPT('LEADU', 6)}")
            a(f"s_cselect_b32 s60, 0, s60")
            a(f"s_min_u32 s60, s60, 63")
            wait_words(a, f"{pfx}_PC{a.uid}", US_WS, 13, UV_WT, 60, 61, 1, US_W1, US_WC, sleep=16)
        if flags:
            a.uid += 1
            a(f"s_add_u32 s{US_THR}, s{US_THR}, 2")
            a(f"s_min_u32 s{US_W2}, s{US_THR}, 128")
            wait_words(a, f"{pfx}_WV{a.uid}", US_WS, UV_WA, UV_WT, US_W2, US_CACHE, 2, US_W1, US_WC)
        a(f"s_mov_b32 m0, s{US_WSL}")
        for j in range(3):
            a(f"buffer_load_dwordx4 v{UV_L16}, s[{US_WS}:{US_WS+3}], s{US_XG} offen offset:{j*1024} sc1 lds")
        a(f"s_add_u32 s{US_XG}, s{US_XG}, {32*12288}")
        a(f"s_add_u32 s{US_WSL}, s{US_WSL}, {XT}")
        a(f"s_sub_u32 s{US_T}, s{US_WSL}, {NSL*XT}")
        a(f"s_cmp_ge_u32 s{US_WSL}, {NSL*XT}")
        a(f"s_cselect_b32 s{US_WSL}, s{US_T}, s{US_WSL}")
    for _ in range(NSL-1): dma()
    a(f"s_mov_b32 s{US_CNT}, 0")
    lp = f"{pfx}_LOOP"
    a.label(lp)
    a(f"s_cmp_lt_u32 s{US_CNT}, 3")
    a(f"s_cbranch_scc1 {pfx}_W0")
    if flags:
        a(f"s_cmp_eq_u32 s{US_WAVE}, 0")
        a(f"s_cbranch_scc1 {pfx}_WZ")
        a("s_waitcnt vmcnt(36)")
        a(f"s_branch {pfx}_W1")
        a.label(f"{pfx}_WZ")
        a("s_waitcnt vmcnt(39)")
    else:
        a("s_waitcnt vmcnt(36)")
    a(f"s_branch {pfx}_W1")
    a.label(f"{pfx}_W0")
    a("s_waitcnt vmcnt(0)")
    a.label(f"{pfx}_W1")
    a("s_barrier")
    if flags:
        a(f"s_sub_u32 s{US_DONE}, s{US_CNT}, 3")
        a(f"s_cmp_lt_u32 s{US_CNT}, 3")
        a(f"s_cselect_b32 s{US_DONE}, 0, s{US_DONE}")
    dma()
    if flags:
        a(f"s_cmp_lg_u32 s{US_WAVE}, 0")
        a(f"s_cbranch_scc1 {pfx}_NPB")
        publish_word(a, US_WS, UV_PV, UV_PZ, US_PROG, US_DONE)
        a.label(f"{pfx}_NPB")
    a(f"v_add_u32 v{UV_RA}, s{US_RSL}, v{UV_L16}")
    for f in range(12):
        a(f"ds_read_b128 {vr(UV_A+4*f)}, v{UV_RA} offset:{f*1024}")
    a(f"s_add_u32 s{US_RSL}, s{US_RSL}, {XT}")
    a(f"s_cmp_ge_u32 s{US_RSL}, {NSL*XT}")
    a(f"s_cselect_b32 s{US_RSL}, 0, s{US_RSL}")
    a("s_waitcnt lgkmcnt(0)")
    def epi(t):
        ac = UV_ACC + 8*(t & 1); pk = UV_PK + 4*(t & 1)
        L = []
        for k in range(4):
            d = ac + 4*(k >> 1) + 2*(k & 1)
            L.append(f"v_cvt_pk_bf16_f32 v{pk+k}, v{d}, v{d+1}")
        L.append(f"s_add_u32 s{US_T}, s{US_OUT}, {t*1024}")
        L.append(f"buffer_store_dwordx4 {vr(pk)}, v{UV_L16 if not OPT('NOUST',0) else 14}, s[{US_WS}:{US_WS+3}], s{US_T} offen sc1")
        return L
    for t in range(10):
        ac = UV_ACC + 8*(t & 1)
        E_ = epi(t-1) if t > 0 else []
        for p in range(6):
            for tt in range(2):
                d = ac + 4*tt
                c = "0" if p == 0 else vr(d)
                a(f"v_mfma_f32_16x16x32_bf16 {vr(d)}, {vr(UV_A+4*(tt*6+p))}, {wreg.quad(t*6+p)}, {c}")
            if p >= 3:
                for _ in range(2):
                    if E_: a(E_.pop(0))
        while E_: a(E_.pop(0))
    for x in epi(9): a(x)
    a(f"s_add_u32 s{US_OUT}, s{US_OUT}, {32*40*1024}")
    a(f"s_add_u32 s{US_CNT}, s{US_CNT}, 1")
    a(f"s_cmp_lt_u32 s{US_CNT}, 64")
    a(f"s_cbranch_scc1 {lp}")
    a("s_waitcnt vmcnt(0)")
    if flags:
        a("s_barrier")
        a(f"s_mov_b32 s{US_DONE}, 64")
        publish_word(a, US_WS, UV_PV, UV_PZ, US_PROG, US_DONE)
        a("s_waitcnt vmcnt(0)")

def gen_upanel_kernel():
    a = Asm(); name = "upanel_kernel"
    kernel_header(a, name)
    a(f"""s_cmp_ge_u32 s2, 32
s_cbranch_scc1 UK_END
s_load_dwordx2 s[38:39], s[0:1], {KA['ws']}
s_load_dwordx2 s[40:41], s[0:1], {KA['wo']}
s_waitcnt lgkmcnt(0)""")
    srd(a, US_WS, 38, WS_SIZE); srd(a, US_WO, 40, H*E*D*2)
    lane_setup(a, UV_LANE, UV_G, UV_N, US_WAVE)
    a(f"s_mov_b32 s{US_H}, s2")
    emit_upanel(a, "UP")
    a.label("UK_END")
    a("s_endpgm")
    return name, a.finalize(), kernel_desc(name, 512, 64, 256)

TS_WS=4; TS_OUT=8; TS_WAVE=20; TS_S=21; TS_I=22; TS_T=23; TS_T2=24; TS_T3=25; TS_SCALE=26
TS_MK=28
TS_HI=36
TV_LANE=1; TV_G=2; TV_N=3; TV_T=4; TV_L16=5; TV_KM=6; TV_NINF=7; TV_L8=8; TV_T2=9; TV_OUTO=10; TV_MA=11; TV_MB=12
TV_Q=16; TV_K=64; TV_M=112; TV_S=136
TV_X=156
TV_P=172

def tok_setup(a):
    a(f"""v_lshlrev_b32 v{TV_L16}, 4, v{TV_LANE}
v_lshlrev_b32 v{TV_L8}, 3, v{TV_LANE}
v_lshlrev_b32 v{TV_KM}, 7, v{TV_G}
v_and_b32 v{TV_T}, 7, v{TV_LANE}
v_lshlrev_b32 v{TV_T}, 4, v{TV_T}
v_add_u32 v{TV_KM}, v{TV_KM}, v{TV_T}
v_mov_b32 v{TV_NINF}, 0xff800000
s_mov_b32 s{TS_SCALE}, 0x{f2u(192**-0.5*1.4426950408889634):08x}
s_mov_b32 s{TS_HI}, 0
s_mov_b32 s{TS_HI+1}, -1
v_lshlrev_b32 v{TV_T}, 2, v{TV_G}""")
    for r in range(4):
        a(f"v_add_u32 v{TV_T2}, {r}, v{TV_T}")
        a(f"v_cmp_gt_u32 s[{TS_MK+2*r}:{TS_MK+2*r+1}], v{TV_T2}, v{TV_N}")
    a(f"""v_mul_u32_u24 v{TV_OUTO}, 1280, v{TV_N}
v_lshlrev_b32 v{TV_T}, 3, v{TV_G}
v_add_u32 v{TV_OUTO}, v{TV_OUTO}, v{TV_T}""")
    a(f"""v_and_b32 v{TV_T}, 31, v{TV_LANE}
v_lshlrev_b32 v{TV_T}, 3, v{TV_T}
v_lshrrev_b32 v{TV_T2}, 5, v{TV_LANE}
v_mul_u32_u24 v{TV_MA}, {40*256}, v{TV_T2}
v_add_u32 v{TV_MA}, v{TV_MA}, v{TV_T}
v_mul_u32_u24 v{TV_MB}, 2560, v{TV_T2}
v_add_u32 v{TV_MB}, v{TV_MB}, v{TV_T}""")

def emit_score(a, pfx, ld=" sc1", mid=None):
    W = f"s[{TS_WS}:{TS_WS+3}]"
    a(f"""s_lshl_b32 s{TS_T}, s{TS_I}, 2
s_add_u32 s{TS_T}, s{TS_T}, s{TS_WAVE}
s_lshl_b32 s{TS_T2}, s{TS_S}, 5
s_add_u32 s{TS_T}, s{TS_T}, s{TS_T2}
s_mul_i32 s{TS_T2}, s{TS_T}, 12288
s_add_u32 s{TS_T3}, s{TS_T2}, {QX}""")
    for f in range(12):
        if f and f % 4 == 0: a(f"s_add_u32 s{TS_T3}, s{TS_T3}, 4096")
        a(f"buffer_load_dwordx4 {vr(TV_Q+4*f)}, v{TV_L16}, {W}, s{TS_T3} offen offset:{(f%4)*1024}{ld}")
    a(f"s_add_u32 s{TS_T3}, s{TS_T2}, {KX}")
    for f in range(12):
        if f and f % 4 == 0: a(f"s_add_u32 s{TS_T3}, s{TS_T3}, 4096")
        a(f"buffer_load_dwordx4 {vr(TV_K+4*f)}, v{TV_L16}, {W}, s{TS_T3} offen offset:{(f%4)*1024}{ld}")
    if mid:
        a(f"s_mov_b32 s47, s{TS_T}")
        mid()
        a(f"s_mov_b32 s{TS_T}, s47")
    a(f"s_mul_i32 s{TS_T2}, s{TS_T}, 3072")
    a(f"s_add_u32 s{TS_T3}, s{TS_T2}, {KM}")
    for p in range(6):
        a(f"buffer_load_dwordx4 {vr(TV_M+4*p)}, v{TV_KM}, {W}, s{TS_T3} offen offset:{p*512}{ld}")
    a(f"s_mul_i32 s{TS_T2}, s{TS_T}, 2560")
    a(f"s_add_u32 s{TS_T3}, s{TS_T2}, {PF}")
    a("s_waitcnt vmcnt(0)")
    SM0, SM1, X00, X01, X11 = TV_S, TV_S+4, TV_S+8, TV_S+12, TV_S+16
    for p in range(6):
        for d, A_, B_ in ((SM0, TV_M+4*p, TV_Q+4*p), (SM1, TV_M+4*p, TV_Q+4*(6+p)), (X00, TV_K+4*p, TV_Q+4*p),
                          (X01, TV_K+4*p, TV_Q+4*(6+p)), (X11, TV_K+4*(6+p), TV_Q+4*(6+p))):
            c = "0" if p == 0 else vr(d)
            a(f"v_mfma_f32_16x16x32_bf16 {vr(d)}, {vr(A_)}, {vr(B_)}, {c}")
    for tq in range(2):
        sm = SM0 if tq == 0 else SM1
        vals = []
        X = TV_X
        for r in range(4):
            a(f"v_cndmask_b32 v{X+r}, v{sm+r}, v{TV_NINF}, s[{TS_HI}:{TS_HI+1}]")
        if tq == 0:
            for r in range(4): a(f"v_cndmask_b32 v{X+4+r}, v{X00+r}, v{TV_NINF}, s[{TS_MK+2*r}:{TS_MK+2*r+1}]")
            n = 8
        else:
            for r in range(4): a(f"v_mov_b32 v{X+4+r}, v{X01+r}")
            for r in range(4): a(f"v_cndmask_b32 v{X+8+r}, v{X11+r}, v{TV_NINF}, s[{TS_MK+2*r}:{TS_MK+2*r+1}]")
            n = 12
        MX = X+12; TM = X+13
        a(f"v_max3_f32 v{MX}, v{X}, v{X+1}, v{X+2}")
        i = 3
        while i < n:
            if i+1 < n: a(f"v_max3_f32 v{MX}, v{MX}, v{X+i}, v{X+i+1}"); i += 2
            else: a(f"v_max_f32 v{MX}, v{MX}, v{X+i}"); i += 1
        a(f"v_mov_b32 v{TM}, v{MX}\nv_permlane16_swap_b32 v{MX}, v{TM}\nv_max_f32 v{MX}, v{MX}, v{TM}")
        a(f"v_mov_b32 v{TM}, v{MX}\nv_permlane32_swap_b32 v{MX}, v{TM}\nv_max_f32 v{MX}, v{MX}, v{TM}")
        a(f"v_mul_f32 v{MX}, s{TS_SCALE}, v{MX}")
        for j in range(n): a(f"v_fma_f32 v{X+j}, v{X+j}, s{TS_SCALE}, -v{MX}")
        for j in range(n): a(f"v_exp_f32 v{X+j}, v{X+j}")
        SU = X+14
        a(f"v_add_f32 v{SU}, v{X}, v{X+1}")
        for j in range(2, n): a(f"v_add_f32 v{SU}, v{SU}, v{X+j}")
        a(f"v_mov_b32 v{TM}, v{SU}\nv_permlane16_swap_b32 v{SU}, v{TM}\nv_add_f32 v{SU}, v{SU}, v{TM}")
        a(f"v_mov_b32 v{TM}, v{SU}\nv_permlane32_swap_b32 v{SU}, v{TM}\nv_add_f32 v{SU}, v{SU}, v{TM}")
        a(f"v_rcp_f32 v{SU}, v{SU}")
        for j in range(n): a(f"v_mul_f32 v{X+j}, v{X+j}, v{SU}")
        P = TV_P + 8*tq
        a(f"v_cvt_pk_bf16_f32 v{P}, v{X+4}, v{X+5}\nv_cvt_pk_bf16_f32 v{P+1}, v{X+6}, v{X+7}")
        if tq == 0: a(f"v_mov_b32 v{P+2}, 0\nv_mov_b32 v{P+3}, 0")
        else: a(f"v_cvt_pk_bf16_f32 v{P+2}, v{X+8}, v{X+9}\nv_cvt_pk_bf16_f32 v{P+3}, v{X+10}, v{X+11}")
        a(f"v_cvt_pk_bf16_f32 v{P+4}, v{X}, v{X+1}\nv_cvt_pk_bf16_f32 v{P+5}, v{X+2}, v{X+3}")
        a(f"buffer_store_dwordx4 {vr(P)}, v{TV_L16}, {W}, s{TS_T3} offen offset:{tq*1280} sc1")
        a("s_mov_b32 exec_hi, 0")
        a(f"buffer_store_dwordx2 {vr(P+4,2)}, v{TV_L8}, {W}, s{TS_T3} offen offset:{tq*1280+1024} sc1")
        a("s_mov_b64 exec, -1")

PV_ACC=16
PV_BUF=56
PV_MEM=168
PV_BASE=196
PV_RED=208

def emit_pu(a, pfx, ld=" sc1", mid=None):
    W = f"s[{TS_WS}:{TS_WS+3}]"
    PT_ = 56; MA = 120; MB = 160
    a(f"""s_lshl_b32 s{TS_T}, s{TS_S}, 5
s_lshl_b32 s{TS_T2}, s{TS_WAVE}, 3
s_add_u32 s{TS_T}, s{TS_T}, s{TS_T2}
s_mul_i32 s40, s{TS_T}, {40*1024}
s_mul_i32 s{TS_T2}, s{TS_I}, {5*1024}
s_add_u32 s40, s40, s{TS_T2}
s_add_u32 s40, s40, {UX}
s_mul_i32 s41, s{TS_T}, 2560
s_add_u32 s41, s41, {PF}
s_mul_i32 s42, s{TS_T}, {40*256}
s_mul_i32 s{TS_T2}, s{TS_I}, {5*256}
s_add_u32 s42, s42, s{TS_T2}
s_add_u32 s42, s42, {UY}""")
    a(f"""s_mul_i32 s43, s{TS_S}, 80
s_mul_i32 s{TS_T2}, s{TS_I}, 10
s_add_u32 s43, s43, s{TS_T2}
s_add_u32 s43, s43, s{TS_WAVE}
s_lshl_b32 s43, s43, 10
s_add_u32 s43, s43, {BASE}""")
    for k in range(8):
        a(f"s_add_u32 s44, s40, {k*40*1024}")
        for t in range(4): a(f"buffer_load_dwordx4 {ar(20*k+4*t)}, v{TV_L16}, {W}, s44 offen offset:{t*1024}{ld}")
        a(f"s_add_u32 s44, s44, 4096")
        a(f"buffer_load_dwordx4 {ar(20*k+16)}, v{TV_L16}, {W}, s44 offen{ld}")
    for j in range(3):
        a(f"s_add_u32 s44, s43, {j*4096}")
        a(f"buffer_load_dwordx4 {vr(PV_BASE+4*j)}, v{TV_L16}, {W}, s44 offen{ld}")
    if mid: mid()
    out = []
    for k in range(8):
        a(f"s_add_u32 s44, s41, {k*2560}")
        a(f"buffer_load_dwordx4 {vr(PT_+8*k)}, v{TV_L16}, {W}, s44 offen{ld}")
        a(f"buffer_load_dwordx4 {vr(PT_+8*k+4)}, v{TV_L16}, {W}, s44 offen offset:1280{ld}")
        out += [('H', k)]*2
    for qd in range(2):
        for hh in range(2):
            a(f"s_add_u32 s44, s42, {(4*qd+2*hh)*40*256}")
            for t in range(5): a(f"buffer_load_dwordx2 {vr(MA+20*qd+4*t+2*hh,2)}, v{TV_MA}, {W}, s44 offen offset:{t*256}{ld}")
            a(f"s_add_u32 s44, s41, {(4*qd+2*hh)*2560}")
            for tq in range(2): a(f"buffer_load_dwordx2 {vr(MB+8*qd+4*tq+2*hh,2)}, v{TV_MB}, {W}, s44 offen offset:{tq*1280+1024}{ld}")
        out += [('M', qd)]*14
    def wait_for(tag):
        last = max(i for i, x in enumerate(out) if x == tag)
        a(f"s_waitcnt vmcnt({min(len(out) - 1 - last, 63)})")
    for k in range(8):
        wait_for(('H', k))
        for t in range(5):
            for tq in range(2):
                d = PV_ACC + 8*t + 4*tq
                c = "0" if k == 0 else vr(d)
                a(f"v_mfma_f32_16x16x32_bf16 {vr(d)}, {ar(20*k+4*t)}, {vr(PT_+8*k+4*tq)}, {c}")
    for qd in range(2):
        wait_for(('M', qd))
        for t in range(5):
            for tq in range(2):
                d = PV_ACC + 8*t + 4*tq
                a(f"v_mfma_f32_16x16x32_bf16 {vr(d)}, {vr(MA+20*qd+4*t)}, {vr(MB+8*qd+4*tq)}, {vr(d)}")
    a(f"s_mul_i32 s44, s{TS_WAVE}, 10240")
    a(f"v_add_u32 v{TV_T}, s44, v{TV_L16}")
    for u in range(10):
        a(f"ds_write_b128 v{TV_T}, {vr(PV_ACC+4*u)} offset:{u*1024}")
    a("s_waitcnt lgkmcnt(0)")
    a("s_barrier")
    a(f"s_lshl_b32 s44, s{TS_WAVE}, 10")
    a(f"v_add_u32 v{TV_T}, s44, v{TV_L16}")
    for j in range(3):
        if j == 2:
            a(f"s_cmp_ge_u32 s{TS_WAVE}, 2")
            a(f"s_cbranch_scc1 {pfx}_RD")
        for k in range(4):
            a(f"ds_read_b128 {vr(PV_RED+4*k)}, v{TV_T} offset:{k*10240 + j*4096}")
        a(f"""s_add_u32 s44, s{TS_WAVE}, {4*j}
s_lshr_b32 s45, s44, 1
s_and_b32 s44, s44, 1
s_mul_i32 s46, s{TS_I}, 5
s_add_u32 s45, s45, s46
s_lshl_b32 s45, s45, 5
s_lshl_b32 s46, s{TS_S}, 1
s_add_u32 s46, s46, s44
s_mul_i32 s46, s46, {16*1280}
s_add_u32 s45, s45, s46""")
        a("s_waitcnt vmcnt(0) lgkmcnt(0)")
        for r in range(4):
            a(f"v_add_f32 v{PV_RED+r}, v{PV_RED+r}, v{PV_RED+4+r}")
            a(f"v_add_f32 v{PV_RED+8+r}, v{PV_RED+8+r}, v{PV_RED+12+r}")
        for r in range(4):
            a(f"v_add_f32 v{PV_RED+r}, v{PV_RED+r}, v{PV_RED+8+r}")
            a(f"v_add_f32 v{PV_RED+r}, v{PV_RED+r}, v{PV_BASE+4*j+r}")
        a(f"v_cvt_pk_bf16_f32 v{PV_RED+4}, v{PV_RED}, v{PV_RED+1}")
        a(f"v_cvt_pk_bf16_f32 v{PV_RED+5}, v{PV_RED+2}, v{PV_RED+3}")
        a(f"buffer_store_dwordx2 {vr(PV_RED+4,2)}, v{TV_OUTO}, s[{TS_OUT}:{TS_OUT+3}], s45 offen")
    a.label(f"{pfx}_RD")
    a("s_barrier")

def gen_tok_kernel(kind):
    a = Asm(); name = f"{kind}_kernel"
    kernel_header(a, name)
    a(f"""s_cmp_ge_u32 s2, 512
s_cbranch_scc1 TK_END_{kind}
s_load_dwordx2 s[38:39], s[0:1], {KA['ws']}
s_load_dwordx2 s[40:41], s[0:1], {KA['out']}
s_waitcnt lgkmcnt(0)""")
    srd(a, TS_WS, 38, WS_SIZE); srd(a, TS_OUT, 40, OUT_BYTES)
    lane_setup(a, TV_LANE, TV_G, TV_N, TS_WAVE)
    tok_setup(a)
    a(f"s_lshr_b32 s{TS_S}, s2, 3\ns_and_b32 s{TS_I}, s2, 7")
    if kind == 'score': emit_score(a, "SC")
    else: emit_pu(a, "PU")
    a.label(f"TK_END_{kind}")
    a("s_endpgm")
    return name, a.finalize(), kernel_desc(name, 512, 64, 256)
```

```python
import sys
from gen_common import *
from gen_prep import gen_prep
from gen_panel import gen_panel_kernel, gen_down_kernel
from gen_rec import gen_rec_kernel
from gen_tok import gen_upanel_kernel, gen_tok_kernel

HEADER = open('parallel_sum__memory_aug_recurrent_mem_tr__geglu_ffn__prompt.s.ref').read().split('; Override launch')[0]

def build(kernels, launches):
    out = HEADER
    for (k, g, b, lds) in launches:
        out += f"; @launch kernel={k} grid=({g},1,1) block=({b},1,1) lds={lds}\n"
    out += '.amdgcn_target "amdgcn-amd-amdhsa--gfx950"\n.text\n'
    for n, body, kd in kernels: out += body
    out += '.section .rodata,"a"\n'
    for n, body, kd in kernels: out += kd
    return out

from gen_main import gen_main_kernel
import os
if __name__ == '__main__' and os.environ.get('V','1')=='1':
    KN = 'parallel_sum__memory_aug_recurrent_mem_tr__geglu_ffn__prompt_kernel'
    ks = [gen_main_kernel(KN)]
    out = HEADER + '; @launch grid=(256,1,1) block=(256,1,1) lds=147456\n'
    out += '.amdgcn_target "amdgcn-amd-amdhsa--gfx950"\n.text\n' + ks[0][1] + '.section .rodata,"a"\n' + ks[0][2]
    open(sys.argv[1] if len(sys.argv) > 1 else 'out.s', 'w').write(out)
elif __name__ == '__main__':
    ks = [gen_prep(), gen_panel_kernel(), gen_down_kernel(), gen_upanel_kernel(), gen_tok_kernel('score'), gen_tok_kernel('pu'), gen_rec_kernel()]
    launches = [("prep_kernel", 256, 256, 0), ("panel_kernel", 84, 256, 131072), ("down_kernel", 10, 256, 147456), ("upanel_kernel", 32, 256, 131072), ("rec_kernel", 256, 256, 131072), ("score_kernel", 512, 256, 0), ("pu_kernel", 512, 256, 40960)]
    open(sys.argv[1] if len(sys.argv) > 1 else 'out.s', 'w').write(build(ks, launches))
```

```python
from gen_common import *
import gen_panel as P, gen_tok as T, gen_rec as R
import os
OPT=lambda k,d: type(d)(os.environ.get(k,d))

def tok_loop(a):
    from gen_tok import TS_WS, TS_OUT, TS_WAVE, TS_S, TS_I, TS_T, TS_T2, TS_T3, TV_LANE, TV_G, TV_N, TV_T, TV_T2
    V_WA = 13; V_WT = 14; V_Z = 15
    a(f"""s_load_dwordx2 s[40:41], s[0:1], {KA['out']}
s_load_dwordx2 s[48:49], s[0:1], {KA['dbg']}
s_waitcnt lgkmcnt(0)""")
    srd(a, TS_OUT, 40, OUT_BYTES)
    lane_setup(a, TV_LANE, TV_G, TV_N, TS_WAVE)
    T.tok_setup(a)
    a(f"v_mov_b32 v{V_Z}, 0")
    a.label("TOK_LOOP")
    a(f"""s_cmp_lg_u32 s{TS_WAVE}, 0
s_cbranch_scc1 TOK_NT
v_mov_b32 v{V_WT}, 1
v_mov_b32 v{V_WA}, {DB_TICKET}
s_mov_b64 exec, 1
global_atomic_add v{V_WT}, v{V_WA}, v{V_WT}, s[48:49] sc0 sc1
s_waitcnt vmcnt(0)
v_mov_b32 v{V_WA}, 65536
ds_write_b32 v{V_WA}, v{V_WT}
s_waitcnt lgkmcnt(0)
s_mov_b64 exec, -1""")
    a.label("TOK_NT")
    a(f"""s_barrier
v_mov_b32 v{V_WA}, 65536
ds_read_b32 v{V_WT}, v{V_WA}
s_waitcnt lgkmcnt(0)
v_readfirstlane_b32 s50, v{V_WT}
s_barrier
s_cmp_ge_u32 s50, 1024
s_cbranch_scc1 TOK_END
s_lshr_b32 s{TS_S}, s50, 4
s_and_b32 s{TS_I}, s50, 15
s_cmp_ge_u32 s{TS_I}, 8
s_cbranch_scc1 TOK_PU""")
    a(f"s_cmp_lg_u32 s{TS_WAVE}, 0")
    a("s_cbranch_scc1 TOK_SC_GO")
    a(f"""v_mul_u32_u24 v{V_WT}, 21846, v{TV_LANE}
v_lshrrev_b32 v{V_WT}, 16, v{V_WT}
v_mul_u32_u24 v{V_WA}, 3, v{V_WT}
v_sub_u32 v{V_WA}, v{TV_LANE}, v{V_WA}
v_cmp_eq_u32 vcc, 0, v{V_WT}
v_mov_b32 v{V_WT}, {R_Q0}
v_cndmask_b32 v{V_WT}, 0, v{V_WT}, vcc
v_add_u32 v{V_WA}, v{V_WA}, v{V_WT}
s_mul_i32 s{TS_T}, s{TS_I}, 3
v_add_u32 v{V_WA}, s{TS_T}, v{V_WA}
v_lshlrev_b32 v{V_WA}, {PSH}, v{V_WA}
v_add_u32 v{V_WA}, {F_PROG}, v{V_WA}
s_lshl_b32 s51, s{TS_S}, 1
s_add_u32 s51, s51, 2""")
    wait_words(a, "TSC_W3", TS_WS, V_WA, V_WT, 51, s_cnt=52, sleep=16)
    a.label("TOK_SC_GO")
    a("s_barrier")
    def sc_mid():
        a(f"s_cmp_lg_u32 s{TS_WAVE}, 0")
        a("s_cbranch_scc1 TOK_SC_GO2")
        a(f"s_add_u32 s51, s{TS_S}, 1")
        a(f"v_mov_b32 v{V_WA}, {F_RPROG}")
        wait_words(a, "TSC_W0", TS_WS, V_WA, V_WT, 51, s_cnt=52, sleep=OPT('SL_RP', 10))
        a(f"""v_and_b32 v{V_WA}, 3, v{TV_LANE}
s_lshl_b32 s{TS_T}, s{TS_I}, 2
v_add_u32 v{V_WA}, s{TS_T}, v{V_WA}
v_lshlrev_b32 v{V_WA}, 9, v{V_WA}
v_add_u32 v{V_WA}, {F_REC}, v{V_WA}""")
        wait_words(a, "TSC_W1", TS_WS, V_WA, V_WT, 51, s_cnt=52, sleep=2)
        a.label("TOK_SC_GO2")
        a("s_barrier")
    T.emit_score(a, "MSC", mid=sc_mid)
    a("s_waitcnt vmcnt(0)")
    a("s_barrier")
    a(f"""s_cmp_lg_u32 s{TS_WAVE}, 0
s_cbranch_scc1 TOK_LOOP
s_lshl_b32 s{TS_T}, s{TS_S}, 7
s_lshl_b32 s{TS_T2}, s{TS_I}, 2
s_add_u32 s{TS_T}, s{TS_T}, s{TS_T2}
s_add_u32 s{TS_T}, s{TS_T}, {F_SC}
s_mov_b32 s51, 1""")
    publish_word(a, TS_WS, V_WT, V_Z, TS_T, 51)
    a("s_branch TOK_LOOP")
    a.label("TOK_PU")
    a(f"s_sub_u32 s{TS_I}, s{TS_I}, 8")
    a(f"s_cmp_lg_u32 s{TS_WAVE}, 0")
    a("s_cbranch_scc1 TOK_PU_GO")
    a(f"""v_and_b32 v{V_WA}, 31, v{TV_LANE}
v_lshlrev_b32 v{V_WA}, {PSH}, v{V_WA}
v_add_u32 v{V_WA}, {F_PROG + (R_U0 << PSH)}, v{V_WA}
s_add_u32 s51, s{TS_S}, 1""")
    wait_words(a, "TPU_W1", TS_WS, V_WA, V_WT, 51, s_cnt=52, sleep=16)
    a(f"""s_mul_i32 s{TS_T}, s{TS_I}, 5
s_lshr_b32 s{TS_T2}, s{TS_T}, 2
s_add_u32 s{TS_T}, s{TS_T}, 4
s_lshr_b32 s{TS_T}, s{TS_T}, 2
v_mov_b32 v{V_WA}, s{TS_T}
v_mov_b32 v{V_WT}, s{TS_T2}
v_and_b32 v{TV_T}, 1, v{TV_LANE}
v_cmp_eq_u32 vcc, 0, v{TV_T}
v_cndmask_b32 v{V_WA}, v{V_WA}, v{V_WT}, vcc
v_lshlrev_b32 v{V_WA}, {PSH}, v{V_WA}
v_add_u32 v{V_WA}, {F_PROG + (R_DN0 << PSH)}, v{V_WA}
s_lshl_b32 s51, s{TS_S}, 1
s_add_u32 s51, s51, 2""")
    wait_words(a, "TPU_W2", TS_WS, V_WA, V_WT, 51, s_cnt=52, sleep=16)
    a.label("TOK_PU_GO")
    a("s_barrier")
    def pu_mid():
        a(f"s_cmp_lg_u32 s{TS_WAVE}, 0")
        a("s_cbranch_scc1 TOK_PU_GO2")
        a(f"""s_lshl_b32 s{TS_T}, s{TS_S}, 7
s_add_u32 s{TS_T}, s{TS_T}, {F_SC}
v_and_b32 v{V_WA}, 7, v{TV_LANE}
v_lshlrev_b32 v{V_WA}, 2, v{V_WA}
v_add_u32 v{V_WA}, s{TS_T}, v{V_WA}""")
        wait_words(a, "TPU_W0", TS_WS, V_WA, V_WT, None, s_cnt=52, sleep=OPT('SL_SC', 6), imm_thr=1)
        a(f"""s_add_u32 s51, s{TS_S}, 1
v_lshlrev_b32 v{V_WA}, 7, v{TV_LANE}
v_add_u32 v{V_WA}, {F_REC}, v{V_WA}""")
        wait_words(a, "TPU_W3", TS_WS, V_WA, V_WT, 51, s_cnt=52, sleep=2)
        a(f"v_add_u32 v{V_WA}, 8192, v{V_WA}")
        wait_words(a, "TPU_W4", TS_WS, V_WA, V_WT, 51, s_cnt=52, sleep=2)
        a.label("TOK_PU_GO2")
        a("s_barrier")
    T.emit_pu(a, "MPU", mid=pu_mid)
    a("s_branch TOK_LOOP")
    a.label("TOK_END")
    trace(a, 4, 97)
    a("s_waitcnt vmcnt(0)")
    a("s_endpgm")

NINIT = 80
def gemm_init(a, P):
    import struct
    EX = 0
    a(f"""s_load_dwordx2 s[40:41], s[0:1], {KA['x']}
s_sub_u32 s62, s62, 48
s_mov_b32 s63, s62
s_waitcnt lgkmcnt(0)""")
    srd(a, 64, 40, S*D*2)
    def xloads():
        a(f"""s_lshl_b32 s42, s63, 4
v_add_u32 v104, s42, v3
v_mul_u32_u24 v104, 1280, v104
v_lshlrev_b32 v105, 4, v2
v_add_u32 v104, v104, v105
s_mul_i32 s42, s20, 320""")
        for p in range(5):
            a(f"buffer_load_dwordx4 {vr(16+4*p)}, v104, s[64:67], s42 offen offset:{p*64}")
    xloads()
    a(f"""s_mul_i32 s43, s62, 16800
v_lshlrev_b32 v106, 4, v0
v_add_u32 v106, s43, v106
v_mov_b32 v108, -1
v_mov_b32 v109, -1
v_mov_b32 v110, -1
v_mov_b32 v111, -1
v_mov_b32 v112, 0
v_mov_b32 v113, 0
v_mov_b32 v114, 0
v_mov_b32 v115, 0""")
    for slot in range(4):
        for r in range(4):
            a(f"s_mov_b32 s44, {RING + slot*RING_SLOT + r*4096}")
            a(f"buffer_store_dwordx4 {vr(108)}, v106, s[4:7], s44 offen sc1")
    a("v_cmp_gt_u32 vcc, 26, v0")
    a("s_and_saveexec_b64 s[46:47], vcc")
    a(f"s_cbranch_execz {P}_GI_NOP3")
    for slot in range(4):
        a(f"s_mov_b32 s44, {RING + slot*RING_SLOT + 16384}")
        a(f"buffer_store_dwordx4 {vr(108)}, v106, s[4:7], s44 offen sc1")
    a.label(f"{P}_GI_NOP3")
    a("s_mov_b64 exec, s[46:47]")
    a(f"""s_cmp_ge_u32 s62, 64
s_cbranch_scc1 {P}_GI_NOFL
s_cmp_lg_u32 s20, 0
s_cbranch_scc1 {P}_GI_NOFL
s_lshl_b32 s43, s62, 10
s_add_u32 s43, s43, {FLAGS}
v_lshlrev_b32 v107, 4, v1
buffer_store_dwordx4 {vr(112)}, v107, s[4:7], s43 offen sc1""")
    a.label(f"{P}_GI_NOFL")
    a("s_waitcnt vmcnt(16)")
    a.label(f"{P}_GI_LN")
    for r in range(20):
        a(f"v_lshlrev_b32 v{40+2*r}, 16, v{16+r}")
        a(f"v_and_b32 v{41+2*r}, 0xffff0000, v{16+r}")
    for k in range(4): a(f"v_add_f32 v{80+k}, v{40+k}, v{44+k}")
    for i in range(8, 40): a(f"v_add_f32 v{80+(i%4)}, v{80+(i%4)}, v{40+i}")
    a("v_add_f32 v80, v80, v81\nv_add_f32 v82, v82, v83\nv_add_f32 v80, v80, v82")
    def xreduce(r, t):
        a(f"v_mov_b32 v{t}, v{r}\nv_permlane16_swap_b32 v{r}, v{t}\nv_add_f32 v{r}, v{r}, v{t}")
        a(f"v_mov_b32 v{t}, v{r}\nv_permlane32_swap_b32 v{r}, v{t}\nv_add_f32 v{r}, v{r}, v{t}")
    def cross(r, off):
        a(f"""s_lshl_b32 s43, s20, 6
v_lshlrev_b32 v84, 2, v3
v_add_u32 v84, 132096, v84
v_add_u32 v85, s43, v84
s_mov_b32 exec_hi, 0
s_mov_b32 exec_lo, 0xffff
ds_write_b32 v85, v{r} offset:{EX+off}
s_mov_b64 exec, -1
s_waitcnt lgkmcnt(0)
s_barrier
ds_read_b32 v86, v84 offset:{EX+off}
ds_read_b32 v87, v84 offset:{EX+off+64}
ds_read_b32 v88, v84 offset:{EX+off+128}
ds_read_b32 v89, v84 offset:{EX+off+192}
s_waitcnt lgkmcnt(0)
v_add_f32 v86, v86, v87
v_add_f32 v88, v88, v89
v_add_f32 v{r}, v86, v88""")
    xreduce(80, 81)
    cross(80, 0)
    a(f"s_mov_b32 s45, 0x{struct.unpack('<I', struct.pack('<f', 1.0/640))[0]:08x}")
    a("v_mul_f32 v80, s45, v80")
    for i in range(40): a(f"v_sub_f32 v{40+i}, v{40+i}, v80")
    for k in range(4): a(f"v_mul_f32 v{90+k}, v{40+k}, v{40+k}")
    for i in range(4, 40): a(f"v_fmac_f32 v{90+(i%4)}, v{40+i}, v{40+i}")
    a("v_add_f32 v90, v90, v91\nv_add_f32 v92, v92, v93\nv_add_f32 v90, v90, v92")
    xreduce(90, 91)
    cross(90, 256)
    a("v_mul_f32 v90, s45, v90")
    a("v_add_f32 v90, 0x3727c5ac, v90")
    a("v_rsq_f32 v90, v90")
    for r in range(20):
        a(f"v_mul_f32 v{40+2*r}, v{40+2*r}, v90")
        a(f"v_mul_f32 v{41+2*r}, v{41+2*r}, v90")
        a(f"v_cvt_pk_bf16_f32 v{116+r}, v{40+2*r}, v{41+2*r}")
    a(f"""s_mul_i32 s43, s63, {20*1024}
s_mul_i32 s44, s20, {5*1024}
s_add_u32 s43, s43, s44
s_add_u32 s43, s43, {XN}
v_lshlrev_b32 v104, 4, v1""")
    for p in range(5):
        if p == 4: a("s_add_u32 s43, s43, 4096")
        a(f"buffer_store_dwordx4 {vr(116+4*p)}, v104, s[4:7], s43 offen offset:{(p%4)*1024} sc1")
    a(f"""s_add_u32 s63, s63, {NINIT}
s_cmp_ge_u32 s63, 128
s_cbranch_scc1 {P}_GI_END""")
    xloads()
    a("s_waitcnt vmcnt(0)")
    a("s_barrier")
    a(f"s_branch {P}_GI_LN")
    a.label(f"{P}_GI_END")
    a("s_waitcnt vmcnt(0)")
    a("s_barrier")
    a(f"""s_cmp_lg_u32 s20, 0
s_cbranch_scc1 {P}_GI_DONE
v_mov_b32 v110, 1
v_mov_b32 v111, {DB_INIT}
s_mov_b64 exec, 1
global_atomic_add v111, v110, s[76:77] sc1
s_mov_b64 exec, -1""")
    a.label(f"{P}_GI_DONE")

def wait_init(a, lbl):
    wait_dbg(a, lbl, 76, DB_INIT, 250, 251, 86, 88, thr=NINIT)

def gen_main_kernel(name="main_kernel"):
    a = Asm()
    kernel_header(a, name)
    if OPT('STAMP', 0): a("s_memtime s[100:101]")
    a(f"""s_cmp_ge_u32 s2, 256
s_cbranch_scc1 MK_END
s_load_dwordx2 s[74:75], s[0:1], {KA['ws']}
s_load_dwordx2 s[76:77], s[0:1], {KA['dbg']}
s_getreg_b32 s78, hwreg(HW_REG_XCC_ID)
s_and_b32 s78, s78, 7
s_waitcnt lgkmcnt(0)""")
    srd(a, 4, 74, WS_SIZE)
    lane_setup(a, 1, 2, 3, 24)
    a(f"""s_cmp_lg_u32 s24, 0
s_cbranch_scc1 MK_NORANK
v_mov_b32 v10, 1
s_lshl_b32 s79, s78, 2
v_mov_b32 v11, s79
s_mov_b64 exec, 1
global_atomic_add v12, v11, v10, s[76:77] sc0 sc1
s_waitcnt vmcnt(0)
v_readfirstlane_b32 s79, v12
s_mov_b32 s80, s78
s_cmp_lt_u32 s79, 32
s_cbranch_scc1 MK_HAVE
v_mov_b32 v11, 32
global_atomic_add v12, v11, v10, s[76:77] sc0 sc1
s_waitcnt vmcnt(0)
v_readfirstlane_b32 s81, v12
s_mov_b64 exec, 0xff
v_lshlrev_b32 v11, 2, v1
s_mov_b32 s82, 0""")
    a.label("MK_OVW")
    a(f"""global_load_dword v12, v11, s[76:77] sc1
s_waitcnt vmcnt(0)
s_mov_b32 s83, 0""")
    for x in range(8):
        a(f"v_readlane_b32 s84, v12, {x}\ns_add_u32 s83, s83, s84")
    a(f"""s_cmp_ge_u32 s83, 256
s_cbranch_scc1 MK_OVK
s_sleep 8
s_add_u32 s82, s82, 1
s_cmp_lt_u32 s82, 0x200000
s_cbranch_scc1 MK_OVW""")
    a.label("MK_OVK")
    for x in range(8):
        a(f"""v_readlane_b32 s84, v12, {x}
s_min_u32 s84, s84, 32
s_sub_u32 s85, 32, s84
s_cmp_lt_u32 s81, s85
s_cbranch_scc0 MK_NX{x}
s_mov_b32 s80, {x}
s_add_u32 s79, s84, s81
s_branch MK_HAVE""")
        a.label(f"MK_NX{x}")
        a("s_sub_u32 s81, s81, s85")
    a("s_mov_b32 s80, 7\ns_mov_b32 s79, 31")
    a.label("MK_HAVE")
    a(f"""s_mov_b64 exec, 1
s_lshl_b32 s80, s80, 8
s_or_b32 s80, s80, s79
v_mov_b32 v12, s80
v_mov_b32 v11, 0
ds_write_b32 v11, v12
s_waitcnt lgkmcnt(0)
s_mov_b64 exec, -1""")
    a.label("MK_NORANK")
    a(f"""s_barrier
v_mov_b32 v11, 0
ds_read_b32 v12, v11
s_waitcnt lgkmcnt(0)
v_readfirstlane_b32 s79, v12
s_barrier
s_lshr_b32 s80, s79, 8
s_and_b32 s79, s79, 255
s_cmp_ge_u32 s80, 4
s_cbranch_scc1 MK_GEMM
s_lshl_b32 s{R.S_J}, s80, 5
s_add_u32 s{R.S_J}, s{R.S_J}, s79""")
    a(f"s_mov_b32 s97, s{R.S_J}")
    trace(a, 0, 97)
    R.INITWAIT[0] = True
    R.rec_entry(a)
    R.rec_dispatch(a, flags=True)
    a.label("MK_GEMM")
    a(f"""s_lshl_b32 s51, s79, 2
s_sub_u32 s80, s80, 4
s_add_u32 s51, s51, s80
s_mov_b32 s{P.S_WAVE}, s24
s_lshl_b32 s{P.S_PROG}, s51, {PSH}
s_add_u32 s{P.S_PROG}, s{P.S_PROG}, {F_PROG}
s_add_u32 s97, s51, 128""")
    trace(a, 0, 97)
    a("s_mov_b32 s62, s51")
    a("s_cmp_lt_u32 s51, 48")
    a("s_cbranch_scc1 MK_NOINIT")
    gemm_init(a, "GI")
    a.label("MK_NOINIT")
    if OPT('DELAYW', 0):
        a(f"s_cmp_lt_u32 s51, {R_Q0}")
        a("s_cbranch_scc1 MK_NODLY")
        a(f"s_cmp_ge_u32 s51, {R_PROBE}")
        a("s_cbranch_scc1 MK_NODLY")
        n = OPT('DELAYW', 0)
        while n > 0:
            k = min(n, 127); a(f"s_sleep {k}"); n -= k
        a.label("MK_NODLY")
    a(f"""s_cmp_lt_u32 s51, {R_UP0}
s_cbranch_scc1 MK_QKV
s_cmp_lt_u32 s51, {R_DN0}
s_cbranch_scc1 MK_UP
s_cmp_lt_u32 s51, {R_U0}
s_cbranch_scc1 MK_DN
s_cmp_lt_u32 s51, {R_PROBE}
s_cbranch_scc1 MK_U
s_cmp_eq_u32 s51, {R_PROBE}
s_cbranch_scc0 MK_TOK""")
    R.probe(a, 24, 78, "MK_PR", 76)
    a("s_branch MK_TOK")
    a.label("MK_QKV")
    P.panel_role_setup(a, 'qkv', 51); P.emit_panel(a, 'qkv', 'MPQ', flags=True, init_hook=lambda: wait_init(a, "WI_Q"))
    a("s_branch MK_TOK")
    a.label("MK_UP")
    a(f"s_sub_u32 s51, s51, {R_UP0}")
    P.panel_role_setup(a, 'ffnup', 51); P.emit_panel(a, 'ffnup', 'MPU2', flags=True, init_hook=lambda: wait_init(a, "WI_U"))
    a("s_branch MK_TOK")
    a.label("MK_DN")
    a(f"s_sub_u32 s51, s51, {R_DN0}")
    P.panel_role_setup(a, 'down', 51); P.emit_panel(a, 'down', 'MPD', flags=True, init_hook=lambda: wait_init(a, "WI_D"))
    a("s_branch MK_TOK")
    a.label("MK_U")
    a(f"""s_sub_u32 s{T.US_H}, s51, {R_U0}
s_mov_b32 s{T.US_PROG}, s{P.S_PROG}
s_load_dwordx2 s[40:41], s[0:1], {KA['wo']}
s_waitcnt lgkmcnt(0)""")
    srd(a, T.US_WO, 40, H*E*D*2)
    T.emit_upanel(a, "MUP", flags=True, init_hook=lambda: wait_init(a, "WI_UP"))
    a.label("MK_TOK")
    trace(a, 3, 97)
    wait_init(a, "WI_T")
    a("s_barrier")
    tok_loop(a)
    a.label("MK_END")
    a("s_endpgm")
    return name, a.finalize(), kernel_desc(name, 512, 102, 256)
```

```python
from gen_common import *
import struct
def f2u(f): return struct.unpack('<I', struct.pack('<f', f))[0]

S_WS=4; S_W0=8; S_W1=12; S_X=16; S_WAVE=20; S_LB=21; S_COL=24; S_OUT=28; S_CNT=30; S_XG=31; S_WS_SLOT=32; S_T=33; S_RUN=34; S_T2=35; S_RSLOT=36; S_XRUN=37
V_LANE=1; V_G=2; V_N=3; V_GOFF=4; V_TR=5; V_T=6; V_L16=7; V_XA=8; V_XB=9; V_RING=10; V_ACC=26; V_EPI=58; V_GT=66; V_XO=90; V_XL=92; V_W=96

import os
OPT=lambda k,d: type(d)(os.environ.get(k,d))
S_PROG=52; S_DONE=53; S_CACHE=54; S_THR=55; S_W1T=56; S_W2T=57
V_PV=160; V_PZ=161; V_WA=162; V_WT=163; V_RP=164
def emit_panel(a, kind, pfx, sc1=True, ntiles=128, flags=False, init_hook=None, mid_hook=None, pre_hook=None):
    sc1 = OPT('SC1',1) and sc1
    SC = " sc1" if sc1 else ""
    if kind == 'down':
        KS, T, stride, perm = 48, 1, D*2, True
        xbase = HF
    elif kind == 'qkv':
        KS, T, stride, perm = 20, 4, H*E*2, False
        xbase = XN
    else:
        KS, T, stride, perm = 20, 4, F*2, False
        xbase = XN
    XT = KS*1024; n4 = KS//4; LOOK = OPT('LOOKD',3) if kind=='down' else OPT('LOOK',3)
    NR = 4 if LOOK<=3 else (LOOK+1 if KS%(LOOK+1)==0 else None)
    assert KS % NR == 0
    wreg = WReg(0, 256, V_W)
    RING0 = V_RING if NR==4 else 170
    if OPT('STAMP',0): a("s_memtime s[58:59]")
    a(f"s_lshl_b32 s{S_LB}, s{S_WAVE}, 15")
    if kind == 'qkv':
        units = [(S_W0, S_COL, p*32*stride) for p in range(KS)]
        load_w2(a, units, lambda u, T, k: wreg.pair(T*KS + u, k), 4, stride, perm, V_LANE, V_GOFF, V_TR, V_T, S_T, S_LB, mid_hook=mid_hook, pre_hook=pre_hook)
    elif kind == 'ffnup':
        units = []
        for p in range(KS): units += [(S_W0, S_COL, p*32*stride), (S_W1, S_COL+2, p*32*stride)]
        load_w2(a, units, lambda u, T, k: wreg.pair(((u & 1)*2 + T)*KS + (u >> 1), k), 2, stride, perm, V_LANE, V_GOFF, V_TR, V_T, S_T, S_LB, mid_hook=mid_hook, pre_hook=pre_hook)
    else:
        units = [(S_W0, S_COL, p*32*stride) for p in range(KS)]
        load_w2(a, units, lambda u, T, k: wreg.pair(u, k), 1, stride, perm, V_LANE, V_GOFF, V_TR, V_T, S_T, S_LB, mid_hook=mid_hook, pre_hook=pre_hook)
    def wq(T_, p): return wreg.quad(T_*KS + p)
    if flags: trace(a, 1, 97)
    if init_hook: init_hook()
    a("v_mov_b32 v165, 0x80000000")
    a("s_barrier")
    a(f"v_lshlrev_b32 v{V_L16}, 4, v{V_LANE}")
    a(f"s_mul_i32 s{S_T}, s{S_WAVE}, {n4*1024}")
    a(f"s_add_u32 s{S_XG}, s{S_T}, {xbase}")
    a(f"s_mov_b32 s{S_WS_SLOT}, s{S_T}")
    def dma():
        if flags and kind == 'down':
            a.uid += 1
            a(f"s_add_u32 s{S_THR}, s{S_THR}, 1")
            a(f"s_min_u32 s{S_W2T}, s{S_THR}, 128")
            wait_words(a, f"{pfx}_WH{a.uid}", S_WS, V_WA, V_WT, S_W2T, S_CACHE, 12, S_W1T, S_CNT+28)
        if flags and OPT('PACE', 0):
            a.uid += 1
            a(f"s_add_u32 s59, s59, 1")
            a(f"s_lshr_b32 s60, s59, 1")
            a(f"s_sub_u32 s60, s60, {OPT('LEAD', 6)}")
            a(f"s_cselect_b32 s60, 0, s60")
            a(f"s_min_u32 s60, s60, 63")
            wait_words(a, f"{pfx}_PC{a.uid}", S_WS, V_RP, V_WT, 60, 61, 1, S_W1T, S_CNT+28, sleep=16)
        k = 0
        while k < n4:
            a(f"s_add_u32 m0, s{S_WS_SLOT}, {k*1024}")
            a(f"s_add_u32 s{S_T}, s{S_XG}, {k*1024}")
            for j in range(min(4, n4-k)):
                a(f"buffer_load_dwordx4 v{V_L16}, s[{S_WS}:{S_WS+3}], s{S_T} offen offset:{j*1024} lds")
            k += 4
        a(f"s_add_u32 s{S_XG}, s{S_XG}, {XT}")
        a(f"s_add_u32 s{S_WS_SLOT}, s{S_WS_SLOT}, {XT}")
        a(f"s_sub_u32 s{S_T}, s{S_WS_SLOT}, {NSL*XT}")
        a(f"s_cmp_ge_u32 s{S_WS_SLOT}, {NSL*XT}")
        a(f"s_cselect_b32 s{S_WS_SLOT}, s{S_T}, s{S_WS_SLOT}")
    NSL = OPT('NSLD',3) if kind=='down' else OPT('NSL',3)
    assert NSL*XT <= 160*1024
    STAMP = OPT('STAMP',0) and not flags
    if STAMP: a("s_memtime s[60:61]")
    if flags:
        a(f"s_mov_b32 s{S_DONE}, 0")
        a(f"v_mov_b32 v{V_PZ}, 0")
        a(f"s_mov_b32 s{S_CACHE}, 0")
        a(f"s_mov_b32 s{S_THR}, 0")
        a("s_mov_b32 s59, 0")
        a("s_mov_b32 s61, 0")
        a(f"v_mov_b32 v{V_RP}, {F_RPROG}")
        if kind == 'down':
            a(f"v_min_u32 v{V_WA}, 11, v{V_LANE}")
            a(f"v_lshlrev_b32 v{V_WA}, {PSH}, v{V_WA}")
            a(f"v_add_u32 v{V_WA}, {F_PROG + (R_UP0 << PSH)}, v{V_WA}")
    for _ in range(NSL-1): dma()
    a(f"s_mov_b32 s{S_RSLOT}, {XT}")
    a(f"v_mov_b32 v{V_XA}, v{V_L16}")
    a(f"s_mov_b32 s{S_RUN}, 0")
    a(f"s_mov_b32 s{S_XRUN}, 0")
    if kind == 'ffnup':
        k = 2*0.7978845608028654*1.4426950408889634
        a(f"v_mov_b32 v{V_GT+16}, 0x{f2u(-k*0.044715):08x}")
        a(f"v_mov_b32 v{V_GT+17}, 0x{f2u(-k):08x}")
    if kind == 'down':
        a(f"v_mul_u32_u24 v{V_XO}, 1280, v{V_N}")
        a(f"v_lshlrev_b32 v{V_T}, 3, v{V_G}")
        a(f"v_add_u32 v{V_XO}, v{V_XO}, v{V_T}")
    a(f"s_waitcnt vmcnt({(NSL-2)*n4})")
    a("s_barrier")
    vx = [V_XA, V_XB]
    for pn in range(LOOK):
        a(f"ds_read_b128 {vr(RING0+4*(pn%NR))}, v{V_XA} offset:{pn*1024}")
    def epilogue(q, odd):
        ac = V_ACC + 16*q
        L = []
        if kind == 'qkv':
            for j in range(2):
                for r in range(4):
                    T_ = 2*j + (r >> 1)
                    L.append(f"v_cvt_pk_bf16_f32 v{V_EPI+4*j+r}, v{ac+4*T_+2*(r&1)}, v{ac+4*T_+2*(r&1)+1}")
                L.append(f"s_add_u32 s{S_T2}, s{S_RUN}, s{S_OUT+j}")
                L.append(f"buffer_store_dwordx4 {vr(V_EPI+4*j)}, v{V_L16 if not OPT('NOQST',0) else 165}, s[{S_WS}:{S_WS+3}], s{S_T2} offen{SC}")
            L.append(f"s_add_u32 s{S_RUN}, s{S_RUN}, {6144 if not odd else 384*1024-6144}")
        elif kind == 'ffnup':
            for e in range(8):
                g = ac + e; u = ac + 8 + e; t = V_GT + e
                L += [f"v_mul_f32 v{t}, v{g}, v{g}",
                      f"v_fma_f32 v{t}, v{t}, v{V_GT+16}, v{V_GT+17}",
                      f"v_mul_f32 v{t}, v{t}, v{g}",
                      f"v_exp_f32 v{t}, v{t}",
                      f"v_add_f32 v{t}, 1.0, v{t}",
                      f"v_rcp_f32 v{t}, v{t}",
                      f"v_mul_f32 v{V_GT+8+e}, v{g}, v{u}"]
            for e in range(8):
                L.append(f"v_mul_f32 v{V_GT+e}, v{V_GT+e}, v{V_GT+8+e}")
            for r in range(4):
                L.append(f"v_cvt_pk_bf16_f32 v{V_EPI+r}, v{V_GT+2*r}, v{V_GT+2*r+1}")
            L.append(f"s_add_u32 s{S_T2}, s{S_RUN}, s{S_OUT}")
            L.append(f"buffer_store_dwordx4 {vr(V_EPI)}, v{V_L16}, s[{S_WS}:{S_WS+3}], s{S_T2} offen{SC}")
            L.append(f"s_add_u32 s{S_RUN}, s{S_RUN}, {48*1024}")
        else:
            xl = V_XL + 2*q
            L.append(f"s_waitcnt vmcnt(XWAIT)")
            L += [f"v_lshlrev_b32 v{V_EPI}, 16, v{xl}", f"v_and_b32 v{V_EPI+1}, 0xffff0000, v{xl}",
                  f"v_lshlrev_b32 v{V_EPI+2}, 16, v{xl+1}", f"v_and_b32 v{V_EPI+3}, 0xffff0000, v{xl+1}"]
            for r in range(4):
                L.append(f"v_add_f32 v{V_EPI+r}, v{V_EPI+r}, v{ac+r}")
            L.append(f"s_add_u32 s{S_T2}, s{S_RUN}, s{S_OUT}")
            L.append(f"buffer_store_dwordx4 {vr(V_EPI)}, v{V_L16}, s[{S_WS}:{S_WS+3}], s{S_T2} offen{SC}")
            L.append(f"s_add_u32 s{S_RUN}, s{S_RUN}, {1024 if not odd else 80*1024-1024}")
        return L
    NST = {'qkv': 2, 'ffnup': 1, 'down': 1}[kind]
    NPUB = 1 if flags else 0
    def body(q, epi, tidx=None):
        ac = V_ACC + 16*q
        E_ = epilogue(1-q, odd=(1-q) == 1) if epi else []
        E_ = [x.replace('XWAIT', str(n4+1)) for x in E_]
        per = -(-len(E_) // (KS - 6)) if E_ else 0
        if kind == 'down':
            xl = V_XL + 2*q
            a(f"s_add_u32 s{S_T2}, s{S_XRUN}, s{S_OUT+1}")
            a(f"buffer_load_dwordx2 {vr(xl,2)}, v{V_XO}, s[{S_X}:{S_X+3}], s{S_T2} offen")
            a(f"s_add_u32 s{S_XRUN}, s{S_XRUN}, {16*1280}")
        for p in range(KS):
            pn = p + LOOK
            if pn == KS:
                per_tile_ld = 1 if kind == 'down' else 0
                ntl = NSL-2
                if tidx is None:
                    w = (NSL-3)*n4 + ntl*(NST+per_tile_ld)
                else:
                    ks = [k for k in range(tidx-ntl+1, tidx+1) if k >= 0]
                    w = (NSL-3)*n4 + sum((NST if k >= 1 else 0) + per_tile_ld for k in ks)
                assert NSL == 3 or not flags
                if flags and tidx != 0:
                    a.uid += 1
                    a(f"s_cmp_eq_u32 s{S_WAVE}, 0")
                    a(f"s_cbranch_scc1 {pfx}_SW{a.uid}")
                    a(f"s_waitcnt vmcnt({w})")
                    a(f"s_branch {pfx}_SX{a.uid}")
                    a.label(f"{pfx}_SW{a.uid}")
                    a(f"s_waitcnt vmcnt({w+1})")
                    a.label(f"{pfx}_SX{a.uid}")
                else:
                    a(f"s_waitcnt vmcnt({w})")
                a("s_barrier")
                a(f"v_add_u32 v{vx[1-q]}, s{S_RSLOT}, v{V_L16}")
                a(f"s_add_u32 s{S_RSLOT}, s{S_RSLOT}, {XT}")
                a(f"s_cmp_ge_u32 s{S_RSLOT}, {NSL*XT}")
                a(f"s_cselect_b32 s{S_RSLOT}, 0, s{S_RSLOT}")
                dma()
                if flags:
                    a.uid += 1
                    a(f"s_cmp_lg_u32 s{S_WAVE}, 0")
                    a(f"s_cbranch_scc1 {pfx}_NP{a.uid}")
                    publish_word(a, S_WS, V_PV, V_PZ, S_PROG, S_DONE)
                    a.label(f"{pfx}_NP{a.uid}")
                    if tidx != 0: a(f"s_add_u32 s{S_DONE}, s{S_DONE}, 1")
            if pn < KS:
                a(f"ds_read_b128 {vr(RING0+4*(pn%NR))}, v{vx[q]} offset:{pn*1024}")
            else:
                a(f"ds_read_b128 {vr(RING0+4*(pn%NR))}, v{vx[1-q]} offset:{(pn-KS)*1024}")
            a(f"s_waitcnt lgkmcnt({LOOK})")
            for T_ in range(T):
                c = "0" if p == 0 else vr(ac+4*T_)
                a(f"v_mfma_f32_16x16x32_bf16 {vr(ac+4*T_)}, {wq(T_,p)}, {vr(RING0+4*(p%NR))}, {c}")
            if p >= 2:
                for _ in range(per):
                    if E_: a(E_.pop(0))
        while E_: a(E_.pop(0))
    body(0, False, tidx=0)
    if flags:
        trace(a, 2, 97)
        if int(os.environ.get('TRACE', 0)):
            a("s_memtime s[86:87]\ns_waitcnt lgkmcnt(0)")
            trace(a, 6, 97, val=86)
    npeel = 0
    t = 1
    while t < NSL-1 or (t % 2 == 0):
        body(t % 2, True, tidx=t); t += 1
    if flags and kind == 'qkv' and OPT('EARLYPUB', 1):
        assert t == 3
        a("s_waitcnt vmcnt(0)")
        a("s_barrier")
        a(f"s_mov_b32 s{S_W1T}, 2")
        a.uid += 1
        a(f"s_cmp_lg_u32 s{S_WAVE}, 0")
        a(f"s_cbranch_scc1 {pfx}_EP{a.uid}")
        publish_word(a, S_WS, V_PV, V_PZ, S_PROG, S_W1T)
        a.label(f"{pfx}_EP{a.uid}")
    a(f"s_mov_b32 s{S_CNT}, {(ntiles-1-t)//2}")
    lp = f"{pfx}_LOOP"
    a.label(lp)
    body(1, True)
    body(0, True)
    a(f"s_sub_u32 s{S_CNT}, s{S_CNT}, 1")
    a(f"s_cmp_lg_u32 s{S_CNT}, 0")
    a(f"s_cbranch_scc1 {lp}")
    body(1, True)
    a("s_nop 7")
    for x in epilogue(1, odd=True):
        a(x.replace('XWAIT', '0'))
    a("s_waitcnt vmcnt(0) lgkmcnt(0)")
    if flags:
        if int(os.environ.get('TRACE', 0)):
            trace(a, 5, 97)
            a("s_memtime s[86:87]\ns_waitcnt lgkmcnt(0)")
            trace(a, 7, 97, val=86)
        a("s_barrier")
        a(f"s_mov_b32 s{S_DONE}, {ntiles}")
        publish_word(a, S_WS, V_PV, V_PZ, S_PROG, S_DONE)
        a("s_waitcnt vmcnt(0)")
    if STAMP:
        a(f"""s_memtime s[62:63]
s_load_dwordx2 s[56:57], s[0:1], {KA['dbg']}
s_waitcnt lgkmcnt(0)
s_sub_u32 s60, s60, s58
s_sub_u32 s62, s62, s58
v_mov_b32 v10, s60
v_mov_b32 v11, s62
s_lshl_b32 s33, s2, 3
s_cmp_lt_u32 s2, 16
s_cselect_b32 s33, s33, 248
v_mov_b32 v12, s33
s_mov_b64 exec, 1
global_store_dwordx2 v12, v[10:11], s[56:57]
s_waitcnt vmcnt(0)""")

def panel_role_setup(a, kind, s_role):
    if kind == 'qkv':
        a(f"""s_mul_i32 s40, s{s_role}, 2731
s_lshr_b32 s40, s40, 16
s_mul_i32 s41, s40, 24
s_sub_u32 s41, s{s_role}, s41
s_mov_b32 s42, {KA['wk']}
s_cmp_eq_u32 s40, 1
s_cselect_b32 s42, {KA['wv']}, s42
s_cmp_eq_u32 s40, 2
s_cselect_b32 s42, {KA['wq']}, s42
s_add_u32 s44, s0, s42
s_addc_u32 s45, s1, 0
s_load_dwordx2 s[46:47], s[44:45], 0
s_mov_b32 s43, {KX}
s_cmp_eq_u32 s40, 1
s_cselect_b32 s43, {VX}, s43
s_cmp_eq_u32 s40, 2
s_cselect_b32 s43, {QX}, s43
s_waitcnt lgkmcnt(0)""")
        srd(a, S_W0, 46, D*H*E*2)
        srd(a, S_W1, 46, D*H*E*2)
        a(f"""s_lshl_b32 s48, s41, 8
s_lshl_b32 s49, s{S_WAVE}, 6
s_add_u32 s48, s48, s49
s_lshl_b32 s48, s48, 1
s_mov_b32 s{S_COL}, s48
s_add_u32 s{S_COL+1}, s48, 32
s_add_u32 s{S_COL+2}, s48, 64
s_add_u32 s{S_COL+3}, s48, 96""")
        for j in range(2):
            a(f"""s_lshl_b32 s48, s41, 3
s_lshl_b32 s49, s{S_WAVE}, 1
s_add_u32 s48, s48, s49
s_add_u32 s48, s48, {j}
s_mul_i32 s49, s48, 10923
s_lshr_b32 s49, s49, 16
s_mul_i32 s50, s49, 6
s_sub_u32 s50, s48, s50
s_mul_i32 s49, s49, 12
s_add_u32 s49, s49, s50
s_lshl_b32 s49, s49, 10
s_add_u32 s{S_OUT+j}, s49, s43""")
    elif kind == 'ffnup':
        a(f"""s_load_dwordx2 s[46:47], s[0:1], {KA['wg']}
s_load_dwordx2 s[48:49], s[0:1], {KA['wu']}
s_waitcnt lgkmcnt(0)""")
        srd(a, S_W0, 46, D*F*2)
        srd(a, S_W1, 48, D*F*2)
        a(f"""s_lshl_b32 s48, s{s_role}, 2
s_add_u32 s48, s48, s{S_WAVE}
s_lshl_b32 s49, s48, 6
s_mov_b32 s{S_COL}, s49
s_add_u32 s{S_COL+1}, s49, 32
s_mov_b32 s{S_COL+2}, s49
s_add_u32 s{S_COL+3}, s49, 32
s_lshl_b32 s49, s48, 10
s_add_u32 s{S_OUT}, s49, {HF}""")
    else:
        a(f"""s_load_dwordx2 s[46:47], s[0:1], {KA['wd']}
s_load_dwordx2 s[48:49], s[0:1], {KA['x']}
s_waitcnt lgkmcnt(0)""")
        srd(a, S_W0, 46, F*D*2)
        srd(a, S_X, 48, S*D*2)
        a(f"""s_lshl_b32 s48, s{s_role}, 2
s_add_u32 s48, s48, s{S_WAVE}
s_lshl_b32 s{S_COL}, s48, 5
s_mov_b32 s{S_OUT+1}, s{S_COL}
s_lshl_b32 s49, s48, 11
s_add_u32 s{S_OUT}, s49, {BASE}""")

def gen_panel_kernel():
    a = Asm(); name = "panel_kernel"
    kernel_header(a, name)
    a(f"""s_cmp_ge_u32 s2, 84
s_cbranch_scc1 PK_END
s_load_dwordx2 s[38:39], s[0:1], {KA['ws']}
s_waitcnt lgkmcnt(0)""")
    srd(a, S_WS, 38, WS_SIZE)
    lane_setup(a, V_LANE, V_G, V_N, S_WAVE)
    a("s_cmp_ge_u32 s2, 72\ns_cbranch_scc1 PK_UP")
    a("s_mov_b32 s51, s2")
    panel_role_setup(a, 'qkv', 51)
    emit_panel(a, 'qkv', 'PKQ')
    a("s_endpgm")
    a.label("PK_UP")
    a("s_sub_u32 s51, s2, 72")
    panel_role_setup(a, 'ffnup', 51)
    emit_panel(a, 'ffnup', 'PKU')
    a.label("PK_END")
    a("s_endpgm")
    return name, a.finalize(), kernel_desc(name, 512, 64, 256)

def gen_down_kernel():
    a = Asm(); name = "down_kernel"
    kernel_header(a, name)
    a(f"""s_cmp_ge_u32 s2, 10
s_cbranch_scc1 DK_END
s_load_dwordx2 s[38:39], s[0:1], {KA['ws']}
s_waitcnt lgkmcnt(0)""")
    srd(a, S_WS, 38, WS_SIZE)
    lane_setup(a, V_LANE, V_G, V_N, S_WAVE)
    a("s_mov_b32 s51, s2")
    panel_role_setup(a, 'down', 51)
    emit_panel(a, 'down', 'PKD')
    a.label("DK_END")
    a("s_endpgm")
    return name, a.finalize(), kernel_desc(name, 512, 64, 256)
```

```python
from gen_common import *
import struct, os
OPT=lambda k,d: type(d)(os.environ.get(k,d))
def f2u(f): return struct.unpack('<I', struct.pack('<f', f))[0]

S_WS=4; S_WQ=8; S_WK=12; S_WV=16; S_WO=20
S_WAVE=24; S_H=25; S_C=26; S_J=27; S_STEP=28
S_P=29; S_CUR=30; S_N=31; S_NN=32
S_HI32=20
S_MQ=16
S_M8=34; S_H8=38
S_T=40; S_T2=41; S_T3=42; S_RETRY=43
S_KVG=44; S_UXG=45; S_UYG=46; S_KMG=47; S_RSB=48; S_KVL=49; S_KVR=50; S_RED=51; S_RSP=52; S_FLG=53
S_LB=54
S_COL=56
S_SCALE=60; S_MAXR=61
S_TS=62
S_M0=88
S_MODE=57
S_REF0=98
S_REF2=36
S_NOW=58
L_MEM=0; L_QKV=10240; L_KV=20480; KVB=24576
LDS_REC=131072
V_LANE=1; V_G=2; V_N=3; V_T=4; V_T2=5; V_L16=6
V_AGO=7; V_AGL=10; V_MRD=11; V_AGP=23
V_RSL=7
V_AST=12; V_KMS=15; V_APO=16; V_APL=19
V_RQ=20; V_IDX=21; V_RV=22; V_RSO=28; V_L4=29; V_AGS=30; V_ZERO=31
V_RSP=80
V_NINF=248; V_KVA=249
V_POLL=32; V_RING=48; V_ACC=88; V_PK=252; V_KXF=100; V_QF=148; V_KF=172; V_VF=196; V_S=220; V_UXF=232
V_Y=48; V_PU=64; V_UA=48; V_YF=220; V_SM=148
NT = [4, 4, 2]; T0 = [0, 4, 8]; P0 = [0, 2, 4]
KVX = L_KV ^ (L_KV+KVB)

def poll_check(a, regs, vt):
    r = list(regs)
    a(f"v_max3_u32 v{vt}, v{r[0]}, v{r[1]}, v{r[2]}")
    i = 3
    while i < len(r):
        if i + 1 < len(r):
            a(f"v_max3_u32 v{vt}, v{vt}, v{r[i]}, v{r[i+1]}"); i += 2
        else:
            a(f"v_max_u32 v{vt}, v{vt}, v{r[i]}"); i += 1
    a(f"v_cmp_eq_u32 vcc, -1, v{vt}")

def sleep(a, n):
    while n > 0:
        k = min(n, 127); a(f"s_sleep {k}"); n -= k

def mark(a, reg):
    a(f"s_memtime s[{reg}:{reg+1}]")

def wait_until(a, ref, delta):
    if delta <= 0: return
    a.uid += 1
    L = f"WU_{a.uid}"
    a.label(L)
    a(f"""s_memtime s[{S_NOW}:{S_NOW+1}]
s_waitcnt lgkmcnt(0)
s_sub_u32 s{S_NOW}, s{S_NOW}, s{ref}
s_cmp_ge_u32 s{S_NOW}, {delta}
s_cbranch_scc1 {L}_D
s_sub_u32 s{S_NOW}, {delta}, s{S_NOW}
s_cmp_lt_u32 s{S_NOW}, 96
s_cbranch_scc1 {L}
s_sleep 1
s_branch {L}""")
    a.label(f"{L}_D")

def stamp(a, idx):
    if OPT('STAMP', 0):
        a(f"s_memtime s[{S_TS+2*idx}:{S_TS+2*idx+1}]")

def racc(a, k):
    if OPT('STAMP', 0): a(f"s_add_u32 s{k}, s{k}, s{S_RETRY}")

def nearmap_v(a, v, vt):
    a(f"""v_lshrrev_b32 v{vt}, 13, v{v}
v_lshlrev_b32 v{vt}, 14, v{vt}
v_and_b32 v{v}, 0x1fff, v{v}
v_or_b32 v{v}, v{v}, v{vt}""")

def oob_mask(a, v, nlanes):
    a(f"""v_mov_b32 v{V_T}, 0x80000000
v_cmp_gt_u32 vcc, {nlanes}, v{V_LANE}
v_cndmask_b32 v{v}, v{V_T}, v{v}, vcc""")

V_AGB=48
def poll_loop(a, lbl, loads, nreg, acc, pre_issued=False, base=None):
    a(f"s_mov_b32 s{S_RETRY}, 0")
    if pre_issued:
        a(f"s_branch {lbl}_W")
    a.label(lbl)
    for x in loads: a(x)
    if pre_issued: a.label(f"{lbl}_W")
    a("s_waitcnt vmcnt(0)")
    b0 = V_POLL if base is None else base
    poll_check(a, range(b0, b0+nreg), V_T)
    a(f"""s_cbranch_vccz {lbl}_OK
s_add_u32 s{S_RETRY}, s{S_RETRY}, 1
s_cmp_lt_u32 s{S_RETRY}, s{S_MAXR}
s_cbranch_scc1 {lbl}
s_mov_b32 s{S_MAXR}, 0""")
    a.label(f"{lbl}_OK")
    racc(a, acc)

CURMODE = [None]
INITWAIT = [False]
def store_mode(a, lines):
    if CURMODE[0] is not None:
        for x in lines: a(x.replace(' SCX', '' if CURMODE[0] else ' sc1'))
        return
    if OPT('AFAST', 1) == 0:
        for x in lines: a(x.replace(' SCX', ' sc1'))
        return
    a.uid += 1
    L = f"SM_{a.uid}"
    a(f"s_cmp_eq_u32 s{S_MODE}, 0")
    a(f"s_cbranch_scc1 {L}_S")
    for x in lines: a(x.replace(' SCX', ''))
    a(f"s_branch {L}_E")
    a.label(f"{L}_S")
    for x in lines: a(x.replace(' SCX', ' sc1'))
    a.label(f"{L}_E")

def wait_mode(a, ref, fast, slow):
    if CURMODE[0] is not None:
        wait_until(a, ref, fast if CURMODE[0] else slow); return
    if OPT('AFAST', 1) == 0:
        wait_until(a, ref, slow); return
    a.uid += 1
    L = f"WM_{a.uid}"
    a(f"s_cmp_eq_u32 s{S_MODE}, 0")
    a(f"s_cbranch_scc1 {L}_S")
    wait_until(a, ref, fast)
    a(f"s_branch {L}_E")
    a.label(f"{L}_S")
    wait_until(a, ref, slow)
    a.label(f"{L}_E")

def ag_poll(a, pfx, w):
    wait_mode(a, S_REF2, OPT('T_AGF', 300), OPT('T_AG', 650))
    base = (w-2)*5
    loads = [f"buffer_load_dwordx4 {vr(V_AGB+4*k)}, v{V_AGP+k}, s[{S_WS}:{S_WS+3}], s{S_P} offen sc1" for k in range(5)]
    poll_loop(a, f"{pfx}_AGP", loads, 20, 92, base=V_AGB)
    for k in range(5):
        a(f"ds_write_b128 v{V_L16}, {vr(V_AGB+4*k)} offset:{L_MEM + (base+k)*1024}")

def reduce_blocks(a, pfx, nb, SEL, base_reg, s_poll, v_ags, acc, apk):
    loads = []
    for b in range(nb):
        for q in range(4):
            loads.append(f"buffer_load_dwordx4 {vr(base_reg+16*b+4*q)}, v{V_L16}, s[{S_WS}:{S_WS+3}], s{s_poll[b]} offen offset:{q*1024} sc1")
    poll_loop(a, f"{pfx}_RP", loads, 16*nb, 94, base=base_reg)
    stamp(a, 7)
    for q in range(4):
        for b in range(nb):
            c = "0" if q == 0 else vr(acc+8*b)
            a(f"v_mfma_f32_16x16x32_bf16 {vr(acc+8*b)}, {vr(SEL)}, {vr(base_reg+16*b+4*q)}, {c}")
    for b in range(nb):
        for r in range(4):
            a(f"v_add_f32_dpp v{acc+8*b+4+r}, v{acc+8*b+r}, v{acc+8*b+r} row_ror:8 row_mask:0xf bank_mask:0xf")
    if nb == 2:
        for r in range(4): a(f"v_cndmask_b32 v{acc+4+r}, v{acc+4+r}, v{acc+12+r}, s[{S_H8}:{S_H8+1}]")
    a(f"v_cvt_pk_bf16_f32 v{apk}, v{acc+4}, v{acc+5}")
    a(f"v_cvt_pk_bf16_f32 v{apk+1}, v{acc+6}, v{acc+7}")
    a(f"v_mov_b32 v{apk+2}, v{apk}\nv_mov_b32 v{apk+3}, v{apk+1}")
    a(f"v_mov_b32 v{apk+4}, v{apk}\nv_mov_b32 v{apk+5}, v{apk+1}")
    a(f"v_permlane16_swap_b32 v{apk+4}, v{apk+2}")
    a(f"v_permlane16_swap_b32 v{apk+5}, v{apk+3}")
    store_mode(a, [f"buffer_store_dwordx4 {vr(apk)}, v{v_ags}, s[{S_WS}:{S_WS+3}], s{S_CUR} offen SCX"])

def sel_setup(a, SEL):
    for k in range(4):
        a(f"""v_mov_b32 v{SEL+k}, 0
v_mov_b32 v{V_T}, 0x3f80
v_cmp_eq_u32 vcc, {2*k}, v{V_N}
v_cndmask_b32 v{SEL+k}, v{SEL+k}, v{V_T}, vcc
v_mov_b32 v{V_T}, 0x3f800000
v_cmp_eq_u32 vcc, {2*k+1}, v{V_N}
v_cndmask_b32 v{SEL+k}, v{SEL+k}, v{V_T}, vcc""")

def blk_off(a, s_cb, s_out, s_tmp):
    a(f"""s_lshr_b32 s{s_out}, s{s_cb}, 1
s_lshl_b32 s{s_out}, s{s_out}, 14
s_and_b32 s{s_tmp}, s{s_cb}, 1
s_lshl_b32 s{s_tmp}, s{s_tmp}, 12
s_add_u32 s{s_out}, s{s_out}, s{s_tmp}
s_add_u32 s{s_out}, s{s_out}, {nearmap(RS_LOG)}""")

def rotate_slots(a):
    a(f"""s_mov_b32 s{S_T}, s{S_P}
s_mov_b32 s{S_P}, s{S_CUR}
s_mov_b32 s{S_CUR}, s{S_N}
s_mov_b32 s{S_N}, s{S_NN}
s_mov_b32 s{S_NN}, s{S_T}""")

def proj_stage(a, ntile, w8):
    for K in range(10):
        a(f"ds_read_b128 {vr(V_RING+4*K)}, v{V_L16} offset:{L_MEM + K*1024}")
    for t in range(ntile):
        for r in range(4): a(f"v_mov_b32 v{V_ACC+4*t+r}, 0")
    for K in range(10):
        a(f"s_waitcnt lgkmcnt({9-K})")
        for t in range(ntile):
            a(f"v_smfmac_f32_16x16x64_bf16 {vr(V_ACC+4*t)}, {vr(V_RING+4*K)}, {w8(t,K)}, v{V_IDX}")

def pack_pair(x, y, pk):
    L = [f"v_permlane32_swap_b32 v{x+r}, v{y+r}" for r in range(4)]
    L += [f"v_add_f32 v{x+r}, v{x+r}, v{y+r}" for r in range(4)]
    L += [f"v_cvt_pk_bf16_f32 v{pk}, v{x}, v{x+1}", f"v_cvt_pk_bf16_f32 v{pk+1}, v{x+2}, v{x+3}"]
    return L

def idle_phase(a, w, woq):
    nt = NT[w]
    a(f"v_add_u32 v{V_T}, s{S_KVR}, v{V_L16}")
    for f in range(12):
        a(f"ds_read_b128 {vr(V_QF+4*f)}, v{V_T} offset:{12288 + f*1024}")
        if f == 7: a("s_waitcnt lgkmcnt(4)")
    a("s_waitcnt lgkmcnt(0)")
    for f in range(12):
        a(f"ds_read_b128 {vr(V_KXF+4*f)}, v{V_T} offset:{f*1024}")
    for p in range(6):
        for t in range(nt):
            for tt in range(2):
                d = V_UA + 8*t + 4*tt
                c = "0" if p == 0 else vr(d)
                a(f"v_mfma_f32_16x16x32_bf16 {vr(d)}, {vr(V_QF+4*(tt*6+p))}, {woq(t,p)}, {c}")
    for t in range(nt):
        for k in range(4):
            tt = k >> 1
            d = V_UA + 8*t + 4*tt + 2*(k & 1)
            a(f"v_cvt_pk_bf16_f32 v{V_UXF+4*t+k}, v{d}, v{d+1}")
        a(f"s_add_u32 s{S_T}, s{S_UXG}, {t*1024}")
        if OPT('UXST', 0): a(f"buffer_store_dwordx4 {vr(V_UXF+4*t)}, v{V_L16}, s[{S_WS}:{S_WS+3}], s{S_T} offen sc1")
    a(f"s_add_u32 s{S_UXG}, s{S_UXG}, {32*40*1024}")
    a("s_waitcnt lgkmcnt(0)")
    a(f"s_xor_b32 s{S_KVR}, s{S_KVR}, {KVX}")

S_KVT=33
S_KVC=21
def kv_dma(a, flags=False, pfx='', w=0):
    if w < 2:
        if flags:
            a.uid += 1
            a(f"s_add_u32 s{S_KVT}, s{S_KVT}, 2")
            a(f"s_min_u32 s{S_T3}, s{S_KVT}, 128")
            wait_words(a, f"{pfx}_WKV{a.uid}", S_WS, V_KVA, V_T, S_T3, 22, 4, S_T2, 23)
        for k in range(3):
            a(f"s_add_u32 m0, s{S_KVL}, {w*12288 + k*4096}")
            a(f"s_add_u32 s{S_T}, s{S_KVG}, {k*4096}")
            for j in range(4):
                a(f"buffer_load_dwordx4 v{V_L16}, s[{S_WS}:{S_WS+3}], s{S_T} offen offset:{j*1024} sc1 lds")
        a(f"s_add_u32 s{S_KVG}, s{S_KVG}, {32*12288}")
    a(f"s_xor_b32 s{S_KVL}, s{S_KVL}, {KVX}")

def softmax_lists():
    X = V_SM; MX = V_SM+6; TM = V_SM+7; RS_ = V_SM+8; PT = V_SM+12; PM = V_SM+10; T2 = V_SM+16
    L = []
    for r in range(4): L.append(f"v_cndmask_b32 v{X+r}, v{V_S+4+r}, v{V_S+8+r}, s[{S_H8}:{S_H8+1}]")
    L.append(f"v_cndmask_b32 v{X+4}, v{V_S}, v{V_S+2}, s[{S_H8}:{S_H8+1}]")
    L.append(f"v_cndmask_b32 v{X+5}, v{V_S+1}, v{V_S+3}, s[{S_H8}:{S_H8+1}]")
    L.append(f"v_max3_f32 v{MX}, v{X}, v{X+1}, v{X+2}")
    L.append(f"v_max3_f32 v{TM}, v{X+3}, v{X+4}, v{X+5}")
    L.append(f"v_max_f32 v{MX}, v{MX}, v{TM}")
    L.append(f"v_max_f32_dpp v{MX}, v{MX}, v{MX} row_ror:8 row_mask:0xf bank_mask:0xf")
    L += [f"v_mov_b32 v{TM}, v{MX}", f"v_permlane16_swap_b32 v{MX}, v{TM}", f"v_max_f32 v{MX}, v{MX}, v{TM}"]
    L += [f"v_mov_b32 v{TM}, v{MX}", f"v_permlane32_swap_b32 v{MX}, v{TM}", f"v_max_f32 v{MX}, v{MX}, v{TM}"]
    L.append(f"v_mul_f32 v{MX}, s{S_SCALE}, v{MX}")
    for j in range(6): L.append(f"v_fma_f32 v{X+j}, v{X+j}, s{S_SCALE}, -v{MX}")
    for j in range(6): L.append(f"v_exp_f32 v{X+j}, v{X+j}")
    L.append(f"v_cvt_pk_bf16_f32 v{PT}, v{X}, v{X+1}")
    L.append(f"v_cvt_pk_bf16_f32 v{PT+1}, v{X+2}, v{X+3}")
    L.append(f"v_cvt_pk_bf16_f32 v{PM}, v{X+4}, v{X+5}")
    L.append(f"v_mov_b32_dpp v{PT+2}, v{PT} row_ror:8 row_mask:0xf bank_mask:0xf")
    L.append(f"v_mov_b32_dpp v{PT+3}, v{PT+1} row_ror:8 row_mask:0xf bank_mask:0xf")
    L.append(f"v_mov_b32_dpp v{PM+1}, v{PM} row_ror:8 row_mask:0xf bank_mask:0xf")
    M = [f"v_cndmask_b32 v{X+4}, v{X+4}, v{V_ZERO}, s[{S_HI32}:{S_HI32+1}]",
         f"v_cndmask_b32 v{X+5}, v{X+5}, v{V_ZERO}, s[{S_HI32}:{S_HI32+1}]",
         f"v_add_f32 v{RS_}, v{X}, v{X+1}", f"v_add_f32 v{TM}, v{X+2}, v{X+3}", f"v_add_f32 v{RS_+1}, v{X+4}, v{X+5}",
         f"v_add_f32 v{RS_}, v{RS_}, v{TM}", f"v_add_f32 v{RS_}, v{RS_}, v{RS_+1}",
         f"v_add_f32_dpp v{RS_}, v{RS_}, v{RS_} row_ror:8 row_mask:0xf bank_mask:0xf",
         f"v_mov_b32 v{TM}, v{RS_}", f"v_permlane16_swap_b32 v{RS_}, v{TM}", f"v_add_f32 v{RS_}, v{RS_}, v{TM}",
         f"v_mov_b32 v{TM}, v{RS_}", f"v_permlane32_swap_b32 v{RS_}, v{TM}", f"v_add_f32 v{RS_}, v{RS_}, v{TM}",
         f"v_rcp_f32 v{RS_}, v{RS_}"]
    return PT, PM, RS_, L, M

def gi(a, v):
    a(f"""v_lshlrev_b32 v{v}, 7, v{V_G}
v_and_b32 v{V_T}, 7, v{V_LANE}
v_lshlrev_b32 v{V_T}, 4, v{V_T}
v_add_u32 v{v}, v{v}, v{V_T}""")

def rs_lane(a, v):
    a(f"""v_lshrrev_b32 v{v}, 1, v{V_G}
v_lshlrev_b32 v{v}, 14, v{v}
v_and_b32 v{V_T}, 1, v{V_G}
v_lshlrev_b32 v{V_T}, 12, v{V_T}
v_add_u32 v{v}, v{v}, v{V_T}
v_and_b32 v{V_T}, 7, v{V_LANE}
v_lshlrev_b32 v{V_T}, 4, v{V_T}
v_add_u32 v{v}, v{v}, v{V_T}
s_lshl_b32 s{S_T}, s{S_H}, 7
v_add_u32 v{v}, s{S_T}, v{v}""")

def main_wave(a, w, flags=False):
    pfx = f"RM{w}"
    nt = NT[w]
    wreg = WReg(0, 256, 0)
    w8 = lambda t, K: ar((t*20 + 2*K)*4, 8)
    woq = lambda t, p: wreg.quad(40 + t*6 + p)
    a(f"s_lshl_b32 s{S_LB}, s{S_WAVE}, 15")
    a(f"""s_mul_i32 s{S_COL}, s{S_H}, 384
s_mul_i32 s{S_T}, s{S_C}, 96
s_add_u32 s{S_COL}, s{S_COL}, s{S_T}
s_add_u32 s{S_COL}, s{S_COL}, {w*32}""")
    units = []
    for p in range(20): units += [(S_WQ, S_COL, p*32*H*E*2), (S_WK, S_COL, p*32*H*E*2)]
    load_w2(a, units, lambda u, T, k: wreg.pair((u & 1)*20 + (u >> 1), k), 1, H*E*2, 2, V_LANE, V_POLL, V_POLL+1, V_T, S_T, S_LB)
    a(f"""s_mul_i32 s{S_COL}, s{S_H}, {192*1280}
s_mul_i32 s{S_T}, s{S_C}, 320
s_add_u32 s{S_COL}, s{S_COL}, s{S_T}
s_add_u32 s{S_COL}, s{S_COL}, {T0[w]*32}""")
    ng = nt//2
    units = [(S_WO, S_COL, g*64 + p*32*1280) for p in range(6) for g in range(ng)]
    load_w2(a, units, lambda u, T, k: wreg.pair(40 + ((u % ng)*2 + T)*6 + u // ng, k), 2, D*2, True, V_LANE, V_POLL, V_POLL+1, V_T, S_T, S_LB)
    if OPT('STAMP', 0): a("s_memtime s[78:79]\ns_waitcnt lgkmcnt(0)\ns_sub_u32 s95, s78, s100")
    common_setup(a, w)
    gi(a, V_KMS)
    a(f"v_add_u32 v{V_KMS}, {w*1024}, v{V_KMS}")
    a(f"""v_lshrrev_b32 v{V_AST}, 1, v{V_G}
v_mul_u32_u24 v{V_AST}, 3072, v{V_AST}
v_lshlrev_b32 v{V_T}, 4, v{V_N}
v_add_u32 v{V_AST}, v{V_AST}, v{V_T}
v_and_b32 v{V_T}, 1, v{V_G}
v_lshlrev_b32 v{V_T}, 3, v{V_T}
v_add_u32 v{V_AST}, v{V_AST}, v{V_T}
s_mul_i32 s{S_T}, s{S_C}, 3
s_add_u32 s{S_T}, s{S_T}, {w}
s_lshl_b32 s{S_T}, s{S_T}, 8
s_mul_i32 s{S_T2}, s{S_H}, 9216
s_add_u32 s{S_T}, s{S_T}, s{S_T2}
v_add_u32 v{V_AST}, s{S_T}, v{V_AST}""")
    nearmap_v(a, V_AST, V_T)
    a(f"""s_add_u32 s{S_T}, s{S_T2}, {w*2048}
v_add_u32 v{V_APO}, s{S_T}, v{V_L16}
v_add_u32 v{V_APO+1}, 1024, v{V_APO}
v_add_u32 v{V_APL}, {L_QKV + w*2048}, v{V_L16}""")
    nearmap_v(a, V_APO, V_T); nearmap_v(a, V_APO+1, V_T)
    a(f"""v_lshlrev_b32 v{V_RQ}, 2, v{V_G}
v_bfe_u32 v{V_T}, v{V_LANE}, 2, 2
v_add_u32 v{V_RQ}, v{V_RQ}, v{V_T}
v_lshlrev_b32 v{V_RQ}, 4, v{V_RQ}
v_and_b32 v{V_T}, 1, v{V_LANE}
v_lshlrev_b32 v{V_T}, 3, v{V_T}
v_add_u32 v{V_RQ}, v{V_RQ}, v{V_T}
v_add_u32 v{V_RQ}, {L_QKV}, v{V_RQ}""")
    a(f"""v_bfe_u32 v{V_RV}, v{V_LANE}, 5, 1
v_lshlrev_b32 v{V_RV}, 5, v{V_RV}
v_bfe_u32 v{V_T}, v{V_LANE}, 4, 1
v_lshlrev_b32 v{V_T}, 3, v{V_T}
v_add_u32 v{V_RV}, v{V_RV}, v{V_T}
v_bfe_u32 v{V_T}, v{V_LANE}, 2, 1
v_add_u32 v{V_RV}, v{V_RV}, v{V_T}
v_bfe_u32 v{V_T}, v{V_LANE}, 3, 1
v_lshlrev_b32 v{V_T}, 4, v{V_T}
v_add_u32 v{V_RV}, v{V_RV}, v{V_T}
v_bfe_u32 v{V_T}, v{V_LANE}, 1, 1
v_lshlrev_b32 v{V_T}, 1, v{V_T}
v_add_u32 v{V_RV}, v{V_RV}, v{V_T}
v_lshlrev_b32 v{V_RV}, 4, v{V_RV}
v_and_b32 v{V_T}, 1, v{V_LANE}
v_lshlrev_b32 v{V_T}, 3, v{V_T}
v_add_u32 v{V_RV}, v{V_RV}, v{V_T}
v_add_u32 v{V_RV}, {L_QKV+6144}, v{V_RV}""")
    rs_lane(a, V_RSO)
    a(f"""s_mul_i32 s{S_RSB}, s{S_C}, {5*32768}
s_add_u32 s{S_RSB}, s{S_RSB}, {nearmap(RS_LOG) + P0[w]*32768}
s_mul_i32 s{S_T}, s{S_H}, 12288
s_add_u32 s{S_KVG}, s{S_T}, {KX if w == 0 else VX}
s_mul_i32 s{S_T}, s{S_H}, 40
s_mul_i32 s{S_T2}, s{S_C}, 10
s_add_u32 s{S_T}, s{S_T}, s{S_T2}
s_add_u32 s{S_T}, s{S_T}, {T0[w]}
s_lshl_b32 s{S_UXG}, s{S_T}, 10
s_add_u32 s{S_UXG}, s{S_UXG}, {UX}
s_lshl_b32 s{S_UYG}, s{S_T}, 8
s_add_u32 s{S_UYG}, s{S_UYG}, {UY}
s_mul_i32 s{S_KMG}, s{S_H}, 3072
s_add_u32 s{S_KMG}, s{S_KMG}, {KM}
s_mov_b32 s{S_KVL}, {L_KV}
s_mov_b32 s{S_KVR}, {L_KV}
s_lshl_b32 s{S_FLG}, s{S_J}, 7
s_add_u32 s{S_FLG}, s{S_FLG}, {F_REC}""")
    if w == 2:
        a(f"""s_and_b32 s{S_COL}, s{S_J}, 31
s_cmp_lt_u32 s{S_COL}, 16
s_cselect_b32 s{S_RED}, 1, 0
s_add_u32 s{S_COL}, s{S_COL}, 64""")
        blk_off(a, S_COL, S_RSP, S_T)
        a(f"""s_lshr_b32 s{S_T}, s{S_J}, 5
s_mul_i32 s{S_T}, s{S_T}, 10240
s_add_u32 s{S_T}, s{S_T}, {AG_LOG}
s_lshl_b32 s{S_T3}, s{S_COL}, 7
s_add_u32 s{S_T}, s{S_T}, s{S_T3}
v_add_u32 v{V_AGS}, s{S_T}, v{V_L16}""")
        nearmap_v(a, V_AGS, V_T)
        oob_mask(a, V_AGS, 8)
        sel_setup(a, 240)
    if flags:
        a(f"""s_mul_i32 s{S_T}, s{S_H}, 6
s_lshr_b32 s{S_T2}, s{S_T}, 3
s_add_u32 s{S_T}, s{S_T}, 5
s_lshr_b32 s{S_T}, s{S_T}, 3
v_mov_b32 v{V_KVA}, s{S_T}
v_mov_b32 v{V_T}, s{S_T2}
v_and_b32 v{V_T2}, 1, v{V_LANE}
v_cmp_eq_u32 vcc, 0, v{V_T2}
v_cndmask_b32 v{V_KVA}, v{V_KVA}, v{V_T}, vcc
v_cmp_lt_u32 vcc, 1, v{V_LANE}
v_mov_b32 v{V_T}, {R_V0}
v_cndmask_b32 v{V_T}, 0, v{V_T}, vcc
v_add_u32 v{V_KVA}, v{V_KVA}, v{V_T}
v_lshlrev_b32 v{V_KVA}, {PSH}, v{V_KVA}
v_add_u32 v{V_KVA}, {F_PROG}, v{V_KVA}
s_mov_b32 s{S_KVT}, 0
s_mov_b32 s22, 0""")
    if flags and w == 0: trace(a, 1, S_J)
    read_polarity(a, pfx)
    if flags and w == 0: trace(a, 2, S_J)
    a("s_barrier")
    mem0_stage(a, w)
    kv_dma(a, flags, pfx, w)
    if flags and w == 0: trace(a, 3, S_J)
    a("s_waitcnt vmcnt(0) lgkmcnt(0)")
    a("s_barrier")
    idle_phase(a, w, woq)
    if flags and w == 0:
        trace(a, 4, S_J)
        if int(os.environ.get('TRACE', 0)):
            a("s_memtime s[86:87]\ns_waitcnt lgkmcnt(0)")
            trace(a, 6, S_J, val=86)
    stamp(a, 0)
    if OPT('STAMP', 0): a(f"s_waitcnt lgkmcnt(0)\ns_sub_u32 s101, s{S_TS}, s100")
    pfx0 = pfx
    a(f"s_cmp_eq_u32 s{S_MODE}, 0")
    a(f"s_cbranch_scc1 {pfx0}S_B0")
    a(f"s_branch {pfx0}F_B0")
    for mode in (1, 0):
        CURMODE[0] = mode
        pfx = pfx0 + ("F" if mode else "S")
        main_loop(a, w, flags, pfx, nt, w8, woq)
    CURMODE[0] = None

def main_loop(a, w, flags, pfx, nt, w8, woq):
    wo8 = lambda t, K: ar((40 + t*6 + 2*K)*4, 8)
    a.label(f"{pfx}_LOOP")
    stamp(a, 0)
    if w == 2: ag_poll(a, pfx, w)
    a.label(f"{pfx}_B0")
    a("s_waitcnt lgkmcnt(0)")
    a("s_barrier")
    mark(a, S_REF0)
    stamp(a, 1)
    proj_stage(a, 2, w8)
    for x in pack_pair(V_ACC, V_ACC+4, V_PK): a(x)
    store_mode(a, [f"buffer_store_dwordx2 {vr(V_PK,2)}, v{V_AST}, s[{S_WS}:{S_WS+3}], s{S_CUR} offen SCX"])
    stamp(a, 2)
    if w < 2:
        a(f"s_cmp_lg_u32 s{S_STEP}, 0")
        a(f"s_cbranch_scc1 {pfx}_NOS1")
        kv_dma(a, flags, pfx, w)
        a.label(f"{pfx}_NOS1")
    for t in range(nt):
        for r in range(4): a(f"v_mov_b32 v{V_Y+4*t+r}, 0")
    wait_mode(a, S_REF0, OPT('T_AF', 850), OPT('T_A', 1150))
    loads = [f"buffer_load_dwordx4 {vr(V_POLL+4*k)}, v{V_APO+k}, s[{S_WS}:{S_WS+3}], s{S_CUR} offen sc1" for k in range(2)]
    poll_loop(a, f"{pfx}_AP", loads, 8, 93)
    a(f"ds_write_b128 v{V_APL}, {vr(V_POLL)}")
    a(f"ds_write_b128 v{V_APL}, {vr(V_POLL+4)} offset:1024")
    a("s_waitcnt lgkmcnt(0)")
    stamp(a, 3)
    a("s_barrier")
    stamp(a, 4)
    reads = []
    for p in range(6):
        for (reg, typ) in ((V_QF, 0), (V_KF, 1)):
            for k in range(2):
                reads.append(f"ds_read_b64_tr_b16 {vr(reg+4*p+2*k,2)}, v{V_RQ} offset:{typ*3072 + (2*p+k)*256}")
    vreads = [f"ds_read_b64_tr_b16 {vr(V_VF+4*K+2*k,2)}, v{V_RV} offset:{K*1024 + k*64}" for K in range(3) for k in range(2)]
    TWOB = OPT('TWOB', 1)
    if not TWOB: reads += vreads
    issued = 0
    def iss(n):
        nonlocal issued
        for _ in range(n):
            if issued < len(reads): a(reads[issued]); issued += 1
    iss(12)
    for p in range(6):
        a(f"s_waitcnt lgkmcnt({issued - (4*p+4)})")
        for u, A_ in enumerate((vr(V_KXF+4*p), vr(V_KXF+4*(6+p)), vr(V_KF+4*p))):
            d = V_S + (4 if u == 0 else 8 if u == 1 else 0)
            c = "0" if p == 0 else vr(d)
            a(f"v_mfma_f32_16x16x32_bf16 {vr(d)}, {A_}, {vr(V_QF+4*p)}, {c}")
        iss(4)
    if TWOB:
        a("s_barrier")
        if w == 2: mark(a, 96)
        for x in vreads: a(x)
    stamp(a, 5)
    ym = []
    for K in range(3):
        for t in range(nt):
            pre = f"s_waitcnt lgkmcnt({6 - (2*K + 2)})\n" if t == 0 else ""
            ym.append(pre + f"v_smfmac_f32_16x16x64_bf16 {vr(V_Y+4*t)}, {vr(V_VF+4*K)}, {wo8(t,K)}, v{V_IDX}")
    PT, PM, RS_, L1, L2 = softmax_lists()
    yc = [f"v_cvt_pk_bf16_f32 v{V_YF+2*t+k}, v{V_Y+4*t+2*k}, v{V_Y+4*t+2*k+1}" for t in range(nt) for k in range(2)]
    step = max(1, (len(L1)-6) // len(ym))
    for i, x in enumerate(L1):
        if ym and i >= 2 and (i-2) % step == 0: a(ym.pop(0))
        a(x)
    while ym: a(ym.pop(0))
    for t in range(nt):
        a(f"v_mfma_f32_16x16x32_bf16 {vr(V_PU+4*t)}, {vr(V_UXF+4*t)}, {vr(PT)}, 0")
        for _ in range(2):
            if yc: a(yc.pop(0))
    for t in range(nt):
        a(f"v_mfma_f32_16x16x16_bf16 {vr(V_PU+4*t)}, {vr(V_YF+2*t,2)}, {vr(PM,2)}, {vr(V_PU+4*t)}")
        for _ in range(4):
            if L2: a(L2.pop(0))
    while L2: a(L2.pop(0))
    a(f"v_mov_b32 v{RS_+1}, v{RS_}")
    for t in range(nt):
        for r in range(0, 4, 2): a(f"v_pk_mul_f32 {vr(V_PU+4*t+r,2)}, {vr(V_PU+4*t+r,2)}, {vr(RS_,2)}")
    for t in range(nt):
        a(f"v_cvt_pk_bf16_f32 v{V_RSP+2*t}, v{V_PU+4*t}, v{V_PU+4*t+1}")
        a(f"v_cvt_pk_bf16_f32 v{V_RSP+2*t+1}, v{V_PU+4*t+2}, v{V_PU+4*t+3}")
    a(f"s_add_u32 s{S_T}, s{S_CUR}, s{S_RSB}")
    a(f"s_mov_b64 exec, s[{S_M8}:{S_M8+1}]")
    for P in range(nt//2):
        if P > 0: a(f"s_add_u32 s{S_T}, s{S_T}, 32768")
        a(f"buffer_store_dwordx4 {vr(V_RSP+4*P)}, v{V_RSO}, s[{S_WS}:{S_WS+3}], s{S_T} offen sc1")
    stamp(a, 6)
    a("s_mov_b64 exec, -1")
    if w < 2 and not OPT('NODMA', 0):
        a(f"s_cmp_eq_u32 s{S_STEP}, 63")
        a(f"s_cbranch_scc1 {pfx}_NODMA")
        kv_dma(a, flags, pfx, w)
        a.label(f"{pfx}_NODMA")
    a(f"s_mov_b64 exec, s[{S_M8}:{S_M8+1}]")
    a(f"s_cmp_lg_u32 s{S_C}, 0")
    a(f"s_cbranch_scc1 {pfx}_NOKM")
    for k in range(2 if not OPT('NOKM', 0) else 0):
        a(f"buffer_store_dwordx4 {vr(V_KF+4*(2*w+k))}, v{V_KMS}, s[{S_WS}:{S_WS+3}], s{S_KMG} offen offset:{k*512} sc1")
    a.label(f"{pfx}_NOKM")
    a("s_mov_b64 exec, -1")
    a(f"s_add_u32 s{S_KMG}, s{S_KMG}, {32*3072}")
    for t in range(nt):
        for r in range(4): a(f"v_mov_b32 v{V_PU+r}, v{V_Y+4*t+r}")
        for r in range(4): a(f"v_permlane32_swap_b32 v{V_Y+4*t+r}, v{V_PU+r}")
        for r in range(4): a(f"v_add_f32 v{V_Y+4*t+r}, v{V_Y+4*t+r}, v{V_PU+r}")
        a(f"v_cvt_pk_bf16_f32 v{V_YF+2*t}, v{V_Y+4*t}, v{V_Y+4*t+1}")
        a(f"v_cvt_pk_bf16_f32 v{V_YF+2*t+1}, v{V_Y+4*t+2}, v{V_Y+4*t+3}")
    a("s_mov_b32 exec_hi, 0")
    for t in range(nt if not OPT('NOUY', 0) else 0):
        a(f"buffer_store_dwordx2 {vr(V_YF+2*t,2)}, v{V_L4}, s[{S_WS}:{S_WS+3}], s{S_UYG} offen offset:{t*256} sc1")
    a("s_mov_b64 exec, -1")
    a(f"s_add_u32 s{S_UYG}, s{S_UYG}, {32*40*256}")
    if w == 2 and not OPT('NOFLG', 0):
        a(f"v_mov_b32 v{V_T}, s{S_STEP}")
        a("s_mov_b64 exec, 1")
        a(f"buffer_store_dword v{V_T}, v{V_ZERO}, s[{S_WS}:{S_WS+3}], s{S_FLG} offen sc1")
        a(f"s_cmp_lg_u32 s{S_J}, 0")
        a(f"s_cbranch_scc1 {pfx}_NOPROG")
        a(f"s_mov_b32 s{S_T}, {F_RPROG}")
        a(f"buffer_store_dword v{V_T}, v{V_ZERO}, s[{S_WS}:{S_WS+3}], s{S_T} offen sc1")
        a.label(f"{pfx}_NOPROG")
        a("s_mov_b64 exec, -1")
    a(f"s_add_u32 s{S_STEP}, s{S_STEP}, 1")
    a(f"s_cmp_ge_u32 s{S_STEP}, 64")
    a(f"s_cbranch_scc1 {pfx}_DONE")
    stamp(a, 7)
    idle_phase(a, w, woq)
    if w == 2:
        a(f"s_cmp_eq_u32 s{S_RED}, 0")
        a(f"s_cbranch_scc1 {pfx}_NORED")
        wait_until(a, 96, OPT('T_RS', 1150))
        a(f"s_add_u32 s{S_T2}, s{S_CUR}, s{S_RSP}")
        reduce_blocks(a, pfx, 1, 240, 48, (S_T2,), V_AGS, 64, 80)
        a.label(f"{pfx}_NORED")
    rotate_slots(a)
    stamp_acc(a)
    if w == 2: mark(a, S_REF2)
    a(f"s_branch {pfx}_LOOP")
    a.label(f"{pfx}_DONE")
    a("s_waitcnt vmcnt(0)")
    a("s_barrier")
    if flags and w == 0:
        trace(a, 5, S_J)
        if int(os.environ.get('TRACE', 0)):
            a("s_memtime s[86:87]\ns_waitcnt lgkmcnt(0)")
            trace(a, 7, S_J, val=86)
    if w == 2:
        a(f"v_mov_b32 v{V_T}, 64")
        a("s_mov_b64 exec, 1")
        a(f"buffer_store_dword v{V_T}, v{V_ZERO}, s[{S_WS}:{S_WS+3}], s{S_FLG} offen sc1")
        a(f"s_cmp_lg_u32 s{S_J}, 0")
        a(f"s_cbranch_scc1 {pfx}_NOPROG2")
        a(f"s_mov_b32 s{S_T}, {F_RPROG}")
        a(f"buffer_store_dword v{V_T}, v{V_ZERO}, s[{S_WS}:{S_WS+3}], s{S_T} offen sc1")
        a.label(f"{pfx}_NOPROG2")
        a("s_waitcnt vmcnt(0)")
        a("s_mov_b64 exec, -1")
    stamp_out(a, w)
    a("s_endpgm")

def stamp_acc(a):
    if not OPT('STAMP', 0): return
    a(f"s_memtime s[{S_TS+16}:{S_TS+17}]")
    a("s_waitcnt lgkmcnt(0)")
    for k in range(8):
        a(f"s_sub_u32 s{S_T}, s{S_TS+2*k+2}, s{S_TS+2*k}")
        a(f"s_add_u32 s{80+k}, s{80+k}, s{S_T}")

def stamp_out(a, w):
    if not OPT('STAMP', 0): return
    a.uid += 1
    L = f"STO_{w}_{a.uid}"
    a(f"""s_cmp_lg_u32 s{S_J}, {OPT('STAMPROLE', 0)}
s_cbranch_scc1 {L}
s_waitcnt lgkmcnt(0)
s_load_dwordx2 s[96:97], s[0:1], {KA['dbg']}
s_waitcnt lgkmcnt(0)
s_mov_b64 exec, 1""")
    for k in range(8):
        a(f"v_mov_b32 v10, s{80+k}\nv_mov_b32 v11, {64 + w*48 + k*4}\nglobal_store_dword v11, v10, s[96:97]\ns_waitcnt vmcnt(0)")
    if w == 0:
        a(f"v_mov_b32 v10, s95\nv_mov_b32 v11, 40\nglobal_store_dword v11, v10, s[96:97]\ns_waitcnt vmcnt(0)")
        a(f"v_mov_b32 v10, s101\nv_mov_b32 v11, 44\nglobal_store_dword v11, v10, s[96:97]\ns_waitcnt vmcnt(0)")
    for k in range(3):
        a(f"v_mov_b32 v10, s{92+k}\nv_mov_b32 v11, {64 + w*48 + 32 + k*4}\nglobal_store_dword v11, v10, s[96:97]\ns_waitcnt vmcnt(0)")
    a.label(L)

def common_setup(a, w):
    a(f"""v_lshlrev_b32 v{V_L16}, 4, v{V_LANE}
v_lshlrev_b32 v{V_L4}, 3, v{V_LANE}
v_mov_b32 v{V_ZERO}, 0
s_mov_b32 s{S_M8}, 0x00ff00ff
s_mov_b32 s{S_M8+1}, 0x00ff00ff
s_mov_b32 s{S_H8}, 0xff00ff00
s_mov_b32 s{S_H8+1}, 0xff00ff00
s_mov_b32 s{S_HI32}, 0
s_mov_b32 s{S_HI32+1}, -1
v_mov_b32 v{V_NINF}, 0xff800000
s_mov_b32 s{S_MQ}, 0x0000ffff
s_mov_b32 s{S_MQ+1}, 0x0000ffff
v_mov_b32 v{V_IDX}, 0x44444444
v_mov_b32 v{V_T}, 0xeeeeeeee
v_cndmask_b32 v{V_IDX}, v{V_IDX}, v{V_T}, s[{S_H8}:{S_H8+1}]
s_mov_b32 s{S_SCALE}, 0x{f2u(192**-0.5*1.4426950408889634):08x}
s_mov_b32 s{S_MAXR}, {OPT('MAXRETRY', 100000)}
s_mov_b32 s{S_STEP}, 0""")
    for k in range(8): a(f"s_mov_b32 s{80+k}, 0")
    for k in range(92, 95): a(f"s_mov_b32 s{k}, 0")
    if w >= 2:
        a(f"s_lshr_b32 s{S_T}, s{S_J}, 5")
        a(f"s_mul_i32 s{S_T}, s{S_T}, 10240")
        a(f"s_add_u32 s{S_T}, s{S_T}, {AG_LOG + (w-2)*5120}")
        for k in range(5):
            a(f"v_add_u32 v{V_AGP+k}, s{S_T}, v{V_L16}")
            if k: a(f"v_add_u32 v{V_AGP+k}, {k*1024}, v{V_AGP+k}")
            nearmap_v(a, V_AGP+k, V_T2)
    a(f"v_add_u32 v{V_AGL}, {L_MEM + w*2560}, v{V_L16}")

def mem0_stage(a, w):
    for k in range(3):
        a(f"""v_add_u32 v{V_T}, {160*w + 64*k}, v{V_LANE}
v_and_b32 v{V_T2}, 7, v{V_T}
v_mul_u32_u24 v{V_T2}, 1280, v{V_T2}
v_lshrrev_b32 v{V_POLL+12}, 5, v{V_T}
v_lshlrev_b32 v{V_POLL+12}, 6, v{V_POLL+12}
v_add_u32 v{V_T2}, v{V_T2}, v{V_POLL+12}
v_bfe_u32 v{V_T}, v{V_T}, 3, 2
v_lshlrev_b32 v{V_T}, 3, v{V_T}
v_add_u32 v{V_T}, v{V_T}, v{V_T2}""")
        a(f"buffer_load_dwordx2 {vr(V_POLL+4*k,2)}, v{V_T}, s[{S_M0}:{S_M0+3}], 0 offen")
        a(f"buffer_load_dwordx2 {vr(V_POLL+4*k+2,2)}, v{V_T}, s[{S_M0}:{S_M0+3}], 0 offen offset:32")
    a("s_waitcnt vmcnt(0)")
    a(f"ds_write_b128 v{V_AGL}, {vr(V_POLL)}")
    a(f"ds_write_b128 v{V_AGL}, {vr(V_POLL+4)} offset:1024")
    a("s_mov_b32 exec_hi, 0")
    a(f"ds_write_b128 v{V_AGL}, {vr(V_POLL+8)} offset:2048")
    a("s_mov_b64 exec, -1")

def service_wave(a):
    w = 3; pfx = "RS3"
    wreg = WReg(0, 256, 0)
    a(f"s_lshl_b32 s{S_LB}, s{S_WAVE}, 15")
    a(f"""s_mul_i32 s{S_COL}, s{S_H}, 384
s_mul_i32 s{S_T}, s{S_C}, 96
s_add_u32 s{S_COL}, s{S_COL}, s{S_T}""")
    units = [(S_WV, S_COL, t*32 + p*32*H*E*2) for p in range(20) for t in range(3)]
    load_w2(a, units, lambda u, T, k: wreg.pair((u % 3)*20 + u // 3, k), 1, H*E*2, 2, V_LANE, V_POLL, V_POLL+1, V_T, S_T, S_LB)
    common_setup(a, w)
    PQ = V_KXF; PV_ = V_KXF+2; R = V_KXF+6; SEL = V_KXF+8; ONES = V_KXF+12; AGZ = V_KXF+7
    a(f"""v_lshrrev_b32 v{V_AST}, 1, v{V_G}
v_lshlrev_b32 v{V_AST}, 8, v{V_AST}
v_lshlrev_b32 v{V_T}, 4, v{V_N}
v_add_u32 v{V_AST}, v{V_AST}, v{V_T}
v_and_b32 v{V_T}, 1, v{V_G}
v_lshlrev_b32 v{V_T}, 3, v{V_T}
v_add_u32 v{V_AST}, v{V_AST}, v{V_T}
v_lshlrev_b32 v{V_AST+1}, 4, v{V_N}
v_add_u32 v{V_AST+1}, v{V_AST+1}, v{V_T}
s_mul_i32 s{S_T2}, s{S_H}, 9216
s_mul_i32 s{S_T}, s{S_C}, 768
s_add_u32 s{S_T}, s{S_T}, s{S_T2}
v_add_u32 v{PQ}, s{S_T}, v{V_L16}
v_add_u32 v{PQ+1}, 3072, v{PQ}
v_add_u32 v{PV_}, 6144, v{PQ}
s_add_u32 s{S_T}, s{S_T}, 6144
v_add_u32 v{V_AST}, s{S_T}, v{V_AST}
v_add_u32 v{V_AST+1}, s{S_T}, v{V_AST+1}
v_add_u32 v{V_AST+1}, 512, v{V_AST+1}""")
    for r in (V_AST, V_AST+1, PV_, PQ, PQ+1): nearmap_v(a, r, V_T)
    oob_mask(a, PV_, 48); oob_mask(a, PQ+1, 48); oob_mask(a, PQ, 48); oob_mask(a, V_AST+1, 32)
    for k in range(3):
        a(f"v_add_u32 v{V_APO+k}, s{S_T2}, v{V_L16}")
        a(f"v_add_u32 v{V_APO+k}, {6144 + k*1024}, v{V_APO+k}")
        nearmap_v(a, V_APO+k, V_T)
    a(f"v_add_u32 v{V_APL}, {L_QKV + 6144}, v{V_L16}")
    rs_lane(a, R)
    a(f"""s_mul_i32 s{S_RSB}, s{S_C}, {5*32768}
s_add_u32 s{S_RSB}, s{S_RSB}, {nearmap(RS_LOG)}
s_and_b32 s{S_COL}, s{S_J}, 31""")
    blk_off(a, S_COL, S_RSP, S_T)
    a(f"s_add_u32 s{S_COL}, s{S_COL}, 32")
    blk_off(a, S_COL, S_RED, S_T)
    a(f"""s_lshr_b32 s{S_T}, s{S_J}, 5
s_mul_i32 s{S_T}, s{S_T}, 10240
s_add_u32 s{S_T}, s{S_T}, {AG_LOG}
s_and_b32 s{S_T2}, s{S_J}, 31
s_lshl_b32 s{S_T3}, s{S_T2}, 7
s_add_u32 s{S_T}, s{S_T}, s{S_T3}
v_lshrrev_b32 v{V_AGS}, 3, v{V_LANE}
v_lshlrev_b32 v{V_AGS}, 12, v{V_AGS}
v_and_b32 v{V_T}, 7, v{V_LANE}
v_lshlrev_b32 v{V_T}, 4, v{V_T}
v_add_u32 v{V_AGS}, v{V_AGS}, v{V_T}
v_add_u32 v{V_AGS}, s{S_T}, v{V_AGS}""")
    nearmap_v(a, V_AGS, V_T)
    a(f"v_mov_b32 v{AGZ}, v{V_AGS}")
    oob_mask(a, V_AGS, 16)
    a(f"s_cmp_lt_u32 s{S_T2}, 16")
    a(f"s_cselect_b32 s{S_T}, 24, 16")
    a(f"v_mov_b32 v{V_T}, 0x80000000")
    a(f"v_cmp_gt_u32 vcc, s{S_T}, v{V_LANE}")
    a(f"v_cndmask_b32 v{AGZ}, v{V_T}, v{AGZ}, vcc")
    sel_setup(a, SEL)
    for k in range(4): a(f"v_mov_b32 v{ONES+k}, -1")
    a(f"v_mov_b32 v{ONES+4}, 1")
    read_polarity(a, pfx)
    a("s_barrier")
    mem0_stage(a, w)
    a("s_waitcnt vmcnt(0) lgkmcnt(0)")
    a("s_barrier")
    stamp(a, 0)
    pfx0 = pfx
    a(f"s_cmp_eq_u32 s{S_MODE}, 0")
    a(f"s_cbranch_scc1 {pfx0}S_B0")
    a(f"s_branch {pfx0}F_B0")
    for mode in (1, 0):
        CURMODE[0] = mode
        pfx = pfx0 + ("F" if mode else "S")
        service_loop(a, pfx, PQ, PV_, R, SEL, ONES, AGZ)
    CURMODE[0] = None

def service_loop(a, pfx, PQ, PV_, R, SEL, ONES, AGZ):
    a.label(f"{pfx}_LOOP")
    stamp(a, 0)
    ag_poll(a, pfx, 3)
    a.label(f"{pfx}_B0")
    a("s_waitcnt lgkmcnt(0)")
    a("s_barrier")
    mark(a, S_REF0)
    stamp(a, 1)
    SP = 140
    w8s = lambda t, K: ar((t*20 + 2*K)*4, 8)
    for K in range(10):
        a(f"ds_read_b128 {vr(V_RING+4*K)}, v{V_L16} offset:{L_MEM + K*1024}")
    for r in range(12): a(f"v_mov_b32 v{V_ACC+r}, 0")
    for K in range(10):
        a(f"s_waitcnt lgkmcnt({9-K})")
        for t in range(2):
            a(f"v_smfmac_f32_16x16x64_bf16 {vr(V_ACC+4*t)}, {vr(V_RING+4*K)}, {w8s(t,K)}, v{V_IDX}")
    P01 = pack_pair(V_ACC, V_ACC+4, SP)
    for K in range(10):
        a(f"v_smfmac_f32_16x16x64_bf16 {vr(V_ACC+8)}, {vr(V_RING+4*K)}, {w8s(2,K)}, v{V_IDX}")
        if K >= 2 and P01: a(P01.pop(0))
        if K >= 6 and P01: a(P01.pop(0))
    while P01: a(P01.pop(0))
    store_mode(a, [f"buffer_store_dwordx2 {vr(SP,2)}, v{V_AST}, s[{S_WS}:{S_WS+3}], s{S_CUR} offen SCX"])
    for r in range(4): a(f"v_mov_b32 v{SP+8+r}, v{V_ACC+8+r}")
    for x in pack_pair(V_ACC+8, SP+8, SP+4): a(x)
    store_mode(a, [f"buffer_store_dwordx2 {vr(SP+4,2)}, v{V_AST+1}, s[{S_WS}:{S_WS+3}], s{S_CUR} offen SCX"])
    stamp(a, 2)
    wait_mode(a, S_REF0, OPT('T_VF', 1300), OPT('T_V', 1500))
    loads = [f"buffer_load_dwordx4 {vr(V_POLL+4*k)}, v{V_APO+k}, s[{S_WS}:{S_WS+3}], s{S_CUR} offen sc1" for k in range(3)]
    if OPT('TWOB', 1):
        for x in loads: a(x)
        stamp(a, 3)
        a("s_barrier")
        stamp(a, 4)
        poll_loop(a, f"{pfx}_VP", loads, 12, 93, pre_issued=True)
        for k in range(3):
            a(f"ds_write_b128 v{V_APL}, {vr(V_POLL+4*k)} offset:{k*1024}")
        a("s_waitcnt lgkmcnt(0)")
        a("s_barrier")
        mark(a, 96)
        stamp(a, 5)
    else:
        poll_loop(a, f"{pfx}_VP", loads, 12, 93)
        for k in range(3):
            a(f"ds_write_b128 v{V_APL}, {vr(V_POLL+4*k)} offset:{k*1024}")
        a("s_waitcnt lgkmcnt(0)")
        stamp(a, 3)
        a("s_barrier")
        mark(a, 96)
        stamp(a, 4)
        stamp(a, 5)
    a(f"s_cmp_eq_u32 s{S_STEP}, 63")
    a(f"s_cbranch_scc1 {pfx}_DONE")
    store_mode(a, [f"buffer_store_dwordx4 {vr(ONES)}, v{r}, s[{S_WS}:{S_WS+3}], s{S_NN} offen SCX" for r in (PQ, PQ+1, PV_)])
    a(f"s_add_u32 s{S_T}, s{S_NN}, s{S_RSB}")
    a(f"s_mov_b64 exec, s[{S_M8}:{S_M8+1}]")
    for P in range(5):
        if P > 0: a(f"s_add_u32 s{S_T}, s{S_T}, 32768")
        a(f"buffer_store_dwordx4 {vr(ONES)}, v{R}, s[{S_WS}:{S_WS+3}], s{S_T} offen sc1")
    a("s_mov_b64 exec, -1")
    store_mode(a, [f"buffer_store_dwordx4 {vr(ONES)}, v{AGZ}, s[{S_WS}:{S_WS+3}], s{S_NN} offen SCX"])
    stamp(a, 6)
    wait_until(a, 96, OPT('T_RS', 1150))
    a(f"s_add_u32 s{S_T2}, s{S_CUR}, s{S_RSP}")
    a(f"s_add_u32 s{S_T3}, s{S_CUR}, s{S_RED}")
    reduce_blocks(a, pfx, 2, SEL, 32, (S_T2, S_T3), V_AGS, 64, 160)
    a(f"s_add_u32 s{S_STEP}, s{S_STEP}, 1")
    a(f"s_cmp_ge_u32 s{S_STEP}, 64")
    a(f"s_cbranch_scc1 {pfx}_DONE")
    rotate_slots(a)
    stamp_acc(a)
    mark(a, S_REF2)
    a(f"s_branch {pfx}_LOOP")
    a.label(f"{pfx}_DONE")
    a("s_waitcnt vmcnt(0)")
    a("s_barrier")
    stamp_out(a, 3)
    a("s_endpgm")

def rec_entry(a):
    a(f"""s_load_dwordx4 s[64:67], s[0:1], {KA['wq']}
s_load_dwordx4 s[68:71], s[0:1], {KA['wv']}
s_load_dwordx2 s[72:73], s[0:1], {KA['mem0']}
s_waitcnt lgkmcnt(0)""")
    srd(a, S_WQ, 64, D*H*E*2); srd(a, S_WK, 66, D*H*E*2); srd(a, S_WV, 68, D*H*E*2); srd(a, S_WO, 70, D*H*E*2)
    srd(a, S_M0, 72, M*D*2)
    a(f"s_lshr_b32 s{S_H}, s{S_J}, 2\ns_and_b32 s{S_C}, s{S_J}, 3")

def probe(a, s_k, s_xcc, lbl, s_dbg):
    a(f"""s_mov_b64 exec, 1
v_mov_b32 v10, -1
s_lshl_b32 s{S_T}, s{s_k}, 21
s_add_u32 s{S_T}, s{S_T}, {RING + PROBE_OFF}
v_mov_b32 v11, s{S_T}
v_add_u32 v13, 8192, v11
s_mov_b32 s{S_T2}, 0
s_mov_b32 s84, -1
s_mov_b32 s85, -1""")
    a.label(f"{lbl}_R")
    a(f"""buffer_store_dword v10, v11, s[{S_WS}:{S_WS+3}], 0 offen sc1
buffer_store_dword v10, v13, s[{S_WS}:{S_WS+3}], 0 offen sc1
s_waitcnt vmcnt(0)
s_sleep 6""")
    for hsel in range(2):
        a(f"""s_memtime s[80:81]
s_waitcnt lgkmcnt(0)
buffer_load_dword v12, v{11 if hsel == 0 else 13}, s[{S_WS}:{S_WS+3}], 0 offen sc1
s_waitcnt vmcnt(0)
s_memtime s[82:83]
s_waitcnt lgkmcnt(0)
s_sub_u32 s{86+hsel}, s82, s80""")
    a(f"""s_min_u32 s84, s84, s86
s_min_u32 s85, s85, s87
s_add_u32 s{S_T2}, s{S_T2}, 1
s_cmp_lt_u32 s{S_T2}, {OPT('PROBE_N', 7)}
s_cbranch_scc1 {lbl}_R
s_cmp_lt_u32 s85, s84
s_cselect_b32 s{S_T3}, 1, 0
s_lshr_b32 s{S_T}, s{s_xcc}, 2
s_xor_b32 s{S_T3}, s{S_T3}, s{S_T}
s_and_b32 s{S_T3}, s{S_T3}, 1
s_or_b32 s{S_T3}, s{S_T3}, 2
s_lshl_b32 s{S_T}, s{s_k}, 1
s_lshl_b32 s{S_T3}, s{S_T3}, s{S_T}
v_mov_b32 v10, s{S_T3}
v_mov_b32 v11, {DB_POL}
global_atomic_or v11, v10, s[{s_dbg}:{s_dbg+1}] sc1
s_waitcnt vmcnt(0)
s_mov_b64 exec, -1""")

def rec_dispatch(a, flags=False):
    a(f"""s_cmp_eq_u32 s{S_WAVE}, 0
s_cbranch_scc1 RK_W0
s_cmp_eq_u32 s{S_WAVE}, 1
s_cbranch_scc1 RK_W1
s_cmp_eq_u32 s{S_WAVE}, 2
s_cbranch_scc1 RK_W2
s_branch RK_W3""")
    for w in range(3):
        a.label(f"RK_W{w}")
        main_wave(a, w, flags)
    a.label("RK_W3")
    service_wave(a)

def gen_rec_kernel():
    a = Asm(); name = "rec_kernel"
    kernel_header(a, name)
    if OPT('STAMP', 0): a("s_memtime s[100:101]")
    a(f"""s_cmp_ge_u32 s2, 256
s_cbranch_scc1 RK_END
s_load_dwordx2 s[74:75], s[0:1], {KA['ws']}
s_load_dwordx2 s[76:77], s[0:1], {KA['dbg']}
s_getreg_b32 s78, hwreg(HW_REG_XCC_ID)
s_and_b32 s78, s78, 15
s_waitcnt lgkmcnt(0)""")
    srd(a, S_WS, 74, WS_SIZE)
    lane_setup(a, V_LANE, V_G, V_N, S_WAVE)
    a(f"""s_cmp_lg_u32 s{S_WAVE}, 0
s_cbranch_scc1 RK_NORANK
v_mov_b32 v10, 1
s_lshl_b32 s79, s78, 2
v_mov_b32 v11, s79
s_mov_b64 exec, 1
global_atomic_add v12, v11, v10, s[76:77] sc0 sc1
s_waitcnt vmcnt(0)
v_mov_b32 v11, 0
ds_write_b32 v11, v12
s_waitcnt lgkmcnt(0)
s_mov_b64 exec, -1""")
    a.label("RK_NORANK")
    a(f"""s_barrier
v_mov_b32 v11, 0
ds_read_b32 v12, v11
s_waitcnt lgkmcnt(0)
v_readfirstlane_b32 s79, v12
s_barrier
s_cmp_lt_u32 s78, 4
s_cbranch_scc1 RK_REC
s_cmp_lg_u32 s78, 4
s_cbranch_scc1 RK_END
s_cmp_ge_u32 s79, 4
s_cbranch_scc1 RK_END
s_cmp_lg_u32 s{S_WAVE}, 0
s_cbranch_scc1 RK_END""")
    probe(a, 79, 78, "RK_PR", 76)
    a("s_endpgm")
    a.label("RK_REC")
    a(f"""s_cmp_ge_u32 s79, 32
s_cbranch_scc1 RK_END
s_lshl_b32 s{S_J}, s78, 5
s_add_u32 s{S_J}, s{S_J}, s79""")
    rec_entry(a)
    rec_dispatch(a)
    a.label("RK_END")
    a("s_endpgm")
    return name, a.finalize(), kernel_desc(name, 512, 102, 256)

def read_mode(a, pfx):
    a(f"s_load_dwordx2 s[96:97], s[0:1], {KA['dbg']}")
    a("s_waitcnt lgkmcnt(0)")
    a(f"s_mov_b32 s{S_RETRY}, 0")
    a(f"v_and_b32 v{V_T2}, 7, v{V_LANE}")
    a(f"v_lshlrev_b32 v{V_T2}, 2, v{V_T2}")
    a.label(f"{pfx}_MD")
    a(f"""global_load_dword v{V_T}, v{V_T2}, s[96:97] sc1
s_waitcnt vmcnt(0)
v_cmp_eq_u32 vcc, 32, v{V_T}
s_cmp_eq_u64 vcc, exec
s_cselect_b32 s{S_MODE}, 1, 0
v_add_u32_dpp v{V_T}, v{V_T}, v{V_T} row_ror:4 row_mask:0xf bank_mask:0xf
v_add_u32_dpp v{V_T}, v{V_T}, v{V_T} row_ror:2 row_mask:0xf bank_mask:0xf
v_add_u32_dpp v{V_T}, v{V_T}, v{V_T} row_ror:1 row_mask:0xf bank_mask:0xf
v_readfirstlane_b32 s{S_T3}, v{V_T}
s_cmp_ge_u32 s{S_T3}, 256
s_cbranch_scc1 {pfx}_MDOK
s_sleep 8
s_add_u32 s{S_RETRY}, s{S_RETRY}, 1
s_cmp_lt_u32 s{S_RETRY}, 200000
s_cbranch_scc1 {pfx}_MD
s_mov_b32 s{S_MODE}, 0""")
    a.label(f"{pfx}_MDOK")
    if OPT('FORCESLOW', 0): a(f"s_mov_b32 s{S_MODE}, 0")

def read_polarity(a, pfx):
    read_mode(a, pfx)
    if INITWAIT[0]:
        wait_dbg(a, f"{pfx}_INI", 96, DB_INIT, V_T2, V_T, S_RETRY+0, S_T3, thr=128) if False else None
        a(f"v_mov_b32 v{V_T2}, {DB_INIT}")
        a(f"s_mov_b32 s{S_RETRY}, 0")
        a.label(f"{pfx}_INI")
        a(f"""global_load_dword v{V_T}, v{V_T2}, s[96:97] sc1
s_waitcnt vmcnt(0)
v_readfirstlane_b32 s{S_T3}, v{V_T}
s_cmp_ge_u32 s{S_T3}, 80
s_cbranch_scc1 {pfx}_INIK
s_sleep 4
s_add_u32 s{S_RETRY}, s{S_RETRY}, 1
s_cmp_lt_u32 s{S_RETRY}, 0x400000
s_cbranch_scc1 {pfx}_INI""")
        a.label(f"{pfx}_INIK")
    a(f"v_mov_b32 v{V_T2}, {DB_POL}")
    a(f"s_mov_b32 s{S_RETRY}, 0")
    a.label(f"{pfx}_POL")
    a(f"""global_load_dword v{V_T}, v{V_T2}, s[96:97] sc1
s_waitcnt vmcnt(0)
v_readfirstlane_b32 s{S_T3}, v{V_T}
s_and_b32 s{S_T}, s{S_T3}, 0xaa
s_cmp_eq_u32 s{S_T}, 0xaa
s_cbranch_scc1 {pfx}_POLOK
s_sleep 4
s_add_u32 s{S_RETRY}, s{S_RETRY}, 1
s_cmp_lt_u32 s{S_RETRY}, 0x400000
s_cbranch_scc1 {pfx}_POL""")
    a.label(f"{pfx}_POLOK")
    if OPT('FLIPPOL', 0): a(f"s_xor_b32 s{S_T3}, s{S_T3}, 0x55")
    for k, s in enumerate((S_CUR, S_N, S_NN, S_P)):
        a(f"""s_bfe_u32 s{S_T}, s{S_T3}, {(1<<16) | (2*k)}
s_lshl_b32 s{S_T}, s{S_T}, 13
s_add_u32 s{s}, s{S_T}, {RING + k*RING_SLOT}""")
```

```python
from gen_common import *
import gen_panel as P, gen_tok as T, gen_rec as R
import os
OPT=lambda k,d: type(d)(os.environ.get(k,d))

def tok_loop(a):
    from gen_tok import TS_WS, TS_OUT, TS_WAVE, TS_S, TS_I, TS_T, TS_T2, TS_T3, TV_LANE, TV_G, TV_N, TV_T, TV_T2
    V_WA = 13; V_WT = 14; V_Z = 15
    a(f"""s_load_dwordx2 s[40:41], s[0:1], {KA['out']}
s_load_dwordx2 s[48:49], s[0:1], {KA['dbg']}
s_waitcnt lgkmcnt(0)""")
    srd(a, TS_OUT, 40, OUT_BYTES)
    lane_setup(a, TV_LANE, TV_G, TV_N, TS_WAVE)
    T.tok_setup(a)
    a(f"v_mov_b32 v{V_Z}, 0")
    a.label("TOK_LOOP")
    a(f"""s_cmp_lg_u32 s{TS_WAVE}, 0
s_cbranch_scc1 TOK_NT
v_mov_b32 v{V_WT}, 1
v_mov_b32 v{V_WA}, {DB_TICKET}
s_mov_b64 exec, 1
global_atomic_add v{V_WT}, v{V_WA}, v{V_WT}, s[48:49] sc0 sc1
s_waitcnt vmcnt(0)
v_mov_b32 v{V_WA}, 65536
ds_write_b32 v{V_WA}, v{V_WT}
s_waitcnt lgkmcnt(0)
s_mov_b64 exec, -1""")
    a.label("TOK_NT")
    a(f"""s_barrier
v_mov_b32 v{V_WA}, 65536
ds_read_b32 v{V_WT}, v{V_WA}
s_waitcnt lgkmcnt(0)
v_readfirstlane_b32 s50, v{V_WT}
s_barrier
s_cmp_ge_u32 s50, 1024
s_cbranch_scc1 TOK_END
s_lshr_b32 s{TS_S}, s50, 4
s_and_b32 s{TS_I}, s50, 15
s_cmp_ge_u32 s{TS_I}, 8
s_cbranch_scc1 TOK_PU""")
    a(f"s_cmp_lg_u32 s{TS_WAVE}, 0")
    a("s_cbranch_scc1 TOK_SC_GO")
    a(f"""v_mul_u32_u24 v{V_WT}, 21846, v{TV_LANE}
v_lshrrev_b32 v{V_WT}, 16, v{V_WT}
v_mul_u32_u24 v{V_WA}, 3, v{V_WT}
v_sub_u32 v{V_WA}, v{TV_LANE}, v{V_WA}
v_cmp_eq_u32 vcc, 0, v{V_WT}
v_mov_b32 v{V_WT}, {R_Q0}
v_cndmask_b32 v{V_WT}, 0, v{V_WT}, vcc
v_add_u32 v{V_WA}, v{V_WA}, v{V_WT}
s_mul_i32 s{TS_T}, s{TS_I}, 3
v_add_u32 v{V_WA}, s{TS_T}, v{V_WA}
v_lshlrev_b32 v{V_WA}, {PSH}, v{V_WA}
v_add_u32 v{V_WA}, {F_PROG}, v{V_WA}
s_lshl_b32 s51, s{TS_S}, 1
s_add_u32 s51, s51, 2""")
    wait_words(a, "TSC_W3", TS_WS, V_WA, V_WT, 51, s_cnt=52, sleep=16)
    a.label("TOK_SC_GO")
    a("s_barrier")
    def sc_mid():
        a(f"s_cmp_lg_u32 s{TS_WAVE}, 0")
        a("s_cbranch_scc1 TOK_SC_GO2")
        a(f"s_add_u32 s51, s{TS_S}, 1")
        a(f"s_min_u32 s53, s51, 62")
        a(f"v_mov_b32 v{V_WA}, {F_RPROG}")
        wait_words(a, "TSC_W0", TS_WS, V_WA, V_WT, 53, s_cnt=52, sleep=OPT('SL_RP', 10), far=(1, OPT('SL_FAR', 40), 54))
        a(f"""v_and_b32 v{V_WA}, 3, v{TV_LANE}
s_lshl_b32 s{TS_T}, s{TS_I}, 2
v_add_u32 v{V_WA}, s{TS_T}, v{V_WA}
v_lshlrev_b32 v{V_WA}, 9, v{V_WA}
v_add_u32 v{V_WA}, {F_REC}, v{V_WA}""")
        wait_words(a, "TSC_W1", TS_WS, V_WA, V_WT, 51, s_cnt=52, sleep=3)
        a.label("TOK_SC_GO2")
        a("s_barrier")
    T.emit_score(a, "MSC", mid=sc_mid)
    a("s_waitcnt vmcnt(0)")
    a("s_barrier")
    a(f"""s_cmp_lg_u32 s{TS_WAVE}, 0
s_cbranch_scc1 TOK_LOOP
s_lshl_b32 s{TS_T}, s{TS_S}, 7
s_lshl_b32 s{TS_T2}, s{TS_I}, 2
s_add_u32 s{TS_T}, s{TS_T}, s{TS_T2}
s_add_u32 s{TS_T}, s{TS_T}, {F_SC}
s_mov_b32 s51, 1""")
    publish_word(a, TS_WS, V_WT, V_Z, TS_T, 51)
    a("s_branch TOK_LOOP")
    a.label("TOK_PU")
    a(f"s_sub_u32 s{TS_I}, s{TS_I}, 8")
    a(f"s_cmp_lg_u32 s{TS_WAVE}, 0")
    a("s_cbranch_scc1 TOK_PU_GO")
    a(f"""v_and_b32 v{V_WA}, 31, v{TV_LANE}
v_lshlrev_b32 v{V_WA}, {PSH}, v{V_WA}
v_add_u32 v{V_WA}, {F_PROG + (R_U0 << PSH)}, v{V_WA}
s_add_u32 s51, s{TS_S}, 1""")
    wait_words(a, "TPU_W1", TS_WS, V_WA, V_WT, 51, s_cnt=52, sleep=16)
    a(f"""s_mul_i32 s{TS_T}, s{TS_I}, 5
s_lshr_b32 s{TS_T2}, s{TS_T}, 2
s_add_u32 s{TS_T}, s{TS_T}, 4
s_lshr_b32 s{TS_T}, s{TS_T}, 2
v_mov_b32 v{V_WA}, s{TS_T}
v_mov_b32 v{V_WT}, s{TS_T2}
v_and_b32 v{TV_T}, 1, v{TV_LANE}
v_cmp_eq_u32 vcc, 0, v{TV_T}
v_cndmask_b32 v{V_WA}, v{V_WA}, v{V_WT}, vcc
v_lshlrev_b32 v{V_WA}, {PSH}, v{V_WA}
v_add_u32 v{V_WA}, {F_PROG + (R_DN0 << PSH)}, v{V_WA}
s_lshl_b32 s51, s{TS_S}, 1
s_add_u32 s51, s51, 2""")
    wait_words(a, "TPU_W2", TS_WS, V_WA, V_WT, 51, s_cnt=52, sleep=16)
    a.label("TOK_PU_GO")
    a("s_barrier")
    def pu_mid():
        a(f"s_cmp_lg_u32 s{TS_WAVE}, 0")
        a("s_cbranch_scc1 TOK_PU_GO2")
        a(f"""s_add_u32 s51, s{TS_S}, 1
s_min_u32 s53, s51, 62
v_mov_b32 v{V_WA}, {F_RPROG}""")
        wait_words(a, "TPU_W5", TS_WS, V_WA, V_WT, 53, s_cnt=52, sleep=OPT('SL_RP', 10), far=(1, OPT('SL_FAR', 40), 54))
        a(f"""v_lshlrev_b32 v{V_WA}, 7, v{TV_LANE}
v_add_u32 v{V_WA}, {F_REC}, v{V_WA}""")
        wait_words(a, "TPU_W3", TS_WS, V_WA, V_WT, 51, s_cnt=52, sleep=6)
        a(f"v_add_u32 v{V_WA}, 8192, v{V_WA}")
        wait_words(a, "TPU_W4", TS_WS, V_WA, V_WT, 51, s_cnt=52, sleep=2)
        a(f"""s_lshl_b32 s{TS_T}, s{TS_S}, 7
s_add_u32 s{TS_T}, s{TS_T}, {F_SC}
v_and_b32 v{V_WA}, 7, v{TV_LANE}
v_lshlrev_b32 v{V_WA}, 2, v{V_WA}
v_add_u32 v{V_WA}, s{TS_T}, v{V_WA}""")
        wait_words(a, "TPU_W0", TS_WS, V_WA, V_WT, None, s_cnt=52, sleep=OPT('SL_SC', 3), imm_thr=1)
        a.label("TOK_PU_GO2")
        a("s_barrier")
    T.emit_pu(a, "MPU", mid=pu_mid)
    a("s_branch TOK_LOOP")
    a.label("TOK_END")
    dbgt(a, 56, op="max")
    trace(a, 4, 97)
    a("s_waitcnt vmcnt(0)")
    a("s_endpgm")

NINIT = 80
def gemm_init(a, P):
    import struct
    EX = 0
    a(f"""s_load_dwordx2 s[40:41], s[0:1], {KA['x']}
s_sub_u32 s62, s62, 48
s_mov_b32 s63, s62
s_waitcnt lgkmcnt(0)""")
    srd(a, 64, 40, S*D*2)
    def xloads():
        a(f"""s_lshl_b32 s42, s63, 4
v_add_u32 v104, s42, v3
v_mul_u32_u24 v104, 1280, v104
v_lshlrev_b32 v105, 4, v2
v_add_u32 v104, v104, v105
s_mul_i32 s42, s20, 320""")
        for p in range(5):
            a(f"buffer_load_dwordx4 {vr(16+4*p)}, v104, s[64:67], s42 offen offset:{p*64}")
    xloads()
    a(f"""s_mul_i32 s43, s62, 16800
v_lshlrev_b32 v106, 4, v0
v_add_u32 v106, s43, v106
v_mov_b32 v108, -1
v_mov_b32 v109, -1
v_mov_b32 v110, -1
v_mov_b32 v111, -1
v_mov_b32 v112, 0
v_mov_b32 v113, 0
v_mov_b32 v114, 0
v_mov_b32 v115, 0""")
    for slot in range(4):
        for r in range(4):
            a(f"s_mov_b32 s44, {RING + slot*RING_SLOT + r*4096}")
            a(f"buffer_store_dwordx4 {vr(108)}, v106, s[4:7], s44 offen sc1")
    a("v_cmp_gt_u32 vcc, 26, v0")
    a("s_and_saveexec_b64 s[46:47], vcc")
    a(f"s_cbranch_execz {P}_GI_NOP3")
    for slot in range(4):
        a(f"s_mov_b32 s44, {RING + slot*RING_SLOT + 16384}")
        a(f"buffer_store_dwordx4 {vr(108)}, v106, s[4:7], s44 offen sc1")
    a.label(f"{P}_GI_NOP3")
    a("s_mov_b64 exec, s[46:47]")
    a(f"""s_cmp_ge_u32 s62, 64
s_cbranch_scc1 {P}_GI_NOFL
s_cmp_lg_u32 s20, 0
s_cbranch_scc1 {P}_GI_NOFL
s_lshl_b32 s43, s62, 10
s_add_u32 s43, s43, {FLAGS}
v_lshlrev_b32 v107, 4, v1
buffer_store_dwordx4 {vr(112)}, v107, s[4:7], s43 offen sc1""")
    a.label(f"{P}_GI_NOFL")
    a("s_waitcnt vmcnt(16)")
    a.label(f"{P}_GI_LN")
    for r in range(20):
        a(f"v_lshlrev_b32 v{40+2*r}, 16, v{16+r}")
        a(f"v_and_b32 v{41+2*r}, 0xffff0000, v{16+r}")
    for k in range(4): a(f"v_add_f32 v{80+k}, v{40+k}, v{44+k}")
    for i in range(8, 40): a(f"v_add_f32 v{80+(i%4)}, v{80+(i%4)}, v{40+i}")
    a("v_add_f32 v80, v80, v81\nv_add_f32 v82, v82, v83\nv_add_f32 v80, v80, v82")
    def xreduce(r, t):
        a(f"v_mov_b32 v{t}, v{r}\nv_permlane16_swap_b32 v{r}, v{t}\nv_add_f32 v{r}, v{r}, v{t}")
        a(f"v_mov_b32 v{t}, v{r}\nv_permlane32_swap_b32 v{r}, v{t}\nv_add_f32 v{r}, v{r}, v{t}")
    def cross(r, off):
        a(f"""s_lshl_b32 s43, s20, 6
v_lshlrev_b32 v84, 2, v3
v_add_u32 v84, 132096, v84
v_add_u32 v85, s43, v84
s_mov_b32 exec_hi, 0
s_mov_b32 exec_lo, 0xffff
ds_write_b32 v85, v{r} offset:{EX+off}
s_mov_b64 exec, -1
s_waitcnt lgkmcnt(0)
s_barrier
ds_read_b32 v86, v84 offset:{EX+off}
ds_read_b32 v87, v84 offset:{EX+off+64}
ds_read_b32 v88, v84 offset:{EX+off+128}
ds_read_b32 v89, v84 offset:{EX+off+192}
s_waitcnt lgkmcnt(0)
v_add_f32 v86, v86, v87
v_add_f32 v88, v88, v89
v_add_f32 v{r}, v86, v88""")
    xreduce(80, 81)
    cross(80, 0)
    a(f"s_mov_b32 s45, 0x{struct.unpack('<I', struct.pack('<f', 1.0/640))[0]:08x}")
    a("v_mul_f32 v80, s45, v80")
    for i in range(40): a(f"v_sub_f32 v{40+i}, v{40+i}, v80")
    for k in range(4): a(f"v_mul_f32 v{90+k}, v{40+k}, v{40+k}")
    for i in range(4, 40): a(f"v_fmac_f32 v{90+(i%4)}, v{40+i}, v{40+i}")
    a("v_add_f32 v90, v90, v91\nv_add_f32 v92, v92, v93\nv_add_f32 v90, v90, v92")
    xreduce(90, 91)
    cross(90, 256)
    a("v_mul_f32 v90, s45, v90")
    a("v_add_f32 v90, 0x3727c5ac, v90")
    a("v_rsq_f32 v90, v90")
    for r in range(20):
        a(f"v_mul_f32 v{40+2*r}, v{40+2*r}, v90")
        a(f"v_mul_f32 v{41+2*r}, v{41+2*r}, v90")
        a(f"v_cvt_pk_bf16_f32 v{116+r}, v{40+2*r}, v{41+2*r}")
    a(f"""s_mul_i32 s43, s63, {20*1024}
s_mul_i32 s44, s20, {5*1024}
s_add_u32 s43, s43, s44
s_add_u32 s43, s43, {XN}
v_lshlrev_b32 v104, 4, v1""")
    for p in range(5):
        if p == 4: a("s_add_u32 s43, s43, 4096")
        a(f"buffer_store_dwordx4 {vr(116+4*p)}, v104, s[4:7], s43 offen offset:{(p%4)*1024} sc1")
    a(f"""s_add_u32 s63, s63, {NINIT}
s_cmp_ge_u32 s63, 128
s_cbranch_scc1 {P}_GI_END""")
    xloads()
    a("s_waitcnt vmcnt(0)")
    a("s_barrier")
    a(f"s_branch {P}_GI_LN")
    a.label(f"{P}_GI_END")
    a("s_waitcnt vmcnt(0)")
    a("s_barrier")
    a(f"""s_cmp_lg_u32 s20, 0
s_cbranch_scc1 {P}_GI_DONE
v_mov_b32 v110, 1
v_mov_b32 v111, {DB_INIT}
s_mov_b64 exec, 1
global_atomic_add v111, v110, s[76:77] sc1
s_mov_b64 exec, -1""")
    a.label(f"{P}_GI_DONE")

def wait_init(a, lbl):
    wait_dbg(a, lbl, 76, DB_INIT, 250, 251, 86, 88, thr=NINIT)

def gen_main_kernel(name="main_kernel"):
    a = Asm()
    kernel_header(a, name)
    if OPT('STAMP', 0): a("s_memtime s[100:101]")
    a(f"""s_cmp_ge_u32 s2, 256
s_cbranch_scc1 MK_END
s_load_dwordx2 s[74:75], s[0:1], {KA['ws']}
s_load_dwordx2 s[76:77], s[0:1], {KA['dbg']}
s_getreg_b32 s78, hwreg(HW_REG_XCC_ID)
s_and_b32 s78, s78, 7
s_waitcnt lgkmcnt(0)""")
    if OPT('FAKEXCC', 0):
        a("s_lshr_b32 s78, s2, 4\ns_min_u32 s78, s78, 7")
    srd(a, 4, 74, WS_SIZE)
    lane_setup(a, 1, 2, 3, 24)
    a(f"""s_cmp_lg_u32 s24, 0
s_cbranch_scc1 MK_NORANK
v_mov_b32 v10, 1
s_lshl_b32 s79, s78, 2
v_mov_b32 v11, s79
s_mov_b64 exec, 1
global_atomic_add v12, v11, v10, s[76:77] sc0 sc1
s_waitcnt vmcnt(0)
v_readfirstlane_b32 s79, v12
s_mov_b32 s80, s78
s_cmp_lt_u32 s79, 32
s_cbranch_scc1 MK_HAVE
v_mov_b32 v11, 32
global_atomic_add v12, v11, v10, s[76:77] sc0 sc1
s_waitcnt vmcnt(0)
v_readfirstlane_b32 s81, v12
s_mov_b64 exec, 0xff
v_lshlrev_b32 v11, 2, v1
s_mov_b32 s82, 0""")
    a.label("MK_OVW")
    a(f"""global_load_dword v12, v11, s[76:77] sc1
s_waitcnt vmcnt(0)
s_mov_b32 s83, 0""")
    for x in range(8):
        a(f"v_readlane_b32 s84, v12, {x}\ns_add_u32 s83, s83, s84")
    a(f"""s_cmp_ge_u32 s83, 256
s_cbranch_scc1 MK_OVK
s_sleep 8
s_add_u32 s82, s82, 1
s_cmp_lt_u32 s82, 0x200000
s_cbranch_scc1 MK_OVW""")
    a.label("MK_OVK")
    for x in range(8):
        a(f"""v_readlane_b32 s84, v12, {x}
s_min_u32 s84, s84, 32
s_sub_u32 s85, 32, s84
s_cmp_lt_u32 s81, s85
s_cbranch_scc0 MK_NX{x}
s_mov_b32 s80, {x}
s_add_u32 s79, s84, s81
s_branch MK_HAVE""")
        a.label(f"MK_NX{x}")
        a("s_sub_u32 s81, s81, s85")
    a("s_mov_b32 s80, 7\ns_mov_b32 s79, 31")
    a.label("MK_HAVE")
    a(f"""s_mov_b64 exec, 1
s_lshl_b32 s80, s80, 8
s_or_b32 s80, s80, s79
v_mov_b32 v12, s80
v_mov_b32 v11, 0
ds_write_b32 v11, v12
s_waitcnt lgkmcnt(0)
s_mov_b64 exec, -1""")
    a.label("MK_NORANK")
    a(f"""s_barrier
v_mov_b32 v11, 0
ds_read_b32 v12, v11
s_waitcnt lgkmcnt(0)
v_readfirstlane_b32 s79, v12
s_barrier
s_lshr_b32 s80, s79, 8
s_and_b32 s79, s79, 255
s_cmp_ge_u32 s80, 4
s_cbranch_scc1 MK_GEMM
s_lshl_b32 s{R.S_J}, s80, 5
s_add_u32 s{R.S_J}, s{R.S_J}, s79""")
    a(f"s_mov_b32 s97, s{R.S_J}")
    dbgt(a, 60, s_cond=R.S_J)
    trace(a, 0, 97)
    R.INITWAIT[0] = True
    R.rec_entry(a)
    R.rec_dispatch(a, flags=True)
    a.label("MK_GEMM")
    a(f"""s_lshl_b32 s51, s79, 2
s_sub_u32 s80, s80, 4
s_add_u32 s51, s51, s80
s_mov_b32 s{P.S_WAVE}, s24
s_lshl_b32 s{P.S_PROG}, s51, {PSH}
s_add_u32 s{P.S_PROG}, s{P.S_PROG}, {F_PROG}
s_add_u32 s97, s51, 128""")
    trace(a, 0, 97)
    a("s_mov_b32 s62, s51")
    a("s_cmp_lt_u32 s51, 48")
    a("s_cbranch_scc1 MK_NOINIT")
    gemm_init(a, "GI")
    a.label("MK_NOINIT")
    if OPT('DELAYW', 0):
        a(f"s_cmp_lt_u32 s51, {R_Q0}")
        a("s_cbranch_scc1 MK_NODLY")
        a(f"s_cmp_ge_u32 s51, {R_PROBE}")
        a("s_cbranch_scc1 MK_NODLY")
        n = OPT('DELAYW', 0)
        while n > 0:
            k = min(n, 127); a(f"s_sleep {k}"); n -= k
        a.label("MK_NODLY")
    a(f"""s_cmp_lt_u32 s51, {R_UP0}
s_cbranch_scc1 MK_QKV
s_cmp_lt_u32 s51, {R_DN0}
s_cbranch_scc1 MK_UP
s_cmp_lt_u32 s51, {R_U0}
s_cbranch_scc1 MK_DN
s_cmp_lt_u32 s51, {R_PROBE}
s_cbranch_scc1 MK_U
s_cmp_eq_u32 s51, {R_PROBE}
s_cbranch_scc0 MK_TOK""")
    R.probe(a, 24, 78, "MK_PR", 76)
    a("s_branch MK_TOK")
    a.label("MK_QKV")
    P.panel_role_setup(a, 'qkv', 51); P.emit_panel(a, 'qkv', 'MPQ', flags=True, init_hook=lambda: wait_init(a, "WI_Q"))
    a("s_branch MK_TOK")
    a.label("MK_UP")
    a(f"s_sub_u32 s51, s51, {R_UP0}")
    P.panel_role_setup(a, 'ffnup', 51); P.emit_panel(a, 'ffnup', 'MPU2', flags=True, init_hook=lambda: wait_init(a, "WI_U"))
    a("s_branch MK_TOK")
    a.label("MK_DN")
    a(f"s_sub_u32 s51, s51, {R_DN0}")
    P.panel_role_setup(a, 'down', 51); P.emit_panel(a, 'down', 'MPD', flags=True, init_hook=lambda: wait_init(a, "WI_D"))
    a("s_branch MK_TOK")
    a.label("MK_U")
    a(f"""s_sub_u32 s{T.US_H}, s51, {R_U0}
s_mov_b32 s{T.US_PROG}, s{P.S_PROG}
s_load_dwordx2 s[40:41], s[0:1], {KA['wo']}
s_waitcnt lgkmcnt(0)""")
    srd(a, T.US_WO, 40, H*E*D*2)
    T.emit_upanel(a, "MUP", flags=True, init_hook=lambda: wait_init(a, "WI_UP"))
    a.label("MK_TOK")
    trace(a, 3, 97)
    wait_init(a, "WI_T")
    a("s_barrier")
    tok_loop(a)
    a.label("MK_END")
    a("s_endpgm")
    return name, a.finalize(), kernel_desc(name, 512, 102, 256)
```

```python
from gen_common import *
import struct, os
OPT=lambda k,d: type(d)(os.environ.get(k,d))
def f2u(f): return struct.unpack('<I', struct.pack('<f', f))[0]

S_WS=4; S_WQ=8; S_WK=12; S_WV=16; S_WO=20
S_WAVE=24; S_H=25; S_C=26; S_J=27; S_STEP=28
S_P=29; S_CUR=30; S_N=31; S_NN=32
S_HI32=20
S_MQ=16
S_M8=34; S_H8=38
S_T=40; S_T2=41; S_T3=42; S_RETRY=43
S_KVG=44; S_UXG=45; S_UYG=46; S_KMG=47; S_RSB=48; S_KVL=49; S_KVR=50; S_RED=51; S_RSP=52; S_FLG=53
S_LB=54
S_COL=56
S_SCALE=60; S_MAXR=61
S_TS=62
S_M0=88
S_MODE=57
S_REF0=98
S_REF2=36
S_NOW=58
L_MEM=0; L_QKV=10240; L_KV=20480; KVB=24576
LDS_REC=131072
V_LANE=1; V_G=2; V_N=3; V_T=4; V_T2=5; V_L16=6
V_AGO=7; V_AGL=10; V_MRD=11; V_AGP=23
V_RSL=7
V_AST=12; V_KMS=15; V_APO=16; V_APL=19
V_RQ=20; V_IDX=21; V_RV=22; V_RSO=28; V_L4=29; V_AGS=30; V_ZERO=31
V_RSP=80
V_NINF=248; V_KVA=249
V_POLL=32; V_RING=48; V_ACC=88; V_PK=252; V_KXF=100; V_QF=148; V_KF=172; V_VF=196; V_S=220; V_UXF=232
V_Y=48; V_PU=64; V_UA=48; V_YF=220; V_SM=148
NT = [4, 4, 2]; T0 = [0, 4, 8]; P0 = [0, 2, 4]
KVX = L_KV ^ (L_KV+KVB)

def poll_check(a, regs, vt):
    r = list(regs)
    a(f"v_max3_u32 v{vt}, v{r[0]}, v{r[1]}, v{r[2]}")
    i = 3
    while i < len(r):
        if i + 1 < len(r):
            a(f"v_max3_u32 v{vt}, v{vt}, v{r[i]}, v{r[i+1]}"); i += 2
        else:
            a(f"v_max_u32 v{vt}, v{vt}, v{r[i]}"); i += 1
    a(f"v_cmp_eq_u32 vcc, -1, v{vt}")

def sleep(a, n):
    while n > 0:
        k = min(n, 127); a(f"s_sleep {k}"); n -= k

def mark(a, reg):
    a(f"s_memtime s[{reg}:{reg+1}]")

def wait_until(a, ref, delta):
    if delta <= 0: return
    a.uid += 1
    L = f"WU_{a.uid}"
    a.label(L)
    a(f"""s_memtime s[{S_NOW}:{S_NOW+1}]
s_waitcnt lgkmcnt(0)
s_sub_u32 s{S_NOW}, s{S_NOW}, s{ref}
s_cmp_ge_u32 s{S_NOW}, {delta}
s_cbranch_scc1 {L}_D
s_sub_u32 s{S_NOW}, {delta}, s{S_NOW}
s_cmp_lt_u32 s{S_NOW}, 96
s_cbranch_scc1 {L}
s_sleep 1
s_branch {L}""")
    a.label(f"{L}_D")

def stamp(a, idx):
    if OPT('STAMP', 0):
        a(f"s_memtime s[{S_TS+2*idx}:{S_TS+2*idx+1}]")

def racc(a, k):
    if OPT('STAMP', 0): a(f"s_add_u32 s{k}, s{k}, s{S_RETRY}")

def nearmap_v(a, v, vt):
    a(f"""v_lshrrev_b32 v{vt}, 13, v{v}
v_lshlrev_b32 v{vt}, 14, v{vt}
v_and_b32 v{v}, 0x1fff, v{v}
v_or_b32 v{v}, v{v}, v{vt}""")

def oob_mask(a, v, nlanes):
    a(f"""v_mov_b32 v{V_T}, 0x80000000
v_cmp_gt_u32 vcc, {nlanes}, v{V_LANE}
v_cndmask_b32 v{v}, v{V_T}, v{v}, vcc""")

V_AGB=48
def poll_loop(a, lbl, loads, nreg, acc, pre_issued=False, base=None):
    a(f"s_mov_b32 s{S_RETRY}, 0")
    if pre_issued:
        a(f"s_branch {lbl}_W")
    a.label(lbl)
    for x in loads: a(x)
    if pre_issued: a.label(f"{lbl}_W")
    a("s_waitcnt vmcnt(0)")
    b0 = V_POLL if base is None else base
    poll_check(a, range(b0, b0+nreg), V_T)
    a(f"""s_cbranch_vccz {lbl}_OK
s_add_u32 s{S_RETRY}, s{S_RETRY}, 1
s_cmp_lt_u32 s{S_RETRY}, s{S_MAXR}
s_cbranch_scc1 {lbl}
s_mov_b32 s{S_MAXR}, 0""")
    a.label(f"{lbl}_OK")
    racc(a, acc)

CURMODE = [None]
def RSLOC(): return OPT('RSLOC', 0) and not OPT('STAMP', 0)
INITWAIT = [False]
def store_mode(a, lines):
    if CURMODE[0] is not None:
        for x in lines: a(x.replace(' SCX', '' if CURMODE[0] else ' sc1'))
        return
    if OPT('AFAST', 1) == 0:
        for x in lines: a(x.replace(' SCX', ' sc1'))
        return
    a.uid += 1
    L = f"SM_{a.uid}"
    a(f"s_cmp_eq_u32 s{S_MODE}, 0")
    a(f"s_cbranch_scc1 {L}_S")
    for x in lines: a(x.replace(' SCX', ''))
    a(f"s_branch {L}_E")
    a.label(f"{L}_S")
    for x in lines: a(x.replace(' SCX', ' sc1'))
    a.label(f"{L}_E")

def wait_mode(a, ref, fast, slow):
    if CURMODE[0] is not None:
        wait_until(a, ref, fast if CURMODE[0] else slow); return
    if OPT('AFAST', 1) == 0:
        wait_until(a, ref, slow); return
    a.uid += 1
    L = f"WM_{a.uid}"
    a(f"s_cmp_eq_u32 s{S_MODE}, 0")
    a(f"s_cbranch_scc1 {L}_S")
    wait_until(a, ref, fast)
    a(f"s_branch {L}_E")
    a.label(f"{L}_S")
    wait_until(a, ref, slow)
    a.label(f"{L}_E")

def poll2(a, lbl, mk_loads, nreg, baseA, baseB, acc, stage, gap=2):
    LA = mk_loads(baseA); LB = mk_loads(baseB); n = len(LA)
    a(f"s_mov_b32 s{S_RETRY}, 0")
    for x in LA: a(x)
    if gap: a(f"s_sleep {gap}")
    a.label(lbl)
    for x in LB: a(x)
    a(f"s_waitcnt vmcnt({n})")
    poll_check(a, range(baseA, baseA+nreg), V_T)
    a(f"s_cbranch_vccz {lbl}_GA")
    for x in LA: a(x)
    a(f"s_waitcnt vmcnt({n})")
    poll_check(a, range(baseB, baseB+nreg), V_T)
    a(f"""s_cbranch_vccz {lbl}_GB
s_add_u32 s{S_RETRY}, s{S_RETRY}, 1
s_cmp_lt_u32 s{S_RETRY}, s{S_MAXR}
s_cbranch_scc1 {lbl}
s_mov_b32 s{S_MAXR}, 0""")
    a.label(f"{lbl}_GB")
    racc(a, acc)
    stage(baseB)
    a(f"s_branch {lbl}_E")
    a.label(f"{lbl}_GA")
    racc(a, acc)
    stage(baseA)
    a.label(f"{lbl}_E")

def ag_poll(a, pfx, w):
    wait_mode(a, S_REF2, OPT('T_AGF', 300), OPT('T_AG', 650))
    base = (w-2)*5
    def mk(b): return [f"buffer_load_dwordx4 {vr(b+4*k)}, v{V_AGP+k}, s[{S_WS}:{S_WS+3}], s{S_P} offen sc1" for k in range(5)]
    def stage(b):
        for k in range(5):
            a(f"ds_write_b128 v{V_L16}, {vr(b+4*k)} offset:{L_MEM + (base+k)*1024}")
    if CURMODE[0] and OPT('POLL2', 0):
        poll2(a, f"{pfx}_AGP", mk, 20, 172, 196, 92, stage, gap=OPT('GAPD', 2))
    else:
        poll_loop(a, f"{pfx}_AGP", mk(V_AGB), 20, 92, base=V_AGB)
        stage(V_AGB)

def reduce_blocks(a, pfx, nb, SEL, base_reg, s_poll, v_ags, acc, apk, s_loc0=None, s_loc=None, sqbase=None):
    loads = []
    LOCAL = CURMODE[0] and RSLOC()
    if LOCAL:
        a(f"s_lshr_b32 s{S_NOW}, s{S_J}, 5")
        a(f"s_xor_b32 s{S_NOW+1}, s{S_CUR}, 8192")
        for b in range(nb):
            a(f"s_add_u32 s{s_loc[b]}, s{s_loc0[b]}, s{S_NOW+1}")
        for b in range(nb):
            for q in range(4):
                sq = sqbase + 4*b + q
                a(f"s_add_u32 s{sq}, s{s_poll[b]}, {q*1024}")
                a(f"s_cmp_eq_u32 s{S_NOW}, {q}")
                a(f"s_cselect_b32 s{sq}, s{s_loc[b]}, s{sq}")
                loads.append(f"buffer_load_dwordx4 {vr(base_reg+16*b+4*q)}, v{V_L16}, s[{S_WS}:{S_WS+3}], s{sq} offen sc1")
    else:
        for b in range(nb):
            for q in range(4):
                loads.append(f"buffer_load_dwordx4 {vr(base_reg+16*b+4*q)}, v{V_L16}, s[{S_WS}:{S_WS+3}], s{s_poll[b]} offen offset:{q*1024} sc1")
    poll_loop(a, f"{pfx}_RP", loads, 16*nb, 94, base=base_reg)
    stamp(a, 7)
    for q in range(4):
        for b in range(nb):
            c = "0" if q == 0 else vr(acc+8*b)
            a(f"v_mfma_f32_16x16x32_bf16 {vr(acc+8*b)}, {vr(SEL)}, {vr(base_reg+16*b+4*q)}, {c}")
    for b in range(nb):
        for r in range(4):
            a(f"v_add_f32_dpp v{acc+8*b+4+r}, v{acc+8*b+r}, v{acc+8*b+r} row_ror:8 row_mask:0xf bank_mask:0xf")
    if nb == 2:
        for r in range(4): a(f"v_cndmask_b32 v{acc+4+r}, v{acc+4+r}, v{acc+12+r}, s[{S_H8}:{S_H8+1}]")
    a(f"v_cvt_pk_bf16_f32 v{apk}, v{acc+4}, v{acc+5}")
    a(f"v_cvt_pk_bf16_f32 v{apk+1}, v{acc+6}, v{acc+7}")
    a(f"v_mov_b32 v{apk+2}, v{apk}\nv_mov_b32 v{apk+3}, v{apk+1}")
    a(f"v_mov_b32 v{apk+4}, v{apk}\nv_mov_b32 v{apk+5}, v{apk+1}")
    a(f"v_permlane16_swap_b32 v{apk+4}, v{apk+2}")
    a(f"v_permlane16_swap_b32 v{apk+5}, v{apk+3}")
    store_mode(a, [f"buffer_store_dwordx4 {vr(apk)}, v{v_ags}, s[{S_WS}:{S_WS+3}], s{S_CUR} offen SCX"])

def reduce2(a, pfx, SEL, base_reg, v_off, v_ags, acc, apk):
    loads = [f"buffer_load_dwordx4 {vr(base_reg+4*q)}, v{v_off}, s[{S_WS}:{S_WS+3}], s{S_CUR} offen offset:{q*512} sc1" for q in range(8)]
    poll_loop(a, f"{pfx}_RP", loads, 32, 94, base=base_reg)
    stamp(a, 7)
    for q in range(8):
        c = "0" if q == 0 else vr(acc)
        a(f"v_mfma_f32_16x16x32_bf16 {vr(acc)}, {vr(SEL)}, {vr(base_reg+4*q)}, {c}")
    a(f"v_cvt_pk_bf16_f32 v{apk}, v{acc}, v{acc+1}")
    a(f"v_cvt_pk_bf16_f32 v{apk+1}, v{acc+2}, v{acc+3}")
    store_mode(a, [f"buffer_store_dwordx2 {vr(apk,2)}, v{v_ags}, s[{S_WS}:{S_WS+3}], s{S_CUR} offen SCX"])

def sel_setup(a, SEL):
    for k in range(4):
        a(f"""v_mov_b32 v{SEL+k}, 0
v_mov_b32 v{V_T}, 0x3f80
v_cmp_eq_u32 vcc, {2*k}, v{V_N}
v_cndmask_b32 v{SEL+k}, v{SEL+k}, v{V_T}, vcc
v_mov_b32 v{V_T}, 0x3f800000
v_cmp_eq_u32 vcc, {2*k+1}, v{V_N}
v_cndmask_b32 v{SEL+k}, v{SEL+k}, v{V_T}, vcc""")

def smap(a, s, t):
    a(f"""s_lshr_b32 s{t}, s{s}, 13
s_lshl_b32 s{t}, s{t}, 14
s_and_b32 s{s}, s{s}, 0x1fff
s_or_b32 s{s}, s{s}, s{t}
s_add_u32 s{s}, s{s}, {nearmap(RS_LOG)}""")

def loc_off(a, s_cb, s_out, s_tmp):
    a(f"""s_lshr_b32 s{s_out}, s{S_J}, 5
s_mul_i32 s{s_out}, s{s_out}, 81920
s_lshl_b32 s{s_tmp}, s{s_cb}, 10
s_add_u32 s{s_out}, s{s_out}, s{s_tmp}""")
    smap(a, s_out, s_tmp)

def rs_local_lane(a, v):
    a(f"""v_lshlrev_b32 v{v}, 10, v{V_G}
v_and_b32 v{V_T}, 7, v{V_LANE}
v_lshlrev_b32 v{V_T}, 4, v{V_T}
v_add_u32 v{v}, v{v}, v{V_T}
s_and_b32 s{S_T}, s{S_H}, 7
s_lshl_b32 s{S_T}, s{S_T}, 7
v_add_u32 v{v}, s{S_T}, v{v}""")

def blk_off(a, s_cb, s_out, s_tmp):
    a(f"""s_lshr_b32 s{s_out}, s{s_cb}, 1
s_lshl_b32 s{s_out}, s{s_out}, 14
s_and_b32 s{s_tmp}, s{s_cb}, 1
s_lshl_b32 s{s_tmp}, s{s_tmp}, 12
s_add_u32 s{s_out}, s{s_out}, s{s_tmp}
s_add_u32 s{s_out}, s{s_out}, {nearmap(RS_LOG)}""")

def rotate_slots(a):
    a(f"""s_mov_b32 s{S_T}, s{S_P}
s_mov_b32 s{S_P}, s{S_CUR}
s_mov_b32 s{S_CUR}, s{S_N}
s_mov_b32 s{S_N}, s{S_NN}
s_mov_b32 s{S_NN}, s{S_T}""")

def proj_stage(a, ntile, w8):
    for K in range(10):
        a(f"ds_read_b128 {vr(V_RING+4*K)}, v{V_L16} offset:{L_MEM + K*1024}")
    for t in range(ntile):
        for r in range(4): a(f"v_mov_b32 v{V_ACC+4*t+r}, 0")
    for K in range(10):
        a(f"s_waitcnt lgkmcnt({9-K})")
        for t in range(ntile):
            a(f"v_smfmac_f32_16x16x64_bf16 {vr(V_ACC+4*t)}, {vr(V_RING+4*K)}, {w8(t,K)}, v{V_IDX}")

def pack_pair(x, y, pk):
    L = [f"v_permlane32_swap_b32 v{x+r}, v{y+r}" for r in range(4)]
    L += [f"v_add_f32 v{x+r}, v{x+r}, v{y+r}" for r in range(4)]
    L += [f"v_cvt_pk_bf16_f32 v{pk}, v{x}, v{x+1}", f"v_cvt_pk_bf16_f32 v{pk+1}, v{x+2}, v{x+3}"]
    return L

def ux_load(a, w, flags, pfx):
    nt = NT[w]
    if flags:
        a.uid += 1
        a(f"s_add_u32 s{S_UXT}, s{S_UXT}, 1")
        a(f"s_min_u32 s{S_T3}, s{S_UXT}, 64")
        wait_words(a, f"{pfx}_WUX{a.uid}", S_WS, V_UXA, V_T, S_T3, S_UXC, 1, S_T2, 23)
    for t in range(nt):
        a(f"buffer_load_dwordx4 {vr(V_UXF+4*t)}, v{V_L16}, s[{S_WS}:{S_WS+3}], s{S_UXG} offen offset:{t*1024} sc1")
    a(f"s_add_u32 s{S_UXG}, s{S_UXG}, {32*40*1024}")

def idle_phase(a, w, woq):
    if OPT('UXRD', 0):
        a(f"v_add_u32 v{V_T}, s{S_KVR}, v{V_L16}")
        for f in range(12):
            a(f"ds_read_b128 {vr(V_KXF+4*f)}, v{V_T} offset:{f*1024}")
        a("s_waitcnt lgkmcnt(0)")
        a(f"s_xor_b32 s{S_KVR}, s{S_KVR}, {KVX}")
        return
    nt = NT[w]
    a(f"v_add_u32 v{V_T}, s{S_KVR}, v{V_L16}")
    for f in range(12):
        a(f"ds_read_b128 {vr(V_QF+4*f)}, v{V_T} offset:{12288 + f*1024}")
        if f == 7: a("s_waitcnt lgkmcnt(4)")
    a("s_waitcnt lgkmcnt(0)")
    for f in range(12):
        a(f"ds_read_b128 {vr(V_KXF+4*f)}, v{V_T} offset:{f*1024}")
    for p in range(6):
        for t in range(nt):
            for tt in range(2):
                d = V_UA + 8*t + 4*tt
                c = "0" if p == 0 else vr(d)
                a(f"v_mfma_f32_16x16x32_bf16 {vr(d)}, {vr(V_QF+4*(tt*6+p))}, {woq(t,p)}, {c}")
    for t in range(nt):
        for k in range(4):
            tt = k >> 1
            d = V_UA + 8*t + 4*tt + 2*(k & 1)
            a(f"v_cvt_pk_bf16_f32 v{V_UXF+4*t+k}, v{d}, v{d+1}")
        a(f"s_add_u32 s{S_T}, s{S_UXG}, {t*1024}")
        if OPT('UXST', 0): a(f"buffer_store_dwordx4 {vr(V_UXF+4*t)}, v{V_L16}, s[{S_WS}:{S_WS+3}], s{S_T} offen sc1")
    a(f"s_add_u32 s{S_UXG}, s{S_UXG}, {32*40*1024}")
    a("s_waitcnt lgkmcnt(0)")
    a(f"s_xor_b32 s{S_KVR}, s{S_KVR}, {KVX}")

S_UXT=88; S_UXC=89; V_UXA=11
S_KVT=33
S_RLB=18
S_RL0=19; S_RL1=95
V_RSOL=9
S_KVC=21
def kv_dma(a, flags=False, pfx='', w=0):
    if w < 2:
        if flags:
            a.uid += 1
            a(f"s_add_u32 s{S_KVT}, s{S_KVT}, 2")
            a(f"s_min_u32 s{S_T3}, s{S_KVT}, 128")
            wait_words(a, f"{pfx}_WKV{a.uid}", S_WS, V_KVA, V_T, S_T3, 22, 2 if OPT('UXRD', 0) else 4, S_T2, 23)
        if OPT('UXRD', 0):
            for (k0, n) in ((0, 4), (4, 2)):
                a(f"s_add_u32 m0, s{S_KVL}, {w*6144 + k0*1024}")
                a(f"s_add_u32 s{S_T}, s{S_KVG}, {k0*1024}")
                for j in range(n):
                    a(f"buffer_load_dwordx4 v{V_L16}, s[{S_WS}:{S_WS+3}], s{S_T} offen offset:{j*1024} sc1 lds")
        else:
            for k in range(3):
                a(f"s_add_u32 m0, s{S_KVL}, {w*12288 + k*4096}")
                a(f"s_add_u32 s{S_T}, s{S_KVG}, {k*4096}")
                for j in range(4):
                    a(f"buffer_load_dwordx4 v{V_L16}, s[{S_WS}:{S_WS+3}], s{S_T} offen offset:{j*1024} sc1 lds")
        a(f"s_add_u32 s{S_KVG}, s{S_KVG}, {32*12288}")
    a(f"s_xor_b32 s{S_KVL}, s{S_KVL}, {KVX}")

def softmax_lists():
    X = V_SM; MX = V_SM+6; TM = V_SM+7; RS_ = V_SM+8; PT = V_SM+12; PM = V_SM+10; T2 = V_SM+16
    L = []
    for r in range(4): L.append(f"v_cndmask_b32 v{X+r}, v{V_S+4+r}, v{V_S+8+r}, s[{S_H8}:{S_H8+1}]")
    L.append(f"v_cndmask_b32 v{X+4}, v{V_S}, v{V_S+2}, s[{S_H8}:{S_H8+1}]")
    L.append(f"v_cndmask_b32 v{X+5}, v{V_S+1}, v{V_S+3}, s[{S_H8}:{S_H8+1}]")
    L.append(f"v_max3_f32 v{MX}, v{X}, v{X+1}, v{X+2}")
    L.append(f"v_max3_f32 v{TM}, v{X+3}, v{X+4}, v{X+5}")
    L.append(f"v_max_f32 v{MX}, v{MX}, v{TM}")
    L.append(f"v_max_f32_dpp v{MX}, v{MX}, v{MX} row_ror:8 row_mask:0xf bank_mask:0xf")
    L += [f"v_mov_b32 v{TM}, v{MX}", f"v_permlane16_swap_b32 v{MX}, v{TM}", f"v_max_f32 v{MX}, v{MX}, v{TM}"]
    L += [f"v_mov_b32 v{TM}, v{MX}", f"v_permlane32_swap_b32 v{MX}, v{TM}", f"v_max_f32 v{MX}, v{MX}, v{TM}"]
    L.append(f"v_mul_f32 v{MX}, s{S_SCALE}, v{MX}")
    for j in range(6): L.append(f"v_fma_f32 v{X+j}, v{X+j}, s{S_SCALE}, -v{MX}")
    for j in range(6): L.append(f"v_exp_f32 v{X+j}, v{X+j}")
    L.append(f"v_cvt_pk_bf16_f32 v{PT}, v{X}, v{X+1}")
    L.append(f"v_cvt_pk_bf16_f32 v{PT+1}, v{X+2}, v{X+3}")
    L.append(f"v_cvt_pk_bf16_f32 v{PM}, v{X+4}, v{X+5}")
    L.append(f"v_mov_b32_dpp v{PT+2}, v{PT} row_ror:8 row_mask:0xf bank_mask:0xf")
    L.append(f"v_mov_b32_dpp v{PT+3}, v{PT+1} row_ror:8 row_mask:0xf bank_mask:0xf")
    L.append(f"v_mov_b32_dpp v{PM+1}, v{PM} row_ror:8 row_mask:0xf bank_mask:0xf")
    M = [f"v_cndmask_b32 v{X+4}, v{X+4}, v{V_ZERO}, s[{S_HI32}:{S_HI32+1}]",
         f"v_cndmask_b32 v{X+5}, v{X+5}, v{V_ZERO}, s[{S_HI32}:{S_HI32+1}]",
         f"v_add_f32 v{RS_}, v{X}, v{X+1}", f"v_add_f32 v{TM}, v{X+2}, v{X+3}", f"v_add_f32 v{RS_+1}, v{X+4}, v{X+5}",
         f"v_add_f32 v{RS_}, v{RS_}, v{TM}", f"v_add_f32 v{RS_}, v{RS_}, v{RS_+1}",
         f"v_add_f32_dpp v{RS_}, v{RS_}, v{RS_} row_ror:8 row_mask:0xf bank_mask:0xf",
         f"v_mov_b32 v{TM}, v{RS_}", f"v_permlane16_swap_b32 v{RS_}, v{TM}", f"v_add_f32 v{RS_}, v{RS_}, v{TM}",
         f"v_mov_b32 v{TM}, v{RS_}", f"v_permlane32_swap_b32 v{RS_}, v{TM}", f"v_add_f32 v{RS_}, v{RS_}, v{TM}",
         f"v_rcp_f32 v{RS_}, v{RS_}"]
    return PT, PM, RS_, L, M

def gi(a, v):
    a(f"""v_lshlrev_b32 v{v}, 7, v{V_G}
v_and_b32 v{V_T}, 7, v{V_LANE}
v_lshlrev_b32 v{V_T}, 4, v{V_T}
v_add_u32 v{v}, v{v}, v{V_T}""")

def rs_lane(a, v):
    a(f"""v_lshrrev_b32 v{v}, 1, v{V_G}
v_lshlrev_b32 v{v}, 14, v{v}
v_and_b32 v{V_T}, 1, v{V_G}
v_lshlrev_b32 v{V_T}, 12, v{V_T}
v_add_u32 v{v}, v{v}, v{V_T}
v_and_b32 v{V_T}, 7, v{V_LANE}
v_lshlrev_b32 v{V_T}, 4, v{V_T}
v_add_u32 v{v}, v{v}, v{V_T}
s_lshl_b32 s{S_T}, s{S_H}, 7
v_add_u32 v{v}, s{S_T}, v{v}""")

def coop_load(a, w, wreg):
    stride = H*E*2
    VG, VT = V_POLL, V_POLL+1
    a(f"""v_lshrrev_b32 v{V_T}, 3, v{V_LANE}
v_add_u32 v{V_T}, {8*w}, v{V_T}
s_mov_b32 s{S_LB+1}, {stride}
v_mul_lo_u32 v{VG}, v{V_T}, s{S_LB+1}
v_and_b32 v{V_T}, 7, v{V_LANE}
v_lshlrev_b32 v{V_T}, 4, v{V_T}
v_add_u32 v{VG}, v{VG}, v{V_T}
v_bfe_u32 v{VT}, v{V_LANE}, 4, 1
v_lshlrev_b32 v{VT}, 4, v{VT}
v_bfe_u32 v{V_T}, v{V_LANE}, 5, 1
v_lshlrev_b32 v{V_T}, 3, v{V_T}
v_add_u32 v{VT}, v{VT}, v{V_T}
v_bfe_u32 v{V_T}, v{V_LANE}, 2, 1
v_add_u32 v{VT}, v{VT}, v{V_T}
v_bfe_u32 v{V_T}, v{V_LANE}, 3, 1
v_lshlrev_b32 v{V_T}, 2, v{V_T}
v_add_u32 v{VT}, v{VT}, v{V_T}
v_lshlrev_b32 v{VT}, 7, v{VT}
v_and_b32 v{V_T}, 3, v{V_LANE}
v_lshlrev_b32 v{V_T}, 3, v{V_T}
v_add_u32 v{VT}, v{VT}, v{V_T}
s_mul_i32 s{S_COL}, s{S_H}, 384
s_mul_i32 s{S_T}, s{S_C}, 96
s_add_u32 s{S_COL}, s{S_COL}, s{S_T}
v_add_u32 v{VT+1}, 61440, v{VT}""")
    srds = (S_WQ, S_WK, S_WV)
    def issue(ph):
        buf = (ph & 1)*61440
        for pp in range(5):
            p = 5*ph + pp
            for m in range(3):
                a(f"s_add_u32 s{S_T}, s{S_COL}, {p*32*stride}")
                a(f"s_mov_b32 m0, {buf + (pp*3+m)*4096 + w*1024}")
                a(f"buffer_load_dwordx4 v{VG}, s[{srds[m]}:{srds[m]+3}], s{S_T} offen lds")
    issue(0); issue(1)
    for ph in range(4):
        a(f"s_waitcnt vmcnt({15 if ph < 3 else 0})")
        a("s_barrier")
        buf = (ph & 1)*61440
        n = 0
        for pp in range(5):
            p = 5*ph + pp
            if w < 3: items = [(0, w, p), (1, w, 20+p)]
            else: items = [(2, t, t*20+p) for t in range(3)]
            for (m, T, f) in items:
                o = buf + (pp*3+m)*4096 + T*32
                reg = VT if o + 256 < 65536 else VT+1
                oo = o if reg == VT else o - 61440
                a(f"ds_read_b64_tr_b16 {wreg.pair(f,0)}, v{reg} offset:{oo}")
                a(f"ds_read_b64_tr_b16 {wreg.pair(f,1)}, v{reg} offset:{oo+256}")
                n += 2
                if n % 12 == 0: a("s_waitcnt lgkmcnt(4)")
        a("s_waitcnt lgkmcnt(0)")
        a("s_barrier")
        if ph == 0: pass
        if ph + 2 < 4: issue(ph+2)

def main_wave(a, w, flags=False):
    pfx = f"RM{w}"
    nt = NT[w]
    wreg = WReg(0, 256, 0)
    w8 = lambda t, K: ar((t*20 + 2*K)*4, 8)
    woq = lambda t, p: wreg.quad(40 + t*6 + p)
    a(f"s_lshl_b32 s{S_LB}, s{S_WAVE}, 15")
    if OPT('COOP', 1):
        coop_load(a, w, wreg)
    else:
        a(f"""s_mul_i32 s{S_COL}, s{S_H}, 384
s_mul_i32 s{S_T}, s{S_C}, 96
s_add_u32 s{S_COL}, s{S_COL}, s{S_T}
s_add_u32 s{S_COL}, s{S_COL}, {w*32}""")
        units = []
        for p in range(20): units += [(S_WQ, S_COL, p*32*H*E*2), (S_WK, S_COL, p*32*H*E*2)]
        load_w2(a, units, lambda u, T, k: wreg.pair((u & 1)*20 + (u >> 1), k), 1, H*E*2, 2, V_LANE, V_POLL, V_POLL+1, V_T, S_T, S_LB)
    a(f"""s_mul_i32 s{S_COL}, s{S_H}, {192*1280}
s_mul_i32 s{S_T}, s{S_C}, 320
s_add_u32 s{S_COL}, s{S_COL}, s{S_T}
s_add_u32 s{S_COL}, s{S_COL}, {T0[w]*32}""")
    ng = nt//2
    units = [(S_WO, S_COL, g*64 + p*32*1280) for p in range(6) for g in range(ng)]
    load_w2(a, units, lambda u, T, k: wreg.pair(40 + ((u % ng)*2 + T)*6 + u // ng, k), 2, D*2, True, V_LANE, V_POLL, V_POLL+1, V_T, S_T, S_LB)
    if OPT('STAMP', 0): a("s_memtime s[78:79]\ns_waitcnt lgkmcnt(0)\ns_sub_u32 s95, s78, s100")
    common_setup(a, w)
    gi(a, V_KMS)
    a(f"v_add_u32 v{V_KMS}, {w*1024}, v{V_KMS}")
    a(f"""v_lshrrev_b32 v{V_AST}, 1, v{V_G}
v_mul_u32_u24 v{V_AST}, 3072, v{V_AST}
v_lshlrev_b32 v{V_T}, 4, v{V_N}
v_add_u32 v{V_AST}, v{V_AST}, v{V_T}
v_and_b32 v{V_T}, 1, v{V_G}
v_lshlrev_b32 v{V_T}, 3, v{V_T}
v_add_u32 v{V_AST}, v{V_AST}, v{V_T}
s_mul_i32 s{S_T}, s{S_C}, 3
s_add_u32 s{S_T}, s{S_T}, {w}
s_lshl_b32 s{S_T}, s{S_T}, 8
s_mul_i32 s{S_T2}, s{S_H}, 9216
s_add_u32 s{S_T}, s{S_T}, s{S_T2}
v_add_u32 v{V_AST}, s{S_T}, v{V_AST}""")
    nearmap_v(a, V_AST, V_T)
    a(f"""s_add_u32 s{S_T}, s{S_T2}, {w*2048}
v_add_u32 v{V_APO}, s{S_T}, v{V_L16}
v_add_u32 v{V_APO+1}, 1024, v{V_APO}
v_add_u32 v{V_APL}, {L_QKV + w*2048}, v{V_L16}""")
    nearmap_v(a, V_APO, V_T); nearmap_v(a, V_APO+1, V_T)
    a(f"""v_lshlrev_b32 v{V_RQ}, 2, v{V_G}
v_bfe_u32 v{V_T}, v{V_LANE}, 2, 2
v_add_u32 v{V_RQ}, v{V_RQ}, v{V_T}
v_lshlrev_b32 v{V_RQ}, 4, v{V_RQ}
v_and_b32 v{V_T}, 1, v{V_LANE}
v_lshlrev_b32 v{V_T}, 3, v{V_T}
v_add_u32 v{V_RQ}, v{V_RQ}, v{V_T}
v_add_u32 v{V_RQ}, {L_QKV}, v{V_RQ}""")
    a(f"""v_bfe_u32 v{V_RV}, v{V_LANE}, 5, 1
v_lshlrev_b32 v{V_RV}, 5, v{V_RV}
v_bfe_u32 v{V_T}, v{V_LANE}, 4, 1
v_lshlrev_b32 v{V_T}, 3, v{V_T}
v_add_u32 v{V_RV}, v{V_RV}, v{V_T}
v_bfe_u32 v{V_T}, v{V_LANE}, 2, 1
v_add_u32 v{V_RV}, v{V_RV}, v{V_T}
v_bfe_u32 v{V_T}, v{V_LANE}, 3, 1
v_lshlrev_b32 v{V_T}, 4, v{V_T}
v_add_u32 v{V_RV}, v{V_RV}, v{V_T}
v_bfe_u32 v{V_T}, v{V_LANE}, 1, 1
v_lshlrev_b32 v{V_T}, 1, v{V_T}
v_add_u32 v{V_RV}, v{V_RV}, v{V_T}
v_lshlrev_b32 v{V_RV}, 4, v{V_RV}
v_and_b32 v{V_T}, 1, v{V_LANE}
v_lshlrev_b32 v{V_T}, 3, v{V_T}
v_add_u32 v{V_RV}, v{V_RV}, v{V_T}
v_add_u32 v{V_RV}, {L_QKV+6144}, v{V_RV}""")
    rs_lane(a, V_RSO)
    rs_local_lane(a, V_RSOL)
    for P in range(nt//2):
        a(f"""s_lshr_b32 s{76+P}, s{S_J}, 5
s_mul_i32 s{76+P}, s{76+P}, 81920
s_mul_i32 s{S_T}, s{S_C}, {5*4096}
s_add_u32 s{76+P}, s{76+P}, s{S_T}
s_add_u32 s{76+P}, s{76+P}, {(P0[w]+P)*4096}""")
        smap(a, 76+P, S_T)
    a(f"""s_mul_i32 s{S_RSB}, s{S_C}, {5*32768}
s_add_u32 s{S_RSB}, s{S_RSB}, {nearmap(RS_LOG) + P0[w]*32768}
s_mul_i32 s{S_T}, s{S_H}, 12288
s_add_u32 s{S_KVG}, s{S_T}, {(KX + w*6144) if OPT('UXRD', 0) else (KX if w == 0 else VX)}
s_mul_i32 s{S_T}, s{S_H}, 40
s_mul_i32 s{S_T2}, s{S_C}, 10
s_add_u32 s{S_T}, s{S_T}, s{S_T2}
s_add_u32 s{S_T}, s{S_T}, {T0[w]}
s_lshl_b32 s{S_UXG}, s{S_T}, 10
s_add_u32 s{S_UXG}, s{S_UXG}, {UX}
s_lshl_b32 s{S_UYG}, s{S_T}, 8
s_add_u32 s{S_UYG}, s{S_UYG}, {UY}
s_mul_i32 s{S_KMG}, s{S_H}, 3072
s_add_u32 s{S_KMG}, s{S_KMG}, {KM}
s_mov_b32 s{S_KVL}, {L_KV}
s_mov_b32 s{S_KVR}, {L_KV}
s_lshl_b32 s{S_FLG}, s{S_J}, 7
s_add_u32 s{S_FLG}, s{S_FLG}, {F_REC}""")
    if w == 2:
        a(f"""s_and_b32 s{S_COL}, s{S_J}, 31
s_cmp_lt_u32 s{S_COL}, 16
s_cselect_b32 s{S_RED}, 1, 0
s_add_u32 s{S_COL}, s{S_COL}, 64""")
        blk_off(a, S_COL, S_RSP, S_T)
        loc_off(a, S_COL, 72, S_T)
        a(f"""s_lshr_b32 s{S_T}, s{S_J}, 5
s_mul_i32 s{S_T}, s{S_T}, 10240
s_add_u32 s{S_T}, s{S_T}, {AG_LOG}
s_lshl_b32 s{S_T3}, s{S_COL}, 7
s_add_u32 s{S_T}, s{S_T}, s{S_T3}
v_add_u32 v{V_AGS}, s{S_T}, v{V_L16}""")
        nearmap_v(a, V_AGS, V_T)
        oob_mask(a, V_AGS, 8)
        sel_setup(a, 240)
    if flags:
        a(f"""s_mul_i32 s{S_T}, s{S_H}, 6
s_lshr_b32 s{S_T2}, s{S_T}, 3
s_add_u32 s{S_T}, s{S_T}, 5
s_lshr_b32 s{S_T}, s{S_T}, 3
v_mov_b32 v{V_KVA}, s{S_T}
v_mov_b32 v{V_T}, s{S_T2}
v_and_b32 v{V_T2}, 1, v{V_LANE}
v_cmp_eq_u32 vcc, 0, v{V_T2}
v_cndmask_b32 v{V_KVA}, v{V_KVA}, v{V_T}, vcc
v_cmp_lt_u32 vcc, 1, v{V_LANE}
v_mov_b32 v{V_T}, {R_V0 if not OPT('UXRD', 0) else 0}
v_cndmask_b32 v{V_T}, 0, v{V_T}, vcc
v_add_u32 v{V_KVA}, v{V_KVA}, v{V_T}
v_lshlrev_b32 v{V_KVA}, {PSH}, v{V_KVA}
v_add_u32 v{V_KVA}, {F_PROG}, v{V_KVA}
s_mov_b32 s{S_KVT}, 0
s_mov_b32 s22, 0
s_add_u32 s{S_T}, s{S_H}, {R_U0}
s_lshl_b32 s{S_T}, s{S_T}, {PSH}
s_add_u32 s{S_T}, s{S_T}, {F_PROG}
v_mov_b32 v{V_UXA}, s{S_T}""")
    if flags and w == 0: trace(a, 1, S_J)
    read_polarity(a, pfx)
    if flags and w == 0: trace(a, 2, S_J)
    a("s_barrier")
    mem0_stage(a, w)
    a(f"s_mov_b32 s{S_UXT}, 0\ns_mov_b32 s{S_UXC}, 0")
    kv_dma(a, flags, pfx, w)
    if flags and w == 0: trace(a, 3, S_J)
    a("s_waitcnt vmcnt(0) lgkmcnt(0)")
    a("s_barrier")
    idle_phase(a, w, woq)
    if flags and w == 0:
        trace(a, 4, S_J)
        if int(os.environ.get('TRACE', 0)):
            a("s_memtime s[86:87]\ns_waitcnt lgkmcnt(0)")
            trace(a, 6, S_J, val=86)
    stamp(a, 0)
    if OPT('STAMP', 0): a(f"s_waitcnt lgkmcnt(0)\ns_sub_u32 s101, s{S_TS}, s100")
    pfx0 = pfx
    a(f"s_cmp_eq_u32 s{S_MODE}, 0")
    a(f"s_cbranch_scc1 {pfx0}S_B0")
    a(f"s_branch {pfx0}F_B0")
    for mode in (1, 0):
        CURMODE[0] = mode
        pfx = pfx0 + ("F" if mode else "S")
        main_loop(a, w, flags, pfx, nt, w8, woq)
    CURMODE[0] = None

def main_loop(a, w, flags, pfx, nt, w8, woq):
    wo8 = lambda t, K: ar((40 + t*6 + 2*K)*4, 8)
    a.label(f"{pfx}_LOOP")
    stamp(a, 0)
    if w == 2: ag_poll(a, pfx, w)
    a.label(f"{pfx}_B0")
    a("s_waitcnt lgkmcnt(0)")
    a("s_barrier")
    mark(a, S_REF0)
    stamp(a, 1)
    proj_stage(a, 2, w8)
    for x in pack_pair(V_ACC, V_ACC+4, V_PK): a(x)
    store_mode(a, [f"buffer_store_dwordx2 {vr(V_PK,2)}, v{V_AST}, s[{S_WS}:{S_WS+3}], s{S_CUR} offen SCX"])
    stamp(a, 2)
    if w < 2 or OPT('UXRD', 0):
        a(f"s_cmp_lg_u32 s{S_STEP}, 0")
        a(f"s_cbranch_scc1 {pfx}_NOS1")
        if w < 2: kv_dma(a, flags, pfx, w)
        if OPT('UXRD', 0): ux_load(a, w, flags, pfx)
        a.label(f"{pfx}_NOS1")
    for t in range(nt):
        for r in range(4): a(f"v_mov_b32 v{V_Y+4*t+r}, 0")
    wait_mode(a, S_REF0, OPT('T_AF', 850), OPT('T_A', 1150))
    def mkA(b): return [f"buffer_load_dwordx4 {vr(b+4*k)}, v{V_APO+k}, s[{S_WS}:{S_WS+3}], s{S_CUR} offen sc1" for k in range(2)]
    def stA(b):
        a(f"ds_write_b128 v{V_APL}, {vr(b)}")
        a(f"ds_write_b128 v{V_APL}, {vr(b+4)} offset:1024")
    if CURMODE[0] and OPT('POLL2', 0):
        poll2(a, f"{pfx}_AP", mkA, 8, V_POLL, V_POLL+8, 93, stA, gap=OPT('GAPA', 2))
    else:
        poll_loop(a, f"{pfx}_AP", mkA(V_POLL), 8, 93)
        stA(V_POLL)
    a("s_waitcnt lgkmcnt(0)")
    stamp(a, 3)
    a("s_barrier")
    stamp(a, 4)
    reads = []
    for p in range(6):
        for (reg, typ) in ((V_QF, 0), (V_KF, 1)):
            for k in range(2):
                reads.append(f"ds_read_b64_tr_b16 {vr(reg+4*p+2*k,2)}, v{V_RQ} offset:{typ*3072 + (2*p+k)*256}")
    vreads = [f"ds_read_b64_tr_b16 {vr(V_VF+4*K+2*k,2)}, v{V_RV} offset:{K*1024 + k*64}" for K in range(3) for k in range(2)]
    TWOB = OPT('TWOB', 1)
    if not TWOB: reads += vreads
    issued = 0
    def iss(n):
        nonlocal issued
        for _ in range(n):
            if issued < len(reads): a(reads[issued]); issued += 1
    iss(12)
    for p in range(6):
        a(f"s_waitcnt lgkmcnt({issued - (4*p+4)})")
        for u, A_ in enumerate((vr(V_KXF+4*p), vr(V_KXF+4*(6+p)), vr(V_KF+4*p))):
            d = V_S + (4 if u == 0 else 8 if u == 1 else 0)
            c = "0" if p == 0 else vr(d)
            a(f"v_mfma_f32_16x16x32_bf16 {vr(d)}, {A_}, {vr(V_QF+4*p)}, {c}")
        iss(4)
    if TWOB:
        a("s_barrier")
        if w == 2: mark(a, 96)
        for x in vreads: a(x)
    stamp(a, 5)
    ym = []
    for K in range(3):
        for t in range(nt):
            pre = f"s_waitcnt lgkmcnt({6 - (2*K + 2)})\n" if t == 0 else ""
            ym.append(pre + f"v_smfmac_f32_16x16x64_bf16 {vr(V_Y+4*t)}, {vr(V_VF+4*K)}, {wo8(t,K)}, v{V_IDX}")
    PT, PM, RS_, L1, L2 = softmax_lists()
    yc = [f"v_cvt_pk_bf16_f32 v{V_YF+2*t+k}, v{V_Y+4*t+2*k}, v{V_Y+4*t+2*k+1}" for t in range(nt) for k in range(2)]
    step = max(1, (len(L1)-6) // len(ym))
    for i, x in enumerate(L1):
        if ym and i >= 2 and (i-2) % step == 0: a(ym.pop(0))
        a(x)
    while ym: a(ym.pop(0))
    for t in range(nt):
        a(f"v_mfma_f32_16x16x32_bf16 {vr(V_PU+4*t)}, {vr(V_UXF+4*t)}, {vr(PT)}, 0")
        for _ in range(2):
            if yc: a(yc.pop(0))
    for t in range(nt):
        a(f"v_mfma_f32_16x16x16_bf16 {vr(V_PU+4*t)}, {vr(V_YF+2*t,2)}, {vr(PM,2)}, {vr(V_PU+4*t)}")
        for _ in range(4):
            if L2: a(L2.pop(0))
    while L2: a(L2.pop(0))
    a(f"v_mov_b32 v{RS_+1}, v{RS_}")
    for t in range(nt):
        for r in range(0, 4, 2): a(f"v_pk_mul_f32 {vr(V_PU+4*t+r,2)}, {vr(V_PU+4*t+r,2)}, {vr(RS_,2)}")
    for t in range(nt):
        a(f"v_cvt_pk_bf16_f32 v{V_RSP+2*t}, v{V_PU+4*t}, v{V_PU+4*t+1}")
        a(f"v_cvt_pk_bf16_f32 v{V_RSP+2*t+1}, v{V_PU+4*t+2}, v{V_PU+4*t+3}")
    a(f"s_add_u32 s{S_T}, s{S_CUR}, s{S_RSB}")
    a(f"s_mov_b64 exec, s[{S_M8}:{S_M8+1}]")
    for P in range(nt//2):
        if P > 0: a(f"s_add_u32 s{S_T}, s{S_T}, 32768")
        a(f"buffer_store_dwordx4 {vr(V_RSP+4*P)}, v{V_RSO}, s[{S_WS}:{S_WS+3}], s{S_T} offen sc1")
    if CURMODE[0] and RSLOC():
        a(f"s_xor_b32 s74, s{S_CUR}, 8192")
        for P in range(nt//2):
            a(f"s_add_u32 s{S_T}, s{76+P}, s74")
            a(f"buffer_store_dwordx4 {vr(V_RSP+4*P)}, v{V_RSOL}, s[{S_WS}:{S_WS+3}], s{S_T} offen")
    stamp(a, 6)
    a("s_mov_b64 exec, -1")
    if (w < 2 or OPT('UXRD', 0)) and not OPT('NODMA', 0):
        a(f"s_cmp_eq_u32 s{S_STEP}, 63")
        a(f"s_cbranch_scc1 {pfx}_NODMA")
        if OPT('UXRD', 0): ux_load(a, w, flags, pfx)
        if w < 2: kv_dma(a, flags, pfx, w)
        a.label(f"{pfx}_NODMA")
    a(f"s_mov_b64 exec, s[{S_M8}:{S_M8+1}]")
    a(f"s_cmp_lg_u32 s{S_C}, 0")
    a(f"s_cbranch_scc1 {pfx}_NOKM")
    for k in range(2 if not OPT('NOKM', 0) else 0):
        a(f"buffer_store_dwordx4 {vr(V_KF+4*(2*w+k))}, v{V_KMS}, s[{S_WS}:{S_WS+3}], s{S_KMG} offen offset:{k*512} sc1")
    a.label(f"{pfx}_NOKM")
    a("s_mov_b64 exec, -1")
    a(f"s_add_u32 s{S_KMG}, s{S_KMG}, {32*3072}")
    for t in range(nt):
        for r in range(4): a(f"v_mov_b32 v{V_PU+r}, v{V_Y+4*t+r}")
        for r in range(4): a(f"v_permlane32_swap_b32 v{V_Y+4*t+r}, v{V_PU+r}")
        for r in range(4): a(f"v_add_f32 v{V_Y+4*t+r}, v{V_Y+4*t+r}, v{V_PU+r}")
        a(f"v_cvt_pk_bf16_f32 v{V_YF+2*t}, v{V_Y+4*t}, v{V_Y+4*t+1}")
        a(f"v_cvt_pk_bf16_f32 v{V_YF+2*t+1}, v{V_Y+4*t+2}, v{V_Y+4*t+3}")
    a("s_mov_b32 exec_hi, 0")
    for t in range(nt if not OPT('NOUY', 0) else 0):
        a(f"buffer_store_dwordx2 {vr(V_YF+2*t,2)}, v{V_L4}, s[{S_WS}:{S_WS+3}], s{S_UYG} offen offset:{t*256} sc1")
    a("s_mov_b64 exec, -1")
    a(f"s_add_u32 s{S_UYG}, s{S_UYG}, {32*40*256}")
    if w == 2 and not OPT('NOFLG', 0):
        a(f"v_mov_b32 v{V_T}, s{S_STEP}")
        a("s_mov_b64 exec, 1")
        a(f"buffer_store_dword v{V_T}, v{V_ZERO}, s[{S_WS}:{S_WS+3}], s{S_FLG} offen sc1")
        a(f"s_cmp_lg_u32 s{S_J}, 0")
        a(f"s_cbranch_scc1 {pfx}_NOPROG")
        a(f"s_mov_b32 s{S_T}, {F_RPROG}")
        a(f"buffer_store_dword v{V_T}, v{V_ZERO}, s[{S_WS}:{S_WS+3}], s{S_T} offen sc1")
        a.label(f"{pfx}_NOPROG")
        a("s_mov_b64 exec, -1")
    a(f"s_add_u32 s{S_STEP}, s{S_STEP}, 1")
    a(f"s_cmp_ge_u32 s{S_STEP}, 64")
    a(f"s_cbranch_scc1 {pfx}_DONE")
    stamp(a, 7)
    idle_phase(a, w, woq)
    if w == 2:
        a(f"s_cmp_eq_u32 s{S_RED}, 0")
        a(f"s_cbranch_scc1 {pfx}_NORED")
        wait_until(a, 96, OPT('T_RS', 1150))
        a(f"s_add_u32 s{S_T2}, s{S_CUR}, s{S_RSP}")
        reduce_blocks(a, pfx, 1, 240, 48, (S_T2,), V_AGS, 64, 80, s_loc0=(72,), s_loc=(74,), sqbase=64)
        a.label(f"{pfx}_NORED")
    rotate_slots(a)
    stamp_acc(a)
    if w == 2: mark(a, S_REF2)
    a(f"s_branch {pfx}_LOOP")
    a.label(f"{pfx}_DONE")
    a("s_waitcnt vmcnt(0)")
    a("s_barrier")
    if flags and w == 0:
        trace(a, 5, S_J)
        if int(os.environ.get('TRACE', 0)):
            a("s_memtime s[86:87]\ns_waitcnt lgkmcnt(0)")
            trace(a, 7, S_J, val=86)
    if w == 2:
        a(f"v_mov_b32 v{V_T}, 64")
        a("s_mov_b64 exec, 1")
        a(f"buffer_store_dword v{V_T}, v{V_ZERO}, s[{S_WS}:{S_WS+3}], s{S_FLG} offen sc1")
        a(f"s_cmp_lg_u32 s{S_J}, 0")
        a(f"s_cbranch_scc1 {pfx}_NOPROG2")
        a(f"s_mov_b32 s{S_T}, {F_RPROG}")
        a(f"buffer_store_dword v{V_T}, v{V_ZERO}, s[{S_WS}:{S_WS+3}], s{S_T} offen sc1")
        a.label(f"{pfx}_NOPROG2")
        a("s_waitcnt vmcnt(0)")
        a("s_mov_b64 exec, -1")
    stamp_out(a, w)
    a("s_endpgm")

def stamp_acc(a):
    if not OPT('STAMP', 0): return
    a(f"s_memtime s[{S_TS+16}:{S_TS+17}]")
    a("s_waitcnt lgkmcnt(0)")
    for k in range(8):
        a(f"s_sub_u32 s{S_T}, s{S_TS+2*k+2}, s{S_TS+2*k}")
        a(f"s_add_u32 s{80+k}, s{80+k}, s{S_T}")

def stamp_out(a, w):
    if not OPT('STAMP', 0): return
    a.uid += 1
    L = f"STO_{w}_{a.uid}"
    a(f"""s_cmp_lg_u32 s{S_J}, {OPT('STAMPROLE', 0)}
s_cbranch_scc1 {L}
s_waitcnt lgkmcnt(0)
s_load_dwordx2 s[96:97], s[0:1], {KA['dbg']}
s_waitcnt lgkmcnt(0)
s_mov_b64 exec, 1""")
    for k in range(8):
        a(f"v_mov_b32 v10, s{80+k}\nv_mov_b32 v11, {64 + w*48 + k*4}\nglobal_store_dword v11, v10, s[96:97]\ns_waitcnt vmcnt(0)")
    if w == 0:
        a(f"v_mov_b32 v10, s95\nv_mov_b32 v11, 40\nglobal_store_dword v11, v10, s[96:97]\ns_waitcnt vmcnt(0)")
        a(f"v_mov_b32 v10, s101\nv_mov_b32 v11, 44\nglobal_store_dword v11, v10, s[96:97]\ns_waitcnt vmcnt(0)")
    for k in range(3):
        a(f"v_mov_b32 v10, s{92+k}\nv_mov_b32 v11, {64 + w*48 + 32 + k*4}\nglobal_store_dword v11, v10, s[96:97]\ns_waitcnt vmcnt(0)")
    a.label(L)

def common_setup(a, w):
    a(f"""v_lshlrev_b32 v{V_L16}, 4, v{V_LANE}
v_lshlrev_b32 v{V_L4}, 3, v{V_LANE}
v_mov_b32 v{V_ZERO}, 0
s_mov_b32 s{S_M8}, 0x00ff00ff
s_mov_b32 s{S_M8+1}, 0x00ff00ff
s_mov_b32 s{S_H8}, 0xff00ff00
s_mov_b32 s{S_H8+1}, 0xff00ff00
s_mov_b32 s{S_HI32}, 0
s_mov_b32 s{S_HI32+1}, -1
v_mov_b32 v{V_NINF}, 0xff800000
s_mov_b32 s{S_MQ}, 0x0000ffff
s_mov_b32 s{S_MQ+1}, 0x0000ffff
v_mov_b32 v{V_IDX}, 0x44444444
v_mov_b32 v{V_T}, 0xeeeeeeee
v_cndmask_b32 v{V_IDX}, v{V_IDX}, v{V_T}, s[{S_H8}:{S_H8+1}]
s_mov_b32 s{S_SCALE}, 0x{f2u(192**-0.5*1.4426950408889634):08x}
s_mov_b32 s{S_MAXR}, {OPT('MAXRETRY', 400000)}
s_mov_b32 s{S_STEP}, 0""")
    for k in range(8): a(f"s_mov_b32 s{80+k}, 0")
    for k in range(92, 95): a(f"s_mov_b32 s{k}, 0")
    if w >= 2:
        a(f"s_lshr_b32 s{S_T}, s{S_J}, 5")
        a(f"s_mul_i32 s{S_T}, s{S_T}, 10240")
        a(f"s_add_u32 s{S_T}, s{S_T}, {AG_LOG + (w-2)*5120}")
        for k in range(5):
            a(f"v_add_u32 v{V_AGP+k}, s{S_T}, v{V_L16}")
            if k: a(f"v_add_u32 v{V_AGP+k}, {k*1024}, v{V_AGP+k}")
            nearmap_v(a, V_AGP+k, V_T2)
    a(f"v_add_u32 v{V_AGL}, {L_MEM + w*2560}, v{V_L16}")

def mem0_stage(a, w):
    for k in range(3):
        a(f"""v_add_u32 v{V_T}, {160*w + 64*k}, v{V_LANE}
v_and_b32 v{V_T2}, 7, v{V_T}
v_mul_u32_u24 v{V_T2}, 1280, v{V_T2}
v_lshrrev_b32 v{V_POLL+12}, 5, v{V_T}
v_lshlrev_b32 v{V_POLL+12}, 6, v{V_POLL+12}
v_add_u32 v{V_T2}, v{V_T2}, v{V_POLL+12}
v_bfe_u32 v{V_T}, v{V_T}, 3, 2
v_lshlrev_b32 v{V_T}, 3, v{V_T}
v_add_u32 v{V_T}, v{V_T}, v{V_T2}""")
        a(f"buffer_load_dwordx2 {vr(V_POLL+4*k,2)}, v{V_T}, s[{S_M0}:{S_M0+3}], 0 offen")
        a(f"buffer_load_dwordx2 {vr(V_POLL+4*k+2,2)}, v{V_T}, s[{S_M0}:{S_M0+3}], 0 offen offset:32")
    a("s_waitcnt vmcnt(0)")
    a(f"ds_write_b128 v{V_AGL}, {vr(V_POLL)}")
    a(f"ds_write_b128 v{V_AGL}, {vr(V_POLL+4)} offset:1024")
    a("s_mov_b32 exec_hi, 0")
    a(f"ds_write_b128 v{V_AGL}, {vr(V_POLL+8)} offset:2048")
    a("s_mov_b64 exec, -1")

def service_wave(a):
    w = 3; pfx = "RS3"
    wreg = WReg(0, 256, 0)
    a(f"s_lshl_b32 s{S_LB}, s{S_WAVE}, 15")
    if OPT('COOP', 1):
        coop_load(a, w, wreg)
    else:
        a(f"""s_mul_i32 s{S_COL}, s{S_H}, 384
s_mul_i32 s{S_T}, s{S_C}, 96
s_add_u32 s{S_COL}, s{S_COL}, s{S_T}""")
        units = [(S_WV, S_COL, t*32 + p*32*H*E*2) for p in range(20) for t in range(3)]
        load_w2(a, units, lambda u, T, k: wreg.pair((u % 3)*20 + u // 3, k), 1, H*E*2, 2, V_LANE, V_POLL, V_POLL+1, V_T, S_T, S_LB)
    common_setup(a, w)
    PQ = V_KXF; PV_ = V_KXF+2; R = V_KXF+6; SEL = V_KXF+8; ONES = V_KXF+12; AGZ = V_KXF+7; RSO2 = V_KXF+5
    a(f"""v_lshrrev_b32 v{V_AST}, 1, v{V_G}
v_lshlrev_b32 v{V_AST}, 8, v{V_AST}
v_lshlrev_b32 v{V_T}, 4, v{V_N}
v_add_u32 v{V_AST}, v{V_AST}, v{V_T}
v_and_b32 v{V_T}, 1, v{V_G}
v_lshlrev_b32 v{V_T}, 3, v{V_T}
v_add_u32 v{V_AST}, v{V_AST}, v{V_T}
v_lshlrev_b32 v{V_AST+1}, 4, v{V_N}
v_add_u32 v{V_AST+1}, v{V_AST+1}, v{V_T}
s_mul_i32 s{S_T2}, s{S_H}, 9216
s_mul_i32 s{S_T}, s{S_C}, 768
s_add_u32 s{S_T}, s{S_T}, s{S_T2}
v_add_u32 v{PQ}, s{S_T}, v{V_L16}
v_add_u32 v{PQ+1}, 3072, v{PQ}
v_add_u32 v{PV_}, 6144, v{PQ}
s_add_u32 s{S_T}, s{S_T}, 6144
v_add_u32 v{V_AST}, s{S_T}, v{V_AST}
v_add_u32 v{V_AST+1}, s{S_T}, v{V_AST+1}
v_add_u32 v{V_AST+1}, 512, v{V_AST+1}""")
    for r in (V_AST, V_AST+1, PV_, PQ, PQ+1): nearmap_v(a, r, V_T)
    oob_mask(a, PV_, 48); oob_mask(a, PQ+1, 48); oob_mask(a, PQ, 48); oob_mask(a, V_AST+1, 32)
    for k in range(3):
        a(f"v_add_u32 v{V_APO+k}, s{S_T2}, v{V_L16}")
        a(f"v_add_u32 v{V_APO+k}, {6144 + k*1024}, v{V_APO+k}")
        nearmap_v(a, V_APO+k, V_T)
    a(f"v_add_u32 v{V_APL}, {L_QKV + 6144}, v{V_L16}")
    rs_lane(a, R)
    a(f"""s_mul_i32 s{S_RSB}, s{S_C}, {5*32768}
s_add_u32 s{S_RSB}, s{S_RSB}, {nearmap(RS_LOG)}
s_and_b32 s{S_COL}, s{S_J}, 31""")
    blk_off(a, S_COL, S_RSP, S_T)
    loc_off(a, S_COL, 72, S_T)
    a(f"s_add_u32 s{S_COL}, s{S_COL}, 32")
    blk_off(a, S_COL, S_RED, S_T)
    loc_off(a, S_COL, 73, S_T)
    rs_local_lane(a, V_RSOL)
    a(f"""s_lshr_b32 s77, s{S_J}, 5
s_mul_i32 s77, s77, 81920
s_mul_i32 s{S_T}, s{S_C}, {5*4096}
s_add_u32 s77, s77, s{S_T}""")
    a(f"""s_lshr_b32 s{S_T}, s{S_J}, 5
s_mul_i32 s{S_T}, s{S_T}, 10240
s_add_u32 s{S_T}, s{S_T}, {AG_LOG}
s_and_b32 s{S_T2}, s{S_J}, 31
s_lshl_b32 s{S_T3}, s{S_T2}, 7
s_add_u32 s{S_T}, s{S_T}, s{S_T3}
v_lshrrev_b32 v{V_AGS}, 3, v{V_LANE}
v_lshlrev_b32 v{V_AGS}, 12, v{V_AGS}
v_and_b32 v{V_T}, 7, v{V_LANE}
v_lshlrev_b32 v{V_T}, 4, v{V_T}
v_add_u32 v{V_AGS}, v{V_AGS}, v{V_T}
v_add_u32 v{V_AGS}, s{S_T}, v{V_AGS}""")
    nearmap_v(a, V_AGS, V_T)
    a(f"v_mov_b32 v{AGZ}, v{V_AGS}")
    a(f"""v_bfe_u32 v{V_AGS}, v{V_LANE}, 3, 1
v_lshlrev_b32 v{V_AGS}, 12, v{V_AGS}
v_and_b32 v{V_T}, 7, v{V_LANE}
v_lshlrev_b32 v{V_T}, 4, v{V_T}
v_add_u32 v{V_AGS}, v{V_AGS}, v{V_T}
v_lshlrev_b32 v{V_T}, 3, v{V_G}
v_add_u32 v{V_AGS}, v{V_AGS}, v{V_T}
s_lshr_b32 s{S_T}, s{S_J}, 5
s_mul_i32 s{S_T}, s{S_T}, 10240
s_add_u32 s{S_T}, s{S_T}, {AG_LOG}
s_add_u32 s{S_T}, s{S_T}, s{S_T3}
v_add_u32 v{V_AGS}, s{S_T}, v{V_AGS}""")
    nearmap_v(a, V_AGS, V_T)
    oob_mask(a, V_AGS, 32)
    a(f"""v_mov_b32 v{RSO2}, s{S_RSP}
v_mov_b32 v{V_T}, s{S_RED}
v_cndmask_b32 v{RSO2}, v{RSO2}, v{V_T}, s[{S_H8}:{S_H8+1}]
v_lshlrev_b32 v{V_T}, 7, v{V_G}
v_add_u32 v{RSO2}, v{RSO2}, v{V_T}
v_and_b32 v{V_T}, 7, v{V_LANE}
v_lshlrev_b32 v{V_T}, 4, v{V_T}
v_add_u32 v{RSO2}, v{RSO2}, v{V_T}""")
    a(f"s_cmp_lt_u32 s{S_T2}, 16")
    a(f"s_cselect_b32 s{S_T}, 24, 16")
    a(f"v_mov_b32 v{V_T}, 0x80000000")
    a(f"v_cmp_gt_u32 vcc, s{S_T}, v{V_LANE}")
    a(f"v_cndmask_b32 v{AGZ}, v{V_T}, v{AGZ}, vcc")
    sel_setup(a, SEL)
    for k in range(4): a(f"v_mov_b32 v{ONES+k}, -1")
    a(f"v_mov_b32 v{ONES+4}, 1")
    read_polarity(a, pfx)
    a("s_barrier")
    mem0_stage(a, w)
    a("s_waitcnt vmcnt(0) lgkmcnt(0)")
    a("s_barrier")
    stamp(a, 0)
    pfx0 = pfx
    a(f"s_cmp_eq_u32 s{S_MODE}, 0")
    a(f"s_cbranch_scc1 {pfx0}S_B0")
    a(f"s_branch {pfx0}F_B0")
    for mode in (1, 0):
        CURMODE[0] = mode
        pfx = pfx0 + ("F" if mode else "S")
        service_loop(a, pfx, PQ, PV_, R, SEL, ONES, AGZ, RSO2)
    CURMODE[0] = None

def service_loop(a, pfx, PQ, PV_, R, SEL, ONES, AGZ, RSO2):
    a.label(f"{pfx}_LOOP")
    stamp(a, 0)
    ag_poll(a, pfx, 3)
    a.label(f"{pfx}_B0")
    a("s_waitcnt lgkmcnt(0)")
    a("s_barrier")
    mark(a, S_REF0)
    stamp(a, 1)
    SP = 140
    w8s = lambda t, K: ar((t*20 + 2*K)*4, 8)
    for K in range(10):
        a(f"ds_read_b128 {vr(V_RING+4*K)}, v{V_L16} offset:{L_MEM + K*1024}")
    for r in range(12): a(f"v_mov_b32 v{V_ACC+r}, 0")
    for K in range(10):
        a(f"s_waitcnt lgkmcnt({9-K})")
        for t in range(2):
            a(f"v_smfmac_f32_16x16x64_bf16 {vr(V_ACC+4*t)}, {vr(V_RING+4*K)}, {w8s(t,K)}, v{V_IDX}")
    P01 = pack_pair(V_ACC, V_ACC+4, SP)
    for K in range(10):
        a(f"v_smfmac_f32_16x16x64_bf16 {vr(V_ACC+8)}, {vr(V_RING+4*K)}, {w8s(2,K)}, v{V_IDX}")
        if K >= 2 and P01: a(P01.pop(0))
        if K >= 6 and P01: a(P01.pop(0))
    while P01: a(P01.pop(0))
    store_mode(a, [f"buffer_store_dwordx2 {vr(SP,2)}, v{V_AST}, s[{S_WS}:{S_WS+3}], s{S_CUR} offen SCX"])
    for r in range(4): a(f"v_mov_b32 v{SP+8+r}, v{V_ACC+8+r}")
    for x in pack_pair(V_ACC+8, SP+8, SP+4): a(x)
    store_mode(a, [f"buffer_store_dwordx2 {vr(SP+4,2)}, v{V_AST+1}, s[{S_WS}:{S_WS+3}], s{S_CUR} offen SCX"])
    stamp(a, 2)
    wait_mode(a, S_REF0, OPT('T_VF', 1300), OPT('T_V', 1500))
    loads = [f"buffer_load_dwordx4 {vr(V_POLL+4*k)}, v{V_APO+k}, s[{S_WS}:{S_WS+3}], s{S_CUR} offen sc1" for k in range(3)]
    if OPT('TWOB', 1):
        for x in loads: a(x)
        stamp(a, 3)
        a("s_barrier")
        stamp(a, 4)
        poll_loop(a, f"{pfx}_VP", loads, 12, 93, pre_issued=True)
        for k in range(3):
            a(f"ds_write_b128 v{V_APL}, {vr(V_POLL+4*k)} offset:{k*1024}")
        a("s_waitcnt lgkmcnt(0)")
        a("s_barrier")
        mark(a, 96)
        stamp(a, 5)
    else:
        poll_loop(a, f"{pfx}_VP", loads, 12, 93)
        for k in range(3):
            a(f"ds_write_b128 v{V_APL}, {vr(V_POLL+4*k)} offset:{k*1024}")
        a("s_waitcnt lgkmcnt(0)")
        stamp(a, 3)
        a("s_barrier")
        mark(a, 96)
        stamp(a, 4)
        stamp(a, 5)
    a(f"s_cmp_eq_u32 s{S_STEP}, 63")
    a(f"s_cbranch_scc1 {pfx}_DONE")
    store_mode(a, [f"buffer_store_dwordx4 {vr(ONES)}, v{r}, s[{S_WS}:{S_WS+3}], s{S_NN} offen SCX" for r in (PQ, PQ+1, PV_)])
    a(f"s_add_u32 s{S_T}, s{S_NN}, s{S_RSB}")
    a(f"s_mov_b64 exec, s[{S_M8}:{S_M8+1}]")
    for P in range(5):
        if P > 0: a(f"s_add_u32 s{S_T}, s{S_T}, 32768")
        a(f"buffer_store_dwordx4 {vr(ONES)}, v{R}, s[{S_WS}:{S_WS+3}], s{S_T} offen sc1")
    if CURMODE[0] and RSLOC():
        a(f"s_xor_b32 s74, s{S_NN}, 8192")
        for P in range(5):
            a(f"s_add_u32 s{S_T}, s77, {P*4096}")
            smap(a, S_T, S_T2)
            a(f"s_add_u32 s{S_T}, s{S_T}, s74")
            a(f"buffer_store_dwordx4 {vr(ONES)}, v{V_RSOL}, s[{S_WS}:{S_WS+3}], s{S_T} offen")
    a("s_mov_b64 exec, -1")
    store_mode(a, [f"buffer_store_dwordx4 {vr(ONES)}, v{AGZ}, s[{S_WS}:{S_WS+3}], s{S_NN} offen SCX"])
    stamp(a, 6)
    wait_until(a, 96, OPT('T_RS', 1150))
    if OPT('RED2', 1):
        reduce2(a, pfx, SEL, 32, RSO2, V_AGS, 64, 160)
    else:
        raise SystemExit("RED2=0 no longer supported")
    a(f"s_add_u32 s{S_STEP}, s{S_STEP}, 1")
    a(f"s_cmp_ge_u32 s{S_STEP}, 64")
    a(f"s_cbranch_scc1 {pfx}_DONE")
    rotate_slots(a)
    stamp_acc(a)
    mark(a, S_REF2)
    a(f"s_branch {pfx}_LOOP")
    a.label(f"{pfx}_DONE")
    a("s_waitcnt vmcnt(0)")
    a("s_barrier")
    stamp_out(a, 3)
    a("s_endpgm")

def rec_entry(a):
    a(f"""s_load_dwordx4 s[64:67], s[0:1], {KA['wq']}
s_load_dwordx4 s[68:71], s[0:1], {KA['wv']}
s_load_dwordx2 s[72:73], s[0:1], {KA['mem0']}
s_waitcnt lgkmcnt(0)""")
    srd(a, S_WQ, 64, D*H*E*2); srd(a, S_WK, 66, D*H*E*2); srd(a, S_WV, 68, D*H*E*2); srd(a, S_WO, 70, D*H*E*2)
    srd(a, S_M0, 72, M*D*2)
    a(f"s_lshr_b32 s{S_H}, s{S_J}, 2\ns_and_b32 s{S_C}, s{S_J}, 3")

def probe(a, s_k, s_xcc, lbl, s_dbg):
    a(f"""s_mov_b64 exec, 1
v_mov_b32 v10, -1
s_lshl_b32 s{S_T}, s{s_k}, 21
s_add_u32 s{S_T}, s{S_T}, {RING + PROBE_OFF}
v_mov_b32 v11, s{S_T}
v_add_u32 v13, 8192, v11
s_mov_b32 s{S_T2}, 0
s_mov_b32 s84, -1
s_mov_b32 s85, -1""")
    a.label(f"{lbl}_R")
    a(f"""buffer_store_dword v10, v11, s[{S_WS}:{S_WS+3}], 0 offen sc1
buffer_store_dword v10, v13, s[{S_WS}:{S_WS+3}], 0 offen sc1
s_waitcnt vmcnt(0)
s_sleep 6""")
    for hsel in range(2):
        a(f"""s_memtime s[80:81]
s_waitcnt lgkmcnt(0)
buffer_load_dword v12, v{11 if hsel == 0 else 13}, s[{S_WS}:{S_WS+3}], 0 offen sc1
s_waitcnt vmcnt(0)
s_memtime s[82:83]
s_waitcnt lgkmcnt(0)
s_sub_u32 s{86+hsel}, s82, s80""")
    a(f"""s_min_u32 s84, s84, s86
s_min_u32 s85, s85, s87
s_add_u32 s{S_T2}, s{S_T2}, 1
s_cmp_lt_u32 s{S_T2}, {OPT('PROBE_N', 7)}
s_cbranch_scc1 {lbl}_R
s_cmp_lt_u32 s85, s84
s_cselect_b32 s{S_T3}, 1, 0
s_lshr_b32 s{S_T}, s{s_xcc}, 2
s_xor_b32 s{S_T3}, s{S_T3}, s{S_T}
s_and_b32 s{S_T3}, s{S_T3}, 1
s_or_b32 s{S_T3}, s{S_T3}, 2
s_lshl_b32 s{S_T}, s{s_k}, 1
s_lshl_b32 s{S_T3}, s{S_T3}, s{S_T}
v_mov_b32 v10, s{S_T3}
v_mov_b32 v11, {DB_POL}
global_atomic_or v11, v10, s[{s_dbg}:{s_dbg+1}] sc1
s_waitcnt vmcnt(0)
s_mov_b64 exec, -1""")

def rec_dispatch(a, flags=False):
    a(f"""s_cmp_eq_u32 s{S_WAVE}, 0
s_cbranch_scc1 RK_W0
s_cmp_eq_u32 s{S_WAVE}, 1
s_cbranch_scc1 RK_W1
s_cmp_eq_u32 s{S_WAVE}, 2
s_cbranch_scc1 RK_W2
s_branch RK_W3""")
    for w in range(3):
        a.label(f"RK_W{w}")
        main_wave(a, w, flags)
    a.label("RK_W3")
    service_wave(a)

def gen_rec_kernel():
    a = Asm(); name = "rec_kernel"
    kernel_header(a, name)
    if OPT('STAMP', 0): a("s_memtime s[100:101]")
    a(f"""s_cmp_ge_u32 s2, 256
s_cbranch_scc1 RK_END
s_load_dwordx2 s[74:75], s[0:1], {KA['ws']}
s_load_dwordx2 s[76:77], s[0:1], {KA['dbg']}
s_getreg_b32 s78, hwreg(HW_REG_XCC_ID)
s_and_b32 s78, s78, 15
s_waitcnt lgkmcnt(0)""")
    srd(a, S_WS, 74, WS_SIZE)
    lane_setup(a, V_LANE, V_G, V_N, S_WAVE)
    a(f"""s_cmp_lg_u32 s{S_WAVE}, 0
s_cbranch_scc1 RK_NORANK
v_mov_b32 v10, 1
s_lshl_b32 s79, s78, 2
v_mov_b32 v11, s79
s_mov_b64 exec, 1
global_atomic_add v12, v11, v10, s[76:77] sc0 sc1
s_waitcnt vmcnt(0)
v_mov_b32 v11, 0
ds_write_b32 v11, v12
s_waitcnt lgkmcnt(0)
s_mov_b64 exec, -1""")
    a.label("RK_NORANK")
    a(f"""s_barrier
v_mov_b32 v11, 0
ds_read_b32 v12, v11
s_waitcnt lgkmcnt(0)
v_readfirstlane_b32 s79, v12
s_barrier
s_cmp_lt_u32 s78, 4
s_cbranch_scc1 RK_REC
s_cmp_lg_u32 s78, 4
s_cbranch_scc1 RK_END
s_cmp_ge_u32 s79, 4
s_cbranch_scc1 RK_END
s_cmp_lg_u32 s{S_WAVE}, 0
s_cbranch_scc1 RK_END""")
    probe(a, 79, 78, "RK_PR", 76)
    a("s_endpgm")
    a.label("RK_REC")
    a(f"""s_cmp_ge_u32 s79, 32
s_cbranch_scc1 RK_END
s_lshl_b32 s{S_J}, s78, 5
s_add_u32 s{S_J}, s{S_J}, s79""")
    rec_entry(a)
    rec_dispatch(a)
    a.label("RK_END")
    a("s_endpgm")
    return name, a.finalize(), kernel_desc(name, 512, 102, 256)

def read_mode(a, pfx):
    a(f"s_load_dwordx2 s[96:97], s[0:1], {KA['dbg']}")
    a("s_waitcnt lgkmcnt(0)")
    a(f"s_mov_b32 s{S_RETRY}, 0")
    a(f"v_and_b32 v{V_T2}, 7, v{V_LANE}")
    a(f"v_lshlrev_b32 v{V_T2}, 2, v{V_T2}")
    a.label(f"{pfx}_MD")
    a(f"""global_load_dword v{V_T}, v{V_T2}, s[96:97] sc1
s_waitcnt vmcnt(0)
v_cmp_eq_u32 vcc, 32, v{V_T}
s_cmp_eq_u64 vcc, exec
s_cselect_b32 s{S_MODE}, 1, 0
v_add_u32_dpp v{V_T}, v{V_T}, v{V_T} row_ror:4 row_mask:0xf bank_mask:0xf
v_add_u32_dpp v{V_T}, v{V_T}, v{V_T} row_ror:2 row_mask:0xf bank_mask:0xf
v_add_u32_dpp v{V_T}, v{V_T}, v{V_T} row_ror:1 row_mask:0xf bank_mask:0xf
v_readfirstlane_b32 s{S_T3}, v{V_T}
s_cmp_ge_u32 s{S_T3}, 256
s_cbranch_scc1 {pfx}_MDOK
s_sleep 8
s_add_u32 s{S_RETRY}, s{S_RETRY}, 1
s_cmp_lt_u32 s{S_RETRY}, 200000
s_cbranch_scc1 {pfx}_MD
s_mov_b32 s{S_MODE}, 0""")
    a.label(f"{pfx}_MDOK")
    if OPT('FORCESLOW', 0): a(f"s_mov_b32 s{S_MODE}, 0")

def read_polarity(a, pfx):
    read_mode(a, pfx)
    if INITWAIT[0]:
        wait_dbg(a, f"{pfx}_INI", 96, DB_INIT, V_T2, V_T, S_RETRY+0, S_T3, thr=128) if False else None
        a(f"v_mov_b32 v{V_T2}, {DB_INIT}")
        a(f"s_mov_b32 s{S_RETRY}, 0")
        a.label(f"{pfx}_INI")
        a(f"""global_load_dword v{V_T}, v{V_T2}, s[96:97] sc1
s_waitcnt vmcnt(0)
v_readfirstlane_b32 s{S_T3}, v{V_T}
s_cmp_ge_u32 s{S_T3}, 80
s_cbranch_scc1 {pfx}_INIK
s_sleep 4
s_add_u32 s{S_RETRY}, s{S_RETRY}, 1
s_cmp_lt_u32 s{S_RETRY}, 0x400000
s_cbranch_scc1 {pfx}_INI""")
        a.label(f"{pfx}_INIK")
    a(f"v_mov_b32 v{V_T2}, {DB_POL}")
    a(f"s_mov_b32 s{S_RETRY}, 0")
    a.label(f"{pfx}_POL")
    a(f"""global_load_dword v{V_T}, v{V_T2}, s[96:97] sc1
s_waitcnt vmcnt(0)
v_readfirstlane_b32 s{S_T3}, v{V_T}
s_and_b32 s{S_T}, s{S_T3}, 0xaa
s_cmp_eq_u32 s{S_T}, 0xaa
s_cbranch_scc1 {pfx}_POLOK
s_sleep 4
s_add_u32 s{S_RETRY}, s{S_RETRY}, 1
s_cmp_lt_u32 s{S_RETRY}, 0x400000
s_cbranch_scc1 {pfx}_POL""")
    a.label(f"{pfx}_POLOK")
    a(f"""s_and_b32 s{S_T}, s{S_T3}, 0x55
s_xor_b32 s{S_T}, s{S_T}, 0x44
s_bcnt1_i32_b32 s{S_T2}, s{S_T}
s_cmp_ge_u32 s{S_T2}, 3
s_cselect_b32 s{S_T}, 0x55, s{S_T}
s_cmp_le_u32 s{S_T2}, 1
s_cselect_b32 s{S_T}, 0, s{S_T}
s_xor_b32 s{S_T3}, s{S_T}, 0x44""")
    if OPT('FLIPPOL', 0): a(f"s_xor_b32 s{S_T3}, s{S_T3}, 0x55")
    for k, s in enumerate((S_CUR, S_N, S_NN, S_P)):
        a(f"""s_bfe_u32 s{S_T}, s{S_T3}, {(1<<16) | (2*k)}
s_lshl_b32 s{S_T}, s{S_T}, 13
s_add_u32 s{s}, s{S_T}, {RING + k*RING_SLOT}""")
```

```python
from gen_common import *
import struct, os
OPT=lambda k,d: type(d)(os.environ.get(k,d))
def f2u(f): return struct.unpack('<I', struct.pack('<f', f))[0]

US_WS=4; US_WO=8; US_WAVE=20; US_LB=21; US_COL=24; US_H=25; US_CNT=26; US_XG=27; US_WSL=28; US_RSL=29; US_OUT=30; US_T=31; US_T2=32
UV_LANE=1; UV_G=2; UV_N=3; UV_GOFF=4; UV_TR=5; UV_T=6; UV_L16=7; UV_RA=8
UV_A=16
UV_ACC=112
UV_PK=128

US_PROG=33; US_DONE=34; US_CACHE=35; US_THR=36; US_W1=37; US_W2=42; US_WC=43
UV_PV=9; UV_PZ=10; UV_WA=11; UV_WT=12
def emit_upanel(a, pfx, flags=False, init_hook=None, mid_hook=None, pre_hook=None):
    NSL = 2; XT = 12288
    wreg = WReg(0, 240, 0)
    a(f"s_lshl_b32 s{US_LB}, s{US_WAVE}, 15")
    a(f"""s_mul_i32 s{US_COL}, s{US_H}, {192*1280}
s_mul_i32 s{US_T}, s{US_WAVE}, 320
s_add_u32 s{US_COL}, s{US_COL}, s{US_T}""")
    units = [(US_WO, US_COL, g*64 + p*32*1280) for p in range(6) for g in range(5)]
    load_w2(a, units, lambda u, T, k: wreg.pair(((u % 5)*2 + T)*6 + u // 5, k), 2, D*2, True, UV_LANE, UV_GOFF, UV_TR, UV_T, US_T, US_LB, mid_hook=mid_hook, pre_hook=pre_hook)
    if init_hook: init_hook()
    a("s_barrier")
    a("v_mov_b32 v14, 0x80000000")
    a(f"""v_lshlrev_b32 v{UV_L16}, 4, v{UV_LANE}
s_mul_i32 s{US_T}, s{US_H}, 12288
s_mul_i32 s{US_T2}, s{US_WAVE}, 3072
s_add_u32 s{US_XG}, s{US_T}, s{US_T2}
s_add_u32 s{US_XG}, s{US_XG}, {VX}
s_mov_b32 s{US_WSL}, s{US_T2}
s_mov_b32 s{US_RSL}, 0
s_mul_i32 s{US_T}, s{US_H}, 40
s_mul_i32 s{US_T2}, s{US_WAVE}, 10
s_add_u32 s{US_T}, s{US_T}, s{US_T2}
s_lshl_b32 s{US_OUT}, s{US_T}, 10
s_add_u32 s{US_OUT}, s{US_OUT}, {UX}""")
    if flags:
        a(f"""s_mul_i32 s{US_T}, s{US_H}, 6
s_lshr_b32 s{US_T2}, s{US_T}, 3
s_add_u32 s{US_T}, s{US_T}, 5
s_lshr_b32 s{US_T}, s{US_T}, 3
v_mov_b32 v{UV_WA}, s{US_T}
v_mov_b32 v{UV_T}, s{US_T2}
v_cmp_eq_u32 vcc, 0, v{UV_LANE}
v_cndmask_b32 v{UV_WA}, v{UV_WA}, v{UV_T}, vcc
v_lshlrev_b32 v{UV_WA}, {PSH}, v{UV_WA}
v_add_u32 v{UV_WA}, {F_PROG + (R_V0 << PSH)}, v{UV_WA}
v_mov_b32 v{UV_PZ}, 0
s_mov_b32 s{US_DONE}, 0
s_mov_b32 s{US_CACHE}, 0
s_mov_b32 s{US_THR}, 0""")
    if flags:
        a("s_mov_b32 s59, 0")
        a("s_mov_b32 s61, 0")
        a(f"v_mov_b32 v13, {F_RPROG}")
    def dma():
        if flags and OPT('PACE', 0):
            a.uid += 1
            a(f"s_add_u32 s59, s59, 1")
            a(f"s_sub_u32 s60, s59, {OPT('LEADU', 6)}")
            a(f"s_cselect_b32 s60, 0, s60")
            a(f"s_min_u32 s60, s60, 63")
            wait_words(a, f"{pfx}_PC{a.uid}", US_WS, 13, UV_WT, 60, 61, 1, US_W1, US_WC, sleep=16)
        if flags:
            a.uid += 1
            a(f"s_add_u32 s{US_THR}, s{US_THR}, 2")
            a(f"s_min_u32 s{US_W2}, s{US_THR}, 128")
            wait_words(a, f"{pfx}_WV{a.uid}", US_WS, UV_WA, UV_WT, US_W2, US_CACHE, 2, US_W1, US_WC)
        a(f"s_mov_b32 m0, s{US_WSL}")
        for j in range(3):
            a(f"buffer_load_dwordx4 v{UV_L16}, s[{US_WS}:{US_WS+3}], s{US_XG} offen offset:{j*1024} sc1 lds")
        a(f"s_add_u32 s{US_XG}, s{US_XG}, {32*12288}")
        a(f"s_add_u32 s{US_WSL}, s{US_WSL}, {XT}")
        a(f"s_sub_u32 s{US_T}, s{US_WSL}, {NSL*XT}")
        a(f"s_cmp_ge_u32 s{US_WSL}, {NSL*XT}")
        a(f"s_cselect_b32 s{US_WSL}, s{US_T}, s{US_WSL}")
    for _ in range(NSL-1): dma()
    a(f"s_mov_b32 s{US_CNT}, 0")
    lp = f"{pfx}_LOOP"
    a.label(lp)
    a(f"s_cmp_lt_u32 s{US_CNT}, 2")
    a(f"s_cbranch_scc1 {pfx}_W0")
    if flags:
        a(f"s_cmp_eq_u32 s{US_WAVE}, 0")
        a(f"s_cbranch_scc1 {pfx}_WZ")
        a("s_waitcnt vmcnt(10)")
        a(f"s_branch {pfx}_W1")
        a.label(f"{pfx}_WZ")
        a("s_waitcnt vmcnt(11)")
    else:
        a("s_waitcnt vmcnt(10)")
    a(f"s_branch {pfx}_W1")
    a.label(f"{pfx}_W0")
    a("s_waitcnt vmcnt(0)")
    a.label(f"{pfx}_W1")
    a("s_barrier")
    if flags:
        a(f"s_sub_u32 s{US_DONE}, s{US_CNT}, 1")
        a(f"s_cmp_lt_u32 s{US_CNT}, 2")
        a(f"s_cselect_b32 s{US_DONE}, s{US_CNT}, s{US_DONE}")
    dma()
    if flags:
        a(f"s_cmp_lg_u32 s{US_WAVE}, 0")
        a(f"s_cbranch_scc1 {pfx}_NPB")
        publish_word(a, US_WS, UV_PV, UV_PZ, US_PROG, US_DONE)
        a.label(f"{pfx}_NPB")
    a(f"v_add_u32 v{UV_RA}, s{US_RSL}, v{UV_L16}")
    for f in range(12):
        a(f"ds_read_b128 {vr(UV_A+4*f)}, v{UV_RA} offset:{f*1024}")
    a(f"s_add_u32 s{US_RSL}, s{US_RSL}, {XT}")
    a(f"s_cmp_ge_u32 s{US_RSL}, {NSL*XT}")
    a(f"s_cselect_b32 s{US_RSL}, 0, s{US_RSL}")
    a("s_waitcnt lgkmcnt(0)")
    def epi(t):
        ac = UV_ACC + 8*(t & 1); pk = UV_PK + 4*(t & 1)
        L = []
        for k in range(4):
            d = ac + 4*(k >> 1) + 2*(k & 1)
            L.append(f"v_cvt_pk_bf16_f32 v{pk+k}, v{d}, v{d+1}")
        L.append(f"s_add_u32 s{US_T}, s{US_OUT}, {t*1024}")
        L.append(f"buffer_store_dwordx4 {vr(pk)}, v{UV_L16 if not OPT('NOUST',0) else 14}, s[{US_WS}:{US_WS+3}], s{US_T} offen sc1")
        return L
    for t in range(10):
        ac = UV_ACC + 8*(t & 1)
        E_ = epi(t-1) if t > 0 else []
        for p in range(6):
            for tt in range(2):
                d = ac + 4*tt
                c = "0" if p == 0 else vr(d)
                a(f"v_mfma_f32_16x16x32_bf16 {vr(d)}, {vr(UV_A+4*(tt*6+p))}, {wreg.quad(t*6+p)}, {c}")
            if p >= 3:
                for _ in range(2):
                    if E_: a(E_.pop(0))
        while E_: a(E_.pop(0))
    for x in epi(9): a(x)
    a(f"s_add_u32 s{US_OUT}, s{US_OUT}, {32*40*1024}")
    a(f"s_add_u32 s{US_CNT}, s{US_CNT}, 1")
    a(f"s_cmp_lt_u32 s{US_CNT}, 64")
    a(f"s_cbranch_scc1 {lp}")
    a("s_waitcnt vmcnt(0)")
    if flags:
        a("s_barrier")
        a(f"s_mov_b32 s{US_DONE}, 64")
        publish_word(a, US_WS, UV_PV, UV_PZ, US_PROG, US_DONE)
        a("s_waitcnt vmcnt(0)")

def gen_upanel_kernel():
    a = Asm(); name = "upanel_kernel"
    kernel_header(a, name)
    a(f"""s_cmp_ge_u32 s2, 32
s_cbranch_scc1 UK_END
s_load_dwordx2 s[38:39], s[0:1], {KA['ws']}
s_load_dwordx2 s[40:41], s[0:1], {KA['wo']}
s_waitcnt lgkmcnt(0)""")
    srd(a, US_WS, 38, WS_SIZE); srd(a, US_WO, 40, H*E*D*2)
    lane_setup(a, UV_LANE, UV_G, UV_N, US_WAVE)
    a(f"s_mov_b32 s{US_H}, s2")
    emit_upanel(a, "UP")
    a.label("UK_END")
    a("s_endpgm")
    return name, a.finalize(), kernel_desc(name, 512, 64, 256)

TS_WS=4; TS_OUT=8; TS_WAVE=20; TS_S=21; TS_I=22; TS_T=23; TS_T2=24; TS_T3=25; TS_SCALE=26
TS_MK=28
TS_HI=36
TV_LANE=1; TV_G=2; TV_N=3; TV_T=4; TV_L16=5; TV_KM=6; TV_NINF=7; TV_L8=8; TV_T2=9; TV_OUTO=10; TV_MA=11; TV_MB=12
TV_Q=16; TV_K=64; TV_M=112; TV_S=136
TV_X=156
TV_P=172

def tok_setup(a):
    a(f"""v_lshlrev_b32 v{TV_L16}, 4, v{TV_LANE}
v_lshlrev_b32 v{TV_L8}, 3, v{TV_LANE}
v_lshlrev_b32 v{TV_KM}, 7, v{TV_G}
v_and_b32 v{TV_T}, 7, v{TV_LANE}
v_lshlrev_b32 v{TV_T}, 4, v{TV_T}
v_add_u32 v{TV_KM}, v{TV_KM}, v{TV_T}
v_mov_b32 v{TV_NINF}, 0xff800000
s_mov_b32 s{TS_SCALE}, 0x{f2u(192**-0.5*1.4426950408889634):08x}
s_mov_b32 s{TS_HI}, 0
s_mov_b32 s{TS_HI+1}, -1
v_lshlrev_b32 v{TV_T}, 2, v{TV_G}""")
    for r in range(4):
        a(f"v_add_u32 v{TV_T2}, {r}, v{TV_T}")
        a(f"v_cmp_gt_u32 s[{TS_MK+2*r}:{TS_MK+2*r+1}], v{TV_T2}, v{TV_N}")
    a(f"""v_mul_u32_u24 v{TV_OUTO}, 1280, v{TV_N}
v_lshlrev_b32 v{TV_T}, 3, v{TV_G}
v_add_u32 v{TV_OUTO}, v{TV_OUTO}, v{TV_T}""")
    a(f"""v_and_b32 v{TV_T}, 31, v{TV_LANE}
v_lshlrev_b32 v{TV_T}, 3, v{TV_T}
v_lshrrev_b32 v{TV_T2}, 5, v{TV_LANE}
v_mul_u32_u24 v{TV_MA}, {40*256}, v{TV_T2}
v_add_u32 v{TV_MA}, v{TV_MA}, v{TV_T}
v_mul_u32_u24 v{TV_MB}, 2560, v{TV_T2}
v_add_u32 v{TV_MB}, v{TV_MB}, v{TV_T}""")

def emit_score(a, pfx, ld=" sc1", mid=None):
    W = f"s[{TS_WS}:{TS_WS+3}]"
    a(f"""s_lshl_b32 s{TS_T}, s{TS_I}, 2
s_add_u32 s{TS_T}, s{TS_T}, s{TS_WAVE}
s_lshl_b32 s{TS_T2}, s{TS_S}, 5
s_add_u32 s{TS_T}, s{TS_T}, s{TS_T2}
s_mul_i32 s{TS_T2}, s{TS_T}, 12288
s_add_u32 s{TS_T3}, s{TS_T2}, {QX}""")
    for f in range(12):
        if f and f % 4 == 0: a(f"s_add_u32 s{TS_T3}, s{TS_T3}, 4096")
        a(f"buffer_load_dwordx4 {vr(TV_Q+4*f)}, v{TV_L16}, {W}, s{TS_T3} offen offset:{(f%4)*1024}{ld}")
    a(f"s_add_u32 s{TS_T3}, s{TS_T2}, {KX}")
    for f in range(12):
        if f and f % 4 == 0: a(f"s_add_u32 s{TS_T3}, s{TS_T3}, 4096")
        a(f"buffer_load_dwordx4 {vr(TV_K+4*f)}, v{TV_L16}, {W}, s{TS_T3} offen offset:{(f%4)*1024}{ld}")
    if mid:
        a(f"s_mov_b32 s47, s{TS_T}")
        mid()
        a(f"s_mov_b32 s{TS_T}, s47")
    a(f"s_mul_i32 s{TS_T2}, s{TS_T}, 3072")
    a(f"s_add_u32 s{TS_T3}, s{TS_T2}, {KM}")
    for p in range(6):
        a(f"buffer_load_dwordx4 {vr(TV_M+4*p)}, v{TV_KM}, {W}, s{TS_T3} offen offset:{p*512}{ld}")
    a(f"s_mul_i32 s{TS_T2}, s{TS_T}, 2560")
    a(f"s_add_u32 s{TS_T3}, s{TS_T2}, {PF}")
    a("s_waitcnt vmcnt(0)")
    SM0, SM1, X00, X01, X11 = TV_S, TV_S+4, TV_S+8, TV_S+12, TV_S+16
    for p in range(6):
        for d, A_, B_ in ((SM0, TV_M+4*p, TV_Q+4*p), (SM1, TV_M+4*p, TV_Q+4*(6+p)), (X00, TV_K+4*p, TV_Q+4*p),
                          (X01, TV_K+4*p, TV_Q+4*(6+p)), (X11, TV_K+4*(6+p), TV_Q+4*(6+p))):
            c = "0" if p == 0 else vr(d)
            a(f"v_mfma_f32_16x16x32_bf16 {vr(d)}, {vr(A_)}, {vr(B_)}, {c}")
    for tq in range(2):
        sm = SM0 if tq == 0 else SM1
        vals = []
        X = TV_X
        for r in range(4):
            a(f"v_cndmask_b32 v{X+r}, v{sm+r}, v{TV_NINF}, s[{TS_HI}:{TS_HI+1}]")
        if tq == 0:
            for r in range(4): a(f"v_cndmask_b32 v{X+4+r}, v{X00+r}, v{TV_NINF}, s[{TS_MK+2*r}:{TS_MK+2*r+1}]")
            n = 8
        else:
            for r in range(4): a(f"v_mov_b32 v{X+4+r}, v{X01+r}")
            for r in range(4): a(f"v_cndmask_b32 v{X+8+r}, v{X11+r}, v{TV_NINF}, s[{TS_MK+2*r}:{TS_MK+2*r+1}]")
            n = 12
        MX = X+12; TM = X+13
        a(f"v_max3_f32 v{MX}, v{X}, v{X+1}, v{X+2}")
        i = 3
        while i < n:
            if i+1 < n: a(f"v_max3_f32 v{MX}, v{MX}, v{X+i}, v{X+i+1}"); i += 2
            else: a(f"v_max_f32 v{MX}, v{MX}, v{X+i}"); i += 1
        a(f"v_mov_b32 v{TM}, v{MX}\nv_permlane16_swap_b32 v{MX}, v{TM}\nv_max_f32 v{MX}, v{MX}, v{TM}")
        a(f"v_mov_b32 v{TM}, v{MX}\nv_permlane32_swap_b32 v{MX}, v{TM}\nv_max_f32 v{MX}, v{MX}, v{TM}")
        a(f"v_mul_f32 v{MX}, s{TS_SCALE}, v{MX}")
        for j in range(n): a(f"v_fma_f32 v{X+j}, v{X+j}, s{TS_SCALE}, -v{MX}")
        for j in range(n): a(f"v_exp_f32 v{X+j}, v{X+j}")
        SU = X+14
        a(f"v_add_f32 v{SU}, v{X}, v{X+1}")
        for j in range(2, n): a(f"v_add_f32 v{SU}, v{SU}, v{X+j}")
        a(f"v_mov_b32 v{TM}, v{SU}\nv_permlane16_swap_b32 v{SU}, v{TM}\nv_add_f32 v{SU}, v{SU}, v{TM}")
        a(f"v_mov_b32 v{TM}, v{SU}\nv_permlane32_swap_b32 v{SU}, v{TM}\nv_add_f32 v{SU}, v{SU}, v{TM}")
        a(f"v_rcp_f32 v{SU}, v{SU}")
        for j in range(n): a(f"v_mul_f32 v{X+j}, v{X+j}, v{SU}")
        P = TV_P + 8*tq
        a(f"v_cvt_pk_bf16_f32 v{P}, v{X+4}, v{X+5}\nv_cvt_pk_bf16_f32 v{P+1}, v{X+6}, v{X+7}")
        if tq == 0: a(f"v_mov_b32 v{P+2}, 0\nv_mov_b32 v{P+3}, 0")
        else: a(f"v_cvt_pk_bf16_f32 v{P+2}, v{X+8}, v{X+9}\nv_cvt_pk_bf16_f32 v{P+3}, v{X+10}, v{X+11}")
        a(f"v_cvt_pk_bf16_f32 v{P+4}, v{X}, v{X+1}\nv_cvt_pk_bf16_f32 v{P+5}, v{X+2}, v{X+3}")
        a(f"buffer_store_dwordx4 {vr(P)}, v{TV_L16}, {W}, s{TS_T3} offen offset:{tq*1280} sc1")
        a("s_mov_b32 exec_hi, 0")
        a(f"buffer_store_dwordx2 {vr(P+4,2)}, v{TV_L8}, {W}, s{TS_T3} offen offset:{tq*1280+1024} sc1")
        a("s_mov_b64 exec, -1")

PV_ACC=16
PV_BUF=56
PV_MEM=168
PV_BASE=196
PV_RED=208

def emit_pu(a, pfx, ld=" sc1", mid=None):
    W = f"s[{TS_WS}:{TS_WS+3}]"
    PT_ = 56; MA = 120; MB = 160
    a(f"""s_lshl_b32 s{TS_T}, s{TS_S}, 5
s_lshl_b32 s{TS_T2}, s{TS_WAVE}, 3
s_add_u32 s{TS_T}, s{TS_T}, s{TS_T2}
s_mul_i32 s40, s{TS_T}, {40*1024}
s_mul_i32 s{TS_T2}, s{TS_I}, {5*1024}
s_add_u32 s40, s40, s{TS_T2}
s_add_u32 s40, s40, {UX}
s_mul_i32 s41, s{TS_T}, 2560
s_add_u32 s41, s41, {PF}
s_mul_i32 s42, s{TS_T}, {40*256}
s_mul_i32 s{TS_T2}, s{TS_I}, {5*256}
s_add_u32 s42, s42, s{TS_T2}
s_add_u32 s42, s42, {UY}""")
    a(f"""s_mul_i32 s43, s{TS_S}, 80
s_mul_i32 s{TS_T2}, s{TS_I}, 10
s_add_u32 s43, s43, s{TS_T2}
s_add_u32 s43, s43, s{TS_WAVE}
s_lshl_b32 s43, s43, 10
s_add_u32 s43, s43, {BASE}""")
    for k in range(8):
        a(f"s_add_u32 s44, s40, {k*40*1024}")
        for t in range(4): a(f"buffer_load_dwordx4 {ar(20*k+4*t)}, v{TV_L16}, {W}, s44 offen offset:{t*1024}{ld}")
        a(f"s_add_u32 s44, s44, 4096")
        a(f"buffer_load_dwordx4 {ar(20*k+16)}, v{TV_L16}, {W}, s44 offen{ld}")
    for j in range(3):
        a(f"s_add_u32 s44, s43, {j*4096}")
        a(f"buffer_load_dwordx4 {vr(PV_BASE+4*j)}, v{TV_L16}, {W}, s44 offen{ld}")
    if mid: mid()
    out = []
    for k in range(8):
        a(f"s_add_u32 s44, s41, {k*2560}")
        a(f"buffer_load_dwordx4 {vr(PT_+8*k)}, v{TV_L16}, {W}, s44 offen{ld}")
        a(f"buffer_load_dwordx4 {vr(PT_+8*k+4)}, v{TV_L16}, {W}, s44 offen offset:1280{ld}")
        out += [('H', k)]*2
    for qd in range(2):
        for hh in range(2):
            a(f"s_add_u32 s44, s42, {(4*qd+2*hh)*40*256}")
            for t in range(5): a(f"buffer_load_dwordx2 {vr(MA+20*qd+4*t+2*hh,2)}, v{TV_MA}, {W}, s44 offen offset:{t*256}{ld}")
            a(f"s_add_u32 s44, s41, {(4*qd+2*hh)*2560}")
            for tq in range(2): a(f"buffer_load_dwordx2 {vr(MB+8*qd+4*tq+2*hh,2)}, v{TV_MB}, {W}, s44 offen offset:{tq*1280+1024}{ld}")
        out += [('M', qd)]*14
    def wait_for(tag):
        last = max(i for i, x in enumerate(out) if x == tag)
        a(f"s_waitcnt vmcnt({min(len(out) - 1 - last, 63)})")
    for k in range(8):
        wait_for(('H', k))
        for t in range(5):
            for tq in range(2):
                d = PV_ACC + 8*t + 4*tq
                c = "0" if k == 0 else vr(d)
                a(f"v_mfma_f32_16x16x32_bf16 {vr(d)}, {ar(20*k+4*t)}, {vr(PT_+8*k+4*tq)}, {c}")
    for qd in range(2):
        wait_for(('M', qd))
        for t in range(5):
            for tq in range(2):
                d = PV_ACC + 8*t + 4*tq
                a(f"v_mfma_f32_16x16x32_bf16 {vr(d)}, {vr(MA+20*qd+4*t)}, {vr(MB+8*qd+4*tq)}, {vr(d)}")
    a(f"s_mul_i32 s44, s{TS_WAVE}, 10240")
    a(f"v_add_u32 v{TV_T}, s44, v{TV_L16}")
    for u in range(10):
        a(f"ds_write_b128 v{TV_T}, {vr(PV_ACC+4*u)} offset:{u*1024}")
    a("s_waitcnt lgkmcnt(0)")
    a("s_barrier")
    a(f"s_lshl_b32 s44, s{TS_WAVE}, 10")
    a(f"v_add_u32 v{TV_T}, s44, v{TV_L16}")
    for j in range(3):
        if j == 2:
            a(f"s_cmp_ge_u32 s{TS_WAVE}, 2")
            a(f"s_cbranch_scc1 {pfx}_RD")
        for k in range(4):
            a(f"ds_read_b128 {vr(PV_RED+4*k)}, v{TV_T} offset:{k*10240 + j*4096}")
        a(f"""s_add_u32 s44, s{TS_WAVE}, {4*j}
s_lshr_b32 s45, s44, 1
s_and_b32 s44, s44, 1
s_mul_i32 s46, s{TS_I}, 5
s_add_u32 s45, s45, s46
s_lshl_b32 s45, s45, 5
s_lshl_b32 s46, s{TS_S}, 1
s_add_u32 s46, s46, s44
s_mul_i32 s46, s46, {16*1280}
s_add_u32 s45, s45, s46""")
        a("s_waitcnt vmcnt(0) lgkmcnt(0)")
        for r in range(4):
            a(f"v_add_f32 v{PV_RED+r}, v{PV_RED+r}, v{PV_RED+4+r}")
            a(f"v_add_f32 v{PV_RED+8+r}, v{PV_RED+8+r}, v{PV_RED+12+r}")
        for r in range(4):
            a(f"v_add_f32 v{PV_RED+r}, v{PV_RED+r}, v{PV_RED+8+r}")
            a(f"v_add_f32 v{PV_RED+r}, v{PV_RED+r}, v{PV_BASE+4*j+r}")
        a(f"v_cvt_pk_bf16_f32 v{PV_RED+4}, v{PV_RED}, v{PV_RED+1}")
        a(f"v_cvt_pk_bf16_f32 v{PV_RED+5}, v{PV_RED+2}, v{PV_RED+3}")
        a(f"buffer_store_dwordx2 {vr(PV_RED+4,2)}, v{TV_OUTO}, s[{TS_OUT}:{TS_OUT+3}], s45 offen" + (" sc1" if OPT('OUTSC1', 0) else ""))
    a.label(f"{pfx}_RD")
    a("s_barrier")

def gen_tok_kernel(kind):
    a = Asm(); name = f"{kind}_kernel"
    kernel_header(a, name)
    a(f"""s_cmp_ge_u32 s2, 512
s_cbranch_scc1 TK_END_{kind}
s_load_dwordx2 s[38:39], s[0:1], {KA['ws']}
s_load_dwordx2 s[40:41], s[0:1], {KA['out']}
s_waitcnt lgkmcnt(0)""")
    srd(a, TS_WS, 38, WS_SIZE); srd(a, TS_OUT, 40, OUT_BYTES)
    lane_setup(a, TV_LANE, TV_G, TV_N, TS_WAVE)
    tok_setup(a)
    a(f"s_lshr_b32 s{TS_S}, s2, 3\ns_and_b32 s{TS_I}, s2, 7")
    if kind == 'score': emit_score(a, "SC")
    else: emit_pu(a, "PU")
    a.label(f"TK_END_{kind}")
    a("s_endpgm")
    return name, a.finalize(), kernel_desc(name, 512, 64, 256)
```

```python
from asmlib import *
from layout import *

def srd(a, s, ptr_lo, size):
    a(f"""s_mov_b32 s{s}, s{ptr_lo}
s_and_b32 s{s+1}, s{ptr_lo+1}, 0xffff
s_mov_b32 s{s+2}, {size}
s_mov_b32 s{s+3}, 0x00020000""")

def kernel_header(a, name):
    a.raw(f".globl {name}\n.p2align 8\n.type {name},@function\n{name}:")

def kernel_desc(name, vgpr, sgpr, accum):
    return f""".p2align 6
.amdhsa_kernel {name}
  .amdhsa_next_free_vgpr {vgpr}
  .amdhsa_next_free_sgpr {sgpr}
  .amdhsa_accum_offset {accum}
  .amdhsa_group_segment_fixed_size 0
  .amdhsa_kernarg_size 112
  .amdhsa_user_sgpr_count 2
  .amdhsa_user_sgpr_kernarg_segment_ptr 1
  .amdhsa_system_sgpr_workgroup_id_x 1
.end_amdhsa_kernel
"""

def vr(b, n=4): return f"v[{b}:{b+n-1}]"
def ar(b, n=4): return f"a[{b}:{b+n-1}]"

class WReg:
    def __init__(self, abase, acount, vbase):
        self.abase=abase; self.acount=acount; self.vbase=vbase
    def quad(self, f):
        r = f*4
        if r < self.acount: return ar(self.abase + r)
        return vr(self.vbase + r - self.acount)
    def pair(self, f, k):
        r = f*4 + 2*k
        if r < self.acount: return ar(self.abase + r, 2)
        return vr(self.vbase + r - self.acount, 2)

def load_w(a, frags, wreg, v_goff, v_tr, s_tmp, ldsbase_s, perm, nslot=32, grp=4):
    N = len(frags)
    second = 512 if perm else 128
    def issue(f):
        sr, (sc, imm) = frags[f]
        a(f"s_add_u32 s{s_tmp}, s{sc}, {imm}")
        a(f"s_add_u32 m0, s{ldsbase_s}, {(f % nslot)*1024}")
        a(f"buffer_load_dwordx4 v{v_goff}, s[{sr}:{sr+3}], s{s_tmp} offen lds")
    issued = 0
    while issued < min(N, nslot):
        issue(issued); issued += 1
    done = 0
    while done < N:
        g = min(grp, N - done)
        inflight_after = issued - (done + g)
        a(f"s_waitcnt vmcnt({inflight_after})")
        for f in range(done, done + g):
            o = (f % nslot)*1024
            a(f"ds_read_b64_tr_b16 {wreg.pair(f,0)}, v{v_tr} offset:{o}")
            a(f"ds_read_b64_tr_b16 {wreg.pair(f,1)}, v{v_tr} offset:{o+second}")
        done += g
        if issued < N:
            a("s_waitcnt lgkmcnt(0)")
            k = 0
            while issued < N and k < g:
                issue(issued); issued += 1; k += 1
    a("s_waitcnt lgkmcnt(0)")

def lane_setup(a, v_lane, v_g, v_n, s_wave, vtid='v0'):
    a(f"""v_lshrrev_b32 v{v_g}, 6, {vtid}
s_nop 0
v_readfirstlane_b32 s{s_wave}, v{v_g}
v_and_b32 v{v_lane}, 63, {vtid}
v_lshrrev_b32 v{v_g}, 4, v{v_lane}
v_and_b32 v{v_n}, 15, v{v_lane}""")

def w_addr_setup(a, v_lane, v_goff, v_tr, stride, perm, s_ldsbase, vt):
    a(f"""v_lshrrev_b32 v{vt}, 1, v{v_lane}
s_mov_b32 s{s_ldsbase+1}, {stride}
v_mul_lo_u32 v{v_goff}, v{vt}, s{s_ldsbase+1}
v_and_b32 v{vt}, 1, v{v_lane}
v_lshlrev_b32 v{vt}, 4, v{vt}
v_add_u32 v{v_goff}, v{v_goff}, v{vt}
v_lshrrev_b32 v{v_tr}, 4, v{v_lane}
v_lshlrev_b32 v{v_tr}, {2 if perm else 3}, v{v_tr}
v_bfe_u32 v{vt}, v{v_lane}, 2, 2
v_add_u32 v{v_tr}, v{v_tr}, v{vt}
v_lshlrev_b32 v{v_tr}, 5, v{v_tr}
v_and_b32 v{vt}, 3, v{v_lane}
v_lshlrev_b32 v{vt}, 3, v{vt}
v_add_u32 v{v_tr}, v{v_tr}, v{vt}
v_add_u32 v{v_tr}, s{s_ldsbase}, v{v_tr}""")


def wait_words(a, lbl, srd_ws, v_addr, v_tmp, s_thr, s_cache=None, nl=0, s_tmp=None, s_cnt=None, sleep=4, imm_thr=None):
    thr = f"s{s_thr}" if imm_thr is None else str(imm_thr)
    if s_cache is not None:
        a(f"s_cmp_ge_u32 s{s_cache}, {thr}")
        a(f"s_cbranch_scc1 {lbl}_D")
    a(f"s_mov_b32 s{s_cnt}, 0")
    a.label(lbl)
    a(f"buffer_load_dword v{v_tmp}, v{v_addr}, s[{srd_ws}:{srd_ws+3}], 0 offen sc1")
    a("s_waitcnt vmcnt(0)")
    a(f"v_cmp_gt_u32 vcc, {thr}, v{v_tmp}")
    a(f"s_cbranch_vccz {lbl}_K")
    a(f"s_sleep {sleep}")
    a(f"s_add_u32 s{s_cnt}, s{s_cnt}, 1")
    a(f"s_cmp_lt_u32 s{s_cnt}, 0x100000")
    a(f"s_cbranch_scc1 {lbl}")
    a.label(f"{lbl}_K")
    if s_cache is not None:
        a(f"v_readlane_b32 s{s_cache}, v{v_tmp}, 0")
        for l in range(1, nl):
            a(f"v_readlane_b32 s{s_tmp}, v{v_tmp}, {l}")
            a(f"s_min_u32 s{s_cache}, s{s_cache}, s{s_tmp}")
    a.label(f"{lbl}_D")

def publish_word(a, srd_ws, v_val, v_zero, s_off, s_val):
    a(f"v_mov_b32 v{v_val}, s{s_val}")
    a("s_mov_b64 exec, 1")
    a(f"buffer_store_dword v{v_val}, v{v_zero}, s[{srd_ws}:{srd_ws+3}], s{s_off} offen sc1")
    a("s_mov_b64 exec, -1")

import os as _os
def trace(a, idx, s_role, s_t=(98,99), v=(250,251), srd_ws=4, wave_s=None, val=None):
    if not int(_os.environ.get('TRACE', 0)): return
    a(f"s_memrealtime s[{s_t[0]}:{s_t[1]}]")
    a("s_waitcnt lgkmcnt(0)")
    a(f"v_mov_b32 v{v[0]}, s{s_t[0] if val is None else val}")
    a(f"s_lshl_b32 s{s_t[1]}, s{s_role}, 8")
    a(f"s_add_u32 s{s_t[1]}, s{s_t[1]}, {TRACE + idx*4}")
    a(f"v_mov_b32 v{v[1]}, s{s_t[1]}")
    a("s_mov_b64 exec, 1")
    a(f"buffer_store_dword v{v[0]}, v{v[1]}, s[{srd_ws}:{srd_ws+3}], 0 offen")
    a("s_mov_b64 exec, -1")


def load_w2(a, units, dst_pair, nt, stride, perm, v_lane, v_goff, v_tr, vt, s_tmp, s_lb, kb=32, mid_hook=None, pre_hook=None):
    lpr = 2*nt
    rows = 64 // lpr
    rb = 32*nt
    sh = {1: 1, 2: 2, 4: 3}[nt]
    a(f"""v_lshrrev_b32 v{vt}, {sh}, v{v_lane}
s_mov_b32 s{s_lb+1}, {stride}
v_mul_lo_u32 v{v_goff}, v{vt}, s{s_lb+1}
v_and_b32 v{vt}, {lpr-1}, v{v_lane}
v_lshlrev_b32 v{vt}, 4, v{vt}
v_add_u32 v{v_goff}, v{v_goff}, v{vt}""")
    if perm == 2:
        a(f"""v_bfe_u32 v{v_tr}, v{v_lane}, 4, 1
v_lshlrev_b32 v{v_tr}, 4, v{v_tr}
v_bfe_u32 v{vt}, v{v_lane}, 5, 1
v_lshlrev_b32 v{vt}, 3, v{vt}
v_add_u32 v{v_tr}, v{v_tr}, v{vt}
v_bfe_u32 v{vt}, v{v_lane}, 2, 1
v_add_u32 v{v_tr}, v{v_tr}, v{vt}
v_bfe_u32 v{vt}, v{v_lane}, 3, 1
v_lshlrev_b32 v{vt}, 2, v{vt}
v_add_u32 v{v_tr}, v{v_tr}, v{vt}""")
    else:
        a(f"""v_lshrrev_b32 v{v_tr}, 4, v{v_lane}
v_lshlrev_b32 v{v_tr}, {2 if perm else 3}, v{v_tr}
v_bfe_u32 v{vt}, v{v_lane}, 2, 2
v_add_u32 v{v_tr}, v{v_tr}, v{vt}""")
    a(f"""v_mul_u32_u24 v{v_tr}, {rb}, v{v_tr}
v_and_b32 v{vt}, 3, v{v_lane}
v_lshlrev_b32 v{vt}, 3, v{vt}
v_add_u32 v{v_tr}, v{v_tr}, v{vt}
v_add_u32 v{v_tr}, s{s_lb}, v{v_tr}""")
    second = (2 if perm == 2 else 16 if perm else 4) * rb
    nslot = kb // nt
    N = len(units)
    def issue(u):
        sr, sc, imm = units[u]
        for j in range(nt):
            a(f"s_add_u32 s{s_tmp}, s{sc}, {imm + j*rows*stride}")
            a(f"s_add_u32 m0, s{s_lb}, {(u % nslot)*nt*1024 + j*1024}")
            a(f"buffer_load_dwordx4 v{v_goff}, s[{sr}:{sr+3}], s{s_tmp} offen lds")
    issued = 0
    if pre_hook: pre_hook()
    while issued < min(N, nslot):
        issue(issued); issued += 1
    if mid_hook: mid_hook()
    done = 0
    grp = max(1, 4 // nt)
    while done < N:
        g = min(grp, N - done)
        a(f"s_waitcnt vmcnt({(issued - (done + g))*nt})")
        for u in range(done, done + g):
            for T in range(nt):
                o = (u % nslot)*nt*1024 + T*32
                a(f"ds_read_b64_tr_b16 {dst_pair(u,T,0)}, v{v_tr} offset:{o}")
                a(f"ds_read_b64_tr_b16 {dst_pair(u,T,1)}, v{v_tr} offset:{o+second}")
        done += g
        if issued < N:
            a("s_waitcnt lgkmcnt(0)")
            k = 0
            while issued < N and k < g:
                issue(issued); issued += 1; k += 1
    a("s_waitcnt lgkmcnt(0)")

def wait_dbg(a, lbl, s_ptr, byte_off, v_a, v_t, s_cnt, s_val, thr=None, mask=None):
    a(f"v_mov_b32 v{v_a}, {byte_off}")
    a(f"s_mov_b32 s{s_cnt}, 0")
    a.label(lbl)
    a(f"global_load_dword v{v_t}, v{v_a}, s[{s_ptr}:{s_ptr+1}] sc1")
    a("s_waitcnt vmcnt(0)")
    a(f"v_readfirstlane_b32 s{s_val}, v{v_t}")
    if thr is not None:
        a(f"s_cmp_ge_u32 s{s_val}, {thr}")
    else:
        a(f"s_and_b32 s{s_cnt+1}, s{s_val}, {mask}")
        a(f"s_cmp_eq_u32 s{s_cnt+1}, {mask}")
    a(f"s_cbranch_scc1 {lbl}_K")
    a("s_sleep 4")
    a(f"s_add_u32 s{s_cnt}, s{s_cnt}, 1")
    a(f"s_cmp_lt_u32 s{s_cnt}, 0x100000")
    a(f"s_cbranch_scc1 {lbl}")
    a.label(f"{lbl}_K")

def dbgt(a, byte_off, s_cond=None, op="store", s_dbg=None):
    if not int(_os.environ.get('DBGT', 0)): return
    a.uid += 1
    L = f"DT_{a.uid}"
    if s_cond is not None:
        a(f"s_cmp_lg_u32 s{s_cond}, 0")
        a(f"s_cbranch_scc1 {L}")
    a("s_waitcnt lgkmcnt(0)")
    a(f"s_load_dwordx2 s[86:87], s[0:1], {KA['dbg']}")
    a("s_memrealtime s[98:99]")
    a("s_waitcnt lgkmcnt(0)")
    a("v_mov_b32 v250, s98")
    a(f"v_mov_b32 v251, {byte_off}")
    a("s_mov_b64 exec, 1")
    if op == "store": a("global_store_dword v251, v250, s[86:87] sc1")
    else: a("global_atomic_umax v251, v250, s[86:87] sc1")
    a("s_waitcnt vmcnt(0)")
    a("s_mov_b64 exec, -1")
    a.label(L)
```

```python
from gen_common import *
import struct, os
OPT=lambda k,d: type(d)(os.environ.get(k,d))
def f2u(f): return struct.unpack('<I', struct.pack('<f', f))[0]

S_WS=4; S_WQ=8; S_WK=12; S_WV=16; S_WO=20
S_WAVE=24; S_H=25; S_C=26; S_J=27; S_STEP=28
S_P=29; S_CUR=30; S_N=31; S_NN=32
S_HI32=20
S_MQ=16
S_M8=34; S_H8=38
S_T=40; S_T2=41; S_T3=42; S_RETRY=43
S_KVG=44; S_UXG=45; S_UYG=46; S_KMG=47; S_RSB=48; S_KVL=49; S_KVR=50; S_RED=51; S_RSP=52; S_FLG=53
S_LB=54
S_COL=56
S_SCALE=60; S_MAXR=61
S_TS=62
S_M0=88
S_MODE=57
S_REF0=98
S_REF2=36
S_NOW=58
L_MEM=0; L_QKV=10240; L_KV=20480; KVB=24576
LDS_REC=131072
V_LANE=1; V_G=2; V_N=3; V_T=4; V_T2=5; V_L16=6
V_AGO=7; V_AGL=10; V_MRD=11; V_AGP=23
V_RSL=7
V_AST=12; V_KMS=15; V_APO=16; V_APL=19
V_RQ=20; V_IDX=21; V_RV=22; V_RSO=28; V_L4=29; V_AGS=30; V_ZERO=31
V_RSP=80
V_NINF=248; V_KVA=249
V_POLL=32; V_RING=48; V_ACC=88; V_PK=252; V_KXF=100; V_QF=148; V_KF=172; V_VF=196; V_S=220; V_UXF=232
V_Y=48; V_PU=64; V_UA=48; V_YF=220; V_SM=148
NT = [4, 4, 2]; T0 = [0, 4, 8]; P0 = [0, 2, 4]
KVX = L_KV ^ (L_KV+KVB)

def poll_check(a, regs, vt):
    r = list(regs)
    a(f"v_max3_u32 v{vt}, v{r[0]}, v{r[1]}, v{r[2]}")
    i = 3
    while i < len(r):
        if i + 1 < len(r):
            a(f"v_max3_u32 v{vt}, v{vt}, v{r[i]}, v{r[i+1]}"); i += 2
        else:
            a(f"v_max_u32 v{vt}, v{vt}, v{r[i]}"); i += 1
    a(f"v_cmp_eq_u32 vcc, -1, v{vt}")

def sleep(a, n):
    while n > 0:
        k = min(n, 127); a(f"s_sleep {k}"); n -= k

def mark(a, reg):
    a(f"s_memtime s[{reg}:{reg+1}]")

def wait_until(a, ref, delta):
    if delta <= 0: return
    a.uid += 1
    L = f"WU_{a.uid}"
    a.label(L)
    a(f"""s_memtime s[{S_NOW}:{S_NOW+1}]
s_waitcnt lgkmcnt(0)
s_sub_u32 s{S_NOW}, s{S_NOW}, s{ref}
s_cmp_ge_u32 s{S_NOW}, {delta}
s_cbranch_scc1 {L}_D
s_sub_u32 s{S_NOW}, {delta}, s{S_NOW}
s_cmp_lt_u32 s{S_NOW}, 96
s_cbranch_scc1 {L}
s_sleep 1
s_branch {L}""")
    a.label(f"{L}_D")

def stamp(a, idx):
    if OPT('STAMP', 0):
        a(f"s_memtime s[{S_TS+2*idx}:{S_TS+2*idx+1}]")

def racc(a, k):
    if OPT('STAMP', 0): a(f"s_add_u32 s{k}, s{k}, s{S_RETRY}")

def nearmap_v(a, v, vt):
    a(f"""v_lshrrev_b32 v{vt}, 13, v{v}
v_lshlrev_b32 v{vt}, 14, v{vt}
v_and_b32 v{v}, 0x1fff, v{v}
v_or_b32 v{v}, v{v}, v{vt}""")

def oob_mask(a, v, nlanes):
    a(f"""v_mov_b32 v{V_T}, 0x80000000
v_cmp_gt_u32 vcc, {nlanes}, v{V_LANE}
v_cndmask_b32 v{v}, v{V_T}, v{v}, vcc""")

V_AGB=48
def poll_loop(a, lbl, loads, nreg, acc, pre_issued=False, base=None):
    a(f"s_mov_b32 s{S_RETRY}, 0")
    if pre_issued:
        a(f"s_branch {lbl}_W")
    a.label(lbl)
    for x in loads: a(x)
    if pre_issued: a.label(f"{lbl}_W")
    a("s_waitcnt vmcnt(0)")
    b0 = V_POLL if base is None else base
    poll_check(a, range(b0, b0+nreg), V_T)
    a(f"""s_cbranch_vccz {lbl}_OK
s_add_u32 s{S_RETRY}, s{S_RETRY}, 1
s_cmp_lt_u32 s{S_RETRY}, s{S_MAXR}
s_cbranch_scc1 {lbl}
s_mov_b32 s{S_MAXR}, 0""")
    a.label(f"{lbl}_OK")
    racc(a, acc)

CURMODE = [None]
def RSLOC(): return OPT('RSLOC', 0) and not OPT('STAMP', 0)
INITWAIT = [False]
def store_mode(a, lines):
    if CURMODE[0] is not None:
        for x in lines: a(x.replace(' SCX', '' if CURMODE[0] else ' sc1'))
        return
    if OPT('AFAST', 1) == 0:
        for x in lines: a(x.replace(' SCX', ' sc1'))
        return
    a.uid += 1
    L = f"SM_{a.uid}"
    a(f"s_cmp_eq_u32 s{S_MODE}, 0")
    a(f"s_cbranch_scc1 {L}_S")
    for x in lines: a(x.replace(' SCX', ''))
    a(f"s_branch {L}_E")
    a.label(f"{L}_S")
    for x in lines: a(x.replace(' SCX', ' sc1'))
    a.label(f"{L}_E")

def wait_mode(a, ref, fast, slow):
    if CURMODE[0] is not None:
        wait_until(a, ref, fast if CURMODE[0] else slow); return
    if OPT('AFAST', 1) == 0:
        wait_until(a, ref, slow); return
    a.uid += 1
    L = f"WM_{a.uid}"
    a(f"s_cmp_eq_u32 s{S_MODE}, 0")
    a(f"s_cbranch_scc1 {L}_S")
    wait_until(a, ref, fast)
    a(f"s_branch {L}_E")
    a.label(f"{L}_S")
    wait_until(a, ref, slow)
    a.label(f"{L}_E")

def poll2(a, lbl, mk_loads, nreg, baseA, baseB, acc, stage, gap=2):
    LA = mk_loads(baseA); LB = mk_loads(baseB); n = len(LA)
    a(f"s_mov_b32 s{S_RETRY}, 0")
    for x in LA: a(x)
    if gap: a(f"s_sleep {gap}")
    a.label(lbl)
    for x in LB: a(x)
    a(f"s_waitcnt vmcnt({n})")
    poll_check(a, range(baseA, baseA+nreg), V_T)
    a(f"s_cbranch_vccz {lbl}_GA")
    for x in LA: a(x)
    a(f"s_waitcnt vmcnt({n})")
    poll_check(a, range(baseB, baseB+nreg), V_T)
    a(f"""s_cbranch_vccz {lbl}_GB
s_add_u32 s{S_RETRY}, s{S_RETRY}, 1
s_cmp_lt_u32 s{S_RETRY}, s{S_MAXR}
s_cbranch_scc1 {lbl}
s_mov_b32 s{S_MAXR}, 0""")
    a.label(f"{lbl}_GB")
    racc(a, acc)
    stage(baseB)
    a(f"s_branch {lbl}_E")
    a.label(f"{lbl}_GA")
    racc(a, acc)
    stage(baseA)
    a.label(f"{lbl}_E")

def ag_poll(a, pfx, w):
    wait_mode(a, S_REF2, OPT('T_AGF', 0), OPT('T_AG', 650))
    base = (w-2)*5
    def mk(b): return [f"buffer_load_dwordx4 {vr(b+4*k)}, v{V_AGP+k}, s[{S_WS}:{S_WS+3}], s{S_P} offen sc1" for k in range(5)]
    def stage(b):
        for k in range(5):
            a(f"ds_write_b128 v{V_L16}, {vr(b+4*k)} offset:{L_MEM + (base+k)*1024}")
    if CURMODE[0] and OPT('POLL2', 0):
        poll2(a, f"{pfx}_AGP", mk, 20, 172, 196, 92, stage, gap=OPT('GAPD', 2))
    else:
        poll_loop(a, f"{pfx}_AGP", mk(V_AGB), 20, 92, base=V_AGB)
        stage(V_AGB)

def reduce_blocks(a, pfx, nb, SEL, base_reg, s_poll, v_ags, acc, apk, s_loc0=None, s_loc=None, sqbase=None):
    loads = []
    LOCAL = CURMODE[0] and RSLOC()
    if LOCAL:
        a(f"s_lshr_b32 s{S_NOW}, s{S_J}, 5")
        a(f"s_xor_b32 s{S_NOW+1}, s{S_CUR}, 8192")
        for b in range(nb):
            a(f"s_add_u32 s{s_loc[b]}, s{s_loc0[b]}, s{S_NOW+1}")
        for b in range(nb):
            for q in range(4):
                sq = sqbase + 4*b + q
                a(f"s_add_u32 s{sq}, s{s_poll[b]}, {q*1024}")
                a(f"s_cmp_eq_u32 s{S_NOW}, {q}")
                a(f"s_cselect_b32 s{sq}, s{s_loc[b]}, s{sq}")
                loads.append(f"buffer_load_dwordx4 {vr(base_reg+16*b+4*q)}, v{V_L16}, s[{S_WS}:{S_WS+3}], s{sq} offen sc1")
    else:
        for b in range(nb):
            for q in range(4):
                loads.append(f"buffer_load_dwordx4 {vr(base_reg+16*b+4*q)}, v{V_L16}, s[{S_WS}:{S_WS+3}], s{s_poll[b]} offen offset:{q*1024} sc1")
    poll_loop(a, f"{pfx}_RP", loads, 16*nb, 94, base=base_reg)
    stamp(a, 7)
    for q in range(4):
        for b in range(nb):
            c = "0" if q == 0 else vr(acc+8*b)
            a(f"v_mfma_f32_16x16x32_bf16 {vr(acc+8*b)}, {vr(SEL)}, {vr(base_reg+16*b+4*q)}, {c}")
    for b in range(nb):
        for r in range(4):
            a(f"v_add_f32_dpp v{acc+8*b+4+r}, v{acc+8*b+r}, v{acc+8*b+r} row_ror:8 row_mask:0xf bank_mask:0xf")
    if nb == 2:
        for r in range(4): a(f"v_cndmask_b32 v{acc+4+r}, v{acc+4+r}, v{acc+12+r}, s[{S_H8}:{S_H8+1}]")
    a(f"v_cvt_pk_bf16_f32 v{apk}, v{acc+4}, v{acc+5}")
    a(f"v_cvt_pk_bf16_f32 v{apk+1}, v{acc+6}, v{acc+7}")
    a(f"v_mov_b32 v{apk+2}, v{apk}\nv_mov_b32 v{apk+3}, v{apk+1}")
    a(f"v_mov_b32 v{apk+4}, v{apk}\nv_mov_b32 v{apk+5}, v{apk+1}")
    a(f"v_permlane16_swap_b32 v{apk+4}, v{apk+2}")
    a(f"v_permlane16_swap_b32 v{apk+5}, v{apk+3}")
    store_mode(a, [f"buffer_store_dwordx4 {vr(apk)}, v{v_ags}, s[{S_WS}:{S_WS+3}], s{S_CUR} offen SCX"])

def reduce2(a, pfx, SEL, base_reg, v_off, v_ags, acc, apk):
    loads = [f"buffer_load_dwordx4 {vr(base_reg+4*q)}, v{v_off}, s[{S_WS}:{S_WS+3}], s{S_CUR} offen offset:{q*512} sc1" for q in range(8)]
    poll_loop(a, f"{pfx}_RP", loads, 32, 94, base=base_reg)
    stamp(a, 7)
    for q in range(8):
        c = "0" if q == 0 else vr(acc)
        a(f"v_mfma_f32_16x16x32_bf16 {vr(acc)}, {vr(SEL)}, {vr(base_reg+4*q)}, {c}")
    a(f"v_cvt_pk_bf16_f32 v{apk}, v{acc}, v{acc+1}")
    a(f"v_cvt_pk_bf16_f32 v{apk+1}, v{acc+2}, v{acc+3}")
    store_mode(a, [f"buffer_store_dwordx2 {vr(apk,2)}, v{v_ags}, s[{S_WS}:{S_WS+3}], s{S_CUR} offen SCX"])

def sel_setup(a, SEL):
    for k in range(4):
        a(f"""v_mov_b32 v{SEL+k}, 0
v_mov_b32 v{V_T}, 0x3f80
v_cmp_eq_u32 vcc, {2*k}, v{V_N}
v_cndmask_b32 v{SEL+k}, v{SEL+k}, v{V_T}, vcc
v_mov_b32 v{V_T}, 0x3f800000
v_cmp_eq_u32 vcc, {2*k+1}, v{V_N}
v_cndmask_b32 v{SEL+k}, v{SEL+k}, v{V_T}, vcc""")

def smap(a, s, t):
    a(f"""s_lshr_b32 s{t}, s{s}, 13
s_lshl_b32 s{t}, s{t}, 14
s_and_b32 s{s}, s{s}, 0x1fff
s_or_b32 s{s}, s{s}, s{t}
s_add_u32 s{s}, s{s}, {nearmap(RS_LOG)}""")

def loc_off(a, s_cb, s_out, s_tmp):
    a(f"""s_lshr_b32 s{s_out}, s{S_J}, 5
s_mul_i32 s{s_out}, s{s_out}, 81920
s_lshl_b32 s{s_tmp}, s{s_cb}, 10
s_add_u32 s{s_out}, s{s_out}, s{s_tmp}""")
    smap(a, s_out, s_tmp)

def rs_local_lane(a, v):
    a(f"""v_lshlrev_b32 v{v}, 10, v{V_G}
v_and_b32 v{V_T}, 7, v{V_LANE}
v_lshlrev_b32 v{V_T}, 4, v{V_T}
v_add_u32 v{v}, v{v}, v{V_T}
s_and_b32 s{S_T}, s{S_H}, 7
s_lshl_b32 s{S_T}, s{S_T}, 7
v_add_u32 v{v}, s{S_T}, v{v}""")

def blk_off(a, s_cb, s_out, s_tmp):
    a(f"""s_lshr_b32 s{s_out}, s{s_cb}, 1
s_lshl_b32 s{s_out}, s{s_out}, 14
s_and_b32 s{s_tmp}, s{s_cb}, 1
s_lshl_b32 s{s_tmp}, s{s_tmp}, 12
s_add_u32 s{s_out}, s{s_out}, s{s_tmp}
s_add_u32 s{s_out}, s{s_out}, {nearmap(RS_LOG)}""")

def rotate_slots(a):
    a(f"""s_mov_b32 s{S_T}, s{S_P}
s_mov_b32 s{S_P}, s{S_CUR}
s_mov_b32 s{S_CUR}, s{S_N}
s_mov_b32 s{S_N}, s{S_NN}
s_mov_b32 s{S_NN}, s{S_T}""")

def proj_stage(a, ntile, w8):
    for K in range(10):
        a(f"ds_read_b128 {vr(V_RING+4*K)}, v{V_L16} offset:{L_MEM + K*1024}")
    for t in range(ntile):
        for r in range(4): a(f"v_mov_b32 v{V_ACC+4*t+r}, 0")
    for K in range(10):
        a(f"s_waitcnt lgkmcnt({9-K})")
        for t in range(ntile):
            a(f"v_smfmac_f32_16x16x64_bf16 {vr(V_ACC+4*t)}, {vr(V_RING+4*K)}, {w8(t,K)}, v{V_IDX}")

def pack_pair(x, y, pk):
    L = [f"v_permlane32_swap_b32 v{x+r}, v{y+r}" for r in range(4)]
    L += [f"v_add_f32 v{x+r}, v{x+r}, v{y+r}" for r in range(4)]
    L += [f"v_cvt_pk_bf16_f32 v{pk}, v{x}, v{x+1}", f"v_cvt_pk_bf16_f32 v{pk+1}, v{x+2}, v{x+3}"]
    return L

def ux_load(a, w, flags, pfx):
    nt = NT[w]
    if flags:
        a.uid += 1
        a(f"s_add_u32 s{S_UXT}, s{S_UXT}, 1")
        a(f"s_min_u32 s{S_T3}, s{S_UXT}, 64")
        wait_words(a, f"{pfx}_WUX{a.uid}", S_WS, V_UXA, V_T, S_T3, S_UXC, 1, S_T2, 23)
    for t in range(nt):
        a(f"buffer_load_dwordx4 {vr(V_UXF+4*t)}, v{V_L16}, s[{S_WS}:{S_WS+3}], s{S_UXG} offen offset:{t*1024} sc1")
    a(f"s_add_u32 s{S_UXG}, s{S_UXG}, {32*40*1024}")

def idle_phase(a, w, woq):
    if OPT('UXRD', 0):
        a(f"v_add_u32 v{V_T}, s{S_KVR}, v{V_L16}")
        for f in range(12):
            a(f"ds_read_b128 {vr(V_KXF+4*f)}, v{V_T} offset:{f*1024}")
        a("s_waitcnt lgkmcnt(0)")
        a(f"s_xor_b32 s{S_KVR}, s{S_KVR}, {KVX}")
        return
    nt = NT[w]
    a(f"v_add_u32 v{V_T}, s{S_KVR}, v{V_L16}")
    for f in range(12):
        a(f"ds_read_b128 {vr(V_QF+4*f)}, v{V_T} offset:{12288 + f*1024}")
        if f == 7: a("s_waitcnt lgkmcnt(4)")
    a("s_waitcnt lgkmcnt(0)")
    for f in range(12):
        a(f"ds_read_b128 {vr(V_KXF+4*f)}, v{V_T} offset:{f*1024}")
    for p in range(6):
        for t in range(nt):
            for tt in range(2):
                d = V_UA + 8*t + 4*tt
                c = "0" if p == 0 else vr(d)
                a(f"v_mfma_f32_16x16x32_bf16 {vr(d)}, {vr(V_QF+4*(tt*6+p))}, {woq(t,p)}, {c}")
    for t in range(nt):
        for k in range(4):
            tt = k >> 1
            d = V_UA + 8*t + 4*tt + 2*(k & 1)
            a(f"v_cvt_pk_bf16_f32 v{V_UXF+4*t+k}, v{d}, v{d+1}")
        a(f"s_add_u32 s{S_T}, s{S_UXG}, {t*1024}")
        if OPT('UXST', 0): a(f"buffer_store_dwordx4 {vr(V_UXF+4*t)}, v{V_L16}, s[{S_WS}:{S_WS+3}], s{S_T} offen sc1")
    a(f"s_add_u32 s{S_UXG}, s{S_UXG}, {32*40*1024}")
    a("s_waitcnt lgkmcnt(0)")
    a(f"s_xor_b32 s{S_KVR}, s{S_KVR}, {KVX}")

S_UXT=88; S_UXC=89; V_UXA=11
S_KVT=33
S_RLB=18
S_RL0=19; S_RL1=95
V_RSOL=9
S_KVC=21
def kv_dma(a, flags=False, pfx='', w=0):
    if w < 2:
        if flags:
            a.uid += 1
            a(f"s_add_u32 s{S_KVT}, s{S_KVT}, 2")
            a(f"s_min_u32 s{S_T3}, s{S_KVT}, 128")
            wait_words(a, f"{pfx}_WKV{a.uid}", S_WS, V_KVA, V_T, S_T3, 22, 2 if OPT('UXRD', 0) else 4, S_T2, 23)
        if OPT('UXRD', 0):
            for (k0, n) in ((0, 4), (4, 2)):
                a(f"s_add_u32 m0, s{S_KVL}, {w*6144 + k0*1024}")
                a(f"s_add_u32 s{S_T}, s{S_KVG}, {k0*1024}")
                for j in range(n):
                    a(f"buffer_load_dwordx4 v{V_L16}, s[{S_WS}:{S_WS+3}], s{S_T} offen offset:{j*1024} sc1 lds")
        else:
            for k in range(3):
                a(f"s_add_u32 m0, s{S_KVL}, {w*12288 + k*4096}")
                a(f"s_add_u32 s{S_T}, s{S_KVG}, {k*4096}")
                for j in range(4):
                    a(f"buffer_load_dwordx4 v{V_L16}, s[{S_WS}:{S_WS+3}], s{S_T} offen offset:{j*1024} sc1 lds")
        a(f"s_add_u32 s{S_KVG}, s{S_KVG}, {32*12288}")
    a(f"s_xor_b32 s{S_KVL}, s{S_KVL}, {KVX}")

def softmax_lists():
    X = V_SM; MX = V_SM+6; TM = V_SM+7; RS_ = V_SM+8; PT = V_SM+12; PM = V_SM+10; T2 = V_SM+16
    L = []
    for r in range(4): L.append(f"v_cndmask_b32 v{X+r}, v{V_S+4+r}, v{V_S+8+r}, s[{S_H8}:{S_H8+1}]")
    L.append(f"v_cndmask_b32 v{X+4}, v{V_S}, v{V_S+2}, s[{S_H8}:{S_H8+1}]")
    L.append(f"v_cndmask_b32 v{X+5}, v{V_S+1}, v{V_S+3}, s[{S_H8}:{S_H8+1}]")
    L.append(f"v_max3_f32 v{MX}, v{X}, v{X+1}, v{X+2}")
    L.append(f"v_max3_f32 v{TM}, v{X+3}, v{X+4}, v{X+5}")
    L.append(f"v_max_f32 v{MX}, v{MX}, v{TM}")
    L.append(f"v_max_f32_dpp v{MX}, v{MX}, v{MX} row_ror:8 row_mask:0xf bank_mask:0xf")
    L += [f"v_mov_b32 v{TM}, v{MX}", f"v_permlane16_swap_b32 v{MX}, v{TM}", f"v_max_f32 v{MX}, v{MX}, v{TM}"]
    L += [f"v_mov_b32 v{TM}, v{MX}", f"v_permlane32_swap_b32 v{MX}, v{TM}", f"v_max_f32 v{MX}, v{MX}, v{TM}"]
    L.append(f"v_mul_f32 v{MX}, s{S_SCALE}, v{MX}")
    for j in range(6): L.append(f"v_fma_f32 v{X+j}, v{X+j}, s{S_SCALE}, -v{MX}")
    for j in range(6): L.append(f"v_exp_f32 v{X+j}, v{X+j}")
    L.append(f"v_cvt_pk_bf16_f32 v{PT}, v{X}, v{X+1}")
    L.append(f"v_cvt_pk_bf16_f32 v{PT+1}, v{X+2}, v{X+3}")
    L.append(f"v_cvt_pk_bf16_f32 v{PM}, v{X+4}, v{X+5}")
    L.append(f"v_mov_b32_dpp v{PT+2}, v{PT} row_ror:8 row_mask:0xf bank_mask:0xf")
    L.append(f"v_mov_b32_dpp v{PT+3}, v{PT+1} row_ror:8 row_mask:0xf bank_mask:0xf")
    L.append(f"v_mov_b32_dpp v{PM+1}, v{PM} row_ror:8 row_mask:0xf bank_mask:0xf")
    M = [f"v_cndmask_b32 v{X+4}, v{X+4}, v{V_ZERO}, s[{S_HI32}:{S_HI32+1}]",
         f"v_cndmask_b32 v{X+5}, v{X+5}, v{V_ZERO}, s[{S_HI32}:{S_HI32+1}]",
         f"v_add_f32 v{RS_}, v{X}, v{X+1}", f"v_add_f32 v{TM}, v{X+2}, v{X+3}", f"v_add_f32 v{RS_+1}, v{X+4}, v{X+5}",
         f"v_add_f32 v{RS_}, v{RS_}, v{TM}", f"v_add_f32 v{RS_}, v{RS_}, v{RS_+1}",
         f"v_add_f32_dpp v{RS_}, v{RS_}, v{RS_} row_ror:8 row_mask:0xf bank_mask:0xf",
         f"v_mov_b32 v{TM}, v{RS_}", f"v_permlane16_swap_b32 v{RS_}, v{TM}", f"v_add_f32 v{RS_}, v{RS_}, v{TM}",
         f"v_mov_b32 v{TM}, v{RS_}", f"v_permlane32_swap_b32 v{RS_}, v{TM}", f"v_add_f32 v{RS_}, v{RS_}, v{TM}",
         f"v_rcp_f32 v{RS_}, v{RS_}"]
    return PT, PM, RS_, L, M

def gi(a, v):
    a(f"""v_lshlrev_b32 v{v}, 7, v{V_G}
v_and_b32 v{V_T}, 7, v{V_LANE}
v_lshlrev_b32 v{V_T}, 4, v{V_T}
v_add_u32 v{v}, v{v}, v{V_T}""")

def rs_lane(a, v):
    a(f"""v_lshrrev_b32 v{v}, 1, v{V_G}
v_lshlrev_b32 v{v}, 14, v{v}
v_and_b32 v{V_T}, 1, v{V_G}
v_lshlrev_b32 v{V_T}, 12, v{V_T}
v_add_u32 v{v}, v{v}, v{V_T}
v_and_b32 v{V_T}, 7, v{V_LANE}
v_lshlrev_b32 v{V_T}, 4, v{V_T}
v_add_u32 v{v}, v{v}, v{V_T}
s_lshl_b32 s{S_T}, s{S_H}, 7
v_add_u32 v{v}, s{S_T}, v{v}""")

def coop_load(a, w, wreg):
    stride = H*E*2
    VG, VT = V_POLL, V_POLL+1
    a(f"""v_lshrrev_b32 v{V_T}, 3, v{V_LANE}
v_add_u32 v{V_T}, {8*w}, v{V_T}
s_mov_b32 s{S_LB+1}, {stride}
v_mul_lo_u32 v{VG}, v{V_T}, s{S_LB+1}
v_and_b32 v{V_T}, 7, v{V_LANE}
v_lshlrev_b32 v{V_T}, 4, v{V_T}
v_add_u32 v{VG}, v{VG}, v{V_T}
v_bfe_u32 v{VT}, v{V_LANE}, 4, 1
v_lshlrev_b32 v{VT}, 4, v{VT}
v_bfe_u32 v{V_T}, v{V_LANE}, 5, 1
v_lshlrev_b32 v{V_T}, 3, v{V_T}
v_add_u32 v{VT}, v{VT}, v{V_T}
v_bfe_u32 v{V_T}, v{V_LANE}, 2, 1
v_add_u32 v{VT}, v{VT}, v{V_T}
v_bfe_u32 v{V_T}, v{V_LANE}, 3, 1
v_lshlrev_b32 v{V_T}, 2, v{V_T}
v_add_u32 v{VT}, v{VT}, v{V_T}
v_lshlrev_b32 v{VT}, 7, v{VT}
v_and_b32 v{V_T}, 3, v{V_LANE}
v_lshlrev_b32 v{V_T}, 3, v{V_T}
v_add_u32 v{VT}, v{VT}, v{V_T}
s_mul_i32 s{S_COL}, s{S_H}, 384
s_mul_i32 s{S_T}, s{S_C}, 96
s_add_u32 s{S_COL}, s{S_COL}, s{S_T}
v_add_u32 v{VT+1}, 61440, v{VT}""")
    srds = (S_WQ, S_WK, S_WV)
    def issue(ph):
        buf = (ph & 1)*61440
        for pp in range(5):
            p = 5*ph + pp
            for m in range(3):
                a(f"s_add_u32 s{S_T}, s{S_COL}, {p*32*stride}")
                a(f"s_mov_b32 m0, {buf + (pp*3+m)*4096 + w*1024}")
                a(f"buffer_load_dwordx4 v{VG}, s[{srds[m]}:{srds[m]+3}], s{S_T} offen lds")
    issue(0); issue(1)
    for ph in range(4):
        a(f"s_waitcnt vmcnt({15 if ph < 3 else 0})")
        a("s_barrier")
        buf = (ph & 1)*61440
        n = 0
        for pp in range(5):
            p = 5*ph + pp
            if w < 3: items = [(0, w, p), (1, w, 20+p)]
            else: items = [(2, t, t*20+p) for t in range(3)]
            for (m, T, f) in items:
                o = buf + (pp*3+m)*4096 + T*32
                reg = VT if o + 256 < 65536 else VT+1
                oo = o if reg == VT else o - 61440
                a(f"ds_read_b64_tr_b16 {wreg.pair(f,0)}, v{reg} offset:{oo}")
                a(f"ds_read_b64_tr_b16 {wreg.pair(f,1)}, v{reg} offset:{oo+256}")
                n += 2
                if n % 12 == 0: a("s_waitcnt lgkmcnt(4)")
        a("s_waitcnt lgkmcnt(0)")
        a("s_barrier")
        if ph == 0: pass
        if ph + 2 < 4: issue(ph+2)

def main_wave(a, w, flags=False):
    pfx = f"RM{w}"
    nt = NT[w]
    wreg = WReg(0, 256, 0)
    mem0_load(a, w)
    w8 = lambda t, K: ar((t*20 + 2*K)*4, 8)
    woq = lambda t, p: wreg.quad(40 + t*6 + p)
    a(f"s_lshl_b32 s{S_LB}, s{S_WAVE}, 15")
    if OPT('COOP', 1):
        coop_load(a, w, wreg)
    else:
        a(f"""s_mul_i32 s{S_COL}, s{S_H}, 384
s_mul_i32 s{S_T}, s{S_C}, 96
s_add_u32 s{S_COL}, s{S_COL}, s{S_T}
s_add_u32 s{S_COL}, s{S_COL}, {w*32}""")
        units = []
        for p in range(20): units += [(S_WQ, S_COL, p*32*H*E*2), (S_WK, S_COL, p*32*H*E*2)]
        load_w2(a, units, lambda u, T, k: wreg.pair((u & 1)*20 + (u >> 1), k), 1, H*E*2, 2, V_LANE, V_POLL, V_POLL+1, V_T, S_T, S_LB)
    a(f"""s_mul_i32 s{S_COL}, s{S_H}, {192*1280}
s_mul_i32 s{S_T}, s{S_C}, 320
s_add_u32 s{S_COL}, s{S_COL}, s{S_T}
s_add_u32 s{S_COL}, s{S_COL}, {T0[w]*32}""")
    ng = nt//2
    units = [(S_WO, S_COL, g*64 + p*32*1280) for p in range(6) for g in range(ng)]
    load_w2(a, units, lambda u, T, k: wreg.pair(40 + ((u % ng)*2 + T)*6 + u // ng, k), 2, D*2, True, V_LANE, V_POLL, V_POLL+1, V_T, S_T, S_LB)
    if OPT('STAMP', 0): a("s_memtime s[78:79]\ns_waitcnt lgkmcnt(0)\ns_sub_u32 s95, s78, s100")
    common_setup(a, w)
    gi(a, V_KMS)
    a(f"v_add_u32 v{V_KMS}, {w*1024}, v{V_KMS}")
    a(f"""v_lshrrev_b32 v{V_AST}, 1, v{V_G}
v_mul_u32_u24 v{V_AST}, 3072, v{V_AST}
v_lshlrev_b32 v{V_T}, 4, v{V_N}
v_add_u32 v{V_AST}, v{V_AST}, v{V_T}
v_and_b32 v{V_T}, 1, v{V_G}
v_lshlrev_b32 v{V_T}, 3, v{V_T}
v_add_u32 v{V_AST}, v{V_AST}, v{V_T}
s_mul_i32 s{S_T}, s{S_C}, 3
s_add_u32 s{S_T}, s{S_T}, {w}
s_lshl_b32 s{S_T}, s{S_T}, 8
s_mul_i32 s{S_T2}, s{S_H}, 9216
s_add_u32 s{S_T}, s{S_T}, s{S_T2}
v_add_u32 v{V_AST}, s{S_T}, v{V_AST}""")
    nearmap_v(a, V_AST, V_T)
    a(f"""s_add_u32 s{S_T}, s{S_T2}, {w*2048}
v_add_u32 v{V_APO}, s{S_T}, v{V_L16}
v_add_u32 v{V_APO+1}, 1024, v{V_APO}
v_add_u32 v{V_APL}, {L_QKV + w*2048}, v{V_L16}""")
    nearmap_v(a, V_APO, V_T); nearmap_v(a, V_APO+1, V_T)
    a(f"""v_lshlrev_b32 v{V_RQ}, 2, v{V_G}
v_bfe_u32 v{V_T}, v{V_LANE}, 2, 2
v_add_u32 v{V_RQ}, v{V_RQ}, v{V_T}
v_lshlrev_b32 v{V_RQ}, 4, v{V_RQ}
v_and_b32 v{V_T}, 1, v{V_LANE}
v_lshlrev_b32 v{V_T}, 3, v{V_T}
v_add_u32 v{V_RQ}, v{V_RQ}, v{V_T}
v_add_u32 v{V_RQ}, {L_QKV}, v{V_RQ}""")
    a(f"""v_bfe_u32 v{V_RV}, v{V_LANE}, 5, 1
v_lshlrev_b32 v{V_RV}, 5, v{V_RV}
v_bfe_u32 v{V_T}, v{V_LANE}, 4, 1
v_lshlrev_b32 v{V_T}, 3, v{V_T}
v_add_u32 v{V_RV}, v{V_RV}, v{V_T}
v_bfe_u32 v{V_T}, v{V_LANE}, 2, 1
v_add_u32 v{V_RV}, v{V_RV}, v{V_T}
v_bfe_u32 v{V_T}, v{V_LANE}, 3, 1
v_lshlrev_b32 v{V_T}, 4, v{V_T}
v_add_u32 v{V_RV}, v{V_RV}, v{V_T}
v_bfe_u32 v{V_T}, v{V_LANE}, 1, 1
v_lshlrev_b32 v{V_T}, 1, v{V_T}
v_add_u32 v{V_RV}, v{V_RV}, v{V_T}
v_lshlrev_b32 v{V_RV}, 4, v{V_RV}
v_and_b32 v{V_T}, 1, v{V_LANE}
v_lshlrev_b32 v{V_T}, 3, v{V_T}
v_add_u32 v{V_RV}, v{V_RV}, v{V_T}
v_add_u32 v{V_RV}, {L_QKV+6144}, v{V_RV}""")
    rs_lane(a, V_RSO)
    rs_local_lane(a, V_RSOL)
    for P in range(nt//2):
        a(f"""s_lshr_b32 s{76+P}, s{S_J}, 5
s_mul_i32 s{76+P}, s{76+P}, 81920
s_mul_i32 s{S_T}, s{S_C}, {5*4096}
s_add_u32 s{76+P}, s{76+P}, s{S_T}
s_add_u32 s{76+P}, s{76+P}, {(P0[w]+P)*4096}""")
        smap(a, 76+P, S_T)
    a(f"""s_mul_i32 s{S_RSB}, s{S_C}, {5*32768}
s_add_u32 s{S_RSB}, s{S_RSB}, {nearmap(RS_LOG) + P0[w]*32768}
s_mul_i32 s{S_T}, s{S_H}, 12288
s_add_u32 s{S_KVG}, s{S_T}, {(KX + w*6144) if OPT('UXRD', 0) else (KX if w == 0 else VX)}
s_mul_i32 s{S_T}, s{S_H}, 40
s_mul_i32 s{S_T2}, s{S_C}, 10
s_add_u32 s{S_T}, s{S_T}, s{S_T2}
s_add_u32 s{S_T}, s{S_T}, {T0[w]}
s_lshl_b32 s{S_UXG}, s{S_T}, 10
s_add_u32 s{S_UXG}, s{S_UXG}, {UX}
s_lshl_b32 s{S_UYG}, s{S_T}, 8
s_add_u32 s{S_UYG}, s{S_UYG}, {UY}
s_mul_i32 s{S_KMG}, s{S_H}, 3072
s_add_u32 s{S_KMG}, s{S_KMG}, {KM}
s_mov_b32 s{S_KVL}, {L_KV}
s_mov_b32 s{S_KVR}, {L_KV}
s_lshl_b32 s{S_FLG}, s{S_J}, 7
s_add_u32 s{S_FLG}, s{S_FLG}, {F_REC}""")
    if w == 2:
        a(f"""s_and_b32 s{S_COL}, s{S_J}, 31
s_cmp_lt_u32 s{S_COL}, 16
s_cselect_b32 s{S_RED}, 1, 0
s_add_u32 s{S_COL}, s{S_COL}, 64""")
        blk_off(a, S_COL, S_RSP, S_T)
        loc_off(a, S_COL, 72, S_T)
        a(f"""s_lshr_b32 s{S_T}, s{S_J}, 5
s_mul_i32 s{S_T}, s{S_T}, 10240
s_add_u32 s{S_T}, s{S_T}, {AG_LOG}
s_lshl_b32 s{S_T3}, s{S_COL}, 7
s_add_u32 s{S_T}, s{S_T}, s{S_T3}
v_add_u32 v{V_AGS}, s{S_T}, v{V_L16}""")
        nearmap_v(a, V_AGS, V_T)
        oob_mask(a, V_AGS, 8)
        sel_setup(a, 240)
    if flags:
        a(f"""s_mul_i32 s{S_T}, s{S_H}, 6
s_lshr_b32 s{S_T2}, s{S_T}, 3
s_add_u32 s{S_T}, s{S_T}, 5
s_lshr_b32 s{S_T}, s{S_T}, 3
v_mov_b32 v{V_KVA}, s{S_T}
v_mov_b32 v{V_T}, s{S_T2}
v_and_b32 v{V_T2}, 1, v{V_LANE}
v_cmp_eq_u32 vcc, 0, v{V_T2}
v_cndmask_b32 v{V_KVA}, v{V_KVA}, v{V_T}, vcc
v_cmp_lt_u32 vcc, 1, v{V_LANE}
v_mov_b32 v{V_T}, {R_V0 if not OPT('UXRD', 0) else 0}
v_cndmask_b32 v{V_T}, 0, v{V_T}, vcc
v_add_u32 v{V_KVA}, v{V_KVA}, v{V_T}
v_lshlrev_b32 v{V_KVA}, {PSH}, v{V_KVA}
v_add_u32 v{V_KVA}, {F_PROG}, v{V_KVA}
s_mov_b32 s{S_KVT}, 0
s_mov_b32 s22, 0
s_add_u32 s{S_T}, s{S_H}, {R_U0}
s_lshl_b32 s{S_T}, s{S_T}, {PSH}
s_add_u32 s{S_T}, s{S_T}, {F_PROG}
v_mov_b32 v{V_UXA}, s{S_T}""")
    if flags and w == 0: trace(a, 1, S_J)
    read_polarity(a, pfx)
    if flags and w == 0: trace(a, 2, S_J)
    a("s_barrier")
    mem0_stage(a, w)
    a(f"s_mov_b32 s{S_UXT}, 0\ns_mov_b32 s{S_UXC}, 0")
    kv_dma(a, flags, pfx, w)
    if flags and w == 0: trace(a, 3, S_J)
    a("s_waitcnt vmcnt(0) lgkmcnt(0)")
    a("s_barrier")
    idle_phase(a, w, woq)
    if flags and w == 0:
        dbgt(a, 40, op="max")
        trace(a, 4, S_J)
        if int(os.environ.get('TRACE', 0)):
            a("s_memtime s[86:87]\ns_waitcnt lgkmcnt(0)")
            trace(a, 6, S_J, val=86)
    stamp(a, 0)
    if OPT('STAMP', 0): a(f"s_waitcnt lgkmcnt(0)\ns_sub_u32 s101, s{S_TS}, s100")
    pfx0 = pfx
    a(f"s_cmp_eq_u32 s{S_MODE}, 0")
    a(f"s_cbranch_scc1 {pfx0}S_B0")
    a(f"s_branch {pfx0}F_B0")
    for mode in (1, 0):
        CURMODE[0] = mode
        pfx = pfx0 + ("F" if mode else "S")
        main_loop(a, w, flags, pfx, nt, w8, woq)
    CURMODE[0] = None

def main_loop(a, w, flags, pfx, nt, w8, woq):
    wo8 = lambda t, K: ar((40 + t*6 + 2*K)*4, 8)
    a.label(f"{pfx}_LOOP")
    stamp(a, 0)
    if w == 2: ag_poll(a, pfx, w)
    a.label(f"{pfx}_B0")
    a("s_waitcnt lgkmcnt(0)")
    a("s_barrier")
    mark(a, S_REF0)
    stamp(a, 1)
    proj_stage(a, 2, w8)
    for x in pack_pair(V_ACC, V_ACC+4, V_PK): a(x)
    store_mode(a, [f"buffer_store_dwordx2 {vr(V_PK,2)}, v{V_AST}, s[{S_WS}:{S_WS+3}], s{S_CUR} offen SCX"])
    stamp(a, 2)
    if w < 2 or OPT('UXRD', 0):
        a(f"s_cmp_lg_u32 s{S_STEP}, 0")
        a(f"s_cbranch_scc1 {pfx}_NOS1")
        if w < 2: kv_dma(a, flags, pfx, w)
        if OPT('UXRD', 0): ux_load(a, w, flags, pfx)
        a.label(f"{pfx}_NOS1")
    for t in range(nt):
        for r in range(4): a(f"v_mov_b32 v{V_Y+4*t+r}, 0")
    wait_mode(a, S_REF0, OPT('T_AF', 0), OPT('T_A', 1150))
    def mkA(b): return [f"buffer_load_dwordx4 {vr(b+4*k)}, v{V_APO+k}, s[{S_WS}:{S_WS+3}], s{S_CUR} offen sc1" for k in range(2)]
    def stA(b):
        a(f"ds_write_b128 v{V_APL}, {vr(b)}")
        a(f"ds_write_b128 v{V_APL}, {vr(b+4)} offset:1024")
    if CURMODE[0] and OPT('POLL2', 0):
        poll2(a, f"{pfx}_AP", mkA, 8, V_POLL, V_POLL+8, 93, stA, gap=OPT('GAPA', 2))
    else:
        poll_loop(a, f"{pfx}_AP", mkA(V_POLL), 8, 93)
        stA(V_POLL)
    a("s_waitcnt lgkmcnt(0)")
    stamp(a, 3)
    a("s_barrier")
    stamp(a, 4)
    reads = []
    for p in range(6):
        for (reg, typ) in ((V_QF, 0), (V_KF, 1)):
            for k in range(2):
                reads.append(f"ds_read_b64_tr_b16 {vr(reg+4*p+2*k,2)}, v{V_RQ} offset:{typ*3072 + (2*p+k)*256}")
    vreads = [f"ds_read_b64_tr_b16 {vr(V_VF+4*K+2*k,2)}, v{V_RV} offset:{K*1024 + k*64}" for K in range(3) for k in range(2)]
    TWOB = OPT('TWOB', 1)
    if not TWOB: reads += vreads
    issued = 0
    def iss(n):
        nonlocal issued
        for _ in range(n):
            if issued < len(reads): a(reads[issued]); issued += 1
    iss(12)
    for p in range(6):
        a(f"s_waitcnt lgkmcnt({issued - (4*p+4)})")
        for u, A_ in enumerate((vr(V_KXF+4*p), vr(V_KXF+4*(6+p)), vr(V_KF+4*p))):
            d = V_S + (4 if u == 0 else 8 if u == 1 else 0)
            c = "0" if p == 0 else vr(d)
            a(f"v_mfma_f32_16x16x32_bf16 {vr(d)}, {A_}, {vr(V_QF+4*p)}, {c}")
        iss(4)
    if TWOB:
        a("s_barrier")
        if w == 2: mark(a, 96)
        for x in vreads: a(x)
    stamp(a, 5)
    ym = []
    for K in range(3):
        for t in range(nt):
            pre = f"s_waitcnt lgkmcnt({6 - (2*K + 2)})\n" if t == 0 else ""
            ym.append(pre + f"v_smfmac_f32_16x16x64_bf16 {vr(V_Y+4*t)}, {vr(V_VF+4*K)}, {wo8(t,K)}, v{V_IDX}")
    PT, PM, RS_, L1, L2 = softmax_lists()
    yc = [f"v_cvt_pk_bf16_f32 v{V_YF+2*t+k}, v{V_Y+4*t+2*k}, v{V_Y+4*t+2*k+1}" for t in range(nt) for k in range(2)]
    step = max(1, (len(L1)-6) // len(ym))
    for i, x in enumerate(L1):
        if ym and i >= 2 and (i-2) % step == 0: a(ym.pop(0))
        a(x)
    while ym: a(ym.pop(0))
    for t in range(nt):
        a(f"v_mfma_f32_16x16x32_bf16 {vr(V_PU+4*t)}, {vr(V_UXF+4*t)}, {vr(PT)}, 0")
        for _ in range(2):
            if yc: a(yc.pop(0))
    for t in range(nt):
        a(f"v_mfma_f32_16x16x16_bf16 {vr(V_PU+4*t)}, {vr(V_YF+2*t,2)}, {vr(PM,2)}, {vr(V_PU+4*t)}")
        for _ in range(4):
            if L2: a(L2.pop(0))
    while L2: a(L2.pop(0))
    a(f"v_mov_b32 v{RS_+1}, v{RS_}")
    for t in range(nt):
        for r in range(0, 4, 2): a(f"v_pk_mul_f32 {vr(V_PU+4*t+r,2)}, {vr(V_PU+4*t+r,2)}, {vr(RS_,2)}")
    for t in range(nt):
        a(f"v_cvt_pk_bf16_f32 v{V_RSP+2*t}, v{V_PU+4*t}, v{V_PU+4*t+1}")
        a(f"v_cvt_pk_bf16_f32 v{V_RSP+2*t+1}, v{V_PU+4*t+2}, v{V_PU+4*t+3}")
    a(f"s_add_u32 s{S_T}, s{S_CUR}, s{S_RSB}")
    a(f"s_mov_b64 exec, s[{S_M8}:{S_M8+1}]")
    for P in range(nt//2):
        if P > 0: a(f"s_add_u32 s{S_T}, s{S_T}, 32768")
        a(f"buffer_store_dwordx4 {vr(V_RSP+4*P)}, v{V_RSO}, s[{S_WS}:{S_WS+3}], s{S_T} offen sc1")
    if CURMODE[0] and RSLOC():
        a(f"s_xor_b32 s74, s{S_CUR}, 8192")
        for P in range(nt//2):
            a(f"s_add_u32 s{S_T}, s{76+P}, s74")
            a(f"buffer_store_dwordx4 {vr(V_RSP+4*P)}, v{V_RSOL}, s[{S_WS}:{S_WS+3}], s{S_T} offen")
    stamp(a, 6)
    a("s_mov_b64 exec, -1")
    if (w < 2 or OPT('UXRD', 0)) and not OPT('NODMA', 0):
        a(f"s_cmp_eq_u32 s{S_STEP}, 63")
        a(f"s_cbranch_scc1 {pfx}_NODMA")
        if OPT('UXRD', 0): ux_load(a, w, flags, pfx)
        if w < 2: kv_dma(a, flags, pfx, w)
        a.label(f"{pfx}_NODMA")
    a(f"s_mov_b64 exec, s[{S_M8}:{S_M8+1}]")
    a(f"s_cmp_lg_u32 s{S_C}, 0")
    a(f"s_cbranch_scc1 {pfx}_NOKM")
    for k in range(2 if not OPT('NOKM', 0) else 0):
        a(f"buffer_store_dwordx4 {vr(V_KF+4*(2*w+k))}, v{V_KMS}, s[{S_WS}:{S_WS+3}], s{S_KMG} offen offset:{k*512} sc1")
    a.label(f"{pfx}_NOKM")
    a("s_mov_b64 exec, -1")
    a(f"s_add_u32 s{S_KMG}, s{S_KMG}, {32*3072}")
    for t in range(nt):
        for r in range(4): a(f"v_mov_b32 v{V_PU+r}, v{V_Y+4*t+r}")
        for r in range(4): a(f"v_permlane32_swap_b32 v{V_Y+4*t+r}, v{V_PU+r}")
        for r in range(4): a(f"v_add_f32 v{V_Y+4*t+r}, v{V_Y+4*t+r}, v{V_PU+r}")
        a(f"v_cvt_pk_bf16_f32 v{V_YF+2*t}, v{V_Y+4*t}, v{V_Y+4*t+1}")
        a(f"v_cvt_pk_bf16_f32 v{V_YF+2*t+1}, v{V_Y+4*t+2}, v{V_Y+4*t+3}")
    a("s_mov_b32 exec_hi, 0")
    for t in range(nt if not OPT('NOUY', 0) else 0):
        a(f"buffer_store_dwordx2 {vr(V_YF+2*t,2)}, v{V_L4}, s[{S_WS}:{S_WS+3}], s{S_UYG} offen offset:{t*256} sc1")
    a("s_mov_b64 exec, -1")
    a(f"s_add_u32 s{S_UYG}, s{S_UYG}, {32*40*256}")
    if w == 2 and not OPT('NOFLG', 0):
        a(f"v_mov_b32 v{V_T}, s{S_STEP}")
        a("s_mov_b64 exec, 1")
        a(f"buffer_store_dword v{V_T}, v{V_ZERO}, s[{S_WS}:{S_WS+3}], s{S_FLG} offen sc1")
        a(f"s_cmp_lg_u32 s{S_J}, 0")
        a(f"s_cbranch_scc1 {pfx}_NOPROG")
        a(f"s_mov_b32 s{S_T}, {F_RPROG}")
        a(f"buffer_store_dword v{V_T}, v{V_ZERO}, s[{S_WS}:{S_WS+3}], s{S_T} offen sc1")
        a.label(f"{pfx}_NOPROG")
        a("s_mov_b64 exec, -1")
    a(f"s_add_u32 s{S_STEP}, s{S_STEP}, 1")
    a(f"s_cmp_ge_u32 s{S_STEP}, 64")
    a(f"s_cbranch_scc1 {pfx}_DONE")
    stamp(a, 7)
    idle_phase(a, w, woq)
    if w == 2:
        a(f"s_cmp_eq_u32 s{S_RED}, 0")
        a(f"s_cbranch_scc1 {pfx}_NORED")
        wait_until(a, 96, OPT('T_RS', 1150))
        a(f"s_add_u32 s{S_T2}, s{S_CUR}, s{S_RSP}")
        reduce_blocks(a, pfx, 1, 240, 48, (S_T2,), V_AGS, 64, 80, s_loc0=(72,), s_loc=(74,), sqbase=64)
        a.label(f"{pfx}_NORED")
    rotate_slots(a)
    stamp_acc(a)
    if w == 2: mark(a, S_REF2)
    a(f"s_branch {pfx}_LOOP")
    a.label(f"{pfx}_DONE")
    a("s_waitcnt vmcnt(0)")
    a("s_barrier")
    if flags and w == 0:
        dbgt(a, 44, op="max")
        trace(a, 5, S_J)
        if int(os.environ.get('TRACE', 0)):
            a("s_memtime s[86:87]\ns_waitcnt lgkmcnt(0)")
            trace(a, 7, S_J, val=86)
    if w == 2:
        a(f"v_mov_b32 v{V_T}, 64")
        a("s_mov_b64 exec, 1")
        a(f"buffer_store_dword v{V_T}, v{V_ZERO}, s[{S_WS}:{S_WS+3}], s{S_FLG} offen sc1")
        a(f"s_cmp_lg_u32 s{S_J}, 0")
        a(f"s_cbranch_scc1 {pfx}_NOPROG2")
        a(f"s_mov_b32 s{S_T}, {F_RPROG}")
        a(f"buffer_store_dword v{V_T}, v{V_ZERO}, s[{S_WS}:{S_WS+3}], s{S_T} offen sc1")
        a.label(f"{pfx}_NOPROG2")
        a("s_waitcnt vmcnt(0)")
        a("s_mov_b64 exec, -1")
    stamp_out(a, w)
    a("s_endpgm")

def stamp_acc(a):
    if not OPT('STAMP', 0): return
    a(f"s_memtime s[{S_TS+16}:{S_TS+17}]")
    a("s_waitcnt lgkmcnt(0)")
    for k in range(8):
        a(f"s_sub_u32 s{S_T}, s{S_TS+2*k+2}, s{S_TS+2*k}")
        a(f"s_add_u32 s{80+k}, s{80+k}, s{S_T}")

def stamp_out(a, w):
    if not OPT('STAMP', 0): return
    a.uid += 1
    L = f"STO_{w}_{a.uid}"
    a(f"""s_cmp_lg_u32 s{S_J}, {OPT('STAMPROLE', 0)}
s_cbranch_scc1 {L}
s_waitcnt lgkmcnt(0)
s_load_dwordx2 s[96:97], s[0:1], {KA['dbg']}
s_waitcnt lgkmcnt(0)
s_mov_b64 exec, 1""")
    for k in range(8):
        a(f"v_mov_b32 v10, s{80+k}\nv_mov_b32 v11, {64 + w*48 + k*4}\nglobal_store_dword v11, v10, s[96:97]\ns_waitcnt vmcnt(0)")
    if w == 0:
        a(f"v_mov_b32 v10, s95\nv_mov_b32 v11, 40\nglobal_store_dword v11, v10, s[96:97]\ns_waitcnt vmcnt(0)")
        a(f"v_mov_b32 v10, s101\nv_mov_b32 v11, 44\nglobal_store_dword v11, v10, s[96:97]\ns_waitcnt vmcnt(0)")
    for k in range(3):
        a(f"v_mov_b32 v10, s{92+k}\nv_mov_b32 v11, {64 + w*48 + 32 + k*4}\nglobal_store_dword v11, v10, s[96:97]\ns_waitcnt vmcnt(0)")
    a.label(L)

def common_setup(a, w):
    a(f"""v_lshlrev_b32 v{V_L16}, 4, v{V_LANE}
v_lshlrev_b32 v{V_L4}, 3, v{V_LANE}
v_mov_b32 v{V_ZERO}, 0
s_mov_b32 s{S_M8}, 0x00ff00ff
s_mov_b32 s{S_M8+1}, 0x00ff00ff
s_mov_b32 s{S_H8}, 0xff00ff00
s_mov_b32 s{S_H8+1}, 0xff00ff00
s_mov_b32 s{S_HI32}, 0
s_mov_b32 s{S_HI32+1}, -1
v_mov_b32 v{V_NINF}, 0xff800000
s_mov_b32 s{S_MQ}, 0x0000ffff
s_mov_b32 s{S_MQ+1}, 0x0000ffff
v_mov_b32 v{V_IDX}, 0x44444444
v_mov_b32 v{V_T}, 0xeeeeeeee
v_cndmask_b32 v{V_IDX}, v{V_IDX}, v{V_T}, s[{S_H8}:{S_H8+1}]
s_mov_b32 s{S_SCALE}, 0x{f2u(192**-0.5*1.4426950408889634):08x}
s_mov_b32 s{S_MAXR}, {OPT('MAXRETRY', 400000)}
s_mov_b32 s{S_STEP}, 0""")
    for k in range(8): a(f"s_mov_b32 s{80+k}, 0")
    for k in range(92, 95): a(f"s_mov_b32 s{k}, 0")
    if w >= 2:
        a(f"s_lshr_b32 s{S_T}, s{S_J}, 5")
        a(f"s_mul_i32 s{S_T}, s{S_T}, 10240")
        a(f"s_add_u32 s{S_T}, s{S_T}, {AG_LOG + (w-2)*5120}")
        for k in range(5):
            a(f"v_add_u32 v{V_AGP+k}, s{S_T}, v{V_L16}")
            if k: a(f"v_add_u32 v{V_AGP+k}, {k*1024}, v{V_AGP+k}")
            nearmap_v(a, V_AGP+k, V_T2)
    a(f"v_add_u32 v{V_AGL}, {L_MEM + w*2560}, v{V_L16}")

V_M0 = 200
def mem0_stage(a, w):
    a(f"ds_write_b128 v{V_AGL}, {vr(V_M0)}")
    a(f"ds_write_b128 v{V_AGL}, {vr(V_M0+4)} offset:1024")
    a("s_mov_b32 exec_hi, 0")
    a(f"ds_write_b128 v{V_AGL}, {vr(V_M0+8)} offset:2048")
    a("s_mov_b64 exec, -1")

def mem0_load(a, w):
    for k in range(3):
        a(f"""v_add_u32 v{V_T}, {160*w + 64*k}, v{V_LANE}
v_and_b32 v{V_T2}, 7, v{V_T}
v_mul_u32_u24 v{V_T2}, 1280, v{V_T2}
v_lshrrev_b32 v{V_M0+12}, 5, v{V_T}
v_lshlrev_b32 v{V_M0+12}, 6, v{V_M0+12}
v_add_u32 v{V_T2}, v{V_T2}, v{V_M0+12}
v_bfe_u32 v{V_T}, v{V_T}, 3, 2
v_lshlrev_b32 v{V_T}, 3, v{V_T}
v_add_u32 v{V_T}, v{V_T}, v{V_T2}""")
        a(f"buffer_load_dwordx2 {vr(V_M0+4*k,2)}, v{V_T}, s[{S_M0}:{S_M0+3}], 0 offen")
        a(f"buffer_load_dwordx2 {vr(V_M0+4*k+2,2)}, v{V_T}, s[{S_M0}:{S_M0+3}], 0 offen offset:32")

def service_wave(a):
    w = 3; pfx = "RS3"
    wreg = WReg(0, 256, 0)
    mem0_load(a, w)
    a(f"s_lshl_b32 s{S_LB}, s{S_WAVE}, 15")
    if OPT('COOP', 1):
        coop_load(a, w, wreg)
    else:
        a(f"""s_mul_i32 s{S_COL}, s{S_H}, 384
s_mul_i32 s{S_T}, s{S_C}, 96
s_add_u32 s{S_COL}, s{S_COL}, s{S_T}""")
        units = [(S_WV, S_COL, t*32 + p*32*H*E*2) for p in range(20) for t in range(3)]
        load_w2(a, units, lambda u, T, k: wreg.pair((u % 3)*20 + u // 3, k), 1, H*E*2, 2, V_LANE, V_POLL, V_POLL+1, V_T, S_T, S_LB)
    common_setup(a, w)
    PQ = V_KXF; PV_ = V_KXF+2; R = V_KXF+6; SEL = V_KXF+8; ONES = V_KXF+12; AGZ = V_KXF+7; RSO2 = V_KXF+5
    a(f"""v_lshrrev_b32 v{V_AST}, 1, v{V_G}
v_lshlrev_b32 v{V_AST}, 8, v{V_AST}
v_lshlrev_b32 v{V_T}, 4, v{V_N}
v_add_u32 v{V_AST}, v{V_AST}, v{V_T}
v_and_b32 v{V_T}, 1, v{V_G}
v_lshlrev_b32 v{V_T}, 3, v{V_T}
v_add_u32 v{V_AST}, v{V_AST}, v{V_T}
v_lshlrev_b32 v{V_AST+1}, 4, v{V_N}
v_add_u32 v{V_AST+1}, v{V_AST+1}, v{V_T}
s_mul_i32 s{S_T2}, s{S_H}, 9216
s_mul_i32 s{S_T}, s{S_C}, 768
s_add_u32 s{S_T}, s{S_T}, s{S_T2}
v_add_u32 v{PQ}, s{S_T}, v{V_L16}
v_add_u32 v{PQ+1}, 3072, v{PQ}
v_add_u32 v{PV_}, 6144, v{PQ}
s_add_u32 s{S_T}, s{S_T}, 6144
v_add_u32 v{V_AST}, s{S_T}, v{V_AST}
v_add_u32 v{V_AST+1}, s{S_T}, v{V_AST+1}
v_add_u32 v{V_AST+1}, 512, v{V_AST+1}""")
    for r in (V_AST, V_AST+1, PV_, PQ, PQ+1): nearmap_v(a, r, V_T)
    oob_mask(a, PV_, 48); oob_mask(a, PQ+1, 48); oob_mask(a, PQ, 48); oob_mask(a, V_AST+1, 32)
    for k in range(3):
        a(f"v_add_u32 v{V_APO+k}, s{S_T2}, v{V_L16}")
        a(f"v_add_u32 v{V_APO+k}, {6144 + k*1024}, v{V_APO+k}")
        nearmap_v(a, V_APO+k, V_T)
    a(f"v_add_u32 v{V_APL}, {L_QKV + 6144}, v{V_L16}")
    rs_lane(a, R)
    a(f"""s_mul_i32 s{S_RSB}, s{S_C}, {5*32768}
s_add_u32 s{S_RSB}, s{S_RSB}, {nearmap(RS_LOG)}
s_and_b32 s{S_COL}, s{S_J}, 31""")
    blk_off(a, S_COL, S_RSP, S_T)
    loc_off(a, S_COL, 72, S_T)
    a(f"s_add_u32 s{S_COL}, s{S_COL}, 32")
    blk_off(a, S_COL, S_RED, S_T)
    loc_off(a, S_COL, 73, S_T)
    rs_local_lane(a, V_RSOL)
    a(f"""s_lshr_b32 s77, s{S_J}, 5
s_mul_i32 s77, s77, 81920
s_mul_i32 s{S_T}, s{S_C}, {5*4096}
s_add_u32 s77, s77, s{S_T}""")
    a(f"""s_lshr_b32 s{S_T}, s{S_J}, 5
s_mul_i32 s{S_T}, s{S_T}, 10240
s_add_u32 s{S_T}, s{S_T}, {AG_LOG}
s_and_b32 s{S_T2}, s{S_J}, 31
s_lshl_b32 s{S_T3}, s{S_T2}, 7
s_add_u32 s{S_T}, s{S_T}, s{S_T3}
v_lshrrev_b32 v{V_AGS}, 3, v{V_LANE}
v_lshlrev_b32 v{V_AGS}, 12, v{V_AGS}
v_and_b32 v{V_T}, 7, v{V_LANE}
v_lshlrev_b32 v{V_T}, 4, v{V_T}
v_add_u32 v{V_AGS}, v{V_AGS}, v{V_T}
v_add_u32 v{V_AGS}, s{S_T}, v{V_AGS}""")
    nearmap_v(a, V_AGS, V_T)
    a(f"v_mov_b32 v{AGZ}, v{V_AGS}")
    a(f"""v_bfe_u32 v{V_AGS}, v{V_LANE}, 3, 1
v_lshlrev_b32 v{V_AGS}, 12, v{V_AGS}
v_and_b32 v{V_T}, 7, v{V_LANE}
v_lshlrev_b32 v{V_T}, 4, v{V_T}
v_add_u32 v{V_AGS}, v{V_AGS}, v{V_T}
v_lshlrev_b32 v{V_T}, 3, v{V_G}
v_add_u32 v{V_AGS}, v{V_AGS}, v{V_T}
s_lshr_b32 s{S_T}, s{S_J}, 5
s_mul_i32 s{S_T}, s{S_T}, 10240
s_add_u32 s{S_T}, s{S_T}, {AG_LOG}
s_add_u32 s{S_T}, s{S_T}, s{S_T3}
v_add_u32 v{V_AGS}, s{S_T}, v{V_AGS}""")
    nearmap_v(a, V_AGS, V_T)
    oob_mask(a, V_AGS, 32)
    a(f"""v_mov_b32 v{RSO2}, s{S_RSP}
v_mov_b32 v{V_T}, s{S_RED}
v_cndmask_b32 v{RSO2}, v{RSO2}, v{V_T}, s[{S_H8}:{S_H8+1}]
v_lshlrev_b32 v{V_T}, 7, v{V_G}
v_add_u32 v{RSO2}, v{RSO2}, v{V_T}
v_and_b32 v{V_T}, 7, v{V_LANE}
v_lshlrev_b32 v{V_T}, 4, v{V_T}
v_add_u32 v{RSO2}, v{RSO2}, v{V_T}""")
    a(f"s_cmp_lt_u32 s{S_T2}, 16")
    a(f"s_cselect_b32 s{S_T}, 24, 16")
    a(f"v_mov_b32 v{V_T}, 0x80000000")
    a(f"v_cmp_gt_u32 vcc, s{S_T}, v{V_LANE}")
    a(f"v_cndmask_b32 v{AGZ}, v{V_T}, v{AGZ}, vcc")
    sel_setup(a, SEL)
    for k in range(4): a(f"v_mov_b32 v{ONES+k}, -1")
    a(f"v_mov_b32 v{ONES+4}, 1")
    read_polarity(a, pfx)
    a("s_barrier")
    mem0_stage(a, w)
    a("s_waitcnt vmcnt(0) lgkmcnt(0)")
    a("s_barrier")
    stamp(a, 0)
    pfx0 = pfx
    a(f"s_cmp_eq_u32 s{S_MODE}, 0")
    a(f"s_cbranch_scc1 {pfx0}S_B0")
    a(f"s_branch {pfx0}F_B0")
    for mode in (1, 0):
        CURMODE[0] = mode
        pfx = pfx0 + ("F" if mode else "S")
        service_loop(a, pfx, PQ, PV_, R, SEL, ONES, AGZ, RSO2)
    CURMODE[0] = None

def service_loop(a, pfx, PQ, PV_, R, SEL, ONES, AGZ, RSO2):
    a.label(f"{pfx}_LOOP")
    stamp(a, 0)
    ag_poll(a, pfx, 3)
    a.label(f"{pfx}_B0")
    a("s_waitcnt lgkmcnt(0)")
    a("s_barrier")
    mark(a, S_REF0)
    stamp(a, 1)
    SP = 140
    w8s = lambda t, K: ar((t*20 + 2*K)*4, 8)
    for K in range(10):
        a(f"ds_read_b128 {vr(V_RING+4*K)}, v{V_L16} offset:{L_MEM + K*1024}")
    for r in range(12): a(f"v_mov_b32 v{V_ACC+r}, 0")
    for K in range(10):
        a(f"s_waitcnt lgkmcnt({9-K})")
        for t in range(2):
            a(f"v_smfmac_f32_16x16x64_bf16 {vr(V_ACC+4*t)}, {vr(V_RING+4*K)}, {w8s(t,K)}, v{V_IDX}")
    P01 = pack_pair(V_ACC, V_ACC+4, SP)
    for K in range(10):
        a(f"v_smfmac_f32_16x16x64_bf16 {vr(V_ACC+8)}, {vr(V_RING+4*K)}, {w8s(2,K)}, v{V_IDX}")
        if K >= 2 and P01: a(P01.pop(0))
        if K >= 6 and P01: a(P01.pop(0))
    while P01: a(P01.pop(0))
    store_mode(a, [f"buffer_store_dwordx2 {vr(SP,2)}, v{V_AST}, s[{S_WS}:{S_WS+3}], s{S_CUR} offen SCX"])
    for r in range(4): a(f"v_mov_b32 v{SP+8+r}, v{V_ACC+8+r}")
    for x in pack_pair(V_ACC+8, SP+8, SP+4): a(x)
    store_mode(a, [f"buffer_store_dwordx2 {vr(SP+4,2)}, v{V_AST+1}, s[{S_WS}:{S_WS+3}], s{S_CUR} offen SCX"])
    stamp(a, 2)
    wait_mode(a, S_REF0, OPT('T_VF', 1300), OPT('T_V', 1500))
    loads = [f"buffer_load_dwordx4 {vr(V_POLL+4*k)}, v{V_APO+k}, s[{S_WS}:{S_WS+3}], s{S_CUR} offen sc1" for k in range(3)]
    if OPT('TWOB', 1):
        for x in loads: a(x)
        stamp(a, 3)
        a("s_barrier")
        stamp(a, 4)
        poll_loop(a, f"{pfx}_VP", loads, 12, 93, pre_issued=True)
        for k in range(3):
            a(f"ds_write_b128 v{V_APL}, {vr(V_POLL+4*k)} offset:{k*1024}")
        a("s_waitcnt lgkmcnt(0)")
        a("s_barrier")
        mark(a, 96)
        stamp(a, 5)
    else:
        poll_loop(a, f"{pfx}_VP", loads, 12, 93)
        for k in range(3):
            a(f"ds_write_b128 v{V_APL}, {vr(V_POLL+4*k)} offset:{k*1024}")
        a("s_waitcnt lgkmcnt(0)")
        stamp(a, 3)
        a("s_barrier")
        mark(a, 96)
        stamp(a, 4)
        stamp(a, 5)
    a(f"s_cmp_eq_u32 s{S_STEP}, 63")
    a(f"s_cbranch_scc1 {pfx}_DONE")
    store_mode(a, [f"buffer_store_dwordx4 {vr(ONES)}, v{r}, s[{S_WS}:{S_WS+3}], s{S_NN} offen SCX" for r in (PQ, PQ+1, PV_)])
    a(f"s_add_u32 s{S_T}, s{S_NN}, s{S_RSB}")
    a(f"s_mov_b64 exec, s[{S_M8}:{S_M8+1}]")
    for P in range(5):
        if P > 0: a(f"s_add_u32 s{S_T}, s{S_T}, 32768")
        a(f"buffer_store_dwordx4 {vr(ONES)}, v{R}, s[{S_WS}:{S_WS+3}], s{S_T} offen sc1")
    if CURMODE[0] and RSLOC():
        a(f"s_xor_b32 s74, s{S_NN}, 8192")
        for P in range(5):
            a(f"s_add_u32 s{S_T}, s77, {P*4096}")
            smap(a, S_T, S_T2)
            a(f"s_add_u32 s{S_T}, s{S_T}, s74")
            a(f"buffer_store_dwordx4 {vr(ONES)}, v{V_RSOL}, s[{S_WS}:{S_WS+3}], s{S_T} offen")
    a("s_mov_b64 exec, -1")
    store_mode(a, [f"buffer_store_dwordx4 {vr(ONES)}, v{AGZ}, s[{S_WS}:{S_WS+3}], s{S_NN} offen SCX"])
    stamp(a, 6)
    wait_until(a, 96, OPT('T_RS', 1150))
    if OPT('RED2', 1):
        reduce2(a, pfx, SEL, 32, RSO2, V_AGS, 64, 160)
    else:
        raise SystemExit("RED2=0 no longer supported")
    a(f"s_add_u32 s{S_STEP}, s{S_STEP}, 1")
    a(f"s_cmp_ge_u32 s{S_STEP}, 64")
    a(f"s_cbranch_scc1 {pfx}_DONE")
    rotate_slots(a)
    stamp_acc(a)
    mark(a, S_REF2)
    a(f"s_branch {pfx}_LOOP")
    a.label(f"{pfx}_DONE")
    a("s_waitcnt vmcnt(0)")
    a("s_barrier")
    stamp_out(a, 3)
    a("s_endpgm")

def rec_entry(a):
    a(f"""s_load_dwordx4 s[64:67], s[0:1], {KA['wq']}
s_load_dwordx4 s[68:71], s[0:1], {KA['wv']}
s_load_dwordx2 s[72:73], s[0:1], {KA['mem0']}
s_waitcnt lgkmcnt(0)""")
    srd(a, S_WQ, 64, D*H*E*2); srd(a, S_WK, 66, D*H*E*2); srd(a, S_WV, 68, D*H*E*2); srd(a, S_WO, 70, D*H*E*2)
    srd(a, S_M0, 72, M*D*2)
    a(f"s_lshr_b32 s{S_H}, s{S_J}, 2\ns_and_b32 s{S_C}, s{S_J}, 3")

def probe(a, s_k, s_xcc, lbl, s_dbg):
    a(f"""s_mov_b64 exec, 1
v_mov_b32 v10, -1
s_lshl_b32 s{S_T}, s{s_k}, 21
s_add_u32 s{S_T}, s{S_T}, {RING + PROBE_OFF}
v_mov_b32 v11, s{S_T}
v_add_u32 v13, 8192, v11
s_mov_b32 s{S_T2}, 0
s_mov_b32 s84, -1
s_mov_b32 s85, -1""")
    a.label(f"{lbl}_R")
    a(f"""buffer_store_dword v10, v11, s[{S_WS}:{S_WS+3}], 0 offen sc1
buffer_store_dword v10, v13, s[{S_WS}:{S_WS+3}], 0 offen sc1
s_waitcnt vmcnt(0)
s_sleep 6""")
    for hsel in range(2):
        a(f"""s_memtime s[80:81]
s_waitcnt lgkmcnt(0)
buffer_load_dword v12, v{11 if hsel == 0 else 13}, s[{S_WS}:{S_WS+3}], 0 offen sc1
s_waitcnt vmcnt(0)
s_memtime s[82:83]
s_waitcnt lgkmcnt(0)
s_sub_u32 s{86+hsel}, s82, s80""")
    a(f"""s_min_u32 s84, s84, s86
s_min_u32 s85, s85, s87
s_add_u32 s{S_T2}, s{S_T2}, 1
s_cmp_lt_u32 s{S_T2}, {OPT('PROBE_N', 7)}
s_cbranch_scc1 {lbl}_R
s_cmp_lt_u32 s85, s84
s_cselect_b32 s{S_T3}, 1, 0
s_lshr_b32 s{S_T}, s{s_xcc}, 2
s_xor_b32 s{S_T3}, s{S_T3}, s{S_T}
s_and_b32 s{S_T3}, s{S_T3}, 1
s_or_b32 s{S_T3}, s{S_T3}, 2
s_lshl_b32 s{S_T}, s{s_k}, 1
s_lshl_b32 s{S_T3}, s{S_T3}, s{S_T}
v_mov_b32 v10, s{S_T3}
v_mov_b32 v11, {DB_POL}
global_atomic_or v11, v10, s[{s_dbg}:{s_dbg+1}] sc1
s_waitcnt vmcnt(0)
s_mov_b64 exec, -1""")

def rec_dispatch(a, flags=False):
    a(f"""s_cmp_eq_u32 s{S_WAVE}, 0
s_cbranch_scc1 RK_W0
s_cmp_eq_u32 s{S_WAVE}, 1
s_cbranch_scc1 RK_W1
s_cmp_eq_u32 s{S_WAVE}, 2
s_cbranch_scc1 RK_W2
s_branch RK_W3""")
    for w in range(3):
        a.label(f"RK_W{w}")
        main_wave(a, w, flags)
    a.label("RK_W3")
    service_wave(a)

def gen_rec_kernel():
    a = Asm(); name = "rec_kernel"
    kernel_header(a, name)
    if OPT('STAMP', 0): a("s_memtime s[100:101]")
    a(f"""s_cmp_ge_u32 s2, 256
s_cbranch_scc1 RK_END
s_load_dwordx2 s[74:75], s[0:1], {KA['ws']}
s_load_dwordx2 s[76:77], s[0:1], {KA['dbg']}
s_getreg_b32 s78, hwreg(HW_REG_XCC_ID)
s_and_b32 s78, s78, 15
s_waitcnt lgkmcnt(0)""")
    srd(a, S_WS, 74, WS_SIZE)
    lane_setup(a, V_LANE, V_G, V_N, S_WAVE)
    a(f"""s_cmp_lg_u32 s{S_WAVE}, 0
s_cbranch_scc1 RK_NORANK
v_mov_b32 v10, 1
s_lshl_b32 s79, s78, 2
v_mov_b32 v11, s79
s_mov_b64 exec, 1
global_atomic_add v12, v11, v10, s[76:77] sc0 sc1
s_waitcnt vmcnt(0)
v_mov_b32 v11, 0
ds_write_b32 v11, v12
s_waitcnt lgkmcnt(0)
s_mov_b64 exec, -1""")
    a.label("RK_NORANK")
    a(f"""s_barrier
v_mov_b32 v11, 0
ds_read_b32 v12, v11
s_waitcnt lgkmcnt(0)
v_readfirstlane_b32 s79, v12
s_barrier
s_cmp_lt_u32 s78, 4
s_cbranch_scc1 RK_REC
s_cmp_lg_u32 s78, 4
s_cbranch_scc1 RK_END
s_cmp_ge_u32 s79, 4
s_cbranch_scc1 RK_END
s_cmp_lg_u32 s{S_WAVE}, 0
s_cbranch_scc1 RK_END""")
    probe(a, 79, 78, "RK_PR", 76)
    a("s_endpgm")
    a.label("RK_REC")
    a(f"""s_cmp_ge_u32 s79, 32
s_cbranch_scc1 RK_END
s_lshl_b32 s{S_J}, s78, 5
s_add_u32 s{S_J}, s{S_J}, s79""")
    rec_entry(a)
    rec_dispatch(a)
    a.label("RK_END")
    a("s_endpgm")
    return name, a.finalize(), kernel_desc(name, 512, 102, 256)

def read_polarity(a, pfx):
    a(f"s_load_dwordx2 s[96:97], s[0:1], {KA['dbg']}")
    a(f"v_and_b32 v{V_T2}, 15, v{V_LANE}")
    a(f"v_lshlrev_b32 v{V_T2}, 2, v{V_T2}")
    a(f"s_mov_b32 s{S_RETRY}, 0")
    a("s_waitcnt lgkmcnt(0)")
    a.label(f"{pfx}_MD")
    a(f"global_load_dword v{V_T}, v{V_T2}, s[96:97] sc1")
    a("s_waitcnt vmcnt(0)")
    a(f"s_mov_b32 s{S_T}, 0")
    a(f"s_mov_b32 s{S_MODE}, 1")
    for x in range(8):
        a(f"v_readlane_b32 s{S_T2}, v{V_T}, {x}")
        a(f"s_add_u32 s{S_T}, s{S_T}, s{S_T2}")
        a(f"s_cmp_eq_u32 s{S_T2}, 32")
        a(f"s_cselect_b32 s{S_MODE}, s{S_MODE}, 0")
    a(f"v_readlane_b32 s{S_T2}, v{V_T}, {DB_INIT//4}")
    a(f"v_readlane_b32 s{S_T3}, v{V_T}, {DB_POL//4}")
    a(f"s_cmp_ge_u32 s{S_T}, 256")
    a(f"s_cbranch_scc0 {pfx}_MDN")
    if INITWAIT[0]:
        a(f"s_cmp_ge_u32 s{S_T2}, 80")
        a(f"s_cbranch_scc0 {pfx}_MDN")
    a(f"s_and_b32 s{S_T}, s{S_T3}, 0xaa")
    a(f"s_cmp_eq_u32 s{S_T}, 0xaa")
    a(f"s_cbranch_scc1 {pfx}_POLOK")
    a.label(f"{pfx}_MDN")
    a(f"""s_sleep 4
s_add_u32 s{S_RETRY}, s{S_RETRY}, 1
s_cmp_lt_u32 s{S_RETRY}, 0x200000
s_cbranch_scc1 {pfx}_MD
s_mov_b32 s{S_MODE}, 0""")
    a.label(f"{pfx}_POLOK")
    if OPT('FORCESLOW', 0): a(f"s_mov_b32 s{S_MODE}, 0")
    a(f"""s_and_b32 s{S_T}, s{S_T3}, 0x55
s_xor_b32 s{S_T}, s{S_T}, 0x44
s_bcnt1_i32_b32 s{S_T2}, s{S_T}
s_cmp_ge_u32 s{S_T2}, 3
s_cselect_b32 s{S_T}, 0x55, s{S_T}
s_cmp_le_u32 s{S_T2}, 1
s_cselect_b32 s{S_T}, 0, s{S_T}
s_xor_b32 s{S_T3}, s{S_T}, 0x44""")
    if OPT('FLIPPOL', 0): a(f"s_xor_b32 s{S_T3}, s{S_T3}, 0x55")
    for k, s in enumerate((S_CUR, S_N, S_NN, S_P)):
        a(f"""s_bfe_u32 s{S_T}, s{S_T3}, {(1<<16) | (2*k)}
s_lshl_b32 s{S_T}, s{S_T}, 13
s_add_u32 s{s}, s{S_T}, {RING + k*RING_SLOT}""")
```

```python
from gen_common import *
import struct, os
OPT=lambda k,d: type(d)(os.environ.get(k,d))
def f2u(f): return struct.unpack('<I', struct.pack('<f', f))[0]

S_WS=4; S_WQ=8; S_WK=12; S_WV=16; S_WO=20
S_WAVE=24; S_H=25; S_C=26; S_J=27; S_STEP=28
S_P=29; S_CUR=30; S_N=31; S_NN=32
S_HI32=20
S_MQ=16
S_M8=34; S_H8=38
S_T=40; S_T2=41; S_T3=42; S_RETRY=43
S_KVG=44; S_UXG=45; S_UYG=46; S_KMG=47; S_RSB=48; S_KVL=49; S_KVR=50; S_RED=51; S_RSP=52; S_FLG=53
S_LB=54
S_COL=56
S_SCALE=60; S_MAXR=61
S_TS=62
S_M0=88
S_MODE=57
S_REF0=98
S_REF2=36
S_NOW=58
L_MEM=0; L_QKV=10240; L_KV=20480; KVB=24576
LDS_REC=131072
V_LANE=1; V_G=2; V_N=3; V_T=4; V_T2=5; V_L16=6
V_AGO=7; V_AGL=10; V_MRD=11; V_AGP=23
V_RSL=7
V_AST=12; V_KMS=15; V_APO=16; V_APL=19
V_RQ=20; V_IDX=21; V_RV=22; V_RSO=28; V_L4=29; V_AGS=30; V_ZERO=31
V_RSP=80
V_NINF=248; V_KVA=249
V_POLL=32; V_RING=48; V_ACC=88; V_PK=252; V_KXF=100; V_QF=148; V_KF=172; V_VF=196; V_S=220; V_UXF=232
V_Y=48; V_PU=64; V_UA=48; V_YF=220; V_SM=148
NT = [4, 4, 2]; T0 = [0, 4, 8]; P0 = [0, 2, 4]
KVX = L_KV ^ (L_KV+KVB)

def poll_check(a, regs, vt):
    r = list(regs)
    a(f"v_max3_u32 v{vt}, v{r[0]}, v{r[1]}, v{r[2]}")
    i = 3
    while i < len(r):
        if i + 1 < len(r):
            a(f"v_max3_u32 v{vt}, v{vt}, v{r[i]}, v{r[i+1]}"); i += 2
        else:
            a(f"v_max_u32 v{vt}, v{vt}, v{r[i]}"); i += 1
    a(f"v_cmp_eq_u32 vcc, -1, v{vt}")

def sleep(a, n):
    while n > 0:
        k = min(n, 127); a(f"s_sleep {k}"); n -= k

def mark(a, reg):
    a(f"s_memtime s[{reg}:{reg+1}]")

def wait_until(a, ref, delta):
    if delta <= 0: return
    a.uid += 1
    L = f"WU_{a.uid}"
    a.label(L)
    a(f"""s_memtime s[{S_NOW}:{S_NOW+1}]
s_waitcnt lgkmcnt(0)
s_sub_u32 s{S_NOW}, s{S_NOW}, s{ref}
s_cmp_ge_u32 s{S_NOW}, {delta}
s_cbranch_scc1 {L}_D
s_sub_u32 s{S_NOW}, {delta}, s{S_NOW}
s_cmp_lt_u32 s{S_NOW}, 96
s_cbranch_scc1 {L}
s_sleep 1
s_branch {L}""")
    a.label(f"{L}_D")

def stamp(a, idx):
    if OPT('STAMP', 0):
        a(f"s_memtime s[{S_TS+2*idx}:{S_TS+2*idx+1}]")

def racc(a, k):
    if OPT('STAMP', 0): a(f"s_add_u32 s{k}, s{k}, s{S_RETRY}")

def nearmap_v(a, v, vt):
    a(f"""v_lshrrev_b32 v{vt}, 13, v{v}
v_lshlrev_b32 v{vt}, 14, v{vt}
v_and_b32 v{v}, 0x1fff, v{v}
v_or_b32 v{v}, v{v}, v{vt}""")

def oob_mask(a, v, nlanes):
    a(f"""v_mov_b32 v{V_T}, 0x80000000
v_cmp_gt_u32 vcc, {nlanes}, v{V_LANE}
v_cndmask_b32 v{v}, v{V_T}, v{v}, vcc""")

V_AGB=48
def poll_loop(a, lbl, loads, nreg, acc, pre_issued=False, base=None, spec=None):
    a(f"s_mov_b32 s{S_RETRY}, 0")
    if pre_issued:
        a(f"s_branch {lbl}_W")
    a.label(lbl)
    for x in loads: a(x)
    if pre_issued: a.label(f"{lbl}_W")
    a("s_waitcnt vmcnt(0)")
    if spec: spec()
    b0 = V_POLL if base is None else base
    poll_check(a, range(b0, b0+nreg), V_T)
    a(f"""s_cbranch_vccz {lbl}_OK
s_add_u32 s{S_RETRY}, s{S_RETRY}, 1
s_cmp_lt_u32 s{S_RETRY}, s{S_MAXR}
s_cbranch_scc1 {lbl}
s_mov_b32 s{S_MAXR}, 0""")
    a.label(f"{lbl}_OK")
    racc(a, acc)

CURMODE = [None]
def RSLOC(): return OPT('RSLOC', 0) and not OPT('STAMP', 0)
INITWAIT = [False]
def store_mode(a, lines):
    if CURMODE[0] is not None:
        for x in lines: a(x.replace(' SCX', '' if CURMODE[0] else ' sc1'))
        return
    if OPT('AFAST', 1) == 0:
        for x in lines: a(x.replace(' SCX', ' sc1'))
        return
    a.uid += 1
    L = f"SM_{a.uid}"
    a(f"s_cmp_eq_u32 s{S_MODE}, 0")
    a(f"s_cbranch_scc1 {L}_S")
    for x in lines: a(x.replace(' SCX', ''))
    a(f"s_branch {L}_E")
    a.label(f"{L}_S")
    for x in lines: a(x.replace(' SCX', ' sc1'))
    a.label(f"{L}_E")

def wait_mode(a, ref, fast, slow):
    if CURMODE[0] is not None:
        wait_until(a, ref, fast if CURMODE[0] else slow); return
    if OPT('AFAST', 1) == 0:
        wait_until(a, ref, slow); return
    a.uid += 1
    L = f"WM_{a.uid}"
    a(f"s_cmp_eq_u32 s{S_MODE}, 0")
    a(f"s_cbranch_scc1 {L}_S")
    wait_until(a, ref, fast)
    a(f"s_branch {L}_E")
    a.label(f"{L}_S")
    wait_until(a, ref, slow)
    a.label(f"{L}_E")

def poll2(a, lbl, mk_loads, nreg, baseA, baseB, acc, stage, gap=2):
    LA = mk_loads(baseA); LB = mk_loads(baseB); n = len(LA)
    a(f"s_mov_b32 s{S_RETRY}, 0")
    for x in LA: a(x)
    if gap: a(f"s_sleep {gap}")
    a.label(lbl)
    for x in LB: a(x)
    a(f"s_waitcnt vmcnt({n})")
    poll_check(a, range(baseA, baseA+nreg), V_T)
    a(f"s_cbranch_vccz {lbl}_GA")
    for x in LA: a(x)
    a(f"s_waitcnt vmcnt({n})")
    poll_check(a, range(baseB, baseB+nreg), V_T)
    a(f"""s_cbranch_vccz {lbl}_GB
s_add_u32 s{S_RETRY}, s{S_RETRY}, 1
s_cmp_lt_u32 s{S_RETRY}, s{S_MAXR}
s_cbranch_scc1 {lbl}
s_mov_b32 s{S_MAXR}, 0""")
    a.label(f"{lbl}_GB")
    racc(a, acc)
    stage(baseB)
    a(f"s_branch {lbl}_E")
    a.label(f"{lbl}_GA")
    racc(a, acc)
    stage(baseA)
    a.label(f"{lbl}_E")

def ag_poll(a, pfx, w):
    wait_mode(a, S_REF2, OPT('T_AGF', 0), OPT('T_AG', 650))
    base = (w-2)*5
    def mk(b): return [f"buffer_load_dwordx4 {vr(b+4*k)}, v{V_AGP+k}, s[{S_WS}:{S_WS+3}], s{S_P} offen sc1" for k in range(5)]
    def stage(b):
        for k in range(5):
            a(f"ds_write_b128 v{V_L16}, {vr(b+4*k)} offset:{L_MEM + (base+k)*1024}")
    if CURMODE[0] and OPT('POLL2', 0):
        poll2(a, f"{pfx}_AGP", mk, 20, 172, 196, 92, stage, gap=OPT('GAPD', 2))
    else:
        if OPT('SPEC', 1): poll_loop(a, f"{pfx}_AGP", mk(V_AGB), 20, 92, base=V_AGB, spec=lambda: stage(V_AGB))
        else:
            poll_loop(a, f"{pfx}_AGP", mk(V_AGB), 20, 92, base=V_AGB)
            stage(V_AGB)

def reduce_blocks(a, pfx, nb, SEL, base_reg, s_poll, v_ags, acc, apk, s_loc0=None, s_loc=None, sqbase=None):
    loads = []
    LOCAL = CURMODE[0] and RSLOC()
    if LOCAL:
        a(f"s_lshr_b32 s{S_NOW}, s{S_J}, 5")
        a(f"s_xor_b32 s{S_NOW+1}, s{S_CUR}, 8192")
        for b in range(nb):
            a(f"s_add_u32 s{s_loc[b]}, s{s_loc0[b]}, s{S_NOW+1}")
        for b in range(nb):
            for q in range(4):
                sq = sqbase + 4*b + q
                a(f"s_add_u32 s{sq}, s{s_poll[b]}, {q*1024}")
                a(f"s_cmp_eq_u32 s{S_NOW}, {q}")
                a(f"s_cselect_b32 s{sq}, s{s_loc[b]}, s{sq}")
                loads.append(f"buffer_load_dwordx4 {vr(base_reg+16*b+4*q)}, v{V_L16}, s[{S_WS}:{S_WS+3}], s{sq} offen sc1")
    else:
        for b in range(nb):
            for q in range(4):
                loads.append(f"buffer_load_dwordx4 {vr(base_reg+16*b+4*q)}, v{V_L16}, s[{S_WS}:{S_WS+3}], s{s_poll[b]} offen offset:{q*1024} sc1")
    poll_loop(a, f"{pfx}_RP", loads, 16*nb, 94, base=base_reg)
    stamp(a, 7)
    for q in range(4):
        for b in range(nb):
            c = "0" if q == 0 else vr(acc+8*b)
            a(f"v_mfma_f32_16x16x32_bf16 {vr(acc+8*b)}, {vr(SEL)}, {vr(base_reg+16*b+4*q)}, {c}")
    for b in range(nb):
        for r in range(4):
            a(f"v_add_f32_dpp v{acc+8*b+4+r}, v{acc+8*b+r}, v{acc+8*b+r} row_ror:8 row_mask:0xf bank_mask:0xf")
    if nb == 2:
        for r in range(4): a(f"v_cndmask_b32 v{acc+4+r}, v{acc+4+r}, v{acc+12+r}, s[{S_H8}:{S_H8+1}]")
    a(f"v_cvt_pk_bf16_f32 v{apk}, v{acc+4}, v{acc+5}")
    a(f"v_cvt_pk_bf16_f32 v{apk+1}, v{acc+6}, v{acc+7}")
    a(f"v_mov_b32 v{apk+2}, v{apk}\nv_mov_b32 v{apk+3}, v{apk+1}")
    a(f"v_mov_b32 v{apk+4}, v{apk}\nv_mov_b32 v{apk+5}, v{apk+1}")
    a(f"v_permlane16_swap_b32 v{apk+4}, v{apk+2}")
    a(f"v_permlane16_swap_b32 v{apk+5}, v{apk+3}")
    store_mode(a, [f"buffer_store_dwordx4 {vr(apk)}, v{v_ags}, s[{S_WS}:{S_WS+3}], s{S_CUR} offen SCX"])

def reduce2(a, pfx, SEL, base_reg, v_off, v_ags, acc, apk):
    loads = [f"buffer_load_dwordx4 {vr(base_reg+4*q)}, v{v_off}, s[{S_WS}:{S_WS+3}], s{S_CUR} offen offset:{q*512} sc1" for q in range(8)]
    poll_loop(a, f"{pfx}_RP", loads, 32, 94, base=base_reg)
    stamp(a, 7)
    for q in range(8):
        c = "0" if q == 0 else vr(acc)
        a(f"v_mfma_f32_16x16x32_bf16 {vr(acc)}, {vr(SEL)}, {vr(base_reg+4*q)}, {c}")
    a(f"v_cvt_pk_bf16_f32 v{apk}, v{acc}, v{acc+1}")
    a(f"v_cvt_pk_bf16_f32 v{apk+1}, v{acc+2}, v{acc+3}")
    store_mode(a, [f"buffer_store_dwordx2 {vr(apk,2)}, v{v_ags}, s[{S_WS}:{S_WS+3}], s{S_CUR} offen SCX"])

def sel_setup(a, SEL):
    for k in range(4):
        a(f"""v_mov_b32 v{SEL+k}, 0
v_mov_b32 v{V_T}, 0x3f80
v_cmp_eq_u32 vcc, {2*k}, v{V_N}
v_cndmask_b32 v{SEL+k}, v{SEL+k}, v{V_T}, vcc
v_mov_b32 v{V_T}, 0x3f800000
v_cmp_eq_u32 vcc, {2*k+1}, v{V_N}
v_cndmask_b32 v{SEL+k}, v{SEL+k}, v{V_T}, vcc""")

def smap(a, s, t):
    a(f"""s_lshr_b32 s{t}, s{s}, 13
s_lshl_b32 s{t}, s{t}, 14
s_and_b32 s{s}, s{s}, 0x1fff
s_or_b32 s{s}, s{s}, s{t}
s_add_u32 s{s}, s{s}, {nearmap(RS_LOG)}""")

def loc_off(a, s_cb, s_out, s_tmp):
    a(f"""s_lshr_b32 s{s_out}, s{S_J}, 5
s_mul_i32 s{s_out}, s{s_out}, 81920
s_lshl_b32 s{s_tmp}, s{s_cb}, 10
s_add_u32 s{s_out}, s{s_out}, s{s_tmp}""")
    smap(a, s_out, s_tmp)

def rs_local_lane(a, v):
    a(f"""v_lshlrev_b32 v{v}, 10, v{V_G}
v_and_b32 v{V_T}, 7, v{V_LANE}
v_lshlrev_b32 v{V_T}, 4, v{V_T}
v_add_u32 v{v}, v{v}, v{V_T}
s_and_b32 s{S_T}, s{S_H}, 7
s_lshl_b32 s{S_T}, s{S_T}, 7
v_add_u32 v{v}, s{S_T}, v{v}""")

def blk_off(a, s_cb, s_out, s_tmp):
    a(f"""s_lshr_b32 s{s_out}, s{s_cb}, 1
s_lshl_b32 s{s_out}, s{s_out}, 14
s_and_b32 s{s_tmp}, s{s_cb}, 1
s_lshl_b32 s{s_tmp}, s{s_tmp}, 12
s_add_u32 s{s_out}, s{s_out}, s{s_tmp}
s_add_u32 s{s_out}, s{s_out}, {nearmap(RS_LOG)}""")

def rotate_slots(a):
    a(f"""s_mov_b32 s{S_T}, s{S_P}
s_mov_b32 s{S_P}, s{S_CUR}
s_mov_b32 s{S_CUR}, s{S_N}
s_mov_b32 s{S_N}, s{S_NN}
s_mov_b32 s{S_NN}, s{S_T}""")

def proj_stage(a, ntile, w8):
    for K in range(10):
        a(f"ds_read_b128 {vr(V_RING+4*K)}, v{V_L16} offset:{L_MEM + K*1024}")
    for t in range(ntile):
        for r in range(4): a(f"v_mov_b32 v{V_ACC+4*t+r}, 0")
    for K in range(10):
        a(f"s_waitcnt lgkmcnt({9-K})")
        for t in range(ntile):
            a(f"v_smfmac_f32_16x16x64_bf16 {vr(V_ACC+4*t)}, {vr(V_RING+4*K)}, {w8(t,K)}, v{V_IDX}")

def pack_pair(x, y, pk):
    L = [f"v_permlane32_swap_b32 v{x+r}, v{y+r}" for r in range(4)]
    L += [f"v_add_f32 v{x+r}, v{x+r}, v{y+r}" for r in range(4)]
    L += [f"v_cvt_pk_bf16_f32 v{pk}, v{x}, v{x+1}", f"v_cvt_pk_bf16_f32 v{pk+1}, v{x+2}, v{x+3}"]
    return L

def ux_load(a, w, flags, pfx):
    nt = NT[w]
    if flags:
        a.uid += 1
        a(f"s_add_u32 s{S_UXT}, s{S_UXT}, 1")
        a(f"s_min_u32 s{S_T3}, s{S_UXT}, 64")
        wait_words(a, f"{pfx}_WUX{a.uid}", S_WS, V_UXA, V_T, S_T3, S_UXC, 1, S_T2, 23)
    for t in range(nt):
        a(f"buffer_load_dwordx4 {vr(V_UXF+4*t)}, v{V_L16}, s[{S_WS}:{S_WS+3}], s{S_UXG} offen offset:{t*1024} sc1")
    a(f"s_add_u32 s{S_UXG}, s{S_UXG}, {32*40*1024}")

def idle_phase(a, w, woq):
    if OPT('UXRD', 0):
        a(f"v_add_u32 v{V_T}, s{S_KVR}, v{V_L16}")
        for f in range(12):
            a(f"ds_read_b128 {vr(V_KXF+4*f)}, v{V_T} offset:{f*1024}")
        a("s_waitcnt lgkmcnt(0)")
        a(f"s_xor_b32 s{S_KVR}, s{S_KVR}, {KVX}")
        return
    nt = NT[w]
    a(f"v_add_u32 v{V_T}, s{S_KVR}, v{V_L16}")
    for f in range(12):
        a(f"ds_read_b128 {vr(V_QF+4*f)}, v{V_T} offset:{12288 + f*1024}")
        if f == 7: a("s_waitcnt lgkmcnt(4)")
    a("s_waitcnt lgkmcnt(0)")
    for f in range(12):
        a(f"ds_read_b128 {vr(V_KXF+4*f)}, v{V_T} offset:{f*1024}")
    for p in range(6):
        for t in range(nt):
            for tt in range(2):
                d = V_UA + 8*t + 4*tt
                c = "0" if p == 0 else vr(d)
                a(f"v_mfma_f32_16x16x32_bf16 {vr(d)}, {vr(V_QF+4*(tt*6+p))}, {woq(t,p)}, {c}")
    for t in range(nt):
        for k in range(4):
            tt = k >> 1
            d = V_UA + 8*t + 4*tt + 2*(k & 1)
            a(f"v_cvt_pk_bf16_f32 v{V_UXF+4*t+k}, v{d}, v{d+1}")
        a(f"s_add_u32 s{S_T}, s{S_UXG}, {t*1024}")
        if OPT('UXST', 0): a(f"buffer_store_dwordx4 {vr(V_UXF+4*t)}, v{V_L16}, s[{S_WS}:{S_WS+3}], s{S_T} offen sc1")
    a(f"s_add_u32 s{S_UXG}, s{S_UXG}, {32*40*1024}")
    a("s_waitcnt lgkmcnt(0)")
    a(f"s_xor_b32 s{S_KVR}, s{S_KVR}, {KVX}")

S_UXT=88; S_UXC=89; V_UXA=11
S_KVT=33
S_RLB=18
S_RL0=19; S_RL1=95
V_RSOL=9
S_KVC=21
def kv_dma(a, flags=False, pfx='', w=0):
    if w < 2:
        if flags:
            a.uid += 1
            a(f"s_add_u32 s{S_KVT}, s{S_KVT}, 2")
            a(f"s_min_u32 s{S_T3}, s{S_KVT}, 128")
            wait_words(a, f"{pfx}_WKV{a.uid}", S_WS, V_KVA, V_T, S_T3, 22, 2 if OPT('UXRD', 0) else 4, S_T2, 23)
        if OPT('UXRD', 0):
            for (k0, n) in ((0, 4), (4, 2)):
                a(f"s_add_u32 m0, s{S_KVL}, {w*6144 + k0*1024}")
                a(f"s_add_u32 s{S_T}, s{S_KVG}, {k0*1024}")
                for j in range(n):
                    a(f"buffer_load_dwordx4 v{V_L16}, s[{S_WS}:{S_WS+3}], s{S_T} offen offset:{j*1024} sc1 lds")
        else:
            for k in range(3):
                a(f"s_add_u32 m0, s{S_KVL}, {w*12288 + k*4096}")
                a(f"s_add_u32 s{S_T}, s{S_KVG}, {k*4096}")
                for j in range(4):
                    a(f"buffer_load_dwordx4 v{V_L16}, s[{S_WS}:{S_WS+3}], s{S_T} offen offset:{j*1024} sc1 lds")
        a(f"s_add_u32 s{S_KVG}, s{S_KVG}, {32*12288}")
    a(f"s_xor_b32 s{S_KVL}, s{S_KVL}, {KVX}")

def softmax_lists():
    X = V_SM; MX = V_SM+6; TM = V_SM+7; RS_ = V_SM+8; PT = V_SM+12; PM = V_SM+10; T2 = V_SM+16
    L = []
    for r in range(4): L.append(f"v_cndmask_b32 v{X+r}, v{V_S+4+r}, v{V_S+8+r}, s[{S_H8}:{S_H8+1}]")
    L.append(f"v_cndmask_b32 v{X+4}, v{V_S}, v{V_S+2}, s[{S_H8}:{S_H8+1}]")
    L.append(f"v_cndmask_b32 v{X+5}, v{V_S+1}, v{V_S+3}, s[{S_H8}:{S_H8+1}]")
    L.append(f"v_max3_f32 v{MX}, v{X}, v{X+1}, v{X+2}")
    L.append(f"v_max3_f32 v{TM}, v{X+3}, v{X+4}, v{X+5}")
    L.append(f"v_max_f32 v{MX}, v{MX}, v{TM}")
    L.append(f"v_max_f32_dpp v{MX}, v{MX}, v{MX} row_ror:8 row_mask:0xf bank_mask:0xf")
    L += [f"v_mov_b32 v{TM}, v{MX}", f"v_permlane16_swap_b32 v{MX}, v{TM}", f"v_max_f32 v{MX}, v{MX}, v{TM}"]
    L += [f"v_mov_b32 v{TM}, v{MX}", f"v_permlane32_swap_b32 v{MX}, v{TM}", f"v_max_f32 v{MX}, v{MX}, v{TM}"]
    L.append(f"v_mul_f32 v{MX}, s{S_SCALE}, v{MX}")
    for j in range(6): L.append(f"v_fma_f32 v{X+j}, v{X+j}, s{S_SCALE}, -v{MX}")
    for j in range(6): L.append(f"v_exp_f32 v{X+j}, v{X+j}")
    L.append(f"v_cvt_pk_bf16_f32 v{PT}, v{X}, v{X+1}")
    L.append(f"v_cvt_pk_bf16_f32 v{PT+1}, v{X+2}, v{X+3}")
    L.append(f"v_cvt_pk_bf16_f32 v{PM}, v{X+4}, v{X+5}")
    L.append(f"v_mov_b32_dpp v{PT+2}, v{PT} row_ror:8 row_mask:0xf bank_mask:0xf")
    L.append(f"v_mov_b32_dpp v{PT+3}, v{PT+1} row_ror:8 row_mask:0xf bank_mask:0xf")
    L.append(f"v_mov_b32_dpp v{PM+1}, v{PM} row_ror:8 row_mask:0xf bank_mask:0xf")
    M = [f"v_cndmask_b32 v{X+4}, v{X+4}, v{V_ZERO}, s[{S_HI32}:{S_HI32+1}]",
         f"v_cndmask_b32 v{X+5}, v{X+5}, v{V_ZERO}, s[{S_HI32}:{S_HI32+1}]",
         f"v_add_f32 v{RS_}, v{X}, v{X+1}", f"v_add_f32 v{TM}, v{X+2}, v{X+3}", f"v_add_f32 v{RS_+1}, v{X+4}, v{X+5}",
         f"v_add_f32 v{RS_}, v{RS_}, v{TM}", f"v_add_f32 v{RS_}, v{RS_}, v{RS_+1}",
         f"v_add_f32_dpp v{RS_}, v{RS_}, v{RS_} row_ror:8 row_mask:0xf bank_mask:0xf",
         f"v_mov_b32 v{TM}, v{RS_}", f"v_permlane16_swap_b32 v{RS_}, v{TM}", f"v_add_f32 v{RS_}, v{RS_}, v{TM}",
         f"v_mov_b32 v{TM}, v{RS_}", f"v_permlane32_swap_b32 v{RS_}, v{TM}", f"v_add_f32 v{RS_}, v{RS_}, v{TM}",
         f"v_rcp_f32 v{RS_}, v{RS_}"]
    return PT, PM, RS_, L, M

def gi(a, v):
    a(f"""v_lshlrev_b32 v{v}, 7, v{V_G}
v_and_b32 v{V_T}, 7, v{V_LANE}
v_lshlrev_b32 v{V_T}, 4, v{V_T}
v_add_u32 v{v}, v{v}, v{V_T}""")

def rs_lane(a, v):
    a(f"""v_lshrrev_b32 v{v}, 1, v{V_G}
v_lshlrev_b32 v{v}, 14, v{v}
v_and_b32 v{V_T}, 1, v{V_G}
v_lshlrev_b32 v{V_T}, 12, v{V_T}
v_add_u32 v{v}, v{v}, v{V_T}
v_and_b32 v{V_T}, 7, v{V_LANE}
v_lshlrev_b32 v{V_T}, 4, v{V_T}
v_add_u32 v{v}, v{v}, v{V_T}
s_lshl_b32 s{S_T}, s{S_H}, 7
v_add_u32 v{v}, s{S_T}, v{v}""")

def coop_load(a, w, wreg):
    stride = H*E*2
    VG, VT = V_POLL, V_POLL+1
    a(f"""v_lshrrev_b32 v{V_T}, 3, v{V_LANE}
v_add_u32 v{V_T}, {8*w}, v{V_T}
s_mov_b32 s{S_LB+1}, {stride}
v_mul_lo_u32 v{VG}, v{V_T}, s{S_LB+1}
v_and_b32 v{V_T}, 7, v{V_LANE}
v_lshlrev_b32 v{V_T}, 4, v{V_T}
v_add_u32 v{VG}, v{VG}, v{V_T}
v_bfe_u32 v{VT}, v{V_LANE}, 4, 1
v_lshlrev_b32 v{VT}, 4, v{VT}
v_bfe_u32 v{V_T}, v{V_LANE}, 5, 1
v_lshlrev_b32 v{V_T}, 3, v{V_T}
v_add_u32 v{VT}, v{VT}, v{V_T}
v_bfe_u32 v{V_T}, v{V_LANE}, 2, 1
v_add_u32 v{VT}, v{VT}, v{V_T}
v_bfe_u32 v{V_T}, v{V_LANE}, 3, 1
v_lshlrev_b32 v{V_T}, 2, v{V_T}
v_add_u32 v{VT}, v{VT}, v{V_T}
v_lshlrev_b32 v{VT}, 7, v{VT}
v_and_b32 v{V_T}, 3, v{V_LANE}
v_lshlrev_b32 v{V_T}, 3, v{V_T}
v_add_u32 v{VT}, v{VT}, v{V_T}
s_mul_i32 s{S_COL}, s{S_H}, 384
s_mul_i32 s{S_T}, s{S_C}, 96
s_add_u32 s{S_COL}, s{S_COL}, s{S_T}
v_add_u32 v{VT+1}, 61440, v{VT}""")
    srds = (S_WQ, S_WK, S_WV)
    def issue(ph):
        buf = (ph & 1)*61440
        for pp in range(5):
            p = 5*ph + pp
            for m in range(3):
                a(f"s_add_u32 s{S_T}, s{S_COL}, {p*32*stride}")
                a(f"s_mov_b32 m0, {buf + (pp*3+m)*4096 + w*1024}")
                a(f"buffer_load_dwordx4 v{VG}, s[{srds[m]}:{srds[m]+3}], s{S_T} offen lds")
    issue(0); issue(1)
    for ph in range(4):
        a(f"s_waitcnt vmcnt({15 if ph < 3 else 0})")
        a("s_barrier")
        buf = (ph & 1)*61440
        n = 0
        for pp in range(5):
            p = 5*ph + pp
            if w < 3: items = [(0, w, p), (1, w, 20+p)]
            else: items = [(2, t, t*20+p) for t in range(3)]
            for (m, T, f) in items:
                o = buf + (pp*3+m)*4096 + T*32
                reg = VT if o + 256 < 65536 else VT+1
                oo = o if reg == VT else o - 61440
                a(f"ds_read_b64_tr_b16 {wreg.pair(f,0)}, v{reg} offset:{oo}")
                a(f"ds_read_b64_tr_b16 {wreg.pair(f,1)}, v{reg} offset:{oo+256}")
                n += 2
                if n % 12 == 0: a("s_waitcnt lgkmcnt(4)")
        a("s_waitcnt lgkmcnt(0)")
        a("s_barrier")
        if ph == 0: pass
        if ph + 2 < 4: issue(ph+2)

def main_wave(a, w, flags=False):
    pfx = f"RM{w}"
    nt = NT[w]
    wreg = WReg(0, 256, 0)
    mem0_load(a, w)
    w8 = lambda t, K: ar((t*20 + 2*K)*4, 8)
    woq = lambda t, p: wreg.quad(40 + t*6 + p)
    a(f"s_lshl_b32 s{S_LB}, s{S_WAVE}, 15")
    if OPT('COOP', 1):
        coop_load(a, w, wreg)
    else:
        a(f"""s_mul_i32 s{S_COL}, s{S_H}, 384
s_mul_i32 s{S_T}, s{S_C}, 96
s_add_u32 s{S_COL}, s{S_COL}, s{S_T}
s_add_u32 s{S_COL}, s{S_COL}, {w*32}""")
        units = []
        for p in range(20): units += [(S_WQ, S_COL, p*32*H*E*2), (S_WK, S_COL, p*32*H*E*2)]
        load_w2(a, units, lambda u, T, k: wreg.pair((u & 1)*20 + (u >> 1), k), 1, H*E*2, 2, V_LANE, V_POLL, V_POLL+1, V_T, S_T, S_LB)
    a(f"""s_mul_i32 s{S_COL}, s{S_H}, {192*1280}
s_mul_i32 s{S_T}, s{S_C}, 320
s_add_u32 s{S_COL}, s{S_COL}, s{S_T}
s_add_u32 s{S_COL}, s{S_COL}, {T0[w]*32}""")
    ng = nt//2
    units = [(S_WO, S_COL, g*64 + p*32*1280) for p in range(6) for g in range(ng)]
    load_w2(a, units, lambda u, T, k: wreg.pair(40 + ((u % ng)*2 + T)*6 + u // ng, k), 2, D*2, True, V_LANE, V_POLL, V_POLL+1, V_T, S_T, S_LB)
    if OPT('STAMP', 0): a("s_memtime s[78:79]\ns_waitcnt lgkmcnt(0)\ns_sub_u32 s95, s78, s100")
    common_setup(a, w)
    gi(a, V_KMS)
    a(f"v_add_u32 v{V_KMS}, {w*1024}, v{V_KMS}")
    a(f"""v_lshrrev_b32 v{V_AST}, 1, v{V_G}
v_mul_u32_u24 v{V_AST}, 3072, v{V_AST}
v_lshlrev_b32 v{V_T}, 4, v{V_N}
v_add_u32 v{V_AST}, v{V_AST}, v{V_T}
v_and_b32 v{V_T}, 1, v{V_G}
v_lshlrev_b32 v{V_T}, 3, v{V_T}
v_add_u32 v{V_AST}, v{V_AST}, v{V_T}
s_mul_i32 s{S_T}, s{S_C}, 3
s_add_u32 s{S_T}, s{S_T}, {w}
s_lshl_b32 s{S_T}, s{S_T}, 8
s_mul_i32 s{S_T2}, s{S_H}, 9216
s_add_u32 s{S_T}, s{S_T}, s{S_T2}
v_add_u32 v{V_AST}, s{S_T}, v{V_AST}""")
    nearmap_v(a, V_AST, V_T)
    a(f"""s_add_u32 s{S_T}, s{S_T2}, {w*2048}
v_add_u32 v{V_APO}, s{S_T}, v{V_L16}
v_add_u32 v{V_APO+1}, 1024, v{V_APO}
v_add_u32 v{V_APL}, {L_QKV + w*2048}, v{V_L16}""")
    nearmap_v(a, V_APO, V_T); nearmap_v(a, V_APO+1, V_T)
    a(f"""v_lshlrev_b32 v{V_RQ}, 2, v{V_G}
v_bfe_u32 v{V_T}, v{V_LANE}, 2, 2
v_add_u32 v{V_RQ}, v{V_RQ}, v{V_T}
v_lshlrev_b32 v{V_RQ}, 4, v{V_RQ}
v_and_b32 v{V_T}, 1, v{V_LANE}
v_lshlrev_b32 v{V_T}, 3, v{V_T}
v_add_u32 v{V_RQ}, v{V_RQ}, v{V_T}
v_add_u32 v{V_RQ}, {L_QKV}, v{V_RQ}""")
    a(f"""v_bfe_u32 v{V_RV}, v{V_LANE}, 5, 1
v_lshlrev_b32 v{V_RV}, 5, v{V_RV}
v_bfe_u32 v{V_T}, v{V_LANE}, 4, 1
v_lshlrev_b32 v{V_T}, 3, v{V_T}
v_add_u32 v{V_RV}, v{V_RV}, v{V_T}
v_bfe_u32 v{V_T}, v{V_LANE}, 2, 1
v_add_u32 v{V_RV}, v{V_RV}, v{V_T}
v_bfe_u32 v{V_T}, v{V_LANE}, 3, 1
v_lshlrev_b32 v{V_T}, 4, v{V_T}
v_add_u32 v{V_RV}, v{V_RV}, v{V_T}
v_bfe_u32 v{V_T}, v{V_LANE}, 1, 1
v_lshlrev_b32 v{V_T}, 1, v{V_T}
v_add_u32 v{V_RV}, v{V_RV}, v{V_T}
v_lshlrev_b32 v{V_RV}, 4, v{V_RV}
v_and_b32 v{V_T}, 1, v{V_LANE}
v_lshlrev_b32 v{V_T}, 3, v{V_T}
v_add_u32 v{V_RV}, v{V_RV}, v{V_T}
v_add_u32 v{V_RV}, {L_QKV+6144}, v{V_RV}""")
    rs_lane(a, V_RSO)
    rs_local_lane(a, V_RSOL)
    for P in range(nt//2):
        a(f"""s_lshr_b32 s{76+P}, s{S_J}, 5
s_mul_i32 s{76+P}, s{76+P}, 81920
s_mul_i32 s{S_T}, s{S_C}, {5*4096}
s_add_u32 s{76+P}, s{76+P}, s{S_T}
s_add_u32 s{76+P}, s{76+P}, {(P0[w]+P)*4096}""")
        smap(a, 76+P, S_T)
    a(f"""s_mul_i32 s{S_RSB}, s{S_C}, {5*32768}
s_add_u32 s{S_RSB}, s{S_RSB}, {nearmap(RS_LOG) + P0[w]*32768}
s_mul_i32 s{S_T}, s{S_H}, 12288
s_add_u32 s{S_KVG}, s{S_T}, {(KX + w*6144) if OPT('UXRD', 0) else (KX if w == 0 else VX)}
s_mul_i32 s{S_T}, s{S_H}, 40
s_mul_i32 s{S_T2}, s{S_C}, 10
s_add_u32 s{S_T}, s{S_T}, s{S_T2}
s_add_u32 s{S_T}, s{S_T}, {T0[w]}
s_lshl_b32 s{S_UXG}, s{S_T}, 10
s_add_u32 s{S_UXG}, s{S_UXG}, {UX}
s_lshl_b32 s{S_UYG}, s{S_T}, 8
s_add_u32 s{S_UYG}, s{S_UYG}, {UY}
s_mul_i32 s{S_KMG}, s{S_H}, 3072
s_add_u32 s{S_KMG}, s{S_KMG}, {KM}
s_mov_b32 s{S_KVL}, {L_KV}
s_mov_b32 s{S_KVR}, {L_KV}
s_lshl_b32 s{S_FLG}, s{S_J}, 7
s_add_u32 s{S_FLG}, s{S_FLG}, {F_REC}""")
    if w == 2:
        a(f"""s_and_b32 s{S_COL}, s{S_J}, 31
s_cmp_lt_u32 s{S_COL}, 16
s_cselect_b32 s{S_RED}, 1, 0
s_add_u32 s{S_COL}, s{S_COL}, 64""")
        blk_off(a, S_COL, S_RSP, S_T)
        loc_off(a, S_COL, 72, S_T)
        a(f"""s_lshr_b32 s{S_T}, s{S_J}, 5
s_mul_i32 s{S_T}, s{S_T}, 10240
s_add_u32 s{S_T}, s{S_T}, {AG_LOG}
s_lshl_b32 s{S_T3}, s{S_COL}, 7
s_add_u32 s{S_T}, s{S_T}, s{S_T3}
v_add_u32 v{V_AGS}, s{S_T}, v{V_L16}""")
        nearmap_v(a, V_AGS, V_T)
        oob_mask(a, V_AGS, 8)
        sel_setup(a, 240)
    if flags:
        a(f"""s_mul_i32 s{S_T}, s{S_H}, 6
s_lshr_b32 s{S_T2}, s{S_T}, 3
s_add_u32 s{S_T}, s{S_T}, 5
s_lshr_b32 s{S_T}, s{S_T}, 3
v_mov_b32 v{V_KVA}, s{S_T}
v_mov_b32 v{V_T}, s{S_T2}
v_and_b32 v{V_T2}, 1, v{V_LANE}
v_cmp_eq_u32 vcc, 0, v{V_T2}
v_cndmask_b32 v{V_KVA}, v{V_KVA}, v{V_T}, vcc
v_cmp_lt_u32 vcc, 1, v{V_LANE}
v_mov_b32 v{V_T}, {R_V0 if not OPT('UXRD', 0) else 0}
v_cndmask_b32 v{V_T}, 0, v{V_T}, vcc
v_add_u32 v{V_KVA}, v{V_KVA}, v{V_T}
v_lshlrev_b32 v{V_KVA}, {PSH}, v{V_KVA}
v_add_u32 v{V_KVA}, {F_PROG}, v{V_KVA}
s_mov_b32 s{S_KVT}, 0
s_mov_b32 s22, 0
s_add_u32 s{S_T}, s{S_H}, {R_U0}
s_lshl_b32 s{S_T}, s{S_T}, {PSH}
s_add_u32 s{S_T}, s{S_T}, {F_PROG}
v_mov_b32 v{V_UXA}, s{S_T}""")
    if flags and w == 0: trace(a, 1, S_J)
    read_polarity(a, pfx)
    if flags and w == 0: trace(a, 2, S_J)
    a("s_barrier")
    mem0_stage(a, w)
    a(f"s_mov_b32 s{S_UXT}, 0\ns_mov_b32 s{S_UXC}, 0")
    kv_dma(a, flags, pfx, w)
    if flags and w == 0: trace(a, 3, S_J)
    a("s_waitcnt vmcnt(0) lgkmcnt(0)")
    a("s_barrier")
    idle_phase(a, w, woq)
    if flags and w == 0:
        dbgt(a, 40, op="max")
        trace(a, 4, S_J)
        if int(os.environ.get('TRACE', 0)):
            a("s_memtime s[86:87]\ns_waitcnt lgkmcnt(0)")
            trace(a, 6, S_J, val=86)
    stamp(a, 0)
    if OPT('STAMP', 0): a(f"s_waitcnt lgkmcnt(0)\ns_sub_u32 s101, s{S_TS}, s100")
    pfx0 = pfx
    a(f"s_cmp_eq_u32 s{S_MODE}, 0")
    a(f"s_cbranch_scc1 {pfx0}S_B0")
    a(f"s_branch {pfx0}F_B0")
    for mode in (1, 0):
        CURMODE[0] = mode
        pfx = pfx0 + ("F" if mode else "S")
        main_loop(a, w, flags, pfx, nt, w8, woq)
    CURMODE[0] = None

def main_loop(a, w, flags, pfx, nt, w8, woq):
    wo8 = lambda t, K: ar((40 + t*6 + 2*K)*4, 8)
    a.label(f"{pfx}_LOOP")
    stamp(a, 0)
    if w == 2: ag_poll(a, pfx, w)
    a.label(f"{pfx}_B0")
    a("s_waitcnt lgkmcnt(0)")
    a("s_barrier")
    mark(a, S_REF0)
    stamp(a, 1)
    proj_stage(a, 2, w8)
    for x in pack_pair(V_ACC, V_ACC+4, V_PK): a(x)
    store_mode(a, [f"buffer_store_dwordx2 {vr(V_PK,2)}, v{V_AST}, s[{S_WS}:{S_WS+3}], s{S_CUR} offen SCX"])
    stamp(a, 2)
    if w < 2 or OPT('UXRD', 0):
        a(f"s_cmp_lg_u32 s{S_STEP}, 0")
        a(f"s_cbranch_scc1 {pfx}_NOS1")
        if w < 2: kv_dma(a, flags, pfx, w)
        if OPT('UXRD', 0): ux_load(a, w, flags, pfx)
        a.label(f"{pfx}_NOS1")
    for t in range(nt):
        for r in range(4): a(f"v_mov_b32 v{V_Y+4*t+r}, 0")
    wait_mode(a, S_REF0, OPT('T_AF', 0), OPT('T_A', 1150))
    def mkA(b): return [f"buffer_load_dwordx4 {vr(b+4*k)}, v{V_APO+k}, s[{S_WS}:{S_WS+3}], s{S_CUR} offen sc1" for k in range(2)]
    def stA(b):
        a(f"ds_write_b128 v{V_APL}, {vr(b)}")
        a(f"ds_write_b128 v{V_APL}, {vr(b+4)} offset:1024")
    if CURMODE[0] and OPT('POLL2', 0):
        poll2(a, f"{pfx}_AP", mkA, 8, V_POLL, V_POLL+8, 93, stA, gap=OPT('GAPA', 2))
    else:
        if OPT('SPEC', 1): poll_loop(a, f"{pfx}_AP", mkA(V_POLL), 8, 93, spec=lambda: stA(V_POLL))
        else:
            poll_loop(a, f"{pfx}_AP", mkA(V_POLL), 8, 93)
            stA(V_POLL)
    a("s_waitcnt lgkmcnt(0)")
    stamp(a, 3)
    a("s_barrier")
    stamp(a, 4)
    reads = []
    for p in range(6):
        for (reg, typ) in ((V_QF, 0), (V_KF, 1)):
            for k in range(2):
                reads.append(f"ds_read_b64_tr_b16 {vr(reg+4*p+2*k,2)}, v{V_RQ} offset:{typ*3072 + (2*p+k)*256}")
    vreads = [f"ds_read_b64_tr_b16 {vr(V_VF+4*K+2*k,2)}, v{V_RV} offset:{K*1024 + k*64}" for K in range(3) for k in range(2)]
    TWOB = OPT('TWOB', 1)
    if not TWOB: reads += vreads
    issued = 0
    def iss(n):
        nonlocal issued
        for _ in range(n):
            if issued < len(reads): a(reads[issued]); issued += 1
    iss(12)
    for p in range(6):
        a(f"s_waitcnt lgkmcnt({issued - (4*p+4)})")
        for u, A_ in enumerate((vr(V_KXF+4*p), vr(V_KXF+4*(6+p)), vr(V_KF+4*p))):
            d = V_S + (4 if u == 0 else 8 if u == 1 else 0)
            c = "0" if p == 0 else vr(d)
            a(f"v_mfma_f32_16x16x32_bf16 {vr(d)}, {A_}, {vr(V_QF+4*p)}, {c}")
        iss(4)
    if TWOB:
        a("s_barrier")
        if w == 2: mark(a, 96)
        for x in vreads: a(x)
    stamp(a, 5)
    ym = []
    for K in range(3):
        for t in range(nt):
            pre = f"s_waitcnt lgkmcnt({6 - (2*K + 2)})\n" if t == 0 else ""
            ym.append(pre + f"v_smfmac_f32_16x16x64_bf16 {vr(V_Y+4*t)}, {vr(V_VF+4*K)}, {wo8(t,K)}, v{V_IDX}")
    PT, PM, RS_, L1, L2 = softmax_lists()
    yc = [f"v_cvt_pk_bf16_f32 v{V_YF+2*t+k}, v{V_Y+4*t+2*k}, v{V_Y+4*t+2*k+1}" for t in range(nt) for k in range(2)]
    Y0 = OPT('Y0', 10)
    for i, x in enumerate(L1):
        if ym and i >= Y0: a(ym.pop(0))
        a(x)
    while ym: a(ym.pop(0))
    for t in range(nt):
        a(f"v_mfma_f32_16x16x32_bf16 {vr(V_PU+4*t)}, {vr(V_UXF+4*t)}, {vr(PT)}, 0")
        for _ in range(2):
            if yc: a(yc.pop(0))
    for t in range(nt):
        a(f"v_mfma_f32_16x16x16_bf16 {vr(V_PU+4*t)}, {vr(V_YF+2*t,2)}, {vr(PM,2)}, {vr(V_PU+4*t)}")
        for _ in range(4):
            if L2: a(L2.pop(0))
    while L2: a(L2.pop(0))
    a(f"v_mov_b32 v{RS_+1}, v{RS_}")
    for t in range(nt):
        for r in range(0, 4, 2): a(f"v_pk_mul_f32 {vr(V_PU+4*t+r,2)}, {vr(V_PU+4*t+r,2)}, {vr(RS_,2)}")
    for t in range(nt):
        a(f"v_cvt_pk_bf16_f32 v{V_RSP+2*t}, v{V_PU+4*t}, v{V_PU+4*t+1}")
        a(f"v_cvt_pk_bf16_f32 v{V_RSP+2*t+1}, v{V_PU+4*t+2}, v{V_PU+4*t+3}")
    a(f"s_add_u32 s{S_T}, s{S_CUR}, s{S_RSB}")
    a(f"s_mov_b64 exec, s[{S_M8}:{S_M8+1}]")
    for P in range(nt//2):
        if P > 0: a(f"s_add_u32 s{S_T}, s{S_T}, 32768")
        a(f"buffer_store_dwordx4 {vr(V_RSP+4*P)}, v{V_RSO}, s[{S_WS}:{S_WS+3}], s{S_T} offen sc1")
    if CURMODE[0] and RSLOC():
        a(f"s_xor_b32 s74, s{S_CUR}, 8192")
        for P in range(nt//2):
            a(f"s_add_u32 s{S_T}, s{76+P}, s74")
            a(f"buffer_store_dwordx4 {vr(V_RSP+4*P)}, v{V_RSOL}, s[{S_WS}:{S_WS+3}], s{S_T} offen")
    stamp(a, 6)
    a("s_mov_b64 exec, -1")
    if (w < 2 or OPT('UXRD', 0)) and not OPT('NODMA', 0):
        a(f"s_cmp_eq_u32 s{S_STEP}, 63")
        a(f"s_cbranch_scc1 {pfx}_NODMA")
        if OPT('UXRD', 0): ux_load(a, w, flags, pfx)
        if w < 2: kv_dma(a, flags, pfx, w)
        a.label(f"{pfx}_NODMA")
    a(f"s_mov_b64 exec, s[{S_M8}:{S_M8+1}]")
    a(f"s_cmp_lg_u32 s{S_C}, 0")
    a(f"s_cbranch_scc1 {pfx}_NOKM")
    for k in range(2 if not OPT('NOKM', 0) else 0):
        a(f"buffer_store_dwordx4 {vr(V_KF+4*(2*w+k))}, v{V_KMS}, s[{S_WS}:{S_WS+3}], s{S_KMG} offen offset:{k*512} sc1")
    a.label(f"{pfx}_NOKM")
    a("s_mov_b64 exec, -1")
    a(f"s_add_u32 s{S_KMG}, s{S_KMG}, {32*3072}")
    for t in range(nt):
        for r in range(4): a(f"v_mov_b32 v{V_PU+r}, v{V_Y+4*t+r}")
        for r in range(4): a(f"v_permlane32_swap_b32 v{V_Y+4*t+r}, v{V_PU+r}")
        for r in range(4): a(f"v_add_f32 v{V_Y+4*t+r}, v{V_Y+4*t+r}, v{V_PU+r}")
        a(f"v_cvt_pk_bf16_f32 v{V_YF+2*t}, v{V_Y+4*t}, v{V_Y+4*t+1}")
        a(f"v_cvt_pk_bf16_f32 v{V_YF+2*t+1}, v{V_Y+4*t+2}, v{V_Y+4*t+3}")
    a("s_mov_b32 exec_hi, 0")
    for t in range(nt if not OPT('NOUY', 0) else 0):
        a(f"buffer_store_dwordx2 {vr(V_YF+2*t,2)}, v{V_L4}, s[{S_WS}:{S_WS+3}], s{S_UYG} offen offset:{t*256} sc1")
    a("s_mov_b64 exec, -1")
    a(f"s_add_u32 s{S_UYG}, s{S_UYG}, {32*40*256}")
    if w == 2 and not OPT('NOFLG', 0):
        a(f"v_mov_b32 v{V_T}, s{S_STEP}")
        a("s_mov_b64 exec, 1")
        a(f"buffer_store_dword v{V_T}, v{V_ZERO}, s[{S_WS}:{S_WS+3}], s{S_FLG} offen sc1")
        a(f"s_cmp_lg_u32 s{S_J}, 0")
        a(f"s_cbranch_scc1 {pfx}_NOPROG")
        a(f"s_mov_b32 s{S_T}, {F_RPROG}")
        a(f"buffer_store_dword v{V_T}, v{V_ZERO}, s[{S_WS}:{S_WS+3}], s{S_T} offen sc1")
        a.label(f"{pfx}_NOPROG")
        a("s_mov_b64 exec, -1")
    a(f"s_add_u32 s{S_STEP}, s{S_STEP}, 1")
    a(f"s_cmp_ge_u32 s{S_STEP}, 64")
    a(f"s_cbranch_scc1 {pfx}_DONE")
    stamp(a, 7)
    idle_phase(a, w, woq)
    if w == 2:
        a(f"s_cmp_eq_u32 s{S_RED}, 0")
        a(f"s_cbranch_scc1 {pfx}_NORED")
        wait_until(a, 96, OPT('T_RS', 1150))
        a(f"s_add_u32 s{S_T2}, s{S_CUR}, s{S_RSP}")
        reduce_blocks(a, pfx, 1, 240, 48, (S_T2,), V_AGS, 64, 80, s_loc0=(72,), s_loc=(74,), sqbase=64)
        a.label(f"{pfx}_NORED")
    rotate_slots(a)
    stamp_acc(a)
    if w == 2: mark(a, S_REF2)
    a(f"s_branch {pfx}_LOOP")
    a.label(f"{pfx}_DONE")
    a("s_waitcnt vmcnt(0)")
    a("s_barrier")
    if flags and w == 0:
        dbgt(a, 44, op="max")
        trace(a, 5, S_J)
        if int(os.environ.get('TRACE', 0)):
            a("s_memtime s[86:87]\ns_waitcnt lgkmcnt(0)")
            trace(a, 7, S_J, val=86)
    if w == 2:
        a(f"v_mov_b32 v{V_T}, 64")
        a("s_mov_b64 exec, 1")
        a(f"buffer_store_dword v{V_T}, v{V_ZERO}, s[{S_WS}:{S_WS+3}], s{S_FLG} offen sc1")
        a(f"s_cmp_lg_u32 s{S_J}, 0")
        a(f"s_cbranch_scc1 {pfx}_NOPROG2")
        a(f"s_mov_b32 s{S_T}, {F_RPROG}")
        a(f"buffer_store_dword v{V_T}, v{V_ZERO}, s[{S_WS}:{S_WS+3}], s{S_T} offen sc1")
        a.label(f"{pfx}_NOPROG2")
        a("s_waitcnt vmcnt(0)")
        a("s_mov_b64 exec, -1")
    stamp_out(a, w)
    a("s_endpgm")

def stamp_acc(a):
    if not OPT('STAMP', 0): return
    a(f"s_memtime s[{S_TS+16}:{S_TS+17}]")
    a("s_waitcnt lgkmcnt(0)")
    for k in range(8):
        a(f"s_sub_u32 s{S_T}, s{S_TS+2*k+2}, s{S_TS+2*k}")
        a(f"s_add_u32 s{80+k}, s{80+k}, s{S_T}")

def stamp_out(a, w):
    if not OPT('STAMP', 0): return
    a.uid += 1
    L = f"STO_{w}_{a.uid}"
    a(f"""s_cmp_lg_u32 s{S_J}, {OPT('STAMPROLE', 0)}
s_cbranch_scc1 {L}
s_waitcnt lgkmcnt(0)
s_load_dwordx2 s[96:97], s[0:1], {KA['dbg']}
s_waitcnt lgkmcnt(0)
s_mov_b64 exec, 1""")
    for k in range(8):
        a(f"v_mov_b32 v10, s{80+k}\nv_mov_b32 v11, {64 + w*48 + k*4}\nglobal_store_dword v11, v10, s[96:97]\ns_waitcnt vmcnt(0)")
    if w == 0:
        a(f"v_mov_b32 v10, s95\nv_mov_b32 v11, 40\nglobal_store_dword v11, v10, s[96:97]\ns_waitcnt vmcnt(0)")
        a(f"v_mov_b32 v10, s101\nv_mov_b32 v11, 44\nglobal_store_dword v11, v10, s[96:97]\ns_waitcnt vmcnt(0)")
    for k in range(3):
        a(f"v_mov_b32 v10, s{92+k}\nv_mov_b32 v11, {64 + w*48 + 32 + k*4}\nglobal_store_dword v11, v10, s[96:97]\ns_waitcnt vmcnt(0)")
    a.label(L)

def common_setup(a, w):
    a(f"""v_lshlrev_b32 v{V_L16}, 4, v{V_LANE}
v_lshlrev_b32 v{V_L4}, 3, v{V_LANE}
v_mov_b32 v{V_ZERO}, 0
s_mov_b32 s{S_M8}, 0x00ff00ff
s_mov_b32 s{S_M8+1}, 0x00ff00ff
s_mov_b32 s{S_H8}, 0xff00ff00
s_mov_b32 s{S_H8+1}, 0xff00ff00
s_mov_b32 s{S_HI32}, 0
s_mov_b32 s{S_HI32+1}, -1
v_mov_b32 v{V_NINF}, 0xff800000
s_mov_b32 s{S_MQ}, 0x0000ffff
s_mov_b32 s{S_MQ+1}, 0x0000ffff
v_mov_b32 v{V_IDX}, 0x44444444
v_mov_b32 v{V_T}, 0xeeeeeeee
v_cndmask_b32 v{V_IDX}, v{V_IDX}, v{V_T}, s[{S_H8}:{S_H8+1}]
s_mov_b32 s{S_SCALE}, 0x{f2u(192**-0.5*1.4426950408889634):08x}
s_mov_b32 s{S_MAXR}, {OPT('MAXRETRY', 400000)}
s_mov_b32 s{S_STEP}, 0""")
    for k in range(8): a(f"s_mov_b32 s{80+k}, 0")
    for k in range(92, 95): a(f"s_mov_b32 s{k}, 0")
    if w >= 2:
        a(f"s_lshr_b32 s{S_T}, s{S_J}, 5")
        a(f"s_mul_i32 s{S_T}, s{S_T}, 10240")
        a(f"s_add_u32 s{S_T}, s{S_T}, {AG_LOG + (w-2)*5120}")
        for k in range(5):
            a(f"v_add_u32 v{V_AGP+k}, s{S_T}, v{V_L16}")
            if k: a(f"v_add_u32 v{V_AGP+k}, {k*1024}, v{V_AGP+k}")
            nearmap_v(a, V_AGP+k, V_T2)
    a(f"v_add_u32 v{V_AGL}, {L_MEM + w*2560}, v{V_L16}")

V_M0 = 200
def mem0_stage(a, w):
    a(f"ds_write_b128 v{V_AGL}, {vr(V_M0)}")
    a(f"ds_write_b128 v{V_AGL}, {vr(V_M0+4)} offset:1024")
    a("s_mov_b32 exec_hi, 0")
    a(f"ds_write_b128 v{V_AGL}, {vr(V_M0+8)} offset:2048")
    a("s_mov_b64 exec, -1")

def mem0_load(a, w):
    for k in range(3):
        a(f"""v_add_u32 v{V_T}, {160*w + 64*k}, v{V_LANE}
v_and_b32 v{V_T2}, 7, v{V_T}
v_mul_u32_u24 v{V_T2}, 1280, v{V_T2}
v_lshrrev_b32 v{V_M0+12}, 5, v{V_T}
v_lshlrev_b32 v{V_M0+12}, 6, v{V_M0+12}
v_add_u32 v{V_T2}, v{V_T2}, v{V_M0+12}
v_bfe_u32 v{V_T}, v{V_T}, 3, 2
v_lshlrev_b32 v{V_T}, 3, v{V_T}
v_add_u32 v{V_T}, v{V_T}, v{V_T2}""")
        a(f"buffer_load_dwordx2 {vr(V_M0+4*k,2)}, v{V_T}, s[{S_M0}:{S_M0+3}], 0 offen")
        a(f"buffer_load_dwordx2 {vr(V_M0+4*k+2,2)}, v{V_T}, s[{S_M0}:{S_M0+3}], 0 offen offset:32")

def service_wave(a):
    w = 3; pfx = "RS3"
    wreg = WReg(0, 256, 0)
    mem0_load(a, w)
    a(f"s_lshl_b32 s{S_LB}, s{S_WAVE}, 15")
    if OPT('COOP', 1):
        coop_load(a, w, wreg)
    else:
        a(f"""s_mul_i32 s{S_COL}, s{S_H}, 384
s_mul_i32 s{S_T}, s{S_C}, 96
s_add_u32 s{S_COL}, s{S_COL}, s{S_T}""")
        units = [(S_WV, S_COL, t*32 + p*32*H*E*2) for p in range(20) for t in range(3)]
        load_w2(a, units, lambda u, T, k: wreg.pair((u % 3)*20 + u // 3, k), 1, H*E*2, 2, V_LANE, V_POLL, V_POLL+1, V_T, S_T, S_LB)
    common_setup(a, w)
    PQ = V_KXF; PV_ = V_KXF+2; R = V_KXF+6; SEL = V_KXF+8; ONES = V_KXF+12; AGZ = V_KXF+7; RSO2 = V_KXF+5
    a(f"""v_lshrrev_b32 v{V_AST}, 1, v{V_G}
v_lshlrev_b32 v{V_AST}, 8, v{V_AST}
v_lshlrev_b32 v{V_T}, 4, v{V_N}
v_add_u32 v{V_AST}, v{V_AST}, v{V_T}
v_and_b32 v{V_T}, 1, v{V_G}
v_lshlrev_b32 v{V_T}, 3, v{V_T}
v_add_u32 v{V_AST}, v{V_AST}, v{V_T}
v_lshlrev_b32 v{V_AST+1}, 4, v{V_N}
v_add_u32 v{V_AST+1}, v{V_AST+1}, v{V_T}
s_mul_i32 s{S_T2}, s{S_H}, 9216
s_mul_i32 s{S_T}, s{S_C}, 768
s_add_u32 s{S_T}, s{S_T}, s{S_T2}
v_add_u32 v{PQ}, s{S_T}, v{V_L16}
v_add_u32 v{PQ+1}, 3072, v{PQ}
v_add_u32 v{PV_}, 6144, v{PQ}
s_add_u32 s{S_T}, s{S_T}, 6144
v_add_u32 v{V_AST}, s{S_T}, v{V_AST}
v_add_u32 v{V_AST+1}, s{S_T}, v{V_AST+1}
v_add_u32 v{V_AST+1}, 512, v{V_AST+1}""")
    for r in (V_AST, V_AST+1, PV_, PQ, PQ+1): nearmap_v(a, r, V_T)
    oob_mask(a, PV_, 48); oob_mask(a, PQ+1, 48); oob_mask(a, PQ, 48); oob_mask(a, V_AST+1, 32)
    for k in range(3):
        a(f"v_add_u32 v{V_APO+k}, s{S_T2}, v{V_L16}")
        a(f"v_add_u32 v{V_APO+k}, {6144 + k*1024}, v{V_APO+k}")
        nearmap_v(a, V_APO+k, V_T)
    a(f"v_add_u32 v{V_APL}, {L_QKV + 6144}, v{V_L16}")
    rs_lane(a, R)
    a(f"""s_mul_i32 s{S_RSB}, s{S_C}, {5*32768}
s_add_u32 s{S_RSB}, s{S_RSB}, {nearmap(RS_LOG)}
s_and_b32 s{S_COL}, s{S_J}, 31""")
    blk_off(a, S_COL, S_RSP, S_T)
    loc_off(a, S_COL, 72, S_T)
    a(f"s_add_u32 s{S_COL}, s{S_COL}, 32")
    blk_off(a, S_COL, S_RED, S_T)
    loc_off(a, S_COL, 73, S_T)
    rs_local_lane(a, V_RSOL)
    a(f"""s_lshr_b32 s77, s{S_J}, 5
s_mul_i32 s77, s77, 81920
s_mul_i32 s{S_T}, s{S_C}, {5*4096}
s_add_u32 s77, s77, s{S_T}""")
    a(f"""s_lshr_b32 s{S_T}, s{S_J}, 5
s_mul_i32 s{S_T}, s{S_T}, 10240
s_add_u32 s{S_T}, s{S_T}, {AG_LOG}
s_and_b32 s{S_T2}, s{S_J}, 31
s_lshl_b32 s{S_T3}, s{S_T2}, 7
s_add_u32 s{S_T}, s{S_T}, s{S_T3}
v_lshrrev_b32 v{V_AGS}, 3, v{V_LANE}
v_lshlrev_b32 v{V_AGS}, 12, v{V_AGS}
v_and_b32 v{V_T}, 7, v{V_LANE}
v_lshlrev_b32 v{V_T}, 4, v{V_T}
v_add_u32 v{V_AGS}, v{V_AGS}, v{V_T}
v_add_u32 v{V_AGS}, s{S_T}, v{V_AGS}""")
    nearmap_v(a, V_AGS, V_T)
    a(f"v_mov_b32 v{AGZ}, v{V_AGS}")
    a(f"""v_bfe_u32 v{V_AGS}, v{V_LANE}, 3, 1
v_lshlrev_b32 v{V_AGS}, 12, v{V_AGS}
v_and_b32 v{V_T}, 7, v{V_LANE}
v_lshlrev_b32 v{V_T}, 4, v{V_T}
v_add_u32 v{V_AGS}, v{V_AGS}, v{V_T}
v_lshlrev_b32 v{V_T}, 3, v{V_G}
v_add_u32 v{V_AGS}, v{V_AGS}, v{V_T}
s_lshr_b32 s{S_T}, s{S_J}, 5
s_mul_i32 s{S_T}, s{S_T}, 10240
s_add_u32 s{S_T}, s{S_T}, {AG_LOG}
s_add_u32 s{S_T}, s{S_T}, s{S_T3}
v_add_u32 v{V_AGS}, s{S_T}, v{V_AGS}""")
    nearmap_v(a, V_AGS, V_T)
    oob_mask(a, V_AGS, 32)
    a(f"""v_mov_b32 v{RSO2}, s{S_RSP}
v_mov_b32 v{V_T}, s{S_RED}
v_cndmask_b32 v{RSO2}, v{RSO2}, v{V_T}, s[{S_H8}:{S_H8+1}]
v_lshlrev_b32 v{V_T}, 7, v{V_G}
v_add_u32 v{RSO2}, v{RSO2}, v{V_T}
v_and_b32 v{V_T}, 7, v{V_LANE}
v_lshlrev_b32 v{V_T}, 4, v{V_T}
v_add_u32 v{RSO2}, v{RSO2}, v{V_T}""")
    a(f"s_cmp_lt_u32 s{S_T2}, 16")
    a(f"s_cselect_b32 s{S_T}, 24, 16")
    a(f"v_mov_b32 v{V_T}, 0x80000000")
    a(f"v_cmp_gt_u32 vcc, s{S_T}, v{V_LANE}")
    a(f"v_cndmask_b32 v{AGZ}, v{V_T}, v{AGZ}, vcc")
    sel_setup(a, SEL)
    for k in range(4): a(f"v_mov_b32 v{ONES+k}, -1")
    a(f"v_mov_b32 v{ONES+4}, 1")
    read_polarity(a, pfx)
    a("s_barrier")
    mem0_stage(a, w)
    a("s_waitcnt vmcnt(0) lgkmcnt(0)")
    a("s_barrier")
    stamp(a, 0)
    pfx0 = pfx
    a(f"s_cmp_eq_u32 s{S_MODE}, 0")
    a(f"s_cbranch_scc1 {pfx0}S_B0")
    a(f"s_branch {pfx0}F_B0")
    for mode in (1, 0):
        CURMODE[0] = mode
        pfx = pfx0 + ("F" if mode else "S")
        service_loop(a, pfx, PQ, PV_, R, SEL, ONES, AGZ, RSO2)
    CURMODE[0] = None

def service_loop(a, pfx, PQ, PV_, R, SEL, ONES, AGZ, RSO2):
    a.label(f"{pfx}_LOOP")
    stamp(a, 0)
    ag_poll(a, pfx, 3)
    a.label(f"{pfx}_B0")
    a("s_waitcnt lgkmcnt(0)")
    a("s_barrier")
    mark(a, S_REF0)
    stamp(a, 1)
    SP = 140
    w8s = lambda t, K: ar((t*20 + 2*K)*4, 8)
    for K in range(10):
        a(f"ds_read_b128 {vr(V_RING+4*K)}, v{V_L16} offset:{L_MEM + K*1024}")
    for r in range(12): a(f"v_mov_b32 v{V_ACC+r}, 0")
    for K in range(10):
        a(f"s_waitcnt lgkmcnt({9-K})")
        for t in range(2):
            a(f"v_smfmac_f32_16x16x64_bf16 {vr(V_ACC+4*t)}, {vr(V_RING+4*K)}, {w8s(t,K)}, v{V_IDX}")
    P01 = pack_pair(V_ACC, V_ACC+4, SP)
    for K in range(10):
        a(f"v_smfmac_f32_16x16x64_bf16 {vr(V_ACC+8)}, {vr(V_RING+4*K)}, {w8s(2,K)}, v{V_IDX}")
        if K >= 2 and P01: a(P01.pop(0))
        if K >= 6 and P01: a(P01.pop(0))
    while P01: a(P01.pop(0))
    store_mode(a, [f"buffer_store_dwordx2 {vr(SP,2)}, v{V_AST}, s[{S_WS}:{S_WS+3}], s{S_CUR} offen SCX"])
    for r in range(4): a(f"v_mov_b32 v{SP+8+r}, v{V_ACC+8+r}")
    for x in pack_pair(V_ACC+8, SP+8, SP+4): a(x)
    store_mode(a, [f"buffer_store_dwordx2 {vr(SP+4,2)}, v{V_AST+1}, s[{S_WS}:{S_WS+3}], s{S_CUR} offen SCX"])
    stamp(a, 2)
    wait_mode(a, S_REF0, OPT('T_VF', 1300), OPT('T_V', 1500))
    loads = [f"buffer_load_dwordx4 {vr(V_POLL+4*k)}, v{V_APO+k}, s[{S_WS}:{S_WS+3}], s{S_CUR} offen sc1" for k in range(3)]
    if OPT('TWOB', 1):
        for x in loads: a(x)
        stamp(a, 3)
        a("s_barrier")
        stamp(a, 4)
        def stV():
            for k in range(3):
                a(f"ds_write_b128 v{V_APL}, {vr(V_POLL+4*k)} offset:{k*1024}")
        if OPT('SPEC', 1): poll_loop(a, f"{pfx}_VP", loads, 12, 93, pre_issued=True, spec=stV)
        else:
            poll_loop(a, f"{pfx}_VP", loads, 12, 93, pre_issued=True)
            stV()
        a("s_waitcnt lgkmcnt(0)")
        a("s_barrier")
        mark(a, 96)
        stamp(a, 5)
    else:
        poll_loop(a, f"{pfx}_VP", loads, 12, 93)
        for k in range(3):
            a(f"ds_write_b128 v{V_APL}, {vr(V_POLL+4*k)} offset:{k*1024}")
        a("s_waitcnt lgkmcnt(0)")
        stamp(a, 3)
        a("s_barrier")
        mark(a, 96)
        stamp(a, 4)
        stamp(a, 5)
    a(f"s_cmp_eq_u32 s{S_STEP}, 63")
    a(f"s_cbranch_scc1 {pfx}_DONE")
    store_mode(a, [f"buffer_store_dwordx4 {vr(ONES)}, v{r}, s[{S_WS}:{S_WS+3}], s{S_NN} offen SCX" for r in (PQ, PQ+1, PV_)])
    a(f"s_add_u32 s{S_T}, s{S_NN}, s{S_RSB}")
    a(f"s_mov_b64 exec, s[{S_M8}:{S_M8+1}]")
    for P in range(5):
        if P > 0: a(f"s_add_u32 s{S_T}, s{S_T}, 32768")
        a(f"buffer_store_dwordx4 {vr(ONES)}, v{R}, s[{S_WS}:{S_WS+3}], s{S_T} offen sc1")
    if CURMODE[0] and RSLOC():
        a(f"s_xor_b32 s74, s{S_NN}, 8192")
        for P in range(5):
            a(f"s_add_u32 s{S_T}, s77, {P*4096}")
            smap(a, S_T, S_T2)
            a(f"s_add_u32 s{S_T}, s{S_T}, s74")
            a(f"buffer_store_dwordx4 {vr(ONES)}, v{V_RSOL}, s[{S_WS}:{S_WS+3}], s{S_T} offen")
    a("s_mov_b64 exec, -1")
    store_mode(a, [f"buffer_store_dwordx4 {vr(ONES)}, v{AGZ}, s[{S_WS}:{S_WS+3}], s{S_NN} offen SCX"])
    stamp(a, 6)
    wait_until(a, 96, OPT('T_RS', 1150))
    if OPT('RED2', 1):
        reduce2(a, pfx, SEL, 32, RSO2, V_AGS, 64, 160)
    else:
        raise SystemExit("RED2=0 no longer supported")
    a(f"s_add_u32 s{S_STEP}, s{S_STEP}, 1")
    a(f"s_cmp_ge_u32 s{S_STEP}, 64")
    a(f"s_cbranch_scc1 {pfx}_DONE")
    rotate_slots(a)
    stamp_acc(a)
    mark(a, S_REF2)
    a(f"s_branch {pfx}_LOOP")
    a.label(f"{pfx}_DONE")
    a("s_waitcnt vmcnt(0)")
    a("s_barrier")
    stamp_out(a, 3)
    a("s_endpgm")

def rec_entry(a):
    a(f"""s_load_dwordx4 s[64:67], s[0:1], {KA['wq']}
s_load_dwordx4 s[68:71], s[0:1], {KA['wv']}
s_load_dwordx2 s[72:73], s[0:1], {KA['mem0']}
s_waitcnt lgkmcnt(0)""")
    srd(a, S_WQ, 64, D*H*E*2); srd(a, S_WK, 66, D*H*E*2); srd(a, S_WV, 68, D*H*E*2); srd(a, S_WO, 70, D*H*E*2)
    srd(a, S_M0, 72, M*D*2)
    a(f"s_lshr_b32 s{S_H}, s{S_J}, 2\ns_and_b32 s{S_C}, s{S_J}, 3")

def probe(a, s_k, s_xcc, lbl, s_dbg):
    a(f"""s_mov_b64 exec, 1
v_mov_b32 v10, -1
s_lshl_b32 s{S_T}, s{s_k}, 21
s_add_u32 s{S_T}, s{S_T}, {RING + PROBE_OFF}
v_mov_b32 v11, s{S_T}
v_add_u32 v13, 8192, v11
s_mov_b32 s{S_T2}, 0
s_mov_b32 s84, -1
s_mov_b32 s85, -1""")
    a.label(f"{lbl}_R")
    a(f"""buffer_store_dword v10, v11, s[{S_WS}:{S_WS+3}], 0 offen sc1
buffer_store_dword v10, v13, s[{S_WS}:{S_WS+3}], 0 offen sc1
s_waitcnt vmcnt(0)
s_sleep 6""")
    for hsel in range(2):
        a(f"""s_memtime s[80:81]
s_waitcnt lgkmcnt(0)
buffer_load_dword v12, v{11 if hsel == 0 else 13}, s[{S_WS}:{S_WS+3}], 0 offen sc1
s_waitcnt vmcnt(0)
s_memtime s[82:83]
s_waitcnt lgkmcnt(0)
s_sub_u32 s{86+hsel}, s82, s80""")
    a(f"""s_min_u32 s84, s84, s86
s_min_u32 s85, s85, s87
s_add_u32 s{S_T2}, s{S_T2}, 1
s_cmp_lt_u32 s{S_T2}, {OPT('PROBE_N', 7)}
s_cbranch_scc1 {lbl}_R
s_cmp_lt_u32 s85, s84
s_cselect_b32 s{S_T3}, 1, 0
s_lshr_b32 s{S_T}, s{s_xcc}, 2
s_xor_b32 s{S_T3}, s{S_T3}, s{S_T}
s_and_b32 s{S_T3}, s{S_T3}, 1
s_or_b32 s{S_T3}, s{S_T3}, 2
s_lshl_b32 s{S_T}, s{s_k}, 1
s_lshl_b32 s{S_T3}, s{S_T3}, s{S_T}
v_mov_b32 v10, s{S_T3}
v_mov_b32 v11, {DB_POL}
global_atomic_or v11, v10, s[{s_dbg}:{s_dbg+1}] sc1
s_waitcnt vmcnt(0)
s_mov_b64 exec, -1""")

def rec_dispatch(a, flags=False):
    a(f"""s_cmp_eq_u32 s{S_WAVE}, 0
s_cbranch_scc1 RK_W0
s_cmp_eq_u32 s{S_WAVE}, 1
s_cbranch_scc1 RK_W1
s_cmp_eq_u32 s{S_WAVE}, 2
s_cbranch_scc1 RK_W2
s_branch RK_W3""")
    for w in range(3):
        a.label(f"RK_W{w}")
        main_wave(a, w, flags)
    a.label("RK_W3")
    service_wave(a)

def gen_rec_kernel():
    a = Asm(); name = "rec_kernel"
    kernel_header(a, name)
    if OPT('STAMP', 0): a("s_memtime s[100:101]")
    a(f"""s_cmp_ge_u32 s2, 256
s_cbranch_scc1 RK_END
s_load_dwordx2 s[74:75], s[0:1], {KA['ws']}
s_load_dwordx2 s[76:77], s[0:1], {KA['dbg']}
s_getreg_b32 s78, hwreg(HW_REG_XCC_ID)
s_and_b32 s78, s78, 15
s_waitcnt lgkmcnt(0)""")
    srd(a, S_WS, 74, WS_SIZE)
    lane_setup(a, V_LANE, V_G, V_N, S_WAVE)
    a(f"""s_cmp_lg_u32 s{S_WAVE}, 0
s_cbranch_scc1 RK_NORANK
v_mov_b32 v10, 1
s_lshl_b32 s79, s78, 2
v_mov_b32 v11, s79
s_mov_b64 exec, 1
global_atomic_add v12, v11, v10, s[76:77] sc0 sc1
s_waitcnt vmcnt(0)
v_mov_b32 v11, 0
ds_write_b32 v11, v12
s_waitcnt lgkmcnt(0)
s_mov_b64 exec, -1""")
    a.label("RK_NORANK")
    a(f"""s_barrier
v_mov_b32 v11, 0
ds_read_b32 v12, v11
s_waitcnt lgkmcnt(0)
v_readfirstlane_b32 s79, v12
s_barrier
s_cmp_lt_u32 s78, 4
s_cbranch_scc1 RK_REC
s_cmp_lg_u32 s78, 4
s_cbranch_scc1 RK_END
s_cmp_ge_u32 s79, 4
s_cbranch_scc1 RK_END
s_cmp_lg_u32 s{S_WAVE}, 0
s_cbranch_scc1 RK_END""")
    probe(a, 79, 78, "RK_PR", 76)
    a("s_endpgm")
    a.label("RK_REC")
    a(f"""s_cmp_ge_u32 s79, 32
s_cbranch_scc1 RK_END
s_lshl_b32 s{S_J}, s78, 5
s_add_u32 s{S_J}, s{S_J}, s79""")
    rec_entry(a)
    rec_dispatch(a)
    a.label("RK_END")
    a("s_endpgm")
    return name, a.finalize(), kernel_desc(name, 512, 102, 256)

def read_polarity(a, pfx):
    a(f"s_load_dwordx2 s[96:97], s[0:1], {KA['dbg']}")
    a(f"v_and_b32 v{V_T2}, 15, v{V_LANE}")
    a(f"v_lshlrev_b32 v{V_T2}, 2, v{V_T2}")
    a(f"s_mov_b32 s{S_RETRY}, 0")
    a("s_waitcnt lgkmcnt(0)")
    a.label(f"{pfx}_MD")
    a(f"global_load_dword v{V_T}, v{V_T2}, s[96:97] sc1")
    a("s_waitcnt vmcnt(0)")
    a(f"s_mov_b32 s{S_T}, 0")
    a(f"s_mov_b32 s{S_MODE}, 1")
    for x in range(8):
        a(f"v_readlane_b32 s{S_T2}, v{V_T}, {x}")
        a(f"s_add_u32 s{S_T}, s{S_T}, s{S_T2}")
        a(f"s_cmp_eq_u32 s{S_T2}, 32")
        a(f"s_cselect_b32 s{S_MODE}, s{S_MODE}, 0")
    a(f"v_readlane_b32 s{S_T2}, v{V_T}, {DB_INIT//4}")
    a(f"v_readlane_b32 s{S_T3}, v{V_T}, {DB_POL//4}")
    a(f"s_cmp_ge_u32 s{S_T}, 256")
    a(f"s_cbranch_scc0 {pfx}_MDN")
    if INITWAIT[0]:
        a(f"s_cmp_ge_u32 s{S_T2}, 80")
        a(f"s_cbranch_scc0 {pfx}_MDN")
    a(f"s_and_b32 s{S_T}, s{S_T3}, 0xaa")
    a(f"s_cmp_eq_u32 s{S_T}, 0xaa")
    a(f"s_cbranch_scc1 {pfx}_POLOK")
    a.label(f"{pfx}_MDN")
    a(f"""s_sleep 4
s_add_u32 s{S_RETRY}, s{S_RETRY}, 1
s_cmp_lt_u32 s{S_RETRY}, 0x200000
s_cbranch_scc1 {pfx}_MD
s_mov_b32 s{S_MODE}, 0""")
    a.label(f"{pfx}_POLOK")
    if OPT('FORCESLOW', 0): a(f"s_mov_b32 s{S_MODE}, 0")
    a(f"""s_and_b32 s{S_T}, s{S_T3}, 0x55
s_xor_b32 s{S_T}, s{S_T}, 0x44
s_bcnt1_i32_b32 s{S_T2}, s{S_T}
s_cmp_ge_u32 s{S_T2}, 3
s_cselect_b32 s{S_T}, 0x55, s{S_T}
s_cmp_le_u32 s{S_T2}, 1
s_cselect_b32 s{S_T}, 0, s{S_T}
s_xor_b32 s{S_T3}, s{S_T}, 0x44""")
    if OPT('FLIPPOL', 0): a(f"s_xor_b32 s{S_T3}, s{S_T3}, 0x55")
    for k, s in enumerate((S_CUR, S_N, S_NN, S_P)):
        a(f"""s_bfe_u32 s{S_T}, s{S_T3}, {(1<<16) | (2*k)}
s_lshl_b32 s{S_T}, s{S_T}, 13
s_add_u32 s{s}, s{S_T}, {RING + k*RING_SLOT}""")
```

```python
from asmlib import *
from layout import *

def srd(a, s, ptr_lo, size):
    a(f"""s_mov_b32 s{s}, s{ptr_lo}
s_and_b32 s{s+1}, s{ptr_lo+1}, 0xffff
s_mov_b32 s{s+2}, {size}
s_mov_b32 s{s+3}, 0x00020000""")

def kernel_header(a, name):
    a.raw(f".globl {name}\n.p2align 8\n.type {name},@function\n{name}:")

def kernel_desc(name, vgpr, sgpr, accum):
    return f""".p2align 6
.amdhsa_kernel {name}
  .amdhsa_next_free_vgpr {vgpr}
  .amdhsa_next_free_sgpr {sgpr}
  .amdhsa_accum_offset {accum}
  .amdhsa_group_segment_fixed_size 0
  .amdhsa_kernarg_size 112
  .amdhsa_user_sgpr_count 2
  .amdhsa_user_sgpr_kernarg_segment_ptr 1
  .amdhsa_system_sgpr_workgroup_id_x 1
.end_amdhsa_kernel
"""

def vr(b, n=4): return f"v[{b}:{b+n-1}]"
def ar(b, n=4): return f"a[{b}:{b+n-1}]"

class WReg:
    def __init__(self, abase, acount, vbase):
        self.abase=abase; self.acount=acount; self.vbase=vbase
    def quad(self, f):
        r = f*4
        if r < self.acount: return ar(self.abase + r)
        return vr(self.vbase + r - self.acount)
    def pair(self, f, k):
        r = f*4 + 2*k
        if r < self.acount: return ar(self.abase + r, 2)
        return vr(self.vbase + r - self.acount, 2)

def load_w(a, frags, wreg, v_goff, v_tr, s_tmp, ldsbase_s, perm, nslot=32, grp=4):
    N = len(frags)
    second = 512 if perm else 128
    def issue(f):
        sr, (sc, imm) = frags[f]
        a(f"s_add_u32 s{s_tmp}, s{sc}, {imm}")
        a(f"s_add_u32 m0, s{ldsbase_s}, {(f % nslot)*1024}")
        a(f"buffer_load_dwordx4 v{v_goff}, s[{sr}:{sr+3}], s{s_tmp} offen lds")
    issued = 0
    while issued < min(N, nslot):
        issue(issued); issued += 1
    done = 0
    while done < N:
        g = min(grp, N - done)
        inflight_after = issued - (done + g)
        a(f"s_waitcnt vmcnt({inflight_after})")
        for f in range(done, done + g):
            o = (f % nslot)*1024
            a(f"ds_read_b64_tr_b16 {wreg.pair(f,0)}, v{v_tr} offset:{o}")
            a(f"ds_read_b64_tr_b16 {wreg.pair(f,1)}, v{v_tr} offset:{o+second}")
        done += g
        if issued < N:
            a("s_waitcnt lgkmcnt(0)")
            k = 0
            while issued < N and k < g:
                issue(issued); issued += 1; k += 1
    a("s_waitcnt lgkmcnt(0)")

def lane_setup(a, v_lane, v_g, v_n, s_wave, vtid='v0'):
    a(f"""v_lshrrev_b32 v{v_g}, 6, {vtid}
s_nop 0
v_readfirstlane_b32 s{s_wave}, v{v_g}
v_and_b32 v{v_lane}, 63, {vtid}
v_lshrrev_b32 v{v_g}, 4, v{v_lane}
v_and_b32 v{v_n}, 15, v{v_lane}""")

def w_addr_setup(a, v_lane, v_goff, v_tr, stride, perm, s_ldsbase, vt):
    a(f"""v_lshrrev_b32 v{vt}, 1, v{v_lane}
s_mov_b32 s{s_ldsbase+1}, {stride}
v_mul_lo_u32 v{v_goff}, v{vt}, s{s_ldsbase+1}
v_and_b32 v{vt}, 1, v{v_lane}
v_lshlrev_b32 v{vt}, 4, v{vt}
v_add_u32 v{v_goff}, v{v_goff}, v{vt}
v_lshrrev_b32 v{v_tr}, 4, v{v_lane}
v_lshlrev_b32 v{v_tr}, {2 if perm else 3}, v{v_tr}
v_bfe_u32 v{vt}, v{v_lane}, 2, 2
v_add_u32 v{v_tr}, v{v_tr}, v{vt}
v_lshlrev_b32 v{v_tr}, 5, v{v_tr}
v_and_b32 v{vt}, 3, v{v_lane}
v_lshlrev_b32 v{vt}, 3, v{vt}
v_add_u32 v{v_tr}, v{v_tr}, v{vt}
v_add_u32 v{v_tr}, s{s_ldsbase}, v{v_tr}""")


def wait_words(a, lbl, srd_ws, v_addr, v_tmp, s_thr, s_cache=None, nl=0, s_tmp=None, s_cnt=None, sleep=4, imm_thr=None, far=None):
    thr = f"s{s_thr}" if imm_thr is None else str(imm_thr)
    if s_cache is not None:
        a(f"s_cmp_ge_u32 s{s_cache}, {thr}")
        a(f"s_cbranch_scc1 {lbl}_D")
    a(f"s_mov_b32 s{s_cnt}, 0")
    a.label(lbl)
    a(f"buffer_load_dword v{v_tmp}, v{v_addr}, s[{srd_ws}:{srd_ws+3}], 0 offen sc1")
    a("s_waitcnt vmcnt(0)")
    a(f"v_cmp_gt_u32 vcc, {thr}, v{v_tmp}")
    a(f"s_cbranch_vccz {lbl}_K")
    if far is not None:
        dist, fsl, st = far
        a(f"v_readfirstlane_b32 s{st}, v{v_tmp}")
        a(f"s_add_u32 s{st}, s{st}, {dist}")
        a(f"s_cmp_lt_u32 s{st}, {thr}")
        a(f"s_cbranch_scc0 {lbl}_N")
        a(f"s_sleep {fsl}")
        a.label(f"{lbl}_N")
    a(f"s_sleep {sleep}")
    a(f"s_add_u32 s{s_cnt}, s{s_cnt}, 1")
    a(f"s_cmp_lt_u32 s{s_cnt}, 0x100000")
    a(f"s_cbranch_scc1 {lbl}")
    a.label(f"{lbl}_K")
    if s_cache is not None:
        a(f"v_readlane_b32 s{s_cache}, v{v_tmp}, 0")
        for l in range(1, nl):
            a(f"v_readlane_b32 s{s_tmp}, v{v_tmp}, {l}")
            a(f"s_min_u32 s{s_cache}, s{s_cache}, s{s_tmp}")
    a.label(f"{lbl}_D")

def publish_word(a, srd_ws, v_val, v_zero, s_off, s_val):
    a(f"v_mov_b32 v{v_val}, s{s_val}")
    a("s_mov_b64 exec, 1")
    a(f"buffer_store_dword v{v_val}, v{v_zero}, s[{srd_ws}:{srd_ws+3}], s{s_off} offen sc1")
    a("s_mov_b64 exec, -1")

import os as _os
def trace(a, idx, s_role, s_t=(98,99), v=(250,251), srd_ws=4, wave_s=None, val=None):
    if not int(_os.environ.get('TRACE', 0)): return
    a(f"s_memrealtime s[{s_t[0]}:{s_t[1]}]")
    a("s_waitcnt lgkmcnt(0)")
    a(f"v_mov_b32 v{v[0]}, s{s_t[0] if val is None else val}")
    a(f"s_lshl_b32 s{s_t[1]}, s{s_role}, 8")
    a(f"s_add_u32 s{s_t[1]}, s{s_t[1]}, {TRACE + idx*4}")
    a(f"v_mov_b32 v{v[1]}, s{s_t[1]}")
    a("s_mov_b64 exec, 1")
    a(f"buffer_store_dword v{v[0]}, v{v[1]}, s[{srd_ws}:{srd_ws+3}], 0 offen")
    a("s_mov_b64 exec, -1")


def load_w2(a, units, dst_pair, nt, stride, perm, v_lane, v_goff, v_tr, vt, s_tmp, s_lb, kb=32, mid_hook=None, pre_hook=None):
    lpr = 2*nt
    rows = 64 // lpr
    rb = 32*nt
    sh = {1: 1, 2: 2, 4: 3}[nt]
    a(f"""v_lshrrev_b32 v{vt}, {sh}, v{v_lane}
s_mov_b32 s{s_lb+1}, {stride}
v_mul_lo_u32 v{v_goff}, v{vt}, s{s_lb+1}
v_and_b32 v{vt}, {lpr-1}, v{v_lane}
v_lshlrev_b32 v{vt}, 4, v{vt}
v_add_u32 v{v_goff}, v{v_goff}, v{vt}""")
    if perm == 2:
        a(f"""v_bfe_u32 v{v_tr}, v{v_lane}, 4, 1
v_lshlrev_b32 v{v_tr}, 4, v{v_tr}
v_bfe_u32 v{vt}, v{v_lane}, 5, 1
v_lshlrev_b32 v{vt}, 3, v{vt}
v_add_u32 v{v_tr}, v{v_tr}, v{vt}
v_bfe_u32 v{vt}, v{v_lane}, 2, 1
v_add_u32 v{v_tr}, v{v_tr}, v{vt}
v_bfe_u32 v{vt}, v{v_lane}, 3, 1
v_lshlrev_b32 v{vt}, 2, v{vt}
v_add_u32 v{v_tr}, v{v_tr}, v{vt}""")
    else:
        a(f"""v_lshrrev_b32 v{v_tr}, 4, v{v_lane}
v_lshlrev_b32 v{v_tr}, {2 if perm else 3}, v{v_tr}
v_bfe_u32 v{vt}, v{v_lane}, 2, 2
v_add_u32 v{v_tr}, v{v_tr}, v{vt}""")
    a(f"""v_mul_u32_u24 v{v_tr}, {rb}, v{v_tr}
v_and_b32 v{vt}, 3, v{v_lane}
v_lshlrev_b32 v{vt}, 3, v{vt}
v_add_u32 v{v_tr}, v{v_tr}, v{vt}
v_add_u32 v{v_tr}, s{s_lb}, v{v_tr}""")
    second = (2 if perm == 2 else 16 if perm else 4) * rb
    nslot = kb // nt
    N = len(units)
    def issue(u):
        sr, sc, imm = units[u]
        for j in range(nt):
            a(f"s_add_u32 s{s_tmp}, s{sc}, {imm + j*rows*stride}")
            a(f"s_add_u32 m0, s{s_lb}, {(u % nslot)*nt*1024 + j*1024}")
            a(f"buffer_load_dwordx4 v{v_goff}, s[{sr}:{sr+3}], s{s_tmp} offen lds")
    issued = 0
    if pre_hook: pre_hook()
    while issued < min(N, nslot):
        issue(issued); issued += 1
    if mid_hook: mid_hook()
    done = 0
    grp = max(1, 4 // nt)
    while done < N:
        g = min(grp, N - done)
        a(f"s_waitcnt vmcnt({(issued - (done + g))*nt})")
        for u in range(done, done + g):
            for T in range(nt):
                o = (u % nslot)*nt*1024 + T*32
                a(f"ds_read_b64_tr_b16 {dst_pair(u,T,0)}, v{v_tr} offset:{o}")
                a(f"ds_read_b64_tr_b16 {dst_pair(u,T,1)}, v{v_tr} offset:{o+second}")
        done += g
        if issued < N:
            a("s_waitcnt lgkmcnt(0)")
            k = 0
            while issued < N and k < g:
                issue(issued); issued += 1; k += 1
    a("s_waitcnt lgkmcnt(0)")

def wait_dbg(a, lbl, s_ptr, byte_off, v_a, v_t, s_cnt, s_val, thr=None, mask=None):
    a(f"v_mov_b32 v{v_a}, {byte_off}")
    a(f"s_mov_b32 s{s_cnt}, 0")
    a.label(lbl)
    a(f"global_load_dword v{v_t}, v{v_a}, s[{s_ptr}:{s_ptr+1}] sc1")
    a("s_waitcnt vmcnt(0)")
    a(f"v_readfirstlane_b32 s{s_val}, v{v_t}")
    if thr is not None:
        a(f"s_cmp_ge_u32 s{s_val}, {thr}")
    else:
        a(f"s_and_b32 s{s_cnt+1}, s{s_val}, {mask}")
        a(f"s_cmp_eq_u32 s{s_cnt+1}, {mask}")
    a(f"s_cbranch_scc1 {lbl}_K")
    a("s_sleep 4")
    a(f"s_add_u32 s{s_cnt}, s{s_cnt}, 1")
    a(f"s_cmp_lt_u32 s{s_cnt}, 0x100000")
    a(f"s_cbranch_scc1 {lbl}")
    a.label(f"{lbl}_K")

def dbgt(a, byte_off, s_cond=None, op="store", s_dbg=None):
    if not int(_os.environ.get('DBGT', 0)): return
    a.uid += 1
    L = f"DT_{a.uid}"
    if s_cond is not None:
        a(f"s_cmp_lg_u32 s{s_cond}, 0")
        a(f"s_cbranch_scc1 {L}")
    a("s_waitcnt lgkmcnt(0)")
    a(f"s_load_dwordx2 s[86:87], s[0:1], {KA['dbg']}")
    a("s_memrealtime s[98:99]")
    a("s_waitcnt lgkmcnt(0)")
    a("v_mov_b32 v250, s98")
    a(f"v_mov_b32 v251, {byte_off}")
    a("s_mov_b64 exec, 1")
    if op == "store": a("global_store_dword v251, v250, s[86:87] sc1")
    else: a("global_atomic_umax v251, v250, s[86:87] sc1")
    a("s_waitcnt vmcnt(0)")
    a("s_mov_b64 exec, -1")
    a.label(L)
```

```python
from gen_common import *
import struct, os
OPT=lambda k,d: type(d)(os.environ.get(k,d))
def f2u(f): return struct.unpack('<I', struct.pack('<f', f))[0]

S_WS=4; S_WQ=8; S_WK=12; S_WV=16; S_WO=20
S_WAVE=24; S_H=25; S_C=26; S_J=27; S_STEP=28
S_P=29; S_CUR=30; S_N=31; S_NN=32
S_HI32=20
S_MQ=16
S_M8=34; S_H8=38
S_T=40; S_T2=41; S_T3=42; S_RETRY=43
S_KVG=44; S_UXG=45; S_UYG=46; S_KMG=47; S_RSB=48; S_KVL=49; S_KVR=50; S_RED=51; S_RSP=52; S_FLG=53
S_LB=54
S_COL=56
S_SCALE=60; S_MAXR=61
S_TS=62
S_M0=88
S_MODE=57
S_REF0=98
S_REF2=36
S_NOW=58
L_MEM=0; L_QKV=10240; L_KV=20480; KVB=24576
LDS_REC=131072
V_LANE=1; V_G=2; V_N=3; V_T=4; V_T2=5; V_L16=6
V_AGO=7; V_AGL=10; V_MRD=11; V_AGP=23
V_RSL=7
V_AST=12; V_KMS=15; V_APO=16; V_APL=19
V_RQ=20; V_IDX=21; V_RV=22; V_RSO=28; V_L4=29; V_AGS=30; V_ZERO=31
V_RSP=80
V_NINF=248; V_KVA=249
V_POLL=32; V_RING=48; V_ACC=88; V_PK=252; V_KXF=100; V_QF=148; V_KF=172; V_VF=196; V_S=220; V_UXF=232
V_Y=48; V_PU=64; V_UA=48; V_YF=220; V_SM=148
NT = [4, 4, 2]; T0 = [0, 4, 8]; P0 = [0, 2, 4]
KVX = L_KV ^ (L_KV+KVB)

def poll_check(a, regs, vt):
    r = list(regs)
    a(f"v_max3_u32 v{vt}, v{r[0]}, v{r[1]}, v{r[2]}")
    i = 3
    while i < len(r):
        if i + 1 < len(r):
            a(f"v_max3_u32 v{vt}, v{vt}, v{r[i]}, v{r[i+1]}"); i += 2
        else:
            a(f"v_max_u32 v{vt}, v{vt}, v{r[i]}"); i += 1
    a(f"v_cmp_eq_u32 vcc, -1, v{vt}")

def sleep(a, n):
    while n > 0:
        k = min(n, 127); a(f"s_sleep {k}"); n -= k

def mark(a, reg):
    a(f"s_memtime s[{reg}:{reg+1}]")

def wait_until(a, ref, delta):
    if delta <= 0: return
    a.uid += 1
    L = f"WU_{a.uid}"
    a.label(L)
    a(f"""s_memtime s[{S_NOW}:{S_NOW+1}]
s_waitcnt lgkmcnt(0)
s_sub_u32 s{S_NOW}, s{S_NOW}, s{ref}
s_cmp_ge_u32 s{S_NOW}, {delta}
s_cbranch_scc1 {L}_D
s_sub_u32 s{S_NOW}, {delta}, s{S_NOW}
s_cmp_lt_u32 s{S_NOW}, 96
s_cbranch_scc1 {L}
s_sleep 1
s_branch {L}""")
    a.label(f"{L}_D")

def stamp(a, idx):
    if OPT('STAMP', 0):
        a(f"s_memtime s[{S_TS+2*idx}:{S_TS+2*idx+1}]")

def racc(a, k):
    if OPT('STAMP', 0): a(f"s_add_u32 s{k}, s{k}, s{S_RETRY}")

def nearmap_v(a, v, vt):
    a(f"""v_lshrrev_b32 v{vt}, 13, v{v}
v_lshlrev_b32 v{vt}, 14, v{vt}
v_and_b32 v{v}, 0x1fff, v{v}
v_or_b32 v{v}, v{v}, v{vt}""")

def oob_mask(a, v, nlanes):
    a(f"""v_mov_b32 v{V_T}, 0x80000000
v_cmp_gt_u32 vcc, {nlanes}, v{V_LANE}
v_cndmask_b32 v{v}, v{V_T}, v{v}, vcc""")

V_AGB=48
def poll_loop(a, lbl, loads, nreg, acc, pre_issued=False, base=None, spec=None):
    a(f"s_mov_b32 s{S_RETRY}, 0")
    if pre_issued:
        a(f"s_branch {lbl}_W")
    a.label(lbl)
    for x in loads: a(x)
    if pre_issued: a.label(f"{lbl}_W")
    a("s_waitcnt vmcnt(0)")
    if spec: spec()
    b0 = V_POLL if base is None else base
    poll_check(a, range(b0, b0+nreg), V_T)
    a(f"""s_cbranch_vccz {lbl}_OK
s_add_u32 s{S_RETRY}, s{S_RETRY}, 1
s_cmp_lt_u32 s{S_RETRY}, s{S_MAXR}
s_cbranch_scc1 {lbl}
s_mov_b32 s{S_MAXR}, 0""")
    a.label(f"{lbl}_OK")
    racc(a, acc)

CURMODE = [None]
def RSLOC(): return OPT('RSLOC', 0) and not OPT('STAMP', 0)
INITWAIT = [False]
def store_mode(a, lines):
    if CURMODE[0] is not None:
        for x in lines: a(x.replace(' SCX', '' if CURMODE[0] else ' sc1'))
        return
    if OPT('AFAST', 1) == 0:
        for x in lines: a(x.replace(' SCX', ' sc1'))
        return
    a.uid += 1
    L = f"SM_{a.uid}"
    a(f"s_cmp_eq_u32 s{S_MODE}, 0")
    a(f"s_cbranch_scc1 {L}_S")
    for x in lines: a(x.replace(' SCX', ''))
    a(f"s_branch {L}_E")
    a.label(f"{L}_S")
    for x in lines: a(x.replace(' SCX', ' sc1'))
    a.label(f"{L}_E")

def wait_mode(a, ref, fast, slow):
    if CURMODE[0] is not None:
        wait_until(a, ref, fast if CURMODE[0] else slow); return
    if OPT('AFAST', 1) == 0:
        wait_until(a, ref, slow); return
    a.uid += 1
    L = f"WM_{a.uid}"
    a(f"s_cmp_eq_u32 s{S_MODE}, 0")
    a(f"s_cbranch_scc1 {L}_S")
    wait_until(a, ref, fast)
    a(f"s_branch {L}_E")
    a.label(f"{L}_S")
    wait_until(a, ref, slow)
    a.label(f"{L}_E")

def poll2(a, lbl, mk_loads, nreg, baseA, baseB, acc, stage, gap=2):
    LA = mk_loads(baseA); LB = mk_loads(baseB); n = len(LA)
    a(f"s_mov_b32 s{S_RETRY}, 0")
    for x in LA: a(x)
    if gap: a(f"s_sleep {gap}")
    a.label(lbl)
    for x in LB: a(x)
    a(f"s_waitcnt vmcnt({n})")
    poll_check(a, range(baseA, baseA+nreg), V_T)
    a(f"s_cbranch_vccz {lbl}_GA")
    for x in LA: a(x)
    a(f"s_waitcnt vmcnt({n})")
    poll_check(a, range(baseB, baseB+nreg), V_T)
    a(f"""s_cbranch_vccz {lbl}_GB
s_add_u32 s{S_RETRY}, s{S_RETRY}, 1
s_cmp_lt_u32 s{S_RETRY}, s{S_MAXR}
s_cbranch_scc1 {lbl}
s_mov_b32 s{S_MAXR}, 0""")
    a.label(f"{lbl}_GB")
    racc(a, acc)
    stage(baseB)
    a(f"s_branch {lbl}_E")
    a.label(f"{lbl}_GA")
    racc(a, acc)
    stage(baseA)
    a.label(f"{lbl}_E")

def ag_poll(a, pfx, w):
    wait_mode(a, S_REF2, OPT('T_AGF', 0), OPT('T_AG', 650))
    base = (w-2)*5
    def mk(b): return [f"buffer_load_dwordx4 {vr(b+4*k)}, v{V_AGP+k}, s[{S_WS}:{S_WS+3}], s{S_P} offen sc1" for k in range(5)]
    def stage(b):
        for k in range(5):
            a(f"ds_write_b128 v{V_L16}, {vr(b+4*k)} offset:{L_MEM + (base+k)*1024}")
    if CURMODE[0] and OPT('POLL2', 0):
        poll2(a, f"{pfx}_AGP", mk, 20, 172, 196, 92, stage, gap=OPT('GAPD', 2))
    else:
        if OPT('SPEC', 0): poll_loop(a, f"{pfx}_AGP", mk(V_AGB), 20, 92, base=V_AGB, spec=lambda: stage(V_AGB))
        else:
            poll_loop(a, f"{pfx}_AGP", mk(V_AGB), 20, 92, base=V_AGB)
            stage(V_AGB)

def reduce_blocks(a, pfx, nb, SEL, base_reg, s_poll, v_ags, acc, apk, s_loc0=None, s_loc=None, sqbase=None):
    loads = []
    LOCAL = CURMODE[0] and RSLOC()
    if LOCAL:
        a(f"s_lshr_b32 s{S_NOW}, s{S_J}, 5")
        a(f"s_xor_b32 s{S_NOW+1}, s{S_CUR}, 8192")
        for b in range(nb):
            a(f"s_add_u32 s{s_loc[b]}, s{s_loc0[b]}, s{S_NOW+1}")
        for b in range(nb):
            for q in range(4):
                sq = sqbase + 4*b + q
                a(f"s_add_u32 s{sq}, s{s_poll[b]}, {q*1024}")
                a(f"s_cmp_eq_u32 s{S_NOW}, {q}")
                a(f"s_cselect_b32 s{sq}, s{s_loc[b]}, s{sq}")
                loads.append(f"buffer_load_dwordx4 {vr(base_reg+16*b+4*q)}, v{V_L16}, s[{S_WS}:{S_WS+3}], s{sq} offen sc1")
    else:
        for b in range(nb):
            for q in range(4):
                loads.append(f"buffer_load_dwordx4 {vr(base_reg+16*b+4*q)}, v{V_L16}, s[{S_WS}:{S_WS+3}], s{s_poll[b]} offen offset:{q*1024} sc1")
    poll_loop(a, f"{pfx}_RP", loads, 16*nb, 94, base=base_reg)
    stamp(a, 7)
    for q in range(4):
        for b in range(nb):
            c = "0" if q == 0 else vr(acc+8*b)
            a(f"v_mfma_f32_16x16x32_bf16 {vr(acc+8*b)}, {vr(SEL)}, {vr(base_reg+16*b+4*q)}, {c}")
    for b in range(nb):
        for r in range(4):
            a(f"v_add_f32_dpp v{acc+8*b+4+r}, v{acc+8*b+r}, v{acc+8*b+r} row_ror:8 row_mask:0xf bank_mask:0xf")
    if nb == 2:
        for r in range(4): a(f"v_cndmask_b32 v{acc+4+r}, v{acc+4+r}, v{acc+12+r}, s[{S_H8}:{S_H8+1}]")
    a(f"v_cvt_pk_bf16_f32 v{apk}, v{acc+4}, v{acc+5}")
    a(f"v_cvt_pk_bf16_f32 v{apk+1}, v{acc+6}, v{acc+7}")
    a(f"v_mov_b32 v{apk+2}, v{apk}\nv_mov_b32 v{apk+3}, v{apk+1}")
    a(f"v_mov_b32 v{apk+4}, v{apk}\nv_mov_b32 v{apk+5}, v{apk+1}")
    a(f"v_permlane16_swap_b32 v{apk+4}, v{apk+2}")
    a(f"v_permlane16_swap_b32 v{apk+5}, v{apk+3}")
    store_mode(a, [f"buffer_store_dwordx4 {vr(apk)}, v{v_ags}, s[{S_WS}:{S_WS+3}], s{S_CUR} offen SCX"])

def reduce2(a, pfx, SEL, base_reg, v_off, v_ags, acc, apk):
    loads = [f"buffer_load_dwordx4 {vr(base_reg+4*q)}, v{v_off}, s[{S_WS}:{S_WS+3}], s{S_CUR} offen offset:{q*512} sc1" for q in range(8)]
    poll_loop(a, f"{pfx}_RP", loads, 32, 94, base=base_reg)
    stamp(a, 7)
    for q in range(8):
        c = "0" if q == 0 else vr(acc)
        a(f"v_mfma_f32_16x16x32_bf16 {vr(acc)}, {vr(SEL)}, {vr(base_reg+4*q)}, {c}")
    a(f"v_cvt_pk_bf16_f32 v{apk}, v{acc}, v{acc+1}")
    a(f"v_cvt_pk_bf16_f32 v{apk+1}, v{acc+2}, v{acc+3}")
    store_mode(a, [f"buffer_store_dwordx2 {vr(apk,2)}, v{v_ags}, s[{S_WS}:{S_WS+3}], s{S_CUR} offen SCX"])

def sel_setup(a, SEL):
    for k in range(4):
        a(f"""v_mov_b32 v{SEL+k}, 0
v_mov_b32 v{V_T}, 0x3f80
v_cmp_eq_u32 vcc, {2*k}, v{V_N}
v_cndmask_b32 v{SEL+k}, v{SEL+k}, v{V_T}, vcc
v_mov_b32 v{V_T}, 0x3f800000
v_cmp_eq_u32 vcc, {2*k+1}, v{V_N}
v_cndmask_b32 v{SEL+k}, v{SEL+k}, v{V_T}, vcc""")

def smap(a, s, t):
    a(f"""s_lshr_b32 s{t}, s{s}, 13
s_lshl_b32 s{t}, s{t}, 14
s_and_b32 s{s}, s{s}, 0x1fff
s_or_b32 s{s}, s{s}, s{t}
s_add_u32 s{s}, s{s}, {nearmap(RS_LOG)}""")

def loc_off(a, s_cb, s_out, s_tmp):
    a(f"""s_lshr_b32 s{s_out}, s{S_J}, 5
s_mul_i32 s{s_out}, s{s_out}, 81920
s_lshl_b32 s{s_tmp}, s{s_cb}, 10
s_add_u32 s{s_out}, s{s_out}, s{s_tmp}""")
    smap(a, s_out, s_tmp)

def rs_local_lane(a, v):
    a(f"""v_lshlrev_b32 v{v}, 10, v{V_G}
v_and_b32 v{V_T}, 7, v{V_LANE}
v_lshlrev_b32 v{V_T}, 4, v{V_T}
v_add_u32 v{v}, v{v}, v{V_T}
s_and_b32 s{S_T}, s{S_H}, 7
s_lshl_b32 s{S_T}, s{S_T}, 7
v_add_u32 v{v}, s{S_T}, v{v}""")

def blk_off(a, s_cb, s_out, s_tmp):
    a(f"""s_lshr_b32 s{s_out}, s{s_cb}, 1
s_lshl_b32 s{s_out}, s{s_out}, 14
s_and_b32 s{s_tmp}, s{s_cb}, 1
s_lshl_b32 s{s_tmp}, s{s_tmp}, 12
s_add_u32 s{s_out}, s{s_out}, s{s_tmp}
s_add_u32 s{s_out}, s{s_out}, {nearmap(RS_LOG)}""")

def rotate_slots(a):
    a(f"""s_mov_b32 s{S_T}, s{S_P}
s_mov_b32 s{S_P}, s{S_CUR}
s_mov_b32 s{S_CUR}, s{S_N}
s_mov_b32 s{S_N}, s{S_NN}
s_mov_b32 s{S_NN}, s{S_T}""")

def proj_stage(a, ntile, w8):
    for K in range(10):
        a(f"ds_read_b128 {vr(V_RING+4*K)}, v{V_L16} offset:{L_MEM + K*1024}")
    for t in range(ntile):
        for r in range(4): a(f"v_mov_b32 v{V_ACC+4*t+r}, 0")
    for K in range(10):
        a(f"s_waitcnt lgkmcnt({9-K})")
        for t in range(ntile):
            a(f"v_smfmac_f32_16x16x64_bf16 {vr(V_ACC+4*t)}, {vr(V_RING+4*K)}, {w8(t,K)}, v{V_IDX}")

def pack_pair(x, y, pk):
    L = [f"v_permlane32_swap_b32 v{x+r}, v{y+r}" for r in range(4)]
    L += [f"v_add_f32 v{x+r}, v{x+r}, v{y+r}" for r in range(4)]
    L += [f"v_cvt_pk_bf16_f32 v{pk}, v{x}, v{x+1}", f"v_cvt_pk_bf16_f32 v{pk+1}, v{x+2}, v{x+3}"]
    return L

def ux_load(a, w, flags, pfx):
    nt = NT[w]
    if flags:
        a.uid += 1
        a(f"s_add_u32 s{S_UXT}, s{S_UXT}, 1")
        a(f"s_min_u32 s{S_T3}, s{S_UXT}, 64")
        wait_words(a, f"{pfx}_WUX{a.uid}", S_WS, V_UXA, V_T, S_T3, S_UXC, 1, S_T2, 23)
    for t in range(nt):
        a(f"buffer_load_dwordx4 {vr(V_UXF+4*t)}, v{V_L16}, s[{S_WS}:{S_WS+3}], s{S_UXG} offen offset:{t*1024} sc1")
    a(f"s_add_u32 s{S_UXG}, s{S_UXG}, {32*40*1024}")

def idle_phase(a, w, woq):
    if OPT('UXRD', 0):
        a(f"v_add_u32 v{V_T}, s{S_KVR}, v{V_L16}")
        for f in range(12):
            a(f"ds_read_b128 {vr(V_KXF+4*f)}, v{V_T} offset:{f*1024}")
        a("s_waitcnt lgkmcnt(0)")
        a(f"s_xor_b32 s{S_KVR}, s{S_KVR}, {KVX}")
        return
    nt = NT[w]
    a(f"v_add_u32 v{V_T}, s{S_KVR}, v{V_L16}")
    for f in range(12):
        a(f"ds_read_b128 {vr(V_QF+4*f)}, v{V_T} offset:{12288 + f*1024}")
        if f == 7: a("s_waitcnt lgkmcnt(4)")
    a("s_waitcnt lgkmcnt(0)")
    for f in range(12):
        a(f"ds_read_b128 {vr(V_KXF+4*f)}, v{V_T} offset:{f*1024}")
    for p in range(6):
        for t in range(nt):
            for tt in range(2):
                d = V_UA + 8*t + 4*tt
                c = "0" if p == 0 else vr(d)
                a(f"v_mfma_f32_16x16x32_bf16 {vr(d)}, {vr(V_QF+4*(tt*6+p))}, {woq(t,p)}, {c}")
    for t in range(nt):
        for k in range(4):
            tt = k >> 1
            d = V_UA + 8*t + 4*tt + 2*(k & 1)
            a(f"v_cvt_pk_bf16_f32 v{V_UXF+4*t+k}, v{d}, v{d+1}")
        a(f"s_add_u32 s{S_T}, s{S_UXG}, {t*1024}")
        if OPT('UXST', 0): a(f"buffer_store_dwordx4 {vr(V_UXF+4*t)}, v{V_L16}, s[{S_WS}:{S_WS+3}], s{S_T} offen sc1")
    a(f"s_add_u32 s{S_UXG}, s{S_UXG}, {32*40*1024}")
    a("s_waitcnt lgkmcnt(0)")
    a(f"s_xor_b32 s{S_KVR}, s{S_KVR}, {KVX}")

S_UXT=88; S_UXC=89; V_UXA=11
S_KVT=33
S_RLB=18
S_RL0=19; S_RL1=95
V_RSOL=9
S_KVC=21
def kv_dma(a, flags=False, pfx='', w=0):
    if w < 2:
        if flags:
            a.uid += 1
            a(f"s_add_u32 s{S_KVT}, s{S_KVT}, 2")
            a(f"s_min_u32 s{S_T3}, s{S_KVT}, 128")
            wait_words(a, f"{pfx}_WKV{a.uid}", S_WS, V_KVA, V_T, S_T3, 22, 2 if OPT('UXRD', 0) else 4, S_T2, 23)
        if OPT('UXRD', 0):
            for (k0, n) in ((0, 4), (4, 2)):
                a(f"s_add_u32 m0, s{S_KVL}, {w*6144 + k0*1024}")
                a(f"s_add_u32 s{S_T}, s{S_KVG}, {k0*1024}")
                for j in range(n):
                    a(f"buffer_load_dwordx4 v{V_L16}, s[{S_WS}:{S_WS+3}], s{S_T} offen offset:{j*1024} sc1 lds")
        else:
            for k in range(3):
                a(f"s_add_u32 m0, s{S_KVL}, {w*12288 + k*4096}")
                a(f"s_add_u32 s{S_T}, s{S_KVG}, {k*4096}")
                for j in range(4):
                    a(f"buffer_load_dwordx4 v{V_L16}, s[{S_WS}:{S_WS+3}], s{S_T} offen offset:{j*1024} sc1 lds")
        a(f"s_add_u32 s{S_KVG}, s{S_KVG}, {32*12288}")
    a(f"s_xor_b32 s{S_KVL}, s{S_KVL}, {KVX}")

def softmax_lists():
    X = V_SM; MX = V_SM+6; TM = V_SM+7; RS_ = V_SM+8; PT = V_SM+12; PM = V_SM+10; T2 = V_SM+16
    L = []
    for r in range(4): L.append(f"v_cndmask_b32 v{X+r}, v{V_S+4+r}, v{V_S+8+r}, s[{S_H8}:{S_H8+1}]")
    L.append(f"v_cndmask_b32 v{X+4}, v{V_S}, v{V_S+2}, s[{S_H8}:{S_H8+1}]")
    L.append(f"v_cndmask_b32 v{X+5}, v{V_S+1}, v{V_S+3}, s[{S_H8}:{S_H8+1}]")
    L.append(f"v_max3_f32 v{MX}, v{X}, v{X+1}, v{X+2}")
    L.append(f"v_max3_f32 v{TM}, v{X+3}, v{X+4}, v{X+5}")
    L.append(f"v_max_f32 v{MX}, v{MX}, v{TM}")
    L.append(f"v_max_f32_dpp v{MX}, v{MX}, v{MX} row_ror:8 row_mask:0xf bank_mask:0xf")
    L += [f"v_mov_b32 v{TM}, v{MX}", f"v_permlane16_swap_b32 v{MX}, v{TM}", f"v_max_f32 v{MX}, v{MX}, v{TM}"]
    L += [f"v_mov_b32 v{TM}, v{MX}", f"v_permlane32_swap_b32 v{MX}, v{TM}", f"v_max_f32 v{MX}, v{MX}, v{TM}"]
    L.append(f"v_mul_f32 v{MX}, s{S_SCALE}, v{MX}")
    for j in range(6): L.append(f"v_fma_f32 v{X+j}, v{X+j}, s{S_SCALE}, -v{MX}")
    for j in range(6): L.append(f"v_exp_f32 v{X+j}, v{X+j}")
    L.append(f"v_cvt_pk_bf16_f32 v{PT}, v{X}, v{X+1}")
    L.append(f"v_cvt_pk_bf16_f32 v{PT+1}, v{X+2}, v{X+3}")
    L.append(f"v_cvt_pk_bf16_f32 v{PM}, v{X+4}, v{X+5}")
    L.append(f"v_mov_b32_dpp v{PT+2}, v{PT} row_ror:8 row_mask:0xf bank_mask:0xf")
    L.append(f"v_mov_b32_dpp v{PT+3}, v{PT+1} row_ror:8 row_mask:0xf bank_mask:0xf")
    L.append(f"v_mov_b32_dpp v{PM+1}, v{PM} row_ror:8 row_mask:0xf bank_mask:0xf")
    M = [f"v_cndmask_b32 v{X+4}, v{X+4}, v{V_ZERO}, s[{S_HI32}:{S_HI32+1}]",
         f"v_cndmask_b32 v{X+5}, v{X+5}, v{V_ZERO}, s[{S_HI32}:{S_HI32+1}]",
         f"v_add_f32 v{RS_}, v{X}, v{X+1}", f"v_add_f32 v{TM}, v{X+2}, v{X+3}", f"v_add_f32 v{RS_+1}, v{X+4}, v{X+5}",
         f"v_add_f32 v{RS_}, v{RS_}, v{TM}", f"v_add_f32 v{RS_}, v{RS_}, v{RS_+1}",
         f"v_add_f32_dpp v{RS_}, v{RS_}, v{RS_} row_ror:8 row_mask:0xf bank_mask:0xf",
         f"v_mov_b32 v{TM}, v{RS_}", f"v_permlane16_swap_b32 v{RS_}, v{TM}", f"v_add_f32 v{RS_}, v{RS_}, v{TM}",
         f"v_mov_b32 v{TM}, v{RS_}", f"v_permlane32_swap_b32 v{RS_}, v{TM}", f"v_add_f32 v{RS_}, v{RS_}, v{TM}",
         f"v_rcp_f32 v{RS_}, v{RS_}"]
    return PT, PM, RS_, L, M

def gi(a, v):
    a(f"""v_lshlrev_b32 v{v}, 7, v{V_G}
v_and_b32 v{V_T}, 7, v{V_LANE}
v_lshlrev_b32 v{V_T}, 4, v{V_T}
v_add_u32 v{v}, v{v}, v{V_T}""")

def rs_lane(a, v):
    a(f"""v_lshrrev_b32 v{v}, 1, v{V_G}
v_lshlrev_b32 v{v}, 14, v{v}
v_and_b32 v{V_T}, 1, v{V_G}
v_lshlrev_b32 v{V_T}, 12, v{V_T}
v_add_u32 v{v}, v{v}, v{V_T}
v_and_b32 v{V_T}, 7, v{V_LANE}
v_lshlrev_b32 v{V_T}, 4, v{V_T}
v_add_u32 v{v}, v{v}, v{V_T}
s_lshl_b32 s{S_T}, s{S_H}, 7
v_add_u32 v{v}, s{S_T}, v{v}""")

def coop_load(a, w, wreg):
    stride = H*E*2
    VG, VT = V_POLL, V_POLL+1
    a(f"""v_lshrrev_b32 v{V_T}, 3, v{V_LANE}
v_add_u32 v{V_T}, {8*w}, v{V_T}
s_mov_b32 s{S_LB+1}, {stride}
v_mul_lo_u32 v{VG}, v{V_T}, s{S_LB+1}
v_and_b32 v{V_T}, 7, v{V_LANE}
v_lshlrev_b32 v{V_T}, 4, v{V_T}
v_add_u32 v{VG}, v{VG}, v{V_T}
v_bfe_u32 v{VT}, v{V_LANE}, 4, 1
v_lshlrev_b32 v{VT}, 4, v{VT}
v_bfe_u32 v{V_T}, v{V_LANE}, 5, 1
v_lshlrev_b32 v{V_T}, 3, v{V_T}
v_add_u32 v{VT}, v{VT}, v{V_T}
v_bfe_u32 v{V_T}, v{V_LANE}, 2, 1
v_add_u32 v{VT}, v{VT}, v{V_T}
v_bfe_u32 v{V_T}, v{V_LANE}, 3, 1
v_lshlrev_b32 v{V_T}, 2, v{V_T}
v_add_u32 v{VT}, v{VT}, v{V_T}
v_lshlrev_b32 v{VT}, 7, v{VT}
v_and_b32 v{V_T}, 3, v{V_LANE}
v_lshlrev_b32 v{V_T}, 3, v{V_T}
v_add_u32 v{VT}, v{VT}, v{V_T}
s_mul_i32 s{S_COL}, s{S_H}, 384
s_mul_i32 s{S_T}, s{S_C}, 96
s_add_u32 s{S_COL}, s{S_COL}, s{S_T}
v_add_u32 v{VT+1}, 61440, v{VT}""")
    srds = (S_WQ, S_WK, S_WV)
    def issue(ph):
        buf = (ph & 1)*61440
        for pp in range(5):
            p = 5*ph + pp
            for m in range(3):
                a(f"s_add_u32 s{S_T}, s{S_COL}, {p*32*stride}")
                a(f"s_mov_b32 m0, {buf + (pp*3+m)*4096 + w*1024}")
                a(f"buffer_load_dwordx4 v{VG}, s[{srds[m]}:{srds[m]+3}], s{S_T} offen lds")
    issue(0); issue(1)
    for ph in range(4):
        a(f"s_waitcnt vmcnt({15 if ph < 3 else 0})")
        a("s_barrier")
        buf = (ph & 1)*61440
        n = 0
        for pp in range(5):
            p = 5*ph + pp
            if w < 3: items = [(0, w, p), (1, w, 20+p)]
            else: items = [(2, t, t*20+p) for t in range(3)]
            for (m, T, f) in items:
                o = buf + (pp*3+m)*4096 + T*32
                reg = VT if o + 256 < 65536 else VT+1
                oo = o if reg == VT else o - 61440
                a(f"ds_read_b64_tr_b16 {wreg.pair(f,0)}, v{reg} offset:{oo}")
                a(f"ds_read_b64_tr_b16 {wreg.pair(f,1)}, v{reg} offset:{oo+256}")
                n += 2
                if n % 12 == 0: a("s_waitcnt lgkmcnt(4)")
        a("s_waitcnt lgkmcnt(0)")
        a("s_barrier")
        if ph == 0: pass
        if ph + 2 < 4: issue(ph+2)

def main_wave(a, w, flags=False):
    pfx = f"RM{w}"
    nt = NT[w]
    wreg = WReg(0, 256, 0)
    mem0_load(a, w)
    w8 = lambda t, K: ar((t*20 + 2*K)*4, 8)
    woq = lambda t, p: wreg.quad(40 + t*6 + p)
    a(f"s_lshl_b32 s{S_LB}, s{S_WAVE}, 15")
    if OPT('COOP', 1):
        coop_load(a, w, wreg)
    else:
        a(f"""s_mul_i32 s{S_COL}, s{S_H}, 384
s_mul_i32 s{S_T}, s{S_C}, 96
s_add_u32 s{S_COL}, s{S_COL}, s{S_T}
s_add_u32 s{S_COL}, s{S_COL}, {w*32}""")
        units = []
        for p in range(20): units += [(S_WQ, S_COL, p*32*H*E*2), (S_WK, S_COL, p*32*H*E*2)]
        load_w2(a, units, lambda u, T, k: wreg.pair((u & 1)*20 + (u >> 1), k), 1, H*E*2, 2, V_LANE, V_POLL, V_POLL+1, V_T, S_T, S_LB)
    a(f"""s_mul_i32 s{S_COL}, s{S_H}, {192*1280}
s_mul_i32 s{S_T}, s{S_C}, 320
s_add_u32 s{S_COL}, s{S_COL}, s{S_T}
s_add_u32 s{S_COL}, s{S_COL}, {T0[w]*32}""")
    ng = nt//2
    units = [(S_WO, S_COL, g*64 + p*32*1280) for p in range(6) for g in range(ng)]
    load_w2(a, units, lambda u, T, k: wreg.pair(40 + ((u % ng)*2 + T)*6 + u // ng, k), 2, D*2, True, V_LANE, V_POLL, V_POLL+1, V_T, S_T, S_LB)
    if OPT('STAMP', 0): a("s_memtime s[78:79]\ns_waitcnt lgkmcnt(0)\ns_sub_u32 s95, s78, s100")
    common_setup(a, w)
    gi(a, V_KMS)
    a(f"v_add_u32 v{V_KMS}, {w*1024}, v{V_KMS}")
    a(f"""v_lshrrev_b32 v{V_AST}, 1, v{V_G}
v_mul_u32_u24 v{V_AST}, 3072, v{V_AST}
v_lshlrev_b32 v{V_T}, 4, v{V_N}
v_add_u32 v{V_AST}, v{V_AST}, v{V_T}
v_and_b32 v{V_T}, 1, v{V_G}
v_lshlrev_b32 v{V_T}, 3, v{V_T}
v_add_u32 v{V_AST}, v{V_AST}, v{V_T}
s_mul_i32 s{S_T}, s{S_C}, 3
s_add_u32 s{S_T}, s{S_T}, {w}
s_lshl_b32 s{S_T}, s{S_T}, 8
s_mul_i32 s{S_T2}, s{S_H}, 9216
s_add_u32 s{S_T}, s{S_T}, s{S_T2}
v_add_u32 v{V_AST}, s{S_T}, v{V_AST}""")
    nearmap_v(a, V_AST, V_T)
    a(f"""s_add_u32 s{S_T}, s{S_T2}, {w*2048}
v_add_u32 v{V_APO}, s{S_T}, v{V_L16}
v_add_u32 v{V_APO+1}, 1024, v{V_APO}
v_add_u32 v{V_APL}, {L_QKV + w*2048}, v{V_L16}""")
    nearmap_v(a, V_APO, V_T); nearmap_v(a, V_APO+1, V_T)
    a(f"""v_lshlrev_b32 v{V_RQ}, 2, v{V_G}
v_bfe_u32 v{V_T}, v{V_LANE}, 2, 2
v_add_u32 v{V_RQ}, v{V_RQ}, v{V_T}
v_lshlrev_b32 v{V_RQ}, 4, v{V_RQ}
v_and_b32 v{V_T}, 1, v{V_LANE}
v_lshlrev_b32 v{V_T}, 3, v{V_T}
v_add_u32 v{V_RQ}, v{V_RQ}, v{V_T}
v_add_u32 v{V_RQ}, {L_QKV}, v{V_RQ}""")
    a(f"""v_bfe_u32 v{V_RV}, v{V_LANE}, 5, 1
v_lshlrev_b32 v{V_RV}, 5, v{V_RV}
v_bfe_u32 v{V_T}, v{V_LANE}, 4, 1
v_lshlrev_b32 v{V_T}, 3, v{V_T}
v_add_u32 v{V_RV}, v{V_RV}, v{V_T}
v_bfe_u32 v{V_T}, v{V_LANE}, 2, 1
v_add_u32 v{V_RV}, v{V_RV}, v{V_T}
v_bfe_u32 v{V_T}, v{V_LANE}, 3, 1
v_lshlrev_b32 v{V_T}, 4, v{V_T}
v_add_u32 v{V_RV}, v{V_RV}, v{V_T}
v_bfe_u32 v{V_T}, v{V_LANE}, 1, 1
v_lshlrev_b32 v{V_T}, 1, v{V_T}
v_add_u32 v{V_RV}, v{V_RV}, v{V_T}
v_lshlrev_b32 v{V_RV}, 4, v{V_RV}
v_and_b32 v{V_T}, 1, v{V_LANE}
v_lshlrev_b32 v{V_T}, 3, v{V_T}
v_add_u32 v{V_RV}, v{V_RV}, v{V_T}
v_add_u32 v{V_RV}, {L_QKV+6144}, v{V_RV}""")
    rs_lane(a, V_RSO)
    rs_local_lane(a, V_RSOL)
    for P in range(nt//2):
        a(f"""s_lshr_b32 s{76+P}, s{S_J}, 5
s_mul_i32 s{76+P}, s{76+P}, 81920
s_mul_i32 s{S_T}, s{S_C}, {5*4096}
s_add_u32 s{76+P}, s{76+P}, s{S_T}
s_add_u32 s{76+P}, s{76+P}, {(P0[w]+P)*4096}""")
        smap(a, 76+P, S_T)
    a(f"""s_mul_i32 s{S_RSB}, s{S_C}, {5*32768}
s_add_u32 s{S_RSB}, s{S_RSB}, {nearmap(RS_LOG) + P0[w]*32768}
s_mul_i32 s{S_T}, s{S_H}, 12288
s_add_u32 s{S_KVG}, s{S_T}, {(KX + w*6144) if OPT('UXRD', 0) else (KX if w == 0 else VX)}
s_mul_i32 s{S_T}, s{S_H}, 40
s_mul_i32 s{S_T2}, s{S_C}, 10
s_add_u32 s{S_T}, s{S_T}, s{S_T2}
s_add_u32 s{S_T}, s{S_T}, {T0[w]}
s_lshl_b32 s{S_UXG}, s{S_T}, 10
s_add_u32 s{S_UXG}, s{S_UXG}, {UX}
s_lshl_b32 s{S_UYG}, s{S_T}, 8
s_add_u32 s{S_UYG}, s{S_UYG}, {UY}
s_mul_i32 s{S_KMG}, s{S_H}, 3072
s_add_u32 s{S_KMG}, s{S_KMG}, {KM}
s_mov_b32 s{S_KVL}, {L_KV}
s_mov_b32 s{S_KVR}, {L_KV}
s_lshl_b32 s{S_FLG}, s{S_J}, 7
s_add_u32 s{S_FLG}, s{S_FLG}, {F_REC}""")
    if w == 2:
        a(f"""s_and_b32 s{S_COL}, s{S_J}, 31
s_cmp_lt_u32 s{S_COL}, 16
s_cselect_b32 s{S_RED}, 1, 0
s_add_u32 s{S_COL}, s{S_COL}, 64""")
        blk_off(a, S_COL, S_RSP, S_T)
        loc_off(a, S_COL, 72, S_T)
        a(f"""s_lshr_b32 s{S_T}, s{S_J}, 5
s_mul_i32 s{S_T}, s{S_T}, 10240
s_add_u32 s{S_T}, s{S_T}, {AG_LOG}
s_lshl_b32 s{S_T3}, s{S_COL}, 7
s_add_u32 s{S_T}, s{S_T}, s{S_T3}
v_add_u32 v{V_AGS}, s{S_T}, v{V_L16}""")
        nearmap_v(a, V_AGS, V_T)
        oob_mask(a, V_AGS, 8)
        sel_setup(a, 240)
    if flags:
        a(f"""s_mul_i32 s{S_T}, s{S_H}, 6
s_lshr_b32 s{S_T2}, s{S_T}, 3
s_add_u32 s{S_T}, s{S_T}, 5
s_lshr_b32 s{S_T}, s{S_T}, 3
v_mov_b32 v{V_KVA}, s{S_T}
v_mov_b32 v{V_T}, s{S_T2}
v_and_b32 v{V_T2}, 1, v{V_LANE}
v_cmp_eq_u32 vcc, 0, v{V_T2}
v_cndmask_b32 v{V_KVA}, v{V_KVA}, v{V_T}, vcc
v_cmp_lt_u32 vcc, 1, v{V_LANE}
v_mov_b32 v{V_T}, {R_V0 if not OPT('UXRD', 0) else 0}
v_cndmask_b32 v{V_T}, 0, v{V_T}, vcc
v_add_u32 v{V_KVA}, v{V_KVA}, v{V_T}
v_lshlrev_b32 v{V_KVA}, {PSH}, v{V_KVA}
v_add_u32 v{V_KVA}, {F_PROG}, v{V_KVA}
s_mov_b32 s{S_KVT}, 0
s_mov_b32 s22, 0
s_add_u32 s{S_T}, s{S_H}, {R_U0}
s_lshl_b32 s{S_T}, s{S_T}, {PSH}
s_add_u32 s{S_T}, s{S_T}, {F_PROG}
v_mov_b32 v{V_UXA}, s{S_T}""")
    if flags and w == 0: trace(a, 1, S_J)
    read_polarity(a, pfx)
    if flags and w == 0: trace(a, 2, S_J)
    a("s_barrier")
    mem0_stage(a, w)
    a(f"s_mov_b32 s{S_UXT}, 0\ns_mov_b32 s{S_UXC}, 0")
    kv_dma(a, flags, pfx, w)
    if flags and w == 0: trace(a, 3, S_J)
    a("s_waitcnt vmcnt(0) lgkmcnt(0)")
    a("s_barrier")
    idle_phase(a, w, woq)
    if flags and w == 0:
        dbgt(a, 40, op="max")
        trace(a, 4, S_J)
        if int(os.environ.get('TRACE', 0)):
            a("s_memtime s[86:87]\ns_waitcnt lgkmcnt(0)")
            trace(a, 6, S_J, val=86)
    stamp(a, 0)
    if OPT('STAMP', 0): a(f"s_waitcnt lgkmcnt(0)\ns_sub_u32 s101, s{S_TS}, s100")
    pfx0 = pfx
    a(f"s_cmp_eq_u32 s{S_MODE}, 0")
    a(f"s_cbranch_scc1 {pfx0}S_B0")
    a(f"s_branch {pfx0}F_B0")
    for mode in (1, 0):
        CURMODE[0] = mode
        pfx = pfx0 + ("F" if mode else "S")
        main_loop(a, w, flags, pfx, nt, w8, woq)
    CURMODE[0] = None

def main_loop(a, w, flags, pfx, nt, w8, woq):
    wo8 = lambda t, K: ar((40 + t*6 + 2*K)*4, 8)
    a.label(f"{pfx}_LOOP")
    stamp(a, 0)
    if w == 2: ag_poll(a, pfx, w)
    a.label(f"{pfx}_B0")
    a("s_waitcnt lgkmcnt(0)")
    a("s_barrier")
    mark(a, S_REF0)
    stamp(a, 1)
    if OPT('STEPTR', 0) and w == 1:
        a("s_waitcnt lgkmcnt(0)")
        a(f"v_mov_b32 v250, s{S_REF0}")
        a(f"s_lshl_b32 s86, s{S_J}, 8")
        a(f"s_lshl_b32 s87, s{S_STEP}, 2")
        a(f"s_add_u32 s86, s86, s87")
        a(f"s_add_u32 s86, s86, {TRACE + 65536}")
        a("v_mov_b32 v251, s86")
        a("s_mov_b64 exec, 1")
        a(f"buffer_store_dword v250, v251, s[{S_WS}:{S_WS+3}], 0 offen")
        a("s_mov_b64 exec, -1")
    proj_stage(a, 2, w8)
    for x in pack_pair(V_ACC, V_ACC+4, V_PK): a(x)
    store_mode(a, [f"buffer_store_dwordx2 {vr(V_PK,2)}, v{V_AST}, s[{S_WS}:{S_WS+3}], s{S_CUR} offen SCX"])
    stamp(a, 2)
    if w < 2 or OPT('UXRD', 0):
        a(f"s_cmp_lg_u32 s{S_STEP}, 0")
        a(f"s_cbranch_scc1 {pfx}_NOS1")
        if w < 2: kv_dma(a, flags, pfx, w)
        if OPT('UXRD', 0): ux_load(a, w, flags, pfx)
        a.label(f"{pfx}_NOS1")
    for t in range(nt):
        for r in range(4): a(f"v_mov_b32 v{V_Y+4*t+r}, 0")
    wait_mode(a, S_REF0, OPT('T_AF', 0), OPT('T_A', 1150))
    def mkA(b): return [f"buffer_load_dwordx4 {vr(b+4*k)}, v{V_APO+k}, s[{S_WS}:{S_WS+3}], s{S_CUR} offen sc1" for k in range(2)]
    def stA(b):
        a(f"ds_write_b128 v{V_APL}, {vr(b)}")
        a(f"ds_write_b128 v{V_APL}, {vr(b+4)} offset:1024")
    if CURMODE[0] and OPT('POLL2', 0):
        poll2(a, f"{pfx}_AP", mkA, 8, V_POLL, V_POLL+8, 93, stA, gap=OPT('GAPA', 2))
    else:
        if OPT('SPEC', 0): poll_loop(a, f"{pfx}_AP", mkA(V_POLL), 8, 93, spec=lambda: stA(V_POLL))
        else:
            poll_loop(a, f"{pfx}_AP", mkA(V_POLL), 8, 93)
            stA(V_POLL)
    a("s_waitcnt lgkmcnt(0)")
    stamp(a, 3)
    a("s_barrier")
    stamp(a, 4)
    reads = []
    for p in range(6):
        for (reg, typ) in ((V_QF, 0), (V_KF, 1)):
            for k in range(2):
                reads.append(f"ds_read_b64_tr_b16 {vr(reg+4*p+2*k,2)}, v{V_RQ} offset:{typ*3072 + (2*p+k)*256}")
    vreads = [f"ds_read_b64_tr_b16 {vr(V_VF+4*K+2*k,2)}, v{V_RV} offset:{K*1024 + k*64}" for K in range(3) for k in range(2)]
    TWOB = OPT('TWOB', 1)
    if not TWOB: reads += vreads
    issued = 0
    def iss(n):
        nonlocal issued
        for _ in range(n):
            if issued < len(reads): a(reads[issued]); issued += 1
    iss(12)
    for p in range(6):
        a(f"s_waitcnt lgkmcnt({issued - (4*p+4)})")
        for u, A_ in enumerate((vr(V_KXF+4*p), vr(V_KXF+4*(6+p)), vr(V_KF+4*p))):
            d = V_S + (4 if u == 0 else 8 if u == 1 else 0)
            c = "0" if p == 0 else vr(d)
            a(f"v_mfma_f32_16x16x32_bf16 {vr(d)}, {A_}, {vr(V_QF+4*p)}, {c}")
        iss(4)
    if TWOB:
        a("s_barrier")
        if w == 2: mark(a, 96)
        for x in vreads: a(x)
    stamp(a, 5)
    ym = []
    for K in range(3):
        for t in range(nt):
            pre = f"s_waitcnt lgkmcnt({6 - (2*K + 2)})\n" if t == 0 else ""
            ym.append(pre + f"v_smfmac_f32_16x16x64_bf16 {vr(V_Y+4*t)}, {vr(V_VF+4*K)}, {wo8(t,K)}, v{V_IDX}")
    PT, PM, RS_, L1, L2 = softmax_lists()
    yc = [f"v_cvt_pk_bf16_f32 v{V_YF+2*t+k}, v{V_Y+4*t+2*k}, v{V_Y+4*t+2*k+1}" for t in range(nt) for k in range(2)]
    Y0 = OPT('Y0', 2)
    for i, x in enumerate(L1):
        if ym and i >= Y0: a(ym.pop(0))
        a(x)
    while ym: a(ym.pop(0))
    for t in range(nt):
        a(f"v_mfma_f32_16x16x32_bf16 {vr(V_PU+4*t)}, {vr(V_UXF+4*t)}, {vr(PT)}, 0")
        for _ in range(2):
            if yc: a(yc.pop(0))
    for t in range(nt):
        a(f"v_mfma_f32_16x16x16_bf16 {vr(V_PU+4*t)}, {vr(V_YF+2*t,2)}, {vr(PM,2)}, {vr(V_PU+4*t)}")
        for _ in range(4):
            if L2: a(L2.pop(0))
    while L2: a(L2.pop(0))
    a(f"v_mov_b32 v{RS_+1}, v{RS_}")
    for t in range(nt):
        for r in range(0, 4, 2): a(f"v_pk_mul_f32 {vr(V_PU+4*t+r,2)}, {vr(V_PU+4*t+r,2)}, {vr(RS_,2)}")
    for t in range(nt):
        a(f"v_cvt_pk_bf16_f32 v{V_RSP+2*t}, v{V_PU+4*t}, v{V_PU+4*t+1}")
        a(f"v_cvt_pk_bf16_f32 v{V_RSP+2*t+1}, v{V_PU+4*t+2}, v{V_PU+4*t+3}")
    a(f"s_add_u32 s{S_T}, s{S_CUR}, s{S_RSB}")
    a(f"s_mov_b64 exec, s[{S_M8}:{S_M8+1}]")
    for P in range(nt//2):
        if P > 0: a(f"s_add_u32 s{S_T}, s{S_T}, 32768")
        a(f"buffer_store_dwordx4 {vr(V_RSP+4*P)}, v{V_RSO}, s[{S_WS}:{S_WS+3}], s{S_T} offen sc1")
    if CURMODE[0] and RSLOC():
        a(f"s_xor_b32 s74, s{S_CUR}, 8192")
        for P in range(nt//2):
            a(f"s_add_u32 s{S_T}, s{76+P}, s74")
            a(f"buffer_store_dwordx4 {vr(V_RSP+4*P)}, v{V_RSOL}, s[{S_WS}:{S_WS+3}], s{S_T} offen")
    stamp(a, 6)
    a("s_mov_b64 exec, -1")
    if (w < 2 or OPT('UXRD', 0)) and not OPT('NODMA', 0):
        a(f"s_cmp_eq_u32 s{S_STEP}, 63")
        a(f"s_cbranch_scc1 {pfx}_NODMA")
        if OPT('UXRD', 0): ux_load(a, w, flags, pfx)
        if w < 2: kv_dma(a, flags, pfx, w)
        a.label(f"{pfx}_NODMA")
    a(f"s_mov_b64 exec, s[{S_M8}:{S_M8+1}]")
    a(f"s_cmp_lg_u32 s{S_C}, 0")
    a(f"s_cbranch_scc1 {pfx}_NOKM")
    for k in range(2 if not OPT('NOKM', 0) else 0):
        a(f"buffer_store_dwordx4 {vr(V_KF+4*(2*w+k))}, v{V_KMS}, s[{S_WS}:{S_WS+3}], s{S_KMG} offen offset:{k*512} sc1")
    a.label(f"{pfx}_NOKM")
    a("s_mov_b64 exec, -1")
    a(f"s_add_u32 s{S_KMG}, s{S_KMG}, {32*3072}")
    for t in range(nt):
        for r in range(4): a(f"v_mov_b32 v{V_PU+r}, v{V_Y+4*t+r}")
        for r in range(4): a(f"v_permlane32_swap_b32 v{V_Y+4*t+r}, v{V_PU+r}")
        for r in range(4): a(f"v_add_f32 v{V_Y+4*t+r}, v{V_Y+4*t+r}, v{V_PU+r}")
        a(f"v_cvt_pk_bf16_f32 v{V_YF+2*t}, v{V_Y+4*t}, v{V_Y+4*t+1}")
        a(f"v_cvt_pk_bf16_f32 v{V_YF+2*t+1}, v{V_Y+4*t+2}, v{V_Y+4*t+3}")
    a("s_mov_b32 exec_hi, 0")
    for t in range(nt if not OPT('NOUY', 0) else 0):
        a(f"buffer_store_dwordx2 {vr(V_YF+2*t,2)}, v{V_L4}, s[{S_WS}:{S_WS+3}], s{S_UYG} offen offset:{t*256} sc1")
    a("s_mov_b64 exec, -1")
    a(f"s_add_u32 s{S_UYG}, s{S_UYG}, {32*40*256}")
    if w == OPT('FLGW', 1) and not OPT('NOFLG', 0):
        a(f"v_mov_b32 v{V_T}, s{S_STEP}")
        a("s_mov_b64 exec, 1")
        a(f"buffer_store_dword v{V_T}, v{V_ZERO}, s[{S_WS}:{S_WS+3}], s{S_FLG} offen sc1")
        a(f"s_cmp_lg_u32 s{S_J}, 0")
        a(f"s_cbranch_scc1 {pfx}_NOPROG")
        a(f"s_mov_b32 s{S_T}, {F_RPROG}")
        a(f"buffer_store_dword v{V_T}, v{V_ZERO}, s[{S_WS}:{S_WS+3}], s{S_T} offen sc1")
        a.label(f"{pfx}_NOPROG")
        a("s_mov_b64 exec, -1")
    a(f"s_add_u32 s{S_STEP}, s{S_STEP}, 1")
    a(f"s_cmp_ge_u32 s{S_STEP}, 64")
    a(f"s_cbranch_scc1 {pfx}_DONE")
    stamp(a, 7)
    idle_phase(a, w, woq)
    if w == 2:
        a(f"s_cmp_eq_u32 s{S_RED}, 0")
        a(f"s_cbranch_scc1 {pfx}_NORED")
        wait_until(a, 96, OPT('T_RS', 1150))
        a(f"s_add_u32 s{S_T2}, s{S_CUR}, s{S_RSP}")
        reduce_blocks(a, pfx, 1, 240, 48, (S_T2,), V_AGS, 64, 80, s_loc0=(72,), s_loc=(74,), sqbase=64)
        a.label(f"{pfx}_NORED")
    rotate_slots(a)
    stamp_acc(a)
    if w == 2: mark(a, S_REF2)
    a(f"s_branch {pfx}_LOOP")
    a.label(f"{pfx}_DONE")
    a("s_waitcnt vmcnt(0)")
    a("s_barrier")
    if flags and w == 0:
        dbgt(a, 44, op="max")
        trace(a, 5, S_J)
        if int(os.environ.get('TRACE', 0)):
            a("s_memtime s[86:87]\ns_waitcnt lgkmcnt(0)")
            trace(a, 7, S_J, val=86)
    if w == OPT('FLGW', 1):
        a(f"v_mov_b32 v{V_T}, 64")
        a("s_mov_b64 exec, 1")
        a(f"buffer_store_dword v{V_T}, v{V_ZERO}, s[{S_WS}:{S_WS+3}], s{S_FLG} offen sc1")
        a(f"s_cmp_lg_u32 s{S_J}, 0")
        a(f"s_cbranch_scc1 {pfx}_NOPROG2")
        a(f"s_mov_b32 s{S_T}, {F_RPROG}")
        a(f"buffer_store_dword v{V_T}, v{V_ZERO}, s[{S_WS}:{S_WS+3}], s{S_T} offen sc1")
        a.label(f"{pfx}_NOPROG2")
        a("s_waitcnt vmcnt(0)")
        a("s_mov_b64 exec, -1")
    stamp_out(a, w)
    a("s_endpgm")

def stamp_acc(a):
    if not OPT('STAMP', 0): return
    a(f"s_memtime s[{S_TS+16}:{S_TS+17}]")
    a("s_waitcnt lgkmcnt(0)")
    for k in range(8):
        a(f"s_sub_u32 s{S_T}, s{S_TS+2*k+2}, s{S_TS+2*k}")
        a(f"s_add_u32 s{80+k}, s{80+k}, s{S_T}")

def stamp_out(a, w):
    if not OPT('STAMP', 0): return
    a.uid += 1
    L = f"STO_{w}_{a.uid}"
    a(f"""s_cmp_lg_u32 s{S_J}, {OPT('STAMPROLE', 0)}
s_cbranch_scc1 {L}
s_waitcnt lgkmcnt(0)
s_load_dwordx2 s[96:97], s[0:1], {KA['dbg']}
s_waitcnt lgkmcnt(0)
s_mov_b64 exec, 1""")
    for k in range(8):
        a(f"v_mov_b32 v10, s{80+k}\nv_mov_b32 v11, {64 + w*48 + k*4}\nglobal_store_dword v11, v10, s[96:97]\ns_waitcnt vmcnt(0)")
    if w == 0:
        a(f"v_mov_b32 v10, s95\nv_mov_b32 v11, 40\nglobal_store_dword v11, v10, s[96:97]\ns_waitcnt vmcnt(0)")
        a(f"v_mov_b32 v10, s101\nv_mov_b32 v11, 44\nglobal_store_dword v11, v10, s[96:97]\ns_waitcnt vmcnt(0)")
    for k in range(3):
        a(f"v_mov_b32 v10, s{92+k}\nv_mov_b32 v11, {64 + w*48 + 32 + k*4}\nglobal_store_dword v11, v10, s[96:97]\ns_waitcnt vmcnt(0)")
    a.label(L)

def common_setup(a, w):
    a(f"""v_lshlrev_b32 v{V_L16}, 4, v{V_LANE}
v_lshlrev_b32 v{V_L4}, 3, v{V_LANE}
v_mov_b32 v{V_ZERO}, 0
s_mov_b32 s{S_M8}, 0x00ff00ff
s_mov_b32 s{S_M8+1}, 0x00ff00ff
s_mov_b32 s{S_H8}, 0xff00ff00
s_mov_b32 s{S_H8+1}, 0xff00ff00
s_mov_b32 s{S_HI32}, 0
s_mov_b32 s{S_HI32+1}, -1
v_mov_b32 v{V_NINF}, 0xff800000
s_mov_b32 s{S_MQ}, 0x0000ffff
s_mov_b32 s{S_MQ+1}, 0x0000ffff
v_mov_b32 v{V_IDX}, 0x44444444
v_mov_b32 v{V_T}, 0xeeeeeeee
v_cndmask_b32 v{V_IDX}, v{V_IDX}, v{V_T}, s[{S_H8}:{S_H8+1}]
s_mov_b32 s{S_SCALE}, 0x{f2u(192**-0.5*1.4426950408889634):08x}
s_mov_b32 s{S_MAXR}, {OPT('MAXRETRY', 400000)}
s_mov_b32 s{S_STEP}, 0""")
    for k in range(8): a(f"s_mov_b32 s{80+k}, 0")
    for k in range(92, 95): a(f"s_mov_b32 s{k}, 0")
    if w >= 2:
        a(f"s_lshr_b32 s{S_T}, s{S_J}, 5")
        a(f"s_mul_i32 s{S_T}, s{S_T}, 10240")
        a(f"s_add_u32 s{S_T}, s{S_T}, {AG_LOG + (w-2)*5120}")
        for k in range(5):
            a(f"v_add_u32 v{V_AGP+k}, s{S_T}, v{V_L16}")
            if k: a(f"v_add_u32 v{V_AGP+k}, {k*1024}, v{V_AGP+k}")
            nearmap_v(a, V_AGP+k, V_T2)
    a(f"v_add_u32 v{V_AGL}, {L_MEM + w*2560}, v{V_L16}")

V_M0 = 200
def mem0_stage(a, w):
    a(f"ds_write_b128 v{V_AGL}, {vr(V_M0)}")
    a(f"ds_write_b128 v{V_AGL}, {vr(V_M0+4)} offset:1024")
    a("s_mov_b32 exec_hi, 0")
    a(f"ds_write_b128 v{V_AGL}, {vr(V_M0+8)} offset:2048")
    a("s_mov_b64 exec, -1")

def mem0_load(a, w):
    for k in range(3):
        a(f"""v_add_u32 v{V_T}, {160*w + 64*k}, v{V_LANE}
v_and_b32 v{V_T2}, 7, v{V_T}
v_mul_u32_u24 v{V_T2}, 1280, v{V_T2}
v_lshrrev_b32 v{V_M0+12}, 5, v{V_T}
v_lshlrev_b32 v{V_M0+12}, 6, v{V_M0+12}
v_add_u32 v{V_T2}, v{V_T2}, v{V_M0+12}
v_bfe_u32 v{V_T}, v{V_T}, 3, 2
v_lshlrev_b32 v{V_T}, 3, v{V_T}
v_add_u32 v{V_T}, v{V_T}, v{V_T2}""")
        a(f"buffer_load_dwordx2 {vr(V_M0+4*k,2)}, v{V_T}, s[{S_M0}:{S_M0+3}], 0 offen")
        a(f"buffer_load_dwordx2 {vr(V_M0+4*k+2,2)}, v{V_T}, s[{S_M0}:{S_M0+3}], 0 offen offset:32")

def service_wave(a):
    w = 3; pfx = "RS3"
    wreg = WReg(0, 256, 0)
    mem0_load(a, w)
    a(f"s_lshl_b32 s{S_LB}, s{S_WAVE}, 15")
    if OPT('COOP', 1):
        coop_load(a, w, wreg)
    else:
        a(f"""s_mul_i32 s{S_COL}, s{S_H}, 384
s_mul_i32 s{S_T}, s{S_C}, 96
s_add_u32 s{S_COL}, s{S_COL}, s{S_T}""")
        units = [(S_WV, S_COL, t*32 + p*32*H*E*2) for p in range(20) for t in range(3)]
        load_w2(a, units, lambda u, T, k: wreg.pair((u % 3)*20 + u // 3, k), 1, H*E*2, 2, V_LANE, V_POLL, V_POLL+1, V_T, S_T, S_LB)
    common_setup(a, w)
    PQ = V_KXF; PV_ = V_KXF+2; R = V_KXF+6; SEL = V_KXF+8; ONES = V_KXF+12; AGZ = V_KXF+7; RSO2 = V_KXF+5
    a(f"""v_lshrrev_b32 v{V_AST}, 1, v{V_G}
v_lshlrev_b32 v{V_AST}, 8, v{V_AST}
v_lshlrev_b32 v{V_T}, 4, v{V_N}
v_add_u32 v{V_AST}, v{V_AST}, v{V_T}
v_and_b32 v{V_T}, 1, v{V_G}
v_lshlrev_b32 v{V_T}, 3, v{V_T}
v_add_u32 v{V_AST}, v{V_AST}, v{V_T}
v_lshlrev_b32 v{V_AST+1}, 4, v{V_N}
v_add_u32 v{V_AST+1}, v{V_AST+1}, v{V_T}
s_mul_i32 s{S_T2}, s{S_H}, 9216
s_mul_i32 s{S_T}, s{S_C}, 768
s_add_u32 s{S_T}, s{S_T}, s{S_T2}
v_add_u32 v{PQ}, s{S_T}, v{V_L16}
v_add_u32 v{PQ+1}, 3072, v{PQ}
v_add_u32 v{PV_}, 6144, v{PQ}
s_add_u32 s{S_T}, s{S_T}, 6144
v_add_u32 v{V_AST}, s{S_T}, v{V_AST}
v_add_u32 v{V_AST+1}, s{S_T}, v{V_AST+1}
v_add_u32 v{V_AST+1}, 512, v{V_AST+1}""")
    for r in (V_AST, V_AST+1, PV_, PQ, PQ+1): nearmap_v(a, r, V_T)
    oob_mask(a, PV_, 48); oob_mask(a, PQ+1, 48); oob_mask(a, PQ, 48); oob_mask(a, V_AST+1, 32)
    for k in range(3):
        a(f"v_add_u32 v{V_APO+k}, s{S_T2}, v{V_L16}")
        a(f"v_add_u32 v{V_APO+k}, {6144 + k*1024}, v{V_APO+k}")
        nearmap_v(a, V_APO+k, V_T)
    a(f"v_add_u32 v{V_APL}, {L_QKV + 6144}, v{V_L16}")
    rs_lane(a, R)
    a(f"""s_mul_i32 s{S_RSB}, s{S_C}, {5*32768}
s_add_u32 s{S_RSB}, s{S_RSB}, {nearmap(RS_LOG)}
s_and_b32 s{S_COL}, s{S_J}, 31""")
    blk_off(a, S_COL, S_RSP, S_T)
    loc_off(a, S_COL, 72, S_T)
    a(f"s_add_u32 s{S_COL}, s{S_COL}, 32")
    blk_off(a, S_COL, S_RED, S_T)
    loc_off(a, S_COL, 73, S_T)
    rs_local_lane(a, V_RSOL)
    a(f"""s_lshr_b32 s77, s{S_J}, 5
s_mul_i32 s77, s77, 81920
s_mul_i32 s{S_T}, s{S_C}, {5*4096}
s_add_u32 s77, s77, s{S_T}""")
    a(f"""s_lshr_b32 s{S_T}, s{S_J}, 5
s_mul_i32 s{S_T}, s{S_T}, 10240
s_add_u32 s{S_T}, s{S_T}, {AG_LOG}
s_and_b32 s{S_T2}, s{S_J}, 31
s_lshl_b32 s{S_T3}, s{S_T2}, 7
s_add_u32 s{S_T}, s{S_T}, s{S_T3}
v_lshrrev_b32 v{V_AGS}, 3, v{V_LANE}
v_lshlrev_b32 v{V_AGS}, 12, v{V_AGS}
v_and_b32 v{V_T}, 7, v{V_LANE}
v_lshlrev_b32 v{V_T}, 4, v{V_T}
v_add_u32 v{V_AGS}, v{V_AGS}, v{V_T}
v_add_u32 v{V_AGS}, s{S_T}, v{V_AGS}""")
    nearmap_v(a, V_AGS, V_T)
    a(f"v_mov_b32 v{AGZ}, v{V_AGS}")
    a(f"""v_bfe_u32 v{V_AGS}, v{V_LANE}, 3, 1
v_lshlrev_b32 v{V_AGS}, 12, v{V_AGS}
v_and_b32 v{V_T}, 7, v{V_LANE}
v_lshlrev_b32 v{V_T}, 4, v{V_T}
v_add_u32 v{V_AGS}, v{V_AGS}, v{V_T}
v_lshlrev_b32 v{V_T}, 3, v{V_G}
v_add_u32 v{V_AGS}, v{V_AGS}, v{V_T}
s_lshr_b32 s{S_T}, s{S_J}, 5
s_mul_i32 s{S_T}, s{S_T}, 10240
s_add_u32 s{S_T}, s{S_T}, {AG_LOG}
s_add_u32 s{S_T}, s{S_T}, s{S_T3}
v_add_u32 v{V_AGS}, s{S_T}, v{V_AGS}""")
    nearmap_v(a, V_AGS, V_T)
    oob_mask(a, V_AGS, 32)
    a(f"""v_mov_b32 v{RSO2}, s{S_RSP}
v_mov_b32 v{V_T}, s{S_RED}
v_cndmask_b32 v{RSO2}, v{RSO2}, v{V_T}, s[{S_H8}:{S_H8+1}]
v_lshlrev_b32 v{V_T}, 7, v{V_G}
v_add_u32 v{RSO2}, v{RSO2}, v{V_T}
v_and_b32 v{V_T}, 7, v{V_LANE}
v_lshlrev_b32 v{V_T}, 4, v{V_T}
v_add_u32 v{RSO2}, v{RSO2}, v{V_T}""")
    a(f"s_cmp_lt_u32 s{S_T2}, 16")
    a(f"s_cselect_b32 s{S_T}, 24, 16")
    a(f"v_mov_b32 v{V_T}, 0x80000000")
    a(f"v_cmp_gt_u32 vcc, s{S_T}, v{V_LANE}")
    a(f"v_cndmask_b32 v{AGZ}, v{V_T}, v{AGZ}, vcc")
    sel_setup(a, SEL)
    for k in range(4): a(f"v_mov_b32 v{ONES+k}, -1")
    a(f"v_mov_b32 v{ONES+4}, 1")
    read_polarity(a, pfx)
    a("s_barrier")
    mem0_stage(a, w)
    a("s_waitcnt vmcnt(0) lgkmcnt(0)")
    a("s_barrier")
    stamp(a, 0)
    pfx0 = pfx
    a(f"s_cmp_eq_u32 s{S_MODE}, 0")
    a(f"s_cbranch_scc1 {pfx0}S_B0")
    a(f"s_branch {pfx0}F_B0")
    for mode in (1, 0):
        CURMODE[0] = mode
        pfx = pfx0 + ("F" if mode else "S")
        service_loop(a, pfx, PQ, PV_, R, SEL, ONES, AGZ, RSO2)
    CURMODE[0] = None

def service_loop(a, pfx, PQ, PV_, R, SEL, ONES, AGZ, RSO2):
    a.label(f"{pfx}_LOOP")
    stamp(a, 0)
    ag_poll(a, pfx, 3)
    a.label(f"{pfx}_B0")
    a("s_waitcnt lgkmcnt(0)")
    a("s_barrier")
    mark(a, S_REF0)
    stamp(a, 1)
    SP = 140
    w8s = lambda t, K: ar((t*20 + 2*K)*4, 8)
    for K in range(10):
        a(f"ds_read_b128 {vr(V_RING+4*K)}, v{V_L16} offset:{L_MEM + K*1024}")
    for r in range(12): a(f"v_mov_b32 v{V_ACC+r}, 0")
    for K in range(10):
        a(f"s_waitcnt lgkmcnt({9-K})")
        for t in range(2):
            a(f"v_smfmac_f32_16x16x64_bf16 {vr(V_ACC+4*t)}, {vr(V_RING+4*K)}, {w8s(t,K)}, v{V_IDX}")
    P01 = pack_pair(V_ACC, V_ACC+4, SP)
    for K in range(10):
        a(f"v_smfmac_f32_16x16x64_bf16 {vr(V_ACC+8)}, {vr(V_RING+4*K)}, {w8s(2,K)}, v{V_IDX}")
        if K >= 2 and P01: a(P01.pop(0))
        if K >= 6 and P01: a(P01.pop(0))
    while P01: a(P01.pop(0))
    store_mode(a, [f"buffer_store_dwordx2 {vr(SP,2)}, v{V_AST}, s[{S_WS}:{S_WS+3}], s{S_CUR} offen SCX"])
    for r in range(4): a(f"v_mov_b32 v{SP+8+r}, v{V_ACC+8+r}")
    for x in pack_pair(V_ACC+8, SP+8, SP+4): a(x)
    store_mode(a, [f"buffer_store_dwordx2 {vr(SP+4,2)}, v{V_AST+1}, s[{S_WS}:{S_WS+3}], s{S_CUR} offen SCX"])
    stamp(a, 2)
    wait_mode(a, S_REF0, OPT('T_VF', 1300), OPT('T_V', 1500))
    loads = [f"buffer_load_dwordx4 {vr(V_POLL+4*k)}, v{V_APO+k}, s[{S_WS}:{S_WS+3}], s{S_CUR} offen sc1" for k in range(3)]
    if OPT('TWOB', 1):
        for x in loads: a(x)
        stamp(a, 3)
        a("s_barrier")
        stamp(a, 4)
        def stV():
            for k in range(3):
                a(f"ds_write_b128 v{V_APL}, {vr(V_POLL+4*k)} offset:{k*1024}")
        if OPT('SPEC', 0): poll_loop(a, f"{pfx}_VP", loads, 12, 93, pre_issued=True, spec=stV)
        else:
            poll_loop(a, f"{pfx}_VP", loads, 12, 93, pre_issued=True)
            stV()
        a("s_waitcnt lgkmcnt(0)")
        a("s_barrier")
        mark(a, 96)
        stamp(a, 5)
    else:
        poll_loop(a, f"{pfx}_VP", loads, 12, 93)
        for k in range(3):
            a(f"ds_write_b128 v{V_APL}, {vr(V_POLL+4*k)} offset:{k*1024}")
        a("s_waitcnt lgkmcnt(0)")
        stamp(a, 3)
        a("s_barrier")
        mark(a, 96)
        stamp(a, 4)
        stamp(a, 5)
    a(f"s_cmp_eq_u32 s{S_STEP}, 63")
    a(f"s_cbranch_scc1 {pfx}_DONE")
    store_mode(a, [f"buffer_store_dwordx4 {vr(ONES)}, v{r}, s[{S_WS}:{S_WS+3}], s{S_NN} offen SCX" for r in (PQ, PQ+1, PV_)])
    a(f"s_add_u32 s{S_T}, s{S_NN}, s{S_RSB}")
    a(f"s_mov_b64 exec, s[{S_M8}:{S_M8+1}]")
    for P in range(5):
        if P > 0: a(f"s_add_u32 s{S_T}, s{S_T}, 32768")
        a(f"buffer_store_dwordx4 {vr(ONES)}, v{R}, s[{S_WS}:{S_WS+3}], s{S_T} offen sc1")
    if CURMODE[0] and RSLOC():
        a(f"s_xor_b32 s74, s{S_NN}, 8192")
        for P in range(5):
            a(f"s_add_u32 s{S_T}, s77, {P*4096}")
            smap(a, S_T, S_T2)
            a(f"s_add_u32 s{S_T}, s{S_T}, s74")
            a(f"buffer_store_dwordx4 {vr(ONES)}, v{V_RSOL}, s[{S_WS}:{S_WS+3}], s{S_T} offen")
    a("s_mov_b64 exec, -1")
    store_mode(a, [f"buffer_store_dwordx4 {vr(ONES)}, v{AGZ}, s[{S_WS}:{S_WS+3}], s{S_NN} offen SCX"])
    stamp(a, 6)
    wait_until(a, 96, OPT('T_RS', 1150))
    if OPT('RED2', 1):
        reduce2(a, pfx, SEL, 32, RSO2, V_AGS, 64, 160)
    else:
        raise SystemExit("RED2=0 no longer supported")
    a(f"s_add_u32 s{S_STEP}, s{S_STEP}, 1")
    a(f"s_cmp_ge_u32 s{S_STEP}, 64")
    a(f"s_cbranch_scc1 {pfx}_DONE")
    rotate_slots(a)
    stamp_acc(a)
    mark(a, S_REF2)
    a(f"s_branch {pfx}_LOOP")
    a.label(f"{pfx}_DONE")
    a("s_waitcnt vmcnt(0)")
    a("s_barrier")
    stamp_out(a, 3)
    a("s_endpgm")

def rec_entry(a):
    a(f"""s_load_dwordx4 s[64:67], s[0:1], {KA['wq']}
s_load_dwordx4 s[68:71], s[0:1], {KA['wv']}
s_load_dwordx2 s[72:73], s[0:1], {KA['mem0']}
s_waitcnt lgkmcnt(0)""")
    srd(a, S_WQ, 64, D*H*E*2); srd(a, S_WK, 66, D*H*E*2); srd(a, S_WV, 68, D*H*E*2); srd(a, S_WO, 70, D*H*E*2)
    srd(a, S_M0, 72, M*D*2)
    a(f"s_lshr_b32 s{S_H}, s{S_J}, 2\ns_and_b32 s{S_C}, s{S_J}, 3")

def probe(a, s_k, s_xcc, lbl, s_dbg):
    a(f"""s_mov_b64 exec, 1
v_mov_b32 v10, -1
s_lshl_b32 s{S_T}, s{s_k}, 21
s_add_u32 s{S_T}, s{S_T}, {RING + PROBE_OFF}
v_mov_b32 v11, s{S_T}
v_add_u32 v13, 8192, v11
s_mov_b32 s{S_T2}, 0
s_mov_b32 s84, -1
s_mov_b32 s85, -1""")
    a.label(f"{lbl}_R")
    a(f"""buffer_store_dword v10, v11, s[{S_WS}:{S_WS+3}], 0 offen sc1
buffer_store_dword v10, v13, s[{S_WS}:{S_WS+3}], 0 offen sc1
s_waitcnt vmcnt(0)
s_sleep 6""")
    for hsel in range(2):
        a(f"""s_memtime s[80:81]
s_waitcnt lgkmcnt(0)
buffer_load_dword v12, v{11 if hsel == 0 else 13}, s[{S_WS}:{S_WS+3}], 0 offen sc1
s_waitcnt vmcnt(0)
s_memtime s[82:83]
s_waitcnt lgkmcnt(0)
s_sub_u32 s{86+hsel}, s82, s80""")
    a(f"""s_min_u32 s84, s84, s86
s_min_u32 s85, s85, s87
s_add_u32 s{S_T2}, s{S_T2}, 1
s_cmp_lt_u32 s{S_T2}, {OPT('PROBE_N', 7)}
s_cbranch_scc1 {lbl}_R
s_cmp_lt_u32 s85, s84
s_cselect_b32 s{S_T3}, 1, 0
s_lshr_b32 s{S_T}, s{s_xcc}, 2
s_xor_b32 s{S_T3}, s{S_T3}, s{S_T}
s_and_b32 s{S_T3}, s{S_T3}, 1
s_or_b32 s{S_T3}, s{S_T3}, 2
s_lshl_b32 s{S_T}, s{s_k}, 1
s_lshl_b32 s{S_T3}, s{S_T3}, s{S_T}
v_mov_b32 v10, s{S_T3}
v_mov_b32 v11, {DB_POL}
global_atomic_or v11, v10, s[{s_dbg}:{s_dbg+1}] sc1
s_waitcnt vmcnt(0)
s_mov_b64 exec, -1""")

def rec_dispatch(a, flags=False):
    a(f"""s_cmp_eq_u32 s{S_WAVE}, 0
s_cbranch_scc1 RK_W0
s_cmp_eq_u32 s{S_WAVE}, 1
s_cbranch_scc1 RK_W1
s_cmp_eq_u32 s{S_WAVE}, 2
s_cbranch_scc1 RK_W2
s_branch RK_W3""")
    for w in range(3):
        a.label(f"RK_W{w}")
        main_wave(a, w, flags)
    a.label("RK_W3")
    service_wave(a)

def gen_rec_kernel():
    a = Asm(); name = "rec_kernel"
    kernel_header(a, name)
    if OPT('STAMP', 0): a("s_memtime s[100:101]")
    a(f"""s_cmp_ge_u32 s2, 256
s_cbranch_scc1 RK_END
s_load_dwordx2 s[74:75], s[0:1], {KA['ws']}
s_load_dwordx2 s[76:77], s[0:1], {KA['dbg']}
s_getreg_b32 s78, hwreg(HW_REG_XCC_ID)
s_and_b32 s78, s78, 15
s_waitcnt lgkmcnt(0)""")
    srd(a, S_WS, 74, WS_SIZE)
    lane_setup(a, V_LANE, V_G, V_N, S_WAVE)
    a(f"""s_cmp_lg_u32 s{S_WAVE}, 0
s_cbranch_scc1 RK_NORANK
v_mov_b32 v10, 1
s_lshl_b32 s79, s78, 2
v_mov_b32 v11, s79
s_mov_b64 exec, 1
global_atomic_add v12, v11, v10, s[76:77] sc0 sc1
s_waitcnt vmcnt(0)
v_mov_b32 v11, 0
ds_write_b32 v11, v12
s_waitcnt lgkmcnt(0)
s_mov_b64 exec, -1""")
    a.label("RK_NORANK")
    a(f"""s_barrier
v_mov_b32 v11, 0
ds_read_b32 v12, v11
s_waitcnt lgkmcnt(0)
v_readfirstlane_b32 s79, v12
s_barrier
s_cmp_lt_u32 s78, 4
s_cbranch_scc1 RK_REC
s_cmp_lg_u32 s78, 4
s_cbranch_scc1 RK_END
s_cmp_ge_u32 s79, 4
s_cbranch_scc1 RK_END
s_cmp_lg_u32 s{S_WAVE}, 0
s_cbranch_scc1 RK_END""")
    probe(a, 79, 78, "RK_PR", 76)
    a("s_endpgm")
    a.label("RK_REC")
    a(f"""s_cmp_ge_u32 s79, 32
s_cbranch_scc1 RK_END
s_lshl_b32 s{S_J}, s78, 5
s_add_u32 s{S_J}, s{S_J}, s79""")
    rec_entry(a)
    rec_dispatch(a)
    a.label("RK_END")
    a("s_endpgm")
    return name, a.finalize(), kernel_desc(name, 512, 102, 256)

def read_polarity(a, pfx):
    a(f"s_load_dwordx2 s[96:97], s[0:1], {KA['dbg']}")
    a(f"v_and_b32 v{V_T2}, 15, v{V_LANE}")
    a(f"v_lshlrev_b32 v{V_T2}, 2, v{V_T2}")
    a(f"s_mov_b32 s{S_RETRY}, 0")
    a("s_waitcnt lgkmcnt(0)")
    a.label(f"{pfx}_MD")
    a(f"global_load_dword v{V_T}, v{V_T2}, s[96:97] sc1")
    a("s_waitcnt vmcnt(0)")
    a(f"s_mov_b32 s{S_T}, 0")
    a(f"s_mov_b32 s{S_MODE}, 1")
    for x in range(8):
        a(f"v_readlane_b32 s{S_T2}, v{V_T}, {x}")
        a(f"s_add_u32 s{S_T}, s{S_T}, s{S_T2}")
        a(f"s_cmp_eq_u32 s{S_T2}, 32")
        a(f"s_cselect_b32 s{S_MODE}, s{S_MODE}, 0")
    a(f"v_readlane_b32 s{S_T2}, v{V_T}, {DB_INIT//4}")
    a(f"v_readlane_b32 s{S_T3}, v{V_T}, {DB_POL//4}")
    a(f"s_cmp_ge_u32 s{S_T}, 256")
    a(f"s_cbranch_scc0 {pfx}_MDN")
    if INITWAIT[0]:
        a(f"s_cmp_ge_u32 s{S_T2}, 80")
        a(f"s_cbranch_scc0 {pfx}_MDN")
    a(f"s_and_b32 s{S_T}, s{S_T3}, 0xaa")
    a(f"s_cmp_eq_u32 s{S_T}, 0xaa")
    a(f"s_cbranch_scc1 {pfx}_POLOK")
    a.label(f"{pfx}_MDN")
    a(f"""s_sleep 4
s_add_u32 s{S_RETRY}, s{S_RETRY}, 1
s_cmp_lt_u32 s{S_RETRY}, 0x200000
s_cbranch_scc1 {pfx}_MD
s_mov_b32 s{S_MODE}, 0""")
    a.label(f"{pfx}_POLOK")
    if OPT('FORCESLOW', 0): a(f"s_mov_b32 s{S_MODE}, 0")
    a(f"""s_and_b32 s{S_T}, s{S_T3}, 0x55
s_xor_b32 s{S_T}, s{S_T}, 0x44
s_bcnt1_i32_b32 s{S_T2}, s{S_T}
s_cmp_ge_u32 s{S_T2}, 3
s_cselect_b32 s{S_T}, 0x55, s{S_T}
s_cmp_le_u32 s{S_T2}, 1
s_cselect_b32 s{S_T}, 0, s{S_T}
s_xor_b32 s{S_T3}, s{S_T}, 0x44""")
    if OPT('FLIPPOL', 0): a(f"s_xor_b32 s{S_T3}, s{S_T3}, 0x55")
    for k, s in enumerate((S_CUR, S_N, S_NN, S_P)):
        a(f"""s_bfe_u32 s{S_T}, s{S_T3}, {(1<<16) | (2*k)}
s_lshl_b32 s{S_T}, s{S_T}, 13
s_add_u32 s{s}, s{S_T}, {RING + k*RING_SLOT}""")
```

```python
from gen_common import *
import gen_panel as P, gen_tok as T, gen_rec as R
import os
OPT=lambda k,d: type(d)(os.environ.get(k,d))

def tok_loop(a):
    from gen_tok import TS_WS, TS_OUT, TS_WAVE, TS_S, TS_I, TS_T, TS_T2, TS_T3, TV_LANE, TV_G, TV_N, TV_T, TV_T2
    V_WA = 13; V_WT = 14; V_Z = 15
    a(f"""s_load_dwordx2 s[40:41], s[0:1], {KA['out']}
s_load_dwordx2 s[48:49], s[0:1], {KA['dbg']}
s_waitcnt lgkmcnt(0)""")
    srd(a, TS_OUT, 40, OUT_BYTES)
    lane_setup(a, TV_LANE, TV_G, TV_N, TS_WAVE)
    T.tok_setup(a)
    a(f"v_mov_b32 v{V_Z}, 0")
    a.label("TOK_LOOP")
    a(f"""s_cmp_lg_u32 s{TS_WAVE}, 0
s_cbranch_scc1 TOK_NT
v_mov_b32 v{V_WT}, 1
v_mov_b32 v{V_WA}, {DB_TICKET}
s_mov_b64 exec, 1
global_atomic_add v{V_WT}, v{V_WA}, v{V_WT}, s[48:49] sc0 sc1
s_waitcnt vmcnt(0)
v_mov_b32 v{V_WA}, 65536
ds_write_b32 v{V_WA}, v{V_WT}
s_waitcnt lgkmcnt(0)
s_mov_b64 exec, -1""")
    a.label("TOK_NT")
    a(f"""s_barrier
v_mov_b32 v{V_WA}, 65536
ds_read_b32 v{V_WT}, v{V_WA}
s_waitcnt lgkmcnt(0)
v_readfirstlane_b32 s50, v{V_WT}
s_barrier
s_cmp_ge_u32 s50, 1024
s_cbranch_scc1 TOK_END
s_lshr_b32 s{TS_S}, s50, 4
s_and_b32 s{TS_I}, s50, 15
s_cmp_ge_u32 s{TS_I}, 8
s_cbranch_scc1 TOK_PU""")
    a(f"s_cmp_lg_u32 s{TS_WAVE}, 0")
    a("s_cbranch_scc1 TOK_SC_GO")
    a(f"""v_mul_u32_u24 v{V_WT}, 21846, v{TV_LANE}
v_lshrrev_b32 v{V_WT}, 16, v{V_WT}
v_mul_u32_u24 v{V_WA}, 3, v{V_WT}
v_sub_u32 v{V_WA}, v{TV_LANE}, v{V_WA}
v_cmp_eq_u32 vcc, 0, v{V_WT}
v_mov_b32 v{V_WT}, {R_Q0}
v_cndmask_b32 v{V_WT}, 0, v{V_WT}, vcc
v_add_u32 v{V_WA}, v{V_WA}, v{V_WT}
s_mul_i32 s{TS_T}, s{TS_I}, 3
v_add_u32 v{V_WA}, s{TS_T}, v{V_WA}
v_lshlrev_b32 v{V_WA}, {PSH}, v{V_WA}
v_add_u32 v{V_WA}, {F_PROG}, v{V_WA}
s_lshl_b32 s51, s{TS_S}, 1
s_add_u32 s51, s51, 2""")
    wait_words(a, "TSC_W3", TS_WS, V_WA, V_WT, 51, s_cnt=52, sleep=16)
    a.label("TOK_SC_GO")
    a("s_barrier")
    def sc_mid():
        a(f"s_cmp_lg_u32 s{TS_WAVE}, 0")
        a("s_cbranch_scc1 TOK_SC_GO2")
        a(f"s_add_u32 s51, s{TS_S}, 1")
        a(f"s_min_u32 s53, s51, 62")
        a(f"v_mov_b32 v{V_WA}, {F_RPROG}")
        wait_words(a, "TSC_W0", TS_WS, V_WA, V_WT, 53, s_cnt=52, sleep=OPT('SL_RP', 10), far=(1, OPT('SL_FAR', 0), 54))
        a(f"""v_and_b32 v{V_WA}, 3, v{TV_LANE}
s_lshl_b32 s{TS_T}, s{TS_I}, 2
v_add_u32 v{V_WA}, s{TS_T}, v{V_WA}
v_lshlrev_b32 v{V_WA}, 9, v{V_WA}
v_add_u32 v{V_WA}, {F_REC}, v{V_WA}""")
        wait_words(a, "TSC_W1", TS_WS, V_WA, V_WT, 51, s_cnt=52, sleep=3)
        a.label("TOK_SC_GO2")
        a("s_barrier")
    T.emit_score(a, "MSC", mid=sc_mid)
    a("s_waitcnt vmcnt(0)")
    a("s_barrier")
    a(f"""s_cmp_lg_u32 s{TS_WAVE}, 0
s_cbranch_scc1 TOK_LOOP
s_lshl_b32 s{TS_T}, s{TS_S}, 7
s_lshl_b32 s{TS_T2}, s{TS_I}, 2
s_add_u32 s{TS_T}, s{TS_T}, s{TS_T2}
s_add_u32 s{TS_T}, s{TS_T}, {F_SC}
s_mov_b32 s51, 1""")
    publish_word(a, TS_WS, V_WT, V_Z, TS_T, 51)
    a("s_branch TOK_LOOP")
    a.label("TOK_PU")
    a(f"s_sub_u32 s{TS_I}, s{TS_I}, 8")
    a(f"s_cmp_lg_u32 s{TS_WAVE}, 0")
    a("s_cbranch_scc1 TOK_PU_GO")
    a(f"""v_and_b32 v{V_WA}, 31, v{TV_LANE}
v_lshlrev_b32 v{V_WA}, {PSH}, v{V_WA}
v_add_u32 v{V_WA}, {F_PROG + (R_U0 << PSH)}, v{V_WA}
s_add_u32 s51, s{TS_S}, 1""")
    wait_words(a, "TPU_W1", TS_WS, V_WA, V_WT, 51, s_cnt=52, sleep=16)
    a(f"""s_mul_i32 s{TS_T}, s{TS_I}, 5
s_lshr_b32 s{TS_T2}, s{TS_T}, 2
s_add_u32 s{TS_T}, s{TS_T}, 4
s_lshr_b32 s{TS_T}, s{TS_T}, 2
v_mov_b32 v{V_WA}, s{TS_T}
v_mov_b32 v{V_WT}, s{TS_T2}
v_and_b32 v{TV_T}, 1, v{TV_LANE}
v_cmp_eq_u32 vcc, 0, v{TV_T}
v_cndmask_b32 v{V_WA}, v{V_WA}, v{V_WT}, vcc
v_lshlrev_b32 v{V_WA}, {PSH}, v{V_WA}
v_add_u32 v{V_WA}, {F_PROG + (R_DN0 << PSH)}, v{V_WA}
s_lshl_b32 s51, s{TS_S}, 1
s_add_u32 s51, s51, 2""")
    wait_words(a, "TPU_W2", TS_WS, V_WA, V_WT, 51, s_cnt=52, sleep=16)
    a.label("TOK_PU_GO")
    a("s_barrier")
    def pu_mid():
        a(f"s_cmp_lg_u32 s{TS_WAVE}, 0")
        a("s_cbranch_scc1 TOK_PU_GO2")
        a(f"""s_add_u32 s51, s{TS_S}, 1
s_min_u32 s53, s51, 62
v_mov_b32 v{V_WA}, {F_RPROG}""")
        wait_words(a, "TPU_W5", TS_WS, V_WA, V_WT, 53, s_cnt=52, sleep=OPT('SL_RP', 10), far=(1, OPT('SL_FAR', 0), 54))
        a(f"""v_lshlrev_b32 v{V_WA}, 7, v{TV_LANE}
v_add_u32 v{V_WA}, {F_REC}, v{V_WA}""")
        wait_words(a, "TPU_W3", TS_WS, V_WA, V_WT, 51, s_cnt=52, sleep=6)
        a(f"v_add_u32 v{V_WA}, 8192, v{V_WA}")
        wait_words(a, "TPU_W4", TS_WS, V_WA, V_WT, 51, s_cnt=52, sleep=2)
        a(f"""s_lshl_b32 s{TS_T}, s{TS_S}, 7
s_add_u32 s{TS_T}, s{TS_T}, {F_SC}
v_and_b32 v{V_WA}, 7, v{TV_LANE}
v_lshlrev_b32 v{V_WA}, 2, v{V_WA}
v_add_u32 v{V_WA}, s{TS_T}, v{V_WA}""")
        wait_words(a, "TPU_W0", TS_WS, V_WA, V_WT, None, s_cnt=52, sleep=OPT('SL_SC', 3), imm_thr=1)
        a.label("TOK_PU_GO2")
        a("s_barrier")
    T.emit_pu(a, "MPU", mid=pu_mid)
    a("s_branch TOK_LOOP")
    a.label("TOK_END")
    dbgt(a, 56, op="max")
    trace(a, 4, 97)
    a("s_waitcnt vmcnt(0)")
    a("s_endpgm")

NINIT = 80
def gemm_init(a, P):
    import struct
    EX = 0
    a(f"""s_load_dwordx2 s[40:41], s[0:1], {KA['x']}
s_sub_u32 s62, s62, 48
s_mov_b32 s63, s62
s_waitcnt lgkmcnt(0)""")
    srd(a, 64, 40, S*D*2)
    def xloads():
        a(f"""s_lshl_b32 s42, s63, 4
v_add_u32 v104, s42, v3
v_mul_u32_u24 v104, 1280, v104
v_lshlrev_b32 v105, 4, v2
v_add_u32 v104, v104, v105
s_mul_i32 s42, s20, 320""")
        for p in range(5):
            a(f"buffer_load_dwordx4 {vr(16+4*p)}, v104, s[64:67], s42 offen offset:{p*64}")
    xloads()
    a(f"""s_mul_i32 s43, s62, 16800
v_lshlrev_b32 v106, 4, v0
v_add_u32 v106, s43, v106
v_mov_b32 v108, -1
v_mov_b32 v109, -1
v_mov_b32 v110, -1
v_mov_b32 v111, -1
v_mov_b32 v112, 0
v_mov_b32 v113, 0
v_mov_b32 v114, 0
v_mov_b32 v115, 0""")
    for slot in range(4):
        for r in range(4):
            a(f"s_mov_b32 s44, {RING + slot*RING_SLOT + r*4096}")
            a(f"buffer_store_dwordx4 {vr(108)}, v106, s[4:7], s44 offen sc1")
    a("v_cmp_gt_u32 vcc, 26, v0")
    a("s_and_saveexec_b64 s[46:47], vcc")
    a(f"s_cbranch_execz {P}_GI_NOP3")
    for slot in range(4):
        a(f"s_mov_b32 s44, {RING + slot*RING_SLOT + 16384}")
        a(f"buffer_store_dwordx4 {vr(108)}, v106, s[4:7], s44 offen sc1")
    a.label(f"{P}_GI_NOP3")
    a("s_mov_b64 exec, s[46:47]")
    a(f"""s_cmp_ge_u32 s62, 64
s_cbranch_scc1 {P}_GI_NOFL
s_cmp_lg_u32 s20, 0
s_cbranch_scc1 {P}_GI_NOFL
s_lshl_b32 s43, s62, 10
s_add_u32 s43, s43, {FLAGS}
v_lshlrev_b32 v107, 4, v1
buffer_store_dwordx4 {vr(112)}, v107, s[4:7], s43 offen sc1""")
    a.label(f"{P}_GI_NOFL")
    a("s_waitcnt vmcnt(16)")
    a.label(f"{P}_GI_LN")
    for r in range(20):
        a(f"v_lshlrev_b32 v{40+2*r}, 16, v{16+r}")
        a(f"v_and_b32 v{41+2*r}, 0xffff0000, v{16+r}")
    for k in range(4): a(f"v_add_f32 v{80+k}, v{40+k}, v{44+k}")
    for i in range(8, 40): a(f"v_add_f32 v{80+(i%4)}, v{80+(i%4)}, v{40+i}")
    a("v_add_f32 v80, v80, v81\nv_add_f32 v82, v82, v83\nv_add_f32 v80, v80, v82")
    def xreduce(r, t):
        a(f"v_mov_b32 v{t}, v{r}\nv_permlane16_swap_b32 v{r}, v{t}\nv_add_f32 v{r}, v{r}, v{t}")
        a(f"v_mov_b32 v{t}, v{r}\nv_permlane32_swap_b32 v{r}, v{t}\nv_add_f32 v{r}, v{r}, v{t}")
    def cross(r, off):
        a(f"""s_lshl_b32 s43, s20, 6
v_lshlrev_b32 v84, 2, v3
v_add_u32 v84, 132096, v84
v_add_u32 v85, s43, v84
s_mov_b32 exec_hi, 0
s_mov_b32 exec_lo, 0xffff
ds_write_b32 v85, v{r} offset:{EX+off}
s_mov_b64 exec, -1
s_waitcnt lgkmcnt(0)
s_barrier
ds_read_b32 v86, v84 offset:{EX+off}
ds_read_b32 v87, v84 offset:{EX+off+64}
ds_read_b32 v88, v84 offset:{EX+off+128}
ds_read_b32 v89, v84 offset:{EX+off+192}
s_waitcnt lgkmcnt(0)
v_add_f32 v86, v86, v87
v_add_f32 v88, v88, v89
v_add_f32 v{r}, v86, v88""")
    xreduce(80, 81)
    cross(80, 0)
    a(f"s_mov_b32 s45, 0x{struct.unpack('<I', struct.pack('<f', 1.0/640))[0]:08x}")
    a("v_mul_f32 v80, s45, v80")
    for i in range(40): a(f"v_sub_f32 v{40+i}, v{40+i}, v80")
    for k in range(4): a(f"v_mul_f32 v{90+k}, v{40+k}, v{40+k}")
    for i in range(4, 40): a(f"v_fmac_f32 v{90+(i%4)}, v{40+i}, v{40+i}")
    a("v_add_f32 v90, v90, v91\nv_add_f32 v92, v92, v93\nv_add_f32 v90, v90, v92")
    xreduce(90, 91)
    cross(90, 256)
    a("v_mul_f32 v90, s45, v90")
    a("v_add_f32 v90, 0x3727c5ac, v90")
    a("v_rsq_f32 v90, v90")
    for r in range(20):
        a(f"v_mul_f32 v{40+2*r}, v{40+2*r}, v90")
        a(f"v_mul_f32 v{41+2*r}, v{41+2*r}, v90")
        a(f"v_cvt_pk_bf16_f32 v{116+r}, v{40+2*r}, v{41+2*r}")
    a(f"""s_mul_i32 s43, s63, {20*1024}
s_mul_i32 s44, s20, {5*1024}
s_add_u32 s43, s43, s44
s_add_u32 s43, s43, {XN}
v_lshlrev_b32 v104, 4, v1""")
    for p in range(5):
        if p == 4: a("s_add_u32 s43, s43, 4096")
        a(f"buffer_store_dwordx4 {vr(116+4*p)}, v104, s[4:7], s43 offen offset:{(p%4)*1024} sc1")
    a(f"""s_add_u32 s63, s63, {NINIT}
s_cmp_ge_u32 s63, 128
s_cbranch_scc1 {P}_GI_END""")
    xloads()
    a("s_waitcnt vmcnt(0)")
    a("s_barrier")
    a(f"s_branch {P}_GI_LN")
    a.label(f"{P}_GI_END")
    a("s_waitcnt vmcnt(0)")
    a("s_barrier")
    a(f"""s_cmp_lg_u32 s20, 0
s_cbranch_scc1 {P}_GI_DONE
v_mov_b32 v110, 1
v_mov_b32 v111, {DB_INIT}
s_mov_b64 exec, 1
global_atomic_add v111, v110, s[76:77] sc1
s_mov_b64 exec, -1""")
    a.label(f"{P}_GI_DONE")

def wait_init(a, lbl):
    wait_dbg(a, lbl, 76, DB_INIT, 250, 251, 86, 88, thr=NINIT)

def gen_main_kernel(name="main_kernel"):
    a = Asm()
    kernel_header(a, name)
    if OPT('STAMP', 0): a("s_memtime s[100:101]")
    a(f"""s_cmp_ge_u32 s2, 256
s_cbranch_scc1 MK_END
s_load_dwordx2 s[74:75], s[0:1], {KA['ws']}
s_load_dwordx2 s[76:77], s[0:1], {KA['dbg']}
s_getreg_b32 s78, hwreg(HW_REG_XCC_ID)
s_and_b32 s78, s78, 7
s_waitcnt lgkmcnt(0)""")
    if OPT('FAKEXCC', 0):
        a("s_lshr_b32 s78, s2, 4\ns_min_u32 s78, s78, 7")
    srd(a, 4, 74, WS_SIZE)
    lane_setup(a, 1, 2, 3, 24)
    a(f"""s_cmp_lg_u32 s24, 0
s_cbranch_scc1 MK_NORANK
v_mov_b32 v10, 1
s_lshl_b32 s79, s78, 2
v_mov_b32 v11, s79
s_mov_b64 exec, 1
global_atomic_add v12, v11, v10, s[76:77] sc0 sc1
s_waitcnt vmcnt(0)
v_readfirstlane_b32 s79, v12
s_mov_b32 s80, s78
s_cmp_lt_u32 s79, 32
s_cbranch_scc1 MK_HAVE
v_mov_b32 v11, 32
global_atomic_add v12, v11, v10, s[76:77] sc0 sc1
s_waitcnt vmcnt(0)
v_readfirstlane_b32 s81, v12
s_mov_b64 exec, 0xff
v_lshlrev_b32 v11, 2, v1
s_mov_b32 s82, 0""")
    a.label("MK_OVW")
    a(f"""global_load_dword v12, v11, s[76:77] sc1
s_waitcnt vmcnt(0)
s_mov_b32 s83, 0""")
    for x in range(8):
        a(f"v_readlane_b32 s84, v12, {x}\ns_add_u32 s83, s83, s84")
    a(f"""s_cmp_ge_u32 s83, 256
s_cbranch_scc1 MK_OVK
s_sleep 8
s_add_u32 s82, s82, 1
s_cmp_lt_u32 s82, 0x200000
s_cbranch_scc1 MK_OVW""")
    a.label("MK_OVK")
    for x in range(8):
        a(f"""v_readlane_b32 s84, v12, {x}
s_min_u32 s84, s84, 32
s_sub_u32 s85, 32, s84
s_cmp_lt_u32 s81, s85
s_cbranch_scc0 MK_NX{x}
s_mov_b32 s80, {x}
s_add_u32 s79, s84, s81
s_branch MK_HAVE""")
        a.label(f"MK_NX{x}")
        a("s_sub_u32 s81, s81, s85")
    a("s_mov_b32 s80, 7\ns_mov_b32 s79, 31")
    a.label("MK_HAVE")
    a(f"""s_mov_b64 exec, 1
s_lshl_b32 s80, s80, 8
s_or_b32 s80, s80, s79
v_mov_b32 v12, s80
v_mov_b32 v11, 0
ds_write_b32 v11, v12
s_waitcnt lgkmcnt(0)
s_mov_b64 exec, -1""")
    a.label("MK_NORANK")
    a(f"""s_barrier
v_mov_b32 v11, 0
ds_read_b32 v12, v11
s_waitcnt lgkmcnt(0)
v_readfirstlane_b32 s79, v12
s_barrier
s_lshr_b32 s80, s79, 8
s_and_b32 s79, s79, 255
s_cmp_ge_u32 s80, 4
s_cbranch_scc1 MK_GEMM
s_lshl_b32 s{R.S_J}, s80, 5
s_add_u32 s{R.S_J}, s{R.S_J}, s79""")
    a(f"s_mov_b32 s97, s{R.S_J}")
    dbgt(a, 60, s_cond=R.S_J)
    trace(a, 0, 97)
    R.INITWAIT[0] = True
    R.rec_entry(a)
    R.rec_dispatch(a, flags=True)
    a.label("MK_GEMM")
    a(f"""s_lshl_b32 s51, s79, 2
s_sub_u32 s80, s80, 4
s_add_u32 s51, s51, s80
s_mov_b32 s{P.S_WAVE}, s24
s_lshl_b32 s{P.S_PROG}, s51, {PSH}
s_add_u32 s{P.S_PROG}, s{P.S_PROG}, {F_PROG}
s_add_u32 s97, s51, 128""")
    trace(a, 0, 97)
    a("s_mov_b32 s62, s51")
    a("s_mov_b32 s79, s51")
    a("s_cmp_lt_u32 s51, 48")
    a("s_cbranch_scc1 MK_NOINIT")
    gemm_init(a, "GI")
    a.label("MK_NOINIT")
    if OPT('DELAYW', 0):
        a(f"s_cmp_lt_u32 s51, {R_Q0}")
        a("s_cbranch_scc1 MK_NODLY")
        a(f"s_cmp_ge_u32 s51, {R_PROBE}")
        a("s_cbranch_scc1 MK_NODLY")
        n = OPT('DELAYW', 0)
        while n > 0:
            k = min(n, 127); a(f"s_sleep {k}"); n -= k
        a.label("MK_NODLY")
    a(f"""s_cmp_lt_u32 s51, {R_UP0}
s_cbranch_scc1 MK_QKV
s_cmp_lt_u32 s51, {R_DN0}
s_cbranch_scc1 MK_UP
s_cmp_lt_u32 s51, {R_U0}
s_cbranch_scc1 MK_DN
s_cmp_lt_u32 s51, {R_PROBE}
s_cbranch_scc1 MK_U
s_cmp_eq_u32 s51, {R_PROBE}
s_cbranch_scc0 MK_TOK""")
    R.probe(a, 24, 78, "MK_PR", 76)
    a("s_branch MK_TOK")
    a.label("MK_QKV")
    P.panel_role_setup(a, 'qkv', 51); P.emit_panel(a, 'qkv', 'MPQ', flags=True, init_hook=lambda: wait_init(a, "WI_Q"))
    a("s_branch MK_TOK")
    a.label("MK_UP")
    a(f"s_sub_u32 s51, s51, {R_UP0}")
    P.panel_role_setup(a, 'ffnup', 51); P.emit_panel(a, 'ffnup', 'MPU2', flags=True, init_hook=lambda: wait_init(a, "WI_U"))
    a("s_branch MK_TOK")
    a.label("MK_DN")
    a(f"s_sub_u32 s51, s51, {R_DN0}")
    P.panel_role_setup(a, 'down', 51); P.emit_panel(a, 'down', 'MPD', flags=True, init_hook=lambda: wait_init(a, "WI_D"))
    a("s_branch MK_TOK")
    a.label("MK_U")
    a(f"""s_sub_u32 s{T.US_H}, s51, {R_U0}
s_mov_b32 s{T.US_PROG}, s{P.S_PROG}
s_load_dwordx2 s[40:41], s[0:1], {KA['wo']}
s_waitcnt lgkmcnt(0)""")
    srd(a, T.US_WO, 40, H*E*D*2)
    T.emit_upanel(a, "MUP", flags=True, init_hook=lambda: wait_init(a, "WI_UP"))
    a.label("MK_TOK")
    if OPT('TOKLIM', 128) < 128:
        a(f"s_cmp_lt_u32 s79, {OPT('TOKLIM', 128)}")
        a("s_cbranch_scc1 MK_TOK2")
        a(f"s_cmp_ge_u32 s79, {R_PROBE}")
        a("s_cbranch_scc1 MK_TOK2")
        a("s_endpgm")
        a.label("MK_TOK2")
    trace(a, 3, 97)
    wait_init(a, "WI_T")
    a("s_barrier")
    tok_loop(a)
    a.label("MK_END")
    a("s_endpgm")
    return name, a.finalize(), kernel_desc(name, 512, 102, 256)
```

```python
from gen_common import *
import struct, os
OPT=lambda k,d: type(d)(os.environ.get(k,d))
def f2u(f): return struct.unpack('<I', struct.pack('<f', f))[0]

S_WS=4; S_WQ=8; S_WK=12; S_WV=16; S_WO=20
S_WAVE=24; S_H=25; S_C=26; S_J=27; S_STEP=28
S_P=29; S_CUR=30; S_N=31; S_NN=32
S_HI32=20
S_MQ=16
S_M8=34; S_H8=38
S_T=40; S_T2=41; S_T3=42; S_RETRY=43
S_KVG=44; S_UXG=45; S_UYG=46; S_KMG=47; S_RSB=48; S_KVL=49; S_KVR=50; S_RED=51; S_RSP=52; S_FLG=53
S_LB=54
S_COL=56
S_SCALE=60; S_MAXR=61
S_TS=62
S_M0=88
S_MODE=57
S_REF0=98
S_REF2=36
S_NOW=58
L_MEM=0; L_QKV=10240; L_KV=20480; KVB=24576
LDS_REC=131072
V_LANE=1; V_G=2; V_N=3; V_T=4; V_T2=5; V_L16=6
V_AGO=7; V_AGL=10; V_MRD=11; V_AGP=23
V_RSL=7
V_AST=12; V_KMS=15; V_APO=16; V_APL=19
V_RQ=20; V_IDX=21; V_RV=22; V_RSO=28; V_L4=29; V_AGS=30; V_ZERO=31
V_RSP=80
V_NINF=248; V_KVA=249
V_POLL=32; V_RING=48; V_ACC=88; V_PK=252; V_KXF=100; V_QF=148; V_KF=172; V_VF=196; V_S=220; V_UXF=232
V_Y=48; V_PU=64; V_UA=48; V_YF=220; V_SM=148
NT = [4, 4, 2]; T0 = [0, 4, 8]; P0 = [0, 2, 4]
KVX = L_KV ^ (L_KV+KVB)

def poll_check(a, regs, vt):
    r = list(regs)
    a(f"v_max3_u32 v{vt}, v{r[0]}, v{r[1]}, v{r[2]}")
    i = 3
    while i < len(r):
        if i + 1 < len(r):
            a(f"v_max3_u32 v{vt}, v{vt}, v{r[i]}, v{r[i+1]}"); i += 2
        else:
            a(f"v_max_u32 v{vt}, v{vt}, v{r[i]}"); i += 1
    a(f"v_cmp_eq_u32 vcc, -1, v{vt}")

def sleep(a, n):
    while n > 0:
        k = min(n, 127); a(f"s_sleep {k}"); n -= k

def mark(a, reg):
    a(f"s_memtime s[{reg}:{reg+1}]")

def wait_until(a, ref, delta):
    if delta <= 0: return
    a.uid += 1
    L = f"WU_{a.uid}"
    a.label(L)
    a(f"""s_memtime s[{S_NOW}:{S_NOW+1}]
s_waitcnt lgkmcnt(0)
s_sub_u32 s{S_NOW}, s{S_NOW}, s{ref}
s_cmp_ge_u32 s{S_NOW}, {delta}
s_cbranch_scc1 {L}_D
s_sub_u32 s{S_NOW}, {delta}, s{S_NOW}
s_cmp_lt_u32 s{S_NOW}, 96
s_cbranch_scc1 {L}
s_sleep 1
s_branch {L}""")
    a.label(f"{L}_D")

def stamp(a, idx):
    if OPT('STAMP', 0):
        a(f"s_memtime s[{S_TS+2*idx}:{S_TS+2*idx+1}]")

def racc(a, k):
    if OPT('STAMP', 0): a(f"s_add_u32 s{k}, s{k}, s{S_RETRY}")

def nearmap_v(a, v, vt):
    a(f"""v_lshrrev_b32 v{vt}, 13, v{v}
v_lshlrev_b32 v{vt}, 14, v{vt}
v_and_b32 v{v}, 0x1fff, v{v}
v_or_b32 v{v}, v{v}, v{vt}""")

def oob_mask(a, v, nlanes):
    a(f"""v_mov_b32 v{V_T}, 0x80000000
v_cmp_gt_u32 vcc, {nlanes}, v{V_LANE}
v_cndmask_b32 v{v}, v{V_T}, v{v}, vcc""")

V_AGB=48
def poll_loop(a, lbl, loads, nreg, acc, pre_issued=False, base=None, spec=None):
    a(f"s_mov_b32 s{S_RETRY}, 0")
    if pre_issued:
        a(f"s_branch {lbl}_W")
    a.label(lbl)
    for x in loads: a(x)
    if pre_issued: a.label(f"{lbl}_W")
    a("s_waitcnt vmcnt(0)")
    if spec: spec()
    b0 = V_POLL if base is None else base
    poll_check(a, range(b0, b0+nreg), V_T)
    a(f"""s_cbranch_vccz {lbl}_OK
s_add_u32 s{S_RETRY}, s{S_RETRY}, 1
s_cmp_lt_u32 s{S_RETRY}, s{S_MAXR}
s_cbranch_scc1 {lbl}
s_mov_b32 s{S_MAXR}, 0""")
    a.label(f"{lbl}_OK")
    racc(a, acc)

CURMODE = [None]
def RSLOC(): return OPT('RSLOC', 0) and not OPT('STAMP', 0)
INITWAIT = [False]
def store_mode(a, lines):
    if CURMODE[0] is not None:
        for x in lines: a(x.replace(' SCX', '' if CURMODE[0] else ' sc1'))
        return
    if OPT('AFAST', 1) == 0:
        for x in lines: a(x.replace(' SCX', ' sc1'))
        return
    a.uid += 1
    L = f"SM_{a.uid}"
    a(f"s_cmp_eq_u32 s{S_MODE}, 0")
    a(f"s_cbranch_scc1 {L}_S")
    for x in lines: a(x.replace(' SCX', ''))
    a(f"s_branch {L}_E")
    a.label(f"{L}_S")
    for x in lines: a(x.replace(' SCX', ' sc1'))
    a.label(f"{L}_E")

def wait_mode(a, ref, fast, slow):
    if CURMODE[0] is not None:
        wait_until(a, ref, fast if CURMODE[0] else slow); return
    if OPT('AFAST', 1) == 0:
        wait_until(a, ref, slow); return
    a.uid += 1
    L = f"WM_{a.uid}"
    a(f"s_cmp_eq_u32 s{S_MODE}, 0")
    a(f"s_cbranch_scc1 {L}_S")
    wait_until(a, ref, fast)
    a(f"s_branch {L}_E")
    a.label(f"{L}_S")
    wait_until(a, ref, slow)
    a.label(f"{L}_E")

def poll2(a, lbl, mk_loads, nreg, baseA, baseB, acc, stage, gap=2):
    LA = mk_loads(baseA); LB = mk_loads(baseB); n = len(LA)
    a(f"s_mov_b32 s{S_RETRY}, 0")
    for x in LA: a(x)
    if gap: a(f"s_sleep {gap}")
    a.label(lbl)
    for x in LB: a(x)
    a(f"s_waitcnt vmcnt({n})")
    poll_check(a, range(baseA, baseA+nreg), V_T)
    a(f"s_cbranch_vccz {lbl}_GA")
    for x in LA: a(x)
    a(f"s_waitcnt vmcnt({n})")
    poll_check(a, range(baseB, baseB+nreg), V_T)
    a(f"""s_cbranch_vccz {lbl}_GB
s_add_u32 s{S_RETRY}, s{S_RETRY}, 1
s_cmp_lt_u32 s{S_RETRY}, s{S_MAXR}
s_cbranch_scc1 {lbl}
s_mov_b32 s{S_MAXR}, 0""")
    a.label(f"{lbl}_GB")
    racc(a, acc)
    stage(baseB)
    a(f"s_branch {lbl}_E")
    a.label(f"{lbl}_GA")
    racc(a, acc)
    stage(baseA)
    a.label(f"{lbl}_E")

def ag_poll(a, pfx, w):
    wait_mode(a, S_REF2, OPT('T_AGF', 0), OPT('T_AG', 650))
    base = (w-2)*5
    def mk(b): return [f"buffer_load_dwordx4 {vr(b+4*k)}, v{V_AGP+k}, s[{S_WS}:{S_WS+3}], s{S_P} offen sc1" for k in range(5)]
    def stage(b):
        for k in range(5):
            a(f"ds_write_b128 v{V_L16}, {vr(b+4*k)} offset:{L_MEM + (base+k)*1024}")
    if CURMODE[0] and OPT('POLL2', 0):
        poll2(a, f"{pfx}_AGP", mk, 20, 172, 196, 92, stage, gap=OPT('GAPD', 2))
    else:
        if OPT('SPEC', 0): poll_loop(a, f"{pfx}_AGP", mk(V_AGB), 20, 92, base=V_AGB, spec=lambda: stage(V_AGB))
        else:
            poll_loop(a, f"{pfx}_AGP", mk(V_AGB), 20, 92, base=V_AGB)
            stage(V_AGB)

def reduce_blocks(a, pfx, nb, SEL, base_reg, s_poll, v_ags, acc, apk, s_loc0=None, s_loc=None, sqbase=None):
    loads = []
    LOCAL = CURMODE[0] and RSLOC()
    if LOCAL:
        a(f"s_lshr_b32 s{S_NOW}, s{S_J}, 5")
        a(f"s_xor_b32 s{S_NOW+1}, s{S_CUR}, 8192")
        for b in range(nb):
            a(f"s_add_u32 s{s_loc[b]}, s{s_loc0[b]}, s{S_NOW+1}")
        for b in range(nb):
            for q in range(4):
                sq = sqbase + 4*b + q
                a(f"s_add_u32 s{sq}, s{s_poll[b]}, {q*1024}")
                a(f"s_cmp_eq_u32 s{S_NOW}, {q}")
                a(f"s_cselect_b32 s{sq}, s{s_loc[b]}, s{sq}")
                loads.append(f"buffer_load_dwordx4 {vr(base_reg+16*b+4*q)}, v{V_L16}, s[{S_WS}:{S_WS+3}], s{sq} offen sc1")
    else:
        for b in range(nb):
            for q in range(4):
                loads.append(f"buffer_load_dwordx4 {vr(base_reg+16*b+4*q)}, v{V_L16}, s[{S_WS}:{S_WS+3}], s{s_poll[b]} offen offset:{q*1024} sc1")
    poll_loop(a, f"{pfx}_RP", loads, 16*nb, 94, base=base_reg)
    stamp(a, 7)
    for q in range(4):
        for b in range(nb):
            c = "0" if q == 0 else vr(acc+8*b)
            a(f"v_mfma_f32_16x16x32_bf16 {vr(acc+8*b)}, {vr(SEL)}, {vr(base_reg+16*b+4*q)}, {c}")
    for b in range(nb):
        for r in range(4):
            a(f"v_add_f32_dpp v{acc+8*b+4+r}, v{acc+8*b+r}, v{acc+8*b+r} row_ror:8 row_mask:0xf bank_mask:0xf")
    if nb == 2:
        for r in range(4): a(f"v_cndmask_b32 v{acc+4+r}, v{acc+4+r}, v{acc+12+r}, s[{S_H8}:{S_H8+1}]")
    a(f"v_cvt_pk_bf16_f32 v{apk}, v{acc+4}, v{acc+5}")
    a(f"v_cvt_pk_bf16_f32 v{apk+1}, v{acc+6}, v{acc+7}")
    a(f"v_mov_b32 v{apk+2}, v{apk}\nv_mov_b32 v{apk+3}, v{apk+1}")
    a(f"v_mov_b32 v{apk+4}, v{apk}\nv_mov_b32 v{apk+5}, v{apk+1}")
    a(f"v_permlane16_swap_b32 v{apk+4}, v{apk+2}")
    a(f"v_permlane16_swap_b32 v{apk+5}, v{apk+3}")
    store_mode(a, [f"buffer_store_dwordx4 {vr(apk)}, v{v_ags}, s[{S_WS}:{S_WS+3}], s{S_CUR} offen SCX"])

def reduce2(a, pfx, SEL, base_reg, v_off, v_ags, acc, apk):
    loads = [f"buffer_load_dwordx4 {vr(base_reg+4*q)}, v{v_off}, s[{S_WS}:{S_WS+3}], s{S_CUR} offen offset:{q*512} sc1" for q in range(8)]
    poll_loop(a, f"{pfx}_RP", loads, 32, 94, base=base_reg)
    stamp(a, 7)
    for q in range(8):
        c = "0" if q == 0 else vr(acc)
        a(f"v_mfma_f32_16x16x32_bf16 {vr(acc)}, {vr(SEL)}, {vr(base_reg+4*q)}, {c}")
    a(f"v_cvt_pk_bf16_f32 v{apk}, v{acc}, v{acc+1}")
    a(f"v_cvt_pk_bf16_f32 v{apk+1}, v{acc+2}, v{acc+3}")
    store_mode(a, [f"buffer_store_dwordx2 {vr(apk,2)}, v{v_ags}, s[{S_WS}:{S_WS+3}], s{S_CUR} offen SCX"])

def sel_setup(a, SEL):
    for k in range(4):
        a(f"""v_mov_b32 v{SEL+k}, 0
v_mov_b32 v{V_T}, 0x3f80
v_cmp_eq_u32 vcc, {2*k}, v{V_N}
v_cndmask_b32 v{SEL+k}, v{SEL+k}, v{V_T}, vcc
v_mov_b32 v{V_T}, 0x3f800000
v_cmp_eq_u32 vcc, {2*k+1}, v{V_N}
v_cndmask_b32 v{SEL+k}, v{SEL+k}, v{V_T}, vcc""")

def smap(a, s, t):
    a(f"""s_lshr_b32 s{t}, s{s}, 13
s_lshl_b32 s{t}, s{t}, 14
s_and_b32 s{s}, s{s}, 0x1fff
s_or_b32 s{s}, s{s}, s{t}
s_add_u32 s{s}, s{s}, {nearmap(RS_LOG)}""")

def loc_off(a, s_cb, s_out, s_tmp):
    a(f"""s_lshr_b32 s{s_out}, s{S_J}, 5
s_mul_i32 s{s_out}, s{s_out}, 81920
s_lshl_b32 s{s_tmp}, s{s_cb}, 10
s_add_u32 s{s_out}, s{s_out}, s{s_tmp}""")
    smap(a, s_out, s_tmp)

def rs_local_lane(a, v):
    a(f"""v_lshlrev_b32 v{v}, 10, v{V_G}
v_and_b32 v{V_T}, 7, v{V_LANE}
v_lshlrev_b32 v{V_T}, 4, v{V_T}
v_add_u32 v{v}, v{v}, v{V_T}
s_and_b32 s{S_T}, s{S_H}, 7
s_lshl_b32 s{S_T}, s{S_T}, 7
v_add_u32 v{v}, s{S_T}, v{v}""")

def blk_off(a, s_cb, s_out, s_tmp):
    a(f"""s_lshr_b32 s{s_out}, s{s_cb}, 1
s_lshl_b32 s{s_out}, s{s_out}, 14
s_and_b32 s{s_tmp}, s{s_cb}, 1
s_lshl_b32 s{s_tmp}, s{s_tmp}, 12
s_add_u32 s{s_out}, s{s_out}, s{s_tmp}
s_add_u32 s{s_out}, s{s_out}, {nearmap(RS_LOG)}""")

def rotate_slots(a):
    a(f"""s_mov_b32 s{S_T}, s{S_P}
s_mov_b32 s{S_P}, s{S_CUR}
s_mov_b32 s{S_CUR}, s{S_N}
s_mov_b32 s{S_N}, s{S_NN}
s_mov_b32 s{S_NN}, s{S_T}""")

def proj_stage(a, ntile, w8):
    for K in range(10):
        a(f"ds_read_b128 {vr(V_RING+4*K)}, v{V_L16} offset:{L_MEM + K*1024}")
    for t in range(ntile):
        for r in range(4): a(f"v_mov_b32 v{V_ACC+4*t+r}, 0")
    for K in range(10):
        a(f"s_waitcnt lgkmcnt({9-K})")
        for t in range(ntile):
            a(f"v_smfmac_f32_16x16x64_bf16 {vr(V_ACC+4*t)}, {vr(V_RING+4*K)}, {w8(t,K)}, v{V_IDX}")

def pack_pair(x, y, pk):
    L = [f"v_permlane32_swap_b32 v{x+r}, v{y+r}" for r in range(4)]
    L += [f"v_add_f32 v{x+r}, v{x+r}, v{y+r}" for r in range(4)]
    L += [f"v_cvt_pk_bf16_f32 v{pk}, v{x}, v{x+1}", f"v_cvt_pk_bf16_f32 v{pk+1}, v{x+2}, v{x+3}"]
    return L

def ux_load(a, w, flags, pfx):
    nt = NT[w]
    if flags:
        a.uid += 1
        a(f"s_add_u32 s{S_UXT}, s{S_UXT}, 1")
        a(f"s_min_u32 s{S_T3}, s{S_UXT}, 64")
        wait_words(a, f"{pfx}_WUX{a.uid}", S_WS, V_UXA, V_T, S_T3, S_UXC, 1, S_T2, 23)
    for t in range(nt):
        a(f"buffer_load_dwordx4 {vr(V_UXF+4*t)}, v{V_L16}, s[{S_WS}:{S_WS+3}], s{S_UXG} offen offset:{t*1024} sc1")
    a(f"s_add_u32 s{S_UXG}, s{S_UXG}, {32*40*1024}")

def idle_phase(a, w, woq):
    if OPT('UXRD', 0):
        a(f"v_add_u32 v{V_T}, s{S_KVR}, v{V_L16}")
        for f in range(12):
            a(f"ds_read_b128 {vr(V_KXF+4*f)}, v{V_T} offset:{f*1024}")
        a("s_waitcnt lgkmcnt(0)")
        a(f"s_xor_b32 s{S_KVR}, s{S_KVR}, {KVX}")
        return
    nt = NT[w]
    a(f"v_add_u32 v{V_T}, s{S_KVR}, v{V_L16}")
    for f in range(12):
        a(f"ds_read_b128 {vr(V_QF+4*f)}, v{V_T} offset:{12288 + f*1024}")
        if f == 7: a("s_waitcnt lgkmcnt(4)")
    a("s_waitcnt lgkmcnt(0)")
    for f in range(12):
        a(f"ds_read_b128 {vr(V_KXF+4*f)}, v{V_T} offset:{f*1024}")
    for p in range(6):
        for t in range(nt):
            for tt in range(2):
                d = V_UA + 8*t + 4*tt
                c = "0" if p == 0 else vr(d)
                a(f"v_mfma_f32_16x16x32_bf16 {vr(d)}, {vr(V_QF+4*(tt*6+p))}, {woq(t,p)}, {c}")
    for t in range(nt):
        for k in range(4):
            tt = k >> 1
            d = V_UA + 8*t + 4*tt + 2*(k & 1)
            a(f"v_cvt_pk_bf16_f32 v{V_UXF+4*t+k}, v{d}, v{d+1}")
        a(f"s_add_u32 s{S_T}, s{S_UXG}, {t*1024}")
        if OPT('UXST', 0): a(f"buffer_store_dwordx4 {vr(V_UXF+4*t)}, v{V_L16}, s[{S_WS}:{S_WS+3}], s{S_T} offen sc1")
    a(f"s_add_u32 s{S_UXG}, s{S_UXG}, {32*40*1024}")
    a("s_waitcnt lgkmcnt(0)")
    a(f"s_xor_b32 s{S_KVR}, s{S_KVR}, {KVX}")

S_UXT=88; S_UXC=89; V_UXA=11
S_KVT=33
S_RLB=18
S_RL0=19; S_RL1=95
V_RSOL=9
S_KVC=21
def kv_dma(a, flags=False, pfx='', w=0):
    if w < 2:
        if flags:
            a.uid += 1
            a(f"s_add_u32 s{S_KVT}, s{S_KVT}, 2")
            a(f"s_min_u32 s{S_T3}, s{S_KVT}, 128")
            wait_words(a, f"{pfx}_WKV{a.uid}", S_WS, V_KVA, V_T, S_T3, 22, 2 if OPT('UXRD', 0) else 4, S_T2, 23)
        if OPT('UXRD', 0):
            for (k0, n) in ((0, 4), (4, 2)):
                a(f"s_add_u32 m0, s{S_KVL}, {w*6144 + k0*1024}")
                a(f"s_add_u32 s{S_T}, s{S_KVG}, {k0*1024}")
                for j in range(n):
                    a(f"buffer_load_dwordx4 v{V_L16}, s[{S_WS}:{S_WS+3}], s{S_T} offen offset:{j*1024} sc1 lds")
        else:
            for k in range(3):
                a(f"s_add_u32 m0, s{S_KVL}, {w*12288 + k*4096}")
                a(f"s_add_u32 s{S_T}, s{S_KVG}, {k*4096}")
                for j in range(4):
                    a(f"buffer_load_dwordx4 v{V_L16}, s[{S_WS}:{S_WS+3}], s{S_T} offen offset:{j*1024} sc1 lds")
        a(f"s_add_u32 s{S_KVG}, s{S_KVG}, {32*12288}")
    a(f"s_xor_b32 s{S_KVL}, s{S_KVL}, {KVX}")

def softmax_lists():
    X = V_SM; MX = V_SM+6; TM = V_SM+7; RS_ = V_SM+8; PT = V_SM+12; PM = V_SM+10; T2 = V_SM+16
    L = []
    for r in range(4): L.append(f"v_cndmask_b32 v{X+r}, v{V_S+4+r}, v{V_S+8+r}, s[{S_H8}:{S_H8+1}]")
    L.append(f"v_cndmask_b32 v{X+4}, v{V_S}, v{V_S+2}, s[{S_H8}:{S_H8+1}]")
    L.append(f"v_cndmask_b32 v{X+5}, v{V_S+1}, v{V_S+3}, s[{S_H8}:{S_H8+1}]")
    L.append(f"v_max3_f32 v{MX}, v{X}, v{X+1}, v{X+2}")
    L.append(f"v_max3_f32 v{TM}, v{X+3}, v{X+4}, v{X+5}")
    L.append(f"v_max_f32 v{MX}, v{MX}, v{TM}")
    L.append(f"v_max_f32_dpp v{MX}, v{MX}, v{MX} row_ror:8 row_mask:0xf bank_mask:0xf")
    L += [f"v_mov_b32 v{TM}, v{MX}", f"v_permlane16_swap_b32 v{MX}, v{TM}", f"v_max_f32 v{MX}, v{MX}, v{TM}"]
    L += [f"v_mov_b32 v{TM}, v{MX}", f"v_permlane32_swap_b32 v{MX}, v{TM}", f"v_max_f32 v{MX}, v{MX}, v{TM}"]
    L.append(f"v_mul_f32 v{MX}, s{S_SCALE}, v{MX}")
    for j in range(6): L.append(f"v_fma_f32 v{X+j}, v{X+j}, s{S_SCALE}, -v{MX}")
    for j in range(6): L.append(f"v_exp_f32 v{X+j}, v{X+j}")
    L.append(f"v_cvt_pk_bf16_f32 v{PT}, v{X}, v{X+1}")
    L.append(f"v_cvt_pk_bf16_f32 v{PT+1}, v{X+2}, v{X+3}")
    L.append(f"v_cvt_pk_bf16_f32 v{PM}, v{X+4}, v{X+5}")
    L.append(f"v_mov_b32_dpp v{PT+2}, v{PT} row_ror:8 row_mask:0xf bank_mask:0xf")
    L.append(f"v_mov_b32_dpp v{PT+3}, v{PT+1} row_ror:8 row_mask:0xf bank_mask:0xf")
    L.append(f"v_mov_b32_dpp v{PM+1}, v{PM} row_ror:8 row_mask:0xf bank_mask:0xf")
    M = [f"v_cndmask_b32 v{X+4}, v{X+4}, v{V_ZERO}, s[{S_HI32}:{S_HI32+1}]",
         f"v_cndmask_b32 v{X+5}, v{X+5}, v{V_ZERO}, s[{S_HI32}:{S_HI32+1}]",
         f"v_add_f32 v{RS_}, v{X}, v{X+1}", f"v_add_f32 v{TM}, v{X+2}, v{X+3}", f"v_add_f32 v{RS_+1}, v{X+4}, v{X+5}",
         f"v_add_f32 v{RS_}, v{RS_}, v{TM}", f"v_add_f32 v{RS_}, v{RS_}, v{RS_+1}",
         f"v_add_f32_dpp v{RS_}, v{RS_}, v{RS_} row_ror:8 row_mask:0xf bank_mask:0xf",
         f"v_mov_b32 v{TM}, v{RS_}", f"v_permlane16_swap_b32 v{RS_}, v{TM}", f"v_add_f32 v{RS_}, v{RS_}, v{TM}",
         f"v_mov_b32 v{TM}, v{RS_}", f"v_permlane32_swap_b32 v{RS_}, v{TM}", f"v_add_f32 v{RS_}, v{RS_}, v{TM}",
         f"v_rcp_f32 v{RS_}, v{RS_}"]
    return PT, PM, RS_, L, M

def gi(a, v):
    a(f"""v_lshlrev_b32 v{v}, 7, v{V_G}
v_and_b32 v{V_T}, 7, v{V_LANE}
v_lshlrev_b32 v{V_T}, 4, v{V_T}
v_add_u32 v{v}, v{v}, v{V_T}""")

def rs_lane(a, v):
    a(f"""v_lshrrev_b32 v{v}, 1, v{V_G}
v_lshlrev_b32 v{v}, 14, v{v}
v_and_b32 v{V_T}, 1, v{V_G}
v_lshlrev_b32 v{V_T}, 12, v{V_T}
v_add_u32 v{v}, v{v}, v{V_T}
v_and_b32 v{V_T}, 7, v{V_LANE}
v_lshlrev_b32 v{V_T}, 4, v{V_T}
v_add_u32 v{v}, v{v}, v{V_T}
s_lshl_b32 s{S_T}, s{S_H}, 7
v_add_u32 v{v}, s{S_T}, v{v}""")

def coop_load(a, w, wreg):
    stride = H*E*2
    VG, VT = V_POLL, V_POLL+1
    a(f"""v_lshrrev_b32 v{V_T}, 3, v{V_LANE}
v_add_u32 v{V_T}, {8*w}, v{V_T}
s_mov_b32 s{S_LB+1}, {stride}
v_mul_lo_u32 v{VG}, v{V_T}, s{S_LB+1}
v_and_b32 v{V_T}, 7, v{V_LANE}
v_lshlrev_b32 v{V_T}, 4, v{V_T}
v_add_u32 v{VG}, v{VG}, v{V_T}
v_bfe_u32 v{VT}, v{V_LANE}, 4, 1
v_lshlrev_b32 v{VT}, 4, v{VT}
v_bfe_u32 v{V_T}, v{V_LANE}, 5, 1
v_lshlrev_b32 v{V_T}, 3, v{V_T}
v_add_u32 v{VT}, v{VT}, v{V_T}
v_bfe_u32 v{V_T}, v{V_LANE}, 2, 1
v_add_u32 v{VT}, v{VT}, v{V_T}
v_bfe_u32 v{V_T}, v{V_LANE}, 3, 1
v_lshlrev_b32 v{V_T}, 2, v{V_T}
v_add_u32 v{VT}, v{VT}, v{V_T}
v_lshlrev_b32 v{VT}, 7, v{VT}
v_and_b32 v{V_T}, 3, v{V_LANE}
v_lshlrev_b32 v{V_T}, 3, v{V_T}
v_add_u32 v{VT}, v{VT}, v{V_T}
s_mul_i32 s{S_COL}, s{S_H}, 384
s_mul_i32 s{S_T}, s{S_C}, 96
s_add_u32 s{S_COL}, s{S_COL}, s{S_T}
v_add_u32 v{VT+1}, 61440, v{VT}""")
    srds = (S_WQ, S_WK, S_WV)
    def issue(ph):
        buf = (ph & 1)*61440
        for pp in range(5):
            p = 5*ph + pp
            for m in range(3):
                a(f"s_add_u32 s{S_T}, s{S_COL}, {p*32*stride}")
                a(f"s_mov_b32 m0, {buf + (pp*3+m)*4096 + w*1024}")
                a(f"buffer_load_dwordx4 v{VG}, s[{srds[m]}:{srds[m]+3}], s{S_T} offen lds")
    issue(0); issue(1)
    for ph in range(4):
        a(f"s_waitcnt vmcnt({15 if ph < 3 else 0})")
        a("s_barrier")
        buf = (ph & 1)*61440
        n = 0
        for pp in range(5):
            p = 5*ph + pp
            if w < 3: items = [(0, w, p), (1, w, 20+p)]
            else: items = [(2, t, t*20+p) for t in range(3)]
            for (m, T, f) in items:
                o = buf + (pp*3+m)*4096 + T*32
                reg = VT if o + 256 < 65536 else VT+1
                oo = o if reg == VT else o - 61440
                a(f"ds_read_b64_tr_b16 {wreg.pair(f,0)}, v{reg} offset:{oo}")
                a(f"ds_read_b64_tr_b16 {wreg.pair(f,1)}, v{reg} offset:{oo+256}")
                n += 2
                if n % 12 == 0: a("s_waitcnt lgkmcnt(4)")
        a("s_waitcnt lgkmcnt(0)")
        a("s_barrier")
        if ph == 0: pass
        if ph + 2 < 4: issue(ph+2)

def main_wave(a, w, flags=False):
    pfx = f"RM{w}"
    nt = NT[w]
    wreg = WReg(0, 256, 0)
    mem0_load(a, w)
    w8 = lambda t, K: ar((t*20 + 2*K)*4, 8)
    woq = lambda t, p: wreg.quad(40 + t*6 + p)
    a(f"s_lshl_b32 s{S_LB}, s{S_WAVE}, 15")
    if OPT('COOP', 1):
        coop_load(a, w, wreg)
    else:
        a(f"""s_mul_i32 s{S_COL}, s{S_H}, 384
s_mul_i32 s{S_T}, s{S_C}, 96
s_add_u32 s{S_COL}, s{S_COL}, s{S_T}
s_add_u32 s{S_COL}, s{S_COL}, {w*32}""")
        units = []
        for p in range(20): units += [(S_WQ, S_COL, p*32*H*E*2), (S_WK, S_COL, p*32*H*E*2)]
        load_w2(a, units, lambda u, T, k: wreg.pair((u & 1)*20 + (u >> 1), k), 1, H*E*2, 2, V_LANE, V_POLL, V_POLL+1, V_T, S_T, S_LB)
    a(f"""s_mul_i32 s{S_COL}, s{S_H}, {192*1280}
s_mul_i32 s{S_T}, s{S_C}, 320
s_add_u32 s{S_COL}, s{S_COL}, s{S_T}
s_add_u32 s{S_COL}, s{S_COL}, {T0[w]*32}""")
    ng = nt//2
    units = [(S_WO, S_COL, g*64 + p*32*1280) for p in range(6) for g in range(ng)]
    load_w2(a, units, lambda u, T, k: wreg.pair(40 + ((u % ng)*2 + T)*6 + u // ng, k), 2, D*2, True, V_LANE, V_POLL, V_POLL+1, V_T, S_T, S_LB)
    if OPT('STAMP', 0): a("s_memtime s[78:79]\ns_waitcnt lgkmcnt(0)\ns_sub_u32 s95, s78, s100")
    common_setup(a, w)
    gi(a, V_KMS)
    a(f"v_add_u32 v{V_KMS}, {w*1024}, v{V_KMS}")
    a(f"""v_lshrrev_b32 v{V_AST}, 1, v{V_G}
v_mul_u32_u24 v{V_AST}, 3072, v{V_AST}
v_lshlrev_b32 v{V_T}, 4, v{V_N}
v_add_u32 v{V_AST}, v{V_AST}, v{V_T}
v_and_b32 v{V_T}, 1, v{V_G}
v_lshlrev_b32 v{V_T}, 3, v{V_T}
v_add_u32 v{V_AST}, v{V_AST}, v{V_T}
s_mul_i32 s{S_T}, s{S_C}, 3
s_add_u32 s{S_T}, s{S_T}, {w}
s_lshl_b32 s{S_T}, s{S_T}, 8
s_mul_i32 s{S_T2}, s{S_H}, 9216
s_add_u32 s{S_T}, s{S_T}, s{S_T2}
v_add_u32 v{V_AST}, s{S_T}, v{V_AST}""")
    nearmap_v(a, V_AST, V_T)
    a(f"""s_add_u32 s{S_T}, s{S_T2}, {w*2048}
v_add_u32 v{V_APO}, s{S_T}, v{V_L16}
v_add_u32 v{V_APO+1}, 1024, v{V_APO}
v_add_u32 v{V_APL}, {L_QKV + w*2048}, v{V_L16}""")
    nearmap_v(a, V_APO, V_T); nearmap_v(a, V_APO+1, V_T)
    a(f"""v_lshlrev_b32 v{V_RQ}, 2, v{V_G}
v_bfe_u32 v{V_T}, v{V_LANE}, 2, 2
v_add_u32 v{V_RQ}, v{V_RQ}, v{V_T}
v_lshlrev_b32 v{V_RQ}, 4, v{V_RQ}
v_and_b32 v{V_T}, 1, v{V_LANE}
v_lshlrev_b32 v{V_T}, 3, v{V_T}
v_add_u32 v{V_RQ}, v{V_RQ}, v{V_T}
v_add_u32 v{V_RQ}, {L_QKV}, v{V_RQ}""")
    a(f"""v_bfe_u32 v{V_RV}, v{V_LANE}, 5, 1
v_lshlrev_b32 v{V_RV}, 5, v{V_RV}
v_bfe_u32 v{V_T}, v{V_LANE}, 4, 1
v_lshlrev_b32 v{V_T}, 3, v{V_T}
v_add_u32 v{V_RV}, v{V_RV}, v{V_T}
v_bfe_u32 v{V_T}, v{V_LANE}, 2, 1
v_add_u32 v{V_RV}, v{V_RV}, v{V_T}
v_bfe_u32 v{V_T}, v{V_LANE}, 3, 1
v_lshlrev_b32 v{V_T}, 4, v{V_T}
v_add_u32 v{V_RV}, v{V_RV}, v{V_T}
v_bfe_u32 v{V_T}, v{V_LANE}, 1, 1
v_lshlrev_b32 v{V_T}, 1, v{V_T}
v_add_u32 v{V_RV}, v{V_RV}, v{V_T}
v_lshlrev_b32 v{V_RV}, 4, v{V_RV}
v_and_b32 v{V_T}, 1, v{V_LANE}
v_lshlrev_b32 v{V_T}, 3, v{V_T}
v_add_u32 v{V_RV}, v{V_RV}, v{V_T}
v_add_u32 v{V_RV}, {L_QKV+6144}, v{V_RV}""")
    rs_lane(a, V_RSO)
    rs_local_lane(a, V_RSOL)
    for P in range(nt//2):
        a(f"""s_lshr_b32 s{76+P}, s{S_J}, 5
s_mul_i32 s{76+P}, s{76+P}, 81920
s_mul_i32 s{S_T}, s{S_C}, {5*4096}
s_add_u32 s{76+P}, s{76+P}, s{S_T}
s_add_u32 s{76+P}, s{76+P}, {(P0[w]+P)*4096}""")
        smap(a, 76+P, S_T)
    a(f"""s_mul_i32 s{S_RSB}, s{S_C}, {5*32768}
s_add_u32 s{S_RSB}, s{S_RSB}, {nearmap(RS_LOG) + P0[w]*32768}
s_mul_i32 s{S_T}, s{S_H}, 12288
s_add_u32 s{S_KVG}, s{S_T}, {(KX + w*6144) if OPT('UXRD', 0) else (KX if w == 0 else VX)}
s_mul_i32 s{S_T}, s{S_H}, 40
s_mul_i32 s{S_T2}, s{S_C}, 10
s_add_u32 s{S_T}, s{S_T}, s{S_T2}
s_add_u32 s{S_T}, s{S_T}, {T0[w]}
s_lshl_b32 s{S_UXG}, s{S_T}, 10
s_add_u32 s{S_UXG}, s{S_UXG}, {UX}
s_lshl_b32 s{S_UYG}, s{S_T}, 8
s_add_u32 s{S_UYG}, s{S_UYG}, {UY}
s_mul_i32 s{S_KMG}, s{S_H}, 3072
s_add_u32 s{S_KMG}, s{S_KMG}, {KM}
s_mov_b32 s{S_KVL}, {L_KV}
s_mov_b32 s{S_KVR}, {L_KV}
s_lshl_b32 s{S_FLG}, s{S_J}, 7
s_add_u32 s{S_FLG}, s{S_FLG}, {F_REC}""")
    if w == 2:
        a(f"""s_and_b32 s{S_COL}, s{S_J}, 31
s_cmp_lt_u32 s{S_COL}, 16
s_cselect_b32 s{S_RED}, 1, 0
s_add_u32 s{S_COL}, s{S_COL}, 64""")
        blk_off(a, S_COL, S_RSP, S_T)
        loc_off(a, S_COL, 72, S_T)
        a(f"""s_lshr_b32 s{S_T}, s{S_J}, 5
s_mul_i32 s{S_T}, s{S_T}, 10240
s_add_u32 s{S_T}, s{S_T}, {AG_LOG}
s_lshl_b32 s{S_T3}, s{S_COL}, 7
s_add_u32 s{S_T}, s{S_T}, s{S_T3}
v_add_u32 v{V_AGS}, s{S_T}, v{V_L16}""")
        nearmap_v(a, V_AGS, V_T)
        oob_mask(a, V_AGS, 8)
        sel_setup(a, 240)
    if flags:
        a(f"""s_mul_i32 s{S_T}, s{S_H}, 6
s_lshr_b32 s{S_T2}, s{S_T}, 3
s_add_u32 s{S_T}, s{S_T}, 5
s_lshr_b32 s{S_T}, s{S_T}, 3
v_mov_b32 v{V_KVA}, s{S_T}
v_mov_b32 v{V_T}, s{S_T2}
v_and_b32 v{V_T2}, 1, v{V_LANE}
v_cmp_eq_u32 vcc, 0, v{V_T2}
v_cndmask_b32 v{V_KVA}, v{V_KVA}, v{V_T}, vcc
v_cmp_lt_u32 vcc, 1, v{V_LANE}
v_mov_b32 v{V_T}, {R_V0 if not OPT('UXRD', 0) else 0}
v_cndmask_b32 v{V_T}, 0, v{V_T}, vcc
v_add_u32 v{V_KVA}, v{V_KVA}, v{V_T}
v_lshlrev_b32 v{V_KVA}, {PSH}, v{V_KVA}
v_add_u32 v{V_KVA}, {F_PROG}, v{V_KVA}
s_mov_b32 s{S_KVT}, 0
s_mov_b32 s22, 0
s_add_u32 s{S_T}, s{S_H}, {R_U0}
s_lshl_b32 s{S_T}, s{S_T}, {PSH}
s_add_u32 s{S_T}, s{S_T}, {F_PROG}
v_mov_b32 v{V_UXA}, s{S_T}""")
    if flags and w == 0: trace(a, 1, S_J)
    read_polarity(a, pfx)
    if flags and w == 0: trace(a, 2, S_J)
    a("s_barrier")
    mem0_stage(a, w)
    a(f"s_mov_b32 s{S_UXT}, 0\ns_mov_b32 s{S_UXC}, 0")
    kv_dma(a, flags, pfx, w)
    if flags and w == 0: trace(a, 3, S_J)
    a("s_waitcnt vmcnt(0) lgkmcnt(0)")
    a("s_barrier")
    idle_phase(a, w, woq)
    if flags and w == 0:
        dbgt(a, 40, op="max")
        trace(a, 4, S_J)
        if int(os.environ.get('TRACE', 0)):
            a("s_memtime s[86:87]\ns_waitcnt lgkmcnt(0)")
            trace(a, 6, S_J, val=86)
    stamp(a, 0)
    if OPT('STAMP', 0): a(f"s_waitcnt lgkmcnt(0)\ns_sub_u32 s101, s{S_TS}, s100")
    pfx0 = pfx
    a(f"s_cmp_eq_u32 s{S_MODE}, 0")
    a(f"s_cbranch_scc1 {pfx0}S_B0")
    a(f"s_branch {pfx0}F_B0")
    for mode in (1, 0):
        CURMODE[0] = mode
        pfx = pfx0 + ("F" if mode else "S")
        main_loop(a, w, flags, pfx, nt, w8, woq)
    CURMODE[0] = None

def main_loop(a, w, flags, pfx, nt, w8, woq):
    wo8 = lambda t, K: ar((40 + t*6 + 2*K)*4, 8)
    a.label(f"{pfx}_LOOP")
    stamp(a, 0)
    if w == 2: ag_poll(a, pfx, w)
    a.label(f"{pfx}_B0")
    a("s_waitcnt lgkmcnt(0)")
    a("s_barrier")
    mark(a, S_REF0)
    stamp(a, 1)
    if OPT('STEPTR', 0) and w == 1:
        a("s_waitcnt lgkmcnt(0)")
        a(f"v_mov_b32 v250, s{S_REF0}")
        a(f"s_lshl_b32 s86, s{S_J}, 8")
        a(f"s_lshl_b32 s87, s{S_STEP}, 2")
        a(f"s_add_u32 s86, s86, s87")
        a(f"s_add_u32 s86, s86, {TRACE + 65536}")
        a("v_mov_b32 v251, s86")
        a("s_mov_b64 exec, 1")
        a(f"buffer_store_dword v250, v251, s[{S_WS}:{S_WS+3}], 0 offen")
        a("s_mov_b64 exec, -1")
    proj_stage(a, 2, w8)
    for x in pack_pair(V_ACC, V_ACC+4, V_PK): a(x)
    store_mode(a, [f"buffer_store_dwordx2 {vr(V_PK,2)}, v{V_AST}, s[{S_WS}:{S_WS+3}], s{S_CUR} offen SCX"])
    stamp(a, 2)
    if w < 2 or OPT('UXRD', 0):
        a(f"s_cmp_lg_u32 s{S_STEP}, 0")
        a(f"s_cbranch_scc1 {pfx}_NOS1")
        if w < 2: kv_dma(a, flags, pfx, w)
        if OPT('UXRD', 0): ux_load(a, w, flags, pfx)
        a.label(f"{pfx}_NOS1")
    for t in range(nt):
        for r in range(4): a(f"v_mov_b32 v{V_Y+4*t+r}, 0")
    wait_mode(a, S_REF0, OPT('T_AF', 0), OPT('T_A', 1150))
    def mkA(b): return [f"buffer_load_dwordx4 {vr(b+4*k)}, v{V_APO+k}, s[{S_WS}:{S_WS+3}], s{S_CUR} offen sc1" for k in range(2)]
    def stA(b):
        a(f"ds_write_b128 v{V_APL}, {vr(b)}")
        a(f"ds_write_b128 v{V_APL}, {vr(b+4)} offset:1024")
    if CURMODE[0] and OPT('POLL2', 0):
        poll2(a, f"{pfx}_AP", mkA, 8, V_POLL, V_POLL+8, 93, stA, gap=OPT('GAPA', 2))
    else:
        if OPT('SPEC', 0): poll_loop(a, f"{pfx}_AP", mkA(V_POLL), 8, 93, spec=lambda: stA(V_POLL))
        else:
            poll_loop(a, f"{pfx}_AP", mkA(V_POLL), 8, 93)
            stA(V_POLL)
    a("s_waitcnt lgkmcnt(0)")
    stamp(a, 3)
    a("s_barrier")
    stamp(a, 4)
    reads = []
    for p in range(6):
        for (reg, typ) in ((V_QF, 0), (V_KF, 1)):
            for k in range(2):
                reads.append(f"ds_read_b64_tr_b16 {vr(reg+4*p+2*k,2)}, v{V_RQ} offset:{typ*3072 + (2*p+k)*256}")
    vreads = [f"ds_read_b64_tr_b16 {vr(V_VF+4*K+2*k,2)}, v{V_RV} offset:{K*1024 + k*64}" for K in range(3) for k in range(2)]
    TWOB = OPT('TWOB', 1)
    if not TWOB: reads += vreads
    issued = 0
    def iss(n):
        nonlocal issued
        for _ in range(n):
            if issued < len(reads): a(reads[issued]); issued += 1
    iss(12)
    for p in range(6):
        a(f"s_waitcnt lgkmcnt({issued - (4*p+4)})")
        for u, A_ in enumerate((vr(V_KXF+4*p), vr(V_KXF+4*(6+p)), vr(V_KF+4*p))):
            d = V_S + (4 if u == 0 else 8 if u == 1 else 0)
            c = "0" if p == 0 else vr(d)
            a(f"v_mfma_f32_16x16x32_bf16 {vr(d)}, {A_}, {vr(V_QF+4*p)}, {c}")
        iss(4)
    if TWOB:
        a("s_barrier")
        if w == 2 or OPT('T_DMA', 0) > 0: mark(a, 96)
        for x in vreads: a(x)
    stamp(a, 5)
    ym = []
    for K in range(3):
        for t in range(nt):
            pre = f"s_waitcnt lgkmcnt({6 - (2*K + 2)})\n" if t == 0 else ""
            ym.append(pre + f"v_smfmac_f32_16x16x64_bf16 {vr(V_Y+4*t)}, {vr(V_VF+4*K)}, {wo8(t,K)}, v{V_IDX}")
    PT, PM, RS_, L1, L2 = softmax_lists()
    yc = [f"v_cvt_pk_bf16_f32 v{V_YF+2*t+k}, v{V_Y+4*t+2*k}, v{V_Y+4*t+2*k+1}" for t in range(nt) for k in range(2)]
    Y0 = OPT('Y0', 2)
    for i, x in enumerate(L1):
        if ym and i >= Y0: a(ym.pop(0))
        a(x)
    while ym: a(ym.pop(0))
    for t in range(nt):
        a(f"v_mfma_f32_16x16x32_bf16 {vr(V_PU+4*t)}, {vr(V_UXF+4*t)}, {vr(PT)}, 0")
        for _ in range(2):
            if yc: a(yc.pop(0))
    for t in range(nt):
        a(f"v_mfma_f32_16x16x16_bf16 {vr(V_PU+4*t)}, {vr(V_YF+2*t,2)}, {vr(PM,2)}, {vr(V_PU+4*t)}")
        for _ in range(4):
            if L2: a(L2.pop(0))
    while L2: a(L2.pop(0))
    a(f"v_mov_b32 v{RS_+1}, v{RS_}")
    for t in range(nt):
        for r in range(0, 4, 2): a(f"v_pk_mul_f32 {vr(V_PU+4*t+r,2)}, {vr(V_PU+4*t+r,2)}, {vr(RS_,2)}")
    for t in range(nt):
        a(f"v_cvt_pk_bf16_f32 v{V_RSP+2*t}, v{V_PU+4*t}, v{V_PU+4*t+1}")
        a(f"v_cvt_pk_bf16_f32 v{V_RSP+2*t+1}, v{V_PU+4*t+2}, v{V_PU+4*t+3}")
    a(f"s_add_u32 s{S_T}, s{S_CUR}, s{S_RSB}")
    a(f"s_mov_b64 exec, s[{S_M8}:{S_M8+1}]")
    for P in range(nt//2):
        if P > 0: a(f"s_add_u32 s{S_T}, s{S_T}, 32768")
        a(f"buffer_store_dwordx4 {vr(V_RSP+4*P)}, v{V_RSO}, s[{S_WS}:{S_WS+3}], s{S_T} offen sc1")
    if CURMODE[0] and RSLOC():
        a(f"s_xor_b32 s74, s{S_CUR}, 8192")
        for P in range(nt//2):
            a(f"s_add_u32 s{S_T}, s{76+P}, s74")
            a(f"buffer_store_dwordx4 {vr(V_RSP+4*P)}, v{V_RSOL}, s[{S_WS}:{S_WS+3}], s{S_T} offen")
    stamp(a, 6)
    a("s_mov_b64 exec, -1")
    LATEDMA = OPT('T_DMA', 0) > 0
    if (w < 2 or OPT('UXRD', 0)) and not OPT('NODMA', 0) and not LATEDMA:
        a(f"s_cmp_eq_u32 s{S_STEP}, 63")
        a(f"s_cbranch_scc1 {pfx}_NODMA")
        if OPT('UXRD', 0): ux_load(a, w, flags, pfx)
        if w < 2: kv_dma(a, flags, pfx, w)
        a.label(f"{pfx}_NODMA")
    a(f"s_mov_b64 exec, s[{S_M8}:{S_M8+1}]")
    a(f"s_cmp_lg_u32 s{S_C}, 0")
    a(f"s_cbranch_scc1 {pfx}_NOKM")
    for k in range(2 if not OPT('NOKM', 0) else 0):
        a(f"buffer_store_dwordx4 {vr(V_KF+4*(2*w+k))}, v{V_KMS}, s[{S_WS}:{S_WS+3}], s{S_KMG} offen offset:{k*512} sc1")
    a.label(f"{pfx}_NOKM")
    a("s_mov_b64 exec, -1")
    a(f"s_add_u32 s{S_KMG}, s{S_KMG}, {32*3072}")
    for t in range(nt):
        for r in range(4): a(f"v_mov_b32 v{V_PU+r}, v{V_Y+4*t+r}")
        for r in range(4): a(f"v_permlane32_swap_b32 v{V_Y+4*t+r}, v{V_PU+r}")
        for r in range(4): a(f"v_add_f32 v{V_Y+4*t+r}, v{V_Y+4*t+r}, v{V_PU+r}")
        a(f"v_cvt_pk_bf16_f32 v{V_YF+2*t}, v{V_Y+4*t}, v{V_Y+4*t+1}")
        a(f"v_cvt_pk_bf16_f32 v{V_YF+2*t+1}, v{V_Y+4*t+2}, v{V_Y+4*t+3}")
    a("s_mov_b32 exec_hi, 0")
    for t in range(nt if not OPT('NOUY', 0) else 0):
        a(f"buffer_store_dwordx2 {vr(V_YF+2*t,2)}, v{V_L4}, s[{S_WS}:{S_WS+3}], s{S_UYG} offen offset:{t*256} sc1")
    a("s_mov_b64 exec, -1")
    a(f"s_add_u32 s{S_UYG}, s{S_UYG}, {32*40*256}")
    if w == OPT('FLGW', 1) and not OPT('NOFLG', 0):
        a(f"v_mov_b32 v{V_T}, s{S_STEP}")
        a("s_mov_b64 exec, 1")
        a(f"buffer_store_dword v{V_T}, v{V_ZERO}, s[{S_WS}:{S_WS+3}], s{S_FLG} offen sc1")
        a(f"s_cmp_lg_u32 s{S_J}, 0")
        a(f"s_cbranch_scc1 {pfx}_NOPROG")
        a(f"s_mov_b32 s{S_T}, {F_RPROG}")
        a(f"buffer_store_dword v{V_T}, v{V_ZERO}, s[{S_WS}:{S_WS+3}], s{S_T} offen sc1")
        a.label(f"{pfx}_NOPROG")
        a("s_mov_b64 exec, -1")
    a(f"s_add_u32 s{S_STEP}, s{S_STEP}, 1")
    a(f"s_cmp_ge_u32 s{S_STEP}, 64")
    a(f"s_cbranch_scc1 {pfx}_DONE")
    stamp(a, 7)
    idle_phase(a, w, woq)
    if w < 2 and LATEDMA:
        wait_until(a, 96, OPT('T_DMA', 0))
        kv_dma(a, flags, pfx, w)
    if w == 2:
        a(f"s_cmp_eq_u32 s{S_RED}, 0")
        a(f"s_cbranch_scc1 {pfx}_NORED")
        wait_until(a, 96, OPT('T_RS', 1150))
        a(f"s_add_u32 s{S_T2}, s{S_CUR}, s{S_RSP}")
        reduce_blocks(a, pfx, 1, 240, 48, (S_T2,), V_AGS, 64, 80, s_loc0=(72,), s_loc=(74,), sqbase=64)
        a.label(f"{pfx}_NORED")
    rotate_slots(a)
    stamp_acc(a)
    if w == 2: mark(a, S_REF2)
    a(f"s_branch {pfx}_LOOP")
    a.label(f"{pfx}_DONE")
    a("s_waitcnt vmcnt(0)")
    a("s_barrier")
    if flags and w == 0:
        dbgt(a, 44, op="max")
        trace(a, 5, S_J)
        if int(os.environ.get('TRACE', 0)):
            a("s_memtime s[86:87]\ns_waitcnt lgkmcnt(0)")
            trace(a, 7, S_J, val=86)
    if w == OPT('FLGW', 1):
        a(f"v_mov_b32 v{V_T}, 64")
        a("s_mov_b64 exec, 1")
        a(f"buffer_store_dword v{V_T}, v{V_ZERO}, s[{S_WS}:{S_WS+3}], s{S_FLG} offen sc1")
        a(f"s_cmp_lg_u32 s{S_J}, 0")
        a(f"s_cbranch_scc1 {pfx}_NOPROG2")
        a(f"s_mov_b32 s{S_T}, {F_RPROG}")
        a(f"buffer_store_dword v{V_T}, v{V_ZERO}, s[{S_WS}:{S_WS+3}], s{S_T} offen sc1")
        a.label(f"{pfx}_NOPROG2")
        a("s_waitcnt vmcnt(0)")
        a("s_mov_b64 exec, -1")
    stamp_out(a, w)
    a("s_endpgm")

def stamp_acc(a):
    if not OPT('STAMP', 0): return
    a(f"s_memtime s[{S_TS+16}:{S_TS+17}]")
    a("s_waitcnt lgkmcnt(0)")
    for k in range(8):
        a(f"s_sub_u32 s{S_T}, s{S_TS+2*k+2}, s{S_TS+2*k}")
        a(f"s_add_u32 s{80+k}, s{80+k}, s{S_T}")

def stamp_out(a, w):
    if not OPT('STAMP', 0): return
    a.uid += 1
    L = f"STO_{w}_{a.uid}"
    a(f"""s_cmp_lg_u32 s{S_J}, {OPT('STAMPROLE', 0)}
s_cbranch_scc1 {L}
s_waitcnt lgkmcnt(0)
s_load_dwordx2 s[96:97], s[0:1], {KA['dbg']}
s_waitcnt lgkmcnt(0)
s_mov_b64 exec, 1""")
    for k in range(8):
        a(f"v_mov_b32 v10, s{80+k}\nv_mov_b32 v11, {64 + w*48 + k*4}\nglobal_store_dword v11, v10, s[96:97]\ns_waitcnt vmcnt(0)")
    if w == 0:
        a(f"v_mov_b32 v10, s95\nv_mov_b32 v11, 40\nglobal_store_dword v11, v10, s[96:97]\ns_waitcnt vmcnt(0)")
        a(f"v_mov_b32 v10, s101\nv_mov_b32 v11, 44\nglobal_store_dword v11, v10, s[96:97]\ns_waitcnt vmcnt(0)")
    for k in range(3):
        a(f"v_mov_b32 v10, s{92+k}\nv_mov_b32 v11, {64 + w*48 + 32 + k*4}\nglobal_store_dword v11, v10, s[96:97]\ns_waitcnt vmcnt(0)")
    a.label(L)

def common_setup(a, w):
    a(f"""v_lshlrev_b32 v{V_L16}, 4, v{V_LANE}
v_lshlrev_b32 v{V_L4}, 3, v{V_LANE}
v_mov_b32 v{V_ZERO}, 0
s_mov_b32 s{S_M8}, 0x00ff00ff
s_mov_b32 s{S_M8+1}, 0x00ff00ff
s_mov_b32 s{S_H8}, 0xff00ff00
s_mov_b32 s{S_H8+1}, 0xff00ff00
s_mov_b32 s{S_HI32}, 0
s_mov_b32 s{S_HI32+1}, -1
v_mov_b32 v{V_NINF}, 0xff800000
s_mov_b32 s{S_MQ}, 0x0000ffff
s_mov_b32 s{S_MQ+1}, 0x0000ffff
v_mov_b32 v{V_IDX}, 0x44444444
v_mov_b32 v{V_T}, 0xeeeeeeee
v_cndmask_b32 v{V_IDX}, v{V_IDX}, v{V_T}, s[{S_H8}:{S_H8+1}]
s_mov_b32 s{S_SCALE}, 0x{f2u(192**-0.5*1.4426950408889634):08x}
s_mov_b32 s{S_MAXR}, {OPT('MAXRETRY', 400000)}
s_mov_b32 s{S_STEP}, 0""")
    for k in range(8): a(f"s_mov_b32 s{80+k}, 0")
    for k in range(92, 95): a(f"s_mov_b32 s{k}, 0")
    if w >= 2:
        a(f"s_lshr_b32 s{S_T}, s{S_J}, 5")
        a(f"s_mul_i32 s{S_T}, s{S_T}, 10240")
        a(f"s_add_u32 s{S_T}, s{S_T}, {AG_LOG + (w-2)*5120}")
        for k in range(5):
            a(f"v_add_u32 v{V_AGP+k}, s{S_T}, v{V_L16}")
            if k: a(f"v_add_u32 v{V_AGP+k}, {k*1024}, v{V_AGP+k}")
            nearmap_v(a, V_AGP+k, V_T2)
    a(f"v_add_u32 v{V_AGL}, {L_MEM + w*2560}, v{V_L16}")

V_M0 = 200
def mem0_stage(a, w):
    a(f"ds_write_b128 v{V_AGL}, {vr(V_M0)}")
    a(f"ds_write_b128 v{V_AGL}, {vr(V_M0+4)} offset:1024")
    a("s_mov_b32 exec_hi, 0")
    a(f"ds_write_b128 v{V_AGL}, {vr(V_M0+8)} offset:2048")
    a("s_mov_b64 exec, -1")

def mem0_load(a, w):
    for k in range(3):
        a(f"""v_add_u32 v{V_T}, {160*w + 64*k}, v{V_LANE}
v_and_b32 v{V_T2}, 7, v{V_T}
v_mul_u32_u24 v{V_T2}, 1280, v{V_T2}
v_lshrrev_b32 v{V_M0+12}, 5, v{V_T}
v_lshlrev_b32 v{V_M0+12}, 6, v{V_M0+12}
v_add_u32 v{V_T2}, v{V_T2}, v{V_M0+12}
v_bfe_u32 v{V_T}, v{V_T}, 3, 2
v_lshlrev_b32 v{V_T}, 3, v{V_T}
v_add_u32 v{V_T}, v{V_T}, v{V_T2}""")
        a(f"buffer_load_dwordx2 {vr(V_M0+4*k,2)}, v{V_T}, s[{S_M0}:{S_M0+3}], 0 offen")
        a(f"buffer_load_dwordx2 {vr(V_M0+4*k+2,2)}, v{V_T}, s[{S_M0}:{S_M0+3}], 0 offen offset:32")

def service_wave(a):
    w = 3; pfx = "RS3"
    wreg = WReg(0, 256, 0)
    mem0_load(a, w)
    a(f"s_lshl_b32 s{S_LB}, s{S_WAVE}, 15")
    if OPT('COOP', 1):
        coop_load(a, w, wreg)
    else:
        a(f"""s_mul_i32 s{S_COL}, s{S_H}, 384
s_mul_i32 s{S_T}, s{S_C}, 96
s_add_u32 s{S_COL}, s{S_COL}, s{S_T}""")
        units = [(S_WV, S_COL, t*32 + p*32*H*E*2) for p in range(20) for t in range(3)]
        load_w2(a, units, lambda u, T, k: wreg.pair((u % 3)*20 + u // 3, k), 1, H*E*2, 2, V_LANE, V_POLL, V_POLL+1, V_T, S_T, S_LB)
    common_setup(a, w)
    PQ = V_KXF; PV_ = V_KXF+2; R = V_KXF+6; SEL = V_KXF+8; ONES = V_KXF+12; AGZ = V_KXF+7; RSO2 = V_KXF+5
    a(f"""v_lshrrev_b32 v{V_AST}, 1, v{V_G}
v_lshlrev_b32 v{V_AST}, 8, v{V_AST}
v_lshlrev_b32 v{V_T}, 4, v{V_N}
v_add_u32 v{V_AST}, v{V_AST}, v{V_T}
v_and_b32 v{V_T}, 1, v{V_G}
v_lshlrev_b32 v{V_T}, 3, v{V_T}
v_add_u32 v{V_AST}, v{V_AST}, v{V_T}
v_lshlrev_b32 v{V_AST+1}, 4, v{V_N}
v_add_u32 v{V_AST+1}, v{V_AST+1}, v{V_T}
s_mul_i32 s{S_T2}, s{S_H}, 9216
s_mul_i32 s{S_T}, s{S_C}, 768
s_add_u32 s{S_T}, s{S_T}, s{S_T2}
v_add_u32 v{PQ}, s{S_T}, v{V_L16}
v_add_u32 v{PQ+1}, 3072, v{PQ}
v_add_u32 v{PV_}, 6144, v{PQ}
s_add_u32 s{S_T}, s{S_T}, 6144
v_add_u32 v{V_AST}, s{S_T}, v{V_AST}
v_add_u32 v{V_AST+1}, s{S_T}, v{V_AST+1}
v_add_u32 v{V_AST+1}, 512, v{V_AST+1}""")
    for r in (V_AST, V_AST+1, PV_, PQ, PQ+1): nearmap_v(a, r, V_T)
    oob_mask(a, PV_, 48); oob_mask(a, PQ+1, 48); oob_mask(a, PQ, 48); oob_mask(a, V_AST+1, 32)
    for k in range(3):
        a(f"v_add_u32 v{V_APO+k}, s{S_T2}, v{V_L16}")
        a(f"v_add_u32 v{V_APO+k}, {6144 + k*1024}, v{V_APO+k}")
        nearmap_v(a, V_APO+k, V_T)
    a(f"v_add_u32 v{V_APL}, {L_QKV + 6144}, v{V_L16}")
    rs_lane(a, R)
    a(f"""s_mul_i32 s{S_RSB}, s{S_C}, {5*32768}
s_add_u32 s{S_RSB}, s{S_RSB}, {nearmap(RS_LOG)}
s_and_b32 s{S_COL}, s{S_J}, 31""")
    blk_off(a, S_COL, S_RSP, S_T)
    loc_off(a, S_COL, 72, S_T)
    a(f"s_add_u32 s{S_COL}, s{S_COL}, 32")
    blk_off(a, S_COL, S_RED, S_T)
    loc_off(a, S_COL, 73, S_T)
    rs_local_lane(a, V_RSOL)
    a(f"""s_lshr_b32 s77, s{S_J}, 5
s_mul_i32 s77, s77, 81920
s_mul_i32 s{S_T}, s{S_C}, {5*4096}
s_add_u32 s77, s77, s{S_T}""")
    a(f"""s_lshr_b32 s{S_T}, s{S_J}, 5
s_mul_i32 s{S_T}, s{S_T}, 10240
s_add_u32 s{S_T}, s{S_T}, {AG_LOG}
s_and_b32 s{S_T2}, s{S_J}, 31
s_lshl_b32 s{S_T3}, s{S_T2}, 7
s_add_u32 s{S_T}, s{S_T}, s{S_T3}
v_lshrrev_b32 v{V_AGS}, 3, v{V_LANE}
v_lshlrev_b32 v{V_AGS}, 12, v{V_AGS}
v_and_b32 v{V_T}, 7, v{V_LANE}
v_lshlrev_b32 v{V_T}, 4, v{V_T}
v_add_u32 v{V_AGS}, v{V_AGS}, v{V_T}
v_add_u32 v{V_AGS}, s{S_T}, v{V_AGS}""")
    nearmap_v(a, V_AGS, V_T)
    a(f"v_mov_b32 v{AGZ}, v{V_AGS}")
    a(f"""v_bfe_u32 v{V_AGS}, v{V_LANE}, 3, 1
v_lshlrev_b32 v{V_AGS}, 12, v{V_AGS}
v_and_b32 v{V_T}, 7, v{V_LANE}
v_lshlrev_b32 v{V_T}, 4, v{V_T}
v_add_u32 v{V_AGS}, v{V_AGS}, v{V_T}
v_lshlrev_b32 v{V_T}, 3, v{V_G}
v_add_u32 v{V_AGS}, v{V_AGS}, v{V_T}
s_lshr_b32 s{S_T}, s{S_J}, 5
s_mul_i32 s{S_T}, s{S_T}, 10240
s_add_u32 s{S_T}, s{S_T}, {AG_LOG}
s_add_u32 s{S_T}, s{S_T}, s{S_T3}
v_add_u32 v{V_AGS}, s{S_T}, v{V_AGS}""")
    nearmap_v(a, V_AGS, V_T)
    oob_mask(a, V_AGS, 32)
    a(f"""v_mov_b32 v{RSO2}, s{S_RSP}
v_mov_b32 v{V_T}, s{S_RED}
v_cndmask_b32 v{RSO2}, v{RSO2}, v{V_T}, s[{S_H8}:{S_H8+1}]
v_lshlrev_b32 v{V_T}, 7, v{V_G}
v_add_u32 v{RSO2}, v{RSO2}, v{V_T}
v_and_b32 v{V_T}, 7, v{V_LANE}
v_lshlrev_b32 v{V_T}, 4, v{V_T}
v_add_u32 v{RSO2}, v{RSO2}, v{V_T}""")
    a(f"s_cmp_lt_u32 s{S_T2}, 16")
    a(f"s_cselect_b32 s{S_T}, 24, 16")
    a(f"v_mov_b32 v{V_T}, 0x80000000")
    a(f"v_cmp_gt_u32 vcc, s{S_T}, v{V_LANE}")
    a(f"v_cndmask_b32 v{AGZ}, v{V_T}, v{AGZ}, vcc")
    sel_setup(a, SEL)
    for k in range(4): a(f"v_mov_b32 v{ONES+k}, -1")
    a(f"v_mov_b32 v{ONES+4}, 1")
    read_polarity(a, pfx)
    a("s_barrier")
    mem0_stage(a, w)
    a("s_waitcnt vmcnt(0) lgkmcnt(0)")
    a("s_barrier")
    stamp(a, 0)
    pfx0 = pfx
    a(f"s_cmp_eq_u32 s{S_MODE}, 0")
    a(f"s_cbranch_scc1 {pfx0}S_B0")
    a(f"s_branch {pfx0}F_B0")
    for mode in (1, 0):
        CURMODE[0] = mode
        pfx = pfx0 + ("F" if mode else "S")
        service_loop(a, pfx, PQ, PV_, R, SEL, ONES, AGZ, RSO2)
    CURMODE[0] = None

def service_loop(a, pfx, PQ, PV_, R, SEL, ONES, AGZ, RSO2):
    a.label(f"{pfx}_LOOP")
    stamp(a, 0)
    ag_poll(a, pfx, 3)
    a.label(f"{pfx}_B0")
    a("s_waitcnt lgkmcnt(0)")
    a("s_barrier")
    mark(a, S_REF0)
    stamp(a, 1)
    SP = 140
    w8s = lambda t, K: ar((t*20 + 2*K)*4, 8)
    for K in range(10):
        a(f"ds_read_b128 {vr(V_RING+4*K)}, v{V_L16} offset:{L_MEM + K*1024}")
    for r in range(12): a(f"v_mov_b32 v{V_ACC+r}, 0")
    for K in range(10):
        a(f"s_waitcnt lgkmcnt({9-K})")
        for t in range(2):
            a(f"v_smfmac_f32_16x16x64_bf16 {vr(V_ACC+4*t)}, {vr(V_RING+4*K)}, {w8s(t,K)}, v{V_IDX}")
    P01 = pack_pair(V_ACC, V_ACC+4, SP)
    for K in range(10):
        a(f"v_smfmac_f32_16x16x64_bf16 {vr(V_ACC+8)}, {vr(V_RING+4*K)}, {w8s(2,K)}, v{V_IDX}")
        if K >= 2 and P01: a(P01.pop(0))
        if K >= 6 and P01: a(P01.pop(0))
    while P01: a(P01.pop(0))
    store_mode(a, [f"buffer_store_dwordx2 {vr(SP,2)}, v{V_AST}, s[{S_WS}:{S_WS+3}], s{S_CUR} offen SCX"])
    for r in range(4): a(f"v_mov_b32 v{SP+8+r}, v{V_ACC+8+r}")
    for x in pack_pair(V_ACC+8, SP+8, SP+4): a(x)
    store_mode(a, [f"buffer_store_dwordx2 {vr(SP+4,2)}, v{V_AST+1}, s[{S_WS}:{S_WS+3}], s{S_CUR} offen SCX"])
    stamp(a, 2)
    wait_mode(a, S_REF0, OPT('T_VF', 1300), OPT('T_V', 1500))
    loads = [f"buffer_load_dwordx4 {vr(V_POLL+4*k)}, v{V_APO+k}, s[{S_WS}:{S_WS+3}], s{S_CUR} offen sc1" for k in range(3)]
    if OPT('TWOB', 1):
        for x in loads: a(x)
        stamp(a, 3)
        a("s_barrier")
        stamp(a, 4)
        def stV():
            for k in range(3):
                a(f"ds_write_b128 v{V_APL}, {vr(V_POLL+4*k)} offset:{k*1024}")
        if OPT('SPEC', 0): poll_loop(a, f"{pfx}_VP", loads, 12, 93, pre_issued=True, spec=stV)
        else:
            poll_loop(a, f"{pfx}_VP", loads, 12, 93, pre_issued=True)
            stV()
        a("s_waitcnt lgkmcnt(0)")
        a("s_barrier")
        mark(a, 96)
        stamp(a, 5)
    else:
        poll_loop(a, f"{pfx}_VP", loads, 12, 93)
        for k in range(3):
            a(f"ds_write_b128 v{V_APL}, {vr(V_POLL+4*k)} offset:{k*1024}")
        a("s_waitcnt lgkmcnt(0)")
        stamp(a, 3)
        a("s_barrier")
        mark(a, 96)
        stamp(a, 4)
        stamp(a, 5)
    a(f"s_cmp_eq_u32 s{S_STEP}, 63")
    a(f"s_cbranch_scc1 {pfx}_DONE")
    store_mode(a, [f"buffer_store_dwordx4 {vr(ONES)}, v{r}, s[{S_WS}:{S_WS+3}], s{S_NN} offen SCX" for r in (PQ, PQ+1, PV_)])
    a(f"s_add_u32 s{S_T}, s{S_NN}, s{S_RSB}")
    a(f"s_mov_b64 exec, s[{S_M8}:{S_M8+1}]")
    for P in range(5):
        if P > 0: a(f"s_add_u32 s{S_T}, s{S_T}, 32768")
        a(f"buffer_store_dwordx4 {vr(ONES)}, v{R}, s[{S_WS}:{S_WS+3}], s{S_T} offen sc1")
    if CURMODE[0] and RSLOC():
        a(f"s_xor_b32 s74, s{S_NN}, 8192")
        for P in range(5):
            a(f"s_add_u32 s{S_T}, s77, {P*4096}")
            smap(a, S_T, S_T2)
            a(f"s_add_u32 s{S_T}, s{S_T}, s74")
            a(f"buffer_store_dwordx4 {vr(ONES)}, v{V_RSOL}, s[{S_WS}:{S_WS+3}], s{S_T} offen")
    a("s_mov_b64 exec, -1")
    store_mode(a, [f"buffer_store_dwordx4 {vr(ONES)}, v{AGZ}, s[{S_WS}:{S_WS+3}], s{S_NN} offen SCX"])
    stamp(a, 6)
    wait_until(a, 96, OPT('T_RS', 1150))
    if OPT('RED2', 1):
        reduce2(a, pfx, SEL, 32, RSO2, V_AGS, 64, 160)
    else:
        raise SystemExit("RED2=0 no longer supported")
    a(f"s_add_u32 s{S_STEP}, s{S_STEP}, 1")
    a(f"s_cmp_ge_u32 s{S_STEP}, 64")
    a(f"s_cbranch_scc1 {pfx}_DONE")
    rotate_slots(a)
    stamp_acc(a)
    mark(a, S_REF2)
    a(f"s_branch {pfx}_LOOP")
    a.label(f"{pfx}_DONE")
    a("s_waitcnt vmcnt(0)")
    a("s_barrier")
    stamp_out(a, 3)
    a("s_endpgm")

def rec_entry(a):
    a(f"""s_load_dwordx4 s[64:67], s[0:1], {KA['wq']}
s_load_dwordx4 s[68:71], s[0:1], {KA['wv']}
s_load_dwordx2 s[72:73], s[0:1], {KA['mem0']}
s_waitcnt lgkmcnt(0)""")
    srd(a, S_WQ, 64, D*H*E*2); srd(a, S_WK, 66, D*H*E*2); srd(a, S_WV, 68, D*H*E*2); srd(a, S_WO, 70, D*H*E*2)
    srd(a, S_M0, 72, M*D*2)
    a(f"s_lshr_b32 s{S_H}, s{S_J}, 2\ns_and_b32 s{S_C}, s{S_J}, 3")

def probe(a, s_k, s_xcc, lbl, s_dbg):
    a(f"""s_mov_b64 exec, 1
v_mov_b32 v10, -1
s_lshl_b32 s{S_T}, s{s_k}, 21
s_add_u32 s{S_T}, s{S_T}, {RING + PROBE_OFF}
v_mov_b32 v11, s{S_T}
v_add_u32 v13, 8192, v11
s_mov_b32 s{S_T2}, 0
s_mov_b32 s84, -1
s_mov_b32 s85, -1""")
    a.label(f"{lbl}_R")
    a(f"""buffer_store_dword v10, v11, s[{S_WS}:{S_WS+3}], 0 offen sc1
buffer_store_dword v10, v13, s[{S_WS}:{S_WS+3}], 0 offen sc1
s_waitcnt vmcnt(0)
s_sleep 6""")
    for hsel in range(2):
        a(f"""s_memtime s[80:81]
s_waitcnt lgkmcnt(0)
buffer_load_dword v12, v{11 if hsel == 0 else 13}, s[{S_WS}:{S_WS+3}], 0 offen sc1
s_waitcnt vmcnt(0)
s_memtime s[82:83]
s_waitcnt lgkmcnt(0)
s_sub_u32 s{86+hsel}, s82, s80""")
    a(f"""s_min_u32 s84, s84, s86
s_min_u32 s85, s85, s87
s_add_u32 s{S_T2}, s{S_T2}, 1
s_cmp_lt_u32 s{S_T2}, {OPT('PROBE_N', 7)}
s_cbranch_scc1 {lbl}_R
s_cmp_lt_u32 s85, s84
s_cselect_b32 s{S_T3}, 1, 0
s_lshr_b32 s{S_T}, s{s_xcc}, 2
s_xor_b32 s{S_T3}, s{S_T3}, s{S_T}
s_and_b32 s{S_T3}, s{S_T3}, 1
s_or_b32 s{S_T3}, s{S_T3}, 2
s_lshl_b32 s{S_T}, s{s_k}, 1
s_lshl_b32 s{S_T3}, s{S_T3}, s{S_T}
v_mov_b32 v10, s{S_T3}
v_mov_b32 v11, {DB_POL}
global_atomic_or v11, v10, s[{s_dbg}:{s_dbg+1}] sc1
s_waitcnt vmcnt(0)
s_mov_b64 exec, -1""")

def rec_dispatch(a, flags=False):
    a(f"""s_cmp_eq_u32 s{S_WAVE}, 0
s_cbranch_scc1 RK_W0
s_cmp_eq_u32 s{S_WAVE}, 1
s_cbranch_scc1 RK_W1
s_cmp_eq_u32 s{S_WAVE}, 2
s_cbranch_scc1 RK_W2
s_branch RK_W3""")
    for w in range(3):
        a.label(f"RK_W{w}")
        main_wave(a, w, flags)
    a.label("RK_W3")
    service_wave(a)

def gen_rec_kernel():
    a = Asm(); name = "rec_kernel"
    kernel_header(a, name)
    if OPT('STAMP', 0): a("s_memtime s[100:101]")
    a(f"""s_cmp_ge_u32 s2, 256
s_cbranch_scc1 RK_END
s_load_dwordx2 s[74:75], s[0:1], {KA['ws']}
s_load_dwordx2 s[76:77], s[0:1], {KA['dbg']}
s_getreg_b32 s78, hwreg(HW_REG_XCC_ID)
s_and_b32 s78, s78, 15
s_waitcnt lgkmcnt(0)""")
    srd(a, S_WS, 74, WS_SIZE)
    lane_setup(a, V_LANE, V_G, V_N, S_WAVE)
    a(f"""s_cmp_lg_u32 s{S_WAVE}, 0
s_cbranch_scc1 RK_NORANK
v_mov_b32 v10, 1
s_lshl_b32 s79, s78, 2
v_mov_b32 v11, s79
s_mov_b64 exec, 1
global_atomic_add v12, v11, v10, s[76:77] sc0 sc1
s_waitcnt vmcnt(0)
v_mov_b32 v11, 0
ds_write_b32 v11, v12
s_waitcnt lgkmcnt(0)
s_mov_b64 exec, -1""")
    a.label("RK_NORANK")
    a(f"""s_barrier
v_mov_b32 v11, 0
ds_read_b32 v12, v11
s_waitcnt lgkmcnt(0)
v_readfirstlane_b32 s79, v12
s_barrier
s_cmp_lt_u32 s78, 4
s_cbranch_scc1 RK_REC
s_cmp_lg_u32 s78, 4
s_cbranch_scc1 RK_END
s_cmp_ge_u32 s79, 4
s_cbranch_scc1 RK_END
s_cmp_lg_u32 s{S_WAVE}, 0
s_cbranch_scc1 RK_END""")
    probe(a, 79, 78, "RK_PR", 76)
    a("s_endpgm")
    a.label("RK_REC")
    a(f"""s_cmp_ge_u32 s79, 32
s_cbranch_scc1 RK_END
s_lshl_b32 s{S_J}, s78, 5
s_add_u32 s{S_J}, s{S_J}, s79""")
    rec_entry(a)
    rec_dispatch(a)
    a.label("RK_END")
    a("s_endpgm")
    return name, a.finalize(), kernel_desc(name, 512, 102, 256)

def read_polarity(a, pfx):
    a(f"s_load_dwordx2 s[96:97], s[0:1], {KA['dbg']}")
    a(f"v_and_b32 v{V_T2}, 15, v{V_LANE}")
    a(f"v_lshlrev_b32 v{V_T2}, 2, v{V_T2}")
    a(f"s_mov_b32 s{S_RETRY}, 0")
    a("s_waitcnt lgkmcnt(0)")
    a.label(f"{pfx}_MD")
    a(f"global_load_dword v{V_T}, v{V_T2}, s[96:97] sc1")
    a("s_waitcnt vmcnt(0)")
    a(f"s_mov_b32 s{S_T}, 0")
    a(f"s_mov_b32 s{S_MODE}, 1")
    for x in range(8):
        a(f"v_readlane_b32 s{S_T2}, v{V_T}, {x}")
        a(f"s_add_u32 s{S_T}, s{S_T}, s{S_T2}")
        a(f"s_cmp_eq_u32 s{S_T2}, 32")
        a(f"s_cselect_b32 s{S_MODE}, s{S_MODE}, 0")
    a(f"v_readlane_b32 s{S_T2}, v{V_T}, {DB_INIT//4}")
    a(f"v_readlane_b32 s{S_T3}, v{V_T}, {DB_POL//4}")
    a(f"s_cmp_ge_u32 s{S_T}, 256")
    a(f"s_cbranch_scc0 {pfx}_MDN")
    if INITWAIT[0]:
        a(f"s_cmp_ge_u32 s{S_T2}, 80")
        a(f"s_cbranch_scc0 {pfx}_MDN")
    a(f"s_and_b32 s{S_T}, s{S_T3}, 0xaa")
    a(f"s_cmp_eq_u32 s{S_T}, 0xaa")
    a(f"s_cbranch_scc1 {pfx}_POLOK")
    a.label(f"{pfx}_MDN")
    a(f"""s_sleep 4
s_add_u32 s{S_RETRY}, s{S_RETRY}, 1
s_cmp_lt_u32 s{S_RETRY}, 0x200000
s_cbranch_scc1 {pfx}_MD
s_mov_b32 s{S_MODE}, 0""")
    a.label(f"{pfx}_POLOK")
    if OPT('FORCESLOW', 0): a(f"s_mov_b32 s{S_MODE}, 0")
    a(f"""s_and_b32 s{S_T}, s{S_T3}, 0x55
s_xor_b32 s{S_T}, s{S_T}, 0x44
s_bcnt1_i32_b32 s{S_T2}, s{S_T}
s_cmp_ge_u32 s{S_T2}, 3
s_cselect_b32 s{S_T}, 0x55, s{S_T}
s_cmp_le_u32 s{S_T2}, 1
s_cselect_b32 s{S_T}, 0, s{S_T}
s_xor_b32 s{S_T3}, s{S_T}, 0x44""")
    if OPT('FLIPPOL', 0): a(f"s_xor_b32 s{S_T3}, s{S_T3}, 0x55")
    for k, s in enumerate((S_CUR, S_N, S_NN, S_P)):
        a(f"""s_bfe_u32 s{S_T}, s{S_T3}, {(1<<16) | (2*k)}
s_lshl_b32 s{S_T}, s{S_T}, 13
s_add_u32 s{s}, s{S_T}, {RING + k*RING_SLOT}""")
```

```python
from gen_common import *
import struct
def f2u(f): return struct.unpack('<I', struct.pack('<f', f))[0]

S_WS=4; S_W0=8; S_W1=12; S_X=16; S_WAVE=20; S_LB=21; S_COL=24; S_OUT=28; S_CNT=30; S_XG=31; S_WS_SLOT=32; S_T=33; S_RUN=34; S_T2=35; S_RSLOT=36; S_XRUN=37
V_LANE=1; V_G=2; V_N=3; V_GOFF=4; V_TR=5; V_T=6; V_L16=7; V_XA=8; V_XB=9; V_RING=10; V_ACC=26; V_EPI=58; V_GT=66; V_XO=90; V_XL=92; V_W=96

import os
OPT=lambda k,d: type(d)(os.environ.get(k,d))
S_PROG=52; S_DONE=53; S_CACHE=54; S_THR=55; S_W1T=56; S_W2T=57
V_PV=160; V_PZ=161; V_WA=162; V_WT=163; V_RP=164
def emit_panel(a, kind, pfx, sc1=True, ntiles=128, flags=False, init_hook=None, mid_hook=None, pre_hook=None):
    sc1 = OPT('SC1',1) and sc1
    SC = " sc1" if sc1 else ""
    if kind == 'down':
        KS, T, stride, perm = 48, 1, D*2, True
        xbase = HF
    elif kind == 'qkv':
        KS, T, stride, perm = 20, 4, H*E*2, False
        xbase = XN
    else:
        KS, T, stride, perm = 20, 4, F*2, False
        xbase = XN
    XT = KS*1024; n4 = KS//4; LOOK = OPT('LOOKD',3) if kind=='down' else OPT('LOOK',3)
    NR = 4 if LOOK<=3 else (LOOK+1 if KS%(LOOK+1)==0 else None)
    assert KS % NR == 0
    wreg = WReg(0, 256, V_W)
    RING0 = V_RING if NR==4 else 170
    if OPT('STAMP',0): a("s_memtime s[58:59]")
    a(f"s_lshl_b32 s{S_LB}, s{S_WAVE}, 15")
    if kind == 'qkv':
        units = [(S_W0, S_COL, p*32*stride) for p in range(KS)]
        load_w2(a, units, lambda u, T, k: wreg.pair(T*KS + u, k), 4, stride, perm, V_LANE, V_GOFF, V_TR, V_T, S_T, S_LB, mid_hook=mid_hook, pre_hook=pre_hook)
    elif kind == 'ffnup':
        units = []
        for p in range(KS): units += [(S_W0, S_COL, p*32*stride), (S_W1, S_COL+2, p*32*stride)]
        load_w2(a, units, lambda u, T, k: wreg.pair(((u & 1)*2 + T)*KS + (u >> 1), k), 2, stride, perm, V_LANE, V_GOFF, V_TR, V_T, S_T, S_LB, mid_hook=mid_hook, pre_hook=pre_hook)
    else:
        units = [(S_W0, S_COL, p*32*stride) for p in range(KS)]
        load_w2(a, units, lambda u, T, k: wreg.pair(u, k), 1, stride, perm, V_LANE, V_GOFF, V_TR, V_T, S_T, S_LB, mid_hook=mid_hook, pre_hook=pre_hook)
    def wq(T_, p): return wreg.quad(T_*KS + p)
    if flags: trace(a, 1, 97)
    if init_hook: init_hook()
    a("v_mov_b32 v165, 0x80000000")
    a("s_barrier")
    a(f"v_lshlrev_b32 v{V_L16}, 4, v{V_LANE}")
    a(f"s_mul_i32 s{S_T}, s{S_WAVE}, {n4*1024}")
    a(f"s_add_u32 s{S_XG}, s{S_T}, {xbase}")
    a(f"s_mov_b32 s{S_WS_SLOT}, s{S_T}")
    def dma():
        if flags and kind == 'down':
            a.uid += 1
            a(f"s_add_u32 s{S_THR}, s{S_THR}, 1")
            a(f"s_min_u32 s{S_W2T}, s{S_THR}, 128")
            wait_words(a, f"{pfx}_WH{a.uid}", S_WS, V_WA, V_WT, S_W2T, S_CACHE, 12, S_W1T, S_CNT+28)
        if flags and OPT('PACE', 0):
            a.uid += 1
            a(f"s_add_u32 s59, s59, 1")
            a(f"s_lshr_b32 s60, s59, 1")
            a(f"s_sub_u32 s60, s60, {OPT('LEAD', 6)}")
            a(f"s_cselect_b32 s60, 0, s60")
            a(f"s_min_u32 s60, s60, 63")
            wait_words(a, f"{pfx}_PC{a.uid}", S_WS, V_RP, V_WT, 60, 61, 1, S_W1T, S_CNT+28, sleep=16)
        k = 0
        while k < n4:
            a(f"s_add_u32 m0, s{S_WS_SLOT}, {k*1024}")
            a(f"s_add_u32 s{S_T}, s{S_XG}, {k*1024}")
            for j in range(min(4, n4-k)):
                a(f"buffer_load_dwordx4 v{V_L16}, s[{S_WS}:{S_WS+3}], s{S_T} offen offset:{j*1024} lds")
            k += 4
        a(f"s_add_u32 s{S_XG}, s{S_XG}, {XT}")
        a(f"s_add_u32 s{S_WS_SLOT}, s{S_WS_SLOT}, {XT}")
        a(f"s_sub_u32 s{S_T}, s{S_WS_SLOT}, {NSL*XT}")
        a(f"s_cmp_ge_u32 s{S_WS_SLOT}, {NSL*XT}")
        a(f"s_cselect_b32 s{S_WS_SLOT}, s{S_T}, s{S_WS_SLOT}")
    NSL = OPT('NSLD',3) if kind=='down' else OPT('NSL',3)
    assert NSL*XT <= 160*1024
    STAMP = OPT('STAMP',0) and not flags
    if STAMP: a("s_memtime s[60:61]")
    if flags:
        a(f"s_mov_b32 s{S_DONE}, 0")
        a(f"v_mov_b32 v{V_PZ}, 0")
        a(f"s_mov_b32 s{S_CACHE}, 0")
        a(f"s_mov_b32 s{S_THR}, 0")
        a("s_mov_b32 s59, 0")
        a("s_mov_b32 s61, 0")
        a(f"v_mov_b32 v{V_RP}, {F_RPROG}")
        if kind == 'down':
            a(f"v_min_u32 v{V_WA}, 11, v{V_LANE}")
            a(f"v_lshlrev_b32 v{V_WA}, {PSH}, v{V_WA}")
            a(f"v_add_u32 v{V_WA}, {F_PROG + (R_UP0 << PSH)}, v{V_WA}")
    for _ in range(NSL-1): dma()
    a(f"s_mov_b32 s{S_RSLOT}, {XT}")
    a(f"v_mov_b32 v{V_XA}, v{V_L16}")
    a(f"s_mov_b32 s{S_RUN}, 0")
    a(f"s_mov_b32 s{S_XRUN}, 0")
    if kind == 'ffnup':
        k = 2*0.7978845608028654*1.4426950408889634
        a(f"v_mov_b32 v{V_GT+16}, 0x{f2u(-k*0.044715):08x}")
        a(f"v_mov_b32 v{V_GT+17}, 0x{f2u(-k):08x}")
    if kind == 'down':
        a(f"v_mul_u32_u24 v{V_XO}, 1280, v{V_N}")
        a(f"v_lshlrev_b32 v{V_T}, 3, v{V_G}")
        a(f"v_add_u32 v{V_XO}, v{V_XO}, v{V_T}")
    a(f"s_waitcnt vmcnt({(NSL-2)*n4})")
    a("s_barrier")
    vx = [V_XA, V_XB]
    for pn in range(LOOK):
        a(f"ds_read_b128 {vr(RING0+4*(pn%NR))}, v{V_XA} offset:{pn*1024}")
    def epilogue(q, odd):
        ac = V_ACC + 16*q
        L = []
        if kind == 'qkv':
            for j in range(2):
                for r in range(4):
                    T_ = 2*j + (r >> 1)
                    L.append(f"v_cvt_pk_bf16_f32 v{V_EPI+4*j+r}, v{ac+4*T_+2*(r&1)}, v{ac+4*T_+2*(r&1)+1}")
                L.append(f"s_add_u32 s{S_T2}, s{S_RUN}, s{S_OUT+j}")
                L.append(f"buffer_store_dwordx4 {vr(V_EPI+4*j)}, v{V_L16 if not OPT('NOQST',0) else 165}, s[{S_WS}:{S_WS+3}], s{S_T2} offen{SC}")
            L.append(f"s_add_u32 s{S_RUN}, s{S_RUN}, {6144 if not odd else 384*1024-6144}")
        elif kind == 'ffnup':
            for e in range(8):
                g = ac + e; u = ac + 8 + e; t = V_GT + e
                L += [f"v_mul_f32 v{t}, v{g}, v{g}",
                      f"v_fma_f32 v{t}, v{t}, v{V_GT+16}, v{V_GT+17}",
                      f"v_mul_f32 v{t}, v{t}, v{g}",
                      f"v_exp_f32 v{t}, v{t}",
                      f"v_add_f32 v{t}, 1.0, v{t}",
                      f"v_rcp_f32 v{t}, v{t}",
                      f"v_mul_f32 v{V_GT+8+e}, v{g}, v{u}"]
            for e in range(8):
                L.append(f"v_mul_f32 v{V_GT+e}, v{V_GT+e}, v{V_GT+8+e}")
            for r in range(4):
                L.append(f"v_cvt_pk_bf16_f32 v{V_EPI+r}, v{V_GT+2*r}, v{V_GT+2*r+1}")
            L.append(f"s_add_u32 s{S_T2}, s{S_RUN}, s{S_OUT}")
            L.append(f"buffer_store_dwordx4 {vr(V_EPI)}, v{V_L16}, s[{S_WS}:{S_WS+3}], s{S_T2} offen{SC}")
            L.append(f"s_add_u32 s{S_RUN}, s{S_RUN}, {48*1024}")
        else:
            xl = V_XL + 2*q
            L.append(f"s_waitcnt vmcnt(XWAIT)")
            L += [f"v_lshlrev_b32 v{V_EPI}, 16, v{xl}", f"v_and_b32 v{V_EPI+1}, 0xffff0000, v{xl}",
                  f"v_lshlrev_b32 v{V_EPI+2}, 16, v{xl+1}", f"v_and_b32 v{V_EPI+3}, 0xffff0000, v{xl+1}"]
            for r in range(4):
                L.append(f"v_add_f32 v{V_EPI+r}, v{V_EPI+r}, v{ac+r}")
            L.append(f"s_add_u32 s{S_T2}, s{S_RUN}, s{S_OUT}")
            L.append(f"buffer_store_dwordx4 {vr(V_EPI)}, v{V_L16}, s[{S_WS}:{S_WS+3}], s{S_T2} offen{SC}")
            L.append(f"s_add_u32 s{S_RUN}, s{S_RUN}, {1024 if not odd else 80*1024-1024}")
        return L
    NST = {'qkv': 2, 'ffnup': 1, 'down': 1}[kind]
    NPUB = 1 if flags else 0
    def body(q, epi, tidx=None):
        ac = V_ACC + 16*q
        E_ = epilogue(1-q, odd=(1-q) == 1) if epi else []
        E_ = [x.replace('XWAIT', str(n4+1)) for x in E_]
        per = -(-len(E_) // (KS - 6)) if E_ else 0
        if kind == 'down':
            xl = V_XL + 2*q
            a(f"s_add_u32 s{S_T2}, s{S_XRUN}, s{S_OUT+1}")
            a(f"buffer_load_dwordx2 {vr(xl,2)}, v{V_XO}, s[{S_X}:{S_X+3}], s{S_T2} offen")
            a(f"s_add_u32 s{S_XRUN}, s{S_XRUN}, {16*1280}")
        for p in range(KS):
            pn = p + LOOK
            if pn == KS:
                per_tile_ld = 1 if kind == 'down' else 0
                ntl = NSL-2
                if tidx is None:
                    w = (NSL-3)*n4 + ntl*(NST+per_tile_ld)
                else:
                    ks = [k for k in range(tidx-ntl+1, tidx+1) if k >= 0]
                    w = (NSL-3)*n4 + sum((NST if k >= 1 else 0) + per_tile_ld for k in ks)
                assert NSL == 3 or not flags
                if flags and tidx != 0:
                    a.uid += 1
                    a(f"s_cmp_eq_u32 s{S_WAVE}, 0")
                    a(f"s_cbranch_scc1 {pfx}_SW{a.uid}")
                    a(f"s_waitcnt vmcnt({w})")
                    a(f"s_branch {pfx}_SX{a.uid}")
                    a.label(f"{pfx}_SW{a.uid}")
                    a(f"s_waitcnt vmcnt({w+1})")
                    a.label(f"{pfx}_SX{a.uid}")
                else:
                    a(f"s_waitcnt vmcnt({w})")
                a("s_barrier")
                a(f"v_add_u32 v{vx[1-q]}, s{S_RSLOT}, v{V_L16}")
                a(f"s_add_u32 s{S_RSLOT}, s{S_RSLOT}, {XT}")
                a(f"s_cmp_ge_u32 s{S_RSLOT}, {NSL*XT}")
                a(f"s_cselect_b32 s{S_RSLOT}, 0, s{S_RSLOT}")
                dma()
                if flags:
                    a.uid += 1
                    a(f"s_cmp_lg_u32 s{S_WAVE}, 0")
                    a(f"s_cbranch_scc1 {pfx}_NP{a.uid}")
                    publish_word(a, S_WS, V_PV, V_PZ, S_PROG, S_DONE)
                    a.label(f"{pfx}_NP{a.uid}")
                    if tidx != 0: a(f"s_add_u32 s{S_DONE}, s{S_DONE}, 1")
            if pn < KS:
                a(f"ds_read_b128 {vr(RING0+4*(pn%NR))}, v{vx[q]} offset:{pn*1024}")
            else:
                a(f"ds_read_b128 {vr(RING0+4*(pn%NR))}, v{vx[1-q]} offset:{(pn-KS)*1024}")
            a(f"s_waitcnt lgkmcnt({LOOK})")
            for T_ in range(T):
                c = "0" if p == 0 else vr(ac+4*T_)
                a(f"v_mfma_f32_16x16x32_bf16 {vr(ac+4*T_)}, {wq(T_,p)}, {vr(RING0+4*(p%NR))}, {c}")
            if p >= 2:
                for _ in range(per):
                    if E_: a(E_.pop(0))
        while E_: a(E_.pop(0))
    body(0, False, tidx=0)
    if flags:
        trace(a, 2, 97)
        if int(os.environ.get('TRACE', 0)):
            a("s_memtime s[86:87]\ns_waitcnt lgkmcnt(0)")
            trace(a, 6, 97, val=86)
    npeel = 0
    t = 1
    while t < NSL-1 or (t % 2 == 0):
        body(t % 2, True, tidx=t); t += 1
    if flags and kind == 'qkv' and OPT('EARLYPUB', 2):
        assert t == 3
        def early(v):
            a("s_waitcnt vmcnt(0)")
            a("s_barrier")
            a(f"s_mov_b32 s{S_W1T}, {v}")
            a.uid += 1
            a(f"s_cmp_lg_u32 s{S_WAVE}, 0")
            a(f"s_cbranch_scc1 {pfx}_EP{a.uid}")
            publish_word(a, S_WS, V_PV, V_PZ, S_PROG, S_W1T)
            a.label(f"{pfx}_EP{a.uid}")
        early(2)
        if OPT('EARLYPUB', 2) >= 2:
            body(1, True, tidx=3); body(0, True, tidx=4); t = 5
            early(4)
    a(f"s_mov_b32 s{S_CNT}, {(ntiles-1-t)//2}")
    lp = f"{pfx}_LOOP"
    a.label(lp)
    body(1, True)
    body(0, True)
    a(f"s_sub_u32 s{S_CNT}, s{S_CNT}, 1")
    a(f"s_cmp_lg_u32 s{S_CNT}, 0")
    a(f"s_cbranch_scc1 {lp}")
    body(1, True)
    a("s_nop 7")
    for x in epilogue(1, odd=True):
        a(x.replace('XWAIT', '0'))
    a("s_waitcnt vmcnt(0) lgkmcnt(0)")
    if flags:
        if int(os.environ.get('TRACE', 0)):
            trace(a, 5, 97)
            a("s_memtime s[86:87]\ns_waitcnt lgkmcnt(0)")
            trace(a, 7, 97, val=86)
        a("s_barrier")
        a(f"s_mov_b32 s{S_DONE}, {ntiles}")
        publish_word(a, S_WS, V_PV, V_PZ, S_PROG, S_DONE)
        a("s_waitcnt vmcnt(0)")
    if STAMP:
        a(f"""s_memtime s[62:63]
s_load_dwordx2 s[56:57], s[0:1], {KA['dbg']}
s_waitcnt lgkmcnt(0)
s_sub_u32 s60, s60, s58
s_sub_u32 s62, s62, s58
v_mov_b32 v10, s60
v_mov_b32 v11, s62
s_lshl_b32 s33, s2, 3
s_cmp_lt_u32 s2, 16
s_cselect_b32 s33, s33, 248
v_mov_b32 v12, s33
s_mov_b64 exec, 1
global_store_dwordx2 v12, v[10:11], s[56:57]
s_waitcnt vmcnt(0)""")

def panel_role_setup(a, kind, s_role):
    if kind == 'qkv':
        a(f"""s_mul_i32 s40, s{s_role}, 2731
s_lshr_b32 s40, s40, 16
s_mul_i32 s41, s40, 24
s_sub_u32 s41, s{s_role}, s41
s_mov_b32 s42, {KA['wk']}
s_cmp_eq_u32 s40, 1
s_cselect_b32 s42, {KA['wv']}, s42
s_cmp_eq_u32 s40, 2
s_cselect_b32 s42, {KA['wq']}, s42
s_add_u32 s44, s0, s42
s_addc_u32 s45, s1, 0
s_load_dwordx2 s[46:47], s[44:45], 0
s_mov_b32 s43, {KX}
s_cmp_eq_u32 s40, 1
s_cselect_b32 s43, {VX}, s43
s_cmp_eq_u32 s40, 2
s_cselect_b32 s43, {QX}, s43
s_waitcnt lgkmcnt(0)""")
        srd(a, S_W0, 46, D*H*E*2)
        srd(a, S_W1, 46, D*H*E*2)
        a(f"""s_lshl_b32 s48, s41, 8
s_lshl_b32 s49, s{S_WAVE}, 6
s_add_u32 s48, s48, s49
s_lshl_b32 s48, s48, 1
s_mov_b32 s{S_COL}, s48
s_add_u32 s{S_COL+1}, s48, 32
s_add_u32 s{S_COL+2}, s48, 64
s_add_u32 s{S_COL+3}, s48, 96""")
        for j in range(2):
            a(f"""s_lshl_b32 s48, s41, 3
s_lshl_b32 s49, s{S_WAVE}, 1
s_add_u32 s48, s48, s49
s_add_u32 s48, s48, {j}
s_mul_i32 s49, s48, 10923
s_lshr_b32 s49, s49, 16
s_mul_i32 s50, s49, 6
s_sub_u32 s50, s48, s50
s_mul_i32 s49, s49, 12
s_add_u32 s49, s49, s50
s_lshl_b32 s49, s49, 10
s_add_u32 s{S_OUT+j}, s49, s43""")
    elif kind == 'ffnup':
        a(f"""s_load_dwordx2 s[46:47], s[0:1], {KA['wg']}
s_load_dwordx2 s[48:49], s[0:1], {KA['wu']}
s_waitcnt lgkmcnt(0)""")
        srd(a, S_W0, 46, D*F*2)
        srd(a, S_W1, 48, D*F*2)
        a(f"""s_lshl_b32 s48, s{s_role}, 2
s_add_u32 s48, s48, s{S_WAVE}
s_lshl_b32 s49, s48, 6
s_mov_b32 s{S_COL}, s49
s_add_u32 s{S_COL+1}, s49, 32
s_mov_b32 s{S_COL+2}, s49
s_add_u32 s{S_COL+3}, s49, 32
s_lshl_b32 s49, s48, 10
s_add_u32 s{S_OUT}, s49, {HF}""")
    else:
        a(f"""s_load_dwordx2 s[46:47], s[0:1], {KA['wd']}
s_load_dwordx2 s[48:49], s[0:1], {KA['x']}
s_waitcnt lgkmcnt(0)""")
        srd(a, S_W0, 46, F*D*2)
        srd(a, S_X, 48, S*D*2)
        a(f"""s_lshl_b32 s48, s{s_role}, 2
s_add_u32 s48, s48, s{S_WAVE}
s_lshl_b32 s{S_COL}, s48, 5
s_mov_b32 s{S_OUT+1}, s{S_COL}
s_lshl_b32 s49, s48, 11
s_add_u32 s{S_OUT}, s49, {BASE}""")

def gen_panel_kernel():
    a = Asm(); name = "panel_kernel"
    kernel_header(a, name)
    a(f"""s_cmp_ge_u32 s2, 84
s_cbranch_scc1 PK_END
s_load_dwordx2 s[38:39], s[0:1], {KA['ws']}
s_waitcnt lgkmcnt(0)""")
    srd(a, S_WS, 38, WS_SIZE)
    lane_setup(a, V_LANE, V_G, V_N, S_WAVE)
    a("s_cmp_ge_u32 s2, 72\ns_cbranch_scc1 PK_UP")
    a("s_mov_b32 s51, s2")
    panel_role_setup(a, 'qkv', 51)
    emit_panel(a, 'qkv', 'PKQ')
    a("s_endpgm")
    a.label("PK_UP")
    a("s_sub_u32 s51, s2, 72")
    panel_role_setup(a, 'ffnup', 51)
    emit_panel(a, 'ffnup', 'PKU')
    a.label("PK_END")
    a("s_endpgm")
    return name, a.finalize(), kernel_desc(name, 512, 64, 256)

def gen_down_kernel():
    a = Asm(); name = "down_kernel"
    kernel_header(a, name)
    a(f"""s_cmp_ge_u32 s2, 10
s_cbranch_scc1 DK_END
s_load_dwordx2 s[38:39], s[0:1], {KA['ws']}
s_waitcnt lgkmcnt(0)""")
    srd(a, S_WS, 38, WS_SIZE)
    lane_setup(a, V_LANE, V_G, V_N, S_WAVE)
    a("s_mov_b32 s51, s2")
    panel_role_setup(a, 'down', 51)
    emit_panel(a, 'down', 'PKD')
    a.label("DK_END")
    a("s_endpgm")
    return name, a.finalize(), kernel_desc(name, 512, 64, 256)
```

```python
from gen_common import *
import struct, os
OPT=lambda k,d: type(d)(os.environ.get(k,d))
def f2u(f): return struct.unpack('<I', struct.pack('<f', f))[0]

S_WS=4; S_WQ=8; S_WK=12; S_WV=16; S_WO=20
S_WAVE=24; S_H=25; S_C=26; S_J=27; S_STEP=28
S_P=29; S_CUR=30; S_N=31; S_NN=32
S_HI32=20
S_MQ=16
S_M8=34; S_H8=38
S_T=40; S_T2=41; S_T3=42; S_RETRY=43
S_KVG=44; S_UXG=45; S_UYG=46; S_KMG=47; S_RSB=48; S_KVL=49; S_KVR=50; S_RED=51; S_RSP=52; S_FLG=53
S_LB=54
S_COL=56
S_SCALE=60; S_MAXR=61
S_TS=62
S_M0=88
S_MODE=57
S_REF0=98
S_REF2=36
S_NOW=58
L_MEM=0; L_QKV=10240; L_KV=20480; KVB=24576
LDS_REC=131072
V_LANE=1; V_G=2; V_N=3; V_T=4; V_T2=5; V_L16=6
V_AGO=7; V_AGL=10; V_MRD=11; V_AGP=23
V_RSL=7
V_AST=12; V_KMS=15; V_APO=16; V_APL=19
V_RQ=20; V_IDX=21; V_RV=22; V_RSO=28; V_L4=29; V_AGS=30; V_ZERO=31
V_RSP=80
V_NINF=248; V_KVA=249
V_POLL=32; V_RING=48; V_ACC=88; V_PK=252; V_KXF=100; V_QF=148; V_KF=172; V_VF=196; V_S=220; V_UXF=232
V_Y=48; V_PU=64; V_UA=48; V_YF=220; V_SM=148
NT = [4, 4, 2]; T0 = [0, 4, 8]; P0 = [0, 2, 4]
KVX = L_KV ^ (L_KV+KVB)

def poll_check(a, regs, vt):
    r = list(regs)
    a(f"v_max3_u32 v{vt}, v{r[0]}, v{r[1]}, v{r[2]}")
    i = 3
    while i < len(r):
        if i + 1 < len(r):
            a(f"v_max3_u32 v{vt}, v{vt}, v{r[i]}, v{r[i+1]}"); i += 2
        else:
            a(f"v_max_u32 v{vt}, v{vt}, v{r[i]}"); i += 1
    a(f"v_cmp_eq_u32 vcc, -1, v{vt}")

def sleep(a, n):
    while n > 0:
        k = min(n, 127); a(f"s_sleep {k}"); n -= k

def mark(a, reg):
    a(f"s_memtime s[{reg}:{reg+1}]")

def wait_until(a, ref, delta):
    if delta <= 0: return
    a.uid += 1
    L = f"WU_{a.uid}"
    a.label(L)
    a(f"""s_memtime s[{S_NOW}:{S_NOW+1}]
s_waitcnt lgkmcnt(0)
s_sub_u32 s{S_NOW}, s{S_NOW}, s{ref}
s_cmp_ge_u32 s{S_NOW}, {delta}
s_cbranch_scc1 {L}_D
s_sub_u32 s{S_NOW}, {delta}, s{S_NOW}
s_cmp_lt_u32 s{S_NOW}, 96
s_cbranch_scc1 {L}
s_sleep 1
s_branch {L}""")
    a.label(f"{L}_D")

def stamp(a, idx):
    if OPT('STAMP', 0):
        a(f"s_memtime s[{S_TS+2*idx}:{S_TS+2*idx+1}]")

def racc(a, k):
    if OPT('STAMP', 0): a(f"s_add_u32 s{k}, s{k}, s{S_RETRY}")

def nearmap_v(a, v, vt):
    a(f"""v_lshrrev_b32 v{vt}, 13, v{v}
v_lshlrev_b32 v{vt}, 14, v{vt}
v_and_b32 v{v}, 0x1fff, v{v}
v_or_b32 v{v}, v{v}, v{vt}""")

def oob_mask(a, v, nlanes):
    a(f"""v_mov_b32 v{V_T}, 0x80000000
v_cmp_gt_u32 vcc, {nlanes}, v{V_LANE}
v_cndmask_b32 v{v}, v{V_T}, v{v}, vcc""")

V_AGB=48
def poll_loop(a, lbl, loads, nreg, acc, pre_issued=False, base=None, spec=None):
    a(f"s_mov_b32 s{S_RETRY}, 0")
    if pre_issued:
        a(f"s_branch {lbl}_W")
    a.label(lbl)
    for x in loads: a(x)
    if pre_issued: a.label(f"{lbl}_W")
    a("s_waitcnt vmcnt(0)")
    if spec: spec()
    b0 = V_POLL if base is None else base
    poll_check(a, range(b0, b0+nreg), V_T)
    a(f"""s_cbranch_vccz {lbl}_OK
s_add_u32 s{S_RETRY}, s{S_RETRY}, 1
s_cmp_lt_u32 s{S_RETRY}, s{S_MAXR}
s_cbranch_scc1 {lbl}
s_mov_b32 s{S_MAXR}, 0""")
    a.label(f"{lbl}_OK")
    racc(a, acc)

CURMODE = [None]
def RSLOC(): return OPT('RSLOC', 0) and not OPT('STAMP', 0)
INITWAIT = [False]
def store_mode(a, lines):
    if CURMODE[0] is not None:
        for x in lines: a(x.replace(' SCX', '' if CURMODE[0] else ' sc1'))
        return
    if OPT('AFAST', 1) == 0:
        for x in lines: a(x.replace(' SCX', ' sc1'))
        return
    a.uid += 1
    L = f"SM_{a.uid}"
    a(f"s_cmp_eq_u32 s{S_MODE}, 0")
    a(f"s_cbranch_scc1 {L}_S")
    for x in lines: a(x.replace(' SCX', ''))
    a(f"s_branch {L}_E")
    a.label(f"{L}_S")
    for x in lines: a(x.replace(' SCX', ' sc1'))
    a.label(f"{L}_E")

def wait_mode(a, ref, fast, slow):
    if CURMODE[0] is not None:
        wait_until(a, ref, fast if CURMODE[0] else slow); return
    if OPT('AFAST', 1) == 0:
        wait_until(a, ref, slow); return
    a.uid += 1
    L = f"WM_{a.uid}"
    a(f"s_cmp_eq_u32 s{S_MODE}, 0")
    a(f"s_cbranch_scc1 {L}_S")
    wait_until(a, ref, fast)
    a(f"s_branch {L}_E")
    a.label(f"{L}_S")
    wait_until(a, ref, slow)
    a.label(f"{L}_E")

def poll2(a, lbl, mk_loads, nreg, baseA, baseB, acc, stage, gap=2):
    LA = mk_loads(baseA); LB = mk_loads(baseB); n = len(LA)
    a(f"s_mov_b32 s{S_RETRY}, 0")
    for x in LA: a(x)
    if gap: a(f"s_sleep {gap}")
    a.label(lbl)
    for x in LB: a(x)
    a(f"s_waitcnt vmcnt({n})")
    poll_check(a, range(baseA, baseA+nreg), V_T)
    a(f"s_cbranch_vccz {lbl}_GA")
    for x in LA: a(x)
    a(f"s_waitcnt vmcnt({n})")
    poll_check(a, range(baseB, baseB+nreg), V_T)
    a(f"""s_cbranch_vccz {lbl}_GB
s_add_u32 s{S_RETRY}, s{S_RETRY}, 1
s_cmp_lt_u32 s{S_RETRY}, s{S_MAXR}
s_cbranch_scc1 {lbl}
s_mov_b32 s{S_MAXR}, 0""")
    a.label(f"{lbl}_GB")
    racc(a, acc)
    stage(baseB)
    a(f"s_branch {lbl}_E")
    a.label(f"{lbl}_GA")
    racc(a, acc)
    stage(baseA)
    a.label(f"{lbl}_E")

def ag_poll(a, pfx, w):
    wait_mode(a, S_REF2, OPT('T_AGF', 0), OPT('T_AG', 650))
    base = (w-2)*5
    def mk(b): return [f"buffer_load_dwordx4 {vr(b+4*k)}, v{V_AGP+k}, s[{S_WS}:{S_WS+3}], s{S_P} offen sc1" for k in range(5)]
    def stage(b):
        for k in range(5):
            a(f"ds_write_b128 v{V_L16}, {vr(b+4*k)} offset:{L_MEM + (base+k)*1024}")
    if CURMODE[0] and OPT('POLL2', 0):
        poll2(a, f"{pfx}_AGP", mk, 20, 172, 196, 92, stage, gap=OPT('GAPD', 2))
    else:
        if OPT('SPEC', 0): poll_loop(a, f"{pfx}_AGP", mk(V_AGB), 20, 92, base=V_AGB, spec=lambda: stage(V_AGB))
        else:
            poll_loop(a, f"{pfx}_AGP", mk(V_AGB), 20, 92, base=V_AGB)
            stage(V_AGB)

def reduce_blocks(a, pfx, nb, SEL, base_reg, s_poll, v_ags, acc, apk, s_loc0=None, s_loc=None, sqbase=None):
    loads = []
    LOCAL = CURMODE[0] and RSLOC()
    if LOCAL:
        a(f"s_lshr_b32 s{S_NOW}, s{S_J}, 5")
        a(f"s_xor_b32 s{S_NOW+1}, s{S_CUR}, 8192")
        for b in range(nb):
            a(f"s_add_u32 s{s_loc[b]}, s{s_loc0[b]}, s{S_NOW+1}")
        for b in range(nb):
            for q in range(4):
                sq = sqbase + 4*b + q
                a(f"s_add_u32 s{sq}, s{s_poll[b]}, {q*1024}")
                a(f"s_cmp_eq_u32 s{S_NOW}, {q}")
                a(f"s_cselect_b32 s{sq}, s{s_loc[b]}, s{sq}")
                loads.append(f"buffer_load_dwordx4 {vr(base_reg+16*b+4*q)}, v{V_L16}, s[{S_WS}:{S_WS+3}], s{sq} offen sc1")
    else:
        for b in range(nb):
            for q in range(4):
                loads.append(f"buffer_load_dwordx4 {vr(base_reg+16*b+4*q)}, v{V_L16}, s[{S_WS}:{S_WS+3}], s{s_poll[b]} offen offset:{q*1024} sc1")
    poll_loop(a, f"{pfx}_RP", loads, 16*nb, 94, base=base_reg)
    stamp(a, 7)
    for q in range(4):
        for b in range(nb):
            c = "0" if q == 0 else vr(acc+8*b)
            a(f"v_mfma_f32_16x16x32_bf16 {vr(acc+8*b)}, {vr(SEL)}, {vr(base_reg+16*b+4*q)}, {c}")
    for b in range(nb):
        for r in range(4):
            a(f"v_add_f32_dpp v{acc+8*b+4+r}, v{acc+8*b+r}, v{acc+8*b+r} row_ror:8 row_mask:0xf bank_mask:0xf")
    if nb == 2:
        for r in range(4): a(f"v_cndmask_b32 v{acc+4+r}, v{acc+4+r}, v{acc+12+r}, s[{S_H8}:{S_H8+1}]")
    a(f"v_cvt_pk_bf16_f32 v{apk}, v{acc+4}, v{acc+5}")
    a(f"v_cvt_pk_bf16_f32 v{apk+1}, v{acc+6}, v{acc+7}")
    a(f"v_mov_b32 v{apk+2}, v{apk}\nv_mov_b32 v{apk+3}, v{apk+1}")
    a(f"v_mov_b32 v{apk+4}, v{apk}\nv_mov_b32 v{apk+5}, v{apk+1}")
    a(f"v_permlane16_swap_b32 v{apk+4}, v{apk+2}")
    a(f"v_permlane16_swap_b32 v{apk+5}, v{apk+3}")
    store_mode(a, [f"buffer_store_dwordx4 {vr(apk)}, v{v_ags}, s[{S_WS}:{S_WS+3}], s{S_CUR} offen SCX"])

def reduce2(a, pfx, SEL, base_reg, v_off, v_ags, acc, apk):
    loads = [f"buffer_load_dwordx4 {vr(base_reg+4*q)}, v{v_off}, s[{S_WS}:{S_WS+3}], s{S_CUR} offen offset:{q*512} sc1" for q in range(8)]
    poll_loop(a, f"{pfx}_RP", loads, 32, 94, base=base_reg)
    stamp(a, 7)
    for q in range(8):
        c = "0" if q == 0 else vr(acc)
        a(f"v_mfma_f32_16x16x32_bf16 {vr(acc)}, {vr(SEL)}, {vr(base_reg+4*q)}, {c}")
    a(f"v_cvt_pk_bf16_f32 v{apk}, v{acc}, v{acc+1}")
    a(f"v_cvt_pk_bf16_f32 v{apk+1}, v{acc+2}, v{acc+3}")
    store_mode(a, [f"buffer_store_dwordx2 {vr(apk,2)}, v{v_ags}, s[{S_WS}:{S_WS+3}], s{S_CUR} offen SCX"])

def sel_setup(a, SEL):
    for k in range(4):
        a(f"""v_mov_b32 v{SEL+k}, 0
v_mov_b32 v{V_T}, 0x3f80
v_cmp_eq_u32 vcc, {2*k}, v{V_N}
v_cndmask_b32 v{SEL+k}, v{SEL+k}, v{V_T}, vcc
v_mov_b32 v{V_T}, 0x3f800000
v_cmp_eq_u32 vcc, {2*k+1}, v{V_N}
v_cndmask_b32 v{SEL+k}, v{SEL+k}, v{V_T}, vcc""")

def smap(a, s, t):
    a(f"""s_lshr_b32 s{t}, s{s}, 13
s_lshl_b32 s{t}, s{t}, 14
s_and_b32 s{s}, s{s}, 0x1fff
s_or_b32 s{s}, s{s}, s{t}
s_add_u32 s{s}, s{s}, {nearmap(RS_LOG)}""")

def loc_off(a, s_cb, s_out, s_tmp):
    a(f"""s_lshr_b32 s{s_out}, s{S_J}, 5
s_mul_i32 s{s_out}, s{s_out}, 81920
s_lshl_b32 s{s_tmp}, s{s_cb}, 10
s_add_u32 s{s_out}, s{s_out}, s{s_tmp}""")
    smap(a, s_out, s_tmp)

def rs_local_lane(a, v):
    a(f"""v_lshlrev_b32 v{v}, 10, v{V_G}
v_and_b32 v{V_T}, 7, v{V_LANE}
v_lshlrev_b32 v{V_T}, 4, v{V_T}
v_add_u32 v{v}, v{v}, v{V_T}
s_and_b32 s{S_T}, s{S_H}, 7
s_lshl_b32 s{S_T}, s{S_T}, 7
v_add_u32 v{v}, s{S_T}, v{v}""")

def blk_off(a, s_cb, s_out, s_tmp):
    a(f"""s_lshr_b32 s{s_out}, s{s_cb}, 1
s_lshl_b32 s{s_out}, s{s_out}, 14
s_and_b32 s{s_tmp}, s{s_cb}, 1
s_lshl_b32 s{s_tmp}, s{s_tmp}, 12
s_add_u32 s{s_out}, s{s_out}, s{s_tmp}
s_add_u32 s{s_out}, s{s_out}, {nearmap(RS_LOG)}""")

def rotate_slots(a):
    a(f"""s_mov_b32 s{S_T}, s{S_P}
s_mov_b32 s{S_P}, s{S_CUR}
s_mov_b32 s{S_CUR}, s{S_N}
s_mov_b32 s{S_N}, s{S_NN}
s_mov_b32 s{S_NN}, s{S_T}""")

def proj_stage(a, ntile, w8):
    for K in range(10):
        a(f"ds_read_b128 {vr(V_RING+4*K)}, v{V_L16} offset:{L_MEM + K*1024}")
    for t in range(ntile):
        for r in range(4): a(f"v_mov_b32 v{V_ACC+4*t+r}, 0")
    for K in range(10):
        a(f"s_waitcnt lgkmcnt({9-K})")
        for t in range(ntile):
            a(f"v_smfmac_f32_16x16x64_bf16 {vr(V_ACC+4*t)}, {vr(V_RING+4*K)}, {w8(t,K)}, v{V_IDX}")

def pack_pair(x, y, pk):
    L = [f"v_permlane32_swap_b32 v{x+r}, v{y+r}" for r in range(4)]
    L += [f"v_add_f32 v{x+r}, v{x+r}, v{y+r}" for r in range(4)]
    L += [f"v_cvt_pk_bf16_f32 v{pk}, v{x}, v{x+1}", f"v_cvt_pk_bf16_f32 v{pk+1}, v{x+2}, v{x+3}"]
    return L

def ux_load(a, w, flags, pfx):
    nt = NT[w]
    if flags:
        a.uid += 1
        a(f"s_add_u32 s{S_UXT}, s{S_UXT}, 1")
        a(f"s_min_u32 s{S_T3}, s{S_UXT}, 64")
        wait_words(a, f"{pfx}_WUX{a.uid}", S_WS, V_UXA, V_T, S_T3, S_UXC, 1, S_T2, 23)
    for t in range(nt):
        a(f"buffer_load_dwordx4 {vr(V_UXF+4*t)}, v{V_L16}, s[{S_WS}:{S_WS+3}], s{S_UXG} offen offset:{t*1024} sc1")
    a(f"s_add_u32 s{S_UXG}, s{S_UXG}, {32*40*1024}")

def idle_phase(a, w, woq):
    if OPT('UXRD', 0):
        a(f"v_add_u32 v{V_T}, s{S_KVR}, v{V_L16}")
        for f in range(12):
            a(f"ds_read_b128 {vr(V_KXF+4*f)}, v{V_T} offset:{f*1024}")
        a("s_waitcnt lgkmcnt(0)")
        a(f"s_xor_b32 s{S_KVR}, s{S_KVR}, {KVX}")
        return
    nt = NT[w]
    a(f"v_add_u32 v{V_T}, s{S_KVR}, v{V_L16}")
    for f in range(12):
        a(f"ds_read_b128 {vr(V_QF+4*f)}, v{V_T} offset:{12288 + f*1024}")
        if f == 7: a("s_waitcnt lgkmcnt(4)")
    a("s_waitcnt lgkmcnt(0)")
    for f in range(12):
        a(f"ds_read_b128 {vr(V_KXF+4*f)}, v{V_T} offset:{f*1024}")
    for p in range(6):
        for t in range(nt):
            for tt in range(2):
                d = V_UA + 8*t + 4*tt
                c = "0" if p == 0 else vr(d)
                a(f"v_mfma_f32_16x16x32_bf16 {vr(d)}, {vr(V_QF+4*(tt*6+p))}, {woq(t,p)}, {c}")
    for t in range(nt):
        for k in range(4):
            tt = k >> 1
            d = V_UA + 8*t + 4*tt + 2*(k & 1)
            a(f"v_cvt_pk_bf16_f32 v{V_UXF+4*t+k}, v{d}, v{d+1}")
        a(f"s_add_u32 s{S_T}, s{S_UXG}, {t*1024}")
        if OPT('UXST', 0): a(f"buffer_store_dwordx4 {vr(V_UXF+4*t)}, v{V_L16}, s[{S_WS}:{S_WS+3}], s{S_T} offen sc1")
    a(f"s_add_u32 s{S_UXG}, s{S_UXG}, {32*40*1024}")
    a("s_waitcnt lgkmcnt(0)")
    a(f"s_xor_b32 s{S_KVR}, s{S_KVR}, {KVX}")

S_UXT=88; S_UXC=89; V_UXA=11
S_KVT=33
S_RLB=18
S_RL0=19; S_RL1=95
AP6 = [16, 17, 18, 19, 7, 8]
V_RSOL=9
S_KVC=21
def kv_dma(a, flags=False, pfx='', w=0):
    if w < 2:
        if flags:
            a.uid += 1
            a(f"s_add_u32 s{S_KVT}, s{S_KVT}, 2")
            a(f"s_min_u32 s{S_T3}, s{S_KVT}, 128")
            wait_words(a, f"{pfx}_WKV{a.uid}", S_WS, V_KVA, V_T, S_T3, 22, 2 if OPT('UXRD', 0) else 4, S_T2, 23)
        if OPT('UXRD', 0):
            for (k0, n) in ((0, 4), (4, 2)):
                a(f"s_add_u32 m0, s{S_KVL}, {w*6144 + k0*1024}")
                a(f"s_add_u32 s{S_T}, s{S_KVG}, {k0*1024}")
                for j in range(n):
                    a(f"buffer_load_dwordx4 v{V_L16}, s[{S_WS}:{S_WS+3}], s{S_T} offen offset:{j*1024} sc1 lds")
        else:
            for k in range(3):
                a(f"s_add_u32 m0, s{S_KVL}, {w*12288 + k*4096}")
                a(f"s_add_u32 s{S_T}, s{S_KVG}, {k*4096}")
                for j in range(4):
                    a(f"buffer_load_dwordx4 v{V_L16}, s[{S_WS}:{S_WS+3}], s{S_T} offen offset:{j*1024} sc1 lds")
        a(f"s_add_u32 s{S_KVG}, s{S_KVG}, {32*12288}")
    a(f"s_xor_b32 s{S_KVL}, s{S_KVL}, {KVX}")

def softmax_lists():
    X = V_SM; MX = V_SM+6; TM = V_SM+7; RS_ = V_SM+8; PT = V_SM+12; PM = V_SM+10; T2 = V_SM+16
    L = []
    for r in range(4): L.append(f"v_cndmask_b32 v{X+r}, v{V_S+4+r}, v{V_S+8+r}, s[{S_H8}:{S_H8+1}]")
    L.append(f"v_cndmask_b32 v{X+4}, v{V_S}, v{V_S+2}, s[{S_H8}:{S_H8+1}]")
    L.append(f"v_cndmask_b32 v{X+5}, v{V_S+1}, v{V_S+3}, s[{S_H8}:{S_H8+1}]")
    L.append(f"v_max3_f32 v{MX}, v{X}, v{X+1}, v{X+2}")
    L.append(f"v_max3_f32 v{TM}, v{X+3}, v{X+4}, v{X+5}")
    L.append(f"v_max_f32 v{MX}, v{MX}, v{TM}")
    L.append(f"v_max_f32_dpp v{MX}, v{MX}, v{MX} row_ror:8 row_mask:0xf bank_mask:0xf")
    L += [f"v_mov_b32 v{TM}, v{MX}", f"v_permlane16_swap_b32 v{MX}, v{TM}", f"v_max_f32 v{MX}, v{MX}, v{TM}"]
    L += [f"v_mov_b32 v{TM}, v{MX}", f"v_permlane32_swap_b32 v{MX}, v{TM}", f"v_max_f32 v{MX}, v{MX}, v{TM}"]
    L.append(f"v_mul_f32 v{MX}, s{S_SCALE}, v{MX}")
    for j in range(6): L.append(f"v_fma_f32 v{X+j}, v{X+j}, s{S_SCALE}, -v{MX}")
    for j in range(6): L.append(f"v_exp_f32 v{X+j}, v{X+j}")
    L.append(f"v_cvt_pk_bf16_f32 v{PT}, v{X}, v{X+1}")
    L.append(f"v_cvt_pk_bf16_f32 v{PT+1}, v{X+2}, v{X+3}")
    L.append(f"v_cvt_pk_bf16_f32 v{PM}, v{X+4}, v{X+5}")
    L.append(f"v_mov_b32_dpp v{PT+2}, v{PT} row_ror:8 row_mask:0xf bank_mask:0xf")
    L.append(f"v_mov_b32_dpp v{PT+3}, v{PT+1} row_ror:8 row_mask:0xf bank_mask:0xf")
    L.append(f"v_mov_b32_dpp v{PM+1}, v{PM} row_ror:8 row_mask:0xf bank_mask:0xf")
    M = [f"v_cndmask_b32 v{X+4}, v{X+4}, v{V_ZERO}, s[{S_HI32}:{S_HI32+1}]",
         f"v_cndmask_b32 v{X+5}, v{X+5}, v{V_ZERO}, s[{S_HI32}:{S_HI32+1}]",
         f"v_add_f32 v{RS_}, v{X}, v{X+1}", f"v_add_f32 v{TM}, v{X+2}, v{X+3}", f"v_add_f32 v{RS_+1}, v{X+4}, v{X+5}",
         f"v_add_f32 v{RS_}, v{RS_}, v{TM}", f"v_add_f32 v{RS_}, v{RS_}, v{RS_+1}",
         f"v_add_f32_dpp v{RS_}, v{RS_}, v{RS_} row_ror:8 row_mask:0xf bank_mask:0xf",
         f"v_mov_b32 v{TM}, v{RS_}", f"v_permlane16_swap_b32 v{RS_}, v{TM}", f"v_add_f32 v{RS_}, v{RS_}, v{TM}",
         f"v_mov_b32 v{TM}, v{RS_}", f"v_permlane32_swap_b32 v{RS_}, v{TM}", f"v_add_f32 v{RS_}, v{RS_}, v{TM}",
         f"v_rcp_f32 v{RS_}, v{RS_}"]
    return PT, PM, RS_, L, M

def gi(a, v):
    a(f"""v_lshlrev_b32 v{v}, 7, v{V_G}
v_and_b32 v{V_T}, 7, v{V_LANE}
v_lshlrev_b32 v{V_T}, 4, v{V_T}
v_add_u32 v{v}, v{v}, v{V_T}""")

def rs_lane(a, v):
    a(f"""v_lshrrev_b32 v{v}, 1, v{V_G}
v_lshlrev_b32 v{v}, 14, v{v}
v_and_b32 v{V_T}, 1, v{V_G}
v_lshlrev_b32 v{V_T}, 12, v{V_T}
v_add_u32 v{v}, v{v}, v{V_T}
v_and_b32 v{V_T}, 7, v{V_LANE}
v_lshlrev_b32 v{V_T}, 4, v{V_T}
v_add_u32 v{v}, v{v}, v{V_T}
s_lshl_b32 s{S_T}, s{S_H}, 7
v_add_u32 v{v}, s{S_T}, v{v}""")

def coop_load(a, w, wreg):
    stride = H*E*2
    VG, VT = V_POLL, V_POLL+1
    a(f"""v_lshrrev_b32 v{V_T}, 3, v{V_LANE}
v_add_u32 v{V_T}, {8*w}, v{V_T}
s_mov_b32 s{S_LB+1}, {stride}
v_mul_lo_u32 v{VG}, v{V_T}, s{S_LB+1}
v_and_b32 v{V_T}, 7, v{V_LANE}
v_lshlrev_b32 v{V_T}, 4, v{V_T}
v_add_u32 v{VG}, v{VG}, v{V_T}
v_bfe_u32 v{VT}, v{V_LANE}, 4, 1
v_lshlrev_b32 v{VT}, 4, v{VT}
v_bfe_u32 v{V_T}, v{V_LANE}, 5, 1
v_lshlrev_b32 v{V_T}, 3, v{V_T}
v_add_u32 v{VT}, v{VT}, v{V_T}
v_bfe_u32 v{V_T}, v{V_LANE}, 2, 1
v_add_u32 v{VT}, v{VT}, v{V_T}
v_bfe_u32 v{V_T}, v{V_LANE}, 3, 1
v_lshlrev_b32 v{V_T}, 2, v{V_T}
v_add_u32 v{VT}, v{VT}, v{V_T}
v_lshlrev_b32 v{VT}, 7, v{VT}
v_and_b32 v{V_T}, 3, v{V_LANE}
v_lshlrev_b32 v{V_T}, 3, v{V_T}
v_add_u32 v{VT}, v{VT}, v{V_T}
s_mul_i32 s{S_COL}, s{S_H}, 384
s_mul_i32 s{S_T}, s{S_C}, 96
s_add_u32 s{S_COL}, s{S_COL}, s{S_T}
v_add_u32 v{VT+1}, 61440, v{VT}""")
    srds = (S_WQ, S_WK, S_WV)
    def issue(ph):
        buf = (ph & 1)*61440
        for pp in range(5):
            p = 5*ph + pp
            for m in range(3):
                a(f"s_add_u32 s{S_T}, s{S_COL}, {p*32*stride}")
                a(f"s_mov_b32 m0, {buf + (pp*3+m)*4096 + w*1024}")
                a(f"buffer_load_dwordx4 v{VG}, s[{srds[m]}:{srds[m]+3}], s{S_T} offen lds")
    issue(0); issue(1)
    for ph in range(4):
        a(f"s_waitcnt vmcnt({15 if ph < 3 else 0})")
        a("s_barrier")
        buf = (ph & 1)*61440
        n = 0
        for pp in range(5):
            p = 5*ph + pp
            if w < 3: items = [(0, w, p), (1, w, 20+p)]
            else: items = [(2, t, t*20+p) for t in range(3)]
            for (m, T, f) in items:
                o = buf + (pp*3+m)*4096 + T*32
                reg = VT if o + 256 < 65536 else VT+1
                oo = o if reg == VT else o - 61440
                a(f"ds_read_b64_tr_b16 {wreg.pair(f,0)}, v{reg} offset:{oo}")
                a(f"ds_read_b64_tr_b16 {wreg.pair(f,1)}, v{reg} offset:{oo+256}")
                n += 2
                if n % 12 == 0: a("s_waitcnt lgkmcnt(4)")
        a("s_waitcnt lgkmcnt(0)")
        a("s_barrier")
        if ph == 0: pass
        if ph + 2 < 4: issue(ph+2)

def main_wave(a, w, flags=False):
    pfx = f"RM{w}"
    nt = NT[w]
    wreg = WReg(0, 256, 0)
    mem0_load(a, w)
    w8 = lambda t, K: ar((t*20 + 2*K)*4, 8)
    woq = lambda t, p: wreg.quad(40 + t*6 + p)
    a(f"s_lshl_b32 s{S_LB}, s{S_WAVE}, 15")
    if OPT('COOP', 1):
        coop_load(a, w, wreg)
    else:
        a(f"""s_mul_i32 s{S_COL}, s{S_H}, 384
s_mul_i32 s{S_T}, s{S_C}, 96
s_add_u32 s{S_COL}, s{S_COL}, s{S_T}
s_add_u32 s{S_COL}, s{S_COL}, {w*32}""")
        units = []
        for p in range(20): units += [(S_WQ, S_COL, p*32*H*E*2), (S_WK, S_COL, p*32*H*E*2)]
        load_w2(a, units, lambda u, T, k: wreg.pair((u & 1)*20 + (u >> 1), k), 1, H*E*2, 2, V_LANE, V_POLL, V_POLL+1, V_T, S_T, S_LB)
    a(f"""s_mul_i32 s{S_COL}, s{S_H}, {192*1280}
s_mul_i32 s{S_T}, s{S_C}, 320
s_add_u32 s{S_COL}, s{S_COL}, s{S_T}
s_add_u32 s{S_COL}, s{S_COL}, {T0[w]*32}""")
    ng = nt//2
    units = [(S_WO, S_COL, g*64 + p*32*1280) for p in range(6) for g in range(ng)]
    load_w2(a, units, lambda u, T, k: wreg.pair(40 + ((u % ng)*2 + T)*6 + u // ng, k), 2, D*2, True, V_LANE, V_POLL, V_POLL+1, V_T, S_T, S_LB)
    if OPT('STAMP', 0): a("s_memtime s[78:79]\ns_waitcnt lgkmcnt(0)\ns_sub_u32 s95, s78, s100")
    common_setup(a, w)
    gi(a, V_KMS)
    a(f"v_add_u32 v{V_KMS}, {w*1024}, v{V_KMS}")
    a(f"""v_lshrrev_b32 v{V_AST}, 1, v{V_G}
v_mul_u32_u24 v{V_AST}, 3072, v{V_AST}
v_lshlrev_b32 v{V_T}, 4, v{V_N}
v_add_u32 v{V_AST}, v{V_AST}, v{V_T}
v_and_b32 v{V_T}, 1, v{V_G}
v_lshlrev_b32 v{V_T}, 3, v{V_T}
v_add_u32 v{V_AST}, v{V_AST}, v{V_T}
s_mul_i32 s{S_T}, s{S_C}, 3
s_add_u32 s{S_T}, s{S_T}, {w}
s_lshl_b32 s{S_T}, s{S_T}, 8
s_mul_i32 s{S_T2}, s{S_H}, 9216
s_add_u32 s{S_T}, s{S_T}, s{S_T2}
v_add_u32 v{V_AST}, s{S_T}, v{V_AST}""")
    nearmap_v(a, V_AST, V_T)
    a(f"""s_add_u32 s{S_T}, s{S_T2}, {w*2048}
v_add_u32 v{V_APO}, s{S_T}, v{V_L16}
v_add_u32 v{V_APO+1}, 1024, v{V_APO}
v_add_u32 v{V_APL}, {L_QKV + w*2048}, v{V_L16}""")
    nearmap_v(a, V_APO, V_T); nearmap_v(a, V_APO+1, V_T)
    if w == 2 and OPT('EARLYDMA', 1):
        for k in range(6):
            a(f"v_add_u32 v{AP6[k]}, s{S_T2}, v{V_L16}")
            if k: a(f"v_add_u32 v{AP6[k]}, {k*1024}, v{AP6[k]}")
            nearmap_v(a, AP6[k], V_T)
    a(f"""v_lshlrev_b32 v{V_RQ}, 2, v{V_G}
v_bfe_u32 v{V_T}, v{V_LANE}, 2, 2
v_add_u32 v{V_RQ}, v{V_RQ}, v{V_T}
v_lshlrev_b32 v{V_RQ}, 4, v{V_RQ}
v_and_b32 v{V_T}, 1, v{V_LANE}
v_lshlrev_b32 v{V_T}, 3, v{V_T}
v_add_u32 v{V_RQ}, v{V_RQ}, v{V_T}
v_add_u32 v{V_RQ}, {L_QKV}, v{V_RQ}""")
    a(f"""v_bfe_u32 v{V_RV}, v{V_LANE}, 5, 1
v_lshlrev_b32 v{V_RV}, 5, v{V_RV}
v_bfe_u32 v{V_T}, v{V_LANE}, 4, 1
v_lshlrev_b32 v{V_T}, 3, v{V_T}
v_add_u32 v{V_RV}, v{V_RV}, v{V_T}
v_bfe_u32 v{V_T}, v{V_LANE}, 2, 1
v_add_u32 v{V_RV}, v{V_RV}, v{V_T}
v_bfe_u32 v{V_T}, v{V_LANE}, 3, 1
v_lshlrev_b32 v{V_T}, 4, v{V_T}
v_add_u32 v{V_RV}, v{V_RV}, v{V_T}
v_bfe_u32 v{V_T}, v{V_LANE}, 1, 1
v_lshlrev_b32 v{V_T}, 1, v{V_T}
v_add_u32 v{V_RV}, v{V_RV}, v{V_T}
v_lshlrev_b32 v{V_RV}, 4, v{V_RV}
v_and_b32 v{V_T}, 1, v{V_LANE}
v_lshlrev_b32 v{V_T}, 3, v{V_T}
v_add_u32 v{V_RV}, v{V_RV}, v{V_T}
v_add_u32 v{V_RV}, {L_QKV+6144}, v{V_RV}""")
    rs_lane(a, V_RSO)
    rs_local_lane(a, V_RSOL)
    for P in range(nt//2):
        a(f"""s_lshr_b32 s{76+P}, s{S_J}, 5
s_mul_i32 s{76+P}, s{76+P}, 81920
s_mul_i32 s{S_T}, s{S_C}, {5*4096}
s_add_u32 s{76+P}, s{76+P}, s{S_T}
s_add_u32 s{76+P}, s{76+P}, {(P0[w]+P)*4096}""")
        smap(a, 76+P, S_T)
    a(f"""s_mul_i32 s{S_RSB}, s{S_C}, {5*32768}
s_add_u32 s{S_RSB}, s{S_RSB}, {nearmap(RS_LOG) + P0[w]*32768}
s_mul_i32 s{S_T}, s{S_H}, 12288
s_add_u32 s{S_KVG}, s{S_T}, {(KX + w*6144) if OPT('UXRD', 0) else (KX if w == 0 else VX)}
s_mul_i32 s{S_T}, s{S_H}, 40
s_mul_i32 s{S_T2}, s{S_C}, 10
s_add_u32 s{S_T}, s{S_T}, s{S_T2}
s_add_u32 s{S_T}, s{S_T}, {T0[w]}
s_lshl_b32 s{S_UXG}, s{S_T}, 10
s_add_u32 s{S_UXG}, s{S_UXG}, {UX}
s_lshl_b32 s{S_UYG}, s{S_T}, 8
s_add_u32 s{S_UYG}, s{S_UYG}, {UY}
s_mul_i32 s{S_KMG}, s{S_H}, 3072
s_add_u32 s{S_KMG}, s{S_KMG}, {KM}
s_mov_b32 s{S_KVL}, {L_KV}
s_mov_b32 s{S_KVR}, {L_KV}
s_lshl_b32 s{S_FLG}, s{S_J}, 7
s_add_u32 s{S_FLG}, s{S_FLG}, {F_REC}""")
    if w == 2:
        a(f"""s_and_b32 s{S_COL}, s{S_J}, 31
s_cmp_lt_u32 s{S_COL}, 16
s_cselect_b32 s{S_RED}, 1, 0
s_add_u32 s{S_COL}, s{S_COL}, 64""")
        blk_off(a, S_COL, S_RSP, S_T)
        loc_off(a, S_COL, 72, S_T)
        a(f"""s_lshr_b32 s{S_T}, s{S_J}, 5
s_mul_i32 s{S_T}, s{S_T}, 10240
s_add_u32 s{S_T}, s{S_T}, {AG_LOG}
s_lshl_b32 s{S_T3}, s{S_COL}, 7
s_add_u32 s{S_T}, s{S_T}, s{S_T3}
v_add_u32 v{V_AGS}, s{S_T}, v{V_L16}""")
        nearmap_v(a, V_AGS, V_T)
        oob_mask(a, V_AGS, 8)
        sel_setup(a, 240)
    if flags:
        a(f"""s_mul_i32 s{S_T}, s{S_H}, 6
s_lshr_b32 s{S_T2}, s{S_T}, 3
s_add_u32 s{S_T}, s{S_T}, 5
s_lshr_b32 s{S_T}, s{S_T}, 3
v_mov_b32 v{V_KVA}, s{S_T}
v_mov_b32 v{V_T}, s{S_T2}
v_and_b32 v{V_T2}, 1, v{V_LANE}
v_cmp_eq_u32 vcc, 0, v{V_T2}
v_cndmask_b32 v{V_KVA}, v{V_KVA}, v{V_T}, vcc
v_cmp_lt_u32 vcc, 1, v{V_LANE}
v_mov_b32 v{V_T}, {R_V0 if not OPT('UXRD', 0) else 0}
v_cndmask_b32 v{V_T}, 0, v{V_T}, vcc
v_add_u32 v{V_KVA}, v{V_KVA}, v{V_T}
v_lshlrev_b32 v{V_KVA}, {PSH}, v{V_KVA}
v_add_u32 v{V_KVA}, {F_PROG}, v{V_KVA}
s_mov_b32 s{S_KVT}, 0
s_mov_b32 s22, 0
s_add_u32 s{S_T}, s{S_H}, {R_U0}
s_lshl_b32 s{S_T}, s{S_T}, {PSH}
s_add_u32 s{S_T}, s{S_T}, {F_PROG}
v_mov_b32 v{V_UXA}, s{S_T}""")
    if flags and w == 0: trace(a, 1, S_J)
    read_polarity(a, pfx)
    if flags and w == 0: trace(a, 2, S_J)
    a("s_barrier")
    mem0_stage(a, w)
    a(f"s_mov_b32 s{S_UXT}, 0\ns_mov_b32 s{S_UXC}, 0")
    kv_dma(a, flags, pfx, w)
    if flags and w == 0: trace(a, 3, S_J)
    a("s_waitcnt vmcnt(0) lgkmcnt(0)")
    a("s_barrier")
    idle_phase(a, w, woq)
    if flags and w == 0:
        dbgt(a, 40, op="max")
        trace(a, 4, S_J)
        if int(os.environ.get('TRACE', 0)):
            a("s_memtime s[86:87]\ns_waitcnt lgkmcnt(0)")
            trace(a, 6, S_J, val=86)
    stamp(a, 0)
    if OPT('STAMP', 0): a(f"s_waitcnt lgkmcnt(0)\ns_sub_u32 s101, s{S_TS}, s100")
    pfx0 = pfx
    a(f"s_cmp_eq_u32 s{S_MODE}, 0")
    a(f"s_cbranch_scc1 {pfx0}S_B0")
    a(f"s_branch {pfx0}F_B0")
    for mode in (1, 0):
        CURMODE[0] = mode
        pfx = pfx0 + ("F" if mode else "S")
        main_loop(a, w, flags, pfx, nt, w8, woq)
    CURMODE[0] = None

def main_loop(a, w, flags, pfx, nt, w8, woq):
    wo8 = lambda t, K: ar((40 + t*6 + 2*K)*4, 8)
    a.label(f"{pfx}_LOOP")
    stamp(a, 0)
    if w == 2: ag_poll(a, pfx, w)
    a.label(f"{pfx}_B0")
    if w < 2 and OPT('EARLYDMA', 1): a("s_waitcnt vmcnt(0)")
    a("s_waitcnt lgkmcnt(0)")
    a("s_barrier")
    mark(a, S_REF0)
    stamp(a, 1)
    if OPT('STEPTR', 0) and w == 1:
        a("s_waitcnt lgkmcnt(0)")
        a(f"v_mov_b32 v250, s{S_REF0}")
        a(f"s_lshl_b32 s86, s{S_J}, 8")
        a(f"s_lshl_b32 s87, s{S_STEP}, 2")
        a(f"s_add_u32 s86, s86, s87")
        a(f"s_add_u32 s86, s86, {TRACE + 65536}")
        a("v_mov_b32 v251, s86")
        a("s_mov_b64 exec, 1")
        a(f"buffer_store_dword v250, v251, s[{S_WS}:{S_WS+3}], 0 offen")
        a("s_mov_b64 exec, -1")
    proj_stage(a, 2, w8)
    for x in pack_pair(V_ACC, V_ACC+4, V_PK): a(x)
    store_mode(a, [f"buffer_store_dwordx2 {vr(V_PK,2)}, v{V_AST}, s[{S_WS}:{S_WS+3}], s{S_CUR} offen SCX"])
    stamp(a, 2)
    ED = OPT('EARLYDMA', 1)
    if ED and w < 2:
        a(f"s_cmp_lg_u32 s{S_STEP}, 0")
        a(f"s_cbranch_scc1 {pfx}_NOS1")
        kv_dma(a, flags, pfx, w)
        a("s_waitcnt vmcnt(0)")
        a.label(f"{pfx}_NOS1")
        a(f"s_cmp_ge_u32 s{S_STEP}, 62")
        a(f"s_cbranch_scc1 {pfx}_NOS2")
        kv_dma(a, flags, pfx, w)
        a.label(f"{pfx}_NOS2")
    elif not ED and (w < 2 or OPT('UXRD', 0)):
        a(f"s_cmp_lg_u32 s{S_STEP}, 0")
        a(f"s_cbranch_scc1 {pfx}_NOS1")
        if w < 2: kv_dma(a, flags, pfx, w)
        if OPT('UXRD', 0): ux_load(a, w, flags, pfx)
        a.label(f"{pfx}_NOS1")
    for t in range(nt):
        for r in range(4): a(f"v_mov_b32 v{V_Y+4*t+r}, 0")
    if ED:
        if w == 2:
            wait_mode(a, S_REF0, OPT('T_AF', 0), OPT('T_A', 1150))
            lds6 = [f"buffer_load_dwordx4 {vr(V_POLL+4*k) if k < 4 else vr(V_RSP+4*(k-4))}, v{AP6[k]}, s[{S_WS}:{S_WS+3}], s{S_CUR} offen sc1" for k in range(6)]
            a(f"s_mov_b32 s{S_RETRY}, 0")
            a.label(f"{pfx}_AP")
            for x in lds6: a(x)
            a("s_waitcnt vmcnt(0)")
            poll_check(a, list(range(V_POLL, V_POLL+16)) + list(range(V_RSP, V_RSP+8)), V_T)
            a(f"""s_cbranch_vccz {pfx}_AP_OK
s_add_u32 s{S_RETRY}, s{S_RETRY}, 1
s_cmp_lt_u32 s{S_RETRY}, s{S_MAXR}
s_cbranch_scc1 {pfx}_AP
s_mov_b32 s{S_MAXR}, 0""")
            a.label(f"{pfx}_AP_OK")
            racc(a, 93)
            for k in range(6):
                a(f"ds_write_b128 v{V_L16}, {vr(V_POLL+4*k) if k < 4 else vr(V_RSP+4*(k-4))} offset:{L_QKV + k*1024}")
    else:
        wait_mode(a, S_REF0, OPT('T_AF', 0), OPT('T_A', 1150))
        def mkA(b): return [f"buffer_load_dwordx4 {vr(b+4*k)}, v{V_APO+k}, s[{S_WS}:{S_WS+3}], s{S_CUR} offen sc1" for k in range(2)]
        def stA(b):
            a(f"ds_write_b128 v{V_APL}, {vr(b)}")
            a(f"ds_write_b128 v{V_APL}, {vr(b+4)} offset:1024")
        poll_loop(a, f"{pfx}_AP", mkA(V_POLL), 8, 93)
        stA(V_POLL)
    a("s_waitcnt lgkmcnt(0)")
    stamp(a, 3)
    a("s_barrier")
    stamp(a, 4)
    reads = []
    for p in range(6):
        for (reg, typ) in ((V_QF, 0), (V_KF, 1)):
            for k in range(2):
                reads.append(f"ds_read_b64_tr_b16 {vr(reg+4*p+2*k,2)}, v{V_RQ} offset:{typ*3072 + (2*p+k)*256}")
    vreads = [f"ds_read_b64_tr_b16 {vr(V_VF+4*K+2*k,2)}, v{V_RV} offset:{K*1024 + k*64}" for K in range(3) for k in range(2)]
    TWOB = OPT('TWOB', 1)
    if not TWOB: reads += vreads
    issued = 0
    def iss(n):
        nonlocal issued
        for _ in range(n):
            if issued < len(reads): a(reads[issued]); issued += 1
    iss(12)
    for p in range(6):
        a(f"s_waitcnt lgkmcnt({issued - (4*p+4)})")
        for u, A_ in enumerate((vr(V_KXF+4*p), vr(V_KXF+4*(6+p)), vr(V_KF+4*p))):
            d = V_S + (4 if u == 0 else 8 if u == 1 else 0)
            c = "0" if p == 0 else vr(d)
            a(f"v_mfma_f32_16x16x32_bf16 {vr(d)}, {A_}, {vr(V_QF+4*p)}, {c}")
        iss(4)
    if TWOB:
        a("s_barrier")
        if w == 2 or OPT('T_DMA', 0) > 0: mark(a, 96)
        for x in vreads: a(x)
    stamp(a, 5)
    ym = []
    for K in range(3):
        for t in range(nt):
            pre = f"s_waitcnt lgkmcnt({6 - (2*K + 2)})\n" if t == 0 else ""
            ym.append(pre + f"v_smfmac_f32_16x16x64_bf16 {vr(V_Y+4*t)}, {vr(V_VF+4*K)}, {wo8(t,K)}, v{V_IDX}")
    PT, PM, RS_, L1, L2 = softmax_lists()
    yc = [f"v_cvt_pk_bf16_f32 v{V_YF+2*t+k}, v{V_Y+4*t+2*k}, v{V_Y+4*t+2*k+1}" for t in range(nt) for k in range(2)]
    Y0 = OPT('Y0', 2)
    for i, x in enumerate(L1):
        if ym and i >= Y0: a(ym.pop(0))
        a(x)
    while ym: a(ym.pop(0))
    for t in range(nt):
        a(f"v_mfma_f32_16x16x32_bf16 {vr(V_PU+4*t)}, {vr(V_UXF+4*t)}, {vr(PT)}, 0")
        for _ in range(2):
            if yc: a(yc.pop(0))
    for t in range(nt):
        a(f"v_mfma_f32_16x16x16_bf16 {vr(V_PU+4*t)}, {vr(V_YF+2*t,2)}, {vr(PM,2)}, {vr(V_PU+4*t)}")
        for _ in range(4):
            if L2: a(L2.pop(0))
    while L2: a(L2.pop(0))
    a(f"v_mov_b32 v{RS_+1}, v{RS_}")
    for t in range(nt):
        for r in range(0, 4, 2): a(f"v_pk_mul_f32 {vr(V_PU+4*t+r,2)}, {vr(V_PU+4*t+r,2)}, {vr(RS_,2)}")
    for t in range(nt):
        a(f"v_cvt_pk_bf16_f32 v{V_RSP+2*t}, v{V_PU+4*t}, v{V_PU+4*t+1}")
        a(f"v_cvt_pk_bf16_f32 v{V_RSP+2*t+1}, v{V_PU+4*t+2}, v{V_PU+4*t+3}")
    a(f"s_add_u32 s{S_T}, s{S_CUR}, s{S_RSB}")
    a(f"s_mov_b64 exec, s[{S_M8}:{S_M8+1}]")
    for P in range(nt//2):
        if P > 0: a(f"s_add_u32 s{S_T}, s{S_T}, 32768")
        a(f"buffer_store_dwordx4 {vr(V_RSP+4*P)}, v{V_RSO}, s[{S_WS}:{S_WS+3}], s{S_T} offen sc1")
    if CURMODE[0] and RSLOC():
        a(f"s_xor_b32 s74, s{S_CUR}, 8192")
        for P in range(nt//2):
            a(f"s_add_u32 s{S_T}, s{76+P}, s74")
            a(f"buffer_store_dwordx4 {vr(V_RSP+4*P)}, v{V_RSOL}, s[{S_WS}:{S_WS+3}], s{S_T} offen")
    stamp(a, 6)
    a("s_mov_b64 exec, -1")
    LATEDMA = OPT('T_DMA', 0) > 0
    if (w < 2 or OPT('UXRD', 0)) and not OPT('NODMA', 0) and not LATEDMA and not OPT('EARLYDMA', 1):
        a(f"s_cmp_eq_u32 s{S_STEP}, 63")
        a(f"s_cbranch_scc1 {pfx}_NODMA")
        if OPT('UXRD', 0): ux_load(a, w, flags, pfx)
        if w < 2: kv_dma(a, flags, pfx, w)
        a.label(f"{pfx}_NODMA")
    a(f"s_mov_b64 exec, s[{S_M8}:{S_M8+1}]")
    a(f"s_cmp_lg_u32 s{S_C}, 0")
    a(f"s_cbranch_scc1 {pfx}_NOKM")
    for k in range(2 if not OPT('NOKM', 0) else 0):
        a(f"buffer_store_dwordx4 {vr(V_KF+4*(2*w+k))}, v{V_KMS}, s[{S_WS}:{S_WS+3}], s{S_KMG} offen offset:{k*512} sc1")
    a.label(f"{pfx}_NOKM")
    a("s_mov_b64 exec, -1")
    a(f"s_add_u32 s{S_KMG}, s{S_KMG}, {32*3072}")
    for t in range(nt):
        for r in range(4): a(f"v_mov_b32 v{V_PU+r}, v{V_Y+4*t+r}")
        for r in range(4): a(f"v_permlane32_swap_b32 v{V_Y+4*t+r}, v{V_PU+r}")
        for r in range(4): a(f"v_add_f32 v{V_Y+4*t+r}, v{V_Y+4*t+r}, v{V_PU+r}")
        a(f"v_cvt_pk_bf16_f32 v{V_YF+2*t}, v{V_Y+4*t}, v{V_Y+4*t+1}")
        a(f"v_cvt_pk_bf16_f32 v{V_YF+2*t+1}, v{V_Y+4*t+2}, v{V_Y+4*t+3}")
    a("s_mov_b32 exec_hi, 0")
    for t in range(nt if not OPT('NOUY', 0) else 0):
        a(f"buffer_store_dwordx2 {vr(V_YF+2*t,2)}, v{V_L4}, s[{S_WS}:{S_WS+3}], s{S_UYG} offen offset:{t*256} sc1")
    a("s_mov_b64 exec, -1")
    a(f"s_add_u32 s{S_UYG}, s{S_UYG}, {32*40*256}")
    if w == OPT('FLGW', 1) and not OPT('NOFLG', 0):
        a(f"v_mov_b32 v{V_T}, s{S_STEP}")
        a("s_mov_b64 exec, 1")
        a(f"buffer_store_dword v{V_T}, v{V_ZERO}, s[{S_WS}:{S_WS+3}], s{S_FLG} offen sc1")
        a(f"s_cmp_lg_u32 s{S_J}, 0")
        a(f"s_cbranch_scc1 {pfx}_NOPROG")
        a(f"s_mov_b32 s{S_T}, {F_RPROG}")
        a(f"buffer_store_dword v{V_T}, v{V_ZERO}, s[{S_WS}:{S_WS+3}], s{S_T} offen sc1")
        a.label(f"{pfx}_NOPROG")
        a("s_mov_b64 exec, -1")
    a(f"s_add_u32 s{S_STEP}, s{S_STEP}, 1")
    a(f"s_cmp_ge_u32 s{S_STEP}, 64")
    a(f"s_cbranch_scc1 {pfx}_DONE")
    stamp(a, 7)
    idle_phase(a, w, woq)
    if w < 2 and LATEDMA:
        wait_until(a, 96, OPT('T_DMA', 0))
        kv_dma(a, flags, pfx, w)
    if w == 2:
        a(f"s_cmp_eq_u32 s{S_RED}, 0")
        a(f"s_cbranch_scc1 {pfx}_NORED")
        wait_until(a, 96, OPT('T_RS', 1150))
        a(f"s_add_u32 s{S_T2}, s{S_CUR}, s{S_RSP}")
        reduce_blocks(a, pfx, 1, 240, 48, (S_T2,), V_AGS, 64, 80, s_loc0=(72,), s_loc=(74,), sqbase=64)
        a.label(f"{pfx}_NORED")
    rotate_slots(a)
    stamp_acc(a)
    if w == 2: mark(a, S_REF2)
    a(f"s_branch {pfx}_LOOP")
    a.label(f"{pfx}_DONE")
    a("s_waitcnt vmcnt(0)")
    a("s_barrier")
    if flags and w == 0:
        dbgt(a, 44, op="max")
        trace(a, 5, S_J)
        if int(os.environ.get('TRACE', 0)):
            a("s_memtime s[86:87]\ns_waitcnt lgkmcnt(0)")
            trace(a, 7, S_J, val=86)
    if w == OPT('FLGW', 1):
        a(f"v_mov_b32 v{V_T}, 64")
        a("s_mov_b64 exec, 1")
        a(f"buffer_store_dword v{V_T}, v{V_ZERO}, s[{S_WS}:{S_WS+3}], s{S_FLG} offen sc1")
        a(f"s_cmp_lg_u32 s{S_J}, 0")
        a(f"s_cbranch_scc1 {pfx}_NOPROG2")
        a(f"s_mov_b32 s{S_T}, {F_RPROG}")
        a(f"buffer_store_dword v{V_T}, v{V_ZERO}, s[{S_WS}:{S_WS+3}], s{S_T} offen sc1")
        a.label(f"{pfx}_NOPROG2")
        a("s_waitcnt vmcnt(0)")
        a("s_mov_b64 exec, -1")
    stamp_out(a, w)
    a("s_endpgm")

def stamp_acc(a):
    if not OPT('STAMP', 0): return
    a(f"s_memtime s[{S_TS+16}:{S_TS+17}]")
    a("s_waitcnt lgkmcnt(0)")
    for k in range(8):
        a(f"s_sub_u32 s{S_T}, s{S_TS+2*k+2}, s{S_TS+2*k}")
        a(f"s_add_u32 s{80+k}, s{80+k}, s{S_T}")

def stamp_out(a, w):
    if not OPT('STAMP', 0): return
    a.uid += 1
    L = f"STO_{w}_{a.uid}"
    a(f"""s_cmp_lg_u32 s{S_J}, {OPT('STAMPROLE', 0)}
s_cbranch_scc1 {L}
s_waitcnt lgkmcnt(0)
s_load_dwordx2 s[96:97], s[0:1], {KA['dbg']}
s_waitcnt lgkmcnt(0)
s_mov_b64 exec, 1""")
    for k in range(8):
        a(f"v_mov_b32 v10, s{80+k}\nv_mov_b32 v11, {64 + w*48 + k*4}\nglobal_store_dword v11, v10, s[96:97]\ns_waitcnt vmcnt(0)")
    if w == 0:
        a(f"v_mov_b32 v10, s95\nv_mov_b32 v11, 40\nglobal_store_dword v11, v10, s[96:97]\ns_waitcnt vmcnt(0)")
        a(f"v_mov_b32 v10, s101\nv_mov_b32 v11, 44\nglobal_store_dword v11, v10, s[96:97]\ns_waitcnt vmcnt(0)")
    for k in range(3):
        a(f"v_mov_b32 v10, s{92+k}\nv_mov_b32 v11, {64 + w*48 + 32 + k*4}\nglobal_store_dword v11, v10, s[96:97]\ns_waitcnt vmcnt(0)")
    a.label(L)

def common_setup(a, w):
    a(f"""v_lshlrev_b32 v{V_L16}, 4, v{V_LANE}
v_lshlrev_b32 v{V_L4}, 3, v{V_LANE}
v_mov_b32 v{V_ZERO}, 0
s_mov_b32 s{S_M8}, 0x00ff00ff
s_mov_b32 s{S_M8+1}, 0x00ff00ff
s_mov_b32 s{S_H8}, 0xff00ff00
s_mov_b32 s{S_H8+1}, 0xff00ff00
s_mov_b32 s{S_HI32}, 0
s_mov_b32 s{S_HI32+1}, -1
v_mov_b32 v{V_NINF}, 0xff800000
s_mov_b32 s{S_MQ}, 0x0000ffff
s_mov_b32 s{S_MQ+1}, 0x0000ffff
v_mov_b32 v{V_IDX}, 0x44444444
v_mov_b32 v{V_T}, 0xeeeeeeee
v_cndmask_b32 v{V_IDX}, v{V_IDX}, v{V_T}, s[{S_H8}:{S_H8+1}]
s_mov_b32 s{S_SCALE}, 0x{f2u(192**-0.5*1.4426950408889634):08x}
s_mov_b32 s{S_MAXR}, {OPT('MAXRETRY', 400000)}
s_mov_b32 s{S_STEP}, 0""")
    for k in range(8): a(f"s_mov_b32 s{80+k}, 0")
    for k in range(92, 95): a(f"s_mov_b32 s{k}, 0")
    if w >= 2:
        a(f"s_lshr_b32 s{S_T}, s{S_J}, 5")
        a(f"s_mul_i32 s{S_T}, s{S_T}, 10240")
        a(f"s_add_u32 s{S_T}, s{S_T}, {AG_LOG + (w-2)*5120}")
        for k in range(5):
            a(f"v_add_u32 v{V_AGP+k}, s{S_T}, v{V_L16}")
            if k: a(f"v_add_u32 v{V_AGP+k}, {k*1024}, v{V_AGP+k}")
            nearmap_v(a, V_AGP+k, V_T2)
    a(f"v_add_u32 v{V_AGL}, {L_MEM + w*2560}, v{V_L16}")

V_M0 = 200
def mem0_stage(a, w):
    a(f"ds_write_b128 v{V_AGL}, {vr(V_M0)}")
    a(f"ds_write_b128 v{V_AGL}, {vr(V_M0+4)} offset:1024")
    a("s_mov_b32 exec_hi, 0")
    a(f"ds_write_b128 v{V_AGL}, {vr(V_M0+8)} offset:2048")
    a("s_mov_b64 exec, -1")

def mem0_load(a, w):
    for k in range(3):
        a(f"""v_add_u32 v{V_T}, {160*w + 64*k}, v{V_LANE}
v_and_b32 v{V_T2}, 7, v{V_T}
v_mul_u32_u24 v{V_T2}, 1280, v{V_T2}
v_lshrrev_b32 v{V_M0+12}, 5, v{V_T}
v_lshlrev_b32 v{V_M0+12}, 6, v{V_M0+12}
v_add_u32 v{V_T2}, v{V_T2}, v{V_M0+12}
v_bfe_u32 v{V_T}, v{V_T}, 3, 2
v_lshlrev_b32 v{V_T}, 3, v{V_T}
v_add_u32 v{V_T}, v{V_T}, v{V_T2}""")
        a(f"buffer_load_dwordx2 {vr(V_M0+4*k,2)}, v{V_T}, s[{S_M0}:{S_M0+3}], 0 offen")
        a(f"buffer_load_dwordx2 {vr(V_M0+4*k+2,2)}, v{V_T}, s[{S_M0}:{S_M0+3}], 0 offen offset:32")

def service_wave(a):
    w = 3; pfx = "RS3"
    wreg = WReg(0, 256, 0)
    mem0_load(a, w)
    a(f"s_lshl_b32 s{S_LB}, s{S_WAVE}, 15")
    if OPT('COOP', 1):
        coop_load(a, w, wreg)
    else:
        a(f"""s_mul_i32 s{S_COL}, s{S_H}, 384
s_mul_i32 s{S_T}, s{S_C}, 96
s_add_u32 s{S_COL}, s{S_COL}, s{S_T}""")
        units = [(S_WV, S_COL, t*32 + p*32*H*E*2) for p in range(20) for t in range(3)]
        load_w2(a, units, lambda u, T, k: wreg.pair((u % 3)*20 + u // 3, k), 1, H*E*2, 2, V_LANE, V_POLL, V_POLL+1, V_T, S_T, S_LB)
    common_setup(a, w)
    PQ = V_KXF; PV_ = V_KXF+2; R = V_KXF+6; SEL = V_KXF+8; ONES = V_KXF+12; AGZ = V_KXF+7; RSO2 = V_KXF+5
    a(f"""v_lshrrev_b32 v{V_AST}, 1, v{V_G}
v_lshlrev_b32 v{V_AST}, 8, v{V_AST}
v_lshlrev_b32 v{V_T}, 4, v{V_N}
v_add_u32 v{V_AST}, v{V_AST}, v{V_T}
v_and_b32 v{V_T}, 1, v{V_G}
v_lshlrev_b32 v{V_T}, 3, v{V_T}
v_add_u32 v{V_AST}, v{V_AST}, v{V_T}
v_lshlrev_b32 v{V_AST+1}, 4, v{V_N}
v_add_u32 v{V_AST+1}, v{V_AST+1}, v{V_T}
s_mul_i32 s{S_T2}, s{S_H}, 9216
s_mul_i32 s{S_T}, s{S_C}, 768
s_add_u32 s{S_T}, s{S_T}, s{S_T2}
v_add_u32 v{PQ}, s{S_T}, v{V_L16}
v_add_u32 v{PQ+1}, 3072, v{PQ}
v_add_u32 v{PV_}, 6144, v{PQ}
s_add_u32 s{S_T}, s{S_T}, 6144
v_add_u32 v{V_AST}, s{S_T}, v{V_AST}
v_add_u32 v{V_AST+1}, s{S_T}, v{V_AST+1}
v_add_u32 v{V_AST+1}, 512, v{V_AST+1}""")
    for r in (V_AST, V_AST+1, PV_, PQ, PQ+1): nearmap_v(a, r, V_T)
    oob_mask(a, PV_, 48); oob_mask(a, PQ+1, 48); oob_mask(a, PQ, 48); oob_mask(a, V_AST+1, 32)
    for k in range(3):
        a(f"v_add_u32 v{V_APO+k}, s{S_T2}, v{V_L16}")
        a(f"v_add_u32 v{V_APO+k}, {6144 + k*1024}, v{V_APO+k}")
        nearmap_v(a, V_APO+k, V_T)
    a(f"v_add_u32 v{V_APL}, {L_QKV + 6144}, v{V_L16}")
    rs_lane(a, R)
    a(f"""s_mul_i32 s{S_RSB}, s{S_C}, {5*32768}
s_add_u32 s{S_RSB}, s{S_RSB}, {nearmap(RS_LOG)}
s_and_b32 s{S_COL}, s{S_J}, 31""")
    blk_off(a, S_COL, S_RSP, S_T)
    loc_off(a, S_COL, 72, S_T)
    a(f"s_add_u32 s{S_COL}, s{S_COL}, 32")
    blk_off(a, S_COL, S_RED, S_T)
    loc_off(a, S_COL, 73, S_T)
    rs_local_lane(a, V_RSOL)
    a(f"""s_lshr_b32 s77, s{S_J}, 5
s_mul_i32 s77, s77, 81920
s_mul_i32 s{S_T}, s{S_C}, {5*4096}
s_add_u32 s77, s77, s{S_T}""")
    a(f"""s_lshr_b32 s{S_T}, s{S_J}, 5
s_mul_i32 s{S_T}, s{S_T}, 10240
s_add_u32 s{S_T}, s{S_T}, {AG_LOG}
s_and_b32 s{S_T2}, s{S_J}, 31
s_lshl_b32 s{S_T3}, s{S_T2}, 7
s_add_u32 s{S_T}, s{S_T}, s{S_T3}
v_lshrrev_b32 v{V_AGS}, 3, v{V_LANE}
v_lshlrev_b32 v{V_AGS}, 12, v{V_AGS}
v_and_b32 v{V_T}, 7, v{V_LANE}
v_lshlrev_b32 v{V_T}, 4, v{V_T}
v_add_u32 v{V_AGS}, v{V_AGS}, v{V_T}
v_add_u32 v{V_AGS}, s{S_T}, v{V_AGS}""")
    nearmap_v(a, V_AGS, V_T)
    a(f"v_mov_b32 v{AGZ}, v{V_AGS}")
    a(f"""v_bfe_u32 v{V_AGS}, v{V_LANE}, 3, 1
v_lshlrev_b32 v{V_AGS}, 12, v{V_AGS}
v_and_b32 v{V_T}, 7, v{V_LANE}
v_lshlrev_b32 v{V_T}, 4, v{V_T}
v_add_u32 v{V_AGS}, v{V_AGS}, v{V_T}
v_lshlrev_b32 v{V_T}, 3, v{V_G}
v_add_u32 v{V_AGS}, v{V_AGS}, v{V_T}
s_lshr_b32 s{S_T}, s{S_J}, 5
s_mul_i32 s{S_T}, s{S_T}, 10240
s_add_u32 s{S_T}, s{S_T}, {AG_LOG}
s_add_u32 s{S_T}, s{S_T}, s{S_T3}
v_add_u32 v{V_AGS}, s{S_T}, v{V_AGS}""")
    nearmap_v(a, V_AGS, V_T)
    oob_mask(a, V_AGS, 32)
    a(f"""v_mov_b32 v{RSO2}, s{S_RSP}
v_mov_b32 v{V_T}, s{S_RED}
v_cndmask_b32 v{RSO2}, v{RSO2}, v{V_T}, s[{S_H8}:{S_H8+1}]
v_lshlrev_b32 v{V_T}, 7, v{V_G}
v_add_u32 v{RSO2}, v{RSO2}, v{V_T}
v_and_b32 v{V_T}, 7, v{V_LANE}
v_lshlrev_b32 v{V_T}, 4, v{V_T}
v_add_u32 v{RSO2}, v{RSO2}, v{V_T}""")
    a(f"s_cmp_lt_u32 s{S_T2}, 16")
    a(f"s_cselect_b32 s{S_T}, 24, 16")
    a(f"v_mov_b32 v{V_T}, 0x80000000")
    a(f"v_cmp_gt_u32 vcc, s{S_T}, v{V_LANE}")
    a(f"v_cndmask_b32 v{AGZ}, v{V_T}, v{AGZ}, vcc")
    sel_setup(a, SEL)
    for k in range(4): a(f"v_mov_b32 v{ONES+k}, -1")
    a(f"v_mov_b32 v{ONES+4}, 1")
    read_polarity(a, pfx)
    a("s_barrier")
    mem0_stage(a, w)
    a("s_waitcnt vmcnt(0) lgkmcnt(0)")
    a("s_barrier")
    stamp(a, 0)
    pfx0 = pfx
    a(f"s_cmp_eq_u32 s{S_MODE}, 0")
    a(f"s_cbranch_scc1 {pfx0}S_B0")
    a(f"s_branch {pfx0}F_B0")
    for mode in (1, 0):
        CURMODE[0] = mode
        pfx = pfx0 + ("F" if mode else "S")
        service_loop(a, pfx, PQ, PV_, R, SEL, ONES, AGZ, RSO2)
    CURMODE[0] = None

def service_loop(a, pfx, PQ, PV_, R, SEL, ONES, AGZ, RSO2):
    a.label(f"{pfx}_LOOP")
    stamp(a, 0)
    ag_poll(a, pfx, 3)
    a.label(f"{pfx}_B0")
    a("s_waitcnt lgkmcnt(0)")
    a("s_barrier")
    mark(a, S_REF0)
    stamp(a, 1)
    SP = 140
    w8s = lambda t, K: ar((t*20 + 2*K)*4, 8)
    for K in range(10):
        a(f"ds_read_b128 {vr(V_RING+4*K)}, v{V_L16} offset:{L_MEM + K*1024}")
    for r in range(12): a(f"v_mov_b32 v{V_ACC+r}, 0")
    for K in range(10):
        a(f"s_waitcnt lgkmcnt({9-K})")
        for t in range(2):
            a(f"v_smfmac_f32_16x16x64_bf16 {vr(V_ACC+4*t)}, {vr(V_RING+4*K)}, {w8s(t,K)}, v{V_IDX}")
    P01 = pack_pair(V_ACC, V_ACC+4, SP)
    for K in range(10):
        a(f"v_smfmac_f32_16x16x64_bf16 {vr(V_ACC+8)}, {vr(V_RING+4*K)}, {w8s(2,K)}, v{V_IDX}")
        if K >= 2 and P01: a(P01.pop(0))
        if K >= 6 and P01: a(P01.pop(0))
    while P01: a(P01.pop(0))
    store_mode(a, [f"buffer_store_dwordx2 {vr(SP,2)}, v{V_AST}, s[{S_WS}:{S_WS+3}], s{S_CUR} offen SCX"])
    for r in range(4): a(f"v_mov_b32 v{SP+8+r}, v{V_ACC+8+r}")
    for x in pack_pair(V_ACC+8, SP+8, SP+4): a(x)
    store_mode(a, [f"buffer_store_dwordx2 {vr(SP+4,2)}, v{V_AST+1}, s[{S_WS}:{S_WS+3}], s{S_CUR} offen SCX"])
    stamp(a, 2)
    wait_mode(a, S_REF0, OPT('T_VF', 1300), OPT('T_V', 1500))
    loads = [f"buffer_load_dwordx4 {vr(V_POLL+4*k)}, v{V_APO+k}, s[{S_WS}:{S_WS+3}], s{S_CUR} offen sc1" for k in range(3)]
    if OPT('TWOB', 1):
        for x in loads: a(x)
        stamp(a, 3)
        a("s_barrier")
        stamp(a, 4)
        def stV():
            for k in range(3):
                a(f"ds_write_b128 v{V_APL}, {vr(V_POLL+4*k)} offset:{k*1024}")
        if OPT('SPEC', 0): poll_loop(a, f"{pfx}_VP", loads, 12, 93, pre_issued=True, spec=stV)
        else:
            poll_loop(a, f"{pfx}_VP", loads, 12, 93, pre_issued=True)
            stV()
        a("s_waitcnt lgkmcnt(0)")
        a("s_barrier")
        mark(a, 96)
        stamp(a, 5)
    else:
        poll_loop(a, f"{pfx}_VP", loads, 12, 93)
        for k in range(3):
            a(f"ds_write_b128 v{V_APL}, {vr(V_POLL+4*k)} offset:{k*1024}")
        a("s_waitcnt lgkmcnt(0)")
        stamp(a, 3)
        a("s_barrier")
        mark(a, 96)
        stamp(a, 4)
        stamp(a, 5)
    a(f"s_cmp_eq_u32 s{S_STEP}, 63")
    a(f"s_cbranch_scc1 {pfx}_DONE")
    store_mode(a, [f"buffer_store_dwordx4 {vr(ONES)}, v{r}, s[{S_WS}:{S_WS+3}], s{S_NN} offen SCX" for r in (PQ, PQ+1, PV_)])
    a(f"s_add_u32 s{S_T}, s{S_NN}, s{S_RSB}")
    a(f"s_mov_b64 exec, s[{S_M8}:{S_M8+1}]")
    for P in range(5):
        if P > 0: a(f"s_add_u32 s{S_T}, s{S_T}, 32768")
        a(f"buffer_store_dwordx4 {vr(ONES)}, v{R}, s[{S_WS}:{S_WS+3}], s{S_T} offen sc1")
    if CURMODE[0] and RSLOC():
        a(f"s_xor_b32 s74, s{S_NN}, 8192")
        for P in range(5):
            a(f"s_add_u32 s{S_T}, s77, {P*4096}")
            smap(a, S_T, S_T2)
            a(f"s_add_u32 s{S_T}, s{S_T}, s74")
            a(f"buffer_store_dwordx4 {vr(ONES)}, v{V_RSOL}, s[{S_WS}:{S_WS+3}], s{S_T} offen")
    a("s_mov_b64 exec, -1")
    store_mode(a, [f"buffer_store_dwordx4 {vr(ONES)}, v{AGZ}, s[{S_WS}:{S_WS+3}], s{S_NN} offen SCX"])
    stamp(a, 6)
    wait_until(a, 96, OPT('T_RS', 1150))
    if OPT('RED2', 1):
        reduce2(a, pfx, SEL, 32, RSO2, V_AGS, 64, 160)
    else:
        raise SystemExit("RED2=0 no longer supported")
    a(f"s_add_u32 s{S_STEP}, s{S_STEP}, 1")
    a(f"s_cmp_ge_u32 s{S_STEP}, 64")
    a(f"s_cbranch_scc1 {pfx}_DONE")
    rotate_slots(a)
    stamp_acc(a)
    mark(a, S_REF2)
    a(f"s_branch {pfx}_LOOP")
    a.label(f"{pfx}_DONE")
    a("s_waitcnt vmcnt(0)")
    a("s_barrier")
    stamp_out(a, 3)
    a("s_endpgm")

def rec_entry(a):
    a(f"""s_load_dwordx4 s[64:67], s[0:1], {KA['wq']}
s_load_dwordx4 s[68:71], s[0:1], {KA['wv']}
s_load_dwordx2 s[72:73], s[0:1], {KA['mem0']}
s_waitcnt lgkmcnt(0)""")
    srd(a, S_WQ, 64, D*H*E*2); srd(a, S_WK, 66, D*H*E*2); srd(a, S_WV, 68, D*H*E*2); srd(a, S_WO, 70, D*H*E*2)
    srd(a, S_M0, 72, M*D*2)
    a(f"s_lshr_b32 s{S_H}, s{S_J}, 2\ns_and_b32 s{S_C}, s{S_J}, 3")

def probe(a, s_k, s_xcc, lbl, s_dbg):
    a(f"""s_mov_b64 exec, 1
v_mov_b32 v10, -1
s_lshl_b32 s{S_T}, s{s_k}, 21
s_add_u32 s{S_T}, s{S_T}, {RING + PROBE_OFF}
v_mov_b32 v11, s{S_T}
v_add_u32 v13, 8192, v11
s_mov_b32 s{S_T2}, 0
s_mov_b32 s84, -1
s_mov_b32 s85, -1""")
    a.label(f"{lbl}_R")
    a(f"""buffer_store_dword v10, v11, s[{S_WS}:{S_WS+3}], 0 offen sc1
buffer_store_dword v10, v13, s[{S_WS}:{S_WS+3}], 0 offen sc1
s_waitcnt vmcnt(0)
s_sleep 6""")
    for hsel in range(2):
        a(f"""s_memtime s[80:81]
s_waitcnt lgkmcnt(0)
buffer_load_dword v12, v{11 if hsel == 0 else 13}, s[{S_WS}:{S_WS+3}], 0 offen sc1
s_waitcnt vmcnt(0)
s_memtime s[82:83]
s_waitcnt lgkmcnt(0)
s_sub_u32 s{86+hsel}, s82, s80""")
    a(f"""s_min_u32 s84, s84, s86
s_min_u32 s85, s85, s87
s_add_u32 s{S_T2}, s{S_T2}, 1
s_cmp_lt_u32 s{S_T2}, {OPT('PROBE_N', 7)}
s_cbranch_scc1 {lbl}_R
s_cmp_lt_u32 s85, s84
s_cselect_b32 s{S_T3}, 1, 0
s_lshr_b32 s{S_T}, s{s_xcc}, 2
s_xor_b32 s{S_T3}, s{S_T3}, s{S_T}
s_and_b32 s{S_T3}, s{S_T3}, 1
s_or_b32 s{S_T3}, s{S_T3}, 2
s_lshl_b32 s{S_T}, s{s_k}, 1
s_lshl_b32 s{S_T3}, s{S_T3}, s{S_T}
v_mov_b32 v10, s{S_T3}
v_mov_b32 v11, {DB_POL}
global_atomic_or v11, v10, s[{s_dbg}:{s_dbg+1}] sc1
s_waitcnt vmcnt(0)
s_mov_b64 exec, -1""")

def rec_dispatch(a, flags=False):
    a(f"""s_cmp_eq_u32 s{S_WAVE}, 0
s_cbranch_scc1 RK_W0
s_cmp_eq_u32 s{S_WAVE}, 1
s_cbranch_scc1 RK_W1
s_cmp_eq_u32 s{S_WAVE}, 2
s_cbranch_scc1 RK_W2
s_branch RK_W3""")
    for w in range(3):
        a.label(f"RK_W{w}")
        main_wave(a, w, flags)
    a.label("RK_W3")
    service_wave(a)

def gen_rec_kernel():
    a = Asm(); name = "rec_kernel"
    kernel_header(a, name)
    if OPT('STAMP', 0): a("s_memtime s[100:101]")
    a(f"""s_cmp_ge_u32 s2, 256
s_cbranch_scc1 RK_END
s_load_dwordx2 s[74:75], s[0:1], {KA['ws']}
s_load_dwordx2 s[76:77], s[0:1], {KA['dbg']}
s_getreg_b32 s78, hwreg(HW_REG_XCC_ID)
s_and_b32 s78, s78, 15
s_waitcnt lgkmcnt(0)""")
    srd(a, S_WS, 74, WS_SIZE)
    lane_setup(a, V_LANE, V_G, V_N, S_WAVE)
    a(f"""s_cmp_lg_u32 s{S_WAVE}, 0
s_cbranch_scc1 RK_NORANK
v_mov_b32 v10, 1
s_lshl_b32 s79, s78, 2
v_mov_b32 v11, s79
s_mov_b64 exec, 1
global_atomic_add v12, v11, v10, s[76:77] sc0 sc1
s_waitcnt vmcnt(0)
v_mov_b32 v11, 0
ds_write_b32 v11, v12
s_waitcnt lgkmcnt(0)
s_mov_b64 exec, -1""")
    a.label("RK_NORANK")
    a(f"""s_barrier
v_mov_b32 v11, 0
ds_read_b32 v12, v11
s_waitcnt lgkmcnt(0)
v_readfirstlane_b32 s79, v12
s_barrier
s_cmp_lt_u32 s78, 4
s_cbranch_scc1 RK_REC
s_cmp_lg_u32 s78, 4
s_cbranch_scc1 RK_END
s_cmp_ge_u32 s79, 4
s_cbranch_scc1 RK_END
s_cmp_lg_u32 s{S_WAVE}, 0
s_cbranch_scc1 RK_END""")
    probe(a, 79, 78, "RK_PR", 76)
    a("s_endpgm")
    a.label("RK_REC")
    a(f"""s_cmp_ge_u32 s79, 32
s_cbranch_scc1 RK_END
s_lshl_b32 s{S_J}, s78, 5
s_add_u32 s{S_J}, s{S_J}, s79""")
    rec_entry(a)
    rec_dispatch(a)
    a.label("RK_END")
    a("s_endpgm")
    return name, a.finalize(), kernel_desc(name, 512, 102, 256)

def read_polarity(a, pfx):
    a(f"s_load_dwordx2 s[96:97], s[0:1], {KA['dbg']}")
    a(f"v_and_b32 v{V_T2}, 15, v{V_LANE}")
    a(f"v_lshlrev_b32 v{V_T2}, 2, v{V_T2}")
    a(f"s_mov_b32 s{S_RETRY}, 0")
    a("s_waitcnt lgkmcnt(0)")
    a.label(f"{pfx}_MD")
    a(f"global_load_dword v{V_T}, v{V_T2}, s[96:97] sc1")
    a("s_waitcnt vmcnt(0)")
    a(f"s_mov_b32 s{S_T}, 0")
    a(f"s_mov_b32 s{S_MODE}, 1")
    for x in range(8):
        a(f"v_readlane_b32 s{S_T2}, v{V_T}, {x}")
        a(f"s_add_u32 s{S_T}, s{S_T}, s{S_T2}")
        a(f"s_cmp_eq_u32 s{S_T2}, 32")
        a(f"s_cselect_b32 s{S_MODE}, s{S_MODE}, 0")
    a(f"v_readlane_b32 s{S_T2}, v{V_T}, {DB_INIT//4}")
    a(f"v_readlane_b32 s{S_T3}, v{V_T}, {DB_POL//4}")
    a(f"s_cmp_ge_u32 s{S_T}, 256")
    a(f"s_cbranch_scc0 {pfx}_MDN")
    if INITWAIT[0]:
        a(f"s_cmp_ge_u32 s{S_T2}, 80")
        a(f"s_cbranch_scc0 {pfx}_MDN")
    a(f"s_and_b32 s{S_T}, s{S_T3}, 0xaa")
    a(f"s_cmp_eq_u32 s{S_T}, 0xaa")
    a(f"s_cbranch_scc1 {pfx}_POLOK")
    a.label(f"{pfx}_MDN")
    a(f"""s_sleep 4
s_add_u32 s{S_RETRY}, s{S_RETRY}, 1
s_cmp_lt_u32 s{S_RETRY}, 0x200000
s_cbranch_scc1 {pfx}_MD
s_mov_b32 s{S_MODE}, 0""")
    a.label(f"{pfx}_POLOK")
    if OPT('FORCESLOW', 0): a(f"s_mov_b32 s{S_MODE}, 0")
    a(f"""s_and_b32 s{S_T}, s{S_T3}, 0x55
s_xor_b32 s{S_T}, s{S_T}, 0x44
s_bcnt1_i32_b32 s{S_T2}, s{S_T}
s_cmp_ge_u32 s{S_T2}, 3
s_cselect_b32 s{S_T}, 0x55, s{S_T}
s_cmp_le_u32 s{S_T2}, 1
s_cselect_b32 s{S_T}, 0, s{S_T}
s_xor_b32 s{S_T3}, s{S_T}, 0x44""")
    if OPT('FLIPPOL', 0): a(f"s_xor_b32 s{S_T3}, s{S_T3}, 0x55")
    for k, s in enumerate((S_CUR, S_N, S_NN, S_P)):
        a(f"""s_bfe_u32 s{S_T}, s{S_T3}, {(1<<16) | (2*k)}
s_lshl_b32 s{S_T}, s{S_T}, 13
s_add_u32 s{s}, s{S_T}, {RING + k*RING_SLOT}""")
```

```python
from gen_common import *
import struct, os
OPT=lambda k,d: type(d)(os.environ.get(k,d))
def f2u(f): return struct.unpack('<I', struct.pack('<f', f))[0]

S_WS=4; S_WQ=8; S_WK=12; S_WV=16; S_WO=20
S_WAVE=24; S_H=25; S_C=26; S_J=27; S_STEP=28
S_P=29; S_CUR=30; S_N=31; S_NN=32
S_HI32=20
S_MQ=16
S_M8=34; S_H8=38
S_T=40; S_T2=41; S_T3=42; S_RETRY=43
S_KVG=44; S_UXG=45; S_UYG=46; S_KMG=47; S_RSB=48; S_KVL=49; S_KVR=50; S_RED=51; S_RSP=52; S_FLG=53
S_LB=54
S_COL=56
S_SCALE=60; S_MAXR=61
S_TS=62
S_M0=88
S_MODE=57
S_REF0=98
S_REF2=36
S_NOW=58
L_MEM=0; L_QKV=10240; L_KV=20480; KVB=24576
LDS_REC=131072
V_LANE=1; V_G=2; V_N=3; V_T=4; V_T2=5; V_L16=6
V_AGO=7; V_AGL=10; V_MRD=11; V_AGP=23
V_RSL=7
V_AST=12; V_KMS=15; V_APO=16; V_APL=19
V_RQ=20; V_IDX=21; V_RV=22; V_RSO=28; V_L4=29; V_AGS=30; V_ZERO=31
V_RSP=80
V_NINF=248; V_KVA=249
V_POLL=32; V_RING=48; V_ACC=88; V_PK=252; V_KXF=100; V_QF=148; V_KF=172; V_VF=196; V_S=220; V_UXF=232
V_Y=48; V_PU=64; V_UA=48; V_YF=220; V_SM=148
NT = [4, 4, 2]; T0 = [0, 4, 8]; P0 = [0, 2, 4]
KVX = L_KV ^ (L_KV+KVB)

def poll_check(a, regs, vt):
    r = list(regs)
    a(f"v_max3_u32 v{vt}, v{r[0]}, v{r[1]}, v{r[2]}")
    i = 3
    while i < len(r):
        if i + 1 < len(r):
            a(f"v_max3_u32 v{vt}, v{vt}, v{r[i]}, v{r[i+1]}"); i += 2
        else:
            a(f"v_max_u32 v{vt}, v{vt}, v{r[i]}"); i += 1
    a(f"v_cmp_eq_u32 vcc, -1, v{vt}")

def sleep(a, n):
    while n > 0:
        k = min(n, 127); a(f"s_sleep {k}"); n -= k

def mark(a, reg):
    a(f"s_memtime s[{reg}:{reg+1}]")

def wait_until(a, ref, delta):
    if delta <= 0: return
    a.uid += 1
    L = f"WU_{a.uid}"
    a.label(L)
    a(f"""s_memtime s[{S_NOW}:{S_NOW+1}]
s_waitcnt lgkmcnt(0)
s_sub_u32 s{S_NOW}, s{S_NOW}, s{ref}
s_cmp_ge_u32 s{S_NOW}, {delta}
s_cbranch_scc1 {L}_D
s_sub_u32 s{S_NOW}, {delta}, s{S_NOW}
s_cmp_lt_u32 s{S_NOW}, 96
s_cbranch_scc1 {L}
s_sleep 1
s_branch {L}""")
    a.label(f"{L}_D")

def stamp(a, idx):
    if OPT('STAMP', 0):
        a(f"s_memtime s[{S_TS+2*idx}:{S_TS+2*idx+1}]")

def racc(a, k):
    if OPT('STAMP', 0): a(f"s_add_u32 s{k}, s{k}, s{S_RETRY}")

def nearmap_v(a, v, vt):
    a(f"""v_lshrrev_b32 v{vt}, 13, v{v}
v_lshlrev_b32 v{vt}, 14, v{vt}
v_and_b32 v{v}, 0x1fff, v{v}
v_or_b32 v{v}, v{v}, v{vt}""")

def oob_mask(a, v, nlanes):
    a(f"""v_mov_b32 v{V_T}, 0x80000000
v_cmp_gt_u32 vcc, {nlanes}, v{V_LANE}
v_cndmask_b32 v{v}, v{V_T}, v{v}, vcc""")

V_AGB=48
def poll_loop(a, lbl, loads, nreg, acc, pre_issued=False, base=None, spec=None):
    a(f"s_mov_b32 s{S_RETRY}, 0")
    if pre_issued:
        a(f"s_branch {lbl}_W")
    a.label(lbl)
    for x in loads: a(x)
    if pre_issued: a.label(f"{lbl}_W")
    a("s_waitcnt vmcnt(0)")
    if spec: spec()
    b0 = V_POLL if base is None else base
    poll_check(a, range(b0, b0+nreg), V_T)
    a(f"""s_cbranch_vccz {lbl}_OK
s_add_u32 s{S_RETRY}, s{S_RETRY}, 1
s_cmp_lt_u32 s{S_RETRY}, s{S_MAXR}
s_cbranch_scc1 {lbl}
s_mov_b32 s{S_MAXR}, 0""")
    a.label(f"{lbl}_OK")
    racc(a, acc)

CURMODE = [None]
def RSLOC(): return OPT('RSLOC', 0) and not OPT('STAMP', 0)
INITWAIT = [False]
def store_mode(a, lines):
    if CURMODE[0] is not None:
        for x in lines: a(x.replace(' SCX', '' if CURMODE[0] else ' sc1'))
        return
    if OPT('AFAST', 1) == 0:
        for x in lines: a(x.replace(' SCX', ' sc1'))
        return
    a.uid += 1
    L = f"SM_{a.uid}"
    a(f"s_cmp_eq_u32 s{S_MODE}, 0")
    a(f"s_cbranch_scc1 {L}_S")
    for x in lines: a(x.replace(' SCX', ''))
    a(f"s_branch {L}_E")
    a.label(f"{L}_S")
    for x in lines: a(x.replace(' SCX', ' sc1'))
    a.label(f"{L}_E")

def wait_mode(a, ref, fast, slow):
    if CURMODE[0] is not None:
        wait_until(a, ref, fast if CURMODE[0] else slow); return
    if OPT('AFAST', 1) == 0:
        wait_until(a, ref, slow); return
    a.uid += 1
    L = f"WM_{a.uid}"
    a(f"s_cmp_eq_u32 s{S_MODE}, 0")
    a(f"s_cbranch_scc1 {L}_S")
    wait_until(a, ref, fast)
    a(f"s_branch {L}_E")
    a.label(f"{L}_S")
    wait_until(a, ref, slow)
    a.label(f"{L}_E")

def poll2(a, lbl, mk_loads, nreg, baseA, baseB, acc, stage, gap=2):
    LA = mk_loads(baseA); LB = mk_loads(baseB); n = len(LA)
    a(f"s_mov_b32 s{S_RETRY}, 0")
    for x in LA: a(x)
    if gap: a(f"s_sleep {gap}")
    a.label(lbl)
    for x in LB: a(x)
    a(f"s_waitcnt vmcnt({n})")
    poll_check(a, range(baseA, baseA+nreg), V_T)
    a(f"s_cbranch_vccz {lbl}_GA")
    for x in LA: a(x)
    a(f"s_waitcnt vmcnt({n})")
    poll_check(a, range(baseB, baseB+nreg), V_T)
    a(f"""s_cbranch_vccz {lbl}_GB
s_add_u32 s{S_RETRY}, s{S_RETRY}, 1
s_cmp_lt_u32 s{S_RETRY}, s{S_MAXR}
s_cbranch_scc1 {lbl}
s_mov_b32 s{S_MAXR}, 0""")
    a.label(f"{lbl}_GB")
    racc(a, acc)
    stage(baseB)
    a(f"s_branch {lbl}_E")
    a.label(f"{lbl}_GA")
    racc(a, acc)
    stage(baseA)
    a.label(f"{lbl}_E")

def ag_poll(a, pfx, w):
    wait_mode(a, S_REF2, OPT('T_AGF', 0), OPT('T_AG', 650))
    base = (w-2)*5
    def mk(b): return [f"buffer_load_dwordx4 {vr(b+4*k)}, v{V_AGP+k}, s[{S_WS}:{S_WS+3}], s{S_P} offen sc1" for k in range(5)]
    def stage(b):
        for k in range(5):
            a(f"ds_write_b128 v{V_L16}, {vr(b+4*k)} offset:{L_MEM + (base+k)*1024}")
    if CURMODE[0] and OPT('POLL2', 0):
        poll2(a, f"{pfx}_AGP", mk, 20, 172, 196, 92, stage, gap=OPT('GAPD', 2))
    else:
        if OPT('SPEC', 0): poll_loop(a, f"{pfx}_AGP", mk(V_AGB), 20, 92, base=V_AGB, spec=lambda: stage(V_AGB))
        else:
            poll_loop(a, f"{pfx}_AGP", mk(V_AGB), 20, 92, base=V_AGB)
            stage(V_AGB)

def reduce_blocks(a, pfx, nb, SEL, base_reg, s_poll, v_ags, acc, apk, s_loc0=None, s_loc=None, sqbase=None):
    loads = []
    LOCAL = CURMODE[0] and RSLOC()
    if LOCAL:
        a(f"s_lshr_b32 s{S_NOW}, s{S_J}, 5")
        a(f"s_xor_b32 s{S_NOW+1}, s{S_CUR}, 8192")
        for b in range(nb):
            a(f"s_add_u32 s{s_loc[b]}, s{s_loc0[b]}, s{S_NOW+1}")
        for b in range(nb):
            for q in range(4):
                sq = sqbase + 4*b + q
                a(f"s_add_u32 s{sq}, s{s_poll[b]}, {q*1024}")
                a(f"s_cmp_eq_u32 s{S_NOW}, {q}")
                a(f"s_cselect_b32 s{sq}, s{s_loc[b]}, s{sq}")
                loads.append(f"buffer_load_dwordx4 {vr(base_reg+16*b+4*q)}, v{V_L16}, s[{S_WS}:{S_WS+3}], s{sq} offen sc1")
    else:
        for b in range(nb):
            for q in range(4):
                loads.append(f"buffer_load_dwordx4 {vr(base_reg+16*b+4*q)}, v{V_L16}, s[{S_WS}:{S_WS+3}], s{s_poll[b]} offen offset:{q*1024} sc1")
    poll_loop(a, f"{pfx}_RP", loads, 16*nb, 94, base=base_reg)
    stamp(a, 7)
    for q in range(4):
        for b in range(nb):
            c = "0" if q == 0 else vr(acc+8*b)
            a(f"v_mfma_f32_16x16x32_bf16 {vr(acc+8*b)}, {vr(SEL)}, {vr(base_reg+16*b+4*q)}, {c}")
    for b in range(nb):
        for r in range(4):
            a(f"v_add_f32_dpp v{acc+8*b+4+r}, v{acc+8*b+r}, v{acc+8*b+r} row_ror:8 row_mask:0xf bank_mask:0xf")
    if nb == 2:
        for r in range(4): a(f"v_cndmask_b32 v{acc+4+r}, v{acc+4+r}, v{acc+12+r}, s[{S_H8}:{S_H8+1}]")
    a(f"v_cvt_pk_bf16_f32 v{apk}, v{acc+4}, v{acc+5}")
    a(f"v_cvt_pk_bf16_f32 v{apk+1}, v{acc+6}, v{acc+7}")
    a(f"v_mov_b32 v{apk+2}, v{apk}\nv_mov_b32 v{apk+3}, v{apk+1}")
    a(f"v_mov_b32 v{apk+4}, v{apk}\nv_mov_b32 v{apk+5}, v{apk+1}")
    a(f"v_permlane16_swap_b32 v{apk+4}, v{apk+2}")
    a(f"v_permlane16_swap_b32 v{apk+5}, v{apk+3}")
    store_mode(a, [f"buffer_store_dwordx4 {vr(apk)}, v{v_ags}, s[{S_WS}:{S_WS+3}], s{S_CUR} offen SCX"])

def reduce2(a, pfx, SEL, base_reg, v_off, v_ags, acc, apk):
    loads = [f"buffer_load_dwordx4 {vr(base_reg+4*q)}, v{v_off}, s[{S_WS}:{S_WS+3}], s{S_CUR} offen offset:{q*512} sc1" for q in range(8)]
    poll_loop(a, f"{pfx}_RP", loads, 32, 94, base=base_reg)
    stamp(a, 7)
    for q in range(8):
        c = "0" if q == 0 else vr(acc)
        a(f"v_mfma_f32_16x16x32_bf16 {vr(acc)}, {vr(SEL)}, {vr(base_reg+4*q)}, {c}")
    a(f"v_cvt_pk_bf16_f32 v{apk}, v{acc}, v{acc+1}")
    a(f"v_cvt_pk_bf16_f32 v{apk+1}, v{acc+2}, v{acc+3}")
    store_mode(a, [f"buffer_store_dwordx2 {vr(apk,2)}, v{v_ags}, s[{S_WS}:{S_WS+3}], s{S_CUR} offen SCX"])

def sel_setup(a, SEL):
    for k in range(4):
        a(f"""v_mov_b32 v{SEL+k}, 0
v_mov_b32 v{V_T}, 0x3f80
v_cmp_eq_u32 vcc, {2*k}, v{V_N}
v_cndmask_b32 v{SEL+k}, v{SEL+k}, v{V_T}, vcc
v_mov_b32 v{V_T}, 0x3f800000
v_cmp_eq_u32 vcc, {2*k+1}, v{V_N}
v_cndmask_b32 v{SEL+k}, v{SEL+k}, v{V_T}, vcc""")

def smap(a, s, t):
    a(f"""s_lshr_b32 s{t}, s{s}, 13
s_lshl_b32 s{t}, s{t}, 14
s_and_b32 s{s}, s{s}, 0x1fff
s_or_b32 s{s}, s{s}, s{t}
s_add_u32 s{s}, s{s}, {nearmap(RS_LOG)}""")

def loc_off(a, s_cb, s_out, s_tmp):
    a(f"""s_lshr_b32 s{s_out}, s{S_J}, 5
s_mul_i32 s{s_out}, s{s_out}, 81920
s_lshl_b32 s{s_tmp}, s{s_cb}, 10
s_add_u32 s{s_out}, s{s_out}, s{s_tmp}""")
    smap(a, s_out, s_tmp)

def rs_local_lane(a, v):
    a(f"""v_lshlrev_b32 v{v}, 10, v{V_G}
v_and_b32 v{V_T}, 7, v{V_LANE}
v_lshlrev_b32 v{V_T}, 4, v{V_T}
v_add_u32 v{v}, v{v}, v{V_T}
s_and_b32 s{S_T}, s{S_H}, 7
s_lshl_b32 s{S_T}, s{S_T}, 7
v_add_u32 v{v}, s{S_T}, v{v}""")

def blk_off(a, s_cb, s_out, s_tmp):
    a(f"""s_lshr_b32 s{s_out}, s{s_cb}, 1
s_lshl_b32 s{s_out}, s{s_out}, 14
s_and_b32 s{s_tmp}, s{s_cb}, 1
s_lshl_b32 s{s_tmp}, s{s_tmp}, 12
s_add_u32 s{s_out}, s{s_out}, s{s_tmp}
s_add_u32 s{s_out}, s{s_out}, {nearmap(RS_LOG)}""")

def rotate_slots(a):
    a(f"""s_mov_b32 s{S_T}, s{S_P}
s_mov_b32 s{S_P}, s{S_CUR}
s_mov_b32 s{S_CUR}, s{S_N}
s_mov_b32 s{S_N}, s{S_NN}
s_mov_b32 s{S_NN}, s{S_T}""")

def proj_stage(a, ntile, w8):
    for K in range(10):
        a(f"ds_read_b128 {vr(V_RING+4*K)}, v{V_L16} offset:{L_MEM + K*1024}")
    for t in range(ntile):
        for r in range(4): a(f"v_mov_b32 v{V_ACC+4*t+r}, 0")
    for K in range(10):
        a(f"s_waitcnt lgkmcnt({9-K})")
        for t in range(ntile):
            a(f"v_smfmac_f32_16x16x64_bf16 {vr(V_ACC+4*t)}, {vr(V_RING+4*K)}, {w8(t,K)}, v{V_IDX}")

def pack_pair(x, y, pk):
    L = [f"v_permlane32_swap_b32 v{x+r}, v{y+r}" for r in range(4)]
    L += [f"v_add_f32 v{x+r}, v{x+r}, v{y+r}" for r in range(4)]
    L += [f"v_cvt_pk_bf16_f32 v{pk}, v{x}, v{x+1}", f"v_cvt_pk_bf16_f32 v{pk+1}, v{x+2}, v{x+3}"]
    return L

def ux_load(a, w, flags, pfx):
    nt = NT[w]
    if flags:
        a.uid += 1
        a(f"s_add_u32 s{S_UXT}, s{S_UXT}, 1")
        a(f"s_min_u32 s{S_T3}, s{S_UXT}, 64")
        wait_words(a, f"{pfx}_WUX{a.uid}", S_WS, V_UXA, V_T, S_T3, S_UXC, 1, S_T2, 23)
    for t in range(nt):
        a(f"buffer_load_dwordx4 {vr(V_UXF+4*t)}, v{V_L16}, s[{S_WS}:{S_WS+3}], s{S_UXG} offen offset:{t*1024} sc1")
    a(f"s_add_u32 s{S_UXG}, s{S_UXG}, {32*40*1024}")

def idle_phase(a, w, woq):
    if OPT('UXRD', 0):
        a(f"v_add_u32 v{V_T}, s{S_KVR}, v{V_L16}")
        for f in range(12):
            a(f"ds_read_b128 {vr(V_KXF+4*f)}, v{V_T} offset:{f*1024}")
        a("s_waitcnt lgkmcnt(0)")
        a(f"s_xor_b32 s{S_KVR}, s{S_KVR}, {KVX}")
        return
    nt = NT[w]
    a(f"v_add_u32 v{V_T}, s{S_KVR}, v{V_L16}")
    for f in range(12):
        a(f"ds_read_b128 {vr(V_QF+4*f)}, v{V_T} offset:{12288 + f*1024}")
        if f == 7: a("s_waitcnt lgkmcnt(4)")
    a("s_waitcnt lgkmcnt(0)")
    for f in range(12):
        a(f"ds_read_b128 {vr(V_KXF+4*f)}, v{V_T} offset:{f*1024}")
    for p in range(6):
        for t in range(nt):
            for tt in range(2):
                d = V_UA + 8*t + 4*tt
                c = "0" if p == 0 else vr(d)
                a(f"v_mfma_f32_16x16x32_bf16 {vr(d)}, {vr(V_QF+4*(tt*6+p))}, {woq(t,p)}, {c}")
    for t in range(nt):
        for k in range(4):
            tt = k >> 1
            d = V_UA + 8*t + 4*tt + 2*(k & 1)
            a(f"v_cvt_pk_bf16_f32 v{V_UXF+4*t+k}, v{d}, v{d+1}")
        a(f"s_add_u32 s{S_T}, s{S_UXG}, {t*1024}")
        if OPT('UXST', 0): a(f"buffer_store_dwordx4 {vr(V_UXF+4*t)}, v{V_L16}, s[{S_WS}:{S_WS+3}], s{S_T} offen sc1")
    a(f"s_add_u32 s{S_UXG}, s{S_UXG}, {32*40*1024}")
    a("s_waitcnt lgkmcnt(0)")
    a(f"s_xor_b32 s{S_KVR}, s{S_KVR}, {KVX}")

S_UXT=88; S_UXC=89; V_UXA=11
S_KVT=33
S_RLB=18
S_RL0=19; S_RL1=95
AP6 = [16, 17, 18, 19, 7, 8]
V_RSOL=9
S_KVC=21
def kv_dma(a, flags=False, pfx='', w=0):
    if w < 2:
        if flags:
            a.uid += 1
            a(f"s_add_u32 s{S_KVT}, s{S_KVT}, 2")
            a(f"s_min_u32 s{S_T3}, s{S_KVT}, 128")
            wait_words(a, f"{pfx}_WKV{a.uid}", S_WS, V_KVA, V_T, S_T3, 22, 2 if OPT('UXRD', 0) else 4, S_T2, 23)
        if OPT('UXRD', 0):
            for (k0, n) in ((0, 4), (4, 2)):
                a(f"s_add_u32 m0, s{S_KVL}, {w*6144 + k0*1024}")
                a(f"s_add_u32 s{S_T}, s{S_KVG}, {k0*1024}")
                for j in range(n):
                    a(f"buffer_load_dwordx4 v{V_L16}, s[{S_WS}:{S_WS+3}], s{S_T} offen offset:{j*1024} sc1 lds")
        else:
            for k in range(3):
                a(f"s_add_u32 m0, s{S_KVL}, {w*12288 + k*4096}")
                a(f"s_add_u32 s{S_T}, s{S_KVG}, {k*4096}")
                for j in range(4):
                    a(f"buffer_load_dwordx4 v{V_L16}, s[{S_WS}:{S_WS+3}], s{S_T} offen offset:{j*1024} sc1 lds")
        a(f"s_add_u32 s{S_KVG}, s{S_KVG}, {32*12288}")
    a(f"s_xor_b32 s{S_KVL}, s{S_KVL}, {KVX}")

def softmax_lists():
    X = V_SM; MX = V_SM+6; TM = V_SM+7; RS_ = V_SM+8; PT = V_SM+12; PM = V_SM+10; T2 = V_SM+16
    L = []
    for r in range(4): L.append(f"v_cndmask_b32 v{X+r}, v{V_S+4+r}, v{V_S+8+r}, s[{S_H8}:{S_H8+1}]")
    L.append(f"v_cndmask_b32 v{X+4}, v{V_S}, v{V_S+2}, s[{S_H8}:{S_H8+1}]")
    L.append(f"v_cndmask_b32 v{X+5}, v{V_S+1}, v{V_S+3}, s[{S_H8}:{S_H8+1}]")
    L.append(f"v_max3_f32 v{MX}, v{X}, v{X+1}, v{X+2}")
    L.append(f"v_max3_f32 v{TM}, v{X+3}, v{X+4}, v{X+5}")
    L.append(f"v_max_f32 v{MX}, v{MX}, v{TM}")
    L.append(f"v_max_f32_dpp v{MX}, v{MX}, v{MX} row_ror:8 row_mask:0xf bank_mask:0xf")
    L += [f"v_mov_b32 v{TM}, v{MX}", f"v_permlane16_swap_b32 v{MX}, v{TM}", f"v_max_f32 v{MX}, v{MX}, v{TM}"]
    L += [f"v_mov_b32 v{TM}, v{MX}", f"v_permlane32_swap_b32 v{MX}, v{TM}", f"v_max_f32 v{MX}, v{MX}, v{TM}"]
    L.append(f"v_mul_f32 v{MX}, s{S_SCALE}, v{MX}")
    for j in range(6): L.append(f"v_fma_f32 v{X+j}, v{X+j}, s{S_SCALE}, -v{MX}")
    for j in range(6): L.append(f"v_exp_f32 v{X+j}, v{X+j}")
    L.append(f"v_cvt_pk_bf16_f32 v{PT}, v{X}, v{X+1}")
    L.append(f"v_cvt_pk_bf16_f32 v{PT+1}, v{X+2}, v{X+3}")
    L.append(f"v_cvt_pk_bf16_f32 v{PM}, v{X+4}, v{X+5}")
    L.append(f"v_mov_b32_dpp v{PT+2}, v{PT} row_ror:8 row_mask:0xf bank_mask:0xf")
    L.append(f"v_mov_b32_dpp v{PT+3}, v{PT+1} row_ror:8 row_mask:0xf bank_mask:0xf")
    L.append(f"v_mov_b32_dpp v{PM+1}, v{PM} row_ror:8 row_mask:0xf bank_mask:0xf")
    M = [f"v_cndmask_b32 v{X+4}, v{X+4}, v{V_ZERO}, s[{S_HI32}:{S_HI32+1}]",
         f"v_cndmask_b32 v{X+5}, v{X+5}, v{V_ZERO}, s[{S_HI32}:{S_HI32+1}]",
         f"v_add_f32 v{RS_}, v{X}, v{X+1}", f"v_add_f32 v{TM}, v{X+2}, v{X+3}", f"v_add_f32 v{RS_+1}, v{X+4}, v{X+5}",
         f"v_add_f32 v{RS_}, v{RS_}, v{TM}", f"v_add_f32 v{RS_}, v{RS_}, v{RS_+1}",
         f"v_add_f32_dpp v{RS_}, v{RS_}, v{RS_} row_ror:8 row_mask:0xf bank_mask:0xf",
         f"v_mov_b32 v{TM}, v{RS_}", f"v_permlane16_swap_b32 v{RS_}, v{TM}", f"v_add_f32 v{RS_}, v{RS_}, v{TM}",
         f"v_mov_b32 v{TM}, v{RS_}", f"v_permlane32_swap_b32 v{RS_}, v{TM}", f"v_add_f32 v{RS_}, v{RS_}, v{TM}",
         f"v_rcp_f32 v{RS_}, v{RS_}"]
    return PT, PM, RS_, L, M

def gi(a, v):
    a(f"""v_lshlrev_b32 v{v}, 7, v{V_G}
v_and_b32 v{V_T}, 7, v{V_LANE}
v_lshlrev_b32 v{V_T}, 4, v{V_T}
v_add_u32 v{v}, v{v}, v{V_T}""")

def rs_lane(a, v):
    a(f"""v_lshrrev_b32 v{v}, 1, v{V_G}
v_lshlrev_b32 v{v}, 14, v{v}
v_and_b32 v{V_T}, 1, v{V_G}
v_lshlrev_b32 v{V_T}, 12, v{V_T}
v_add_u32 v{v}, v{v}, v{V_T}
v_and_b32 v{V_T}, 7, v{V_LANE}
v_lshlrev_b32 v{V_T}, 4, v{V_T}
v_add_u32 v{v}, v{v}, v{V_T}
s_lshl_b32 s{S_T}, s{S_H}, 7
v_add_u32 v{v}, s{S_T}, v{v}""")

def coop_load(a, w, wreg):
    stride = H*E*2
    VG, VT = V_POLL, V_POLL+1
    a(f"""v_lshrrev_b32 v{V_T}, 3, v{V_LANE}
v_add_u32 v{V_T}, {8*w}, v{V_T}
s_mov_b32 s{S_LB+1}, {stride}
v_mul_lo_u32 v{VG}, v{V_T}, s{S_LB+1}
v_and_b32 v{V_T}, 7, v{V_LANE}
v_lshlrev_b32 v{V_T}, 4, v{V_T}
v_add_u32 v{VG}, v{VG}, v{V_T}
v_bfe_u32 v{VT}, v{V_LANE}, 4, 1
v_lshlrev_b32 v{VT}, 4, v{VT}
v_bfe_u32 v{V_T}, v{V_LANE}, 5, 1
v_lshlrev_b32 v{V_T}, 3, v{V_T}
v_add_u32 v{VT}, v{VT}, v{V_T}
v_bfe_u32 v{V_T}, v{V_LANE}, 2, 1
v_add_u32 v{VT}, v{VT}, v{V_T}
v_bfe_u32 v{V_T}, v{V_LANE}, 3, 1
v_lshlrev_b32 v{V_T}, 2, v{V_T}
v_add_u32 v{VT}, v{VT}, v{V_T}
v_lshlrev_b32 v{VT}, 7, v{VT}
v_and_b32 v{V_T}, 3, v{V_LANE}
v_lshlrev_b32 v{V_T}, 3, v{V_T}
v_add_u32 v{VT}, v{VT}, v{V_T}
s_mul_i32 s{S_COL}, s{S_H}, 384
s_mul_i32 s{S_T}, s{S_C}, 96
s_add_u32 s{S_COL}, s{S_COL}, s{S_T}
v_add_u32 v{VT+1}, 61440, v{VT}""")
    srds = (S_WQ, S_WK, S_WV)
    def issue(ph):
        buf = (ph & 1)*61440
        for pp in range(5):
            p = 5*ph + pp
            for m in range(3):
                a(f"s_add_u32 s{S_T}, s{S_COL}, {p*32*stride}")
                a(f"s_mov_b32 m0, {buf + (pp*3+m)*4096 + w*1024}")
                a(f"buffer_load_dwordx4 v{VG}, s[{srds[m]}:{srds[m]+3}], s{S_T} offen lds")
    issue(0); issue(1)
    for ph in range(4):
        a(f"s_waitcnt vmcnt({15 if ph < 3 else 0})")
        a("s_barrier")
        buf = (ph & 1)*61440
        n = 0
        for pp in range(5):
            p = 5*ph + pp
            if w < 3: items = [(0, w, p), (1, w, 20+p)]
            else: items = [(2, t, t*20+p) for t in range(3)]
            for (m, T, f) in items:
                o = buf + (pp*3+m)*4096 + T*32
                reg = VT if o + 256 < 65536 else VT+1
                oo = o if reg == VT else o - 61440
                a(f"ds_read_b64_tr_b16 {wreg.pair(f,0)}, v{reg} offset:{oo}")
                a(f"ds_read_b64_tr_b16 {wreg.pair(f,1)}, v{reg} offset:{oo+256}")
                n += 2
                if n % 12 == 0: a("s_waitcnt lgkmcnt(4)")
        a("s_waitcnt lgkmcnt(0)")
        a("s_barrier")
        if ph == 0: pass
        if ph + 2 < 4: issue(ph+2)

def main_wave(a, w, flags=False):
    pfx = f"RM{w}"
    nt = NT[w]
    wreg = WReg(0, 256, 0)
    mem0_load(a, w)
    w8 = lambda t, K: ar((t*20 + 2*K)*4, 8)
    woq = lambda t, p: wreg.quad(40 + t*6 + p)
    a(f"s_lshl_b32 s{S_LB}, s{S_WAVE}, 15")
    if OPT('COOP', 1):
        coop_load(a, w, wreg)
    else:
        a(f"""s_mul_i32 s{S_COL}, s{S_H}, 384
s_mul_i32 s{S_T}, s{S_C}, 96
s_add_u32 s{S_COL}, s{S_COL}, s{S_T}
s_add_u32 s{S_COL}, s{S_COL}, {w*32}""")
        units = []
        for p in range(20): units += [(S_WQ, S_COL, p*32*H*E*2), (S_WK, S_COL, p*32*H*E*2)]
        load_w2(a, units, lambda u, T, k: wreg.pair((u & 1)*20 + (u >> 1), k), 1, H*E*2, 2, V_LANE, V_POLL, V_POLL+1, V_T, S_T, S_LB)
    a(f"""s_mul_i32 s{S_COL}, s{S_H}, {192*1280}
s_mul_i32 s{S_T}, s{S_C}, 320
s_add_u32 s{S_COL}, s{S_COL}, s{S_T}
s_add_u32 s{S_COL}, s{S_COL}, {T0[w]*32}""")
    ng = nt//2
    units = [(S_WO, S_COL, g*64 + p*32*1280) for p in range(6) for g in range(ng)]
    load_w2(a, units, lambda u, T, k: wreg.pair(40 + ((u % ng)*2 + T)*6 + u // ng, k), 2, D*2, True, V_LANE, V_POLL, V_POLL+1, V_T, S_T, S_LB)
    if OPT('STAMP', 0): a("s_memtime s[78:79]\ns_waitcnt lgkmcnt(0)\ns_sub_u32 s95, s78, s100")
    common_setup(a, w)
    gi(a, V_KMS)
    a(f"v_add_u32 v{V_KMS}, {w*1024}, v{V_KMS}")
    a(f"""v_lshrrev_b32 v{V_AST}, 1, v{V_G}
v_mul_u32_u24 v{V_AST}, 3072, v{V_AST}
v_lshlrev_b32 v{V_T}, 4, v{V_N}
v_add_u32 v{V_AST}, v{V_AST}, v{V_T}
v_and_b32 v{V_T}, 1, v{V_G}
v_lshlrev_b32 v{V_T}, 3, v{V_T}
v_add_u32 v{V_AST}, v{V_AST}, v{V_T}
s_mul_i32 s{S_T}, s{S_C}, 3
s_add_u32 s{S_T}, s{S_T}, {w}
s_lshl_b32 s{S_T}, s{S_T}, 8
s_mul_i32 s{S_T2}, s{S_H}, 9216
s_add_u32 s{S_T}, s{S_T}, s{S_T2}
v_add_u32 v{V_AST}, s{S_T}, v{V_AST}""")
    nearmap_v(a, V_AST, V_T)
    a(f"""s_add_u32 s{S_T}, s{S_T2}, {w*2048}
v_add_u32 v{V_APO}, s{S_T}, v{V_L16}
v_add_u32 v{V_APO+1}, 1024, v{V_APO}
v_add_u32 v{V_APL}, {L_QKV + w*2048}, v{V_L16}""")
    nearmap_v(a, V_APO, V_T); nearmap_v(a, V_APO+1, V_T)
    if w == 2 and OPT('EARLYDMA', 0):
        for k in range(6):
            a(f"v_add_u32 v{AP6[k]}, s{S_T2}, v{V_L16}")
            if k: a(f"v_add_u32 v{AP6[k]}, {k*1024}, v{AP6[k]}")
            nearmap_v(a, AP6[k], V_T)
    a(f"""v_lshlrev_b32 v{V_RQ}, 2, v{V_G}
v_bfe_u32 v{V_T}, v{V_LANE}, 2, 2
v_add_u32 v{V_RQ}, v{V_RQ}, v{V_T}
v_lshlrev_b32 v{V_RQ}, 4, v{V_RQ}
v_and_b32 v{V_T}, 1, v{V_LANE}
v_lshlrev_b32 v{V_T}, 3, v{V_T}
v_add_u32 v{V_RQ}, v{V_RQ}, v{V_T}
v_add_u32 v{V_RQ}, {L_QKV}, v{V_RQ}""")
    a(f"""v_bfe_u32 v{V_RV}, v{V_LANE}, 5, 1
v_lshlrev_b32 v{V_RV}, 5, v{V_RV}
v_bfe_u32 v{V_T}, v{V_LANE}, 4, 1
v_lshlrev_b32 v{V_T}, 3, v{V_T}
v_add_u32 v{V_RV}, v{V_RV}, v{V_T}
v_bfe_u32 v{V_T}, v{V_LANE}, 2, 1
v_add_u32 v{V_RV}, v{V_RV}, v{V_T}
v_bfe_u32 v{V_T}, v{V_LANE}, 3, 1
v_lshlrev_b32 v{V_T}, 4, v{V_T}
v_add_u32 v{V_RV}, v{V_RV}, v{V_T}
v_bfe_u32 v{V_T}, v{V_LANE}, 1, 1
v_lshlrev_b32 v{V_T}, 1, v{V_T}
v_add_u32 v{V_RV}, v{V_RV}, v{V_T}
v_lshlrev_b32 v{V_RV}, 4, v{V_RV}
v_and_b32 v{V_T}, 1, v{V_LANE}
v_lshlrev_b32 v{V_T}, 3, v{V_T}
v_add_u32 v{V_RV}, v{V_RV}, v{V_T}
v_add_u32 v{V_RV}, {L_QKV+6144}, v{V_RV}""")
    rs_lane(a, V_RSO)
    rs_local_lane(a, V_RSOL)
    for P in range(nt//2):
        a(f"""s_lshr_b32 s{76+P}, s{S_J}, 5
s_mul_i32 s{76+P}, s{76+P}, 81920
s_mul_i32 s{S_T}, s{S_C}, {5*4096}
s_add_u32 s{76+P}, s{76+P}, s{S_T}
s_add_u32 s{76+P}, s{76+P}, {(P0[w]+P)*4096}""")
        smap(a, 76+P, S_T)
    a(f"""s_mul_i32 s{S_RSB}, s{S_C}, {5*32768}
s_add_u32 s{S_RSB}, s{S_RSB}, {nearmap(RS_LOG) + P0[w]*32768}
s_mul_i32 s{S_T}, s{S_H}, 12288
s_add_u32 s{S_KVG}, s{S_T}, {(KX + w*6144) if OPT('UXRD', 0) else (KX if w == 0 else VX)}
s_mul_i32 s{S_T}, s{S_H}, 40
s_mul_i32 s{S_T2}, s{S_C}, 10
s_add_u32 s{S_T}, s{S_T}, s{S_T2}
s_add_u32 s{S_T}, s{S_T}, {T0[w]}
s_lshl_b32 s{S_UXG}, s{S_T}, 10
s_add_u32 s{S_UXG}, s{S_UXG}, {UX}
s_lshl_b32 s{S_UYG}, s{S_T}, 8
s_add_u32 s{S_UYG}, s{S_UYG}, {UY}
s_mul_i32 s{S_KMG}, s{S_H}, 3072
s_add_u32 s{S_KMG}, s{S_KMG}, {KM}
s_mov_b32 s{S_KVL}, {L_KV}
s_mov_b32 s{S_KVR}, {L_KV}
s_lshl_b32 s{S_FLG}, s{S_J}, 7
s_add_u32 s{S_FLG}, s{S_FLG}, {F_REC}""")
    if w == 2:
        a(f"""s_and_b32 s{S_COL}, s{S_J}, 31
s_cmp_lt_u32 s{S_COL}, 16
s_cselect_b32 s{S_RED}, 1, 0
s_add_u32 s{S_COL}, s{S_COL}, 64""")
        blk_off(a, S_COL, S_RSP, S_T)
        loc_off(a, S_COL, 72, S_T)
        a(f"""s_lshr_b32 s{S_T}, s{S_J}, 5
s_mul_i32 s{S_T}, s{S_T}, 10240
s_add_u32 s{S_T}, s{S_T}, {AG_LOG}
s_lshl_b32 s{S_T3}, s{S_COL}, 7
s_add_u32 s{S_T}, s{S_T}, s{S_T3}
v_add_u32 v{V_AGS}, s{S_T}, v{V_L16}""")
        nearmap_v(a, V_AGS, V_T)
        oob_mask(a, V_AGS, 8)
        sel_setup(a, 240)
    if flags:
        a(f"""s_mul_i32 s{S_T}, s{S_H}, 6
s_lshr_b32 s{S_T2}, s{S_T}, 3
s_add_u32 s{S_T}, s{S_T}, 5
s_lshr_b32 s{S_T}, s{S_T}, 3
v_mov_b32 v{V_KVA}, s{S_T}
v_mov_b32 v{V_T}, s{S_T2}
v_and_b32 v{V_T2}, 1, v{V_LANE}
v_cmp_eq_u32 vcc, 0, v{V_T2}
v_cndmask_b32 v{V_KVA}, v{V_KVA}, v{V_T}, vcc
v_cmp_lt_u32 vcc, 1, v{V_LANE}
v_mov_b32 v{V_T}, {R_V0 if not OPT('UXRD', 0) else 0}
v_cndmask_b32 v{V_T}, 0, v{V_T}, vcc
v_add_u32 v{V_KVA}, v{V_KVA}, v{V_T}
v_lshlrev_b32 v{V_KVA}, {PSH}, v{V_KVA}
v_add_u32 v{V_KVA}, {F_PROG}, v{V_KVA}
s_mov_b32 s{S_KVT}, 0
s_mov_b32 s22, 0
s_add_u32 s{S_T}, s{S_H}, {R_U0}
s_lshl_b32 s{S_T}, s{S_T}, {PSH}
s_add_u32 s{S_T}, s{S_T}, {F_PROG}
v_mov_b32 v{V_UXA}, s{S_T}""")
    if flags and w == 0: trace(a, 1, S_J)
    read_polarity(a, pfx)
    if flags and w == 0: trace(a, 2, S_J)
    a("s_barrier")
    mem0_stage(a, w)
    a(f"s_mov_b32 s{S_UXT}, 0\ns_mov_b32 s{S_UXC}, 0")
    kv_dma(a, flags, pfx, w)
    if flags and w == 0: trace(a, 3, S_J)
    a("s_waitcnt vmcnt(0) lgkmcnt(0)")
    a("s_barrier")
    idle_phase(a, w, woq)
    if flags and w == 0:
        dbgt(a, 40, op="max")
        trace(a, 4, S_J)
        if int(os.environ.get('TRACE', 0)):
            a("s_memtime s[86:87]\ns_waitcnt lgkmcnt(0)")
            trace(a, 6, S_J, val=86)
    stamp(a, 0)
    if OPT('STAMP', 0): a(f"s_waitcnt lgkmcnt(0)\ns_sub_u32 s101, s{S_TS}, s100")
    pfx0 = pfx
    a(f"s_cmp_eq_u32 s{S_MODE}, 0")
    a(f"s_cbranch_scc1 {pfx0}S_B0")
    a(f"s_branch {pfx0}F_B0")
    for mode in (1, 0):
        CURMODE[0] = mode
        pfx = pfx0 + ("F" if mode else "S")
        main_loop(a, w, flags, pfx, nt, w8, woq)
    CURMODE[0] = None

def main_loop(a, w, flags, pfx, nt, w8, woq):
    wo8 = lambda t, K: ar((40 + t*6 + 2*K)*4, 8)
    a.label(f"{pfx}_LOOP")
    stamp(a, 0)
    if w == 2: ag_poll(a, pfx, w)
    a.label(f"{pfx}_B0")
    if w < 2 and OPT('EARLYDMA', 0): a("s_waitcnt vmcnt(0)")
    a("s_waitcnt lgkmcnt(0)")
    a("s_barrier")
    mark(a, S_REF0)
    stamp(a, 1)
    if OPT('STEPTR', 0) and w == 1:
        a("s_waitcnt lgkmcnt(0)")
        a(f"v_mov_b32 v250, s{S_REF0}")
        a(f"s_lshl_b32 s86, s{S_J}, 8")
        a(f"s_lshl_b32 s87, s{S_STEP}, 2")
        a(f"s_add_u32 s86, s86, s87")
        a(f"s_add_u32 s86, s86, {TRACE + 65536}")
        a("v_mov_b32 v251, s86")
        a("s_mov_b64 exec, 1")
        a(f"buffer_store_dword v250, v251, s[{S_WS}:{S_WS+3}], 0 offen")
        a("s_mov_b64 exec, -1")
    proj_stage(a, 2, w8)
    for x in pack_pair(V_ACC, V_ACC+4, V_PK): a(x)
    store_mode(a, [f"buffer_store_dwordx2 {vr(V_PK,2)}, v{V_AST}, s[{S_WS}:{S_WS+3}], s{S_CUR} offen SCX"])
    stamp(a, 2)
    ED = OPT('EARLYDMA', 0)
    if ED and w < 2:
        a(f"s_cmp_lg_u32 s{S_STEP}, 0")
        a(f"s_cbranch_scc1 {pfx}_NOS1")
        kv_dma(a, flags, pfx, w)
        a("s_waitcnt vmcnt(0)")
        a.label(f"{pfx}_NOS1")
        a(f"s_cmp_ge_u32 s{S_STEP}, 62")
        a(f"s_cbranch_scc1 {pfx}_NOS2")
        kv_dma(a, flags, pfx, w)
        a.label(f"{pfx}_NOS2")
    elif not ED and (w < 2 or OPT('UXRD', 0)):
        a(f"s_cmp_lg_u32 s{S_STEP}, 0")
        a(f"s_cbranch_scc1 {pfx}_NOS1")
        if w < 2: kv_dma(a, flags, pfx, w)
        if OPT('UXRD', 0): ux_load(a, w, flags, pfx)
        a.label(f"{pfx}_NOS1")
    for t in range(nt):
        for r in range(4): a(f"v_mov_b32 v{V_Y+4*t+r}, 0")
    if ED:
        if w == 2:
            wait_mode(a, S_REF0, OPT('T_AF', 0), OPT('T_A', 1150))
            lds6 = [f"buffer_load_dwordx4 {vr(V_POLL+4*k) if k < 4 else vr(V_RSP+4*(k-4))}, v{AP6[k]}, s[{S_WS}:{S_WS+3}], s{S_CUR} offen sc1" for k in range(6)]
            a(f"s_mov_b32 s{S_RETRY}, 0")
            a.label(f"{pfx}_AP")
            for x in lds6: a(x)
            a("s_waitcnt vmcnt(0)")
            poll_check(a, list(range(V_POLL, V_POLL+16)) + list(range(V_RSP, V_RSP+8)), V_T)
            a(f"""s_cbranch_vccz {pfx}_AP_OK
s_add_u32 s{S_RETRY}, s{S_RETRY}, 1
s_cmp_lt_u32 s{S_RETRY}, s{S_MAXR}
s_cbranch_scc1 {pfx}_AP
s_mov_b32 s{S_MAXR}, 0""")
            a.label(f"{pfx}_AP_OK")
            racc(a, 93)
            for k in range(6):
                a(f"ds_write_b128 v{V_L16}, {vr(V_POLL+4*k) if k < 4 else vr(V_RSP+4*(k-4))} offset:{L_QKV + k*1024}")
    else:
        wait_mode(a, S_REF0, OPT('T_AF', 0), OPT('T_A', 1150))
        def mkA(b): return [f"buffer_load_dwordx4 {vr(b+4*k)}, v{V_APO+k}, s[{S_WS}:{S_WS+3}], s{S_CUR} offen sc1" for k in range(2)]
        def stA(b):
            a(f"ds_write_b128 v{V_APL}, {vr(b)}")
            a(f"ds_write_b128 v{V_APL}, {vr(b+4)} offset:1024")
        poll_loop(a, f"{pfx}_AP", mkA(V_POLL), 8, 93)
        stA(V_POLL)
    a("s_waitcnt lgkmcnt(0)")
    stamp(a, 3)
    a("s_barrier")
    stamp(a, 4)
    reads = []
    for p in range(6):
        for (reg, typ) in ((V_QF, 0), (V_KF, 1)):
            for k in range(2):
                reads.append(f"ds_read_b64_tr_b16 {vr(reg+4*p+2*k,2)}, v{V_RQ} offset:{typ*3072 + (2*p+k)*256}")
    vreads = [f"ds_read_b64_tr_b16 {vr(V_VF+4*K+2*k,2)}, v{V_RV} offset:{K*1024 + k*64}" for K in range(3) for k in range(2)]
    TWOB = OPT('TWOB', 1)
    if not TWOB: reads += vreads
    issued = 0
    def iss(n):
        nonlocal issued
        for _ in range(n):
            if issued < len(reads): a(reads[issued]); issued += 1
    iss(12)
    for p in range(6):
        a(f"s_waitcnt lgkmcnt({issued - (4*p+4)})")
        for u, A_ in enumerate((vr(V_KXF+4*p), vr(V_KXF+4*(6+p)), vr(V_KF+4*p))):
            d = V_S + (4 if u == 0 else 8 if u == 1 else 0)
            c = "0" if p == 0 else vr(d)
            a(f"v_mfma_f32_16x16x32_bf16 {vr(d)}, {A_}, {vr(V_QF+4*p)}, {c}")
        iss(4)
    if TWOB:
        a("s_barrier")
        if w == 2 or OPT('T_DMA', 0) > 0: mark(a, 96)
        for x in vreads: a(x)
    stamp(a, 5)
    ym = []
    for K in range(3):
        for t in range(nt):
            pre = f"s_waitcnt lgkmcnt({6 - (2*K + 2)})\n" if t == 0 else ""
            ym.append(pre + f"v_smfmac_f32_16x16x64_bf16 {vr(V_Y+4*t)}, {vr(V_VF+4*K)}, {wo8(t,K)}, v{V_IDX}")
    PT, PM, RS_, L1, L2 = softmax_lists()
    yc = [f"v_cvt_pk_bf16_f32 v{V_YF+2*t+k}, v{V_Y+4*t+2*k}, v{V_Y+4*t+2*k+1}" for t in range(nt) for k in range(2)]
    Y0 = OPT('Y0', 2)
    for i, x in enumerate(L1):
        if ym and i >= Y0: a(ym.pop(0))
        a(x)
    while ym: a(ym.pop(0))
    for t in range(nt):
        a(f"v_mfma_f32_16x16x32_bf16 {vr(V_PU+4*t)}, {vr(V_UXF+4*t)}, {vr(PT)}, 0")
        for _ in range(2):
            if yc: a(yc.pop(0))
    for t in range(nt):
        a(f"v_mfma_f32_16x16x16_bf16 {vr(V_PU+4*t)}, {vr(V_YF+2*t,2)}, {vr(PM,2)}, {vr(V_PU+4*t)}")
        for _ in range(4):
            if L2: a(L2.pop(0))
    while L2: a(L2.pop(0))
    a(f"v_mov_b32 v{RS_+1}, v{RS_}")
    for t in range(nt):
        for r in range(0, 4, 2): a(f"v_pk_mul_f32 {vr(V_PU+4*t+r,2)}, {vr(V_PU+4*t+r,2)}, {vr(RS_,2)}")
    for t in range(nt):
        a(f"v_cvt_pk_bf16_f32 v{V_RSP+2*t}, v{V_PU+4*t}, v{V_PU+4*t+1}")
        a(f"v_cvt_pk_bf16_f32 v{V_RSP+2*t+1}, v{V_PU+4*t+2}, v{V_PU+4*t+3}")
    a(f"s_add_u32 s{S_T}, s{S_CUR}, s{S_RSB}")
    a(f"s_mov_b64 exec, s[{S_M8}:{S_M8+1}]")
    for P in range(nt//2):
        if P > 0: a(f"s_add_u32 s{S_T}, s{S_T}, 32768")
        a(f"buffer_store_dwordx4 {vr(V_RSP+4*P)}, v{V_RSO}, s[{S_WS}:{S_WS+3}], s{S_T} offen sc1")
    if CURMODE[0] and RSLOC():
        a(f"s_xor_b32 s74, s{S_CUR}, 8192")
        for P in range(nt//2):
            a(f"s_add_u32 s{S_T}, s{76+P}, s74")
            a(f"buffer_store_dwordx4 {vr(V_RSP+4*P)}, v{V_RSOL}, s[{S_WS}:{S_WS+3}], s{S_T} offen")
    stamp(a, 6)
    a("s_mov_b64 exec, -1")
    LATEDMA = OPT('T_DMA', 0) > 0
    if (w < 2 or OPT('UXRD', 0)) and not OPT('NODMA', 0) and not LATEDMA and not OPT('EARLYDMA', 0):
        a(f"s_cmp_eq_u32 s{S_STEP}, 63")
        a(f"s_cbranch_scc1 {pfx}_NODMA")
        if OPT('UXRD', 0): ux_load(a, w, flags, pfx)
        if w < 2: kv_dma(a, flags, pfx, w)
        a.label(f"{pfx}_NODMA")
    a(f"s_mov_b64 exec, s[{S_M8}:{S_M8+1}]")
    a(f"s_cmp_lg_u32 s{S_C}, 0")
    a(f"s_cbranch_scc1 {pfx}_NOKM")
    for k in range(2 if not OPT('NOKM', 0) else 0):
        a(f"buffer_store_dwordx4 {vr(V_KF+4*(2*w+k))}, v{V_KMS}, s[{S_WS}:{S_WS+3}], s{S_KMG} offen offset:{k*512} sc1")
    a.label(f"{pfx}_NOKM")
    a("s_mov_b64 exec, -1")
    a(f"s_add_u32 s{S_KMG}, s{S_KMG}, {32*3072}")
    for t in range(nt):
        for r in range(4): a(f"v_mov_b32 v{V_PU+r}, v{V_Y+4*t+r}")
        for r in range(4): a(f"v_permlane32_swap_b32 v{V_Y+4*t+r}, v{V_PU+r}")
        for r in range(4): a(f"v_add_f32 v{V_Y+4*t+r}, v{V_Y+4*t+r}, v{V_PU+r}")
        a(f"v_cvt_pk_bf16_f32 v{V_YF+2*t}, v{V_Y+4*t}, v{V_Y+4*t+1}")
        a(f"v_cvt_pk_bf16_f32 v{V_YF+2*t+1}, v{V_Y+4*t+2}, v{V_Y+4*t+3}")
    a("s_mov_b32 exec_hi, 0")
    for t in range(nt if not OPT('NOUY', 0) else 0):
        a(f"buffer_store_dwordx2 {vr(V_YF+2*t,2)}, v{V_L4}, s[{S_WS}:{S_WS+3}], s{S_UYG} offen offset:{t*256} sc1")
    a("s_mov_b64 exec, -1")
    a(f"s_add_u32 s{S_UYG}, s{S_UYG}, {32*40*256}")
    if w == OPT('FLGW', 1) and not OPT('NOFLG', 0):
        a(f"v_mov_b32 v{V_T}, s{S_STEP}")
        a("s_mov_b64 exec, 1")
        a(f"buffer_store_dword v{V_T}, v{V_ZERO}, s[{S_WS}:{S_WS+3}], s{S_FLG} offen sc1")
        a(f"s_cmp_lg_u32 s{S_J}, 0")
        a(f"s_cbranch_scc1 {pfx}_NOPROG")
        a(f"s_mov_b32 s{S_T}, {F_RPROG}")
        a(f"buffer_store_dword v{V_T}, v{V_ZERO}, s[{S_WS}:{S_WS+3}], s{S_T} offen sc1")
        a.label(f"{pfx}_NOPROG")
        a("s_mov_b64 exec, -1")
    a(f"s_add_u32 s{S_STEP}, s{S_STEP}, 1")
    a(f"s_cmp_ge_u32 s{S_STEP}, 64")
    a(f"s_cbranch_scc1 {pfx}_DONE")
    stamp(a, 7)
    idle_phase(a, w, woq)
    if w < 2 and LATEDMA:
        wait_until(a, 96, OPT('T_DMA', 0))
        kv_dma(a, flags, pfx, w)
    if w == 2:
        a(f"s_cmp_eq_u32 s{S_RED}, 0")
        a(f"s_cbranch_scc1 {pfx}_NORED")
        wait_until(a, 96, OPT('T_RS', 1150))
        a(f"s_add_u32 s{S_T2}, s{S_CUR}, s{S_RSP}")
        reduce_blocks(a, pfx, 1, 240, 48, (S_T2,), V_AGS, 64, 80, s_loc0=(72,), s_loc=(74,), sqbase=64)
        a.label(f"{pfx}_NORED")
    rotate_slots(a)
    stamp_acc(a)
    if w == 2: mark(a, S_REF2)
    a(f"s_branch {pfx}_LOOP")
    a.label(f"{pfx}_DONE")
    a("s_waitcnt vmcnt(0)")
    a("s_barrier")
    if flags and w == 0:
        dbgt(a, 44, op="max")
        trace(a, 5, S_J)
        if int(os.environ.get('TRACE', 0)):
            a("s_memtime s[86:87]\ns_waitcnt lgkmcnt(0)")
            trace(a, 7, S_J, val=86)
    if w == OPT('FLGW', 1):
        a(f"v_mov_b32 v{V_T}, 64")
        a("s_mov_b64 exec, 1")
        a(f"buffer_store_dword v{V_T}, v{V_ZERO}, s[{S_WS}:{S_WS+3}], s{S_FLG} offen sc1")
        a(f"s_cmp_lg_u32 s{S_J}, 0")
        a(f"s_cbranch_scc1 {pfx}_NOPROG2")
        a(f"s_mov_b32 s{S_T}, {F_RPROG}")
        a(f"buffer_store_dword v{V_T}, v{V_ZERO}, s[{S_WS}:{S_WS+3}], s{S_T} offen sc1")
        a.label(f"{pfx}_NOPROG2")
        a("s_waitcnt vmcnt(0)")
        a("s_mov_b64 exec, -1")
    stamp_out(a, w)
    a("s_endpgm")

def stamp_acc(a):
    if not OPT('STAMP', 0): return
    a(f"s_memtime s[{S_TS+16}:{S_TS+17}]")
    a("s_waitcnt lgkmcnt(0)")
    for k in range(8):
        a(f"s_sub_u32 s{S_T}, s{S_TS+2*k+2}, s{S_TS+2*k}")
        a(f"s_add_u32 s{80+k}, s{80+k}, s{S_T}")

def stamp_out(a, w):
    if not OPT('STAMP', 0): return
    a.uid += 1
    L = f"STO_{w}_{a.uid}"
    a(f"""s_cmp_lg_u32 s{S_J}, {OPT('STAMPROLE', 0)}
s_cbranch_scc1 {L}
s_waitcnt lgkmcnt(0)
s_load_dwordx2 s[96:97], s[0:1], {KA['dbg']}
s_waitcnt lgkmcnt(0)
s_mov_b64 exec, 1""")
    for k in range(8):
        a(f"v_mov_b32 v10, s{80+k}\nv_mov_b32 v11, {64 + w*48 + k*4}\nglobal_store_dword v11, v10, s[96:97]\ns_waitcnt vmcnt(0)")
    if w == 0:
        a(f"v_mov_b32 v10, s95\nv_mov_b32 v11, 40\nglobal_store_dword v11, v10, s[96:97]\ns_waitcnt vmcnt(0)")
        a(f"v_mov_b32 v10, s101\nv_mov_b32 v11, 44\nglobal_store_dword v11, v10, s[96:97]\ns_waitcnt vmcnt(0)")
    for k in range(3):
        a(f"v_mov_b32 v10, s{92+k}\nv_mov_b32 v11, {64 + w*48 + 32 + k*4}\nglobal_store_dword v11, v10, s[96:97]\ns_waitcnt vmcnt(0)")
    a.label(L)

def common_setup(a, w):
    a(f"""v_lshlrev_b32 v{V_L16}, 4, v{V_LANE}
v_lshlrev_b32 v{V_L4}, 3, v{V_LANE}
v_mov_b32 v{V_ZERO}, 0
s_mov_b32 s{S_M8}, 0x00ff00ff
s_mov_b32 s{S_M8+1}, 0x00ff00ff
s_mov_b32 s{S_H8}, 0xff00ff00
s_mov_b32 s{S_H8+1}, 0xff00ff00
s_mov_b32 s{S_HI32}, 0
s_mov_b32 s{S_HI32+1}, -1
v_mov_b32 v{V_NINF}, 0xff800000
s_mov_b32 s{S_MQ}, 0x0000ffff
s_mov_b32 s{S_MQ+1}, 0x0000ffff
v_mov_b32 v{V_IDX}, 0x44444444
v_mov_b32 v{V_T}, 0xeeeeeeee
v_cndmask_b32 v{V_IDX}, v{V_IDX}, v{V_T}, s[{S_H8}:{S_H8+1}]
s_mov_b32 s{S_SCALE}, 0x{f2u(192**-0.5*1.4426950408889634):08x}
s_mov_b32 s{S_MAXR}, {OPT('MAXRETRY', 400000)}
s_mov_b32 s{S_STEP}, 0""")
    for k in range(8): a(f"s_mov_b32 s{80+k}, 0")
    for k in range(92, 95): a(f"s_mov_b32 s{k}, 0")
    if w >= 2:
        a(f"s_lshr_b32 s{S_T}, s{S_J}, 5")
        a(f"s_mul_i32 s{S_T}, s{S_T}, 10240")
        a(f"s_add_u32 s{S_T}, s{S_T}, {AG_LOG + (w-2)*5120}")
        for k in range(5):
            a(f"v_add_u32 v{V_AGP+k}, s{S_T}, v{V_L16}")
            if k: a(f"v_add_u32 v{V_AGP+k}, {k*1024}, v{V_AGP+k}")
            nearmap_v(a, V_AGP+k, V_T2)
    a(f"v_add_u32 v{V_AGL}, {L_MEM + w*2560}, v{V_L16}")

V_M0 = 200
def mem0_stage(a, w):
    a(f"ds_write_b128 v{V_AGL}, {vr(V_M0)}")
    a(f"ds_write_b128 v{V_AGL}, {vr(V_M0+4)} offset:1024")
    a("s_mov_b32 exec_hi, 0")
    a(f"ds_write_b128 v{V_AGL}, {vr(V_M0+8)} offset:2048")
    a("s_mov_b64 exec, -1")

def mem0_load(a, w):
    for k in range(3):
        a(f"""v_add_u32 v{V_T}, {160*w + 64*k}, v{V_LANE}
v_and_b32 v{V_T2}, 7, v{V_T}
v_mul_u32_u24 v{V_T2}, 1280, v{V_T2}
v_lshrrev_b32 v{V_M0+12}, 5, v{V_T}
v_lshlrev_b32 v{V_M0+12}, 6, v{V_M0+12}
v_add_u32 v{V_T2}, v{V_T2}, v{V_M0+12}
v_bfe_u32 v{V_T}, v{V_T}, 3, 2
v_lshlrev_b32 v{V_T}, 3, v{V_T}
v_add_u32 v{V_T}, v{V_T}, v{V_T2}""")
        a(f"buffer_load_dwordx2 {vr(V_M0+4*k,2)}, v{V_T}, s[{S_M0}:{S_M0+3}], 0 offen")
        a(f"buffer_load_dwordx2 {vr(V_M0+4*k+2,2)}, v{V_T}, s[{S_M0}:{S_M0+3}], 0 offen offset:32")

def service_wave(a):
    w = 3; pfx = "RS3"
    wreg = WReg(0, 256, 0)
    mem0_load(a, w)
    a(f"s_lshl_b32 s{S_LB}, s{S_WAVE}, 15")
    if OPT('COOP', 1):
        coop_load(a, w, wreg)
    else:
        a(f"""s_mul_i32 s{S_COL}, s{S_H}, 384
s_mul_i32 s{S_T}, s{S_C}, 96
s_add_u32 s{S_COL}, s{S_COL}, s{S_T}""")
        units = [(S_WV, S_COL, t*32 + p*32*H*E*2) for p in range(20) for t in range(3)]
        load_w2(a, units, lambda u, T, k: wreg.pair((u % 3)*20 + u // 3, k), 1, H*E*2, 2, V_LANE, V_POLL, V_POLL+1, V_T, S_T, S_LB)
    common_setup(a, w)
    PQ = V_KXF; PV_ = V_KXF+2; R = V_KXF+6; SEL = V_KXF+8; ONES = V_KXF+12; AGZ = V_KXF+7; RSO2 = V_KXF+5
    a(f"""v_lshrrev_b32 v{V_AST}, 1, v{V_G}
v_lshlrev_b32 v{V_AST}, 8, v{V_AST}
v_lshlrev_b32 v{V_T}, 4, v{V_N}
v_add_u32 v{V_AST}, v{V_AST}, v{V_T}
v_and_b32 v{V_T}, 1, v{V_G}
v_lshlrev_b32 v{V_T}, 3, v{V_T}
v_add_u32 v{V_AST}, v{V_AST}, v{V_T}
v_lshlrev_b32 v{V_AST+1}, 4, v{V_N}
v_add_u32 v{V_AST+1}, v{V_AST+1}, v{V_T}
s_mul_i32 s{S_T2}, s{S_H}, 9216
s_mul_i32 s{S_T}, s{S_C}, 768
s_add_u32 s{S_T}, s{S_T}, s{S_T2}
v_add_u32 v{PQ}, s{S_T}, v{V_L16}
v_add_u32 v{PQ+1}, 3072, v{PQ}
v_add_u32 v{PV_}, 6144, v{PQ}
s_add_u32 s{S_T}, s{S_T}, 6144
v_add_u32 v{V_AST}, s{S_T}, v{V_AST}
v_add_u32 v{V_AST+1}, s{S_T}, v{V_AST+1}
v_add_u32 v{V_AST+1}, 512, v{V_AST+1}""")
    for r in (V_AST, V_AST+1, PV_, PQ, PQ+1): nearmap_v(a, r, V_T)
    oob_mask(a, PV_, 48); oob_mask(a, PQ+1, 48); oob_mask(a, PQ, 48); oob_mask(a, V_AST+1, 32)
    for k in range(3):
        a(f"v_add_u32 v{V_APO+k}, s{S_T2}, v{V_L16}")
        a(f"v_add_u32 v{V_APO+k}, {6144 + k*1024}, v{V_APO+k}")
        nearmap_v(a, V_APO+k, V_T)
    a(f"v_add_u32 v{V_APL}, {L_QKV + 6144}, v{V_L16}")
    rs_lane(a, R)
    a(f"""s_mul_i32 s{S_RSB}, s{S_C}, {5*32768}
s_add_u32 s{S_RSB}, s{S_RSB}, {nearmap(RS_LOG)}
s_and_b32 s{S_COL}, s{S_J}, 31""")
    blk_off(a, S_COL, S_RSP, S_T)
    loc_off(a, S_COL, 72, S_T)
    a(f"s_add_u32 s{S_COL}, s{S_COL}, 32")
    blk_off(a, S_COL, S_RED, S_T)
    loc_off(a, S_COL, 73, S_T)
    rs_local_lane(a, V_RSOL)
    a(f"""s_lshr_b32 s77, s{S_J}, 5
s_mul_i32 s77, s77, 81920
s_mul_i32 s{S_T}, s{S_C}, {5*4096}
s_add_u32 s77, s77, s{S_T}""")
    a(f"""s_lshr_b32 s{S_T}, s{S_J}, 5
s_mul_i32 s{S_T}, s{S_T}, 10240
s_add_u32 s{S_T}, s{S_T}, {AG_LOG}
s_and_b32 s{S_T2}, s{S_J}, 31
s_lshl_b32 s{S_T3}, s{S_T2}, 7
s_add_u32 s{S_T}, s{S_T}, s{S_T3}
v_lshrrev_b32 v{V_AGS}, 3, v{V_LANE}
v_lshlrev_b32 v{V_AGS}, 12, v{V_AGS}
v_and_b32 v{V_T}, 7, v{V_LANE}
v_lshlrev_b32 v{V_T}, 4, v{V_T}
v_add_u32 v{V_AGS}, v{V_AGS}, v{V_T}
v_add_u32 v{V_AGS}, s{S_T}, v{V_AGS}""")
    nearmap_v(a, V_AGS, V_T)
    a(f"v_mov_b32 v{AGZ}, v{V_AGS}")
    a(f"""v_bfe_u32 v{V_AGS}, v{V_LANE}, 3, 1
v_lshlrev_b32 v{V_AGS}, 12, v{V_AGS}
v_and_b32 v{V_T}, 7, v{V_LANE}
v_lshlrev_b32 v{V_T}, 4, v{V_T}
v_add_u32 v{V_AGS}, v{V_AGS}, v{V_T}
v_lshlrev_b32 v{V_T}, 3, v{V_G}
v_add_u32 v{V_AGS}, v{V_AGS}, v{V_T}
s_lshr_b32 s{S_T}, s{S_J}, 5
s_mul_i32 s{S_T}, s{S_T}, 10240
s_add_u32 s{S_T}, s{S_T}, {AG_LOG}
s_add_u32 s{S_T}, s{S_T}, s{S_T3}
v_add_u32 v{V_AGS}, s{S_T}, v{V_AGS}""")
    nearmap_v(a, V_AGS, V_T)
    oob_mask(a, V_AGS, 32)
    a(f"""v_mov_b32 v{RSO2}, s{S_RSP}
v_mov_b32 v{V_T}, s{S_RED}
v_cndmask_b32 v{RSO2}, v{RSO2}, v{V_T}, s[{S_H8}:{S_H8+1}]
v_lshlrev_b32 v{V_T}, 7, v{V_G}
v_add_u32 v{RSO2}, v{RSO2}, v{V_T}
v_and_b32 v{V_T}, 7, v{V_LANE}
v_lshlrev_b32 v{V_T}, 4, v{V_T}
v_add_u32 v{RSO2}, v{RSO2}, v{V_T}""")
    a(f"s_cmp_lt_u32 s{S_T2}, 16")
    a(f"s_cselect_b32 s{S_T}, 24, 16")
    a(f"v_mov_b32 v{V_T}, 0x80000000")
    a(f"v_cmp_gt_u32 vcc, s{S_T}, v{V_LANE}")
    a(f"v_cndmask_b32 v{AGZ}, v{V_T}, v{AGZ}, vcc")
    sel_setup(a, SEL)
    for k in range(4): a(f"v_mov_b32 v{ONES+k}, -1")
    a(f"v_mov_b32 v{ONES+4}, 1")
    read_polarity(a, pfx)
    a("s_barrier")
    mem0_stage(a, w)
    a("s_waitcnt vmcnt(0) lgkmcnt(0)")
    a("s_barrier")
    stamp(a, 0)
    pfx0 = pfx
    a(f"s_cmp_eq_u32 s{S_MODE}, 0")
    a(f"s_cbranch_scc1 {pfx0}S_B0")
    a(f"s_branch {pfx0}F_B0")
    for mode in (1, 0):
        CURMODE[0] = mode
        pfx = pfx0 + ("F" if mode else "S")
        service_loop(a, pfx, PQ, PV_, R, SEL, ONES, AGZ, RSO2)
    CURMODE[0] = None

def service_loop(a, pfx, PQ, PV_, R, SEL, ONES, AGZ, RSO2):
    a.label(f"{pfx}_LOOP")
    stamp(a, 0)
    ag_poll(a, pfx, 3)
    a.label(f"{pfx}_B0")
    a("s_waitcnt lgkmcnt(0)")
    a("s_barrier")
    mark(a, S_REF0)
    stamp(a, 1)
    SP = 140
    w8s = lambda t, K: ar((t*20 + 2*K)*4, 8)
    for K in range(10):
        a(f"ds_read_b128 {vr(V_RING+4*K)}, v{V_L16} offset:{L_MEM + K*1024}")
    for r in range(12): a(f"v_mov_b32 v{V_ACC+r}, 0")
    for K in range(10):
        a(f"s_waitcnt lgkmcnt({9-K})")
        for t in range(2):
            a(f"v_smfmac_f32_16x16x64_bf16 {vr(V_ACC+4*t)}, {vr(V_RING+4*K)}, {w8s(t,K)}, v{V_IDX}")
    P01 = pack_pair(V_ACC, V_ACC+4, SP)
    for K in range(10):
        a(f"v_smfmac_f32_16x16x64_bf16 {vr(V_ACC+8)}, {vr(V_RING+4*K)}, {w8s(2,K)}, v{V_IDX}")
        if K >= 2 and P01: a(P01.pop(0))
        if K >= 6 and P01: a(P01.pop(0))
    while P01: a(P01.pop(0))
    store_mode(a, [f"buffer_store_dwordx2 {vr(SP,2)}, v{V_AST}, s[{S_WS}:{S_WS+3}], s{S_CUR} offen SCX"])
    for r in range(4): a(f"v_mov_b32 v{SP+8+r}, v{V_ACC+8+r}")
    for x in pack_pair(V_ACC+8, SP+8, SP+4): a(x)
    store_mode(a, [f"buffer_store_dwordx2 {vr(SP+4,2)}, v{V_AST+1}, s[{S_WS}:{S_WS+3}], s{S_CUR} offen SCX"])
    stamp(a, 2)
    wait_mode(a, S_REF0, OPT('T_VF', 1300), OPT('T_V', 1500))
    loads = [f"buffer_load_dwordx4 {vr(V_POLL+4*k)}, v{V_APO+k}, s[{S_WS}:{S_WS+3}], s{S_CUR} offen sc1" for k in range(3)]
    if OPT('TWOB', 1):
        for x in loads: a(x)
        stamp(a, 3)
        a("s_barrier")
        stamp(a, 4)
        def stV():
            for k in range(3):
                a(f"ds_write_b128 v{V_APL}, {vr(V_POLL+4*k)} offset:{k*1024}")
        if OPT('SPEC', 0): poll_loop(a, f"{pfx}_VP", loads, 12, 93, pre_issued=True, spec=stV)
        else:
            poll_loop(a, f"{pfx}_VP", loads, 12, 93, pre_issued=True)
            stV()
        a("s_waitcnt lgkmcnt(0)")
        a("s_barrier")
        mark(a, 96)
        stamp(a, 5)
    else:
        poll_loop(a, f"{pfx}_VP", loads, 12, 93)
        for k in range(3):
            a(f"ds_write_b128 v{V_APL}, {vr(V_POLL+4*k)} offset:{k*1024}")
        a("s_waitcnt lgkmcnt(0)")
        stamp(a, 3)
        a("s_barrier")
        mark(a, 96)
        stamp(a, 4)
        stamp(a, 5)
    a(f"s_cmp_eq_u32 s{S_STEP}, 63")
    a(f"s_cbranch_scc1 {pfx}_DONE")
    store_mode(a, [f"buffer_store_dwordx4 {vr(ONES)}, v{r}, s[{S_WS}:{S_WS+3}], s{S_NN} offen SCX" for r in (PQ, PQ+1, PV_)])
    a(f"s_add_u32 s{S_T}, s{S_NN}, s{S_RSB}")
    a(f"s_mov_b64 exec, s[{S_M8}:{S_M8+1}]")
    for P in range(5):
        if P > 0: a(f"s_add_u32 s{S_T}, s{S_T}, 32768")
        a(f"buffer_store_dwordx4 {vr(ONES)}, v{R}, s[{S_WS}:{S_WS+3}], s{S_T} offen sc1")
    if CURMODE[0] and RSLOC():
        a(f"s_xor_b32 s74, s{S_NN}, 8192")
        for P in range(5):
            a(f"s_add_u32 s{S_T}, s77, {P*4096}")
            smap(a, S_T, S_T2)
            a(f"s_add_u32 s{S_T}, s{S_T}, s74")
            a(f"buffer_store_dwordx4 {vr(ONES)}, v{V_RSOL}, s[{S_WS}:{S_WS+3}], s{S_T} offen")
    a("s_mov_b64 exec, -1")
    store_mode(a, [f"buffer_store_dwordx4 {vr(ONES)}, v{AGZ}, s[{S_WS}:{S_WS+3}], s{S_NN} offen SCX"])
    stamp(a, 6)
    wait_until(a, 96, OPT('T_RS', 1150))
    if OPT('RED2', 1):
        reduce2(a, pfx, SEL, 32, RSO2, V_AGS, 64, 160)
    else:
        raise SystemExit("RED2=0 no longer supported")
    a(f"s_add_u32 s{S_STEP}, s{S_STEP}, 1")
    a(f"s_cmp_ge_u32 s{S_STEP}, 64")
    a(f"s_cbranch_scc1 {pfx}_DONE")
    rotate_slots(a)
    stamp_acc(a)
    mark(a, S_REF2)
    a(f"s_branch {pfx}_LOOP")
    a.label(f"{pfx}_DONE")
    a("s_waitcnt vmcnt(0)")
    a("s_barrier")
    stamp_out(a, 3)
    a("s_endpgm")

def rec_entry(a):
    a(f"""s_load_dwordx4 s[64:67], s[0:1], {KA['wq']}
s_load_dwordx4 s[68:71], s[0:1], {KA['wv']}
s_load_dwordx2 s[72:73], s[0:1], {KA['mem0']}
s_waitcnt lgkmcnt(0)""")
    srd(a, S_WQ, 64, D*H*E*2); srd(a, S_WK, 66, D*H*E*2); srd(a, S_WV, 68, D*H*E*2); srd(a, S_WO, 70, D*H*E*2)
    srd(a, S_M0, 72, M*D*2)
    a(f"s_lshr_b32 s{S_H}, s{S_J}, 2\ns_and_b32 s{S_C}, s{S_J}, 3")

def probe(a, s_k, s_xcc, lbl, s_dbg):
    a(f"""s_mov_b64 exec, 1
v_mov_b32 v10, -1
s_lshl_b32 s{S_T}, s{s_k}, 21
s_add_u32 s{S_T}, s{S_T}, {RING + PROBE_OFF}
v_mov_b32 v11, s{S_T}
v_add_u32 v13, 8192, v11
s_mov_b32 s{S_T2}, 0
s_mov_b32 s84, -1
s_mov_b32 s85, -1""")
    a.label(f"{lbl}_R")
    a(f"""buffer_store_dword v10, v11, s[{S_WS}:{S_WS+3}], 0 offen sc1
buffer_store_dword v10, v13, s[{S_WS}:{S_WS+3}], 0 offen sc1
s_waitcnt vmcnt(0)
s_sleep 6""")
    for hsel in range(2):
        a(f"""s_memtime s[80:81]
s_waitcnt lgkmcnt(0)
buffer_load_dword v12, v{11 if hsel == 0 else 13}, s[{S_WS}:{S_WS+3}], 0 offen sc1
s_waitcnt vmcnt(0)
s_memtime s[82:83]
s_waitcnt lgkmcnt(0)
s_sub_u32 s{86+hsel}, s82, s80""")
    a(f"""s_min_u32 s84, s84, s86
s_min_u32 s85, s85, s87
s_add_u32 s{S_T2}, s{S_T2}, 1
s_cmp_lt_u32 s{S_T2}, {OPT('PROBE_N', 7)}
s_cbranch_scc1 {lbl}_R
s_cmp_lt_u32 s85, s84
s_cselect_b32 s{S_T3}, 1, 0
s_lshr_b32 s{S_T}, s{s_xcc}, 2
s_xor_b32 s{S_T3}, s{S_T3}, s{S_T}
s_and_b32 s{S_T3}, s{S_T3}, 1
s_or_b32 s{S_T3}, s{S_T3}, 2
s_lshl_b32 s{S_T}, s{s_k}, 1
s_lshl_b32 s{S_T3}, s{S_T3}, s{S_T}
v_mov_b32 v10, s{S_T3}
v_mov_b32 v11, {DB_POL}
global_atomic_or v11, v10, s[{s_dbg}:{s_dbg+1}] sc1
s_waitcnt vmcnt(0)
s_mov_b64 exec, -1""")

def rec_dispatch(a, flags=False):
    a(f"""s_cmp_eq_u32 s{S_WAVE}, 0
s_cbranch_scc1 RK_W0
s_cmp_eq_u32 s{S_WAVE}, 1
s_cbranch_scc1 RK_W1
s_cmp_eq_u32 s{S_WAVE}, 2
s_cbranch_scc1 RK_W2
s_branch RK_W3""")
    for w in range(3):
        a.label(f"RK_W{w}")
        main_wave(a, w, flags)
    a.label("RK_W3")
    service_wave(a)

def gen_rec_kernel():
    a = Asm(); name = "rec_kernel"
    kernel_header(a, name)
    if OPT('STAMP', 0): a("s_memtime s[100:101]")
    a(f"""s_cmp_ge_u32 s2, 256
s_cbranch_scc1 RK_END
s_load_dwordx2 s[74:75], s[0:1], {KA['ws']}
s_load_dwordx2 s[76:77], s[0:1], {KA['dbg']}
s_getreg_b32 s78, hwreg(HW_REG_XCC_ID)
s_and_b32 s78, s78, 15
s_waitcnt lgkmcnt(0)""")
    srd(a, S_WS, 74, WS_SIZE)
    lane_setup(a, V_LANE, V_G, V_N, S_WAVE)
    a(f"""s_cmp_lg_u32 s{S_WAVE}, 0
s_cbranch_scc1 RK_NORANK
v_mov_b32 v10, 1
s_lshl_b32 s79, s78, 2
v_mov_b32 v11, s79
s_mov_b64 exec, 1
global_atomic_add v12, v11, v10, s[76:77] sc0 sc1
s_waitcnt vmcnt(0)
v_mov_b32 v11, 0
ds_write_b32 v11, v12
s_waitcnt lgkmcnt(0)
s_mov_b64 exec, -1""")
    a.label("RK_NORANK")
    a(f"""s_barrier
v_mov_b32 v11, 0
ds_read_b32 v12, v11
s_waitcnt lgkmcnt(0)
v_readfirstlane_b32 s79, v12
s_barrier
s_cmp_lt_u32 s78, 4
s_cbranch_scc1 RK_REC
s_cmp_lg_u32 s78, 4
s_cbranch_scc1 RK_END
s_cmp_ge_u32 s79, 4
s_cbranch_scc1 RK_END
s_cmp_lg_u32 s{S_WAVE}, 0
s_cbranch_scc1 RK_END""")
    probe(a, 79, 78, "RK_PR", 76)
    a("s_endpgm")
    a.label("RK_REC")
    a(f"""s_cmp_ge_u32 s79, 32
s_cbranch_scc1 RK_END
s_lshl_b32 s{S_J}, s78, 5
s_add_u32 s{S_J}, s{S_J}, s79""")
    rec_entry(a)
    rec_dispatch(a)
    a.label("RK_END")
    a("s_endpgm")
    return name, a.finalize(), kernel_desc(name, 512, 102, 256)

def read_polarity(a, pfx):
    a(f"s_load_dwordx2 s[96:97], s[0:1], {KA['dbg']}")
    a(f"v_and_b32 v{V_T2}, 15, v{V_LANE}")
    a(f"v_lshlrev_b32 v{V_T2}, 2, v{V_T2}")
    a(f"s_mov_b32 s{S_RETRY}, 0")
    a("s_waitcnt lgkmcnt(0)")
    a.label(f"{pfx}_MD")
    a(f"global_load_dword v{V_T}, v{V_T2}, s[96:97] sc1")
    a("s_waitcnt vmcnt(0)")
    a(f"s_mov_b32 s{S_T}, 0")
    a(f"s_mov_b32 s{S_MODE}, 1")
    for x in range(8):
        a(f"v_readlane_b32 s{S_T2}, v{V_T}, {x}")
        a(f"s_add_u32 s{S_T}, s{S_T}, s{S_T2}")
        a(f"s_cmp_eq_u32 s{S_T2}, 32")
        a(f"s_cselect_b32 s{S_MODE}, s{S_MODE}, 0")
    a(f"v_readlane_b32 s{S_T2}, v{V_T}, {DB_INIT//4}")
    a(f"v_readlane_b32 s{S_T3}, v{V_T}, {DB_POL//4}")
    a(f"s_cmp_ge_u32 s{S_T}, 256")
    a(f"s_cbranch_scc0 {pfx}_MDN")
    if INITWAIT[0]:
        a(f"s_cmp_ge_u32 s{S_T2}, 80")
        a(f"s_cbranch_scc0 {pfx}_MDN")
    a(f"s_and_b32 s{S_T}, s{S_T3}, 0xaa")
    a(f"s_cmp_eq_u32 s{S_T}, 0xaa")
    a(f"s_cbranch_scc1 {pfx}_POLOK")
    a.label(f"{pfx}_MDN")
    a(f"""s_sleep 4
s_add_u32 s{S_RETRY}, s{S_RETRY}, 1
s_cmp_lt_u32 s{S_RETRY}, 0x200000
s_cbranch_scc1 {pfx}_MD
s_mov_b32 s{S_MODE}, 0""")
    a.label(f"{pfx}_POLOK")
    if OPT('FORCESLOW', 0): a(f"s_mov_b32 s{S_MODE}, 0")
    a(f"""s_and_b32 s{S_T}, s{S_T3}, 0x55
s_xor_b32 s{S_T}, s{S_T}, 0x44
s_bcnt1_i32_b32 s{S_T2}, s{S_T}
s_cmp_ge_u32 s{S_T2}, 3
s_cselect_b32 s{S_T}, 0x55, s{S_T}
s_cmp_le_u32 s{S_T2}, 1
s_cselect_b32 s{S_T}, 0, s{S_T}
s_xor_b32 s{S_T3}, s{S_T}, 0x44""")
    if OPT('FLIPPOL', 0): a(f"s_xor_b32 s{S_T3}, s{S_T3}, 0x55")
    for k, s in enumerate((S_CUR, S_N, S_NN, S_P)):
        a(f"""s_bfe_u32 s{S_T}, s{S_T3}, {(1<<16) | (2*k)}
s_lshl_b32 s{S_T}, s{S_T}, 13
s_add_u32 s{s}, s{S_T}, {RING + k*RING_SLOT}""")
```

```python
from gen_common import *
import struct, os
OPT=lambda k,d: type(d)(os.environ.get(k,d))
def f2u(f): return struct.unpack('<I', struct.pack('<f', f))[0]

S_WS=4; S_WQ=8; S_WK=12; S_WV=16; S_WO=20
S_WAVE=24; S_H=25; S_C=26; S_J=27; S_STEP=28
S_P=29; S_CUR=30; S_N=31; S_NN=32
S_HI32=20
S_MQ=16
S_M8=34; S_H8=38
S_T=40; S_T2=41; S_T3=42; S_RETRY=43
S_KVG=44; S_UXG=45; S_UYG=46; S_KMG=47; S_RSB=48; S_KVL=49; S_KVR=50; S_RED=51; S_RSP=52; S_FLG=53
S_LB=54
S_COL=56
S_SCALE=60; S_MAXR=61
S_TS=62
S_M0=88
S_MODE=57
S_REF0=98
S_REF2=36
S_NOW=58
L_MEM=0; L_QKV=10240; L_KV=20480; KVB=24576
LDS_REC=131072
V_LANE=1; V_G=2; V_N=3; V_T=4; V_T2=5; V_L16=6
V_AGO=7; V_AGL=10; V_MRD=11; V_AGP=23
V_RSL=7
V_AST=12; V_KMS=15; V_APO=16; V_APL=19
V_RQ=20; V_IDX=21; V_RV=22; V_RSO=28; V_L4=29; V_AGS=30; V_ZERO=31
V_RSP=80
V_NINF=248; V_KVA=249
V_POLL=32; V_RING=48; V_ACC=88; V_PK=252; V_KXF=100; V_QF=148; V_KF=172; V_VF=196; V_S=220; V_UXF=232
V_Y=48; V_PU=64; V_UA=48; V_YF=220; V_SM=148
NT = [4, 4, 2]; T0 = [0, 4, 8]; P0 = [0, 2, 4]
KVX = L_KV ^ (L_KV+KVB)

def poll_check(a, regs, vt):
    r = list(regs)
    a(f"v_max3_u32 v{vt}, v{r[0]}, v{r[1]}, v{r[2]}")
    i = 3
    while i < len(r):
        if i + 1 < len(r):
            a(f"v_max3_u32 v{vt}, v{vt}, v{r[i]}, v{r[i+1]}"); i += 2
        else:
            a(f"v_max_u32 v{vt}, v{vt}, v{r[i]}"); i += 1
    a(f"v_cmp_eq_u32 vcc, -1, v{vt}")

def sleep(a, n):
    while n > 0:
        k = min(n, 127); a(f"s_sleep {k}"); n -= k

def mark(a, reg):
    a(f"s_memtime s[{reg}:{reg+1}]")

def wait_until(a, ref, delta):
    if delta <= 0: return
    a.uid += 1
    L = f"WU_{a.uid}"
    a.label(L)
    a(f"""s_memtime s[{S_NOW}:{S_NOW+1}]
s_waitcnt lgkmcnt(0)
s_sub_u32 s{S_NOW}, s{S_NOW}, s{ref}
s_cmp_ge_u32 s{S_NOW}, {delta}
s_cbranch_scc1 {L}_D
s_sub_u32 s{S_NOW}, {delta}, s{S_NOW}
s_cmp_lt_u32 s{S_NOW}, 96
s_cbranch_scc1 {L}
s_sleep 1
s_branch {L}""")
    a.label(f"{L}_D")

def stamp(a, idx):
    if OPT('STAMP', 0):
        a(f"s_memtime s[{S_TS+2*idx}:{S_TS+2*idx+1}]")

def racc(a, k):
    if OPT('STAMP', 0): a(f"s_add_u32 s{k}, s{k}, s{S_RETRY}")

def nearmap_v(a, v, vt):
    a(f"""v_lshrrev_b32 v{vt}, 13, v{v}
v_lshlrev_b32 v{vt}, 14, v{vt}
v_and_b32 v{v}, 0x1fff, v{v}
v_or_b32 v{v}, v{v}, v{vt}""")

def oob_mask(a, v, nlanes):
    a(f"""v_mov_b32 v{V_T}, 0x80000000
v_cmp_gt_u32 vcc, {nlanes}, v{V_LANE}
v_cndmask_b32 v{v}, v{V_T}, v{v}, vcc""")

V_AGB=48
def poll_loop(a, lbl, loads, nreg, acc, pre_issued=False, base=None, spec=None):
    a(f"s_mov_b32 s{S_RETRY}, 0")
    if pre_issued:
        a(f"s_branch {lbl}_W")
    a.label(lbl)
    for x in loads: a(x)
    if pre_issued: a.label(f"{lbl}_W")
    a("s_waitcnt vmcnt(0)")
    if spec: spec()
    b0 = V_POLL if base is None else base
    poll_check(a, range(b0, b0+nreg), V_T)
    a(f"""s_cbranch_vccz {lbl}_OK
s_add_u32 s{S_RETRY}, s{S_RETRY}, 1
s_cmp_lt_u32 s{S_RETRY}, s{S_MAXR}
s_cbranch_scc1 {lbl}
s_mov_b32 s{S_MAXR}, 0""")
    a.label(f"{lbl}_OK")
    racc(a, acc)

CURMODE = [None]
def RSLOC(): return OPT('RSLOC', 0) and not OPT('STAMP', 0)
INITWAIT = [False]
def store_mode(a, lines):
    if CURMODE[0] is not None:
        for x in lines: a(x.replace(' SCX', '' if CURMODE[0] else ' sc1'))
        return
    if OPT('AFAST', 1) == 0:
        for x in lines: a(x.replace(' SCX', ' sc1'))
        return
    a.uid += 1
    L = f"SM_{a.uid}"
    a(f"s_cmp_eq_u32 s{S_MODE}, 0")
    a(f"s_cbranch_scc1 {L}_S")
    for x in lines: a(x.replace(' SCX', ''))
    a(f"s_branch {L}_E")
    a.label(f"{L}_S")
    for x in lines: a(x.replace(' SCX', ' sc1'))
    a.label(f"{L}_E")

def wait_mode(a, ref, fast, slow):
    if CURMODE[0] is not None:
        wait_until(a, ref, fast if CURMODE[0] else slow); return
    if OPT('AFAST', 1) == 0:
        wait_until(a, ref, slow); return
    a.uid += 1
    L = f"WM_{a.uid}"
    a(f"s_cmp_eq_u32 s{S_MODE}, 0")
    a(f"s_cbranch_scc1 {L}_S")
    wait_until(a, ref, fast)
    a(f"s_branch {L}_E")
    a.label(f"{L}_S")
    wait_until(a, ref, slow)
    a.label(f"{L}_E")

def poll2(a, lbl, mk_loads, nreg, baseA, baseB, acc, stage, gap=2):
    LA = mk_loads(baseA); LB = mk_loads(baseB); n = len(LA)
    a(f"s_mov_b32 s{S_RETRY}, 0")
    for x in LA: a(x)
    if gap: a(f"s_sleep {gap}")
    a.label(lbl)
    for x in LB: a(x)
    a(f"s_waitcnt vmcnt({n})")
    poll_check(a, range(baseA, baseA+nreg), V_T)
    a(f"s_cbranch_vccz {lbl}_GA")
    for x in LA: a(x)
    a(f"s_waitcnt vmcnt({n})")
    poll_check(a, range(baseB, baseB+nreg), V_T)
    a(f"""s_cbranch_vccz {lbl}_GB
s_add_u32 s{S_RETRY}, s{S_RETRY}, 1
s_cmp_lt_u32 s{S_RETRY}, s{S_MAXR}
s_cbranch_scc1 {lbl}
s_mov_b32 s{S_MAXR}, 0""")
    a.label(f"{lbl}_GB")
    racc(a, acc)
    stage(baseB)
    a(f"s_branch {lbl}_E")
    a.label(f"{lbl}_GA")
    racc(a, acc)
    stage(baseA)
    a.label(f"{lbl}_E")

def ag_poll(a, pfx, w):
    wait_mode(a, S_REF2, OPT('T_AGF', 0), OPT('T_AG', 650))
    base = (w-2)*5
    def mk(b): return [f"buffer_load_dwordx4 {vr(b+4*k)}, v{V_AGP+k}, s[{S_WS}:{S_WS+3}], s{S_P} offen sc1" for k in range(5)]
    def stage(b):
        for k in range(5):
            a(f"ds_write_b128 v{V_L16}, {vr(b+4*k)} offset:{L_MEM + (base+k)*1024}")
    if CURMODE[0] and OPT('POLL2', 0):
        poll2(a, f"{pfx}_AGP", mk, 20, 172, 196, 92, stage, gap=OPT('GAPD', 2))
    else:
        if OPT('SPEC', 0): poll_loop(a, f"{pfx}_AGP", mk(V_AGB), 20, 92, base=V_AGB, spec=lambda: stage(V_AGB))
        else:
            poll_loop(a, f"{pfx}_AGP", mk(V_AGB), 20, 92, base=V_AGB)
            stage(V_AGB)

def reduce_blocks(a, pfx, nb, SEL, base_reg, s_poll, v_ags, acc, apk, s_loc0=None, s_loc=None, sqbase=None):
    loads = []
    LOCAL = CURMODE[0] and RSLOC()
    if LOCAL:
        a(f"s_lshr_b32 s{S_NOW}, s{S_J}, 5")
        a(f"s_xor_b32 s{S_NOW+1}, s{S_CUR}, 8192")
        for b in range(nb):
            a(f"s_add_u32 s{s_loc[b]}, s{s_loc0[b]}, s{S_NOW+1}")
        for b in range(nb):
            for q in range(4):
                sq = sqbase + 4*b + q
                a(f"s_add_u32 s{sq}, s{s_poll[b]}, {q*1024}")
                a(f"s_cmp_eq_u32 s{S_NOW}, {q}")
                a(f"s_cselect_b32 s{sq}, s{s_loc[b]}, s{sq}")
                loads.append(f"buffer_load_dwordx4 {vr(base_reg+16*b+4*q)}, v{V_L16}, s[{S_WS}:{S_WS+3}], s{sq} offen sc1")
    else:
        for b in range(nb):
            for q in range(4):
                loads.append(f"buffer_load_dwordx4 {vr(base_reg+16*b+4*q)}, v{V_L16}, s[{S_WS}:{S_WS+3}], s{s_poll[b]} offen offset:{q*1024} sc1")
    poll_loop(a, f"{pfx}_RP", loads, 16*nb, 94, base=base_reg)
    stamp(a, 7)
    for q in range(4):
        for b in range(nb):
            c = "0" if q == 0 else vr(acc+8*b)
            a(f"v_mfma_f32_16x16x32_bf16 {vr(acc+8*b)}, {vr(SEL)}, {vr(base_reg+16*b+4*q)}, {c}")
    for b in range(nb):
        for r in range(4):
            a(f"v_add_f32_dpp v{acc+8*b+4+r}, v{acc+8*b+r}, v{acc+8*b+r} row_ror:8 row_mask:0xf bank_mask:0xf")
    if nb == 2:
        for r in range(4): a(f"v_cndmask_b32 v{acc+4+r}, v{acc+4+r}, v{acc+12+r}, s[{S_H8}:{S_H8+1}]")
    a(f"v_cvt_pk_bf16_f32 v{apk}, v{acc+4}, v{acc+5}")
    a(f"v_cvt_pk_bf16_f32 v{apk+1}, v{acc+6}, v{acc+7}")
    a(f"v_mov_b32 v{apk+2}, v{apk}\nv_mov_b32 v{apk+3}, v{apk+1}")
    a(f"v_mov_b32 v{apk+4}, v{apk}\nv_mov_b32 v{apk+5}, v{apk+1}")
    a(f"v_permlane16_swap_b32 v{apk+4}, v{apk+2}")
    a(f"v_permlane16_swap_b32 v{apk+5}, v{apk+3}")
    store_mode(a, [f"buffer_store_dwordx4 {vr(apk)}, v{v_ags}, s[{S_WS}:{S_WS+3}], s{S_CUR} offen SCX"])

def reduce2(a, pfx, SEL, base_reg, v_off, v_ags, acc, apk):
    loads = [f"buffer_load_dwordx4 {vr(base_reg+4*q)}, v{v_off}, s[{S_WS}:{S_WS+3}], s{S_CUR} offen offset:{q*512} sc1" for q in range(8)]
    poll_loop(a, f"{pfx}_RP", loads, 32, 94, base=base_reg)
    stamp(a, 7)
    for q in range(8):
        c = "0" if q == 0 else vr(acc)
        a(f"v_mfma_f32_16x16x32_bf16 {vr(acc)}, {vr(SEL)}, {vr(base_reg+4*q)}, {c}")
    a(f"v_cvt_pk_bf16_f32 v{apk}, v{acc}, v{acc+1}")
    a(f"v_cvt_pk_bf16_f32 v{apk+1}, v{acc+2}, v{acc+3}")
    store_mode(a, [f"buffer_store_dwordx2 {vr(apk,2)}, v{v_ags}, s[{S_WS}:{S_WS+3}], s{S_CUR} offen SCX"])

def sel_setup(a, SEL):
    for k in range(4):
        a(f"""v_mov_b32 v{SEL+k}, 0
v_mov_b32 v{V_T}, 0x3f80
v_cmp_eq_u32 vcc, {2*k}, v{V_N}
v_cndmask_b32 v{SEL+k}, v{SEL+k}, v{V_T}, vcc
v_mov_b32 v{V_T}, 0x3f800000
v_cmp_eq_u32 vcc, {2*k+1}, v{V_N}
v_cndmask_b32 v{SEL+k}, v{SEL+k}, v{V_T}, vcc""")

def smap(a, s, t):
    a(f"""s_lshr_b32 s{t}, s{s}, 13
s_lshl_b32 s{t}, s{t}, 14
s_and_b32 s{s}, s{s}, 0x1fff
s_or_b32 s{s}, s{s}, s{t}
s_add_u32 s{s}, s{s}, {nearmap(RS_LOG)}""")

def loc_off(a, s_cb, s_out, s_tmp):
    a(f"""s_lshr_b32 s{s_out}, s{S_J}, 5
s_mul_i32 s{s_out}, s{s_out}, 81920
s_lshl_b32 s{s_tmp}, s{s_cb}, 10
s_add_u32 s{s_out}, s{s_out}, s{s_tmp}""")
    smap(a, s_out, s_tmp)

def rs_local_lane(a, v):
    a(f"""v_lshlrev_b32 v{v}, 10, v{V_G}
v_and_b32 v{V_T}, 7, v{V_LANE}
v_lshlrev_b32 v{V_T}, 4, v{V_T}
v_add_u32 v{v}, v{v}, v{V_T}
s_and_b32 s{S_T}, s{S_H}, 7
s_lshl_b32 s{S_T}, s{S_T}, 7
v_add_u32 v{v}, s{S_T}, v{v}""")

def blk_off(a, s_cb, s_out, s_tmp):
    a(f"""s_lshr_b32 s{s_out}, s{s_cb}, 1
s_lshl_b32 s{s_out}, s{s_out}, 14
s_and_b32 s{s_tmp}, s{s_cb}, 1
s_lshl_b32 s{s_tmp}, s{s_tmp}, 12
s_add_u32 s{s_out}, s{s_out}, s{s_tmp}
s_add_u32 s{s_out}, s{s_out}, {nearmap(RS_LOG)}""")

def rotate_slots(a):
    a(f"""s_mov_b32 s{S_T}, s{S_P}
s_mov_b32 s{S_P}, s{S_CUR}
s_mov_b32 s{S_CUR}, s{S_N}
s_mov_b32 s{S_N}, s{S_NN}
s_mov_b32 s{S_NN}, s{S_T}""")

def proj_stage(a, ntile, w8):
    for K in range(10):
        a(f"ds_read_b128 {vr(V_RING+4*K)}, v{V_L16} offset:{L_MEM + K*1024}")
    for t in range(ntile):
        for r in range(4): a(f"v_mov_b32 v{V_ACC+4*t+r}, 0")
    for K in range(10):
        a(f"s_waitcnt lgkmcnt({9-K})")
        for t in range(ntile):
            a(f"v_smfmac_f32_16x16x64_bf16 {vr(V_ACC+4*t)}, {vr(V_RING+4*K)}, {w8(t,K)}, v{V_IDX}")

def pack_pair(x, y, pk):
    L = [f"v_permlane32_swap_b32 v{x+r}, v{y+r}" for r in range(4)]
    L += [f"v_add_f32 v{x+r}, v{x+r}, v{y+r}" for r in range(4)]
    L += [f"v_cvt_pk_bf16_f32 v{pk}, v{x}, v{x+1}", f"v_cvt_pk_bf16_f32 v{pk+1}, v{x+2}, v{x+3}"]
    return L

def ux_load(a, w, flags, pfx):
    nt = NT[w]
    if flags:
        a.uid += 1
        a(f"s_add_u32 s{S_UXT}, s{S_UXT}, 1")
        a(f"s_min_u32 s{S_T3}, s{S_UXT}, 64")
        wait_words(a, f"{pfx}_WUX{a.uid}", S_WS, V_UXA, V_T, S_T3, S_UXC, 1, S_T2, 23)
    for t in range(nt):
        a(f"buffer_load_dwordx4 {vr(V_UXF+4*t)}, v{V_L16}, s[{S_WS}:{S_WS+3}], s{S_UXG} offen offset:{t*1024} sc1")
    a(f"s_add_u32 s{S_UXG}, s{S_UXG}, {32*40*1024}")

def idle_phase(a, w, woq):
    if OPT('UXRD', 0):
        a(f"v_add_u32 v{V_T}, s{S_KVR}, v{V_L16}")
        for f in range(12):
            a(f"ds_read_b128 {vr(V_KXF+4*f)}, v{V_T} offset:{f*1024}")
        a("s_waitcnt lgkmcnt(0)")
        a(f"s_xor_b32 s{S_KVR}, s{S_KVR}, {KVX}")
        return
    nt = NT[w]
    a(f"v_add_u32 v{V_T}, s{S_KVR}, v{V_L16}")
    for f in range(12):
        a(f"ds_read_b128 {vr(V_QF+4*f)}, v{V_T} offset:{12288 + f*1024}")
        if f == 7: a("s_waitcnt lgkmcnt(4)")
    a("s_waitcnt lgkmcnt(0)")
    for f in range(12):
        a(f"ds_read_b128 {vr(V_KXF+4*f)}, v{V_T} offset:{f*1024}")
    for p in range(6):
        for t in range(nt):
            for tt in range(2):
                d = V_UA + 8*t + 4*tt
                c = "0" if p == 0 else vr(d)
                a(f"v_mfma_f32_16x16x32_bf16 {vr(d)}, {vr(V_QF+4*(tt*6+p))}, {woq(t,p)}, {c}")
    for t in range(nt):
        for k in range(4):
            tt = k >> 1
            d = V_UA + 8*t + 4*tt + 2*(k & 1)
            a(f"v_cvt_pk_bf16_f32 v{V_UXF+4*t+k}, v{d}, v{d+1}")
        a(f"s_add_u32 s{S_T}, s{S_UXG}, {t*1024}")
        if OPT('UXST', 0): a(f"buffer_store_dwordx4 {vr(V_UXF+4*t)}, v{V_L16}, s[{S_WS}:{S_WS+3}], s{S_T} offen sc1")
    a(f"s_add_u32 s{S_UXG}, s{S_UXG}, {32*40*1024}")
    a("s_waitcnt lgkmcnt(0)")
    a(f"s_xor_b32 s{S_KVR}, s{S_KVR}, {KVX}")

S_UXT=88; S_UXC=89; V_UXA=11
S_KVT=33
S_RLB=18
S_RL0=19; S_RL1=95
AP6 = [16, 17, 18, 19, 7, 8]
V_RSOL=9
S_KVC=21
def kv_dma(a, flags=False, pfx='', w=0):
    if w < 2:
        if flags:
            a.uid += 1
            a(f"s_add_u32 s{S_KVT}, s{S_KVT}, 2")
            a(f"s_min_u32 s{S_T3}, s{S_KVT}, 128")
            wait_words(a, f"{pfx}_WKV{a.uid}", S_WS, V_KVA, V_T, S_T3, 22, 2 if OPT('UXRD', 0) else 4, S_T2, 23)
        if OPT('UXRD', 0):
            for (k0, n) in ((0, 4), (4, 2)):
                a(f"s_add_u32 m0, s{S_KVL}, {w*6144 + k0*1024}")
                a(f"s_add_u32 s{S_T}, s{S_KVG}, {k0*1024}")
                for j in range(n):
                    a(f"buffer_load_dwordx4 v{V_L16}, s[{S_WS}:{S_WS+3}], s{S_T} offen offset:{j*1024} sc1 lds")
        else:
            for k in range(3):
                a(f"s_add_u32 m0, s{S_KVL}, {w*12288 + k*4096}")
                a(f"s_add_u32 s{S_T}, s{S_KVG}, {k*4096}")
                for j in range(4):
                    a(f"buffer_load_dwordx4 v{V_L16}, s[{S_WS}:{S_WS+3}], s{S_T} offen offset:{j*1024} sc1 lds")
        a(f"s_add_u32 s{S_KVG}, s{S_KVG}, {32*12288}")
    a(f"s_xor_b32 s{S_KVL}, s{S_KVL}, {KVX}")

def softmax_lists():
    X = V_SM; MX = V_SM+6; TM = V_SM+7; RS_ = V_SM+8; PT = V_SM+12; PM = V_SM+10; T2 = V_SM+16
    L = []
    for r in range(4): L.append(f"v_cndmask_b32 v{X+r}, v{V_S+4+r}, v{V_S+8+r}, s[{S_H8}:{S_H8+1}]")
    L.append(f"v_cndmask_b32 v{X+4}, v{V_S}, v{V_S+2}, s[{S_H8}:{S_H8+1}]")
    L.append(f"v_cndmask_b32 v{X+5}, v{V_S+1}, v{V_S+3}, s[{S_H8}:{S_H8+1}]")
    L.append(f"v_max3_f32 v{MX}, v{X}, v{X+1}, v{X+2}")
    L.append(f"v_max3_f32 v{TM}, v{X+3}, v{X+4}, v{X+5}")
    L.append(f"v_max_f32 v{MX}, v{MX}, v{TM}")
    L.append(f"v_max_f32_dpp v{MX}, v{MX}, v{MX} row_ror:8 row_mask:0xf bank_mask:0xf")
    L += [f"v_mov_b32 v{TM}, v{MX}", f"v_permlane16_swap_b32 v{MX}, v{TM}", f"v_max_f32 v{MX}, v{MX}, v{TM}"]
    L += [f"v_mov_b32 v{TM}, v{MX}", f"v_permlane32_swap_b32 v{MX}, v{TM}", f"v_max_f32 v{MX}, v{MX}, v{TM}"]
    L.append(f"v_mul_f32 v{MX}, s{S_SCALE}, v{MX}")
    for j in range(6): L.append(f"v_fma_f32 v{X+j}, v{X+j}, s{S_SCALE}, -v{MX}")
    for j in range(6): L.append(f"v_exp_f32 v{X+j}, v{X+j}")
    L.append(f"v_cvt_pk_bf16_f32 v{PT}, v{X}, v{X+1}")
    L.append(f"v_cvt_pk_bf16_f32 v{PT+1}, v{X+2}, v{X+3}")
    L.append(f"v_cvt_pk_bf16_f32 v{PM}, v{X+4}, v{X+5}")
    L.append(f"v_mov_b32_dpp v{PT+2}, v{PT} row_ror:8 row_mask:0xf bank_mask:0xf")
    L.append(f"v_mov_b32_dpp v{PT+3}, v{PT+1} row_ror:8 row_mask:0xf bank_mask:0xf")
    L.append(f"v_mov_b32_dpp v{PM+1}, v{PM} row_ror:8 row_mask:0xf bank_mask:0xf")
    M = [f"v_cndmask_b32 v{X+4}, v{X+4}, v{V_ZERO}, s[{S_HI32}:{S_HI32+1}]",
         f"v_cndmask_b32 v{X+5}, v{X+5}, v{V_ZERO}, s[{S_HI32}:{S_HI32+1}]",
         f"v_add_f32 v{RS_}, v{X}, v{X+1}", f"v_add_f32 v{TM}, v{X+2}, v{X+3}", f"v_add_f32 v{RS_+1}, v{X+4}, v{X+5}",
         f"v_add_f32 v{RS_}, v{RS_}, v{TM}", f"v_add_f32 v{RS_}, v{RS_}, v{RS_+1}",
         f"v_add_f32_dpp v{RS_}, v{RS_}, v{RS_} row_ror:8 row_mask:0xf bank_mask:0xf",
         f"v_mov_b32 v{TM}, v{RS_}", f"v_permlane16_swap_b32 v{RS_}, v{TM}", f"v_add_f32 v{RS_}, v{RS_}, v{TM}",
         f"v_mov_b32 v{TM}, v{RS_}", f"v_permlane32_swap_b32 v{RS_}, v{TM}", f"v_add_f32 v{RS_}, v{RS_}, v{TM}",
         f"v_rcp_f32 v{RS_}, v{RS_}"]
    return PT, PM, RS_, L, M

def gi(a, v):
    a(f"""v_lshlrev_b32 v{v}, 7, v{V_G}
v_and_b32 v{V_T}, 7, v{V_LANE}
v_lshlrev_b32 v{V_T}, 4, v{V_T}
v_add_u32 v{v}, v{v}, v{V_T}""")

def rs_lane(a, v):
    a(f"""v_lshrrev_b32 v{v}, 1, v{V_G}
v_lshlrev_b32 v{v}, 14, v{v}
v_and_b32 v{V_T}, 1, v{V_G}
v_lshlrev_b32 v{V_T}, 12, v{V_T}
v_add_u32 v{v}, v{v}, v{V_T}
v_and_b32 v{V_T}, 7, v{V_LANE}
v_lshlrev_b32 v{V_T}, 4, v{V_T}
v_add_u32 v{v}, v{v}, v{V_T}
s_lshl_b32 s{S_T}, s{S_H}, 7
v_add_u32 v{v}, s{S_T}, v{v}""")

def coop_load(a, w, wreg):
    stride = H*E*2
    VG, VT = V_POLL, V_POLL+1
    a(f"""v_lshrrev_b32 v{V_T}, 3, v{V_LANE}
v_add_u32 v{V_T}, {8*w}, v{V_T}
s_mov_b32 s{S_LB+1}, {stride}
v_mul_lo_u32 v{VG}, v{V_T}, s{S_LB+1}
v_and_b32 v{V_T}, 7, v{V_LANE}
v_lshlrev_b32 v{V_T}, 4, v{V_T}
v_add_u32 v{VG}, v{VG}, v{V_T}
v_bfe_u32 v{VT}, v{V_LANE}, 4, 1
v_lshlrev_b32 v{VT}, 4, v{VT}
v_bfe_u32 v{V_T}, v{V_LANE}, 5, 1
v_lshlrev_b32 v{V_T}, 3, v{V_T}
v_add_u32 v{VT}, v{VT}, v{V_T}
v_bfe_u32 v{V_T}, v{V_LANE}, 2, 1
v_add_u32 v{VT}, v{VT}, v{V_T}
v_bfe_u32 v{V_T}, v{V_LANE}, 3, 1
v_lshlrev_b32 v{V_T}, 2, v{V_T}
v_add_u32 v{VT}, v{VT}, v{V_T}
v_lshlrev_b32 v{VT}, 7, v{VT}
v_and_b32 v{V_T}, 3, v{V_LANE}
v_lshlrev_b32 v{V_T}, 3, v{V_T}
v_add_u32 v{VT}, v{VT}, v{V_T}
s_mul_i32 s{S_COL}, s{S_H}, 384
s_mul_i32 s{S_T}, s{S_C}, 96
s_add_u32 s{S_COL}, s{S_COL}, s{S_T}
v_add_u32 v{VT+1}, 61440, v{VT}""")
    srds = (S_WQ, S_WK, S_WV)
    def issue(ph):
        buf = (ph & 1)*61440
        for pp in range(5):
            p = 5*ph + pp
            for m in range(3):
                a(f"s_add_u32 s{S_T}, s{S_COL}, {p*32*stride}")
                a(f"s_mov_b32 m0, {buf + (pp*3+m)*4096 + w*1024}")
                a(f"buffer_load_dwordx4 v{VG}, s[{srds[m]}:{srds[m]+3}], s{S_T} offen lds")
    issue(0); issue(1)
    for ph in range(4):
        a(f"s_waitcnt vmcnt({15 if ph < 3 else 0})")
        a("s_barrier")
        buf = (ph & 1)*61440
        n = 0
        for pp in range(5):
            p = 5*ph + pp
            if w < 3: items = [(0, w, p), (1, w, 20+p)]
            else: items = [(2, t, t*20+p) for t in range(3)]
            for (m, T, f) in items:
                o = buf + (pp*3+m)*4096 + T*32
                reg = VT if o + 256 < 65536 else VT+1
                oo = o if reg == VT else o - 61440
                a(f"ds_read_b64_tr_b16 {wreg.pair(f,0)}, v{reg} offset:{oo}")
                a(f"ds_read_b64_tr_b16 {wreg.pair(f,1)}, v{reg} offset:{oo+256}")
                n += 2
                if n % 12 == 0: a("s_waitcnt lgkmcnt(4)")
        a("s_waitcnt lgkmcnt(0)")
        a("s_barrier")
        if ph == 0: pass
        if ph + 2 < 4: issue(ph+2)

def main_wave(a, w, flags=False):
    pfx = f"RM{w}"
    nt = NT[w]
    wreg = WReg(0, 256, 0)
    mem0_load(a, w)
    w8 = lambda t, K: ar((t*20 + 2*K)*4, 8)
    woq = lambda t, p: wreg.quad(40 + t*6 + p)
    a(f"s_lshl_b32 s{S_LB}, s{S_WAVE}, 15")
    if OPT('COOP', 1):
        coop_load(a, w, wreg)
    else:
        a(f"""s_mul_i32 s{S_COL}, s{S_H}, 384
s_mul_i32 s{S_T}, s{S_C}, 96
s_add_u32 s{S_COL}, s{S_COL}, s{S_T}
s_add_u32 s{S_COL}, s{S_COL}, {w*32}""")
        units = []
        for p in range(20): units += [(S_WQ, S_COL, p*32*H*E*2), (S_WK, S_COL, p*32*H*E*2)]
        load_w2(a, units, lambda u, T, k: wreg.pair((u & 1)*20 + (u >> 1), k), 1, H*E*2, 2, V_LANE, V_POLL, V_POLL+1, V_T, S_T, S_LB)
    a(f"""s_mul_i32 s{S_COL}, s{S_H}, {192*1280}
s_mul_i32 s{S_T}, s{S_C}, 320
s_add_u32 s{S_COL}, s{S_COL}, s{S_T}
s_add_u32 s{S_COL}, s{S_COL}, {T0[w]*32}""")
    ng = nt//2
    units = [(S_WO, S_COL, g*64 + p*32*1280) for p in range(6) for g in range(ng)]
    load_w2(a, units, lambda u, T, k: wreg.pair(40 + ((u % ng)*2 + T)*6 + u // ng, k), 2, D*2, True, V_LANE, V_POLL, V_POLL+1, V_T, S_T, S_LB)
    if OPT('STAMP', 0): a("s_memtime s[78:79]\ns_waitcnt lgkmcnt(0)\ns_sub_u32 s95, s78, s100")
    common_setup(a, w)
    gi(a, V_KMS)
    a(f"v_add_u32 v{V_KMS}, {w*1024}, v{V_KMS}")
    a(f"""v_lshrrev_b32 v{V_AST}, 1, v{V_G}
v_mul_u32_u24 v{V_AST}, 3072, v{V_AST}
v_lshlrev_b32 v{V_T}, 4, v{V_N}
v_add_u32 v{V_AST}, v{V_AST}, v{V_T}
v_and_b32 v{V_T}, 1, v{V_G}
v_lshlrev_b32 v{V_T}, 3, v{V_T}
v_add_u32 v{V_AST}, v{V_AST}, v{V_T}
s_mul_i32 s{S_T}, s{S_C}, 3
s_add_u32 s{S_T}, s{S_T}, {w}
s_lshl_b32 s{S_T}, s{S_T}, 8
s_mul_i32 s{S_T2}, s{S_H}, 9216
s_add_u32 s{S_T}, s{S_T}, s{S_T2}
v_add_u32 v{V_AST}, s{S_T}, v{V_AST}""")
    nearmap_v(a, V_AST, V_T)
    a(f"""s_add_u32 s{S_T}, s{S_T2}, {w*2048}
v_add_u32 v{V_APO}, s{S_T}, v{V_L16}
v_add_u32 v{V_APO+1}, 1024, v{V_APO}
v_add_u32 v{V_APL}, {L_QKV + w*2048}, v{V_L16}""")
    nearmap_v(a, V_APO, V_T); nearmap_v(a, V_APO+1, V_T)
    if w == 2 and OPT('EARLYDMA', 0):
        for k in range(6):
            a(f"v_add_u32 v{AP6[k]}, s{S_T2}, v{V_L16}")
            if k: a(f"v_add_u32 v{AP6[k]}, {k*1024}, v{AP6[k]}")
            nearmap_v(a, AP6[k], V_T)
    a(f"""v_lshlrev_b32 v{V_RQ}, 2, v{V_G}
v_bfe_u32 v{V_T}, v{V_LANE}, 2, 2
v_add_u32 v{V_RQ}, v{V_RQ}, v{V_T}
v_lshlrev_b32 v{V_RQ}, 4, v{V_RQ}
v_and_b32 v{V_T}, 1, v{V_LANE}
v_lshlrev_b32 v{V_T}, 3, v{V_T}
v_add_u32 v{V_RQ}, v{V_RQ}, v{V_T}
v_add_u32 v{V_RQ}, {L_QKV}, v{V_RQ}""")
    a(f"""v_bfe_u32 v{V_RV}, v{V_LANE}, 5, 1
v_lshlrev_b32 v{V_RV}, 5, v{V_RV}
v_bfe_u32 v{V_T}, v{V_LANE}, 4, 1
v_lshlrev_b32 v{V_T}, 3, v{V_T}
v_add_u32 v{V_RV}, v{V_RV}, v{V_T}
v_bfe_u32 v{V_T}, v{V_LANE}, 2, 1
v_add_u32 v{V_RV}, v{V_RV}, v{V_T}
v_bfe_u32 v{V_T}, v{V_LANE}, 3, 1
v_lshlrev_b32 v{V_T}, 4, v{V_T}
v_add_u32 v{V_RV}, v{V_RV}, v{V_T}
v_bfe_u32 v{V_T}, v{V_LANE}, 1, 1
v_lshlrev_b32 v{V_T}, 1, v{V_T}
v_add_u32 v{V_RV}, v{V_RV}, v{V_T}
v_lshlrev_b32 v{V_RV}, 4, v{V_RV}
v_and_b32 v{V_T}, 1, v{V_LANE}
v_lshlrev_b32 v{V_T}, 3, v{V_T}
v_add_u32 v{V_RV}, v{V_RV}, v{V_T}
v_add_u32 v{V_RV}, {L_QKV+6144}, v{V_RV}""")
    rs_lane(a, V_RSO)
    rs_local_lane(a, V_RSOL)
    for P in range(nt//2):
        a(f"""s_lshr_b32 s{76+P}, s{S_J}, 5
s_mul_i32 s{76+P}, s{76+P}, 81920
s_mul_i32 s{S_T}, s{S_C}, {5*4096}
s_add_u32 s{76+P}, s{76+P}, s{S_T}
s_add_u32 s{76+P}, s{76+P}, {(P0[w]+P)*4096}""")
        smap(a, 76+P, S_T)
    a(f"""s_mul_i32 s{S_RSB}, s{S_C}, {5*32768}
s_add_u32 s{S_RSB}, s{S_RSB}, {nearmap(RS_LOG) + P0[w]*32768}
s_mul_i32 s{S_T}, s{S_H}, 12288
s_add_u32 s{S_KVG}, s{S_T}, {(KX + w*6144) if OPT('UXRD', 0) else (KX if w == 0 else VX)}
s_mul_i32 s{S_T}, s{S_H}, 40
s_mul_i32 s{S_T2}, s{S_C}, 10
s_add_u32 s{S_T}, s{S_T}, s{S_T2}
s_add_u32 s{S_T}, s{S_T}, {T0[w]}
s_lshl_b32 s{S_UXG}, s{S_T}, 10
s_add_u32 s{S_UXG}, s{S_UXG}, {UX}
s_lshl_b32 s{S_UYG}, s{S_T}, 8
s_add_u32 s{S_UYG}, s{S_UYG}, {UY}
s_mul_i32 s{S_KMG}, s{S_H}, 3072
s_add_u32 s{S_KMG}, s{S_KMG}, {KM}
s_mov_b32 s{S_KVL}, {L_KV}
s_mov_b32 s{S_KVR}, {L_KV}
s_lshl_b32 s{S_FLG}, s{S_J}, 7
s_add_u32 s{S_FLG}, s{S_FLG}, {F_REC}""")
    if w == 2:
        a(f"""s_and_b32 s{S_COL}, s{S_J}, 31
s_cmp_lt_u32 s{S_COL}, 16
s_cselect_b32 s{S_RED}, 1, 0
s_add_u32 s{S_COL}, s{S_COL}, 64""")
        blk_off(a, S_COL, S_RSP, S_T)
        loc_off(a, S_COL, 72, S_T)
        a(f"""s_lshr_b32 s{S_T}, s{S_J}, 5
s_mul_i32 s{S_T}, s{S_T}, 10240
s_add_u32 s{S_T}, s{S_T}, {AG_LOG}
s_lshl_b32 s{S_T3}, s{S_COL}, 7
s_add_u32 s{S_T}, s{S_T}, s{S_T3}
v_add_u32 v{V_AGS}, s{S_T}, v{V_L16}""")
        nearmap_v(a, V_AGS, V_T)
        oob_mask(a, V_AGS, 8)
        sel_setup(a, 240)
    if flags:
        a(f"""s_mul_i32 s{S_T}, s{S_H}, 6
s_lshr_b32 s{S_T2}, s{S_T}, 3
s_add_u32 s{S_T}, s{S_T}, 5
s_lshr_b32 s{S_T}, s{S_T}, 3
v_mov_b32 v{V_KVA}, s{S_T}
v_mov_b32 v{V_T}, s{S_T2}
v_and_b32 v{V_T2}, 1, v{V_LANE}
v_cmp_eq_u32 vcc, 0, v{V_T2}
v_cndmask_b32 v{V_KVA}, v{V_KVA}, v{V_T}, vcc
v_cmp_lt_u32 vcc, 1, v{V_LANE}
v_mov_b32 v{V_T}, {R_V0 if not OPT('UXRD', 0) else 0}
v_cndmask_b32 v{V_T}, 0, v{V_T}, vcc
v_add_u32 v{V_KVA}, v{V_KVA}, v{V_T}
v_lshlrev_b32 v{V_KVA}, {PSH}, v{V_KVA}
v_add_u32 v{V_KVA}, {F_PROG}, v{V_KVA}
s_mov_b32 s{S_KVT}, 0
s_mov_b32 s22, 0
s_add_u32 s{S_T}, s{S_H}, {R_U0}
s_lshl_b32 s{S_T}, s{S_T}, {PSH}
s_add_u32 s{S_T}, s{S_T}, {F_PROG}
v_mov_b32 v{V_UXA}, s{S_T}""")
    if flags and w == 0: trace(a, 1, S_J)
    read_polarity(a, pfx)
    if flags and w == 0: trace(a, 2, S_J)
    a("s_barrier")
    mem0_stage(a, w)
    a(f"s_mov_b32 s{S_UXT}, 0\ns_mov_b32 s{S_UXC}, 0")
    kv_dma(a, flags, pfx, w)
    if flags and w == 0: trace(a, 3, S_J)
    a("s_waitcnt vmcnt(0) lgkmcnt(0)")
    a("s_barrier")
    idle_phase(a, w, woq)
    if flags and w == 0:
        dbgt(a, 40, op="max")
        trace(a, 4, S_J)
        if int(os.environ.get('TRACE', 0)):
            a("s_memtime s[86:87]\ns_waitcnt lgkmcnt(0)")
            trace(a, 6, S_J, val=86)
    stamp(a, 0)
    if OPT('STAMP', 0): a(f"s_waitcnt lgkmcnt(0)\ns_sub_u32 s101, s{S_TS}, s100")
    pfx0 = pfx
    a(f"s_cmp_eq_u32 s{S_MODE}, 0")
    a(f"s_cbranch_scc1 {pfx0}S_B0")
    a(f"s_branch {pfx0}F_B0")
    for mode in (1, 0):
        CURMODE[0] = mode
        pfx = pfx0 + ("F" if mode else "S")
        main_loop(a, w, flags, pfx, nt, w8, woq)
    CURMODE[0] = None

def main_loop(a, w, flags, pfx, nt, w8, woq):
    wo8 = lambda t, K: ar((40 + t*6 + 2*K)*4, 8)
    a.label(f"{pfx}_LOOP")
    stamp(a, 0)
    if w == 2: ag_poll(a, pfx, w)
    a.label(f"{pfx}_B0")
    if w < 2 and OPT('EARLYDMA', 0): a("s_waitcnt vmcnt(0)")
    a("s_waitcnt lgkmcnt(0)")
    a("s_barrier")
    mark(a, S_REF0)
    stamp(a, 1)
    if OPT('STEPTR', 0) and w == 1:
        a("s_waitcnt lgkmcnt(0)")
        a(f"v_mov_b32 v250, s{S_REF0}")
        a(f"s_lshl_b32 s86, s{S_J}, 8")
        a(f"s_lshl_b32 s87, s{S_STEP}, 2")
        a(f"s_add_u32 s86, s86, s87")
        a(f"s_add_u32 s86, s86, {TRACE + 65536}")
        a("v_mov_b32 v251, s86")
        a("s_mov_b64 exec, 1")
        a(f"buffer_store_dword v250, v251, s[{S_WS}:{S_WS+3}], 0 offen")
        a("s_mov_b64 exec, -1")
    proj_stage(a, 2, w8)
    for x in pack_pair(V_ACC, V_ACC+4, V_PK): a(x)
    store_mode(a, [f"buffer_store_dwordx2 {vr(V_PK,2)}, v{V_AST}, s[{S_WS}:{S_WS+3}], s{S_CUR} offen SCX"])
    stamp(a, 2)
    ED = OPT('EARLYDMA', 0)
    if ED and w < 2:
        a(f"s_cmp_lg_u32 s{S_STEP}, 0")
        a(f"s_cbranch_scc1 {pfx}_NOS1")
        kv_dma(a, flags, pfx, w)
        a("s_waitcnt vmcnt(0)")
        a.label(f"{pfx}_NOS1")
        a(f"s_cmp_ge_u32 s{S_STEP}, 62")
        a(f"s_cbranch_scc1 {pfx}_NOS2")
        kv_dma(a, flags, pfx, w)
        a.label(f"{pfx}_NOS2")
    elif not ED and (w < 2 or OPT('UXRD', 0)):
        a(f"s_cmp_lg_u32 s{S_STEP}, 0")
        a(f"s_cbranch_scc1 {pfx}_NOS1")
        if w < 2: kv_dma(a, flags, pfx, w)
        if OPT('UXRD', 0): ux_load(a, w, flags, pfx)
        a.label(f"{pfx}_NOS1")
    for t in range(nt):
        for r in range(4): a(f"v_mov_b32 v{V_Y+4*t+r}, 0")
    if ED:
        if w == 2:
            wait_mode(a, S_REF0, OPT('T_AF', 0), OPT('T_A', 1150))
            lds6 = [f"buffer_load_dwordx4 {vr(V_POLL+4*k) if k < 4 else vr(V_RSP+4*(k-4))}, v{AP6[k]}, s[{S_WS}:{S_WS+3}], s{S_CUR} offen sc1" for k in range(6)]
            a(f"s_mov_b32 s{S_RETRY}, 0")
            a.label(f"{pfx}_AP")
            for x in lds6: a(x)
            a("s_waitcnt vmcnt(0)")
            poll_check(a, list(range(V_POLL, V_POLL+16)) + list(range(V_RSP, V_RSP+8)), V_T)
            a(f"""s_cbranch_vccz {pfx}_AP_OK
s_add_u32 s{S_RETRY}, s{S_RETRY}, 1
s_cmp_lt_u32 s{S_RETRY}, s{S_MAXR}
s_cbranch_scc1 {pfx}_AP
s_mov_b32 s{S_MAXR}, 0""")
            a.label(f"{pfx}_AP_OK")
            racc(a, 93)
            for k in range(6):
                a(f"ds_write_b128 v{V_L16}, {vr(V_POLL+4*k) if k < 4 else vr(V_RSP+4*(k-4))} offset:{L_QKV + k*1024}")
    else:
        wait_mode(a, S_REF0, OPT('T_AF', 0), OPT('T_A', 1150))
        def mkA(b): return [f"buffer_load_dwordx4 {vr(b+4*k)}, v{V_APO+k}, s[{S_WS}:{S_WS+3}], s{S_CUR} offen sc1" for k in range(2)]
        def stA(b):
            a(f"ds_write_b128 v{V_APL}, {vr(b)}")
            a(f"ds_write_b128 v{V_APL}, {vr(b+4)} offset:1024")
        poll_loop(a, f"{pfx}_AP", mkA(V_POLL), 8, 93)
        stA(V_POLL)
    a("s_waitcnt lgkmcnt(0)")
    stamp(a, 3)
    a("s_barrier")
    stamp(a, 4)
    reads = []
    for p in range(6):
        for (reg, typ) in ((V_QF, 0), (V_KF, 1)):
            for k in range(2):
                reads.append(f"ds_read_b64_tr_b16 {vr(reg+4*p+2*k,2)}, v{V_RQ} offset:{typ*3072 + (2*p+k)*256}")
    vreads = [f"ds_read_b64_tr_b16 {vr(V_VF+4*K+2*k,2)}, v{V_RV} offset:{K*1024 + k*64}" for K in range(3) for k in range(2)]
    TWOB = OPT('TWOB', 1)
    if not TWOB: reads += vreads
    issued = 0
    def iss(n):
        nonlocal issued
        for _ in range(n):
            if issued < len(reads): a(reads[issued]); issued += 1
    iss(12)
    for p in range(6):
        a(f"s_waitcnt lgkmcnt({issued - (4*p+4)})")
        for u, A_ in enumerate((vr(V_KXF+4*p), vr(V_KXF+4*(6+p)), vr(V_KF+4*p))):
            d = V_S + (4 if u == 0 else 8 if u == 1 else 0)
            c = "0" if p == 0 else vr(d)
            a(f"v_mfma_f32_16x16x32_bf16 {vr(d)}, {A_}, {vr(V_QF+4*p)}, {c}")
        iss(4)
    if TWOB:
        a("s_barrier")
        if w == 2 or OPT('T_DMA', 0) > 0 or OPT('T_DMA2', 0) > 0: mark(a, 96)
        for x in vreads: a(x)
    stamp(a, 5)
    ym = []
    for K in range(3):
        for t in range(nt):
            pre = f"s_waitcnt lgkmcnt({6 - (2*K + 2)})\n" if t == 0 else ""
            ym.append(pre + f"v_smfmac_f32_16x16x64_bf16 {vr(V_Y+4*t)}, {vr(V_VF+4*K)}, {wo8(t,K)}, v{V_IDX}")
    PT, PM, RS_, L1, L2 = softmax_lists()
    yc = [f"v_cvt_pk_bf16_f32 v{V_YF+2*t+k}, v{V_Y+4*t+2*k}, v{V_Y+4*t+2*k+1}" for t in range(nt) for k in range(2)]
    Y0 = OPT('Y0', 2)
    for i, x in enumerate(L1):
        if ym and i >= Y0: a(ym.pop(0))
        a(x)
    while ym: a(ym.pop(0))
    for t in range(nt):
        a(f"v_mfma_f32_16x16x32_bf16 {vr(V_PU+4*t)}, {vr(V_UXF+4*t)}, {vr(PT)}, 0")
        for _ in range(2):
            if yc: a(yc.pop(0))
    for t in range(nt):
        a(f"v_mfma_f32_16x16x16_bf16 {vr(V_PU+4*t)}, {vr(V_YF+2*t,2)}, {vr(PM,2)}, {vr(V_PU+4*t)}")
        for _ in range(4):
            if L2: a(L2.pop(0))
    while L2: a(L2.pop(0))
    a(f"v_mov_b32 v{RS_+1}, v{RS_}")
    for t in range(nt):
        for r in range(0, 4, 2): a(f"v_pk_mul_f32 {vr(V_PU+4*t+r,2)}, {vr(V_PU+4*t+r,2)}, {vr(RS_,2)}")
    for t in range(nt):
        a(f"v_cvt_pk_bf16_f32 v{V_RSP+2*t}, v{V_PU+4*t}, v{V_PU+4*t+1}")
        a(f"v_cvt_pk_bf16_f32 v{V_RSP+2*t+1}, v{V_PU+4*t+2}, v{V_PU+4*t+3}")
    a(f"s_add_u32 s{S_T}, s{S_CUR}, s{S_RSB}")
    a(f"s_mov_b64 exec, s[{S_M8}:{S_M8+1}]")
    for P in range(nt//2):
        if P > 0: a(f"s_add_u32 s{S_T}, s{S_T}, 32768")
        a(f"buffer_store_dwordx4 {vr(V_RSP+4*P)}, v{V_RSO}, s[{S_WS}:{S_WS+3}], s{S_T} offen sc1")
    if CURMODE[0] and RSLOC():
        a(f"s_xor_b32 s74, s{S_CUR}, 8192")
        for P in range(nt//2):
            a(f"s_add_u32 s{S_T}, s{76+P}, s74")
            a(f"buffer_store_dwordx4 {vr(V_RSP+4*P)}, v{V_RSOL}, s[{S_WS}:{S_WS+3}], s{S_T} offen")
    stamp(a, 6)
    a("s_mov_b64 exec, -1")
    LATEDMA = OPT('T_DMA', 0) > 0
    if (w < 2 or OPT('UXRD', 0)) and not OPT('NODMA', 0) and not LATEDMA and not OPT('EARLYDMA', 0):
        if not OPT('T_DMA2', 0):
            a(f"s_cmp_eq_u32 s{S_STEP}, 63")
            a(f"s_cbranch_scc1 {pfx}_NODMA")
            if OPT('UXRD', 0): ux_load(a, w, flags, pfx)
            if w < 2: kv_dma(a, flags, pfx, w)
            a.label(f"{pfx}_NODMA")
    a(f"s_mov_b64 exec, s[{S_M8}:{S_M8+1}]")
    a(f"s_cmp_lg_u32 s{S_C}, 0")
    a(f"s_cbranch_scc1 {pfx}_NOKM")
    for k in range(2 if not OPT('NOKM', 0) else 0):
        a(f"buffer_store_dwordx4 {vr(V_KF+4*(2*w+k))}, v{V_KMS}, s[{S_WS}:{S_WS+3}], s{S_KMG} offen offset:{k*512} sc1")
    a.label(f"{pfx}_NOKM")
    a("s_mov_b64 exec, -1")
    a(f"s_add_u32 s{S_KMG}, s{S_KMG}, {32*3072}")
    for t in range(nt):
        for r in range(4): a(f"v_mov_b32 v{V_PU+r}, v{V_Y+4*t+r}")
        for r in range(4): a(f"v_permlane32_swap_b32 v{V_Y+4*t+r}, v{V_PU+r}")
        for r in range(4): a(f"v_add_f32 v{V_Y+4*t+r}, v{V_Y+4*t+r}, v{V_PU+r}")
        a(f"v_cvt_pk_bf16_f32 v{V_YF+2*t}, v{V_Y+4*t}, v{V_Y+4*t+1}")
        a(f"v_cvt_pk_bf16_f32 v{V_YF+2*t+1}, v{V_Y+4*t+2}, v{V_Y+4*t+3}")
    a("s_mov_b32 exec_hi, 0")
    for t in range(nt if not OPT('NOUY', 0) else 0):
        a(f"buffer_store_dwordx2 {vr(V_YF+2*t,2)}, v{V_L4}, s[{S_WS}:{S_WS+3}], s{S_UYG} offen offset:{t*256} sc1")
    a("s_mov_b64 exec, -1")
    a(f"s_add_u32 s{S_UYG}, s{S_UYG}, {32*40*256}")
    if w == OPT('FLGW', 1) and not OPT('NOFLG', 0):
        a(f"v_mov_b32 v{V_T}, s{S_STEP}")
        a("s_mov_b64 exec, 1")
        a(f"buffer_store_dword v{V_T}, v{V_ZERO}, s[{S_WS}:{S_WS+3}], s{S_FLG} offen sc1")
        a(f"s_cmp_lg_u32 s{S_J}, 0")
        a(f"s_cbranch_scc1 {pfx}_NOPROG")
        a(f"s_mov_b32 s{S_T}, {F_RPROG}")
        a(f"buffer_store_dword v{V_T}, v{V_ZERO}, s[{S_WS}:{S_WS+3}], s{S_T} offen sc1")
        a.label(f"{pfx}_NOPROG")
        a("s_mov_b64 exec, -1")
    a(f"s_add_u32 s{S_STEP}, s{S_STEP}, 1")
    a(f"s_cmp_ge_u32 s{S_STEP}, 64")
    a(f"s_cbranch_scc1 {pfx}_DONE")
    if w < 2 and OPT('T_DMA2', 0):
        wait_until(a, 96, OPT('T_DMA2', 0))
        kv_dma(a, flags, pfx, w)
    stamp(a, 7)
    idle_phase(a, w, woq)
    if w < 2 and LATEDMA:
        wait_until(a, 96, OPT('T_DMA', 0))
        kv_dma(a, flags, pfx, w)
    if w == 2:
        a(f"s_cmp_eq_u32 s{S_RED}, 0")
        a(f"s_cbranch_scc1 {pfx}_NORED")
        wait_until(a, 96, OPT('T_RS', 1150))
        a(f"s_add_u32 s{S_T2}, s{S_CUR}, s{S_RSP}")
        reduce_blocks(a, pfx, 1, 240, 48, (S_T2,), V_AGS, 64, 80, s_loc0=(72,), s_loc=(74,), sqbase=64)
        a.label(f"{pfx}_NORED")
    rotate_slots(a)
    stamp_acc(a)
    if w == 2: mark(a, S_REF2)
    a(f"s_branch {pfx}_LOOP")
    a.label(f"{pfx}_DONE")
    a("s_waitcnt vmcnt(0)")
    a("s_barrier")
    if flags and w == 0:
        dbgt(a, 44, op="max")
        trace(a, 5, S_J)
        if int(os.environ.get('TRACE', 0)):
            a("s_memtime s[86:87]\ns_waitcnt lgkmcnt(0)")
            trace(a, 7, S_J, val=86)
    if w == OPT('FLGW', 1):
        a(f"v_mov_b32 v{V_T}, 64")
        a("s_mov_b64 exec, 1")
        a(f"buffer_store_dword v{V_T}, v{V_ZERO}, s[{S_WS}:{S_WS+3}], s{S_FLG} offen sc1")
        a(f"s_cmp_lg_u32 s{S_J}, 0")
        a(f"s_cbranch_scc1 {pfx}_NOPROG2")
        a(f"s_mov_b32 s{S_T}, {F_RPROG}")
        a(f"buffer_store_dword v{V_T}, v{V_ZERO}, s[{S_WS}:{S_WS+3}], s{S_T} offen sc1")
        a.label(f"{pfx}_NOPROG2")
        a("s_waitcnt vmcnt(0)")
        a("s_mov_b64 exec, -1")
    stamp_out(a, w)
    a("s_endpgm")

def stamp_acc(a):
    if not OPT('STAMP', 0): return
    a(f"s_memtime s[{S_TS+16}:{S_TS+17}]")
    a("s_waitcnt lgkmcnt(0)")
    for k in range(8):
        a(f"s_sub_u32 s{S_T}, s{S_TS+2*k+2}, s{S_TS+2*k}")
        a(f"s_add_u32 s{80+k}, s{80+k}, s{S_T}")

def stamp_out(a, w):
    if not OPT('STAMP', 0): return
    a.uid += 1
    L = f"STO_{w}_{a.uid}"
    a(f"""s_cmp_lg_u32 s{S_J}, {OPT('STAMPROLE', 0)}
s_cbranch_scc1 {L}
s_waitcnt lgkmcnt(0)
s_load_dwordx2 s[96:97], s[0:1], {KA['dbg']}
s_waitcnt lgkmcnt(0)
s_mov_b64 exec, 1""")
    for k in range(8):
        a(f"v_mov_b32 v10, s{80+k}\nv_mov_b32 v11, {64 + w*48 + k*4}\nglobal_store_dword v11, v10, s[96:97]\ns_waitcnt vmcnt(0)")
    if w == 0:
        a(f"v_mov_b32 v10, s95\nv_mov_b32 v11, 40\nglobal_store_dword v11, v10, s[96:97]\ns_waitcnt vmcnt(0)")
        a(f"v_mov_b32 v10, s101\nv_mov_b32 v11, 44\nglobal_store_dword v11, v10, s[96:97]\ns_waitcnt vmcnt(0)")
    for k in range(3):
        a(f"v_mov_b32 v10, s{92+k}\nv_mov_b32 v11, {64 + w*48 + 32 + k*4}\nglobal_store_dword v11, v10, s[96:97]\ns_waitcnt vmcnt(0)")
    a.label(L)

def common_setup(a, w):
    a(f"""v_lshlrev_b32 v{V_L16}, 4, v{V_LANE}
v_lshlrev_b32 v{V_L4}, 3, v{V_LANE}
v_mov_b32 v{V_ZERO}, 0
s_mov_b32 s{S_M8}, 0x00ff00ff
s_mov_b32 s{S_M8+1}, 0x00ff00ff
s_mov_b32 s{S_H8}, 0xff00ff00
s_mov_b32 s{S_H8+1}, 0xff00ff00
s_mov_b32 s{S_HI32}, 0
s_mov_b32 s{S_HI32+1}, -1
v_mov_b32 v{V_NINF}, 0xff800000
s_mov_b32 s{S_MQ}, 0x0000ffff
s_mov_b32 s{S_MQ+1}, 0x0000ffff
v_mov_b32 v{V_IDX}, 0x44444444
v_mov_b32 v{V_T}, 0xeeeeeeee
v_cndmask_b32 v{V_IDX}, v{V_IDX}, v{V_T}, s[{S_H8}:{S_H8+1}]
s_mov_b32 s{S_SCALE}, 0x{f2u(192**-0.5*1.4426950408889634):08x}
s_mov_b32 s{S_MAXR}, {OPT('MAXRETRY', 400000)}
s_mov_b32 s{S_STEP}, 0""")
    for k in range(8): a(f"s_mov_b32 s{80+k}, 0")
    for k in range(92, 95): a(f"s_mov_b32 s{k}, 0")
    if w >= 2:
        a(f"s_lshr_b32 s{S_T}, s{S_J}, 5")
        a(f"s_mul_i32 s{S_T}, s{S_T}, 10240")
        a(f"s_add_u32 s{S_T}, s{S_T}, {AG_LOG + (w-2)*5120}")
        for k in range(5):
            a(f"v_add_u32 v{V_AGP+k}, s{S_T}, v{V_L16}")
            if k: a(f"v_add_u32 v{V_AGP+k}, {k*1024}, v{V_AGP+k}")
            nearmap_v(a, V_AGP+k, V_T2)
    a(f"v_add_u32 v{V_AGL}, {L_MEM + w*2560}, v{V_L16}")

V_M0 = 200
def mem0_stage(a, w):
    a(f"ds_write_b128 v{V_AGL}, {vr(V_M0)}")
    a(f"ds_write_b128 v{V_AGL}, {vr(V_M0+4)} offset:1024")
    a("s_mov_b32 exec_hi, 0")
    a(f"ds_write_b128 v{V_AGL}, {vr(V_M0+8)} offset:2048")
    a("s_mov_b64 exec, -1")

def mem0_load(a, w):
    for k in range(3):
        a(f"""v_add_u32 v{V_T}, {160*w + 64*k}, v{V_LANE}
v_and_b32 v{V_T2}, 7, v{V_T}
v_mul_u32_u24 v{V_T2}, 1280, v{V_T2}
v_lshrrev_b32 v{V_M0+12}, 5, v{V_T}
v_lshlrev_b32 v{V_M0+12}, 6, v{V_M0+12}
v_add_u32 v{V_T2}, v{V_T2}, v{V_M0+12}
v_bfe_u32 v{V_T}, v{V_T}, 3, 2
v_lshlrev_b32 v{V_T}, 3, v{V_T}
v_add_u32 v{V_T}, v{V_T}, v{V_T2}""")
        a(f"buffer_load_dwordx2 {vr(V_M0+4*k,2)}, v{V_T}, s[{S_M0}:{S_M0+3}], 0 offen")
        a(f"buffer_load_dwordx2 {vr(V_M0+4*k+2,2)}, v{V_T}, s[{S_M0}:{S_M0+3}], 0 offen offset:32")

def service_wave(a):
    w = 3; pfx = "RS3"
    wreg = WReg(0, 256, 0)
    mem0_load(a, w)
    a(f"s_lshl_b32 s{S_LB}, s{S_WAVE}, 15")
    if OPT('COOP', 1):
        coop_load(a, w, wreg)
    else:
        a(f"""s_mul_i32 s{S_COL}, s{S_H}, 384
s_mul_i32 s{S_T}, s{S_C}, 96
s_add_u32 s{S_COL}, s{S_COL}, s{S_T}""")
        units = [(S_WV, S_COL, t*32 + p*32*H*E*2) for p in range(20) for t in range(3)]
        load_w2(a, units, lambda u, T, k: wreg.pair((u % 3)*20 + u // 3, k), 1, H*E*2, 2, V_LANE, V_POLL, V_POLL+1, V_T, S_T, S_LB)
    common_setup(a, w)
    PQ = V_KXF; PV_ = V_KXF+2; R = V_KXF+6; SEL = V_KXF+8; ONES = V_KXF+12; AGZ = V_KXF+7; RSO2 = V_KXF+5
    a(f"""v_lshrrev_b32 v{V_AST}, 1, v{V_G}
v_lshlrev_b32 v{V_AST}, 8, v{V_AST}
v_lshlrev_b32 v{V_T}, 4, v{V_N}
v_add_u32 v{V_AST}, v{V_AST}, v{V_T}
v_and_b32 v{V_T}, 1, v{V_G}
v_lshlrev_b32 v{V_T}, 3, v{V_T}
v_add_u32 v{V_AST}, v{V_AST}, v{V_T}
v_lshlrev_b32 v{V_AST+1}, 4, v{V_N}
v_add_u32 v{V_AST+1}, v{V_AST+1}, v{V_T}
s_mul_i32 s{S_T2}, s{S_H}, 9216
s_mul_i32 s{S_T}, s{S_C}, 768
s_add_u32 s{S_T}, s{S_T}, s{S_T2}
v_add_u32 v{PQ}, s{S_T}, v{V_L16}
v_add_u32 v{PQ+1}, 3072, v{PQ}
v_add_u32 v{PV_}, 6144, v{PQ}
s_add_u32 s{S_T}, s{S_T}, 6144
v_add_u32 v{V_AST}, s{S_T}, v{V_AST}
v_add_u32 v{V_AST+1}, s{S_T}, v{V_AST+1}
v_add_u32 v{V_AST+1}, 512, v{V_AST+1}""")
    for r in (V_AST, V_AST+1, PV_, PQ, PQ+1): nearmap_v(a, r, V_T)
    oob_mask(a, PV_, 48); oob_mask(a, PQ+1, 48); oob_mask(a, PQ, 48); oob_mask(a, V_AST+1, 32)
    for k in range(3):
        a(f"v_add_u32 v{V_APO+k}, s{S_T2}, v{V_L16}")
        a(f"v_add_u32 v{V_APO+k}, {6144 + k*1024}, v{V_APO+k}")
        nearmap_v(a, V_APO+k, V_T)
    a(f"v_add_u32 v{V_APL}, {L_QKV + 6144}, v{V_L16}")
    rs_lane(a, R)
    a(f"""s_mul_i32 s{S_RSB}, s{S_C}, {5*32768}
s_add_u32 s{S_RSB}, s{S_RSB}, {nearmap(RS_LOG)}
s_and_b32 s{S_COL}, s{S_J}, 31""")
    blk_off(a, S_COL, S_RSP, S_T)
    loc_off(a, S_COL, 72, S_T)
    a(f"s_add_u32 s{S_COL}, s{S_COL}, 32")
    blk_off(a, S_COL, S_RED, S_T)
    loc_off(a, S_COL, 73, S_T)
    rs_local_lane(a, V_RSOL)
    a(f"""s_lshr_b32 s77, s{S_J}, 5
s_mul_i32 s77, s77, 81920
s_mul_i32 s{S_T}, s{S_C}, {5*4096}
s_add_u32 s77, s77, s{S_T}""")
    a(f"""s_lshr_b32 s{S_T}, s{S_J}, 5
s_mul_i32 s{S_T}, s{S_T}, 10240
s_add_u32 s{S_T}, s{S_T}, {AG_LOG}
s_and_b32 s{S_T2}, s{S_J}, 31
s_lshl_b32 s{S_T3}, s{S_T2}, 7
s_add_u32 s{S_T}, s{S_T}, s{S_T3}
v_lshrrev_b32 v{V_AGS}, 3, v{V_LANE}
v_lshlrev_b32 v{V_AGS}, 12, v{V_AGS}
v_and_b32 v{V_T}, 7, v{V_LANE}
v_lshlrev_b32 v{V_T}, 4, v{V_T}
v_add_u32 v{V_AGS}, v{V_AGS}, v{V_T}
v_add_u32 v{V_AGS}, s{S_T}, v{V_AGS}""")
    nearmap_v(a, V_AGS, V_T)
    a(f"v_mov_b32 v{AGZ}, v{V_AGS}")
    a(f"""v_bfe_u32 v{V_AGS}, v{V_LANE}, 3, 1
v_lshlrev_b32 v{V_AGS}, 12, v{V_AGS}
v_and_b32 v{V_T}, 7, v{V_LANE}
v_lshlrev_b32 v{V_T}, 4, v{V_T}
v_add_u32 v{V_AGS}, v{V_AGS}, v{V_T}
v_lshlrev_b32 v{V_T}, 3, v{V_G}
v_add_u32 v{V_AGS}, v{V_AGS}, v{V_T}
s_lshr_b32 s{S_T}, s{S_J}, 5
s_mul_i32 s{S_T}, s{S_T}, 10240
s_add_u32 s{S_T}, s{S_T}, {AG_LOG}
s_add_u32 s{S_T}, s{S_T}, s{S_T3}
v_add_u32 v{V_AGS}, s{S_T}, v{V_AGS}""")
    nearmap_v(a, V_AGS, V_T)
    oob_mask(a, V_AGS, 32)
    a(f"""v_mov_b32 v{RSO2}, s{S_RSP}
v_mov_b32 v{V_T}, s{S_RED}
v_cndmask_b32 v{RSO2}, v{RSO2}, v{V_T}, s[{S_H8}:{S_H8+1}]
v_lshlrev_b32 v{V_T}, 7, v{V_G}
v_add_u32 v{RSO2}, v{RSO2}, v{V_T}
v_and_b32 v{V_T}, 7, v{V_LANE}
v_lshlrev_b32 v{V_T}, 4, v{V_T}
v_add_u32 v{RSO2}, v{RSO2}, v{V_T}""")
    a(f"s_cmp_lt_u32 s{S_T2}, 16")
    a(f"s_cselect_b32 s{S_T}, 24, 16")
    a(f"v_mov_b32 v{V_T}, 0x80000000")
    a(f"v_cmp_gt_u32 vcc, s{S_T}, v{V_LANE}")
    a(f"v_cndmask_b32 v{AGZ}, v{V_T}, v{AGZ}, vcc")
    sel_setup(a, SEL)
    for k in range(4): a(f"v_mov_b32 v{ONES+k}, -1")
    a(f"v_mov_b32 v{ONES+4}, 1")
    read_polarity(a, pfx)
    a("s_barrier")
    mem0_stage(a, w)
    a("s_waitcnt vmcnt(0) lgkmcnt(0)")
    a("s_barrier")
    stamp(a, 0)
    pfx0 = pfx
    a(f"s_cmp_eq_u32 s{S_MODE}, 0")
    a(f"s_cbranch_scc1 {pfx0}S_B0")
    a(f"s_branch {pfx0}F_B0")
    for mode in (1, 0):
        CURMODE[0] = mode
        pfx = pfx0 + ("F" if mode else "S")
        service_loop(a, pfx, PQ, PV_, R, SEL, ONES, AGZ, RSO2)
    CURMODE[0] = None

def service_loop(a, pfx, PQ, PV_, R, SEL, ONES, AGZ, RSO2):
    a.label(f"{pfx}_LOOP")
    stamp(a, 0)
    ag_poll(a, pfx, 3)
    a.label(f"{pfx}_B0")
    a("s_waitcnt lgkmcnt(0)")
    a("s_barrier")
    mark(a, S_REF0)
    stamp(a, 1)
    SP = 140
    w8s = lambda t, K: ar((t*20 + 2*K)*4, 8)
    for K in range(10):
        a(f"ds_read_b128 {vr(V_RING+4*K)}, v{V_L16} offset:{L_MEM + K*1024}")
    for r in range(12): a(f"v_mov_b32 v{V_ACC+r}, 0")
    for K in range(10):
        a(f"s_waitcnt lgkmcnt({9-K})")
        for t in range(2):
            a(f"v_smfmac_f32_16x16x64_bf16 {vr(V_ACC+4*t)}, {vr(V_RING+4*K)}, {w8s(t,K)}, v{V_IDX}")
    P01 = pack_pair(V_ACC, V_ACC+4, SP)
    for K in range(10):
        a(f"v_smfmac_f32_16x16x64_bf16 {vr(V_ACC+8)}, {vr(V_RING+4*K)}, {w8s(2,K)}, v{V_IDX}")
        if K >= 2 and P01: a(P01.pop(0))
        if K >= 6 and P01: a(P01.pop(0))
    while P01: a(P01.pop(0))
    store_mode(a, [f"buffer_store_dwordx2 {vr(SP,2)}, v{V_AST}, s[{S_WS}:{S_WS+3}], s{S_CUR} offen SCX"])
    for r in range(4): a(f"v_mov_b32 v{SP+8+r}, v{V_ACC+8+r}")
    for x in pack_pair(V_ACC+8, SP+8, SP+4): a(x)
    store_mode(a, [f"buffer_store_dwordx2 {vr(SP+4,2)}, v{V_AST+1}, s[{S_WS}:{S_WS+3}], s{S_CUR} offen SCX"])
    stamp(a, 2)
    wait_mode(a, S_REF0, OPT('T_VF', 1300), OPT('T_V', 1500))
    loads = [f"buffer_load_dwordx4 {vr(V_POLL+4*k)}, v{V_APO+k}, s[{S_WS}:{S_WS+3}], s{S_CUR} offen sc1" for k in range(3)]
    if OPT('TWOB', 1):
        for x in loads: a(x)
        stamp(a, 3)
        a("s_barrier")
        stamp(a, 4)
        def stV():
            for k in range(3):
                a(f"ds_write_b128 v{V_APL}, {vr(V_POLL+4*k)} offset:{k*1024}")
        if OPT('SPEC', 0): poll_loop(a, f"{pfx}_VP", loads, 12, 93, pre_issued=True, spec=stV)
        else:
            poll_loop(a, f"{pfx}_VP", loads, 12, 93, pre_issued=True)
            stV()
        a("s_waitcnt lgkmcnt(0)")
        a("s_barrier")
        mark(a, 96)
        stamp(a, 5)
    else:
        poll_loop(a, f"{pfx}_VP", loads, 12, 93)
        for k in range(3):
            a(f"ds_write_b128 v{V_APL}, {vr(V_POLL+4*k)} offset:{k*1024}")
        a("s_waitcnt lgkmcnt(0)")
        stamp(a, 3)
        a("s_barrier")
        mark(a, 96)
        stamp(a, 4)
        stamp(a, 5)
    a(f"s_cmp_eq_u32 s{S_STEP}, 63")
    a(f"s_cbranch_scc1 {pfx}_DONE")
    store_mode(a, [f"buffer_store_dwordx4 {vr(ONES)}, v{r}, s[{S_WS}:{S_WS+3}], s{S_NN} offen SCX" for r in (PQ, PQ+1, PV_)])
    a(f"s_add_u32 s{S_T}, s{S_NN}, s{S_RSB}")
    a(f"s_mov_b64 exec, s[{S_M8}:{S_M8+1}]")
    for P in range(5):
        if P > 0: a(f"s_add_u32 s{S_T}, s{S_T}, 32768")
        a(f"buffer_store_dwordx4 {vr(ONES)}, v{R}, s[{S_WS}:{S_WS+3}], s{S_T} offen sc1")
    if CURMODE[0] and RSLOC():
        a(f"s_xor_b32 s74, s{S_NN}, 8192")
        for P in range(5):
            a(f"s_add_u32 s{S_T}, s77, {P*4096}")
            smap(a, S_T, S_T2)
            a(f"s_add_u32 s{S_T}, s{S_T}, s74")
            a(f"buffer_store_dwordx4 {vr(ONES)}, v{V_RSOL}, s[{S_WS}:{S_WS+3}], s{S_T} offen")
    a("s_mov_b64 exec, -1")
    store_mode(a, [f"buffer_store_dwordx4 {vr(ONES)}, v{AGZ}, s[{S_WS}:{S_WS+3}], s{S_NN} offen SCX"])
    stamp(a, 6)
    wait_until(a, 96, OPT('T_RS', 1150))
    if OPT('RED2', 1):
        reduce2(a, pfx, SEL, 32, RSO2, V_AGS, 64, 160)
    else:
        raise SystemExit("RED2=0 no longer supported")
    a(f"s_add_u32 s{S_STEP}, s{S_STEP}, 1")
    a(f"s_cmp_ge_u32 s{S_STEP}, 64")
    a(f"s_cbranch_scc1 {pfx}_DONE")
    rotate_slots(a)
    stamp_acc(a)
    mark(a, S_REF2)
    a(f"s_branch {pfx}_LOOP")
    a.label(f"{pfx}_DONE")
    a("s_waitcnt vmcnt(0)")
    a("s_barrier")
    stamp_out(a, 3)
    a("s_endpgm")

def rec_entry(a):
    a(f"""s_load_dwordx4 s[64:67], s[0:1], {KA['wq']}
s_load_dwordx4 s[68:71], s[0:1], {KA['wv']}
s_load_dwordx2 s[72:73], s[0:1], {KA['mem0']}
s_waitcnt lgkmcnt(0)""")
    srd(a, S_WQ, 64, D*H*E*2); srd(a, S_WK, 66, D*H*E*2); srd(a, S_WV, 68, D*H*E*2); srd(a, S_WO, 70, D*H*E*2)
    srd(a, S_M0, 72, M*D*2)
    a(f"s_lshr_b32 s{S_H}, s{S_J}, 2\ns_and_b32 s{S_C}, s{S_J}, 3")

def probe(a, s_k, s_xcc, lbl, s_dbg):
    a(f"""s_mov_b64 exec, 1
v_mov_b32 v10, -1
s_lshl_b32 s{S_T}, s{s_k}, 21
s_add_u32 s{S_T}, s{S_T}, {RING + PROBE_OFF}
v_mov_b32 v11, s{S_T}
v_add_u32 v13, 8192, v11
s_mov_b32 s{S_T2}, 0
s_mov_b32 s84, -1
s_mov_b32 s85, -1""")
    a.label(f"{lbl}_R")
    a(f"""buffer_store_dword v10, v11, s[{S_WS}:{S_WS+3}], 0 offen sc1
buffer_store_dword v10, v13, s[{S_WS}:{S_WS+3}], 0 offen sc1
s_waitcnt vmcnt(0)
s_sleep 6""")
    for hsel in range(2):
        a(f"""s_memtime s[80:81]
s_waitcnt lgkmcnt(0)
buffer_load_dword v12, v{11 if hsel == 0 else 13}, s[{S_WS}:{S_WS+3}], 0 offen sc1
s_waitcnt vmcnt(0)
s_memtime s[82:83]
s_waitcnt lgkmcnt(0)
s_sub_u32 s{86+hsel}, s82, s80""")
    a(f"""s_min_u32 s84, s84, s86
s_min_u32 s85, s85, s87
s_add_u32 s{S_T2}, s{S_T2}, 1
s_cmp_lt_u32 s{S_T2}, {OPT('PROBE_N', 7)}
s_cbranch_scc1 {lbl}_R
s_cmp_lt_u32 s85, s84
s_cselect_b32 s{S_T3}, 1, 0
s_lshr_b32 s{S_T}, s{s_xcc}, 2
s_xor_b32 s{S_T3}, s{S_T3}, s{S_T}
s_and_b32 s{S_T3}, s{S_T3}, 1
s_or_b32 s{S_T3}, s{S_T3}, 2
s_lshl_b32 s{S_T}, s{s_k}, 1
s_lshl_b32 s{S_T3}, s{S_T3}, s{S_T}
v_mov_b32 v10, s{S_T3}
v_mov_b32 v11, {DB_POL}
global_atomic_or v11, v10, s[{s_dbg}:{s_dbg+1}] sc1
s_waitcnt vmcnt(0)
s_mov_b64 exec, -1""")

def rec_dispatch(a, flags=False):
    a(f"""s_cmp_eq_u32 s{S_WAVE}, 0
s_cbranch_scc1 RK_W0
s_cmp_eq_u32 s{S_WAVE}, 1
s_cbranch_scc1 RK_W1
s_cmp_eq_u32 s{S_WAVE}, 2
s_cbranch_scc1 RK_W2
s_branch RK_W3""")
    for w in range(3):
        a.label(f"RK_W{w}")
        main_wave(a, w, flags)
    a.label("RK_W3")
    service_wave(a)

def gen_rec_kernel():
    a = Asm(); name = "rec_kernel"
    kernel_header(a, name)
    if OPT('STAMP', 0): a("s_memtime s[100:101]")
    a(f"""s_cmp_ge_u32 s2, 256
s_cbranch_scc1 RK_END
s_load_dwordx2 s[74:75], s[0:1], {KA['ws']}
s_load_dwordx2 s[76:77], s[0:1], {KA['dbg']}
s_getreg_b32 s78, hwreg(HW_REG_XCC_ID)
s_and_b32 s78, s78, 15
s_waitcnt lgkmcnt(0)""")
    srd(a, S_WS, 74, WS_SIZE)
    lane_setup(a, V_LANE, V_G, V_N, S_WAVE)
    a(f"""s_cmp_lg_u32 s{S_WAVE}, 0
s_cbranch_scc1 RK_NORANK
v_mov_b32 v10, 1
s_lshl_b32 s79, s78, 2
v_mov_b32 v11, s79
s_mov_b64 exec, 1
global_atomic_add v12, v11, v10, s[76:77] sc0 sc1
s_waitcnt vmcnt(0)
v_mov_b32 v11, 0
ds_write_b32 v11, v12
s_waitcnt lgkmcnt(0)
s_mov_b64 exec, -1""")
    a.label("RK_NORANK")
    a(f"""s_barrier
v_mov_b32 v11, 0
ds_read_b32 v12, v11
s_waitcnt lgkmcnt(0)
v_readfirstlane_b32 s79, v12
s_barrier
s_cmp_lt_u32 s78, 4
s_cbranch_scc1 RK_REC
s_cmp_lg_u32 s78, 4
s_cbranch_scc1 RK_END
s_cmp_ge_u32 s79, 4
s_cbranch_scc1 RK_END
s_cmp_lg_u32 s{S_WAVE}, 0
s_cbranch_scc1 RK_END""")
    probe(a, 79, 78, "RK_PR", 76)
    a("s_endpgm")
    a.label("RK_REC")
    a(f"""s_cmp_ge_u32 s79, 32
s_cbranch_scc1 RK_END
s_lshl_b32 s{S_J}, s78, 5
s_add_u32 s{S_J}, s{S_J}, s79""")
    rec_entry(a)
    rec_dispatch(a)
    a.label("RK_END")
    a("s_endpgm")
    return name, a.finalize(), kernel_desc(name, 512, 102, 256)

def read_polarity(a, pfx):
    a(f"s_load_dwordx2 s[96:97], s[0:1], {KA['dbg']}")
    a(f"v_and_b32 v{V_T2}, 15, v{V_LANE}")
    a(f"v_lshlrev_b32 v{V_T2}, 2, v{V_T2}")
    a(f"s_mov_b32 s{S_RETRY}, 0")
    a("s_waitcnt lgkmcnt(0)")
    a.label(f"{pfx}_MD")
    a(f"global_load_dword v{V_T}, v{V_T2}, s[96:97] sc1")
    a("s_waitcnt vmcnt(0)")
    a(f"s_mov_b32 s{S_T}, 0")
    a(f"s_mov_b32 s{S_MODE}, 1")
    for x in range(8):
        a(f"v_readlane_b32 s{S_T2}, v{V_T}, {x}")
        a(f"s_add_u32 s{S_T}, s{S_T}, s{S_T2}")
        a(f"s_cmp_eq_u32 s{S_T2}, 32")
        a(f"s_cselect_b32 s{S_MODE}, s{S_MODE}, 0")
    a(f"v_readlane_b32 s{S_T2}, v{V_T}, {DB_INIT//4}")
    a(f"v_readlane_b32 s{S_T3}, v{V_T}, {DB_POL//4}")
    a(f"s_cmp_ge_u32 s{S_T}, 256")
    a(f"s_cbranch_scc0 {pfx}_MDN")
    if INITWAIT[0]:
        a(f"s_cmp_ge_u32 s{S_T2}, 80")
        a(f"s_cbranch_scc0 {pfx}_MDN")
    a(f"s_and_b32 s{S_T}, s{S_T3}, 0xaa")
    a(f"s_cmp_eq_u32 s{S_T}, 0xaa")
    a(f"s_cbranch_scc1 {pfx}_POLOK")
    a.label(f"{pfx}_MDN")
    a(f"""s_sleep 4
s_add_u32 s{S_RETRY}, s{S_RETRY}, 1
s_cmp_lt_u32 s{S_RETRY}, 0x200000
s_cbranch_scc1 {pfx}_MD
s_mov_b32 s{S_MODE}, 0""")
    a.label(f"{pfx}_POLOK")
    if OPT('FORCESLOW', 0): a(f"s_mov_b32 s{S_MODE}, 0")
    a(f"""s_and_b32 s{S_T}, s{S_T3}, 0x55
s_xor_b32 s{S_T}, s{S_T}, 0x44
s_bcnt1_i32_b32 s{S_T2}, s{S_T}
s_cmp_ge_u32 s{S_T2}, 3
s_cselect_b32 s{S_T}, 0x55, s{S_T}
s_cmp_le_u32 s{S_T2}, 1
s_cselect_b32 s{S_T}, 0, s{S_T}
s_xor_b32 s{S_T3}, s{S_T}, 0x44""")
    if OPT('FLIPPOL', 0): a(f"s_xor_b32 s{S_T3}, s{S_T3}, 0x55")
    for k, s in enumerate((S_CUR, S_N, S_NN, S_P)):
        a(f"""s_bfe_u32 s{S_T}, s{S_T3}, {(1<<16) | (2*k)}
s_lshl_b32 s{S_T}, s{S_T}, 13
s_add_u32 s{s}, s{S_T}, {RING + k*RING_SLOT}""")
```

```python
from gen_common import *
import struct, os
OPT=lambda k,d: type(d)(os.environ.get(k,d))
def f2u(f): return struct.unpack('<I', struct.pack('<f', f))[0]

S_WS=4; S_WQ=8; S_WK=12; S_WV=16; S_WO=20
S_WAVE=24; S_H=25; S_C=26; S_J=27; S_STEP=28
S_P=29; S_CUR=30; S_N=31; S_NN=32
S_HI32=20
S_MQ=16
S_M8=34; S_H8=38
S_T=40; S_T2=41; S_T3=42; S_RETRY=43
S_KVG=44; S_UXG=45; S_UYG=46; S_KMG=47; S_RSB=48; S_KVL=49; S_KVR=50; S_RED=51; S_RSP=52; S_FLG=53
S_LB=54
S_COL=56
S_SCALE=60; S_MAXR=61
S_TS=62
S_M0=88
S_MODE=57
S_REF0=98
S_REF2=36
S_NOW=58
L_MEM=0; L_QKV=10240; L_KV=20480; KVB=24576
LDS_REC=131072
V_LANE=1; V_G=2; V_N=3; V_T=4; V_T2=5; V_L16=6
V_AGO=7; V_AGL=10; V_MRD=11; V_AGP=23
V_RSL=7
V_AST=12; V_KMS=15; V_APO=16; V_APL=19
V_RQ=20; V_IDX=21; V_RV=22; V_RSO=28; V_L4=29; V_AGS=30; V_ZERO=31
V_RSP=80
V_NINF=248; V_KVA=249
V_POLL=32; V_RING=48; V_ACC=88; V_PK=252; V_KXF=100; V_QF=148; V_KF=172; V_VF=196; V_S=220; V_UXF=232
V_Y=48; V_PU=64; V_UA=48; V_YF=220; V_SM=148
NT = [4, 4, 2]; T0 = [0, 4, 8]; P0 = [0, 2, 4]
KVX = L_KV ^ (L_KV+KVB)

def poll_check(a, regs, vt):
    r = list(regs)
    a(f"v_max3_u32 v{vt}, v{r[0]}, v{r[1]}, v{r[2]}")
    i = 3
    while i < len(r):
        if i + 1 < len(r):
            a(f"v_max3_u32 v{vt}, v{vt}, v{r[i]}, v{r[i+1]}"); i += 2
        else:
            a(f"v_max_u32 v{vt}, v{vt}, v{r[i]}"); i += 1
    a(f"v_cmp_eq_u32 vcc, -1, v{vt}")

def sleep(a, n):
    while n > 0:
        k = min(n, 127); a(f"s_sleep {k}"); n -= k

def mark(a, reg):
    a(f"s_memtime s[{reg}:{reg+1}]")

def wait_until(a, ref, delta):
    if delta <= 0: return
    a.uid += 1
    L = f"WU_{a.uid}"
    a.label(L)
    a(f"""s_memtime s[{S_NOW}:{S_NOW+1}]
s_waitcnt lgkmcnt(0)
s_sub_u32 s{S_NOW}, s{S_NOW}, s{ref}
s_cmp_ge_u32 s{S_NOW}, {delta}
s_cbranch_scc1 {L}_D
s_sub_u32 s{S_NOW}, {delta}, s{S_NOW}
s_cmp_lt_u32 s{S_NOW}, 96
s_cbranch_scc1 {L}
s_sleep 1
s_branch {L}""")
    a.label(f"{L}_D")

def stamp(a, idx):
    if OPT('STAMP', 0):
        a(f"s_memtime s[{S_TS+2*idx}:{S_TS+2*idx+1}]")

def racc(a, k):
    if OPT('STAMP', 0): a(f"s_add_u32 s{k}, s{k}, s{S_RETRY}")

def nearmap_v(a, v, vt):
    a(f"""v_lshrrev_b32 v{vt}, 13, v{v}
v_lshlrev_b32 v{vt}, 14, v{vt}
v_and_b32 v{v}, 0x1fff, v{v}
v_or_b32 v{v}, v{v}, v{vt}""")

def oob_mask(a, v, nlanes):
    a(f"""v_mov_b32 v{V_T}, 0x80000000
v_cmp_gt_u32 vcc, {nlanes}, v{V_LANE}
v_cndmask_b32 v{v}, v{V_T}, v{v}, vcc""")

V_AGB=48
def poll_loop(a, lbl, loads, nreg, acc, pre_issued=False, base=None, spec=None):
    a(f"s_mov_b32 s{S_RETRY}, 0")
    if pre_issued:
        a(f"s_branch {lbl}_W")
    a.label(lbl)
    for x in loads: a(x)
    if pre_issued: a.label(f"{lbl}_W")
    a("s_waitcnt vmcnt(0)")
    if spec: spec()
    b0 = V_POLL if base is None else base
    poll_check(a, range(b0, b0+nreg), V_T)
    a(f"""s_cbranch_vccz {lbl}_OK
s_add_u32 s{S_RETRY}, s{S_RETRY}, 1
s_cmp_lt_u32 s{S_RETRY}, s{S_MAXR}
s_cbranch_scc1 {lbl}
s_mov_b32 s{S_MAXR}, 0""")
    a.label(f"{lbl}_OK")
    racc(a, acc)

CURMODE = [None]
def RSLOC(): return OPT('RSLOC', 0) and not OPT('STAMP', 0)
INITWAIT = [False]
def store_mode(a, lines):
    if CURMODE[0] is not None:
        for x in lines: a(x.replace(' SCX', '' if CURMODE[0] else ' sc1'))
        return
    if OPT('AFAST', 1) == 0:
        for x in lines: a(x.replace(' SCX', ' sc1'))
        return
    a.uid += 1
    L = f"SM_{a.uid}"
    a(f"s_cmp_eq_u32 s{S_MODE}, 0")
    a(f"s_cbranch_scc1 {L}_S")
    for x in lines: a(x.replace(' SCX', ''))
    a(f"s_branch {L}_E")
    a.label(f"{L}_S")
    for x in lines: a(x.replace(' SCX', ' sc1'))
    a.label(f"{L}_E")

def wait_mode(a, ref, fast, slow):
    if CURMODE[0] is not None:
        wait_until(a, ref, fast if CURMODE[0] else slow); return
    if OPT('AFAST', 1) == 0:
        wait_until(a, ref, slow); return
    a.uid += 1
    L = f"WM_{a.uid}"
    a(f"s_cmp_eq_u32 s{S_MODE}, 0")
    a(f"s_cbranch_scc1 {L}_S")
    wait_until(a, ref, fast)
    a(f"s_branch {L}_E")
    a.label(f"{L}_S")
    wait_until(a, ref, slow)
    a.label(f"{L}_E")

def poll2(a, lbl, mk_loads, nreg, baseA, baseB, acc, stage, gap=2):
    LA = mk_loads(baseA); LB = mk_loads(baseB); n = len(LA)
    a(f"s_mov_b32 s{S_RETRY}, 0")
    for x in LA: a(x)
    if gap: a(f"s_sleep {gap}")
    a.label(lbl)
    for x in LB: a(x)
    a(f"s_waitcnt vmcnt({n})")
    poll_check(a, range(baseA, baseA+nreg), V_T)
    a(f"s_cbranch_vccz {lbl}_GA")
    for x in LA: a(x)
    a(f"s_waitcnt vmcnt({n})")
    poll_check(a, range(baseB, baseB+nreg), V_T)
    a(f"""s_cbranch_vccz {lbl}_GB
s_add_u32 s{S_RETRY}, s{S_RETRY}, 1
s_cmp_lt_u32 s{S_RETRY}, s{S_MAXR}
s_cbranch_scc1 {lbl}
s_mov_b32 s{S_MAXR}, 0""")
    a.label(f"{lbl}_GB")
    racc(a, acc)
    stage(baseB)
    a(f"s_branch {lbl}_E")
    a.label(f"{lbl}_GA")
    racc(a, acc)
    stage(baseA)
    a.label(f"{lbl}_E")

def ag_poll(a, pfx, w):
    wait_mode(a, S_REF2, OPT('T_AGF', 0), OPT('T_AG', 650))
    base = (w-2)*5
    def mk(b): return [f"buffer_load_dwordx4 {vr(b+4*k)}, v{V_AGP+k}, s[{S_WS}:{S_WS+3}], s{S_P} offen sc1" for k in range(5)]
    def stage(b):
        for k in range(5):
            a(f"ds_write_b128 v{V_L16}, {vr(b+4*k)} offset:{L_MEM + (base+k)*1024}")
    if CURMODE[0] and OPT('POLL2', 0):
        poll2(a, f"{pfx}_AGP", mk, 20, 172, 196, 92, stage, gap=OPT('GAPD', 2))
    else:
        if OPT('SPEC', 0): poll_loop(a, f"{pfx}_AGP", mk(V_AGB), 20, 92, base=V_AGB, spec=lambda: stage(V_AGB))
        else:
            poll_loop(a, f"{pfx}_AGP", mk(V_AGB), 20, 92, base=V_AGB)
            stage(V_AGB)

def reduce_blocks(a, pfx, nb, SEL, base_reg, s_poll, v_ags, acc, apk, s_loc0=None, s_loc=None, sqbase=None):
    loads = []
    LOCAL = CURMODE[0] and RSLOC()
    if LOCAL:
        a(f"s_lshr_b32 s{S_NOW}, s{S_J}, 5")
        a(f"s_xor_b32 s{S_NOW+1}, s{S_CUR}, 8192")
        for b in range(nb):
            a(f"s_add_u32 s{s_loc[b]}, s{s_loc0[b]}, s{S_NOW+1}")
        for b in range(nb):
            for q in range(4):
                sq = sqbase + 4*b + q
                a(f"s_add_u32 s{sq}, s{s_poll[b]}, {q*1024}")
                a(f"s_cmp_eq_u32 s{S_NOW}, {q}")
                a(f"s_cselect_b32 s{sq}, s{s_loc[b]}, s{sq}")
                loads.append(f"buffer_load_dwordx4 {vr(base_reg+16*b+4*q)}, v{V_L16}, s[{S_WS}:{S_WS+3}], s{sq} offen sc1")
    else:
        for b in range(nb):
            for q in range(4):
                loads.append(f"buffer_load_dwordx4 {vr(base_reg+16*b+4*q)}, v{V_L16}, s[{S_WS}:{S_WS+3}], s{s_poll[b]} offen offset:{q*1024} sc1")
    poll_loop(a, f"{pfx}_RP", loads, 16*nb, 94, base=base_reg)
    stamp(a, 7)
    for q in range(4):
        for b in range(nb):
            c = "0" if q == 0 else vr(acc+8*b)
            a(f"v_mfma_f32_16x16x32_bf16 {vr(acc+8*b)}, {vr(SEL)}, {vr(base_reg+16*b+4*q)}, {c}")
    for b in range(nb):
        for r in range(4):
            a(f"v_add_f32_dpp v{acc+8*b+4+r}, v{acc+8*b+r}, v{acc+8*b+r} row_ror:8 row_mask:0xf bank_mask:0xf")
    if nb == 2:
        for r in range(4): a(f"v_cndmask_b32 v{acc+4+r}, v{acc+4+r}, v{acc+12+r}, s[{S_H8}:{S_H8+1}]")
    a(f"v_cvt_pk_bf16_f32 v{apk}, v{acc+4}, v{acc+5}")
    a(f"v_cvt_pk_bf16_f32 v{apk+1}, v{acc+6}, v{acc+7}")
    a(f"v_mov_b32 v{apk+2}, v{apk}\nv_mov_b32 v{apk+3}, v{apk+1}")
    a(f"v_mov_b32 v{apk+4}, v{apk}\nv_mov_b32 v{apk+5}, v{apk+1}")
    a(f"v_permlane16_swap_b32 v{apk+4}, v{apk+2}")
    a(f"v_permlane16_swap_b32 v{apk+5}, v{apk+3}")
    store_mode(a, [f"buffer_store_dwordx4 {vr(apk)}, v{v_ags}, s[{S_WS}:{S_WS+3}], s{S_CUR} offen SCX"])

def reduce2(a, pfx, SEL, base_reg, v_off, v_ags, acc, apk):
    loads = [f"buffer_load_dwordx4 {vr(base_reg+4*q)}, v{v_off}, s[{S_WS}:{S_WS+3}], s{S_CUR} offen offset:{q*512} sc1" for q in range(8)]
    poll_loop(a, f"{pfx}_RP", loads, 32, 94, base=base_reg)
    stamp(a, 7)
    for q in range(8):
        c = "0" if q == 0 else vr(acc)
        a(f"v_mfma_f32_16x16x32_bf16 {vr(acc)}, {vr(SEL)}, {vr(base_reg+4*q)}, {c}")
    a(f"v_cvt_pk_bf16_f32 v{apk}, v{acc}, v{acc+1}")
    a(f"v_cvt_pk_bf16_f32 v{apk+1}, v{acc+2}, v{acc+3}")
    store_mode(a, [f"buffer_store_dwordx2 {vr(apk,2)}, v{v_ags}, s[{S_WS}:{S_WS+3}], s{S_CUR} offen SCX"])

def sel_setup(a, SEL):
    for k in range(4):
        a(f"""v_mov_b32 v{SEL+k}, 0
v_mov_b32 v{V_T}, 0x3f80
v_cmp_eq_u32 vcc, {2*k}, v{V_N}
v_cndmask_b32 v{SEL+k}, v{SEL+k}, v{V_T}, vcc
v_mov_b32 v{V_T}, 0x3f800000
v_cmp_eq_u32 vcc, {2*k+1}, v{V_N}
v_cndmask_b32 v{SEL+k}, v{SEL+k}, v{V_T}, vcc""")

def smap(a, s, t):
    a(f"""s_lshr_b32 s{t}, s{s}, 13
s_lshl_b32 s{t}, s{t}, 14
s_and_b32 s{s}, s{s}, 0x1fff
s_or_b32 s{s}, s{s}, s{t}
s_add_u32 s{s}, s{s}, {nearmap(RS_LOG)}""")

def loc_off(a, s_cb, s_out, s_tmp):
    a(f"""s_lshr_b32 s{s_out}, s{S_J}, 5
s_mul_i32 s{s_out}, s{s_out}, 81920
s_lshl_b32 s{s_tmp}, s{s_cb}, 10
s_add_u32 s{s_out}, s{s_out}, s{s_tmp}""")
    smap(a, s_out, s_tmp)

def rs_local_lane(a, v):
    a(f"""v_lshlrev_b32 v{v}, 10, v{V_G}
v_and_b32 v{V_T}, 7, v{V_LANE}
v_lshlrev_b32 v{V_T}, 4, v{V_T}
v_add_u32 v{v}, v{v}, v{V_T}
s_and_b32 s{S_T}, s{S_H}, 7
s_lshl_b32 s{S_T}, s{S_T}, 7
v_add_u32 v{v}, s{S_T}, v{v}""")

def blk_off(a, s_cb, s_out, s_tmp):
    a(f"""s_lshr_b32 s{s_out}, s{s_cb}, 1
s_lshl_b32 s{s_out}, s{s_out}, 14
s_and_b32 s{s_tmp}, s{s_cb}, 1
s_lshl_b32 s{s_tmp}, s{s_tmp}, 12
s_add_u32 s{s_out}, s{s_out}, s{s_tmp}
s_add_u32 s{s_out}, s{s_out}, {nearmap(RS_LOG)}""")

def rotate_slots(a):
    a(f"""s_mov_b32 s{S_T}, s{S_P}
s_mov_b32 s{S_P}, s{S_CUR}
s_mov_b32 s{S_CUR}, s{S_N}
s_mov_b32 s{S_N}, s{S_NN}
s_mov_b32 s{S_NN}, s{S_T}""")

def proj_stage(a, ntile, w8):
    for K in range(10):
        a(f"ds_read_b128 {vr(V_RING+4*K)}, v{V_L16} offset:{L_MEM + K*1024}")
    for t in range(ntile):
        for r in range(4): a(f"v_mov_b32 v{V_ACC+4*t+r}, 0")
    for K in range(10):
        a(f"s_waitcnt lgkmcnt({9-K})")
        for t in range(ntile):
            a(f"v_smfmac_f32_16x16x64_bf16 {vr(V_ACC+4*t)}, {vr(V_RING+4*K)}, {w8(t,K)}, v{V_IDX}")

def pack_pair(x, y, pk):
    L = [f"v_permlane32_swap_b32 v{x+r}, v{y+r}" for r in range(4)]
    L += [f"v_add_f32 v{x+r}, v{x+r}, v{y+r}" for r in range(4)]
    L += [f"v_cvt_pk_bf16_f32 v{pk}, v{x}, v{x+1}", f"v_cvt_pk_bf16_f32 v{pk+1}, v{x+2}, v{x+3}"]
    return L

def ux_load(a, w, flags, pfx):
    nt = NT[w]
    if flags:
        a.uid += 1
        a(f"s_add_u32 s{S_UXT}, s{S_UXT}, 1")
        a(f"s_min_u32 s{S_T3}, s{S_UXT}, 64")
        wait_words(a, f"{pfx}_WUX{a.uid}", S_WS, V_UXA, V_T, S_T3, S_UXC, 1, S_T2, 23)
    for t in range(nt):
        a(f"buffer_load_dwordx4 {vr(V_UXF+4*t)}, v{V_L16}, s[{S_WS}:{S_WS+3}], s{S_UXG} offen offset:{t*1024} sc1")
    a(f"s_add_u32 s{S_UXG}, s{S_UXG}, {32*40*1024}")

def idle_phase(a, w, woq):
    if OPT('UXRD', 0):
        a(f"v_add_u32 v{V_T}, s{S_KVR}, v{V_L16}")
        for f in range(12):
            a(f"ds_read_b128 {vr(V_KXF+4*f)}, v{V_T} offset:{f*1024}")
        a("s_waitcnt lgkmcnt(0)")
        a(f"s_xor_b32 s{S_KVR}, s{S_KVR}, {KVX}")
        return
    nt = NT[w]
    a(f"v_add_u32 v{V_T}, s{S_KVR}, v{V_L16}")
    for f in range(12):
        a(f"ds_read_b128 {vr(V_QF+4*f)}, v{V_T} offset:{12288 + f*1024}")
        if f == 7: a("s_waitcnt lgkmcnt(4)")
    a("s_waitcnt lgkmcnt(0)")
    for f in range(12):
        a(f"ds_read_b128 {vr(V_KXF+4*f)}, v{V_T} offset:{f*1024}")
    for p in range(6):
        for t in range(nt):
            for tt in range(2):
                d = V_UA + 8*t + 4*tt
                c = "0" if p == 0 else vr(d)
                a(f"v_mfma_f32_16x16x32_bf16 {vr(d)}, {vr(V_QF+4*(tt*6+p))}, {woq(t,p)}, {c}")
    for t in range(nt):
        for k in range(4):
            tt = k >> 1
            d = V_UA + 8*t + 4*tt + 2*(k & 1)
            a(f"v_cvt_pk_bf16_f32 v{V_UXF+4*t+k}, v{d}, v{d+1}")
        a(f"s_add_u32 s{S_T}, s{S_UXG}, {t*1024}")
        if OPT('UXST', 0): a(f"buffer_store_dwordx4 {vr(V_UXF+4*t)}, v{V_L16}, s[{S_WS}:{S_WS+3}], s{S_T} offen sc1")
    a(f"s_add_u32 s{S_UXG}, s{S_UXG}, {32*40*1024}")
    a("s_waitcnt lgkmcnt(0)")
    a(f"s_xor_b32 s{S_KVR}, s{S_KVR}, {KVX}")

S_UXT=88; S_UXC=89; V_UXA=11
S_KVT=33
S_RLB=18
S_RL0=19; S_RL1=95
AP6 = [16, 17, 18, 19, 7, 8]
V_RSOL=9
S_KVC=21
def kv_dma(a, flags=False, pfx='', w=0):
    if w < 2:
        if flags:
            a.uid += 1
            a(f"s_add_u32 s{S_KVT}, s{S_KVT}, 2")
            a(f"s_min_u32 s{S_T3}, s{S_KVT}, 128")
            wait_words(a, f"{pfx}_WKV{a.uid}", S_WS, V_KVA, V_T, S_T3, 22, 2 if OPT('UXRD', 0) else 4, S_T2, 23)
        if OPT('UXRD', 0):
            for (k0, n) in ((0, 4), (4, 2)):
                a(f"s_add_u32 m0, s{S_KVL}, {w*6144 + k0*1024}")
                a(f"s_add_u32 s{S_T}, s{S_KVG}, {k0*1024}")
                for j in range(n):
                    a(f"buffer_load_dwordx4 v{V_L16}, s[{S_WS}:{S_WS+3}], s{S_T} offen offset:{j*1024} sc1 lds")
        else:
            for k in range(3):
                a(f"s_add_u32 m0, s{S_KVL}, {w*12288 + k*4096}")
                a(f"s_add_u32 s{S_T}, s{S_KVG}, {k*4096}")
                for j in range(4):
                    a(f"buffer_load_dwordx4 v{V_L16}, s[{S_WS}:{S_WS+3}], s{S_T} offen offset:{j*1024} sc1 lds")
        a(f"s_add_u32 s{S_KVG}, s{S_KVG}, {32*12288}")
    a(f"s_xor_b32 s{S_KVL}, s{S_KVL}, {KVX}")

def softmax_lists():
    X = V_SM; MX = V_SM+6; TM = V_SM+7; RS_ = V_SM+8; PT = V_SM+12; PM = V_SM+10; T2 = V_SM+16
    L = []
    for r in range(4): L.append(f"v_cndmask_b32 v{X+r}, v{V_S+4+r}, v{V_S+8+r}, s[{S_H8}:{S_H8+1}]")
    L.append(f"v_cndmask_b32 v{X+4}, v{V_S}, v{V_S+2}, s[{S_H8}:{S_H8+1}]")
    L.append(f"v_cndmask_b32 v{X+5}, v{V_S+1}, v{V_S+3}, s[{S_H8}:{S_H8+1}]")
    L.append(f"v_max3_f32 v{MX}, v{X}, v{X+1}, v{X+2}")
    L.append(f"v_max3_f32 v{TM}, v{X+3}, v{X+4}, v{X+5}")
    L.append(f"v_max_f32 v{MX}, v{MX}, v{TM}")
    L.append(f"v_max_f32_dpp v{MX}, v{MX}, v{MX} row_ror:8 row_mask:0xf bank_mask:0xf")
    L += [f"v_mov_b32 v{TM}, v{MX}", f"v_permlane16_swap_b32 v{MX}, v{TM}", f"v_max_f32 v{MX}, v{MX}, v{TM}"]
    L += [f"v_mov_b32 v{TM}, v{MX}", f"v_permlane32_swap_b32 v{MX}, v{TM}", f"v_max_f32 v{MX}, v{MX}, v{TM}"]
    L.append(f"v_mul_f32 v{MX}, s{S_SCALE}, v{MX}")
    for j in range(6): L.append(f"v_fma_f32 v{X+j}, v{X+j}, s{S_SCALE}, -v{MX}")
    for j in range(6): L.append(f"v_exp_f32 v{X+j}, v{X+j}")
    L.append(f"v_cvt_pk_bf16_f32 v{PT}, v{X}, v{X+1}")
    L.append(f"v_cvt_pk_bf16_f32 v{PT+1}, v{X+2}, v{X+3}")
    L.append(f"v_cvt_pk_bf16_f32 v{PM}, v{X+4}, v{X+5}")
    L.append(f"v_mov_b32_dpp v{PT+2}, v{PT} row_ror:8 row_mask:0xf bank_mask:0xf")
    L.append(f"v_mov_b32_dpp v{PT+3}, v{PT+1} row_ror:8 row_mask:0xf bank_mask:0xf")
    L.append(f"v_mov_b32_dpp v{PM+1}, v{PM} row_ror:8 row_mask:0xf bank_mask:0xf")
    M = [f"v_cndmask_b32 v{X+4}, v{X+4}, v{V_ZERO}, s[{S_HI32}:{S_HI32+1}]",
         f"v_cndmask_b32 v{X+5}, v{X+5}, v{V_ZERO}, s[{S_HI32}:{S_HI32+1}]",
         f"v_add_f32 v{RS_}, v{X}, v{X+1}", f"v_add_f32 v{TM}, v{X+2}, v{X+3}", f"v_add_f32 v{RS_+1}, v{X+4}, v{X+5}",
         f"v_add_f32 v{RS_}, v{RS_}, v{TM}", f"v_add_f32 v{RS_}, v{RS_}, v{RS_+1}",
         f"v_add_f32_dpp v{RS_}, v{RS_}, v{RS_} row_ror:8 row_mask:0xf bank_mask:0xf",
         f"v_mov_b32 v{TM}, v{RS_}", f"v_permlane16_swap_b32 v{RS_}, v{TM}", f"v_add_f32 v{RS_}, v{RS_}, v{TM}",
         f"v_mov_b32 v{TM}, v{RS_}", f"v_permlane32_swap_b32 v{RS_}, v{TM}", f"v_add_f32 v{RS_}, v{RS_}, v{TM}",
         f"v_rcp_f32 v{RS_}, v{RS_}"]
    return PT, PM, RS_, L, M

def gi(a, v):
    a(f"""v_lshlrev_b32 v{v}, 7, v{V_G}
v_and_b32 v{V_T}, 7, v{V_LANE}
v_lshlrev_b32 v{V_T}, 4, v{V_T}
v_add_u32 v{v}, v{v}, v{V_T}""")

def rs_lane(a, v):
    a(f"""v_lshrrev_b32 v{v}, 1, v{V_G}
v_lshlrev_b32 v{v}, 14, v{v}
v_and_b32 v{V_T}, 1, v{V_G}
v_lshlrev_b32 v{V_T}, 12, v{V_T}
v_add_u32 v{v}, v{v}, v{V_T}
v_and_b32 v{V_T}, 7, v{V_LANE}
v_lshlrev_b32 v{V_T}, 4, v{V_T}
v_add_u32 v{v}, v{v}, v{V_T}
s_lshl_b32 s{S_T}, s{S_H}, 7
v_add_u32 v{v}, s{S_T}, v{v}""")

def coop_load(a, w, wreg):
    stride = H*E*2
    VG, VT = V_POLL, V_POLL+1
    a(f"""v_lshrrev_b32 v{V_T}, 3, v{V_LANE}
v_add_u32 v{V_T}, {8*w}, v{V_T}
s_mov_b32 s{S_LB+1}, {stride}
v_mul_lo_u32 v{VG}, v{V_T}, s{S_LB+1}
v_and_b32 v{V_T}, 7, v{V_LANE}
v_lshlrev_b32 v{V_T}, 4, v{V_T}
v_add_u32 v{VG}, v{VG}, v{V_T}
v_bfe_u32 v{VT}, v{V_LANE}, 4, 1
v_lshlrev_b32 v{VT}, 4, v{VT}
v_bfe_u32 v{V_T}, v{V_LANE}, 5, 1
v_lshlrev_b32 v{V_T}, 3, v{V_T}
v_add_u32 v{VT}, v{VT}, v{V_T}
v_bfe_u32 v{V_T}, v{V_LANE}, 2, 1
v_add_u32 v{VT}, v{VT}, v{V_T}
v_bfe_u32 v{V_T}, v{V_LANE}, 3, 1
v_lshlrev_b32 v{V_T}, 2, v{V_T}
v_add_u32 v{VT}, v{VT}, v{V_T}
v_lshlrev_b32 v{VT}, 7, v{VT}
v_and_b32 v{V_T}, 3, v{V_LANE}
v_lshlrev_b32 v{V_T}, 3, v{V_T}
v_add_u32 v{VT}, v{VT}, v{V_T}
s_mul_i32 s{S_COL}, s{S_H}, 384
s_mul_i32 s{S_T}, s{S_C}, 96
s_add_u32 s{S_COL}, s{S_COL}, s{S_T}
v_add_u32 v{VT+1}, 61440, v{VT}""")
    srds = (S_WQ, S_WK, S_WV)
    def issue(ph):
        buf = (ph & 1)*61440
        for pp in range(5):
            p = 5*ph + pp
            for m in range(3):
                a(f"s_add_u32 s{S_T}, s{S_COL}, {p*32*stride}")
                a(f"s_mov_b32 m0, {buf + (pp*3+m)*4096 + w*1024}")
                a(f"buffer_load_dwordx4 v{VG}, s[{srds[m]}:{srds[m]+3}], s{S_T} offen lds")
    VST = 64
    def issue_v(ph):
        for pp in range(5):
            p = 5*ph + pp
            for m in range(3):
                a(f"s_add_u32 s{S_T}, s{S_COL}, {p*32*stride}")
                a(f"buffer_load_dwordx4 {vr(VST + (ph-2)*60 + (pp*3+m)*4)}, v{VG}, s[{srds[m]}:{srds[m]+3}], s{S_T} offen")
    def put(ph):
        buf = (ph & 1)*61440
        for u in range(15):
            reg = VW if buf == 0 else VW+1
            a(f"ds_write_b128 v{reg}, {vr(VST + (ph-2)*60 + u*4)} offset:{u*4096}")
            if u % 6 == 5: a("s_waitcnt lgkmcnt(6)")
    def reads(ph):
        buf = (ph & 1)*61440
        n = 0
        for pp in range(5):
            p = 5*ph + pp
            if w < 3: items = [(0, w, p), (1, w, 20+p)]
            else: items = [(2, t, t*20+p) for t in range(3)]
            for (m, T, f) in items:
                o = buf + (pp*3+m)*4096 + T*32
                reg = VT if o + 256 < 65536 else VT+1
                oo = o if reg == VT else o - 61440
                a(f"ds_read_b64_tr_b16 {wreg.pair(f,0)}, v{reg} offset:{oo}")
                a(f"ds_read_b64_tr_b16 {wreg.pair(f,1)}, v{reg} offset:{oo+256}")
                n += 2
                if n % 12 == 0: a("s_waitcnt lgkmcnt(4)")
        a("s_waitcnt lgkmcnt(0)")
    if OPT('COOPV', 1):
        VW = V_POLL+3
        a(f"v_lshlrev_b32 v{VW}, 4, v{V_LANE}")
        a(f"v_add_u32 v{VW}, {w*1024}, v{VW}")
        a(f"v_add_u32 v{VW+1}, 61440, v{VW}")
        issue(0); issue(1); issue_v(2); issue_v(3)
        for ph in range(4):
            if ph < 2:
                a(f"s_waitcnt vmcnt({45 - 15*ph})")
            else:
                a(f"s_waitcnt vmcnt({15 if ph == 2 else 0})")
                put(ph)
                a("s_waitcnt lgkmcnt(0)")
            a("s_barrier")
            reads(ph)
            a("s_barrier")
        return
    issue(0); issue(1)
    for ph in range(4):
        a(f"s_waitcnt vmcnt({15 if ph < 3 else 0})")
        a("s_barrier")
        reads(ph)
        a("s_barrier")
        if ph + 2 < 4: issue(ph+2)

def main_wave(a, w, flags=False):
    pfx = f"RM{w}"
    nt = NT[w]
    wreg = WReg(0, 256, 0)
    mem0_load(a, w)
    w8 = lambda t, K: ar((t*20 + 2*K)*4, 8)
    woq = lambda t, p: wreg.quad(40 + t*6 + p)
    a(f"s_lshl_b32 s{S_LB}, s{S_WAVE}, 15")
    if OPT('COOP', 1):
        coop_load(a, w, wreg)
    else:
        a(f"""s_mul_i32 s{S_COL}, s{S_H}, 384
s_mul_i32 s{S_T}, s{S_C}, 96
s_add_u32 s{S_COL}, s{S_COL}, s{S_T}
s_add_u32 s{S_COL}, s{S_COL}, {w*32}""")
        units = []
        for p in range(20): units += [(S_WQ, S_COL, p*32*H*E*2), (S_WK, S_COL, p*32*H*E*2)]
        load_w2(a, units, lambda u, T, k: wreg.pair((u & 1)*20 + (u >> 1), k), 1, H*E*2, 2, V_LANE, V_POLL, V_POLL+1, V_T, S_T, S_LB)
    a(f"""s_mul_i32 s{S_COL}, s{S_H}, {192*1280}
s_mul_i32 s{S_T}, s{S_C}, 320
s_add_u32 s{S_COL}, s{S_COL}, s{S_T}
s_add_u32 s{S_COL}, s{S_COL}, {T0[w]*32}""")
    ng = nt//2
    units = [(S_WO, S_COL, g*64 + p*32*1280) for p in range(6) for g in range(ng)]
    load_w2(a, units, lambda u, T, k: wreg.pair(40 + ((u % ng)*2 + T)*6 + u // ng, k), 2, D*2, True, V_LANE, V_POLL, V_POLL+1, V_T, S_T, S_LB)
    if OPT('STAMP', 0): a("s_memtime s[78:79]\ns_waitcnt lgkmcnt(0)\ns_sub_u32 s95, s78, s100")
    common_setup(a, w)
    gi(a, V_KMS)
    a(f"v_add_u32 v{V_KMS}, {w*1024}, v{V_KMS}")
    a(f"""v_lshrrev_b32 v{V_AST}, 1, v{V_G}
v_mul_u32_u24 v{V_AST}, 3072, v{V_AST}
v_lshlrev_b32 v{V_T}, 4, v{V_N}
v_add_u32 v{V_AST}, v{V_AST}, v{V_T}
v_and_b32 v{V_T}, 1, v{V_G}
v_lshlrev_b32 v{V_T}, 3, v{V_T}
v_add_u32 v{V_AST}, v{V_AST}, v{V_T}
s_mul_i32 s{S_T}, s{S_C}, 3
s_add_u32 s{S_T}, s{S_T}, {w}
s_lshl_b32 s{S_T}, s{S_T}, 8
s_mul_i32 s{S_T2}, s{S_H}, 9216
s_add_u32 s{S_T}, s{S_T}, s{S_T2}
v_add_u32 v{V_AST}, s{S_T}, v{V_AST}""")
    nearmap_v(a, V_AST, V_T)
    a(f"""s_add_u32 s{S_T}, s{S_T2}, {w*2048}
v_add_u32 v{V_APO}, s{S_T}, v{V_L16}
v_add_u32 v{V_APO+1}, 1024, v{V_APO}
v_add_u32 v{V_APL}, {L_QKV + w*2048}, v{V_L16}""")
    nearmap_v(a, V_APO, V_T); nearmap_v(a, V_APO+1, V_T)
    if w == 2 and OPT('EARLYDMA', 0):
        for k in range(6):
            a(f"v_add_u32 v{AP6[k]}, s{S_T2}, v{V_L16}")
            if k: a(f"v_add_u32 v{AP6[k]}, {k*1024}, v{AP6[k]}")
            nearmap_v(a, AP6[k], V_T)
    a(f"""v_lshlrev_b32 v{V_RQ}, 2, v{V_G}
v_bfe_u32 v{V_T}, v{V_LANE}, 2, 2
v_add_u32 v{V_RQ}, v{V_RQ}, v{V_T}
v_lshlrev_b32 v{V_RQ}, 4, v{V_RQ}
v_and_b32 v{V_T}, 1, v{V_LANE}
v_lshlrev_b32 v{V_T}, 3, v{V_T}
v_add_u32 v{V_RQ}, v{V_RQ}, v{V_T}
v_add_u32 v{V_RQ}, {L_QKV}, v{V_RQ}""")
    a(f"""v_bfe_u32 v{V_RV}, v{V_LANE}, 5, 1
v_lshlrev_b32 v{V_RV}, 5, v{V_RV}
v_bfe_u32 v{V_T}, v{V_LANE}, 4, 1
v_lshlrev_b32 v{V_T}, 3, v{V_T}
v_add_u32 v{V_RV}, v{V_RV}, v{V_T}
v_bfe_u32 v{V_T}, v{V_LANE}, 2, 1
v_add_u32 v{V_RV}, v{V_RV}, v{V_T}
v_bfe_u32 v{V_T}, v{V_LANE}, 3, 1
v_lshlrev_b32 v{V_T}, 4, v{V_T}
v_add_u32 v{V_RV}, v{V_RV}, v{V_T}
v_bfe_u32 v{V_T}, v{V_LANE}, 1, 1
v_lshlrev_b32 v{V_T}, 1, v{V_T}
v_add_u32 v{V_RV}, v{V_RV}, v{V_T}
v_lshlrev_b32 v{V_RV}, 4, v{V_RV}
v_and_b32 v{V_T}, 1, v{V_LANE}
v_lshlrev_b32 v{V_T}, 3, v{V_T}
v_add_u32 v{V_RV}, v{V_RV}, v{V_T}
v_add_u32 v{V_RV}, {L_QKV+6144}, v{V_RV}""")
    rs_lane(a, V_RSO)
    rs_local_lane(a, V_RSOL)
    for P in range(nt//2):
        a(f"""s_lshr_b32 s{76+P}, s{S_J}, 5
s_mul_i32 s{76+P}, s{76+P}, 81920
s_mul_i32 s{S_T}, s{S_C}, {5*4096}
s_add_u32 s{76+P}, s{76+P}, s{S_T}
s_add_u32 s{76+P}, s{76+P}, {(P0[w]+P)*4096}""")
        smap(a, 76+P, S_T)
    a(f"""s_mul_i32 s{S_RSB}, s{S_C}, {5*32768}
s_add_u32 s{S_RSB}, s{S_RSB}, {nearmap(RS_LOG) + P0[w]*32768}
s_mul_i32 s{S_T}, s{S_H}, 12288
s_add_u32 s{S_KVG}, s{S_T}, {(KX + w*6144) if OPT('UXRD', 0) else (KX if w == 0 else VX)}
s_mul_i32 s{S_T}, s{S_H}, 40
s_mul_i32 s{S_T2}, s{S_C}, 10
s_add_u32 s{S_T}, s{S_T}, s{S_T2}
s_add_u32 s{S_T}, s{S_T}, {T0[w]}
s_lshl_b32 s{S_UXG}, s{S_T}, 10
s_add_u32 s{S_UXG}, s{S_UXG}, {UX}
s_lshl_b32 s{S_UYG}, s{S_T}, 8
s_add_u32 s{S_UYG}, s{S_UYG}, {UY}
s_mul_i32 s{S_KMG}, s{S_H}, 3072
s_add_u32 s{S_KMG}, s{S_KMG}, {KM}
s_mov_b32 s{S_KVL}, {L_KV}
s_mov_b32 s{S_KVR}, {L_KV}
s_lshl_b32 s{S_FLG}, s{S_J}, 7
s_add_u32 s{S_FLG}, s{S_FLG}, {F_REC}""")
    if w == 2:
        a(f"""s_and_b32 s{S_COL}, s{S_J}, 31
s_cmp_lt_u32 s{S_COL}, 16
s_cselect_b32 s{S_RED}, 1, 0
s_add_u32 s{S_COL}, s{S_COL}, 64""")
        blk_off(a, S_COL, S_RSP, S_T)
        loc_off(a, S_COL, 72, S_T)
        a(f"""s_lshr_b32 s{S_T}, s{S_J}, 5
s_mul_i32 s{S_T}, s{S_T}, 10240
s_add_u32 s{S_T}, s{S_T}, {AG_LOG}
s_lshl_b32 s{S_T3}, s{S_COL}, 7
s_add_u32 s{S_T}, s{S_T}, s{S_T3}
v_add_u32 v{V_AGS}, s{S_T}, v{V_L16}""")
        nearmap_v(a, V_AGS, V_T)
        oob_mask(a, V_AGS, 8)
        sel_setup(a, 240)
    if flags:
        a(f"""s_mul_i32 s{S_T}, s{S_H}, 6
s_lshr_b32 s{S_T2}, s{S_T}, 3
s_add_u32 s{S_T}, s{S_T}, 5
s_lshr_b32 s{S_T}, s{S_T}, 3
v_mov_b32 v{V_KVA}, s{S_T}
v_mov_b32 v{V_T}, s{S_T2}
v_and_b32 v{V_T2}, 1, v{V_LANE}
v_cmp_eq_u32 vcc, 0, v{V_T2}
v_cndmask_b32 v{V_KVA}, v{V_KVA}, v{V_T}, vcc
v_cmp_lt_u32 vcc, 1, v{V_LANE}
v_mov_b32 v{V_T}, {R_V0 if not OPT('UXRD', 0) else 0}
v_cndmask_b32 v{V_T}, 0, v{V_T}, vcc
v_add_u32 v{V_KVA}, v{V_KVA}, v{V_T}
v_lshlrev_b32 v{V_KVA}, {PSH}, v{V_KVA}
v_add_u32 v{V_KVA}, {F_PROG}, v{V_KVA}
s_mov_b32 s{S_KVT}, 0
s_mov_b32 s22, 0
s_add_u32 s{S_T}, s{S_H}, {R_U0}
s_lshl_b32 s{S_T}, s{S_T}, {PSH}
s_add_u32 s{S_T}, s{S_T}, {F_PROG}
v_mov_b32 v{V_UXA}, s{S_T}""")
    if flags and w == 0: trace(a, 1, S_J)
    read_polarity(a, pfx)
    if flags and w == 0: trace(a, 2, S_J)
    a("s_barrier")
    mem0_stage(a, w)
    a(f"s_mov_b32 s{S_UXT}, 0\ns_mov_b32 s{S_UXC}, 0")
    kv_dma(a, flags, pfx, w)
    if flags and w == 0: trace(a, 3, S_J)
    a("s_waitcnt vmcnt(0) lgkmcnt(0)")
    a("s_barrier")
    idle_phase(a, w, woq)
    if flags and w == 0:
        dbgt(a, 40, op="max")
        trace(a, 4, S_J)
        if int(os.environ.get('TRACE', 0)):
            a("s_memtime s[86:87]\ns_waitcnt lgkmcnt(0)")
            trace(a, 6, S_J, val=86)
    stamp(a, 0)
    if OPT('STAMP', 0): a(f"s_waitcnt lgkmcnt(0)\ns_sub_u32 s101, s{S_TS}, s100")
    pfx0 = pfx
    a(f"s_cmp_eq_u32 s{S_MODE}, 0")
    a(f"s_cbranch_scc1 {pfx0}S_B0")
    a(f"s_branch {pfx0}F_B0")
    for mode in (1, 0):
        CURMODE[0] = mode
        pfx = pfx0 + ("F" if mode else "S")
        main_loop(a, w, flags, pfx, nt, w8, woq)
    CURMODE[0] = None

def main_loop(a, w, flags, pfx, nt, w8, woq):
    wo8 = lambda t, K: ar((40 + t*6 + 2*K)*4, 8)
    a.label(f"{pfx}_LOOP")
    stamp(a, 0)
    if w == 2: ag_poll(a, pfx, w)
    a.label(f"{pfx}_B0")
    if w < 2 and OPT('EARLYDMA', 0): a("s_waitcnt vmcnt(0)")
    a("s_waitcnt lgkmcnt(0)")
    a("s_barrier")
    mark(a, S_REF0)
    stamp(a, 1)
    if OPT('STEPTR', 0) and w == 1:
        a("s_waitcnt lgkmcnt(0)")
        a(f"v_mov_b32 v250, s{S_REF0}")
        a(f"s_lshl_b32 s86, s{S_J}, 8")
        a(f"s_lshl_b32 s87, s{S_STEP}, 2")
        a(f"s_add_u32 s86, s86, s87")
        a(f"s_add_u32 s86, s86, {TRACE + 65536}")
        a("v_mov_b32 v251, s86")
        a("s_mov_b64 exec, 1")
        a(f"buffer_store_dword v250, v251, s[{S_WS}:{S_WS+3}], 0 offen")
        a("s_mov_b64 exec, -1")
    proj_stage(a, 2, w8)
    for x in pack_pair(V_ACC, V_ACC+4, V_PK): a(x)
    store_mode(a, [f"buffer_store_dwordx2 {vr(V_PK,2)}, v{V_AST}, s[{S_WS}:{S_WS+3}], s{S_CUR} offen SCX"])
    stamp(a, 2)
    ED = OPT('EARLYDMA', 0)
    if ED and w < 2:
        a(f"s_cmp_lg_u32 s{S_STEP}, 0")
        a(f"s_cbranch_scc1 {pfx}_NOS1")
        kv_dma(a, flags, pfx, w)
        a("s_waitcnt vmcnt(0)")
        a.label(f"{pfx}_NOS1")
        a(f"s_cmp_ge_u32 s{S_STEP}, 62")
        a(f"s_cbranch_scc1 {pfx}_NOS2")
        kv_dma(a, flags, pfx, w)
        a.label(f"{pfx}_NOS2")
    elif not ED and (w < 2 or OPT('UXRD', 0)):
        a(f"s_cmp_lg_u32 s{S_STEP}, 0")
        a(f"s_cbranch_scc1 {pfx}_NOS1")
        if w < 2: kv_dma(a, flags, pfx, w)
        if OPT('UXRD', 0): ux_load(a, w, flags, pfx)
        a.label(f"{pfx}_NOS1")
    for t in range(nt):
        for r in range(4): a(f"v_mov_b32 v{V_Y+4*t+r}, 0")
    if ED:
        if w == 2:
            wait_mode(a, S_REF0, OPT('T_AF', 0), OPT('T_A', 1150))
            lds6 = [f"buffer_load_dwordx4 {vr(V_POLL+4*k) if k < 4 else vr(V_RSP+4*(k-4))}, v{AP6[k]}, s[{S_WS}:{S_WS+3}], s{S_CUR} offen sc1" for k in range(6)]
            a(f"s_mov_b32 s{S_RETRY}, 0")
            a.label(f"{pfx}_AP")
            for x in lds6: a(x)
            a("s_waitcnt vmcnt(0)")
            poll_check(a, list(range(V_POLL, V_POLL+16)) + list(range(V_RSP, V_RSP+8)), V_T)
            a(f"""s_cbranch_vccz {pfx}_AP_OK
s_add_u32 s{S_RETRY}, s{S_RETRY}, 1
s_cmp_lt_u32 s{S_RETRY}, s{S_MAXR}
s_cbranch_scc1 {pfx}_AP
s_mov_b32 s{S_MAXR}, 0""")
            a.label(f"{pfx}_AP_OK")
            racc(a, 93)
            for k in range(6):
                a(f"ds_write_b128 v{V_L16}, {vr(V_POLL+4*k) if k < 4 else vr(V_RSP+4*(k-4))} offset:{L_QKV + k*1024}")
    else:
        wait_mode(a, S_REF0, OPT('T_AF', 0), OPT('T_A', 1150))
        def mkA(b): return [f"buffer_load_dwordx4 {vr(b+4*k)}, v{V_APO+k}, s[{S_WS}:{S_WS+3}], s{S_CUR} offen sc1" for k in range(2)]
        def stA(b):
            a(f"ds_write_b128 v{V_APL}, {vr(b)}")
            a(f"ds_write_b128 v{V_APL}, {vr(b+4)} offset:1024")
        poll_loop(a, f"{pfx}_AP", mkA(V_POLL), 8, 93)
        stA(V_POLL)
    a("s_waitcnt lgkmcnt(0)")
    stamp(a, 3)
    a("s_barrier")
    stamp(a, 4)
    reads = []
    for p in range(6):
        for (reg, typ) in ((V_QF, 0), (V_KF, 1)):
            for k in range(2):
                reads.append(f"ds_read_b64_tr_b16 {vr(reg+4*p+2*k,2)}, v{V_RQ} offset:{typ*3072 + (2*p+k)*256}")
    vreads = [f"ds_read_b64_tr_b16 {vr(V_VF+4*K+2*k,2)}, v{V_RV} offset:{K*1024 + k*64}" for K in range(3) for k in range(2)]
    TWOB = OPT('TWOB', 1)
    if not TWOB: reads += vreads
    issued = 0
    def iss(n):
        nonlocal issued
        for _ in range(n):
            if issued < len(reads): a(reads[issued]); issued += 1
    iss(12)
    for p in range(6):
        a(f"s_waitcnt lgkmcnt({issued - (4*p+4)})")
        for u, A_ in enumerate((vr(V_KXF+4*p), vr(V_KXF+4*(6+p)), vr(V_KF+4*p))):
            d = V_S + (4 if u == 0 else 8 if u == 1 else 0)
            c = "0" if p == 0 else vr(d)
            a(f"v_mfma_f32_16x16x32_bf16 {vr(d)}, {A_}, {vr(V_QF+4*p)}, {c}")
        iss(4)
    if TWOB:
        a("s_barrier")
        if w == 2 or OPT('T_DMA', 0) > 0 or OPT('T_DMA2', 0) > 0: mark(a, 96)
        for x in vreads: a(x)
    stamp(a, 5)
    ym = []
    for K in range(3):
        for t in range(nt):
            pre = f"s_waitcnt lgkmcnt({6 - (2*K + 2)})\n" if t == 0 else ""
            ym.append(pre + f"v_smfmac_f32_16x16x64_bf16 {vr(V_Y+4*t)}, {vr(V_VF+4*K)}, {wo8(t,K)}, v{V_IDX}")
    PT, PM, RS_, L1, L2 = softmax_lists()
    yc = [f"v_cvt_pk_bf16_f32 v{V_YF+2*t+k}, v{V_Y+4*t+2*k}, v{V_Y+4*t+2*k+1}" for t in range(nt) for k in range(2)]
    Y0 = OPT('Y0', 2)
    for i, x in enumerate(L1):
        if ym and i >= Y0: a(ym.pop(0))
        a(x)
    while ym: a(ym.pop(0))
    for t in range(nt):
        a(f"v_mfma_f32_16x16x32_bf16 {vr(V_PU+4*t)}, {vr(V_UXF+4*t)}, {vr(PT)}, 0")
        for _ in range(2):
            if yc: a(yc.pop(0))
    for t in range(nt):
        a(f"v_mfma_f32_16x16x16_bf16 {vr(V_PU+4*t)}, {vr(V_YF+2*t,2)}, {vr(PM,2)}, {vr(V_PU+4*t)}")
        for _ in range(4):
            if L2: a(L2.pop(0))
    while L2: a(L2.pop(0))
    a(f"v_mov_b32 v{RS_+1}, v{RS_}")
    for t in range(nt):
        for r in range(0, 4, 2): a(f"v_pk_mul_f32 {vr(V_PU+4*t+r,2)}, {vr(V_PU+4*t+r,2)}, {vr(RS_,2)}")
    for t in range(nt):
        a(f"v_cvt_pk_bf16_f32 v{V_RSP+2*t}, v{V_PU+4*t}, v{V_PU+4*t+1}")
        a(f"v_cvt_pk_bf16_f32 v{V_RSP+2*t+1}, v{V_PU+4*t+2}, v{V_PU+4*t+3}")
    a(f"s_add_u32 s{S_T}, s{S_CUR}, s{S_RSB}")
    a(f"s_mov_b64 exec, s[{S_M8}:{S_M8+1}]")
    for P in range(nt//2):
        if P > 0: a(f"s_add_u32 s{S_T}, s{S_T}, 32768")
        a(f"buffer_store_dwordx4 {vr(V_RSP+4*P)}, v{V_RSO}, s[{S_WS}:{S_WS+3}], s{S_T} offen sc1")
    if CURMODE[0] and RSLOC():
        a(f"s_xor_b32 s74, s{S_CUR}, 8192")
        for P in range(nt//2):
            a(f"s_add_u32 s{S_T}, s{76+P}, s74")
            a(f"buffer_store_dwordx4 {vr(V_RSP+4*P)}, v{V_RSOL}, s[{S_WS}:{S_WS+3}], s{S_T} offen")
    stamp(a, 6)
    a("s_mov_b64 exec, -1")
    LATEDMA = OPT('T_DMA', 0) > 0
    if (w < 2 or OPT('UXRD', 0)) and not OPT('NODMA', 0) and not LATEDMA and not OPT('EARLYDMA', 0):
        if not OPT('T_DMA2', 0):
            a(f"s_cmp_eq_u32 s{S_STEP}, 63")
            a(f"s_cbranch_scc1 {pfx}_NODMA")
            if OPT('UXRD', 0): ux_load(a, w, flags, pfx)
            if w < 2: kv_dma(a, flags, pfx, w)
            a.label(f"{pfx}_NODMA")
    a(f"s_mov_b64 exec, s[{S_M8}:{S_M8+1}]")
    a(f"s_cmp_lg_u32 s{S_C}, 0")
    a(f"s_cbranch_scc1 {pfx}_NOKM")
    for k in range(2 if not OPT('NOKM', 0) else 0):
        a(f"buffer_store_dwordx4 {vr(V_KF+4*(2*w+k))}, v{V_KMS}, s[{S_WS}:{S_WS+3}], s{S_KMG} offen offset:{k*512} sc1")
    a.label(f"{pfx}_NOKM")
    a("s_mov_b64 exec, -1")
    a(f"s_add_u32 s{S_KMG}, s{S_KMG}, {32*3072}")
    for t in range(nt):
        for r in range(4): a(f"v_mov_b32 v{V_PU+r}, v{V_Y+4*t+r}")
        for r in range(4): a(f"v_permlane32_swap_b32 v{V_Y+4*t+r}, v{V_PU+r}")
        for r in range(4): a(f"v_add_f32 v{V_Y+4*t+r}, v{V_Y+4*t+r}, v{V_PU+r}")
        a(f"v_cvt_pk_bf16_f32 v{V_YF+2*t}, v{V_Y+4*t}, v{V_Y+4*t+1}")
        a(f"v_cvt_pk_bf16_f32 v{V_YF+2*t+1}, v{V_Y+4*t+2}, v{V_Y+4*t+3}")
    a("s_mov_b32 exec_hi, 0")
    for t in range(nt if not OPT('NOUY', 0) else 0):
        a(f"buffer_store_dwordx2 {vr(V_YF+2*t,2)}, v{V_L4}, s[{S_WS}:{S_WS+3}], s{S_UYG} offen offset:{t*256} sc1")
    a("s_mov_b64 exec, -1")
    a(f"s_add_u32 s{S_UYG}, s{S_UYG}, {32*40*256}")
    if w == OPT('FLGW', 1) and not OPT('NOFLG', 0):
        a(f"v_mov_b32 v{V_T}, s{S_STEP}")
        a("s_mov_b64 exec, 1")
        a(f"buffer_store_dword v{V_T}, v{V_ZERO}, s[{S_WS}:{S_WS+3}], s{S_FLG} offen sc1")
        a(f"s_cmp_lg_u32 s{S_J}, 0")
        a(f"s_cbranch_scc1 {pfx}_NOPROG")
        a(f"s_mov_b32 s{S_T}, {F_RPROG}")
        a(f"buffer_store_dword v{V_T}, v{V_ZERO}, s[{S_WS}:{S_WS+3}], s{S_T} offen sc1")
        a.label(f"{pfx}_NOPROG")
        a("s_mov_b64 exec, -1")
    a(f"s_add_u32 s{S_STEP}, s{S_STEP}, 1")
    a(f"s_cmp_ge_u32 s{S_STEP}, 64")
    a(f"s_cbranch_scc1 {pfx}_DONE")
    if w < 2 and OPT('T_DMA2', 0):
        wait_until(a, 96, OPT('T_DMA2', 0))
        kv_dma(a, flags, pfx, w)
    stamp(a, 7)
    idle_phase(a, w, woq)
    if w < 2 and LATEDMA:
        wait_until(a, 96, OPT('T_DMA', 0))
        kv_dma(a, flags, pfx, w)
    if w == 2:
        a(f"s_cmp_eq_u32 s{S_RED}, 0")
        a(f"s_cbranch_scc1 {pfx}_NORED")
        wait_until(a, 96, OPT('T_RS', 1150))
        a(f"s_add_u32 s{S_T2}, s{S_CUR}, s{S_RSP}")
        reduce_blocks(a, pfx, 1, 240, 48, (S_T2,), V_AGS, 64, 80, s_loc0=(72,), s_loc=(74,), sqbase=64)
        a.label(f"{pfx}_NORED")
    rotate_slots(a)
    stamp_acc(a)
    if w == 2: mark(a, S_REF2)
    a(f"s_branch {pfx}_LOOP")
    a.label(f"{pfx}_DONE")
    a("s_waitcnt vmcnt(0)")
    a("s_barrier")
    if flags and w == 0:
        dbgt(a, 44, op="max")
        trace(a, 5, S_J)
        if int(os.environ.get('TRACE', 0)):
            a("s_memtime s[86:87]\ns_waitcnt lgkmcnt(0)")
            trace(a, 7, S_J, val=86)
    if w == OPT('FLGW', 1):
        a(f"v_mov_b32 v{V_T}, 64")
        a("s_mov_b64 exec, 1")
        a(f"buffer_store_dword v{V_T}, v{V_ZERO}, s[{S_WS}:{S_WS+3}], s{S_FLG} offen sc1")
        a(f"s_cmp_lg_u32 s{S_J}, 0")
        a(f"s_cbranch_scc1 {pfx}_NOPROG2")
        a(f"s_mov_b32 s{S_T}, {F_RPROG}")
        a(f"buffer_store_dword v{V_T}, v{V_ZERO}, s[{S_WS}:{S_WS+3}], s{S_T} offen sc1")
        a.label(f"{pfx}_NOPROG2")
        a("s_waitcnt vmcnt(0)")
        a("s_mov_b64 exec, -1")
    stamp_out(a, w)
    a("s_endpgm")

def stamp_acc(a):
    if not OPT('STAMP', 0): return
    a(f"s_memtime s[{S_TS+16}:{S_TS+17}]")
    a("s_waitcnt lgkmcnt(0)")
    for k in range(8):
        a(f"s_sub_u32 s{S_T}, s{S_TS+2*k+2}, s{S_TS+2*k}")
        a(f"s_add_u32 s{80+k}, s{80+k}, s{S_T}")

def stamp_out(a, w):
    if not OPT('STAMP', 0): return
    a.uid += 1
    L = f"STO_{w}_{a.uid}"
    a(f"""s_cmp_lg_u32 s{S_J}, {OPT('STAMPROLE', 0)}
s_cbranch_scc1 {L}
s_waitcnt lgkmcnt(0)
s_load_dwordx2 s[96:97], s[0:1], {KA['dbg']}
s_waitcnt lgkmcnt(0)
s_mov_b64 exec, 1""")
    for k in range(8):
        a(f"v_mov_b32 v10, s{80+k}\nv_mov_b32 v11, {64 + w*48 + k*4}\nglobal_store_dword v11, v10, s[96:97]\ns_waitcnt vmcnt(0)")
    if w == 0:
        a(f"v_mov_b32 v10, s95\nv_mov_b32 v11, 40\nglobal_store_dword v11, v10, s[96:97]\ns_waitcnt vmcnt(0)")
        a(f"v_mov_b32 v10, s101\nv_mov_b32 v11, 44\nglobal_store_dword v11, v10, s[96:97]\ns_waitcnt vmcnt(0)")
    for k in range(3):
        a(f"v_mov_b32 v10, s{92+k}\nv_mov_b32 v11, {64 + w*48 + 32 + k*4}\nglobal_store_dword v11, v10, s[96:97]\ns_waitcnt vmcnt(0)")
    a.label(L)

def common_setup(a, w):
    a(f"""v_lshlrev_b32 v{V_L16}, 4, v{V_LANE}
v_lshlrev_b32 v{V_L4}, 3, v{V_LANE}
v_mov_b32 v{V_ZERO}, 0
s_mov_b32 s{S_M8}, 0x00ff00ff
s_mov_b32 s{S_M8+1}, 0x00ff00ff
s_mov_b32 s{S_H8}, 0xff00ff00
s_mov_b32 s{S_H8+1}, 0xff00ff00
s_mov_b32 s{S_HI32}, 0
s_mov_b32 s{S_HI32+1}, -1
v_mov_b32 v{V_NINF}, 0xff800000
s_mov_b32 s{S_MQ}, 0x0000ffff
s_mov_b32 s{S_MQ+1}, 0x0000ffff
v_mov_b32 v{V_IDX}, 0x44444444
v_mov_b32 v{V_T}, 0xeeeeeeee
v_cndmask_b32 v{V_IDX}, v{V_IDX}, v{V_T}, s[{S_H8}:{S_H8+1}]
s_mov_b32 s{S_SCALE}, 0x{f2u(192**-0.5*1.4426950408889634):08x}
s_mov_b32 s{S_MAXR}, {OPT('MAXRETRY', 400000)}
s_mov_b32 s{S_STEP}, 0""")
    for k in range(8): a(f"s_mov_b32 s{80+k}, 0")
    for k in range(92, 95): a(f"s_mov_b32 s{k}, 0")
    if w >= 2:
        a(f"s_lshr_b32 s{S_T}, s{S_J}, 5")
        a(f"s_mul_i32 s{S_T}, s{S_T}, 10240")
        a(f"s_add_u32 s{S_T}, s{S_T}, {AG_LOG + (w-2)*5120}")
        for k in range(5):
            a(f"v_add_u32 v{V_AGP+k}, s{S_T}, v{V_L16}")
            if k: a(f"v_add_u32 v{V_AGP+k}, {k*1024}, v{V_AGP+k}")
            nearmap_v(a, V_AGP+k, V_T2)
    a(f"v_add_u32 v{V_AGL}, {L_MEM + w*2560}, v{V_L16}")

V_M0 = 200
def mem0_stage(a, w):
    a(f"ds_write_b128 v{V_AGL}, {vr(V_M0)}")
    a(f"ds_write_b128 v{V_AGL}, {vr(V_M0+4)} offset:1024")
    a("s_mov_b32 exec_hi, 0")
    a(f"ds_write_b128 v{V_AGL}, {vr(V_M0+8)} offset:2048")
    a("s_mov_b64 exec, -1")

def mem0_load(a, w):
    for k in range(3):
        a(f"""v_add_u32 v{V_T}, {160*w + 64*k}, v{V_LANE}
v_and_b32 v{V_T2}, 7, v{V_T}
v_mul_u32_u24 v{V_T2}, 1280, v{V_T2}
v_lshrrev_b32 v{V_M0+12}, 5, v{V_T}
v_lshlrev_b32 v{V_M0+12}, 6, v{V_M0+12}
v_add_u32 v{V_T2}, v{V_T2}, v{V_M0+12}
v_bfe_u32 v{V_T}, v{V_T}, 3, 2
v_lshlrev_b32 v{V_T}, 3, v{V_T}
v_add_u32 v{V_T}, v{V_T}, v{V_T2}""")
        a(f"buffer_load_dwordx2 {vr(V_M0+4*k,2)}, v{V_T}, s[{S_M0}:{S_M0+3}], 0 offen")
        a(f"buffer_load_dwordx2 {vr(V_M0+4*k+2,2)}, v{V_T}, s[{S_M0}:{S_M0+3}], 0 offen offset:32")

def service_wave(a):
    w = 3; pfx = "RS3"
    wreg = WReg(0, 256, 0)
    mem0_load(a, w)
    a(f"s_lshl_b32 s{S_LB}, s{S_WAVE}, 15")
    if OPT('COOP', 1):
        coop_load(a, w, wreg)
    else:
        a(f"""s_mul_i32 s{S_COL}, s{S_H}, 384
s_mul_i32 s{S_T}, s{S_C}, 96
s_add_u32 s{S_COL}, s{S_COL}, s{S_T}""")
        units = [(S_WV, S_COL, t*32 + p*32*H*E*2) for p in range(20) for t in range(3)]
        load_w2(a, units, lambda u, T, k: wreg.pair((u % 3)*20 + u // 3, k), 1, H*E*2, 2, V_LANE, V_POLL, V_POLL+1, V_T, S_T, S_LB)
    common_setup(a, w)
    PQ = V_KXF; PV_ = V_KXF+2; R = V_KXF+6; SEL = V_KXF+8; ONES = V_KXF+12; AGZ = V_KXF+7; RSO2 = V_KXF+5
    a(f"""v_lshrrev_b32 v{V_AST}, 1, v{V_G}
v_lshlrev_b32 v{V_AST}, 8, v{V_AST}
v_lshlrev_b32 v{V_T}, 4, v{V_N}
v_add_u32 v{V_AST}, v{V_AST}, v{V_T}
v_and_b32 v{V_T}, 1, v{V_G}
v_lshlrev_b32 v{V_T}, 3, v{V_T}
v_add_u32 v{V_AST}, v{V_AST}, v{V_T}
v_lshlrev_b32 v{V_AST+1}, 4, v{V_N}
v_add_u32 v{V_AST+1}, v{V_AST+1}, v{V_T}
s_mul_i32 s{S_T2}, s{S_H}, 9216
s_mul_i32 s{S_T}, s{S_C}, 768
s_add_u32 s{S_T}, s{S_T}, s{S_T2}
v_add_u32 v{PQ}, s{S_T}, v{V_L16}
v_add_u32 v{PQ+1}, 3072, v{PQ}
v_add_u32 v{PV_}, 6144, v{PQ}
s_add_u32 s{S_T}, s{S_T}, 6144
v_add_u32 v{V_AST}, s{S_T}, v{V_AST}
v_add_u32 v{V_AST+1}, s{S_T}, v{V_AST+1}
v_add_u32 v{V_AST+1}, 512, v{V_AST+1}""")
    for r in (V_AST, V_AST+1, PV_, PQ, PQ+1): nearmap_v(a, r, V_T)
    oob_mask(a, PV_, 48); oob_mask(a, PQ+1, 48); oob_mask(a, PQ, 48); oob_mask(a, V_AST+1, 32)
    for k in range(3):
        a(f"v_add_u32 v{V_APO+k}, s{S_T2}, v{V_L16}")
        a(f"v_add_u32 v{V_APO+k}, {6144 + k*1024}, v{V_APO+k}")
        nearmap_v(a, V_APO+k, V_T)
    a(f"v_add_u32 v{V_APL}, {L_QKV + 6144}, v{V_L16}")
    rs_lane(a, R)
    a(f"""s_mul_i32 s{S_RSB}, s{S_C}, {5*32768}
s_add_u32 s{S_RSB}, s{S_RSB}, {nearmap(RS_LOG)}
s_and_b32 s{S_COL}, s{S_J}, 31""")
    blk_off(a, S_COL, S_RSP, S_T)
    loc_off(a, S_COL, 72, S_T)
    a(f"s_add_u32 s{S_COL}, s{S_COL}, 32")
    blk_off(a, S_COL, S_RED, S_T)
    loc_off(a, S_COL, 73, S_T)
    rs_local_lane(a, V_RSOL)
    a(f"""s_lshr_b32 s77, s{S_J}, 5
s_mul_i32 s77, s77, 81920
s_mul_i32 s{S_T}, s{S_C}, {5*4096}
s_add_u32 s77, s77, s{S_T}""")
    a(f"""s_lshr_b32 s{S_T}, s{S_J}, 5
s_mul_i32 s{S_T}, s{S_T}, 10240
s_add_u32 s{S_T}, s{S_T}, {AG_LOG}
s_and_b32 s{S_T2}, s{S_J}, 31
s_lshl_b32 s{S_T3}, s{S_T2}, 7
s_add_u32 s{S_T}, s{S_T}, s{S_T3}
v_lshrrev_b32 v{V_AGS}, 3, v{V_LANE}
v_lshlrev_b32 v{V_AGS}, 12, v{V_AGS}
v_and_b32 v{V_T}, 7, v{V_LANE}
v_lshlrev_b32 v{V_T}, 4, v{V_T}
v_add_u32 v{V_AGS}, v{V_AGS}, v{V_T}
v_add_u32 v{V_AGS}, s{S_T}, v{V_AGS}""")
    nearmap_v(a, V_AGS, V_T)
    a(f"v_mov_b32 v{AGZ}, v{V_AGS}")
    a(f"""v_bfe_u32 v{V_AGS}, v{V_LANE}, 3, 1
v_lshlrev_b32 v{V_AGS}, 12, v{V_AGS}
v_and_b32 v{V_T}, 7, v{V_LANE}
v_lshlrev_b32 v{V_T}, 4, v{V_T}
v_add_u32 v{V_AGS}, v{V_AGS}, v{V_T}
v_lshlrev_b32 v{V_T}, 3, v{V_G}
v_add_u32 v{V_AGS}, v{V_AGS}, v{V_T}
s_lshr_b32 s{S_T}, s{S_J}, 5
s_mul_i32 s{S_T}, s{S_T}, 10240
s_add_u32 s{S_T}, s{S_T}, {AG_LOG}
s_add_u32 s{S_T}, s{S_T}, s{S_T3}
v_add_u32 v{V_AGS}, s{S_T}, v{V_AGS}""")
    nearmap_v(a, V_AGS, V_T)
    oob_mask(a, V_AGS, 32)
    a(f"""v_mov_b32 v{RSO2}, s{S_RSP}
v_mov_b32 v{V_T}, s{S_RED}
v_cndmask_b32 v{RSO2}, v{RSO2}, v{V_T}, s[{S_H8}:{S_H8+1}]
v_lshlrev_b32 v{V_T}, 7, v{V_G}
v_add_u32 v{RSO2}, v{RSO2}, v{V_T}
v_and_b32 v{V_T}, 7, v{V_LANE}
v_lshlrev_b32 v{V_T}, 4, v{V_T}
v_add_u32 v{RSO2}, v{RSO2}, v{V_T}""")
    a(f"s_cmp_lt_u32 s{S_T2}, 16")
    a(f"s_cselect_b32 s{S_T}, 24, 16")
    a(f"v_mov_b32 v{V_T}, 0x80000000")
    a(f"v_cmp_gt_u32 vcc, s{S_T}, v{V_LANE}")
    a(f"v_cndmask_b32 v{AGZ}, v{V_T}, v{AGZ}, vcc")
    sel_setup(a, SEL)
    for k in range(4): a(f"v_mov_b32 v{ONES+k}, -1")
    a(f"v_mov_b32 v{ONES+4}, 1")
    read_polarity(a, pfx)
    a("s_barrier")
    mem0_stage(a, w)
    a("s_waitcnt vmcnt(0) lgkmcnt(0)")
    a("s_barrier")
    stamp(a, 0)
    pfx0 = pfx
    a(f"s_cmp_eq_u32 s{S_MODE}, 0")
    a(f"s_cbranch_scc1 {pfx0}S_B0")
    a(f"s_branch {pfx0}F_B0")
    for mode in (1, 0):
        CURMODE[0] = mode
        pfx = pfx0 + ("F" if mode else "S")
        service_loop(a, pfx, PQ, PV_, R, SEL, ONES, AGZ, RSO2)
    CURMODE[0] = None

def service_loop(a, pfx, PQ, PV_, R, SEL, ONES, AGZ, RSO2):
    a.label(f"{pfx}_LOOP")
    stamp(a, 0)
    ag_poll(a, pfx, 3)
    a.label(f"{pfx}_B0")
    a("s_waitcnt lgkmcnt(0)")
    a("s_barrier")
    mark(a, S_REF0)
    stamp(a, 1)
    SP = 140
    w8s = lambda t, K: ar((t*20 + 2*K)*4, 8)
    for K in range(10):
        a(f"ds_read_b128 {vr(V_RING+4*K)}, v{V_L16} offset:{L_MEM + K*1024}")
    for r in range(12): a(f"v_mov_b32 v{V_ACC+r}, 0")
    for K in range(10):
        a(f"s_waitcnt lgkmcnt({9-K})")
        for t in range(2):
            a(f"v_smfmac_f32_16x16x64_bf16 {vr(V_ACC+4*t)}, {vr(V_RING+4*K)}, {w8s(t,K)}, v{V_IDX}")
    P01 = pack_pair(V_ACC, V_ACC+4, SP)
    for K in range(10):
        a(f"v_smfmac_f32_16x16x64_bf16 {vr(V_ACC+8)}, {vr(V_RING+4*K)}, {w8s(2,K)}, v{V_IDX}")
        if K >= 2 and P01: a(P01.pop(0))
        if K >= 6 and P01: a(P01.pop(0))
    while P01: a(P01.pop(0))
    store_mode(a, [f"buffer_store_dwordx2 {vr(SP,2)}, v{V_AST}, s[{S_WS}:{S_WS+3}], s{S_CUR} offen SCX"])
    for r in range(4): a(f"v_mov_b32 v{SP+8+r}, v{V_ACC+8+r}")
    for x in pack_pair(V_ACC+8, SP+8, SP+4): a(x)
    store_mode(a, [f"buffer_store_dwordx2 {vr(SP+4,2)}, v{V_AST+1}, s[{S_WS}:{S_WS+3}], s{S_CUR} offen SCX"])
    stamp(a, 2)
    wait_mode(a, S_REF0, OPT('T_VF', 1300), OPT('T_V', 1500))
    loads = [f"buffer_load_dwordx4 {vr(V_POLL+4*k)}, v{V_APO+k}, s[{S_WS}:{S_WS+3}], s{S_CUR} offen sc1" for k in range(3)]
    if OPT('TWOB', 1):
        for x in loads: a(x)
        stamp(a, 3)
        a("s_barrier")
        stamp(a, 4)
        def stV():
            for k in range(3):
                a(f"ds_write_b128 v{V_APL}, {vr(V_POLL+4*k)} offset:{k*1024}")
        if OPT('SPEC', 0): poll_loop(a, f"{pfx}_VP", loads, 12, 93, pre_issued=True, spec=stV)
        else:
            poll_loop(a, f"{pfx}_VP", loads, 12, 93, pre_issued=True)
            stV()
        a("s_waitcnt lgkmcnt(0)")
        a("s_barrier")
        mark(a, 96)
        stamp(a, 5)
    else:
        poll_loop(a, f"{pfx}_VP", loads, 12, 93)
        for k in range(3):
            a(f"ds_write_b128 v{V_APL}, {vr(V_POLL+4*k)} offset:{k*1024}")
        a("s_waitcnt lgkmcnt(0)")
        stamp(a, 3)
        a("s_barrier")
        mark(a, 96)
        stamp(a, 4)
        stamp(a, 5)
    a(f"s_cmp_eq_u32 s{S_STEP}, 63")
    a(f"s_cbranch_scc1 {pfx}_DONE")
    store_mode(a, [f"buffer_store_dwordx4 {vr(ONES)}, v{r}, s[{S_WS}:{S_WS+3}], s{S_NN} offen SCX" for r in (PQ, PQ+1, PV_)])
    a(f"s_add_u32 s{S_T}, s{S_NN}, s{S_RSB}")
    a(f"s_mov_b64 exec, s[{S_M8}:{S_M8+1}]")
    for P in range(5):
        if P > 0: a(f"s_add_u32 s{S_T}, s{S_T}, 32768")
        a(f"buffer_store_dwordx4 {vr(ONES)}, v{R}, s[{S_WS}:{S_WS+3}], s{S_T} offen sc1")
    if CURMODE[0] and RSLOC():
        a(f"s_xor_b32 s74, s{S_NN}, 8192")
        for P in range(5):
            a(f"s_add_u32 s{S_T}, s77, {P*4096}")
            smap(a, S_T, S_T2)
            a(f"s_add_u32 s{S_T}, s{S_T}, s74")
            a(f"buffer_store_dwordx4 {vr(ONES)}, v{V_RSOL}, s[{S_WS}:{S_WS+3}], s{S_T} offen")
    a("s_mov_b64 exec, -1")
    store_mode(a, [f"buffer_store_dwordx4 {vr(ONES)}, v{AGZ}, s[{S_WS}:{S_WS+3}], s{S_NN} offen SCX"])
    stamp(a, 6)
    wait_until(a, 96, OPT('T_RS', 1150))
    if OPT('RED2', 1):
        reduce2(a, pfx, SEL, 32, RSO2, V_AGS, 64, 160)
    else:
        raise SystemExit("RED2=0 no longer supported")
    a(f"s_add_u32 s{S_STEP}, s{S_STEP}, 1")
    a(f"s_cmp_ge_u32 s{S_STEP}, 64")
    a(f"s_cbranch_scc1 {pfx}_DONE")
    rotate_slots(a)
    stamp_acc(a)
    mark(a, S_REF2)
    a(f"s_branch {pfx}_LOOP")
    a.label(f"{pfx}_DONE")
    a("s_waitcnt vmcnt(0)")
    a("s_barrier")
    stamp_out(a, 3)
    a("s_endpgm")

def rec_entry(a):
    a(f"""s_load_dwordx4 s[64:67], s[0:1], {KA['wq']}
s_load_dwordx4 s[68:71], s[0:1], {KA['wv']}
s_load_dwordx2 s[72:73], s[0:1], {KA['mem0']}
s_waitcnt lgkmcnt(0)""")
    srd(a, S_WQ, 64, D*H*E*2); srd(a, S_WK, 66, D*H*E*2); srd(a, S_WV, 68, D*H*E*2); srd(a, S_WO, 70, D*H*E*2)
    srd(a, S_M0, 72, M*D*2)
    a(f"s_lshr_b32 s{S_H}, s{S_J}, 2\ns_and_b32 s{S_C}, s{S_J}, 3")

def probe(a, s_k, s_xcc, lbl, s_dbg):
    a(f"""s_mov_b64 exec, 1
v_mov_b32 v10, -1
s_lshl_b32 s{S_T}, s{s_k}, 21
s_add_u32 s{S_T}, s{S_T}, {RING + PROBE_OFF}
v_mov_b32 v11, s{S_T}
v_add_u32 v13, 8192, v11
s_mov_b32 s{S_T2}, 0
s_mov_b32 s84, -1
s_mov_b32 s85, -1""")
    a.label(f"{lbl}_R")
    a(f"""buffer_store_dword v10, v11, s[{S_WS}:{S_WS+3}], 0 offen sc1
buffer_store_dword v10, v13, s[{S_WS}:{S_WS+3}], 0 offen sc1
s_waitcnt vmcnt(0)
s_sleep 6""")
    for hsel in range(2):
        a(f"""s_memtime s[80:81]
s_waitcnt lgkmcnt(0)
buffer_load_dword v12, v{11 if hsel == 0 else 13}, s[{S_WS}:{S_WS+3}], 0 offen sc1
s_waitcnt vmcnt(0)
s_memtime s[82:83]
s_waitcnt lgkmcnt(0)
s_sub_u32 s{86+hsel}, s82, s80""")
    a(f"""s_min_u32 s84, s84, s86
s_min_u32 s85, s85, s87
s_add_u32 s{S_T2}, s{S_T2}, 1
s_cmp_lt_u32 s{S_T2}, {OPT('PROBE_N', 7)}
s_cbranch_scc1 {lbl}_R
s_cmp_lt_u32 s85, s84
s_cselect_b32 s{S_T3}, 1, 0
s_lshr_b32 s{S_T}, s{s_xcc}, 2
s_xor_b32 s{S_T3}, s{S_T3}, s{S_T}
s_and_b32 s{S_T3}, s{S_T3}, 1
s_or_b32 s{S_T3}, s{S_T3}, 2
s_lshl_b32 s{S_T}, s{s_k}, 1
s_lshl_b32 s{S_T3}, s{S_T3}, s{S_T}
v_mov_b32 v10, s{S_T3}
v_mov_b32 v11, {DB_POL}
global_atomic_or v11, v10, s[{s_dbg}:{s_dbg+1}] sc1
s_waitcnt vmcnt(0)
s_mov_b64 exec, -1""")

def rec_dispatch(a, flags=False):
    a(f"""s_cmp_eq_u32 s{S_WAVE}, 0
s_cbranch_scc1 RK_W0
s_cmp_eq_u32 s{S_WAVE}, 1
s_cbranch_scc1 RK_W1
s_cmp_eq_u32 s{S_WAVE}, 2
s_cbranch_scc1 RK_W2
s_branch RK_W3""")
    for w in range(3):
        a.label(f"RK_W{w}")
        main_wave(a, w, flags)
    a.label("RK_W3")
    service_wave(a)

def gen_rec_kernel():
    a = Asm(); name = "rec_kernel"
    kernel_header(a, name)
    if OPT('STAMP', 0): a("s_memtime s[100:101]")
    a(f"""s_cmp_ge_u32 s2, 256
s_cbranch_scc1 RK_END
s_load_dwordx2 s[74:75], s[0:1], {KA['ws']}
s_load_dwordx2 s[76:77], s[0:1], {KA['dbg']}
s_getreg_b32 s78, hwreg(HW_REG_XCC_ID)
s_and_b32 s78, s78, 15
s_waitcnt lgkmcnt(0)""")
    srd(a, S_WS, 74, WS_SIZE)
    lane_setup(a, V_LANE, V_G, V_N, S_WAVE)
    a(f"""s_cmp_lg_u32 s{S_WAVE}, 0
s_cbranch_scc1 RK_NORANK
v_mov_b32 v10, 1
s_lshl_b32 s79, s78, 2
v_mov_b32 v11, s79
s_mov_b64 exec, 1
global_atomic_add v12, v11, v10, s[76:77] sc0 sc1
s_waitcnt vmcnt(0)
v_mov_b32 v11, 0
ds_write_b32 v11, v12
s_waitcnt lgkmcnt(0)
s_mov_b64 exec, -1""")
    a.label("RK_NORANK")
    a(f"""s_barrier
v_mov_b32 v11, 0
ds_read_b32 v12, v11
s_waitcnt lgkmcnt(0)
v_readfirstlane_b32 s79, v12
s_barrier
s_cmp_lt_u32 s78, 4
s_cbranch_scc1 RK_REC
s_cmp_lg_u32 s78, 4
s_cbranch_scc1 RK_END
s_cmp_ge_u32 s79, 4
s_cbranch_scc1 RK_END
s_cmp_lg_u32 s{S_WAVE}, 0
s_cbranch_scc1 RK_END""")
    probe(a, 79, 78, "RK_PR", 76)
    a("s_endpgm")
    a.label("RK_REC")
    a(f"""s_cmp_ge_u32 s79, 32
s_cbranch_scc1 RK_END
s_lshl_b32 s{S_J}, s78, 5
s_add_u32 s{S_J}, s{S_J}, s79""")
    rec_entry(a)
    rec_dispatch(a)
    a.label("RK_END")
    a("s_endpgm")
    return name, a.finalize(), kernel_desc(name, 512, 102, 256)

def read_polarity(a, pfx):
    a(f"s_load_dwordx2 s[96:97], s[0:1], {KA['dbg']}")
    a(f"v_and_b32 v{V_T2}, 15, v{V_LANE}")
    a(f"v_lshlrev_b32 v{V_T2}, 2, v{V_T2}")
    a(f"s_mov_b32 s{S_RETRY}, 0")
    a("s_waitcnt lgkmcnt(0)")
    a.label(f"{pfx}_MD")
    a(f"global_load_dword v{V_T}, v{V_T2}, s[96:97] sc1")
    a("s_waitcnt vmcnt(0)")
    a(f"s_mov_b32 s{S_T}, 0")
    a(f"s_mov_b32 s{S_MODE}, 1")
    for x in range(8):
        a(f"v_readlane_b32 s{S_T2}, v{V_T}, {x}")
        a(f"s_add_u32 s{S_T}, s{S_T}, s{S_T2}")
        a(f"s_cmp_eq_u32 s{S_T2}, 32")
        a(f"s_cselect_b32 s{S_MODE}, s{S_MODE}, 0")
    a(f"v_readlane_b32 s{S_T2}, v{V_T}, {DB_INIT//4}")
    a(f"v_readlane_b32 s{S_T3}, v{V_T}, {DB_POL//4}")
    a(f"s_cmp_ge_u32 s{S_T}, 256")
    a(f"s_cbranch_scc0 {pfx}_MDN")
    if INITWAIT[0]:
        a(f"s_cmp_ge_u32 s{S_T2}, 80")
        a(f"s_cbranch_scc0 {pfx}_MDN")
    a(f"s_and_b32 s{S_T}, s{S_T3}, 0xaa")
    a(f"s_cmp_eq_u32 s{S_T}, 0xaa")
    a(f"s_cbranch_scc1 {pfx}_POLOK")
    a.label(f"{pfx}_MDN")
    a(f"""s_sleep 4
s_add_u32 s{S_RETRY}, s{S_RETRY}, 1
s_cmp_lt_u32 s{S_RETRY}, 0x200000
s_cbranch_scc1 {pfx}_MD
s_mov_b32 s{S_MODE}, 0""")
    a.label(f"{pfx}_POLOK")
    if OPT('FORCESLOW', 0): a(f"s_mov_b32 s{S_MODE}, 0")
    a(f"""s_and_b32 s{S_T}, s{S_T3}, 0x55
s_xor_b32 s{S_T}, s{S_T}, 0x44
s_bcnt1_i32_b32 s{S_T2}, s{S_T}
s_cmp_ge_u32 s{S_T2}, 3
s_cselect_b32 s{S_T}, 0x55, s{S_T}
s_cmp_le_u32 s{S_T2}, 1
s_cselect_b32 s{S_T}, 0, s{S_T}
s_xor_b32 s{S_T3}, s{S_T}, 0x44""")
    if OPT('FLIPPOL', 0): a(f"s_xor_b32 s{S_T3}, s{S_T3}, 0x55")
    for k, s in enumerate((S_CUR, S_N, S_NN, S_P)):
        a(f"""s_bfe_u32 s{S_T}, s{S_T3}, {(1<<16) | (2*k)}
s_lshl_b32 s{S_T}, s{S_T}, 13
s_add_u32 s{s}, s{S_T}, {RING + k*RING_SLOT}""")
```

```python
from gen_common import *
import struct, os
OPT=lambda k,d: type(d)(os.environ.get(k,d))
def f2u(f): return struct.unpack('<I', struct.pack('<f', f))[0]

S_WS=4; S_WQ=8; S_WK=12; S_WV=16; S_WO=20
S_WAVE=24; S_H=25; S_C=26; S_J=27; S_STEP=28
S_P=29; S_CUR=30; S_N=31; S_NN=32
S_HI32=20
S_MQ=16
S_M8=34; S_H8=38
S_T=40; S_T2=41; S_T3=42; S_RETRY=43
S_KVG=44; S_UXG=45; S_UYG=46; S_KMG=47; S_RSB=48; S_KVL=49; S_KVR=50; S_RED=51; S_RSP=52; S_FLG=53
S_LB=54
S_COL=56
S_SCALE=60; S_MAXR=61
S_TS=62
S_M0=88
S_MODE=57
S_REF0=98
S_REF2=36
S_NOW=58
L_MEM=0; L_QKV=10240; L_KV=20480; KVB=24576
LDS_REC=131072
V_LANE=1; V_G=2; V_N=3; V_T=4; V_T2=5; V_L16=6
V_AGO=7; V_AGL=10; V_MRD=11; V_AGP=23
V_RSL=7
V_AST=12; V_KMS=15; V_APO=16; V_APL=19
V_RQ=20; V_IDX=21; V_RV=22; V_RSO=28; V_L4=29; V_AGS=30; V_ZERO=31
V_RSP=80
V_NINF=248; V_KVA=249
V_POLL=32; V_RING=48; V_ACC=88; V_PK=252; V_KXF=100; V_QF=148; V_KF=172; V_VF=196; V_S=220; V_UXF=232
V_Y=48; V_PU=64; V_UA=48; V_YF=220; V_SM=148
NT = [4, 4, 2]; T0 = [0, 4, 8]; P0 = [0, 2, 4]
KVX = L_KV ^ (L_KV+KVB)

def poll_check(a, regs, vt):
    r = list(regs)
    a(f"v_max3_u32 v{vt}, v{r[0]}, v{r[1]}, v{r[2]}")
    i = 3
    while i < len(r):
        if i + 1 < len(r):
            a(f"v_max3_u32 v{vt}, v{vt}, v{r[i]}, v{r[i+1]}"); i += 2
        else:
            a(f"v_max_u32 v{vt}, v{vt}, v{r[i]}"); i += 1
    a(f"v_cmp_eq_u32 vcc, -1, v{vt}")

def sleep(a, n):
    while n > 0:
        k = min(n, 127); a(f"s_sleep {k}"); n -= k

def mark(a, reg):
    a(f"s_memtime s[{reg}:{reg+1}]")

def wait_until(a, ref, delta):
    if delta <= 0: return
    a.uid += 1
    L = f"WU_{a.uid}"
    a.label(L)
    a(f"""s_memtime s[{S_NOW}:{S_NOW+1}]
s_waitcnt lgkmcnt(0)
s_sub_u32 s{S_NOW}, s{S_NOW}, s{ref}
s_cmp_ge_u32 s{S_NOW}, {delta}
s_cbranch_scc1 {L}_D
s_sub_u32 s{S_NOW}, {delta}, s{S_NOW}
s_cmp_lt_u32 s{S_NOW}, 96
s_cbranch_scc1 {L}
s_sleep 1
s_branch {L}""")
    a.label(f"{L}_D")

def stamp(a, idx):
    if OPT('STAMP', 0):
        a(f"s_memtime s[{S_TS+2*idx}:{S_TS+2*idx+1}]")

def racc(a, k):
    if OPT('STAMP', 0): a(f"s_add_u32 s{k}, s{k}, s{S_RETRY}")

def nearmap_v(a, v, vt):
    a(f"""v_lshrrev_b32 v{vt}, 13, v{v}
v_lshlrev_b32 v{vt}, 14, v{vt}
v_and_b32 v{v}, 0x1fff, v{v}
v_or_b32 v{v}, v{v}, v{vt}""")

def oob_mask(a, v, nlanes):
    a(f"""v_mov_b32 v{V_T}, 0x80000000
v_cmp_gt_u32 vcc, {nlanes}, v{V_LANE}
v_cndmask_b32 v{v}, v{V_T}, v{v}, vcc""")

V_AGB=48
def poll_loop(a, lbl, loads, nreg, acc, pre_issued=False, base=None, spec=None):
    a(f"s_mov_b32 s{S_RETRY}, 0")
    if pre_issued:
        a(f"s_branch {lbl}_W")
    a.label(lbl)
    for x in loads: a(x)
    if pre_issued: a.label(f"{lbl}_W")
    a("s_waitcnt vmcnt(0)")
    if spec: spec()
    b0 = V_POLL if base is None else base
    poll_check(a, range(b0, b0+nreg), V_T)
    a(f"""s_cbranch_vccz {lbl}_OK
s_add_u32 s{S_RETRY}, s{S_RETRY}, 1
s_cmp_lt_u32 s{S_RETRY}, s{S_MAXR}
s_cbranch_scc1 {lbl}
s_mov_b32 s{S_MAXR}, 0""")
    a.label(f"{lbl}_OK")
    racc(a, acc)

CURMODE = [None]
def RSLOC(): return OPT('RSLOC', 0) and not OPT('STAMP', 0)
INITWAIT = [False]
def store_mode(a, lines):
    if CURMODE[0] is not None:
        for x in lines: a(x.replace(' SCX', '' if CURMODE[0] else ' sc1'))
        return
    if OPT('AFAST', 1) == 0:
        for x in lines: a(x.replace(' SCX', ' sc1'))
        return
    a.uid += 1
    L = f"SM_{a.uid}"
    a(f"s_cmp_eq_u32 s{S_MODE}, 0")
    a(f"s_cbranch_scc1 {L}_S")
    for x in lines: a(x.replace(' SCX', ''))
    a(f"s_branch {L}_E")
    a.label(f"{L}_S")
    for x in lines: a(x.replace(' SCX', ' sc1'))
    a.label(f"{L}_E")

def wait_mode(a, ref, fast, slow):
    if CURMODE[0] is not None:
        wait_until(a, ref, fast if CURMODE[0] else slow); return
    if OPT('AFAST', 1) == 0:
        wait_until(a, ref, slow); return
    a.uid += 1
    L = f"WM_{a.uid}"
    a(f"s_cmp_eq_u32 s{S_MODE}, 0")
    a(f"s_cbranch_scc1 {L}_S")
    wait_until(a, ref, fast)
    a(f"s_branch {L}_E")
    a.label(f"{L}_S")
    wait_until(a, ref, slow)
    a.label(f"{L}_E")

def poll2(a, lbl, mk_loads, nreg, baseA, baseB, acc, stage, gap=2):
    LA = mk_loads(baseA); LB = mk_loads(baseB); n = len(LA)
    a(f"s_mov_b32 s{S_RETRY}, 0")
    for x in LA: a(x)
    if gap: a(f"s_sleep {gap}")
    a.label(lbl)
    for x in LB: a(x)
    a(f"s_waitcnt vmcnt({n})")
    poll_check(a, range(baseA, baseA+nreg), V_T)
    a(f"s_cbranch_vccz {lbl}_GA")
    for x in LA: a(x)
    a(f"s_waitcnt vmcnt({n})")
    poll_check(a, range(baseB, baseB+nreg), V_T)
    a(f"""s_cbranch_vccz {lbl}_GB
s_add_u32 s{S_RETRY}, s{S_RETRY}, 1
s_cmp_lt_u32 s{S_RETRY}, s{S_MAXR}
s_cbranch_scc1 {lbl}
s_mov_b32 s{S_MAXR}, 0""")
    a.label(f"{lbl}_GB")
    racc(a, acc)
    stage(baseB)
    a(f"s_branch {lbl}_E")
    a.label(f"{lbl}_GA")
    racc(a, acc)
    stage(baseA)
    a.label(f"{lbl}_E")

def ag_poll4(a, pfx, w):
    if w >= 2: wait_mode(a, S_REF2, OPT('T_AGF', 0), OPT('T_AG', 650))
    else: wait_until(a, 96, OPT('T_D01', 2900))
    loads = [f"buffer_load_dwordx4 {vr(V_AGB+4*k)}, v{V_AGP+k}, s[{S_WS}:{S_WS+3}], s{S_P} offen sc1" for k in range(3)]
    poll_loop(a, f"{pfx}_AGP", loads, 12, 92, base=V_AGB)
    a(f"ds_write_b128 v{V_AGL}, {vr(V_AGB)}")
    a(f"ds_write_b128 v{V_AGL}, {vr(V_AGB+4)} offset:1024")
    a("s_mov_b32 exec_hi, 0")
    a(f"ds_write_b128 v{V_AGL}, {vr(V_AGB+8)} offset:2048")
    a("s_mov_b64 exec, -1")

def ag_poll(a, pfx, w):
    if OPT('D4', 0): return ag_poll4(a, pfx, w)
    wait_mode(a, S_REF2, OPT('T_AGF', 0), OPT('T_AG', 650))
    base = (w-2)*5
    def mk(b): return [f"buffer_load_dwordx4 {vr(b+4*k)}, v{V_AGP+k}, s[{S_WS}:{S_WS+3}], s{S_P} offen sc1" for k in range(5)]
    def stage(b):
        for k in range(5):
            a(f"ds_write_b128 v{V_L16}, {vr(b+4*k)} offset:{L_MEM + (base+k)*1024}")
    if CURMODE[0] and OPT('POLL2', 0):
        poll2(a, f"{pfx}_AGP", mk, 20, 172, 196, 92, stage, gap=OPT('GAPD', 2))
    else:
        if OPT('SPEC', 0): poll_loop(a, f"{pfx}_AGP", mk(V_AGB), 20, 92, base=V_AGB, spec=lambda: stage(V_AGB))
        else:
            poll_loop(a, f"{pfx}_AGP", mk(V_AGB), 20, 92, base=V_AGB)
            stage(V_AGB)

def reduce_blocks(a, pfx, nb, SEL, base_reg, s_poll, v_ags, acc, apk, s_loc0=None, s_loc=None, sqbase=None):
    loads = []
    LOCAL = CURMODE[0] and RSLOC()
    if LOCAL:
        a(f"s_lshr_b32 s{S_NOW}, s{S_J}, 5")
        a(f"s_xor_b32 s{S_NOW+1}, s{S_CUR}, 8192")
        for b in range(nb):
            a(f"s_add_u32 s{s_loc[b]}, s{s_loc0[b]}, s{S_NOW+1}")
        for b in range(nb):
            for q in range(4):
                sq = sqbase + 4*b + q
                a(f"s_add_u32 s{sq}, s{s_poll[b]}, {q*1024}")
                a(f"s_cmp_eq_u32 s{S_NOW}, {q}")
                a(f"s_cselect_b32 s{sq}, s{s_loc[b]}, s{sq}")
                loads.append(f"buffer_load_dwordx4 {vr(base_reg+16*b+4*q)}, v{V_L16}, s[{S_WS}:{S_WS+3}], s{sq} offen sc1")
    else:
        for b in range(nb):
            for q in range(4):
                loads.append(f"buffer_load_dwordx4 {vr(base_reg+16*b+4*q)}, v{V_L16}, s[{S_WS}:{S_WS+3}], s{s_poll[b]} offen offset:{q*1024} sc1")
    poll_loop(a, f"{pfx}_RP", loads, 16*nb, 94, base=base_reg)
    stamp(a, 7)
    for q in range(4):
        for b in range(nb):
            c = "0" if q == 0 else vr(acc+8*b)
            a(f"v_mfma_f32_16x16x32_bf16 {vr(acc+8*b)}, {vr(SEL)}, {vr(base_reg+16*b+4*q)}, {c}")
    for b in range(nb):
        for r in range(4):
            a(f"v_add_f32_dpp v{acc+8*b+4+r}, v{acc+8*b+r}, v{acc+8*b+r} row_ror:8 row_mask:0xf bank_mask:0xf")
    if nb == 2:
        for r in range(4): a(f"v_cndmask_b32 v{acc+4+r}, v{acc+4+r}, v{acc+12+r}, s[{S_H8}:{S_H8+1}]")
    a(f"v_cvt_pk_bf16_f32 v{apk}, v{acc+4}, v{acc+5}")
    a(f"v_cvt_pk_bf16_f32 v{apk+1}, v{acc+6}, v{acc+7}")
    a(f"v_mov_b32 v{apk+2}, v{apk}\nv_mov_b32 v{apk+3}, v{apk+1}")
    a(f"v_mov_b32 v{apk+4}, v{apk}\nv_mov_b32 v{apk+5}, v{apk+1}")
    a(f"v_permlane16_swap_b32 v{apk+4}, v{apk+2}")
    a(f"v_permlane16_swap_b32 v{apk+5}, v{apk+3}")
    store_mode(a, [f"buffer_store_dwordx4 {vr(apk)}, v{v_ags}, s[{S_WS}:{S_WS+3}], s{S_CUR} offen SCX"])

def reduce2(a, pfx, SEL, base_reg, v_off, v_ags, acc, apk):
    loads = [f"buffer_load_dwordx4 {vr(base_reg+4*q)}, v{v_off}, s[{S_WS}:{S_WS+3}], s{S_CUR} offen offset:{q*512} sc1" for q in range(8)]
    poll_loop(a, f"{pfx}_RP", loads, 32, 94, base=base_reg)
    stamp(a, 7)
    for q in range(8):
        c = "0" if q == 0 else vr(acc)
        a(f"v_mfma_f32_16x16x32_bf16 {vr(acc)}, {vr(SEL)}, {vr(base_reg+4*q)}, {c}")
    a(f"v_cvt_pk_bf16_f32 v{apk}, v{acc}, v{acc+1}")
    a(f"v_cvt_pk_bf16_f32 v{apk+1}, v{acc+2}, v{acc+3}")
    store_mode(a, [f"buffer_store_dwordx2 {vr(apk,2)}, v{v_ags}, s[{S_WS}:{S_WS+3}], s{S_CUR} offen SCX"])

def sel_setup(a, SEL):
    for k in range(4):
        a(f"""v_mov_b32 v{SEL+k}, 0
v_mov_b32 v{V_T}, 0x3f80
v_cmp_eq_u32 vcc, {2*k}, v{V_N}
v_cndmask_b32 v{SEL+k}, v{SEL+k}, v{V_T}, vcc
v_mov_b32 v{V_T}, 0x3f800000
v_cmp_eq_u32 vcc, {2*k+1}, v{V_N}
v_cndmask_b32 v{SEL+k}, v{SEL+k}, v{V_T}, vcc""")

def smap(a, s, t):
    a(f"""s_lshr_b32 s{t}, s{s}, 13
s_lshl_b32 s{t}, s{t}, 14
s_and_b32 s{s}, s{s}, 0x1fff
s_or_b32 s{s}, s{s}, s{t}
s_add_u32 s{s}, s{s}, {nearmap(RS_LOG)}""")

def loc_off(a, s_cb, s_out, s_tmp):
    a(f"""s_lshr_b32 s{s_out}, s{S_J}, 5
s_mul_i32 s{s_out}, s{s_out}, 81920
s_lshl_b32 s{s_tmp}, s{s_cb}, 10
s_add_u32 s{s_out}, s{s_out}, s{s_tmp}""")
    smap(a, s_out, s_tmp)

def rs_local_lane(a, v):
    a(f"""v_lshlrev_b32 v{v}, 10, v{V_G}
v_and_b32 v{V_T}, 7, v{V_LANE}
v_lshlrev_b32 v{V_T}, 4, v{V_T}
v_add_u32 v{v}, v{v}, v{V_T}
s_and_b32 s{S_T}, s{S_H}, 7
s_lshl_b32 s{S_T}, s{S_T}, 7
v_add_u32 v{v}, s{S_T}, v{v}""")

def blk_off(a, s_cb, s_out, s_tmp):
    a(f"""s_lshr_b32 s{s_out}, s{s_cb}, 1
s_lshl_b32 s{s_out}, s{s_out}, 14
s_and_b32 s{s_tmp}, s{s_cb}, 1
s_lshl_b32 s{s_tmp}, s{s_tmp}, 12
s_add_u32 s{s_out}, s{s_out}, s{s_tmp}
s_add_u32 s{s_out}, s{s_out}, {nearmap(RS_LOG)}""")

def rotate_slots(a):
    a(f"""s_mov_b32 s{S_T}, s{S_P}
s_mov_b32 s{S_P}, s{S_CUR}
s_mov_b32 s{S_CUR}, s{S_N}
s_mov_b32 s{S_N}, s{S_NN}
s_mov_b32 s{S_NN}, s{S_T}""")

def proj_stage(a, ntile, w8):
    for K in range(10):
        a(f"ds_read_b128 {vr(V_RING+4*K)}, v{V_L16} offset:{L_MEM + K*1024}")
    for t in range(ntile):
        for r in range(4): a(f"v_mov_b32 v{V_ACC+4*t+r}, 0")
    for K in range(10):
        a(f"s_waitcnt lgkmcnt({9-K})")
        for t in range(ntile):
            a(f"v_smfmac_f32_16x16x64_bf16 {vr(V_ACC+4*t)}, {vr(V_RING+4*K)}, {w8(t,K)}, v{V_IDX}")

def pack_pair(x, y, pk):
    L = [f"v_permlane32_swap_b32 v{x+r}, v{y+r}" for r in range(4)]
    L += [f"v_add_f32 v{x+r}, v{x+r}, v{y+r}" for r in range(4)]
    L += [f"v_cvt_pk_bf16_f32 v{pk}, v{x}, v{x+1}", f"v_cvt_pk_bf16_f32 v{pk+1}, v{x+2}, v{x+3}"]
    return L

def ux_load(a, w, flags, pfx):
    nt = NT[w]
    if flags:
        a.uid += 1
        a(f"s_add_u32 s{S_UXT}, s{S_UXT}, 1")
        a(f"s_min_u32 s{S_T3}, s{S_UXT}, 64")
        wait_words(a, f"{pfx}_WUX{a.uid}", S_WS, V_UXA, V_T, S_T3, S_UXC, 1, S_T2, 23)
    for t in range(nt):
        a(f"buffer_load_dwordx4 {vr(V_UXF+4*t)}, v{V_L16}, s[{S_WS}:{S_WS+3}], s{S_UXG} offen offset:{t*1024} sc1")
    a(f"s_add_u32 s{S_UXG}, s{S_UXG}, {32*40*1024}")

def idle_phase(a, w, woq):
    if OPT('UXRD', 0):
        a(f"v_add_u32 v{V_T}, s{S_KVR}, v{V_L16}")
        for f in range(12):
            a(f"ds_read_b128 {vr(V_KXF+4*f)}, v{V_T} offset:{f*1024}")
        a("s_waitcnt lgkmcnt(0)")
        a(f"s_xor_b32 s{S_KVR}, s{S_KVR}, {KVX}")
        return
    nt = NT[w]
    a(f"v_add_u32 v{V_T}, s{S_KVR}, v{V_L16}")
    for f in range(12):
        a(f"ds_read_b128 {vr(V_QF+4*f)}, v{V_T} offset:{12288 + f*1024}")
        if f == 7: a("s_waitcnt lgkmcnt(4)")
    a("s_waitcnt lgkmcnt(0)")
    for f in range(12):
        a(f"ds_read_b128 {vr(V_KXF+4*f)}, v{V_T} offset:{f*1024}")
    for p in range(6):
        for t in range(nt):
            for tt in range(2):
                d = V_UA + 8*t + 4*tt
                c = "0" if p == 0 else vr(d)
                a(f"v_mfma_f32_16x16x32_bf16 {vr(d)}, {vr(V_QF+4*(tt*6+p))}, {woq(t,p)}, {c}")
    for t in range(nt):
        for k in range(4):
            tt = k >> 1
            d = V_UA + 8*t + 4*tt + 2*(k & 1)
            a(f"v_cvt_pk_bf16_f32 v{V_UXF+4*t+k}, v{d}, v{d+1}")
        a(f"s_add_u32 s{S_T}, s{S_UXG}, {t*1024}")
        if OPT('UXST', 0): a(f"buffer_store_dwordx4 {vr(V_UXF+4*t)}, v{V_L16}, s[{S_WS}:{S_WS+3}], s{S_T} offen sc1")
    a(f"s_add_u32 s{S_UXG}, s{S_UXG}, {32*40*1024}")
    a("s_waitcnt lgkmcnt(0)")
    a(f"s_xor_b32 s{S_KVR}, s{S_KVR}, {KVX}")

S_UXT=88; S_UXC=89; V_UXA=11
S_KVT=33
S_RLB=18
S_RL0=19; S_RL1=95
AP6 = [16, 17, 18, 19, 7, 8]
V_RSOL=9
S_KVC=21
def kv_dma(a, flags=False, pfx='', w=0):
    if w < 2:
        if flags:
            a.uid += 1
            a(f"s_add_u32 s{S_KVT}, s{S_KVT}, 2")
            a(f"s_min_u32 s{S_T3}, s{S_KVT}, 128")
            wait_words(a, f"{pfx}_WKV{a.uid}", S_WS, V_KVA, V_T, S_T3, 22, 2 if OPT('UXRD', 0) else 4, S_T2, 23)
        if OPT('UXRD', 0):
            for (k0, n) in ((0, 4), (4, 2)):
                a(f"s_add_u32 m0, s{S_KVL}, {w*6144 + k0*1024}")
                a(f"s_add_u32 s{S_T}, s{S_KVG}, {k0*1024}")
                for j in range(n):
                    a(f"buffer_load_dwordx4 v{V_L16}, s[{S_WS}:{S_WS+3}], s{S_T} offen offset:{j*1024} sc1 lds")
        else:
            for k in range(3):
                a(f"s_add_u32 m0, s{S_KVL}, {w*12288 + k*4096}")
                a(f"s_add_u32 s{S_T}, s{S_KVG}, {k*4096}")
                for j in range(4):
                    a(f"buffer_load_dwordx4 v{V_L16}, s[{S_WS}:{S_WS+3}], s{S_T} offen offset:{j*1024} sc1 lds")
        a(f"s_add_u32 s{S_KVG}, s{S_KVG}, {32*12288}")
    a(f"s_xor_b32 s{S_KVL}, s{S_KVL}, {KVX}")

def kv_dma_svc(a, pfx):
    a.uid += 1
    a(f"s_add_u32 s{S_KVT}, s{S_KVT}, 2")
    a(f"s_min_u32 s{S_T3}, s{S_KVT}, 128")
    wait_words(a, f"{pfx}_WKS{a.uid}", S_WS, V_KVA, V_T, S_T3, 22, 4, S_T2, 23)
    for m in range(2):
        for k in range(3):
            a(f"s_add_u32 m0, s{S_KVL}, {m*12288 + k*4096}")
            a(f"s_add_u32 s{S_T}, s{S_KVG}, {m*(VX-KX) + k*4096}")
            for j in range(4):
                a(f"buffer_load_dwordx4 v{V_L16}, s[{S_WS}:{S_WS+3}], s{S_T} offen offset:{j*1024} sc1 lds")
    a(f"s_add_u32 s{S_KVG}, s{S_KVG}, {32*12288}")
    a(f"s_xor_b32 s{S_KVL}, s{S_KVL}, {KVX}")

def softmax_lists():
    X = V_SM; MX = V_SM+6; TM = V_SM+7; RS_ = V_SM+8; PT = V_SM+12; PM = V_SM+10; T2 = V_SM+16
    L = []
    for r in range(4): L.append(f"v_cndmask_b32 v{X+r}, v{V_S+4+r}, v{V_S+8+r}, s[{S_H8}:{S_H8+1}]")
    L.append(f"v_cndmask_b32 v{X+4}, v{V_S}, v{V_S+2}, s[{S_H8}:{S_H8+1}]")
    L.append(f"v_cndmask_b32 v{X+5}, v{V_S+1}, v{V_S+3}, s[{S_H8}:{S_H8+1}]")
    L.append(f"v_max3_f32 v{MX}, v{X}, v{X+1}, v{X+2}")
    L.append(f"v_max3_f32 v{TM}, v{X+3}, v{X+4}, v{X+5}")
    L.append(f"v_max_f32 v{MX}, v{MX}, v{TM}")
    L.append(f"v_max_f32_dpp v{MX}, v{MX}, v{MX} row_ror:8 row_mask:0xf bank_mask:0xf")
    L += [f"v_mov_b32 v{TM}, v{MX}", f"v_permlane16_swap_b32 v{MX}, v{TM}", f"v_max_f32 v{MX}, v{MX}, v{TM}"]
    L += [f"v_mov_b32 v{TM}, v{MX}", f"v_permlane32_swap_b32 v{MX}, v{TM}", f"v_max_f32 v{MX}, v{MX}, v{TM}"]
    L.append(f"v_mul_f32 v{MX}, s{S_SCALE}, v{MX}")
    for j in range(6): L.append(f"v_fma_f32 v{X+j}, v{X+j}, s{S_SCALE}, -v{MX}")
    for j in range(6): L.append(f"v_exp_f32 v{X+j}, v{X+j}")
    L.append(f"v_cvt_pk_bf16_f32 v{PT}, v{X}, v{X+1}")
    L.append(f"v_cvt_pk_bf16_f32 v{PT+1}, v{X+2}, v{X+3}")
    L.append(f"v_cvt_pk_bf16_f32 v{PM}, v{X+4}, v{X+5}")
    L.append(f"v_mov_b32_dpp v{PT+2}, v{PT} row_ror:8 row_mask:0xf bank_mask:0xf")
    L.append(f"v_mov_b32_dpp v{PT+3}, v{PT+1} row_ror:8 row_mask:0xf bank_mask:0xf")
    L.append(f"v_mov_b32_dpp v{PM+1}, v{PM} row_ror:8 row_mask:0xf bank_mask:0xf")
    M = [f"v_cndmask_b32 v{X+4}, v{X+4}, v{V_ZERO}, s[{S_HI32}:{S_HI32+1}]",
         f"v_cndmask_b32 v{X+5}, v{X+5}, v{V_ZERO}, s[{S_HI32}:{S_HI32+1}]",
         f"v_add_f32 v{RS_}, v{X}, v{X+1}", f"v_add_f32 v{TM}, v{X+2}, v{X+3}", f"v_add_f32 v{RS_+1}, v{X+4}, v{X+5}",
         f"v_add_f32 v{RS_}, v{RS_}, v{TM}", f"v_add_f32 v{RS_}, v{RS_}, v{RS_+1}",
         f"v_add_f32_dpp v{RS_}, v{RS_}, v{RS_} row_ror:8 row_mask:0xf bank_mask:0xf",
         f"v_mov_b32 v{TM}, v{RS_}", f"v_permlane16_swap_b32 v{RS_}, v{TM}", f"v_add_f32 v{RS_}, v{RS_}, v{TM}",
         f"v_mov_b32 v{TM}, v{RS_}", f"v_permlane32_swap_b32 v{RS_}, v{TM}", f"v_add_f32 v{RS_}, v{RS_}, v{TM}",
         f"v_rcp_f32 v{RS_}, v{RS_}"]
    return PT, PM, RS_, L, M

def gi(a, v):
    a(f"""v_lshlrev_b32 v{v}, 7, v{V_G}
v_and_b32 v{V_T}, 7, v{V_LANE}
v_lshlrev_b32 v{V_T}, 4, v{V_T}
v_add_u32 v{v}, v{v}, v{V_T}""")

def rs_lane(a, v):
    a(f"""v_lshrrev_b32 v{v}, 1, v{V_G}
v_lshlrev_b32 v{v}, 14, v{v}
v_and_b32 v{V_T}, 1, v{V_G}
v_lshlrev_b32 v{V_T}, 12, v{V_T}
v_add_u32 v{v}, v{v}, v{V_T}
v_and_b32 v{V_T}, 7, v{V_LANE}
v_lshlrev_b32 v{V_T}, 4, v{V_T}
v_add_u32 v{v}, v{v}, v{V_T}
s_lshl_b32 s{S_T}, s{S_H}, 7
v_add_u32 v{v}, s{S_T}, v{v}""")

def coop_load(a, w, wreg):
    stride = H*E*2
    VG, VT = V_POLL, V_POLL+1
    a(f"""v_lshrrev_b32 v{V_T}, 3, v{V_LANE}
v_add_u32 v{V_T}, {8*w}, v{V_T}
s_mov_b32 s{S_LB+1}, {stride}
v_mul_lo_u32 v{VG}, v{V_T}, s{S_LB+1}
v_and_b32 v{V_T}, 7, v{V_LANE}
v_lshlrev_b32 v{V_T}, 4, v{V_T}
v_add_u32 v{VG}, v{VG}, v{V_T}
v_bfe_u32 v{VT}, v{V_LANE}, 4, 1
v_lshlrev_b32 v{VT}, 4, v{VT}
v_bfe_u32 v{V_T}, v{V_LANE}, 5, 1
v_lshlrev_b32 v{V_T}, 3, v{V_T}
v_add_u32 v{VT}, v{VT}, v{V_T}
v_bfe_u32 v{V_T}, v{V_LANE}, 2, 1
v_add_u32 v{VT}, v{VT}, v{V_T}
v_bfe_u32 v{V_T}, v{V_LANE}, 3, 1
v_lshlrev_b32 v{V_T}, 2, v{V_T}
v_add_u32 v{VT}, v{VT}, v{V_T}
v_lshlrev_b32 v{VT}, 7, v{VT}
v_and_b32 v{V_T}, 3, v{V_LANE}
v_lshlrev_b32 v{V_T}, 3, v{V_T}
v_add_u32 v{VT}, v{VT}, v{V_T}
s_mul_i32 s{S_COL}, s{S_H}, 384
s_mul_i32 s{S_T}, s{S_C}, 96
s_add_u32 s{S_COL}, s{S_COL}, s{S_T}
v_add_u32 v{VT+1}, 61440, v{VT}""")
    srds = (S_WQ, S_WK, S_WV)
    def issue(ph):
        buf = (ph & 1)*61440
        for pp in range(5):
            p = 5*ph + pp
            for m in range(3):
                a(f"s_add_u32 s{S_T}, s{S_COL}, {p*32*stride}")
                a(f"s_mov_b32 m0, {buf + (pp*3+m)*4096 + w*1024}")
                a(f"buffer_load_dwordx4 v{VG}, s[{srds[m]}:{srds[m]+3}], s{S_T} offen lds")
    VST = 64
    def issue_v(ph):
        for pp in range(5):
            p = 5*ph + pp
            for m in range(3):
                a(f"s_add_u32 s{S_T}, s{S_COL}, {p*32*stride}")
                a(f"buffer_load_dwordx4 {vr(VST + (ph-2)*60 + (pp*3+m)*4)}, v{VG}, s[{srds[m]}:{srds[m]+3}], s{S_T} offen")
    def put(ph):
        buf = (ph & 1)*61440
        for u in range(15):
            reg = VW if buf == 0 else VW+1
            a(f"ds_write_b128 v{reg}, {vr(VST + (ph-2)*60 + u*4)} offset:{u*4096}")
            if u % 6 == 5: a("s_waitcnt lgkmcnt(6)")
    def reads(ph):
        buf = (ph & 1)*61440
        n = 0
        for pp in range(5):
            p = 5*ph + pp
            if w < 3: items = [(0, w, p), (1, w, 20+p)]
            else: items = [(2, t, t*20+p) for t in range(3)]
            for (m, T, f) in items:
                o = buf + (pp*3+m)*4096 + T*32
                reg = VT if o + 256 < 65536 else VT+1
                oo = o if reg == VT else o - 61440
                a(f"ds_read_b64_tr_b16 {wreg.pair(f,0)}, v{reg} offset:{oo}")
                a(f"ds_read_b64_tr_b16 {wreg.pair(f,1)}, v{reg} offset:{oo+256}")
                n += 2
                if n % 12 == 0: a("s_waitcnt lgkmcnt(4)")
        a("s_waitcnt lgkmcnt(0)")
    if OPT('COOPV', 1):
        VW = V_POLL+3
        a(f"v_lshlrev_b32 v{VW}, 4, v{V_LANE}")
        a(f"v_add_u32 v{VW}, {w*1024}, v{VW}")
        a(f"v_add_u32 v{VW+1}, 61440, v{VW}")
        issue(0); issue(1); issue_v(2); issue_v(3)
        for ph in range(4):
            if ph < 2:
                a(f"s_waitcnt vmcnt({45 - 15*ph})")
            else:
                a(f"s_waitcnt vmcnt({15 if ph == 2 else 0})")
                put(ph)
                a("s_waitcnt lgkmcnt(0)")
            a("s_barrier")
            reads(ph)
            a("s_barrier")
        return
    issue(0); issue(1)
    for ph in range(4):
        a(f"s_waitcnt vmcnt({15 if ph < 3 else 0})")
        a("s_barrier")
        reads(ph)
        a("s_barrier")
        if ph + 2 < 4: issue(ph+2)

def main_wave(a, w, flags=False):
    pfx = f"RM{w}"
    nt = NT[w]
    wreg = WReg(0, 256, 0)
    mem0_load(a, w)
    w8 = lambda t, K: ar((t*20 + 2*K)*4, 8)
    woq = lambda t, p: wreg.quad(40 + t*6 + p)
    a(f"s_lshl_b32 s{S_LB}, s{S_WAVE}, 15")
    if OPT('COOP', 1):
        coop_load(a, w, wreg)
    else:
        a(f"""s_mul_i32 s{S_COL}, s{S_H}, 384
s_mul_i32 s{S_T}, s{S_C}, 96
s_add_u32 s{S_COL}, s{S_COL}, s{S_T}
s_add_u32 s{S_COL}, s{S_COL}, {w*32}""")
        units = []
        for p in range(20): units += [(S_WQ, S_COL, p*32*H*E*2), (S_WK, S_COL, p*32*H*E*2)]
        load_w2(a, units, lambda u, T, k: wreg.pair((u & 1)*20 + (u >> 1), k), 1, H*E*2, 2, V_LANE, V_POLL, V_POLL+1, V_T, S_T, S_LB)
    a(f"""s_mul_i32 s{S_COL}, s{S_H}, {192*1280}
s_mul_i32 s{S_T}, s{S_C}, 320
s_add_u32 s{S_COL}, s{S_COL}, s{S_T}
s_add_u32 s{S_COL}, s{S_COL}, {T0[w]*32}""")
    ng = nt//2
    units = [(S_WO, S_COL, g*64 + p*32*1280) for p in range(6) for g in range(ng)]
    load_w2(a, units, lambda u, T, k: wreg.pair(40 + ((u % ng)*2 + T)*6 + u // ng, k), 2, D*2, True, V_LANE, V_POLL, V_POLL+1, V_T, S_T, S_LB)
    if OPT('STAMP', 0): a("s_memtime s[78:79]\ns_waitcnt lgkmcnt(0)\ns_sub_u32 s95, s78, s100")
    common_setup(a, w)
    gi(a, V_KMS)
    a(f"v_add_u32 v{V_KMS}, {w*1024}, v{V_KMS}")
    a(f"""v_lshrrev_b32 v{V_AST}, 1, v{V_G}
v_mul_u32_u24 v{V_AST}, 3072, v{V_AST}
v_lshlrev_b32 v{V_T}, 4, v{V_N}
v_add_u32 v{V_AST}, v{V_AST}, v{V_T}
v_and_b32 v{V_T}, 1, v{V_G}
v_lshlrev_b32 v{V_T}, 3, v{V_T}
v_add_u32 v{V_AST}, v{V_AST}, v{V_T}
s_mul_i32 s{S_T}, s{S_C}, 3
s_add_u32 s{S_T}, s{S_T}, {w}
s_lshl_b32 s{S_T}, s{S_T}, 8
s_mul_i32 s{S_T2}, s{S_H}, 9216
s_add_u32 s{S_T}, s{S_T}, s{S_T2}
v_add_u32 v{V_AST}, s{S_T}, v{V_AST}""")
    nearmap_v(a, V_AST, V_T)
    a(f"""s_add_u32 s{S_T}, s{S_T2}, {w*2048}
v_add_u32 v{V_APO}, s{S_T}, v{V_L16}
v_add_u32 v{V_APO+1}, 1024, v{V_APO}
v_add_u32 v{V_APL}, {L_QKV + w*2048}, v{V_L16}""")
    nearmap_v(a, V_APO, V_T); nearmap_v(a, V_APO+1, V_T)
    if w == 2 and OPT('EARLYDMA', 0):
        for k in range(6):
            a(f"v_add_u32 v{AP6[k]}, s{S_T2}, v{V_L16}")
            if k: a(f"v_add_u32 v{AP6[k]}, {k*1024}, v{AP6[k]}")
            nearmap_v(a, AP6[k], V_T)
    a(f"""v_lshlrev_b32 v{V_RQ}, 2, v{V_G}
v_bfe_u32 v{V_T}, v{V_LANE}, 2, 2
v_add_u32 v{V_RQ}, v{V_RQ}, v{V_T}
v_lshlrev_b32 v{V_RQ}, 4, v{V_RQ}
v_and_b32 v{V_T}, 1, v{V_LANE}
v_lshlrev_b32 v{V_T}, 3, v{V_T}
v_add_u32 v{V_RQ}, v{V_RQ}, v{V_T}
v_add_u32 v{V_RQ}, {L_QKV}, v{V_RQ}""")
    a(f"""v_bfe_u32 v{V_RV}, v{V_LANE}, 5, 1
v_lshlrev_b32 v{V_RV}, 5, v{V_RV}
v_bfe_u32 v{V_T}, v{V_LANE}, 4, 1
v_lshlrev_b32 v{V_T}, 3, v{V_T}
v_add_u32 v{V_RV}, v{V_RV}, v{V_T}
v_bfe_u32 v{V_T}, v{V_LANE}, 2, 1
v_add_u32 v{V_RV}, v{V_RV}, v{V_T}
v_bfe_u32 v{V_T}, v{V_LANE}, 3, 1
v_lshlrev_b32 v{V_T}, 4, v{V_T}
v_add_u32 v{V_RV}, v{V_RV}, v{V_T}
v_bfe_u32 v{V_T}, v{V_LANE}, 1, 1
v_lshlrev_b32 v{V_T}, 1, v{V_T}
v_add_u32 v{V_RV}, v{V_RV}, v{V_T}
v_lshlrev_b32 v{V_RV}, 4, v{V_RV}
v_and_b32 v{V_T}, 1, v{V_LANE}
v_lshlrev_b32 v{V_T}, 3, v{V_T}
v_add_u32 v{V_RV}, v{V_RV}, v{V_T}
v_add_u32 v{V_RV}, {L_QKV+6144}, v{V_RV}""")
    rs_lane(a, V_RSO)
    rs_local_lane(a, V_RSOL)
    for P in range(nt//2):
        a(f"""s_lshr_b32 s{76+P}, s{S_J}, 5
s_mul_i32 s{76+P}, s{76+P}, 81920
s_mul_i32 s{S_T}, s{S_C}, {5*4096}
s_add_u32 s{76+P}, s{76+P}, s{S_T}
s_add_u32 s{76+P}, s{76+P}, {(P0[w]+P)*4096}""")
        smap(a, 76+P, S_T)
    a(f"""s_mul_i32 s{S_RSB}, s{S_C}, {5*32768}
s_add_u32 s{S_RSB}, s{S_RSB}, {nearmap(RS_LOG) + P0[w]*32768}
s_mul_i32 s{S_T}, s{S_H}, 12288
s_add_u32 s{S_KVG}, s{S_T}, {(KX + w*6144) if OPT('UXRD', 0) else (KX if w == 0 else VX)}
s_mul_i32 s{S_T}, s{S_H}, 40
s_mul_i32 s{S_T2}, s{S_C}, 10
s_add_u32 s{S_T}, s{S_T}, s{S_T2}
s_add_u32 s{S_T}, s{S_T}, {T0[w]}
s_lshl_b32 s{S_UXG}, s{S_T}, 10
s_add_u32 s{S_UXG}, s{S_UXG}, {UX}
s_lshl_b32 s{S_UYG}, s{S_T}, 8
s_add_u32 s{S_UYG}, s{S_UYG}, {UY}
s_mul_i32 s{S_KMG}, s{S_H}, 3072
s_add_u32 s{S_KMG}, s{S_KMG}, {KM}
s_mov_b32 s{S_KVL}, {L_KV}
s_mov_b32 s{S_KVR}, {L_KV}
s_lshl_b32 s{S_FLG}, s{S_J}, 7
s_add_u32 s{S_FLG}, s{S_FLG}, {F_REC}""")
    if w == 2:
        a(f"""s_and_b32 s{S_COL}, s{S_J}, 31
s_cmp_lt_u32 s{S_COL}, 16
s_cselect_b32 s{S_RED}, 1, 0
s_add_u32 s{S_COL}, s{S_COL}, 64""")
        blk_off(a, S_COL, S_RSP, S_T)
        loc_off(a, S_COL, 72, S_T)
        a(f"""s_lshr_b32 s{S_T}, s{S_J}, 5
s_mul_i32 s{S_T}, s{S_T}, 10240
s_add_u32 s{S_T}, s{S_T}, {AG_LOG}
s_lshl_b32 s{S_T3}, s{S_COL}, 7
s_add_u32 s{S_T}, s{S_T}, s{S_T3}
v_add_u32 v{V_AGS}, s{S_T}, v{V_L16}""")
        nearmap_v(a, V_AGS, V_T)
        oob_mask(a, V_AGS, 8)
        sel_setup(a, 240)
    if flags:
        a(f"""s_mul_i32 s{S_T}, s{S_H}, 6
s_lshr_b32 s{S_T2}, s{S_T}, 3
s_add_u32 s{S_T}, s{S_T}, 5
s_lshr_b32 s{S_T}, s{S_T}, 3
v_mov_b32 v{V_KVA}, s{S_T}
v_mov_b32 v{V_T}, s{S_T2}
v_and_b32 v{V_T2}, 1, v{V_LANE}
v_cmp_eq_u32 vcc, 0, v{V_T2}
v_cndmask_b32 v{V_KVA}, v{V_KVA}, v{V_T}, vcc
v_cmp_lt_u32 vcc, 1, v{V_LANE}
v_mov_b32 v{V_T}, {R_V0 if not OPT('UXRD', 0) else 0}
v_cndmask_b32 v{V_T}, 0, v{V_T}, vcc
v_add_u32 v{V_KVA}, v{V_KVA}, v{V_T}
v_lshlrev_b32 v{V_KVA}, {PSH}, v{V_KVA}
v_add_u32 v{V_KVA}, {F_PROG}, v{V_KVA}
s_mov_b32 s{S_KVT}, 0
s_mov_b32 s22, 0
s_add_u32 s{S_T}, s{S_H}, {R_U0}
s_lshl_b32 s{S_T}, s{S_T}, {PSH}
s_add_u32 s{S_T}, s{S_T}, {F_PROG}
v_mov_b32 v{V_UXA}, s{S_T}""")
    if flags and w == 0: trace(a, 1, S_J)
    read_polarity(a, pfx)
    if flags and w == 0: trace(a, 2, S_J)
    a("s_barrier")
    mem0_stage(a, w)
    a(f"s_mov_b32 s{S_UXT}, 0\ns_mov_b32 s{S_UXC}, 0")
    kv_dma(a, flags, pfx, w)
    if flags and w == 0: trace(a, 3, S_J)
    a("s_waitcnt vmcnt(0) lgkmcnt(0)")
    a("s_barrier")
    idle_phase(a, w, woq)
    if flags and w == 0:
        dbgt(a, 40, op="max")
        trace(a, 4, S_J)
        if int(os.environ.get('TRACE', 0)):
            a("s_memtime s[86:87]\ns_waitcnt lgkmcnt(0)")
            trace(a, 6, S_J, val=86)
    stamp(a, 0)
    if OPT('STAMP', 0): a(f"s_waitcnt lgkmcnt(0)\ns_sub_u32 s101, s{S_TS}, s100")
    pfx0 = pfx
    a(f"s_cmp_eq_u32 s{S_MODE}, 0")
    a(f"s_cbranch_scc1 {pfx0}S_B0")
    a(f"s_branch {pfx0}F_B0")
    for mode in (1, 0):
        CURMODE[0] = mode
        pfx = pfx0 + ("F" if mode else "S")
        main_loop(a, w, flags, pfx, nt, w8, woq)
    CURMODE[0] = None

def main_loop(a, w, flags, pfx, nt, w8, woq):
    wo8 = lambda t, K: ar((40 + t*6 + 2*K)*4, 8)
    a.label(f"{pfx}_LOOP")
    stamp(a, 0)
    if w == 2 or OPT('D4', 0): ag_poll(a, pfx, w)
    a.label(f"{pfx}_B0")
    if w < 2 and OPT('EARLYDMA', 0): a("s_waitcnt vmcnt(0)")
    a("s_waitcnt lgkmcnt(0)")
    a("s_barrier")
    mark(a, S_REF0)
    stamp(a, 1)
    if OPT('STEPTR', 0) and w == 1:
        a("s_waitcnt lgkmcnt(0)")
        a(f"v_mov_b32 v250, s{S_REF0}")
        a(f"s_lshl_b32 s86, s{S_J}, 8")
        a(f"s_lshl_b32 s87, s{S_STEP}, 2")
        a(f"s_add_u32 s86, s86, s87")
        a(f"s_add_u32 s86, s86, {TRACE + 65536}")
        a("v_mov_b32 v251, s86")
        a("s_mov_b64 exec, 1")
        a(f"buffer_store_dword v250, v251, s[{S_WS}:{S_WS+3}], 0 offen")
        a("s_mov_b64 exec, -1")
    proj_stage(a, 2, w8)
    for x in pack_pair(V_ACC, V_ACC+4, V_PK): a(x)
    store_mode(a, [f"buffer_store_dwordx2 {vr(V_PK,2)}, v{V_AST}, s[{S_WS}:{S_WS+3}], s{S_CUR} offen SCX"])
    stamp(a, 2)
    ED = OPT('EARLYDMA', 0)
    if ED and w < 2:
        a(f"s_cmp_lg_u32 s{S_STEP}, 0")
        a(f"s_cbranch_scc1 {pfx}_NOS1")
        kv_dma(a, flags, pfx, w)
        a("s_waitcnt vmcnt(0)")
        a.label(f"{pfx}_NOS1")
        a(f"s_cmp_ge_u32 s{S_STEP}, 62")
        a(f"s_cbranch_scc1 {pfx}_NOS2")
        kv_dma(a, flags, pfx, w)
        a.label(f"{pfx}_NOS2")
    elif not ED and (w < 2 or OPT('UXRD', 0)):
        a(f"s_cmp_lg_u32 s{S_STEP}, 0")
        a(f"s_cbranch_scc1 {pfx}_NOS1")
        if w < 2: kv_dma(a, flags, pfx, w)
        if OPT('UXRD', 0): ux_load(a, w, flags, pfx)
        a.label(f"{pfx}_NOS1")
    for t in range(nt):
        for r in range(4): a(f"v_mov_b32 v{V_Y+4*t+r}, 0")
    if ED:
        if w == 2:
            wait_mode(a, S_REF0, OPT('T_AF', 0), OPT('T_A', 1150))
            lds6 = [f"buffer_load_dwordx4 {vr(V_POLL+4*k) if k < 4 else vr(V_RSP+4*(k-4))}, v{AP6[k]}, s[{S_WS}:{S_WS+3}], s{S_CUR} offen sc1" for k in range(6)]
            a(f"s_mov_b32 s{S_RETRY}, 0")
            a.label(f"{pfx}_AP")
            for x in lds6: a(x)
            a("s_waitcnt vmcnt(0)")
            poll_check(a, list(range(V_POLL, V_POLL+16)) + list(range(V_RSP, V_RSP+8)), V_T)
            a(f"""s_cbranch_vccz {pfx}_AP_OK
s_add_u32 s{S_RETRY}, s{S_RETRY}, 1
s_cmp_lt_u32 s{S_RETRY}, s{S_MAXR}
s_cbranch_scc1 {pfx}_AP
s_mov_b32 s{S_MAXR}, 0""")
            a.label(f"{pfx}_AP_OK")
            racc(a, 93)
            for k in range(6):
                a(f"ds_write_b128 v{V_L16}, {vr(V_POLL+4*k) if k < 4 else vr(V_RSP+4*(k-4))} offset:{L_QKV + k*1024}")
    else:
        wait_mode(a, S_REF0, OPT('T_AF', 0), OPT('T_A', 1150))
        def mkA(b): return [f"buffer_load_dwordx4 {vr(b+4*k)}, v{V_APO+k}, s[{S_WS}:{S_WS+3}], s{S_CUR} offen sc1" for k in range(2)]
        def stA(b):
            a(f"ds_write_b128 v{V_APL}, {vr(b)}")
            a(f"ds_write_b128 v{V_APL}, {vr(b+4)} offset:1024")
        poll_loop(a, f"{pfx}_AP", mkA(V_POLL), 8, 93)
        stA(V_POLL)
    a("s_waitcnt lgkmcnt(0)")
    stamp(a, 3)
    a("s_barrier")
    stamp(a, 4)
    reads = []
    for p in range(6):
        for (reg, typ) in ((V_QF, 0), (V_KF, 1)):
            for k in range(2):
                reads.append(f"ds_read_b64_tr_b16 {vr(reg+4*p+2*k,2)}, v{V_RQ} offset:{typ*3072 + (2*p+k)*256}")
    vreads = [f"ds_read_b64_tr_b16 {vr(V_VF+4*K+2*k,2)}, v{V_RV} offset:{K*1024 + k*64}" for K in range(3) for k in range(2)]
    TWOB = OPT('TWOB', 1)
    if not TWOB: reads += vreads
    issued = 0
    def iss(n):
        nonlocal issued
        for _ in range(n):
            if issued < len(reads): a(reads[issued]); issued += 1
    iss(12)
    for p in range(6):
        a(f"s_waitcnt lgkmcnt({issued - (4*p+4)})")
        for u, A_ in enumerate((vr(V_KXF+4*p), vr(V_KXF+4*(6+p)), vr(V_KF+4*p))):
            d = V_S + (4 if u == 0 else 8 if u == 1 else 0)
            c = "0" if p == 0 else vr(d)
            a(f"v_mfma_f32_16x16x32_bf16 {vr(d)}, {A_}, {vr(V_QF+4*p)}, {c}")
        iss(4)
    if TWOB:
        a("s_barrier")
        if w == 2 or OPT('T_DMA', 0) > 0 or OPT('T_DMA2', 0) > 0 or OPT('D4', 0): mark(a, 96)
        for x in vreads: a(x)
    stamp(a, 5)
    ym = []
    for K in range(3):
        for t in range(nt):
            pre = f"s_waitcnt lgkmcnt({6 - (2*K + 2)})\n" if t == 0 else ""
            ym.append(pre + f"v_smfmac_f32_16x16x64_bf16 {vr(V_Y+4*t)}, {vr(V_VF+4*K)}, {wo8(t,K)}, v{V_IDX}")
    PT, PM, RS_, L1, L2 = softmax_lists()
    yc = [f"v_cvt_pk_bf16_f32 v{V_YF+2*t+k}, v{V_Y+4*t+2*k}, v{V_Y+4*t+2*k+1}" for t in range(nt) for k in range(2)]
    Y0 = OPT('Y0', 2)
    for i, x in enumerate(L1):
        if ym and i >= Y0: a(ym.pop(0))
        a(x)
    while ym: a(ym.pop(0))
    for t in range(nt):
        a(f"v_mfma_f32_16x16x32_bf16 {vr(V_PU+4*t)}, {vr(V_UXF+4*t)}, {vr(PT)}, 0")
        for _ in range(2):
            if yc: a(yc.pop(0))
    for t in range(nt):
        a(f"v_mfma_f32_16x16x16_bf16 {vr(V_PU+4*t)}, {vr(V_YF+2*t,2)}, {vr(PM,2)}, {vr(V_PU+4*t)}")
        for _ in range(4):
            if L2: a(L2.pop(0))
    while L2: a(L2.pop(0))
    a(f"v_mov_b32 v{RS_+1}, v{RS_}")
    for t in range(nt):
        for r in range(0, 4, 2): a(f"v_pk_mul_f32 {vr(V_PU+4*t+r,2)}, {vr(V_PU+4*t+r,2)}, {vr(RS_,2)}")
    for t in range(nt):
        a(f"v_cvt_pk_bf16_f32 v{V_RSP+2*t}, v{V_PU+4*t}, v{V_PU+4*t+1}")
        a(f"v_cvt_pk_bf16_f32 v{V_RSP+2*t+1}, v{V_PU+4*t+2}, v{V_PU+4*t+3}")
    a(f"s_add_u32 s{S_T}, s{S_CUR}, s{S_RSB}")
    a(f"s_mov_b64 exec, s[{S_M8}:{S_M8+1}]")
    for P in range(nt//2):
        if P > 0: a(f"s_add_u32 s{S_T}, s{S_T}, 32768")
        a(f"buffer_store_dwordx4 {vr(V_RSP+4*P)}, v{V_RSO}, s[{S_WS}:{S_WS+3}], s{S_T} offen sc1")
    if CURMODE[0] and RSLOC():
        a(f"s_xor_b32 s74, s{S_CUR}, 8192")
        for P in range(nt//2):
            a(f"s_add_u32 s{S_T}, s{76+P}, s74")
            a(f"buffer_store_dwordx4 {vr(V_RSP+4*P)}, v{V_RSOL}, s[{S_WS}:{S_WS+3}], s{S_T} offen")
    stamp(a, 6)
    a("s_mov_b64 exec, -1")
    LATEDMA = OPT('T_DMA', 0) > 0
    if (w < 2 or OPT('UXRD', 0)) and not OPT('NODMA', 0) and not LATEDMA and not OPT('EARLYDMA', 0) and not OPT('SVCDMA', 0):
        if not OPT('T_DMA2', 0):
            a(f"s_cmp_eq_u32 s{S_STEP}, 63")
            a(f"s_cbranch_scc1 {pfx}_NODMA")
            if OPT('UXRD', 0): ux_load(a, w, flags, pfx)
            if w < 2: kv_dma(a, flags, pfx, w)
            a.label(f"{pfx}_NODMA")
    a(f"s_mov_b64 exec, s[{S_M8}:{S_M8+1}]")
    a(f"s_cmp_lg_u32 s{S_C}, 0")
    a(f"s_cbranch_scc1 {pfx}_NOKM")
    for k in range(2 if not OPT('NOKM', 0) else 0):
        a(f"buffer_store_dwordx4 {vr(V_KF+4*(2*w+k))}, v{V_KMS}, s[{S_WS}:{S_WS+3}], s{S_KMG} offen offset:{k*512} sc1")
    a.label(f"{pfx}_NOKM")
    a("s_mov_b64 exec, -1")
    a(f"s_add_u32 s{S_KMG}, s{S_KMG}, {32*3072}")
    for t in range(nt):
        for r in range(4): a(f"v_mov_b32 v{V_PU+r}, v{V_Y+4*t+r}")
        for r in range(4): a(f"v_permlane32_swap_b32 v{V_Y+4*t+r}, v{V_PU+r}")
        for r in range(4): a(f"v_add_f32 v{V_Y+4*t+r}, v{V_Y+4*t+r}, v{V_PU+r}")
        a(f"v_cvt_pk_bf16_f32 v{V_YF+2*t}, v{V_Y+4*t}, v{V_Y+4*t+1}")
        a(f"v_cvt_pk_bf16_f32 v{V_YF+2*t+1}, v{V_Y+4*t+2}, v{V_Y+4*t+3}")
    a("s_mov_b32 exec_hi, 0")
    for t in range(nt if not OPT('NOUY', 0) else 0):
        a(f"buffer_store_dwordx2 {vr(V_YF+2*t,2)}, v{V_L4}, s[{S_WS}:{S_WS+3}], s{S_UYG} offen offset:{t*256} sc1")
    a("s_mov_b64 exec, -1")
    a(f"s_add_u32 s{S_UYG}, s{S_UYG}, {32*40*256}")
    if w == OPT('FLGW', 1) and not OPT('NOFLG', 0):
        a(f"v_mov_b32 v{V_T}, s{S_STEP}")
        a("s_mov_b64 exec, 1")
        a(f"buffer_store_dword v{V_T}, v{V_ZERO}, s[{S_WS}:{S_WS+3}], s{S_FLG} offen sc1")
        a(f"s_cmp_lg_u32 s{S_J}, 0")
        a(f"s_cbranch_scc1 {pfx}_NOPROG")
        a(f"s_mov_b32 s{S_T}, {F_RPROG}")
        a(f"buffer_store_dword v{V_T}, v{V_ZERO}, s[{S_WS}:{S_WS+3}], s{S_T} offen sc1")
        a.label(f"{pfx}_NOPROG")
        a("s_mov_b64 exec, -1")
    a(f"s_add_u32 s{S_STEP}, s{S_STEP}, 1")
    a(f"s_cmp_ge_u32 s{S_STEP}, 64")
    a(f"s_cbranch_scc1 {pfx}_DONE")
    if w < 2 and OPT('T_DMA2', 0):
        wait_until(a, 96, OPT('T_DMA2', 0))
        kv_dma(a, flags, pfx, w)
    stamp(a, 7)
    idle_phase(a, w, woq)
    if w < 2 and LATEDMA:
        wait_until(a, 96, OPT('T_DMA', 0))
        kv_dma(a, flags, pfx, w)
    if w == 2:
        a(f"s_cmp_eq_u32 s{S_RED}, 0")
        a(f"s_cbranch_scc1 {pfx}_NORED")
        wait_until(a, 96, OPT('T_RS', 1150))
        a(f"s_add_u32 s{S_T2}, s{S_CUR}, s{S_RSP}")
        reduce_blocks(a, pfx, 1, 240, 48, (S_T2,), V_AGS, 64, 80, s_loc0=(72,), s_loc=(74,), sqbase=64)
        a.label(f"{pfx}_NORED")
    rotate_slots(a)
    stamp_acc(a)
    if w == 2: mark(a, S_REF2)
    a(f"s_branch {pfx}_LOOP")
    a.label(f"{pfx}_DONE")
    a("s_waitcnt vmcnt(0)")
    a("s_barrier")
    if flags and w == 0:
        dbgt(a, 44, op="max")
        trace(a, 5, S_J)
        if int(os.environ.get('TRACE', 0)):
            a("s_memtime s[86:87]\ns_waitcnt lgkmcnt(0)")
            trace(a, 7, S_J, val=86)
    if w == OPT('FLGW', 1):
        a(f"v_mov_b32 v{V_T}, 64")
        a("s_mov_b64 exec, 1")
        a(f"buffer_store_dword v{V_T}, v{V_ZERO}, s[{S_WS}:{S_WS+3}], s{S_FLG} offen sc1")
        a(f"s_cmp_lg_u32 s{S_J}, 0")
        a(f"s_cbranch_scc1 {pfx}_NOPROG2")
        a(f"s_mov_b32 s{S_T}, {F_RPROG}")
        a(f"buffer_store_dword v{V_T}, v{V_ZERO}, s[{S_WS}:{S_WS+3}], s{S_T} offen sc1")
        a.label(f"{pfx}_NOPROG2")
        a("s_waitcnt vmcnt(0)")
        a("s_mov_b64 exec, -1")
    stamp_out(a, w)
    a("s_endpgm")

def stamp_acc(a):
    if not OPT('STAMP', 0): return
    a(f"s_memtime s[{S_TS+16}:{S_TS+17}]")
    a("s_waitcnt lgkmcnt(0)")
    for k in range(8):
        a(f"s_sub_u32 s{S_T}, s{S_TS+2*k+2}, s{S_TS+2*k}")
        a(f"s_add_u32 s{80+k}, s{80+k}, s{S_T}")

def stamp_out(a, w):
    if not OPT('STAMP', 0): return
    a.uid += 1
    L = f"STO_{w}_{a.uid}"
    a(f"""s_cmp_lg_u32 s{S_J}, {OPT('STAMPROLE', 0)}
s_cbranch_scc1 {L}
s_waitcnt lgkmcnt(0)
s_load_dwordx2 s[96:97], s[0:1], {KA['dbg']}
s_waitcnt lgkmcnt(0)
s_mov_b64 exec, 1""")
    for k in range(8):
        a(f"v_mov_b32 v10, s{80+k}\nv_mov_b32 v11, {64 + w*48 + k*4}\nglobal_store_dword v11, v10, s[96:97]\ns_waitcnt vmcnt(0)")
    if w == 0:
        a(f"v_mov_b32 v10, s95\nv_mov_b32 v11, 40\nglobal_store_dword v11, v10, s[96:97]\ns_waitcnt vmcnt(0)")
        a(f"v_mov_b32 v10, s101\nv_mov_b32 v11, 44\nglobal_store_dword v11, v10, s[96:97]\ns_waitcnt vmcnt(0)")
    for k in range(3):
        a(f"v_mov_b32 v10, s{92+k}\nv_mov_b32 v11, {64 + w*48 + 32 + k*4}\nglobal_store_dword v11, v10, s[96:97]\ns_waitcnt vmcnt(0)")
    a.label(L)

def common_setup(a, w):
    a(f"""v_lshlrev_b32 v{V_L16}, 4, v{V_LANE}
v_lshlrev_b32 v{V_L4}, 3, v{V_LANE}
v_mov_b32 v{V_ZERO}, 0
s_mov_b32 s{S_M8}, 0x00ff00ff
s_mov_b32 s{S_M8+1}, 0x00ff00ff
s_mov_b32 s{S_H8}, 0xff00ff00
s_mov_b32 s{S_H8+1}, 0xff00ff00
s_mov_b32 s{S_HI32}, 0
s_mov_b32 s{S_HI32+1}, -1
v_mov_b32 v{V_NINF}, 0xff800000
s_mov_b32 s{S_MQ}, 0x0000ffff
s_mov_b32 s{S_MQ+1}, 0x0000ffff
v_mov_b32 v{V_IDX}, 0x44444444
v_mov_b32 v{V_T}, 0xeeeeeeee
v_cndmask_b32 v{V_IDX}, v{V_IDX}, v{V_T}, s[{S_H8}:{S_H8+1}]
s_mov_b32 s{S_SCALE}, 0x{f2u(192**-0.5*1.4426950408889634):08x}
s_mov_b32 s{S_MAXR}, {OPT('MAXRETRY', 400000)}
s_mov_b32 s{S_STEP}, 0""")
    for k in range(8): a(f"s_mov_b32 s{80+k}, 0")
    for k in range(92, 95): a(f"s_mov_b32 s{k}, 0")
    if OPT('D4', 0):
        a(f"s_lshr_b32 s{S_T}, s{S_J}, 5")
        a(f"s_mul_i32 s{S_T}, s{S_T}, 10240")
        a(f"s_add_u32 s{S_T}, s{S_T}, {AG_LOG + w*2560}")
        for k in range(3):
            a(f"v_add_u32 v{V_AGP+k}, s{S_T}, v{V_L16}")
            if k: a(f"v_add_u32 v{V_AGP+k}, {k*1024}, v{V_AGP+k}")
            nearmap_v(a, V_AGP+k, V_T2)
        oob_mask(a, V_AGP+2, 32)
    elif w >= 2:
        a(f"s_lshr_b32 s{S_T}, s{S_J}, 5")
        a(f"s_mul_i32 s{S_T}, s{S_T}, 10240")
        a(f"s_add_u32 s{S_T}, s{S_T}, {AG_LOG + (w-2)*5120}")
        for k in range(5):
            a(f"v_add_u32 v{V_AGP+k}, s{S_T}, v{V_L16}")
            if k: a(f"v_add_u32 v{V_AGP+k}, {k*1024}, v{V_AGP+k}")
            nearmap_v(a, V_AGP+k, V_T2)
    a(f"v_add_u32 v{V_AGL}, {L_MEM + w*2560}, v{V_L16}")

V_M0 = 200
def mem0_stage(a, w):
    a(f"ds_write_b128 v{V_AGL}, {vr(V_M0)}")
    a(f"ds_write_b128 v{V_AGL}, {vr(V_M0+4)} offset:1024")
    a("s_mov_b32 exec_hi, 0")
    a(f"ds_write_b128 v{V_AGL}, {vr(V_M0+8)} offset:2048")
    a("s_mov_b64 exec, -1")

def mem0_load(a, w):
    for k in range(3):
        a(f"""v_add_u32 v{V_T}, {160*w + 64*k}, v{V_LANE}
v_and_b32 v{V_T2}, 7, v{V_T}
v_mul_u32_u24 v{V_T2}, 1280, v{V_T2}
v_lshrrev_b32 v{V_M0+12}, 5, v{V_T}
v_lshlrev_b32 v{V_M0+12}, 6, v{V_M0+12}
v_add_u32 v{V_T2}, v{V_T2}, v{V_M0+12}
v_bfe_u32 v{V_T}, v{V_T}, 3, 2
v_lshlrev_b32 v{V_T}, 3, v{V_T}
v_add_u32 v{V_T}, v{V_T}, v{V_T2}""")
        a(f"buffer_load_dwordx2 {vr(V_M0+4*k,2)}, v{V_T}, s[{S_M0}:{S_M0+3}], 0 offen")
        a(f"buffer_load_dwordx2 {vr(V_M0+4*k+2,2)}, v{V_T}, s[{S_M0}:{S_M0+3}], 0 offen offset:32")

def service_wave(a):
    w = 3; pfx = "RS3"
    wreg = WReg(0, 256, 0)
    mem0_load(a, w)
    a(f"s_lshl_b32 s{S_LB}, s{S_WAVE}, 15")
    if OPT('COOP', 1):
        coop_load(a, w, wreg)
    else:
        a(f"""s_mul_i32 s{S_COL}, s{S_H}, 384
s_mul_i32 s{S_T}, s{S_C}, 96
s_add_u32 s{S_COL}, s{S_COL}, s{S_T}""")
        units = [(S_WV, S_COL, t*32 + p*32*H*E*2) for p in range(20) for t in range(3)]
        load_w2(a, units, lambda u, T, k: wreg.pair((u % 3)*20 + u // 3, k), 1, H*E*2, 2, V_LANE, V_POLL, V_POLL+1, V_T, S_T, S_LB)
    common_setup(a, w)
    PQ = V_KXF; PV_ = V_KXF+2; R = V_KXF+6; SEL = V_KXF+8; ONES = V_KXF+12; AGZ = V_KXF+7; RSO2 = V_KXF+5
    a(f"""v_lshrrev_b32 v{V_AST}, 1, v{V_G}
v_lshlrev_b32 v{V_AST}, 8, v{V_AST}
v_lshlrev_b32 v{V_T}, 4, v{V_N}
v_add_u32 v{V_AST}, v{V_AST}, v{V_T}
v_and_b32 v{V_T}, 1, v{V_G}
v_lshlrev_b32 v{V_T}, 3, v{V_T}
v_add_u32 v{V_AST}, v{V_AST}, v{V_T}
v_lshlrev_b32 v{V_AST+1}, 4, v{V_N}
v_add_u32 v{V_AST+1}, v{V_AST+1}, v{V_T}
s_mul_i32 s{S_T2}, s{S_H}, 9216
s_mul_i32 s{S_T}, s{S_C}, 768
s_add_u32 s{S_T}, s{S_T}, s{S_T2}
v_add_u32 v{PQ}, s{S_T}, v{V_L16}
v_add_u32 v{PQ+1}, 3072, v{PQ}
v_add_u32 v{PV_}, 6144, v{PQ}
s_add_u32 s{S_T}, s{S_T}, 6144
v_add_u32 v{V_AST}, s{S_T}, v{V_AST}
v_add_u32 v{V_AST+1}, s{S_T}, v{V_AST+1}
v_add_u32 v{V_AST+1}, 512, v{V_AST+1}""")
    for r in (V_AST, V_AST+1, PV_, PQ, PQ+1): nearmap_v(a, r, V_T)
    oob_mask(a, PV_, 48); oob_mask(a, PQ+1, 48); oob_mask(a, PQ, 48); oob_mask(a, V_AST+1, 32)
    for k in range(3):
        a(f"v_add_u32 v{V_APO+k}, s{S_T2}, v{V_L16}")
        a(f"v_add_u32 v{V_APO+k}, {6144 + k*1024}, v{V_APO+k}")
        nearmap_v(a, V_APO+k, V_T)
    a(f"v_add_u32 v{V_APL}, {L_QKV + 6144}, v{V_L16}")
    rs_lane(a, R)
    a(f"""s_mul_i32 s{S_RSB}, s{S_C}, {5*32768}
s_add_u32 s{S_RSB}, s{S_RSB}, {nearmap(RS_LOG)}
s_and_b32 s{S_COL}, s{S_J}, 31""")
    blk_off(a, S_COL, S_RSP, S_T)
    loc_off(a, S_COL, 72, S_T)
    a(f"s_add_u32 s{S_COL}, s{S_COL}, 32")
    blk_off(a, S_COL, S_RED, S_T)
    loc_off(a, S_COL, 73, S_T)
    rs_local_lane(a, V_RSOL)
    a(f"""s_lshr_b32 s77, s{S_J}, 5
s_mul_i32 s77, s77, 81920
s_mul_i32 s{S_T}, s{S_C}, {5*4096}
s_add_u32 s77, s77, s{S_T}""")
    a(f"""s_lshr_b32 s{S_T}, s{S_J}, 5
s_mul_i32 s{S_T}, s{S_T}, 10240
s_add_u32 s{S_T}, s{S_T}, {AG_LOG}
s_and_b32 s{S_T2}, s{S_J}, 31
s_lshl_b32 s{S_T3}, s{S_T2}, 7
s_add_u32 s{S_T}, s{S_T}, s{S_T3}
v_lshrrev_b32 v{V_AGS}, 3, v{V_LANE}
v_lshlrev_b32 v{V_AGS}, 12, v{V_AGS}
v_and_b32 v{V_T}, 7, v{V_LANE}
v_lshlrev_b32 v{V_T}, 4, v{V_T}
v_add_u32 v{V_AGS}, v{V_AGS}, v{V_T}
v_add_u32 v{V_AGS}, s{S_T}, v{V_AGS}""")
    nearmap_v(a, V_AGS, V_T)
    a(f"v_mov_b32 v{AGZ}, v{V_AGS}")
    a(f"""v_bfe_u32 v{V_AGS}, v{V_LANE}, 3, 1
v_lshlrev_b32 v{V_AGS}, 12, v{V_AGS}
v_and_b32 v{V_T}, 7, v{V_LANE}
v_lshlrev_b32 v{V_T}, 4, v{V_T}
v_add_u32 v{V_AGS}, v{V_AGS}, v{V_T}
v_lshlrev_b32 v{V_T}, 3, v{V_G}
v_add_u32 v{V_AGS}, v{V_AGS}, v{V_T}
s_lshr_b32 s{S_T}, s{S_J}, 5
s_mul_i32 s{S_T}, s{S_T}, 10240
s_add_u32 s{S_T}, s{S_T}, {AG_LOG}
s_add_u32 s{S_T}, s{S_T}, s{S_T3}
v_add_u32 v{V_AGS}, s{S_T}, v{V_AGS}""")
    nearmap_v(a, V_AGS, V_T)
    oob_mask(a, V_AGS, 32)
    a(f"""v_mov_b32 v{RSO2}, s{S_RSP}
v_mov_b32 v{V_T}, s{S_RED}
v_cndmask_b32 v{RSO2}, v{RSO2}, v{V_T}, s[{S_H8}:{S_H8+1}]
v_lshlrev_b32 v{V_T}, 7, v{V_G}
v_add_u32 v{RSO2}, v{RSO2}, v{V_T}
v_and_b32 v{V_T}, 7, v{V_LANE}
v_lshlrev_b32 v{V_T}, 4, v{V_T}
v_add_u32 v{RSO2}, v{RSO2}, v{V_T}""")
    a(f"s_cmp_lt_u32 s{S_T2}, 16")
    a(f"s_cselect_b32 s{S_T}, 24, 16")
    a(f"v_mov_b32 v{V_T}, 0x80000000")
    a(f"v_cmp_gt_u32 vcc, s{S_T}, v{V_LANE}")
    a(f"v_cndmask_b32 v{AGZ}, v{V_T}, v{AGZ}, vcc")
    sel_setup(a, SEL)
    for k in range(4): a(f"v_mov_b32 v{ONES+k}, -1")
    a(f"v_mov_b32 v{ONES+4}, 1")
    if OPT('SVCDMA', 0):
        a(f"""s_mul_i32 s{S_T}, s{S_H}, 6
s_lshr_b32 s{S_T2}, s{S_T}, 3
s_add_u32 s{S_T}, s{S_T}, 5
s_lshr_b32 s{S_T}, s{S_T}, 3
v_mov_b32 v{V_KVA}, s{S_T}
v_mov_b32 v{V_T}, s{S_T2}
v_and_b32 v{V_T2}, 1, v{V_LANE}
v_cmp_eq_u32 vcc, 0, v{V_T2}
v_cndmask_b32 v{V_KVA}, v{V_KVA}, v{V_T}, vcc
v_cmp_lt_u32 vcc, 1, v{V_LANE}
v_mov_b32 v{V_T}, {R_V0}
v_cndmask_b32 v{V_T}, 0, v{V_T}, vcc
v_add_u32 v{V_KVA}, v{V_KVA}, v{V_T}
v_lshlrev_b32 v{V_KVA}, {PSH}, v{V_KVA}
v_add_u32 v{V_KVA}, {F_PROG}, v{V_KVA}
s_mov_b32 s{S_KVT}, 4
s_mov_b32 s22, 0
s_mul_i32 s{S_T}, s{S_H}, 12288
s_add_u32 s{S_KVG}, s{S_T}, {KX + 2*32*12288}
s_mov_b32 s{S_KVL}, {L_KV}""")
    read_polarity(a, pfx)
    a("s_barrier")
    mem0_stage(a, w)
    a("s_waitcnt vmcnt(0) lgkmcnt(0)")
    a("s_barrier")
    stamp(a, 0)
    pfx0 = pfx
    a(f"s_cmp_eq_u32 s{S_MODE}, 0")
    a(f"s_cbranch_scc1 {pfx0}S_B0")
    a(f"s_branch {pfx0}F_B0")
    for mode in (1, 0):
        CURMODE[0] = mode
        pfx = pfx0 + ("F" if mode else "S")
        service_loop(a, pfx, PQ, PV_, R, SEL, ONES, AGZ, RSO2)
    CURMODE[0] = None

def service_loop(a, pfx, PQ, PV_, R, SEL, ONES, AGZ, RSO2):
    a.label(f"{pfx}_LOOP")
    stamp(a, 0)
    ag_poll(a, pfx, 3)
    a.label(f"{pfx}_B0")
    a("s_waitcnt lgkmcnt(0)")
    a("s_barrier")
    mark(a, S_REF0)
    stamp(a, 1)
    SP = 140
    w8s = lambda t, K: ar((t*20 + 2*K)*4, 8)
    for K in range(10):
        a(f"ds_read_b128 {vr(V_RING+4*K)}, v{V_L16} offset:{L_MEM + K*1024}")
    for r in range(12): a(f"v_mov_b32 v{V_ACC+r}, 0")
    for K in range(10):
        a(f"s_waitcnt lgkmcnt({9-K})")
        for t in range(2):
            a(f"v_smfmac_f32_16x16x64_bf16 {vr(V_ACC+4*t)}, {vr(V_RING+4*K)}, {w8s(t,K)}, v{V_IDX}")
    P01 = pack_pair(V_ACC, V_ACC+4, SP)
    for K in range(10):
        a(f"v_smfmac_f32_16x16x64_bf16 {vr(V_ACC+8)}, {vr(V_RING+4*K)}, {w8s(2,K)}, v{V_IDX}")
        if K >= 2 and P01: a(P01.pop(0))
        if K >= 6 and P01: a(P01.pop(0))
    while P01: a(P01.pop(0))
    store_mode(a, [f"buffer_store_dwordx2 {vr(SP,2)}, v{V_AST}, s[{S_WS}:{S_WS+3}], s{S_CUR} offen SCX"])
    for r in range(4): a(f"v_mov_b32 v{SP+8+r}, v{V_ACC+8+r}")
    for x in pack_pair(V_ACC+8, SP+8, SP+4): a(x)
    store_mode(a, [f"buffer_store_dwordx2 {vr(SP+4,2)}, v{V_AST+1}, s[{S_WS}:{S_WS+3}], s{S_CUR} offen SCX"])
    stamp(a, 2)
    wait_mode(a, S_REF0, OPT('T_VF', 1300), OPT('T_V', 1500))
    loads = [f"buffer_load_dwordx4 {vr(V_POLL+4*k)}, v{V_APO+k}, s[{S_WS}:{S_WS+3}], s{S_CUR} offen sc1" for k in range(3)]
    if OPT('TWOB', 1):
        for x in loads: a(x)
        stamp(a, 3)
        a("s_barrier")
        stamp(a, 4)
        def stV():
            for k in range(3):
                a(f"ds_write_b128 v{V_APL}, {vr(V_POLL+4*k)} offset:{k*1024}")
        if OPT('SPEC', 0): poll_loop(a, f"{pfx}_VP", loads, 12, 93, pre_issued=True, spec=stV)
        else:
            poll_loop(a, f"{pfx}_VP", loads, 12, 93, pre_issued=True)
            stV()
        a("s_waitcnt lgkmcnt(0)")
        a("s_barrier")
        mark(a, 96)
        stamp(a, 5)
    else:
        poll_loop(a, f"{pfx}_VP", loads, 12, 93)
        for k in range(3):
            a(f"ds_write_b128 v{V_APL}, {vr(V_POLL+4*k)} offset:{k*1024}")
        a("s_waitcnt lgkmcnt(0)")
        stamp(a, 3)
        a("s_barrier")
        mark(a, 96)
        stamp(a, 4)
        stamp(a, 5)
    a(f"s_cmp_eq_u32 s{S_STEP}, 63")
    a(f"s_cbranch_scc1 {pfx}_DONE")
    if OPT('SVCDMA', 0):
        a(f"s_cmp_ge_u32 s{S_STEP}, 62")
        a(f"s_cbranch_scc1 {pfx}_NOSD")
        kv_dma_svc(a, pfx)
        a.label(f"{pfx}_NOSD")
    store_mode(a, [f"buffer_store_dwordx4 {vr(ONES)}, v{r}, s[{S_WS}:{S_WS+3}], s{S_NN} offen SCX" for r in (PQ, PQ+1, PV_)])
    a(f"s_add_u32 s{S_T}, s{S_NN}, s{S_RSB}")
    a(f"s_mov_b64 exec, s[{S_M8}:{S_M8+1}]")
    for P in range(5):
        if P > 0: a(f"s_add_u32 s{S_T}, s{S_T}, 32768")
        a(f"buffer_store_dwordx4 {vr(ONES)}, v{R}, s[{S_WS}:{S_WS+3}], s{S_T} offen sc1")
    if CURMODE[0] and RSLOC():
        a(f"s_xor_b32 s74, s{S_NN}, 8192")
        for P in range(5):
            a(f"s_add_u32 s{S_T}, s77, {P*4096}")
            smap(a, S_T, S_T2)
            a(f"s_add_u32 s{S_T}, s{S_T}, s74")
            a(f"buffer_store_dwordx4 {vr(ONES)}, v{V_RSOL}, s[{S_WS}:{S_WS+3}], s{S_T} offen")
    a("s_mov_b64 exec, -1")
    store_mode(a, [f"buffer_store_dwordx4 {vr(ONES)}, v{AGZ}, s[{S_WS}:{S_WS+3}], s{S_NN} offen SCX"])
    stamp(a, 6)
    wait_until(a, 96, OPT('T_RS', 1150))
    if OPT('RED2', 1):
        reduce2(a, pfx, SEL, 32, RSO2, V_AGS, 64, 160)
    else:
        raise SystemExit("RED2=0 no longer supported")
    a(f"s_add_u32 s{S_STEP}, s{S_STEP}, 1")
    a(f"s_cmp_ge_u32 s{S_STEP}, 64")
    a(f"s_cbranch_scc1 {pfx}_DONE")
    rotate_slots(a)
    stamp_acc(a)
    mark(a, S_REF2)
    a(f"s_branch {pfx}_LOOP")
    a.label(f"{pfx}_DONE")
    a("s_waitcnt vmcnt(0)")
    a("s_barrier")
    stamp_out(a, 3)
    a("s_endpgm")

def rec_entry(a):
    a(f"""s_load_dwordx4 s[64:67], s[0:1], {KA['wq']}
s_load_dwordx4 s[68:71], s[0:1], {KA['wv']}
s_load_dwordx2 s[72:73], s[0:1], {KA['mem0']}
s_waitcnt lgkmcnt(0)""")
    srd(a, S_WQ, 64, D*H*E*2); srd(a, S_WK, 66, D*H*E*2); srd(a, S_WV, 68, D*H*E*2); srd(a, S_WO, 70, D*H*E*2)
    srd(a, S_M0, 72, M*D*2)
    a(f"s_lshr_b32 s{S_H}, s{S_J}, 2\ns_and_b32 s{S_C}, s{S_J}, 3")

def probe(a, s_k, s_xcc, lbl, s_dbg):
    a(f"""s_mov_b64 exec, 1
v_mov_b32 v10, -1
s_lshl_b32 s{S_T}, s{s_k}, 21
s_add_u32 s{S_T}, s{S_T}, {RING + PROBE_OFF}
v_mov_b32 v11, s{S_T}
v_add_u32 v13, 8192, v11
s_mov_b32 s{S_T2}, 0
s_mov_b32 s84, -1
s_mov_b32 s85, -1""")
    a.label(f"{lbl}_R")
    a(f"""buffer_store_dword v10, v11, s[{S_WS}:{S_WS+3}], 0 offen sc1
buffer_store_dword v10, v13, s[{S_WS}:{S_WS+3}], 0 offen sc1
s_waitcnt vmcnt(0)
s_sleep 6""")
    for hsel in range(2):
        a(f"""s_memtime s[80:81]
s_waitcnt lgkmcnt(0)
buffer_load_dword v12, v{11 if hsel == 0 else 13}, s[{S_WS}:{S_WS+3}], 0 offen sc1
s_waitcnt vmcnt(0)
s_memtime s[82:83]
s_waitcnt lgkmcnt(0)
s_sub_u32 s{86+hsel}, s82, s80""")
    a(f"""s_min_u32 s84, s84, s86
s_min_u32 s85, s85, s87
s_add_u32 s{S_T2}, s{S_T2}, 1
s_cmp_lt_u32 s{S_T2}, {OPT('PROBE_N', 7)}
s_cbranch_scc1 {lbl}_R
s_cmp_lt_u32 s85, s84
s_cselect_b32 s{S_T3}, 1, 0
s_lshr_b32 s{S_T}, s{s_xcc}, 2
s_xor_b32 s{S_T3}, s{S_T3}, s{S_T}
s_and_b32 s{S_T3}, s{S_T3}, 1
s_or_b32 s{S_T3}, s{S_T3}, 2
s_lshl_b32 s{S_T}, s{s_k}, 1
s_lshl_b32 s{S_T3}, s{S_T3}, s{S_T}
v_mov_b32 v10, s{S_T3}
v_mov_b32 v11, {DB_POL}
global_atomic_or v11, v10, s[{s_dbg}:{s_dbg+1}] sc1
s_waitcnt vmcnt(0)
s_mov_b64 exec, -1""")

def rec_dispatch(a, flags=False):
    a(f"""s_cmp_eq_u32 s{S_WAVE}, 0
s_cbranch_scc1 RK_W0
s_cmp_eq_u32 s{S_WAVE}, 1
s_cbranch_scc1 RK_W1
s_cmp_eq_u32 s{S_WAVE}, 2
s_cbranch_scc1 RK_W2
s_branch RK_W3""")
    for w in range(3):
        a.label(f"RK_W{w}")
        main_wave(a, w, flags)
    a.label("RK_W3")
    service_wave(a)

def gen_rec_kernel():
    a = Asm(); name = "rec_kernel"
    kernel_header(a, name)
    if OPT('STAMP', 0): a("s_memtime s[100:101]")
    a(f"""s_cmp_ge_u32 s2, 256
s_cbranch_scc1 RK_END
s_load_dwordx2 s[74:75], s[0:1], {KA['ws']}
s_load_dwordx2 s[76:77], s[0:1], {KA['dbg']}
s_getreg_b32 s78, hwreg(HW_REG_XCC_ID)
s_and_b32 s78, s78, 15
s_waitcnt lgkmcnt(0)""")
    srd(a, S_WS, 74, WS_SIZE)
    lane_setup(a, V_LANE, V_G, V_N, S_WAVE)
    a(f"""s_cmp_lg_u32 s{S_WAVE}, 0
s_cbranch_scc1 RK_NORANK
v_mov_b32 v10, 1
s_lshl_b32 s79, s78, 2
v_mov_b32 v11, s79
s_mov_b64 exec, 1
global_atomic_add v12, v11, v10, s[76:77] sc0 sc1
s_waitcnt vmcnt(0)
v_mov_b32 v11, 0
ds_write_b32 v11, v12
s_waitcnt lgkmcnt(0)
s_mov_b64 exec, -1""")
    a.label("RK_NORANK")
    a(f"""s_barrier
v_mov_b32 v11, 0
ds_read_b32 v12, v11
s_waitcnt lgkmcnt(0)
v_readfirstlane_b32 s79, v12
s_barrier
s_cmp_lt_u32 s78, 4
s_cbranch_scc1 RK_REC
s_cmp_lg_u32 s78, 4
s_cbranch_scc1 RK_END
s_cmp_ge_u32 s79, 4
s_cbranch_scc1 RK_END
s_cmp_lg_u32 s{S_WAVE}, 0
s_cbranch_scc1 RK_END""")
    probe(a, 79, 78, "RK_PR", 76)
    a("s_endpgm")
    a.label("RK_REC")
    a(f"""s_cmp_ge_u32 s79, 32
s_cbranch_scc1 RK_END
s_lshl_b32 s{S_J}, s78, 5
s_add_u32 s{S_J}, s{S_J}, s79""")
    rec_entry(a)
    rec_dispatch(a)
    a.label("RK_END")
    a("s_endpgm")
    return name, a.finalize(), kernel_desc(name, 512, 102, 256)

def read_polarity(a, pfx):
    a(f"s_load_dwordx2 s[96:97], s[0:1], {KA['dbg']}")
    a(f"v_and_b32 v{V_T2}, 15, v{V_LANE}")
    a(f"v_lshlrev_b32 v{V_T2}, 2, v{V_T2}")
    a(f"s_mov_b32 s{S_RETRY}, 0")
    a("s_waitcnt lgkmcnt(0)")
    a.label(f"{pfx}_MD")
    a(f"global_load_dword v{V_T}, v{V_T2}, s[96:97] sc1")
    a("s_waitcnt vmcnt(0)")
    a(f"s_mov_b32 s{S_T}, 0")
    a(f"s_mov_b32 s{S_MODE}, 1")
    for x in range(8):
        a(f"v_readlane_b32 s{S_T2}, v{V_T}, {x}")
        a(f"s_add_u32 s{S_T}, s{S_T}, s{S_T2}")
        a(f"s_cmp_eq_u32 s{S_T2}, 32")
        a(f"s_cselect_b32 s{S_MODE}, s{S_MODE}, 0")
    a(f"v_readlane_b32 s{S_T2}, v{V_T}, {DB_INIT//4}")
    a(f"v_readlane_b32 s{S_T3}, v{V_T}, {DB_POL//4}")
    a(f"s_cmp_ge_u32 s{S_T}, 256")
    a(f"s_cbranch_scc0 {pfx}_MDN")
    if INITWAIT[0]:
        a(f"s_cmp_ge_u32 s{S_T2}, 80")
        a(f"s_cbranch_scc0 {pfx}_MDN")
    a(f"s_and_b32 s{S_T}, s{S_T3}, 0xaa")
    a(f"s_cmp_eq_u32 s{S_T}, 0xaa")
    a(f"s_cbranch_scc1 {pfx}_POLOK")
    a.label(f"{pfx}_MDN")
    a(f"""s_sleep 4
s_add_u32 s{S_RETRY}, s{S_RETRY}, 1
s_cmp_lt_u32 s{S_RETRY}, 0x200000
s_cbranch_scc1 {pfx}_MD
s_mov_b32 s{S_MODE}, 0""")
    a.label(f"{pfx}_POLOK")
    if OPT('FORCESLOW', 0): a(f"s_mov_b32 s{S_MODE}, 0")
    a(f"""s_and_b32 s{S_T}, s{S_T3}, 0x55
s_xor_b32 s{S_T}, s{S_T}, 0x44
s_bcnt1_i32_b32 s{S_T2}, s{S_T}
s_cmp_ge_u32 s{S_T2}, 3
s_cselect_b32 s{S_T}, 0x55, s{S_T}
s_cmp_le_u32 s{S_T2}, 1
s_cselect_b32 s{S_T}, 0, s{S_T}
s_xor_b32 s{S_T3}, s{S_T}, 0x44""")
    if OPT('FLIPPOL', 0): a(f"s_xor_b32 s{S_T3}, s{S_T3}, 0x55")
    for k, s in enumerate((S_CUR, S_N, S_NN, S_P)):
        a(f"""s_bfe_u32 s{S_T}, s{S_T3}, {(1<<16) | (2*k)}
s_lshl_b32 s{S_T}, s{S_T}, 13
s_add_u32 s{s}, s{S_T}, {RING + k*RING_SLOT}""")
```

```python
from gen_common import *
import gen_panel as P, gen_tok as T, gen_rec as R
import os
OPT=lambda k,d: type(d)(os.environ.get(k,d))

def tok_loop(a):
    from gen_tok import TS_WS, TS_OUT, TS_WAVE, TS_S, TS_I, TS_T, TS_T2, TS_T3, TV_LANE, TV_G, TV_N, TV_T, TV_T2
    V_WA = 13; V_WT = 14; V_Z = 15
    a(f"""s_load_dwordx2 s[40:41], s[0:1], {KA['out']}
s_load_dwordx2 s[48:49], s[0:1], {KA['dbg']}
s_waitcnt lgkmcnt(0)""")
    srd(a, TS_OUT, 40, OUT_BYTES)
    lane_setup(a, TV_LANE, TV_G, TV_N, TS_WAVE)
    T.tok_setup(a)
    a(f"v_mov_b32 v{V_Z}, 0")
    a.label("TOK_LOOP")
    a(f"""s_cmp_lg_u32 s{TS_WAVE}, 0
s_cbranch_scc1 TOK_NT
v_mov_b32 v{V_WT}, 1
v_mov_b32 v{V_WA}, {DB_TICKET}
s_mov_b64 exec, 1
global_atomic_add v{V_WT}, v{V_WA}, v{V_WT}, s[48:49] sc0 sc1
s_waitcnt vmcnt(0)
v_mov_b32 v{V_WA}, 65536
ds_write_b32 v{V_WA}, v{V_WT}
s_waitcnt lgkmcnt(0)
s_mov_b64 exec, -1""")
    a.label("TOK_NT")
    a(f"""s_barrier
v_mov_b32 v{V_WA}, 65536
ds_read_b32 v{V_WT}, v{V_WA}
s_waitcnt lgkmcnt(0)
v_readfirstlane_b32 s50, v{V_WT}
s_barrier
s_cmp_ge_u32 s50, 1024
s_cbranch_scc1 TOK_END
s_lshr_b32 s{TS_S}, s50, 4
s_and_b32 s{TS_I}, s50, 15
s_nop 0""")
    if OPT('SMOOTH', 0):
        a(f"s_cmp_lg_u32 s{TS_WAVE}, 0")
        a("s_cbranch_scc1 TOK_NOSM")
        a(f"v_mov_b32 v{V_WA}, {F_RPROG}")
        a(f"buffer_load_dword v{V_WT}, v{V_WA}, s[{TS_WS}:{TS_WS+3}], 0 offen sc1")
        a("s_waitcnt vmcnt(0)")
        a(f"v_readfirstlane_b32 s51, v{V_WT}")
        a(f"s_add_u32 s52, s{TS_S}, {OPT('SM_D', 6)}")
        a("s_cmp_ge_u32 s51, s52")
        a("s_cbranch_scc0 TOK_NOSM")
        a("s_cmp_ge_u32 s51, 58")
        a("s_cbranch_scc1 TOK_NOSM")
        a(f"s_sleep {OPT('SMOOTH', 0)}")
        a.label("TOK_NOSM")
    a(f"s_cmp_ge_u32 s{TS_I}, 8")
    a("s_cbranch_scc1 TOK_PU")
    a(f"s_cmp_lg_u32 s{TS_WAVE}, 0")
    a("s_cbranch_scc1 TOK_SC_GO")
    a(f"""v_mul_u32_u24 v{V_WT}, 21846, v{TV_LANE}
v_lshrrev_b32 v{V_WT}, 16, v{V_WT}
v_mul_u32_u24 v{V_WA}, 3, v{V_WT}
v_sub_u32 v{V_WA}, v{TV_LANE}, v{V_WA}
v_cmp_eq_u32 vcc, 0, v{V_WT}
v_mov_b32 v{V_WT}, {R_Q0}
v_cndmask_b32 v{V_WT}, 0, v{V_WT}, vcc
v_add_u32 v{V_WA}, v{V_WA}, v{V_WT}
s_mul_i32 s{TS_T}, s{TS_I}, 3
v_add_u32 v{V_WA}, s{TS_T}, v{V_WA}
v_lshlrev_b32 v{V_WA}, {PSH}, v{V_WA}
v_add_u32 v{V_WA}, {F_PROG}, v{V_WA}
s_lshl_b32 s51, s{TS_S}, 1
s_add_u32 s51, s51, 2""")
    wait_words(a, "TSC_W3", TS_WS, V_WA, V_WT, 51, s_cnt=52, sleep=16)
    a.label("TOK_SC_GO")
    a("s_barrier")
    def sc_mid():
        a(f"s_cmp_lg_u32 s{TS_WAVE}, 0")
        a("s_cbranch_scc1 TOK_SC_GO2")
        a(f"s_add_u32 s51, s{TS_S}, 1")
        a(f"s_min_u32 s53, s51, 62")
        a(f"v_mov_b32 v{V_WA}, {F_RPROG}")
        wait_words(a, "TSC_W0", TS_WS, V_WA, V_WT, 53, s_cnt=52, sleep=OPT('SL_RP', 10), far=(1, OPT('SL_FAR', 0), 54))
        a(f"""v_and_b32 v{V_WA}, 3, v{TV_LANE}
s_lshl_b32 s{TS_T}, s{TS_I}, 2
v_add_u32 v{V_WA}, s{TS_T}, v{V_WA}
v_lshlrev_b32 v{V_WA}, 9, v{V_WA}
v_add_u32 v{V_WA}, {F_REC}, v{V_WA}""")
        wait_words(a, "TSC_W1", TS_WS, V_WA, V_WT, 51, s_cnt=52, sleep=3)
        a.label("TOK_SC_GO2")
        a("s_barrier")
    T.emit_score(a, "MSC", mid=sc_mid)
    a("s_waitcnt vmcnt(0)")
    a("s_barrier")
    a(f"""s_cmp_lg_u32 s{TS_WAVE}, 0
s_cbranch_scc1 TOK_LOOP
s_lshl_b32 s{TS_T}, s{TS_S}, 7
s_lshl_b32 s{TS_T2}, s{TS_I}, 2
s_add_u32 s{TS_T}, s{TS_T}, s{TS_T2}
s_add_u32 s{TS_T}, s{TS_T}, {F_SC}
s_mov_b32 s51, 1""")
    publish_word(a, TS_WS, V_WT, V_Z, TS_T, 51)
    a("s_branch TOK_LOOP")
    a.label("TOK_PU")
    a(f"s_sub_u32 s{TS_I}, s{TS_I}, 8")
    a(f"s_cmp_lg_u32 s{TS_WAVE}, 0")
    a("s_cbranch_scc1 TOK_PU_GO")
    a(f"""v_and_b32 v{V_WA}, 31, v{TV_LANE}
v_lshlrev_b32 v{V_WA}, {PSH}, v{V_WA}
v_add_u32 v{V_WA}, {F_PROG + (R_U0 << PSH)}, v{V_WA}
s_add_u32 s51, s{TS_S}, 1""")
    wait_words(a, "TPU_W1", TS_WS, V_WA, V_WT, 51, s_cnt=52, sleep=16)
    a(f"""s_mul_i32 s{TS_T}, s{TS_I}, 5
s_lshr_b32 s{TS_T2}, s{TS_T}, 2
s_add_u32 s{TS_T}, s{TS_T}, 4
s_lshr_b32 s{TS_T}, s{TS_T}, 2
v_mov_b32 v{V_WA}, s{TS_T}
v_mov_b32 v{V_WT}, s{TS_T2}
v_and_b32 v{TV_T}, 1, v{TV_LANE}
v_cmp_eq_u32 vcc, 0, v{TV_T}
v_cndmask_b32 v{V_WA}, v{V_WA}, v{V_WT}, vcc
v_lshlrev_b32 v{V_WA}, {PSH}, v{V_WA}
v_add_u32 v{V_WA}, {F_PROG + (R_DN0 << PSH)}, v{V_WA}
s_lshl_b32 s51, s{TS_S}, 1
s_add_u32 s51, s51, 2""")
    wait_words(a, "TPU_W2", TS_WS, V_WA, V_WT, 51, s_cnt=52, sleep=16)
    a.label("TOK_PU_GO")
    a("s_barrier")
    def pu_mid():
        a(f"s_cmp_lg_u32 s{TS_WAVE}, 0")
        a("s_cbranch_scc1 TOK_PU_GO2")
        a(f"""s_add_u32 s51, s{TS_S}, 1
s_min_u32 s53, s51, 62
v_mov_b32 v{V_WA}, {F_RPROG}""")
        wait_words(a, "TPU_W5", TS_WS, V_WA, V_WT, 53, s_cnt=52, sleep=OPT('SL_RP', 10), far=(1, OPT('SL_FAR', 0), 54))
        a(f"""v_lshlrev_b32 v{V_WA}, 7, v{TV_LANE}
v_add_u32 v{V_WA}, {F_REC}, v{V_WA}""")
        wait_words(a, "TPU_W3", TS_WS, V_WA, V_WT, 51, s_cnt=52, sleep=6)
        a(f"v_add_u32 v{V_WA}, 8192, v{V_WA}")
        wait_words(a, "TPU_W4", TS_WS, V_WA, V_WT, 51, s_cnt=52, sleep=2)
        a(f"""s_lshl_b32 s{TS_T}, s{TS_S}, 7
s_add_u32 s{TS_T}, s{TS_T}, {F_SC}
v_and_b32 v{V_WA}, 7, v{TV_LANE}
v_lshlrev_b32 v{V_WA}, 2, v{V_WA}
v_add_u32 v{V_WA}, s{TS_T}, v{V_WA}""")
        wait_words(a, "TPU_W0", TS_WS, V_WA, V_WT, None, s_cnt=52, sleep=OPT('SL_SC', 3), imm_thr=1)
        a.label("TOK_PU_GO2")
        a("s_barrier")
    T.emit_pu(a, "MPU", mid=pu_mid)
    a("s_branch TOK_LOOP")
    a.label("TOK_END")
    dbgt(a, 56, op="max")
    trace(a, 4, 97)
    a("s_waitcnt vmcnt(0)")
    a("s_endpgm")

NINIT = 80
def gemm_init(a, P):
    import struct
    EX = 0
    a(f"""s_load_dwordx2 s[40:41], s[0:1], {KA['x']}
s_sub_u32 s62, s62, 48
s_mov_b32 s63, s62
s_waitcnt lgkmcnt(0)""")
    srd(a, 64, 40, S*D*2)
    def xloads():
        a(f"""s_lshl_b32 s42, s63, 4
v_add_u32 v104, s42, v3
v_mul_u32_u24 v104, 1280, v104
v_lshlrev_b32 v105, 4, v2
v_add_u32 v104, v104, v105
s_mul_i32 s42, s20, 320""")
        for p in range(5):
            a(f"buffer_load_dwordx4 {vr(16+4*p)}, v104, s[64:67], s42 offen offset:{p*64}")
    xloads()
    a(f"""s_mul_i32 s43, s62, 16800
v_lshlrev_b32 v106, 4, v0
v_add_u32 v106, s43, v106
v_mov_b32 v108, -1
v_mov_b32 v109, -1
v_mov_b32 v110, -1
v_mov_b32 v111, -1
v_mov_b32 v112, 0
v_mov_b32 v113, 0
v_mov_b32 v114, 0
v_mov_b32 v115, 0""")
    for slot in range(4):
        for r in range(4):
            a(f"s_mov_b32 s44, {RING + slot*RING_SLOT + r*4096}")
            a(f"buffer_store_dwordx4 {vr(108)}, v106, s[4:7], s44 offen sc1")
    a("v_cmp_gt_u32 vcc, 26, v0")
    a("s_and_saveexec_b64 s[46:47], vcc")
    a(f"s_cbranch_execz {P}_GI_NOP3")
    for slot in range(4):
        a(f"s_mov_b32 s44, {RING + slot*RING_SLOT + 16384}")
        a(f"buffer_store_dwordx4 {vr(108)}, v106, s[4:7], s44 offen sc1")
    a.label(f"{P}_GI_NOP3")
    a("s_mov_b64 exec, s[46:47]")
    a(f"""s_cmp_ge_u32 s62, 64
s_cbranch_scc1 {P}_GI_NOFL
s_cmp_lg_u32 s20, 0
s_cbranch_scc1 {P}_GI_NOFL
s_lshl_b32 s43, s62, 10
s_add_u32 s43, s43, {FLAGS}
v_lshlrev_b32 v107, 4, v1
buffer_store_dwordx4 {vr(112)}, v107, s[4:7], s43 offen sc1""")
    a.label(f"{P}_GI_NOFL")
    a("s_waitcnt vmcnt(16)")
    a.label(f"{P}_GI_LN")
    for r in range(20):
        a(f"v_lshlrev_b32 v{40+2*r}, 16, v{16+r}")
        a(f"v_and_b32 v{41+2*r}, 0xffff0000, v{16+r}")
    for k in range(4): a(f"v_add_f32 v{80+k}, v{40+k}, v{44+k}")
    for i in range(8, 40): a(f"v_add_f32 v{80+(i%4)}, v{80+(i%4)}, v{40+i}")
    a("v_add_f32 v80, v80, v81\nv_add_f32 v82, v82, v83\nv_add_f32 v80, v80, v82")
    def xreduce(r, t):
        a(f"v_mov_b32 v{t}, v{r}\nv_permlane16_swap_b32 v{r}, v{t}\nv_add_f32 v{r}, v{r}, v{t}")
        a(f"v_mov_b32 v{t}, v{r}\nv_permlane32_swap_b32 v{r}, v{t}\nv_add_f32 v{r}, v{r}, v{t}")
    def cross(r, off):
        a(f"""s_lshl_b32 s43, s20, 6
v_lshlrev_b32 v84, 2, v3
v_add_u32 v84, 132096, v84
v_add_u32 v85, s43, v84
s_mov_b32 exec_hi, 0
s_mov_b32 exec_lo, 0xffff
ds_write_b32 v85, v{r} offset:{EX+off}
s_mov_b64 exec, -1
s_waitcnt lgkmcnt(0)
s_barrier
ds_read_b32 v86, v84 offset:{EX+off}
ds_read_b32 v87, v84 offset:{EX+off+64}
ds_read_b32 v88, v84 offset:{EX+off+128}
ds_read_b32 v89, v84 offset:{EX+off+192}
s_waitcnt lgkmcnt(0)
v_add_f32 v86, v86, v87
v_add_f32 v88, v88, v89
v_add_f32 v{r}, v86, v88""")
    xreduce(80, 81)
    cross(80, 0)
    a(f"s_mov_b32 s45, 0x{struct.unpack('<I', struct.pack('<f', 1.0/640))[0]:08x}")
    a("v_mul_f32 v80, s45, v80")
    for i in range(40): a(f"v_sub_f32 v{40+i}, v{40+i}, v80")
    for k in range(4): a(f"v_mul_f32 v{90+k}, v{40+k}, v{40+k}")
    for i in range(4, 40): a(f"v_fmac_f32 v{90+(i%4)}, v{40+i}, v{40+i}")
    a("v_add_f32 v90, v90, v91\nv_add_f32 v92, v92, v93\nv_add_f32 v90, v90, v92")
    xreduce(90, 91)
    cross(90, 256)
    a("v_mul_f32 v90, s45, v90")
    a("v_add_f32 v90, 0x3727c5ac, v90")
    a("v_rsq_f32 v90, v90")
    for r in range(20):
        a(f"v_mul_f32 v{40+2*r}, v{40+2*r}, v90")
        a(f"v_mul_f32 v{41+2*r}, v{41+2*r}, v90")
        a(f"v_cvt_pk_bf16_f32 v{116+r}, v{40+2*r}, v{41+2*r}")
    a(f"""s_mul_i32 s43, s63, {20*1024}
s_mul_i32 s44, s20, {5*1024}
s_add_u32 s43, s43, s44
s_add_u32 s43, s43, {XN}
v_lshlrev_b32 v104, 4, v1""")
    for p in range(5):
        if p == 4: a("s_add_u32 s43, s43, 4096")
        a(f"buffer_store_dwordx4 {vr(116+4*p)}, v104, s[4:7], s43 offen offset:{(p%4)*1024} sc1")
    a(f"""s_add_u32 s63, s63, {NINIT}
s_cmp_ge_u32 s63, 128
s_cbranch_scc1 {P}_GI_END""")
    xloads()
    a("s_waitcnt vmcnt(0)")
    a("s_barrier")
    a(f"s_branch {P}_GI_LN")
    a.label(f"{P}_GI_END")
    a("s_waitcnt vmcnt(0)")
    a("s_barrier")
    a(f"""s_cmp_lg_u32 s20, 0
s_cbranch_scc1 {P}_GI_DONE
v_mov_b32 v110, 1
v_mov_b32 v111, {DB_INIT}
s_mov_b64 exec, 1
global_atomic_add v111, v110, s[76:77] sc1
s_mov_b64 exec, -1""")
    a.label(f"{P}_GI_DONE")

def wait_init(a, lbl):
    wait_dbg(a, lbl, 76, DB_INIT, 250, 251, 86, 88, thr=NINIT)

def gen_main_kernel(name="main_kernel"):
    a = Asm()
    kernel_header(a, name)
    if OPT('STAMP', 0): a("s_memtime s[100:101]")
    a(f"""s_cmp_ge_u32 s2, 256
s_cbranch_scc1 MK_END
s_load_dwordx2 s[74:75], s[0:1], {KA['ws']}
s_load_dwordx2 s[76:77], s[0:1], {KA['dbg']}
s_getreg_b32 s78, hwreg(HW_REG_XCC_ID)
s_and_b32 s78, s78, 7
s_waitcnt lgkmcnt(0)""")
    if OPT('FAKEXCC', 0):
        a("s_lshr_b32 s78, s2, 4\ns_min_u32 s78, s78, 7")
    srd(a, 4, 74, WS_SIZE)
    lane_setup(a, 1, 2, 3, 24)
    a(f"""s_cmp_lg_u32 s24, 0
s_cbranch_scc1 MK_NORANK
v_mov_b32 v10, 1
s_lshl_b32 s79, s78, 2
v_mov_b32 v11, s79
s_mov_b64 exec, 1
global_atomic_add v12, v11, v10, s[76:77] sc0 sc1
s_waitcnt vmcnt(0)
v_readfirstlane_b32 s79, v12
s_mov_b32 s80, s78
s_cmp_lt_u32 s79, 32
s_cbranch_scc1 MK_HAVE
v_mov_b32 v11, 32
global_atomic_add v12, v11, v10, s[76:77] sc0 sc1
s_waitcnt vmcnt(0)
v_readfirstlane_b32 s81, v12
s_mov_b64 exec, 0xff
v_lshlrev_b32 v11, 2, v1
s_mov_b32 s82, 0""")
    a.label("MK_OVW")
    a(f"""global_load_dword v12, v11, s[76:77] sc1
s_waitcnt vmcnt(0)
s_mov_b32 s83, 0""")
    for x in range(8):
        a(f"v_readlane_b32 s84, v12, {x}\ns_add_u32 s83, s83, s84")
    a(f"""s_cmp_ge_u32 s83, 256
s_cbranch_scc1 MK_OVK
s_sleep 8
s_add_u32 s82, s82, 1
s_cmp_lt_u32 s82, 0x200000
s_cbranch_scc1 MK_OVW""")
    a.label("MK_OVK")
    for x in range(8):
        a(f"""v_readlane_b32 s84, v12, {x}
s_min_u32 s84, s84, 32
s_sub_u32 s85, 32, s84
s_cmp_lt_u32 s81, s85
s_cbranch_scc0 MK_NX{x}
s_mov_b32 s80, {x}
s_add_u32 s79, s84, s81
s_branch MK_HAVE""")
        a.label(f"MK_NX{x}")
        a("s_sub_u32 s81, s81, s85")
    a("s_mov_b32 s80, 7\ns_mov_b32 s79, 31")
    a.label("MK_HAVE")
    a(f"""s_mov_b64 exec, 1
s_lshl_b32 s80, s80, 8
s_or_b32 s80, s80, s79
v_mov_b32 v12, s80
v_mov_b32 v11, 0
ds_write_b32 v11, v12
s_waitcnt lgkmcnt(0)
s_mov_b64 exec, -1""")
    a.label("MK_NORANK")
    a(f"""s_barrier
v_mov_b32 v11, 0
ds_read_b32 v12, v11
s_waitcnt lgkmcnt(0)
v_readfirstlane_b32 s79, v12
s_barrier
s_lshr_b32 s80, s79, 8
s_and_b32 s79, s79, 255
s_cmp_ge_u32 s80, 4
s_cbranch_scc1 MK_GEMM
s_lshl_b32 s{R.S_J}, s80, 5
s_add_u32 s{R.S_J}, s{R.S_J}, s79""")
    a(f"s_mov_b32 s97, s{R.S_J}")
    dbgt(a, 60, s_cond=R.S_J)
    trace(a, 0, 97)
    R.INITWAIT[0] = True
    R.rec_entry(a)
    R.rec_dispatch(a, flags=True)
    a.label("MK_GEMM")
    a(f"""s_lshl_b32 s51, s79, 2
s_sub_u32 s80, s80, 4
s_add_u32 s51, s51, s80
s_mov_b32 s{P.S_WAVE}, s24
s_lshl_b32 s{P.S_PROG}, s51, {PSH}
s_add_u32 s{P.S_PROG}, s{P.S_PROG}, {F_PROG}
s_add_u32 s97, s51, 128""")
    trace(a, 0, 97)
    a("s_mov_b32 s62, s51")
    a("s_mov_b32 s79, s51")
    a("s_cmp_lt_u32 s51, 48")
    a("s_cbranch_scc1 MK_NOINIT")
    gemm_init(a, "GI")
    a.label("MK_NOINIT")
    if OPT('DELAYW', 0):
        a(f"s_cmp_lt_u32 s51, {R_Q0}")
        a("s_cbranch_scc1 MK_NODLY")
        a(f"s_cmp_ge_u32 s51, {R_PROBE}")
        a("s_cbranch_scc1 MK_NODLY")
        n = OPT('DELAYW', 0)
        while n > 0:
            k = min(n, 127); a(f"s_sleep {k}"); n -= k
        a.label("MK_NODLY")
    a(f"""s_cmp_lt_u32 s51, {R_UP0}
s_cbranch_scc1 MK_QKV
s_cmp_lt_u32 s51, {R_DN0}
s_cbranch_scc1 MK_UP
s_cmp_lt_u32 s51, {R_U0}
s_cbranch_scc1 MK_DN
s_cmp_lt_u32 s51, {R_PROBE}
s_cbranch_scc1 MK_U
s_cmp_eq_u32 s51, {R_PROBE}
s_cbranch_scc0 MK_TOK""")
    R.probe(a, 24, 78, "MK_PR", 76)
    a("s_branch MK_TOK")
    a.label("MK_QKV")
    P.panel_role_setup(a, 'qkv', 51); P.emit_panel(a, 'qkv', 'MPQ', flags=True, init_hook=lambda: wait_init(a, "WI_Q"))
    a("s_branch MK_TOK")
    a.label("MK_UP")
    a(f"s_sub_u32 s51, s51, {R_UP0}")
    P.panel_role_setup(a, 'ffnup', 51); P.emit_panel(a, 'ffnup', 'MPU2', flags=True, init_hook=lambda: wait_init(a, "WI_U"))
    a("s_branch MK_TOK")
    a.label("MK_DN")
    a(f"s_sub_u32 s51, s51, {R_DN0}")
    P.panel_role_setup(a, 'down', 51); P.emit_panel(a, 'down', 'MPD', flags=True, init_hook=lambda: wait_init(a, "WI_D"))
    a("s_branch MK_TOK")
    a.label("MK_U")
    a(f"""s_sub_u32 s{T.US_H}, s51, {R_U0}
s_mov_b32 s{T.US_PROG}, s{P.S_PROG}
s_load_dwordx2 s[40:41], s[0:1], {KA['wo']}
s_waitcnt lgkmcnt(0)""")
    srd(a, T.US_WO, 40, H*E*D*2)
    T.emit_upanel(a, "MUP", flags=True, init_hook=lambda: wait_init(a, "WI_UP"))
    a.label("MK_TOK")
    if OPT('TOKLIM', 128) < 128:
        a(f"s_cmp_lt_u32 s79, {OPT('TOKLIM', 128)}")
        a("s_cbranch_scc1 MK_TOK2")
        a(f"s_cmp_ge_u32 s79, {R_PROBE}")
        a("s_cbranch_scc1 MK_TOK2")
        a("s_endpgm")
        a.label("MK_TOK2")
    trace(a, 3, 97)
    wait_init(a, "WI_T")
    a("s_barrier")
    tok_loop(a)
    a.label("MK_END")
    a("s_endpgm")
    return name, a.finalize(), kernel_desc(name, 512, 102, 256)
```

```python
from gen_common import *
import struct, os
OPT=lambda k,d: type(d)(os.environ.get(k,d))
def f2u(f): return struct.unpack('<I', struct.pack('<f', f))[0]

S_WS=4; S_WQ=8; S_WK=12; S_WV=16; S_WO=20
S_WAVE=24; S_H=25; S_C=26; S_J=27; S_STEP=28
S_P=29; S_CUR=30; S_N=31; S_NN=32
S_HI32=20
S_MQ=16
S_M8=34; S_H8=38
S_T=40; S_T2=41; S_T3=42; S_RETRY=43
S_KVG=44; S_UXG=45; S_UYG=46; S_KMG=47; S_RSB=48; S_KVL=49; S_KVR=50; S_RED=51; S_RSP=52; S_FLG=53
S_LB=54
S_COL=56
S_SCALE=60; S_MAXR=61
S_TS=62
S_M0=88
S_MODE=57
S_REF0=98
S_REF2=36
S_NOW=58
L_MEM=0; L_QKV=10240; L_KV=20480; KVB=24576
LDS_REC=131072
V_LANE=1; V_G=2; V_N=3; V_T=4; V_T2=5; V_L16=6
V_AGO=7; V_AGL=10; V_MRD=11; V_AGP=23
V_RSL=7
V_AST=12; V_KMS=15; V_APO=16; V_APL=19
V_RQ=20; V_IDX=21; V_RV=22; V_RSO=28; V_L4=29; V_AGS=30; V_ZERO=31
V_RSP=80
V_NINF=248; V_KVA=249
V_POLL=32; V_RING=48; V_ACC=88; V_PK=252; V_KXF=100; V_QF=148; V_KF=172; V_VF=196; V_S=220; V_UXF=232
V_Y=48; V_PU=64; V_UA=48; V_YF=220; V_SM=148
NT = [4, 4, 2]; T0 = [0, 4, 8]; P0 = [0, 2, 4]
KVX = L_KV ^ (L_KV+KVB)

def poll_check(a, regs, vt):
    r = list(regs)
    a(f"v_max3_u32 v{vt}, v{r[0]}, v{r[1]}, v{r[2]}")
    i = 3
    while i < len(r):
        if i + 1 < len(r):
            a(f"v_max3_u32 v{vt}, v{vt}, v{r[i]}, v{r[i+1]}"); i += 2
        else:
            a(f"v_max_u32 v{vt}, v{vt}, v{r[i]}"); i += 1
    a(f"v_cmp_eq_u32 vcc, -1, v{vt}")

def sleep(a, n):
    while n > 0:
        k = min(n, 127); a(f"s_sleep {k}"); n -= k

def mark(a, reg):
    a(f"s_memtime s[{reg}:{reg+1}]")

def wait_until(a, ref, delta):
    if delta <= 0: return
    a.uid += 1
    L = f"WU_{a.uid}"
    a.label(L)
    a(f"""s_memtime s[{S_NOW}:{S_NOW+1}]
s_waitcnt lgkmcnt(0)
s_sub_u32 s{S_NOW}, s{S_NOW}, s{ref}
s_cmp_ge_u32 s{S_NOW}, {delta}
s_cbranch_scc1 {L}_D
s_sub_u32 s{S_NOW}, {delta}, s{S_NOW}
s_cmp_lt_u32 s{S_NOW}, 96
s_cbranch_scc1 {L}
s_sleep 1
s_branch {L}""")
    a.label(f"{L}_D")

def stamp(a, idx):
    if OPT('STAMP', 0):
        a(f"s_memtime s[{S_TS+2*idx}:{S_TS+2*idx+1}]")

def racc(a, k):
    if OPT('STAMP', 0): a(f"s_add_u32 s{k}, s{k}, s{S_RETRY}")

def nearmap_v(a, v, vt):
    a(f"""v_lshrrev_b32 v{vt}, 13, v{v}
v_lshlrev_b32 v{vt}, 14, v{vt}
v_and_b32 v{v}, 0x1fff, v{v}
v_or_b32 v{v}, v{v}, v{vt}""")

def oob_mask(a, v, nlanes):
    a(f"""v_mov_b32 v{V_T}, 0x80000000
v_cmp_gt_u32 vcc, {nlanes}, v{V_LANE}
v_cndmask_b32 v{v}, v{V_T}, v{v}, vcc""")

V_AGB=48
def poll_loop(a, lbl, loads, nreg, acc, pre_issued=False, base=None, spec=None):
    a(f"s_mov_b32 s{S_RETRY}, 0")
    if pre_issued:
        a(f"s_branch {lbl}_W")
    a.label(lbl)
    for x in loads: a(x)
    if pre_issued: a.label(f"{lbl}_W")
    a("s_waitcnt vmcnt(0)")
    if spec: spec()
    b0 = V_POLL if base is None else base
    poll_check(a, range(b0, b0+nreg), V_T)
    a(f"""s_cbranch_vccz {lbl}_OK
s_add_u32 s{S_RETRY}, s{S_RETRY}, 1
s_cmp_lt_u32 s{S_RETRY}, s{S_MAXR}
s_cbranch_scc1 {lbl}
s_mov_b32 s{S_MAXR}, 0""")
    a.label(f"{lbl}_OK")
    racc(a, acc)

CURMODE = [None]
def RSLOC(): return OPT('RSLOC', 0) and not OPT('STAMP', 0)
INITWAIT = [False]
def store_mode(a, lines):
    if CURMODE[0] is not None:
        for x in lines: a(x.replace(' SCX', '' if CURMODE[0] else ' sc1'))
        return
    if OPT('AFAST', 1) == 0:
        for x in lines: a(x.replace(' SCX', ' sc1'))
        return
    a.uid += 1
    L = f"SM_{a.uid}"
    a(f"s_cmp_eq_u32 s{S_MODE}, 0")
    a(f"s_cbranch_scc1 {L}_S")
    for x in lines: a(x.replace(' SCX', ''))
    a(f"s_branch {L}_E")
    a.label(f"{L}_S")
    for x in lines: a(x.replace(' SCX', ' sc1'))
    a.label(f"{L}_E")

def wait_mode(a, ref, fast, slow):
    if CURMODE[0] is not None:
        wait_until(a, ref, fast if CURMODE[0] else slow); return
    if OPT('AFAST', 1) == 0:
        wait_until(a, ref, slow); return
    a.uid += 1
    L = f"WM_{a.uid}"
    a(f"s_cmp_eq_u32 s{S_MODE}, 0")
    a(f"s_cbranch_scc1 {L}_S")
    wait_until(a, ref, fast)
    a(f"s_branch {L}_E")
    a.label(f"{L}_S")
    wait_until(a, ref, slow)
    a.label(f"{L}_E")

def poll2(a, lbl, mk_loads, nreg, baseA, baseB, acc, stage, gap=2):
    LA = mk_loads(baseA); LB = mk_loads(baseB); n = len(LA)
    a(f"s_mov_b32 s{S_RETRY}, 0")
    for x in LA: a(x)
    if gap: a(f"s_sleep {gap}")
    a.label(lbl)
    for x in LB: a(x)
    a(f"s_waitcnt vmcnt({n})")
    poll_check(a, range(baseA, baseA+nreg), V_T)
    a(f"s_cbranch_vccz {lbl}_GA")
    for x in LA: a(x)
    a(f"s_waitcnt vmcnt({n})")
    poll_check(a, range(baseB, baseB+nreg), V_T)
    a(f"""s_cbranch_vccz {lbl}_GB
s_add_u32 s{S_RETRY}, s{S_RETRY}, 1
s_cmp_lt_u32 s{S_RETRY}, s{S_MAXR}
s_cbranch_scc1 {lbl}
s_mov_b32 s{S_MAXR}, 0""")
    a.label(f"{lbl}_GB")
    racc(a, acc)
    stage(baseB)
    a(f"s_branch {lbl}_E")
    a.label(f"{lbl}_GA")
    racc(a, acc)
    stage(baseA)
    a.label(f"{lbl}_E")

def ag_poll4(a, pfx, w):
    if w >= 2: wait_mode(a, S_REF2, OPT('T_AGF', 0), OPT('T_AG', 650))
    else: wait_until(a, 96, OPT('T_D01', 2600))
    loads = [f"buffer_load_dwordx4 {vr(V_AGB+4*k)}, v{V_AGP+k}, s[{S_WS}:{S_WS+3}], s{S_P} offen sc1" for k in range(3)]
    poll_loop(a, f"{pfx}_AGP", loads, 12, 92, base=V_AGB)
    a(f"ds_write_b128 v{V_AGL}, {vr(V_AGB)}")
    a(f"ds_write_b128 v{V_AGL}, {vr(V_AGB+4)} offset:1024")
    a("s_mov_b32 exec_hi, 0")
    a(f"ds_write_b128 v{V_AGL}, {vr(V_AGB+8)} offset:2048")
    a("s_mov_b64 exec, -1")

def ag_poll(a, pfx, w):
    if OPT('D4', 1): return ag_poll4(a, pfx, w)
    wait_mode(a, S_REF2, OPT('T_AGF', 0), OPT('T_AG', 650))
    base = (w-2)*5
    def mk(b): return [f"buffer_load_dwordx4 {vr(b+4*k)}, v{V_AGP+k}, s[{S_WS}:{S_WS+3}], s{S_P} offen sc1" for k in range(5)]
    def stage(b):
        for k in range(5):
            a(f"ds_write_b128 v{V_L16}, {vr(b+4*k)} offset:{L_MEM + (base+k)*1024}")
    if CURMODE[0] and OPT('POLL2', 0):
        poll2(a, f"{pfx}_AGP", mk, 20, 172, 196, 92, stage, gap=OPT('GAPD', 2))
    else:
        if OPT('SPEC', 0): poll_loop(a, f"{pfx}_AGP", mk(V_AGB), 20, 92, base=V_AGB, spec=lambda: stage(V_AGB))
        else:
            poll_loop(a, f"{pfx}_AGP", mk(V_AGB), 20, 92, base=V_AGB)
            stage(V_AGB)

def reduce_blocks(a, pfx, nb, SEL, base_reg, s_poll, v_ags, acc, apk, s_loc0=None, s_loc=None, sqbase=None):
    loads = []
    LOCAL = CURMODE[0] and RSLOC()
    if LOCAL:
        a(f"s_lshr_b32 s{S_NOW}, s{S_J}, 5")
        a(f"s_xor_b32 s{S_NOW+1}, s{S_CUR}, 8192")
        for b in range(nb):
            a(f"s_add_u32 s{s_loc[b]}, s{s_loc0[b]}, s{S_NOW+1}")
        for b in range(nb):
            for q in range(4):
                sq = sqbase + 4*b + q
                a(f"s_add_u32 s{sq}, s{s_poll[b]}, {q*1024}")
                a(f"s_cmp_eq_u32 s{S_NOW}, {q}")
                a(f"s_cselect_b32 s{sq}, s{s_loc[b]}, s{sq}")
                loads.append(f"buffer_load_dwordx4 {vr(base_reg+16*b+4*q)}, v{V_L16}, s[{S_WS}:{S_WS+3}], s{sq} offen sc1")
    else:
        for b in range(nb):
            for q in range(4):
                loads.append(f"buffer_load_dwordx4 {vr(base_reg+16*b+4*q)}, v{V_L16}, s[{S_WS}:{S_WS+3}], s{s_poll[b]} offen offset:{q*1024} sc1")
    poll_loop(a, f"{pfx}_RP", loads, 16*nb, 94, base=base_reg)
    stamp(a, 7)
    for q in range(4):
        for b in range(nb):
            c = "0" if q == 0 else vr(acc+8*b)
            a(f"v_mfma_f32_16x16x32_bf16 {vr(acc+8*b)}, {vr(SEL)}, {vr(base_reg+16*b+4*q)}, {c}")
    for b in range(nb):
        for r in range(4):
            a(f"v_add_f32_dpp v{acc+8*b+4+r}, v{acc+8*b+r}, v{acc+8*b+r} row_ror:8 row_mask:0xf bank_mask:0xf")
    if nb == 2:
        for r in range(4): a(f"v_cndmask_b32 v{acc+4+r}, v{acc+4+r}, v{acc+12+r}, s[{S_H8}:{S_H8+1}]")
    a(f"v_cvt_pk_bf16_f32 v{apk}, v{acc+4}, v{acc+5}")
    a(f"v_cvt_pk_bf16_f32 v{apk+1}, v{acc+6}, v{acc+7}")
    a(f"v_mov_b32 v{apk+2}, v{apk}\nv_mov_b32 v{apk+3}, v{apk+1}")
    a(f"v_mov_b32 v{apk+4}, v{apk}\nv_mov_b32 v{apk+5}, v{apk+1}")
    a(f"v_permlane16_swap_b32 v{apk+4}, v{apk+2}")
    a(f"v_permlane16_swap_b32 v{apk+5}, v{apk+3}")
    store_mode(a, [f"buffer_store_dwordx4 {vr(apk)}, v{v_ags}, s[{S_WS}:{S_WS+3}], s{S_CUR} offen SCX"])

def reduce2(a, pfx, SEL, base_reg, v_off, v_ags, acc, apk):
    loads = [f"buffer_load_dwordx4 {vr(base_reg+4*q)}, v{v_off}, s[{S_WS}:{S_WS+3}], s{S_CUR} offen offset:{q*512} sc1" for q in range(8)]
    poll_loop(a, f"{pfx}_RP", loads, 32, 94, base=base_reg)
    stamp(a, 7)
    for q in range(8):
        c = "0" if q == 0 else vr(acc)
        a(f"v_mfma_f32_16x16x32_bf16 {vr(acc)}, {vr(SEL)}, {vr(base_reg+4*q)}, {c}")
    a(f"v_cvt_pk_bf16_f32 v{apk}, v{acc}, v{acc+1}")
    a(f"v_cvt_pk_bf16_f32 v{apk+1}, v{acc+2}, v{acc+3}")
    store_mode(a, [f"buffer_store_dwordx2 {vr(apk,2)}, v{v_ags}, s[{S_WS}:{S_WS+3}], s{S_CUR} offen SCX"])

def sel_setup(a, SEL):
    for k in range(4):
        a(f"""v_mov_b32 v{SEL+k}, 0
v_mov_b32 v{V_T}, 0x3f80
v_cmp_eq_u32 vcc, {2*k}, v{V_N}
v_cndmask_b32 v{SEL+k}, v{SEL+k}, v{V_T}, vcc
v_mov_b32 v{V_T}, 0x3f800000
v_cmp_eq_u32 vcc, {2*k+1}, v{V_N}
v_cndmask_b32 v{SEL+k}, v{SEL+k}, v{V_T}, vcc""")

def smap(a, s, t):
    a(f"""s_lshr_b32 s{t}, s{s}, 13
s_lshl_b32 s{t}, s{t}, 14
s_and_b32 s{s}, s{s}, 0x1fff
s_or_b32 s{s}, s{s}, s{t}
s_add_u32 s{s}, s{s}, {nearmap(RS_LOG)}""")

def loc_off(a, s_cb, s_out, s_tmp):
    a(f"""s_lshr_b32 s{s_out}, s{S_J}, 5
s_mul_i32 s{s_out}, s{s_out}, 81920
s_lshl_b32 s{s_tmp}, s{s_cb}, 10
s_add_u32 s{s_out}, s{s_out}, s{s_tmp}""")
    smap(a, s_out, s_tmp)

def rs_local_lane(a, v):
    a(f"""v_lshlrev_b32 v{v}, 10, v{V_G}
v_and_b32 v{V_T}, 7, v{V_LANE}
v_lshlrev_b32 v{V_T}, 4, v{V_T}
v_add_u32 v{v}, v{v}, v{V_T}
s_and_b32 s{S_T}, s{S_H}, 7
s_lshl_b32 s{S_T}, s{S_T}, 7
v_add_u32 v{v}, s{S_T}, v{v}""")

def blk_off(a, s_cb, s_out, s_tmp):
    a(f"""s_lshr_b32 s{s_out}, s{s_cb}, 1
s_lshl_b32 s{s_out}, s{s_out}, 14
s_and_b32 s{s_tmp}, s{s_cb}, 1
s_lshl_b32 s{s_tmp}, s{s_tmp}, 12
s_add_u32 s{s_out}, s{s_out}, s{s_tmp}
s_add_u32 s{s_out}, s{s_out}, {nearmap(RS_LOG)}""")

def rotate_slots(a):
    a(f"""s_mov_b32 s{S_T}, s{S_P}
s_mov_b32 s{S_P}, s{S_CUR}
s_mov_b32 s{S_CUR}, s{S_N}
s_mov_b32 s{S_N}, s{S_NN}
s_mov_b32 s{S_NN}, s{S_T}""")

def proj_stage(a, ntile, w8):
    for K in range(10):
        a(f"ds_read_b128 {vr(V_RING+4*K)}, v{V_L16} offset:{L_MEM + K*1024}")
    for t in range(ntile):
        for r in range(4): a(f"v_mov_b32 v{V_ACC+4*t+r}, 0")
    for K in range(10):
        a(f"s_waitcnt lgkmcnt({9-K})")
        for t in range(ntile):
            a(f"v_smfmac_f32_16x16x64_bf16 {vr(V_ACC+4*t)}, {vr(V_RING+4*K)}, {w8(t,K)}, v{V_IDX}")

def pack_pair(x, y, pk):
    L = [f"v_permlane32_swap_b32 v{x+r}, v{y+r}" for r in range(4)]
    L += [f"v_add_f32 v{x+r}, v{x+r}, v{y+r}" for r in range(4)]
    L += [f"v_cvt_pk_bf16_f32 v{pk}, v{x}, v{x+1}", f"v_cvt_pk_bf16_f32 v{pk+1}, v{x+2}, v{x+3}"]
    return L

def ux_load(a, w, flags, pfx):
    nt = NT[w]
    if flags:
        a.uid += 1
        a(f"s_add_u32 s{S_UXT}, s{S_UXT}, 1")
        a(f"s_min_u32 s{S_T3}, s{S_UXT}, 64")
        wait_words(a, f"{pfx}_WUX{a.uid}", S_WS, V_UXA, V_T, S_T3, S_UXC, 1, S_T2, 23)
    for t in range(nt):
        a(f"buffer_load_dwordx4 {vr(V_UXF+4*t)}, v{V_L16}, s[{S_WS}:{S_WS+3}], s{S_UXG} offen offset:{t*1024} sc1")
    a(f"s_add_u32 s{S_UXG}, s{S_UXG}, {32*40*1024}")

def idle_phase(a, w, woq):
    if OPT('UXRD', 0):
        a(f"v_add_u32 v{V_T}, s{S_KVR}, v{V_L16}")
        for f in range(12):
            a(f"ds_read_b128 {vr(V_KXF+4*f)}, v{V_T} offset:{f*1024}")
        a("s_waitcnt lgkmcnt(0)")
        a(f"s_xor_b32 s{S_KVR}, s{S_KVR}, {KVX}")
        return
    nt = NT[w]
    a(f"v_add_u32 v{V_T}, s{S_KVR}, v{V_L16}")
    for f in range(12):
        a(f"ds_read_b128 {vr(V_QF+4*f)}, v{V_T} offset:{12288 + f*1024}")
        if f == 7: a("s_waitcnt lgkmcnt(4)")
    a("s_waitcnt lgkmcnt(0)")
    for f in range(12):
        a(f"ds_read_b128 {vr(V_KXF+4*f)}, v{V_T} offset:{f*1024}")
    for p in range(6):
        for t in range(nt):
            for tt in range(2):
                d = V_UA + 8*t + 4*tt
                c = "0" if p == 0 else vr(d)
                a(f"v_mfma_f32_16x16x32_bf16 {vr(d)}, {vr(V_QF+4*(tt*6+p))}, {woq(t,p)}, {c}")
    for t in range(nt):
        for k in range(4):
            tt = k >> 1
            d = V_UA + 8*t + 4*tt + 2*(k & 1)
            a(f"v_cvt_pk_bf16_f32 v{V_UXF+4*t+k}, v{d}, v{d+1}")
        a(f"s_add_u32 s{S_T}, s{S_UXG}, {t*1024}")
        if OPT('UXST', 0): a(f"buffer_store_dwordx4 {vr(V_UXF+4*t)}, v{V_L16}, s[{S_WS}:{S_WS+3}], s{S_T} offen sc1")
    a(f"s_add_u32 s{S_UXG}, s{S_UXG}, {32*40*1024}")
    a("s_waitcnt lgkmcnt(0)")
    a(f"s_xor_b32 s{S_KVR}, s{S_KVR}, {KVX}")

S_UXT=88; S_UXC=89; V_UXA=11
S_KVT=33
S_RLB=18
S_RL0=19; S_RL1=95
AP6 = [16, 17, 18, 19, 7, 8]
V_RSOL=9
S_KVC=21
def kv_dma(a, flags=False, pfx='', w=0):
    if w < 2:
        if flags:
            a.uid += 1
            a(f"s_add_u32 s{S_KVT}, s{S_KVT}, 2")
            a(f"s_min_u32 s{S_T3}, s{S_KVT}, 128")
            wait_words(a, f"{pfx}_WKV{a.uid}", S_WS, V_KVA, V_T, S_T3, 22, 2 if OPT('UXRD', 0) else 4, S_T2, 23)
        if OPT('UXRD', 0):
            for (k0, n) in ((0, 4), (4, 2)):
                a(f"s_add_u32 m0, s{S_KVL}, {w*6144 + k0*1024}")
                a(f"s_add_u32 s{S_T}, s{S_KVG}, {k0*1024}")
                for j in range(n):
                    a(f"buffer_load_dwordx4 v{V_L16}, s[{S_WS}:{S_WS+3}], s{S_T} offen offset:{j*1024} sc1 lds")
        else:
            for k in range(3):
                a(f"s_add_u32 m0, s{S_KVL}, {w*12288 + k*4096}")
                a(f"s_add_u32 s{S_T}, s{S_KVG}, {k*4096}")
                for j in range(4):
                    a(f"buffer_load_dwordx4 v{V_L16}, s[{S_WS}:{S_WS+3}], s{S_T} offen offset:{j*1024} sc1 lds")
        a(f"s_add_u32 s{S_KVG}, s{S_KVG}, {32*12288}")
    a(f"s_xor_b32 s{S_KVL}, s{S_KVL}, {KVX}")

def kv_dma_svc(a, pfx):
    a.uid += 1
    a(f"s_add_u32 s{S_KVT}, s{S_KVT}, 2")
    a(f"s_min_u32 s{S_T3}, s{S_KVT}, 128")
    wait_words(a, f"{pfx}_WKS{a.uid}", S_WS, V_KVA, V_T, S_T3, 22, 4, S_T2, 23)
    for m in range(2):
        for k in range(3):
            a(f"s_add_u32 m0, s{S_KVL}, {m*12288 + k*4096}")
            a(f"s_add_u32 s{S_T}, s{S_KVG}, {m*(VX-KX) + k*4096}")
            for j in range(4):
                a(f"buffer_load_dwordx4 v{V_L16}, s[{S_WS}:{S_WS+3}], s{S_T} offen offset:{j*1024} sc1 lds")
    a(f"s_add_u32 s{S_KVG}, s{S_KVG}, {32*12288}")
    a(f"s_xor_b32 s{S_KVL}, s{S_KVL}, {KVX}")

def softmax_lists():
    X = V_SM; MX = V_SM+6; TM = V_SM+7; RS_ = V_SM+8; PT = V_SM+12; PM = V_SM+10; T2 = V_SM+16
    L = []
    for r in range(4): L.append(f"v_cndmask_b32 v{X+r}, v{V_S+4+r}, v{V_S+8+r}, s[{S_H8}:{S_H8+1}]")
    L.append(f"v_cndmask_b32 v{X+4}, v{V_S}, v{V_S+2}, s[{S_H8}:{S_H8+1}]")
    L.append(f"v_cndmask_b32 v{X+5}, v{V_S+1}, v{V_S+3}, s[{S_H8}:{S_H8+1}]")
    L.append(f"v_max3_f32 v{MX}, v{X}, v{X+1}, v{X+2}")
    L.append(f"v_max3_f32 v{TM}, v{X+3}, v{X+4}, v{X+5}")
    L.append(f"v_max_f32 v{MX}, v{MX}, v{TM}")
    L.append(f"v_max_f32_dpp v{MX}, v{MX}, v{MX} row_ror:8 row_mask:0xf bank_mask:0xf")
    L += [f"v_mov_b32 v{TM}, v{MX}", f"v_permlane16_swap_b32 v{MX}, v{TM}", f"v_max_f32 v{MX}, v{MX}, v{TM}"]
    L += [f"v_mov_b32 v{TM}, v{MX}", f"v_permlane32_swap_b32 v{MX}, v{TM}", f"v_max_f32 v{MX}, v{MX}, v{TM}"]
    L.append(f"v_mul_f32 v{MX}, s{S_SCALE}, v{MX}")
    for j in range(6): L.append(f"v_fma_f32 v{X+j}, v{X+j}, s{S_SCALE}, -v{MX}")
    for j in range(6): L.append(f"v_exp_f32 v{X+j}, v{X+j}")
    L.append(f"v_cvt_pk_bf16_f32 v{PT}, v{X}, v{X+1}")
    L.append(f"v_cvt_pk_bf16_f32 v{PT+1}, v{X+2}, v{X+3}")
    L.append(f"v_cvt_pk_bf16_f32 v{PM}, v{X+4}, v{X+5}")
    L.append(f"v_mov_b32_dpp v{PT+2}, v{PT} row_ror:8 row_mask:0xf bank_mask:0xf")
    L.append(f"v_mov_b32_dpp v{PT+3}, v{PT+1} row_ror:8 row_mask:0xf bank_mask:0xf")
    L.append(f"v_mov_b32_dpp v{PM+1}, v{PM} row_ror:8 row_mask:0xf bank_mask:0xf")
    M = [f"v_cndmask_b32 v{X+4}, v{X+4}, v{V_ZERO}, s[{S_HI32}:{S_HI32+1}]",
         f"v_cndmask_b32 v{X+5}, v{X+5}, v{V_ZERO}, s[{S_HI32}:{S_HI32+1}]",
         f"v_add_f32 v{RS_}, v{X}, v{X+1}", f"v_add_f32 v{TM}, v{X+2}, v{X+3}", f"v_add_f32 v{RS_+1}, v{X+4}, v{X+5}",
         f"v_add_f32 v{RS_}, v{RS_}, v{TM}", f"v_add_f32 v{RS_}, v{RS_}, v{RS_+1}",
         f"v_add_f32_dpp v{RS_}, v{RS_}, v{RS_} row_ror:8 row_mask:0xf bank_mask:0xf",
         f"v_mov_b32 v{TM}, v{RS_}", f"v_permlane16_swap_b32 v{RS_}, v{TM}", f"v_add_f32 v{RS_}, v{RS_}, v{TM}",
         f"v_mov_b32 v{TM}, v{RS_}", f"v_permlane32_swap_b32 v{RS_}, v{TM}", f"v_add_f32 v{RS_}, v{RS_}, v{TM}",
         f"v_rcp_f32 v{RS_}, v{RS_}"]
    return PT, PM, RS_, L, M

def gi(a, v):
    a(f"""v_lshlrev_b32 v{v}, 7, v{V_G}
v_and_b32 v{V_T}, 7, v{V_LANE}
v_lshlrev_b32 v{V_T}, 4, v{V_T}
v_add_u32 v{v}, v{v}, v{V_T}""")

def rs_lane(a, v):
    a(f"""v_lshrrev_b32 v{v}, 1, v{V_G}
v_lshlrev_b32 v{v}, 14, v{v}
v_and_b32 v{V_T}, 1, v{V_G}
v_lshlrev_b32 v{V_T}, 12, v{V_T}
v_add_u32 v{v}, v{v}, v{V_T}
v_and_b32 v{V_T}, 7, v{V_LANE}
v_lshlrev_b32 v{V_T}, 4, v{V_T}
v_add_u32 v{v}, v{v}, v{V_T}
s_lshl_b32 s{S_T}, s{S_H}, 7
v_add_u32 v{v}, s{S_T}, v{v}""")

def coop_load(a, w, wreg):
    stride = H*E*2
    VG, VT = V_POLL, V_POLL+1
    a(f"""v_lshrrev_b32 v{V_T}, 3, v{V_LANE}
v_add_u32 v{V_T}, {8*w}, v{V_T}
s_mov_b32 s{S_LB+1}, {stride}
v_mul_lo_u32 v{VG}, v{V_T}, s{S_LB+1}
v_and_b32 v{V_T}, 7, v{V_LANE}
v_lshlrev_b32 v{V_T}, 4, v{V_T}
v_add_u32 v{VG}, v{VG}, v{V_T}
v_bfe_u32 v{VT}, v{V_LANE}, 4, 1
v_lshlrev_b32 v{VT}, 4, v{VT}
v_bfe_u32 v{V_T}, v{V_LANE}, 5, 1
v_lshlrev_b32 v{V_T}, 3, v{V_T}
v_add_u32 v{VT}, v{VT}, v{V_T}
v_bfe_u32 v{V_T}, v{V_LANE}, 2, 1
v_add_u32 v{VT}, v{VT}, v{V_T}
v_bfe_u32 v{V_T}, v{V_LANE}, 3, 1
v_lshlrev_b32 v{V_T}, 2, v{V_T}
v_add_u32 v{VT}, v{VT}, v{V_T}
v_lshlrev_b32 v{VT}, 7, v{VT}
v_and_b32 v{V_T}, 3, v{V_LANE}
v_lshlrev_b32 v{V_T}, 3, v{V_T}
v_add_u32 v{VT}, v{VT}, v{V_T}
s_mul_i32 s{S_COL}, s{S_H}, 384
s_mul_i32 s{S_T}, s{S_C}, 96
s_add_u32 s{S_COL}, s{S_COL}, s{S_T}
v_add_u32 v{VT+1}, 61440, v{VT}""")
    srds = (S_WQ, S_WK, S_WV)
    def issue(ph):
        buf = (ph & 1)*61440
        for pp in range(5):
            p = 5*ph + pp
            for m in range(3):
                a(f"s_add_u32 s{S_T}, s{S_COL}, {p*32*stride}")
                a(f"s_mov_b32 m0, {buf + (pp*3+m)*4096 + w*1024}")
                a(f"buffer_load_dwordx4 v{VG}, s[{srds[m]}:{srds[m]+3}], s{S_T} offen lds")
    VST = 64
    def issue_v(ph):
        for pp in range(5):
            p = 5*ph + pp
            for m in range(3):
                a(f"s_add_u32 s{S_T}, s{S_COL}, {p*32*stride}")
                a(f"buffer_load_dwordx4 {vr(VST + (ph-2)*60 + (pp*3+m)*4)}, v{VG}, s[{srds[m]}:{srds[m]+3}], s{S_T} offen")
    def put(ph):
        buf = (ph & 1)*61440
        for u in range(15):
            reg = VW if buf == 0 else VW+1
            a(f"ds_write_b128 v{reg}, {vr(VST + (ph-2)*60 + u*4)} offset:{u*4096}")
            if u % 6 == 5: a("s_waitcnt lgkmcnt(6)")
    def reads(ph):
        buf = (ph & 1)*61440
        n = 0
        for pp in range(5):
            p = 5*ph + pp
            if w < 3: items = [(0, w, p), (1, w, 20+p)]
            else: items = [(2, t, t*20+p) for t in range(3)]
            for (m, T, f) in items:
                o = buf + (pp*3+m)*4096 + T*32
                reg = VT if o + 256 < 65536 else VT+1
                oo = o if reg == VT else o - 61440
                a(f"ds_read_b64_tr_b16 {wreg.pair(f,0)}, v{reg} offset:{oo}")
                a(f"ds_read_b64_tr_b16 {wreg.pair(f,1)}, v{reg} offset:{oo+256}")
                n += 2
                if n % 12 == 0: a("s_waitcnt lgkmcnt(4)")
        a("s_waitcnt lgkmcnt(0)")
    if OPT('COOPV', 1):
        VW = V_POLL+3
        a(f"v_lshlrev_b32 v{VW}, 4, v{V_LANE}")
        a(f"v_add_u32 v{VW}, {w*1024}, v{VW}")
        a(f"v_add_u32 v{VW+1}, 61440, v{VW}")
        issue(0); issue(1); issue_v(2); issue_v(3)
        for ph in range(4):
            if ph < 2:
                a(f"s_waitcnt vmcnt({45 - 15*ph})")
            else:
                a(f"s_waitcnt vmcnt({15 if ph == 2 else 0})")
                put(ph)
                a("s_waitcnt lgkmcnt(0)")
            a("s_barrier")
            reads(ph)
            a("s_barrier")
        return
    issue(0); issue(1)
    for ph in range(4):
        a(f"s_waitcnt vmcnt({15 if ph < 3 else 0})")
        a("s_barrier")
        reads(ph)
        a("s_barrier")
        if ph + 2 < 4: issue(ph+2)

def main_wave(a, w, flags=False):
    pfx = f"RM{w}"
    nt = NT[w]
    wreg = WReg(0, 256, 0)
    mem0_load(a, w)
    w8 = lambda t, K: ar((t*20 + 2*K)*4, 8)
    woq = lambda t, p: wreg.quad(40 + t*6 + p)
    a(f"s_lshl_b32 s{S_LB}, s{S_WAVE}, 15")
    if OPT('COOP', 1):
        coop_load(a, w, wreg)
    else:
        a(f"""s_mul_i32 s{S_COL}, s{S_H}, 384
s_mul_i32 s{S_T}, s{S_C}, 96
s_add_u32 s{S_COL}, s{S_COL}, s{S_T}
s_add_u32 s{S_COL}, s{S_COL}, {w*32}""")
        units = []
        for p in range(20): units += [(S_WQ, S_COL, p*32*H*E*2), (S_WK, S_COL, p*32*H*E*2)]
        load_w2(a, units, lambda u, T, k: wreg.pair((u & 1)*20 + (u >> 1), k), 1, H*E*2, 2, V_LANE, V_POLL, V_POLL+1, V_T, S_T, S_LB)
    a(f"""s_mul_i32 s{S_COL}, s{S_H}, {192*1280}
s_mul_i32 s{S_T}, s{S_C}, 320
s_add_u32 s{S_COL}, s{S_COL}, s{S_T}
s_add_u32 s{S_COL}, s{S_COL}, {T0[w]*32}""")
    ng = nt//2
    units = [(S_WO, S_COL, g*64 + p*32*1280) for p in range(6) for g in range(ng)]
    load_w2(a, units, lambda u, T, k: wreg.pair(40 + ((u % ng)*2 + T)*6 + u // ng, k), 2, D*2, True, V_LANE, V_POLL, V_POLL+1, V_T, S_T, S_LB)
    if OPT('STAMP', 0): a("s_memtime s[78:79]\ns_waitcnt lgkmcnt(0)\ns_sub_u32 s95, s78, s100")
    common_setup(a, w)
    gi(a, V_KMS)
    a(f"v_add_u32 v{V_KMS}, {w*1024}, v{V_KMS}")
    a(f"""v_lshrrev_b32 v{V_AST}, 1, v{V_G}
v_mul_u32_u24 v{V_AST}, 3072, v{V_AST}
v_lshlrev_b32 v{V_T}, 4, v{V_N}
v_add_u32 v{V_AST}, v{V_AST}, v{V_T}
v_and_b32 v{V_T}, 1, v{V_G}
v_lshlrev_b32 v{V_T}, 3, v{V_T}
v_add_u32 v{V_AST}, v{V_AST}, v{V_T}
s_mul_i32 s{S_T}, s{S_C}, 3
s_add_u32 s{S_T}, s{S_T}, {w}
s_lshl_b32 s{S_T}, s{S_T}, 8
s_mul_i32 s{S_T2}, s{S_H}, 9216
s_add_u32 s{S_T}, s{S_T}, s{S_T2}
v_add_u32 v{V_AST}, s{S_T}, v{V_AST}""")
    nearmap_v(a, V_AST, V_T)
    a(f"""s_add_u32 s{S_T}, s{S_T2}, {w*2048}
v_add_u32 v{V_APO}, s{S_T}, v{V_L16}
v_add_u32 v{V_APO+1}, 1024, v{V_APO}
v_add_u32 v{V_APL}, {L_QKV + w*2048}, v{V_L16}""")
    nearmap_v(a, V_APO, V_T); nearmap_v(a, V_APO+1, V_T)
    if w == 2 and OPT('EARLYDMA', 0):
        for k in range(6):
            a(f"v_add_u32 v{AP6[k]}, s{S_T2}, v{V_L16}")
            if k: a(f"v_add_u32 v{AP6[k]}, {k*1024}, v{AP6[k]}")
            nearmap_v(a, AP6[k], V_T)
    a(f"""v_lshlrev_b32 v{V_RQ}, 2, v{V_G}
v_bfe_u32 v{V_T}, v{V_LANE}, 2, 2
v_add_u32 v{V_RQ}, v{V_RQ}, v{V_T}
v_lshlrev_b32 v{V_RQ}, 4, v{V_RQ}
v_and_b32 v{V_T}, 1, v{V_LANE}
v_lshlrev_b32 v{V_T}, 3, v{V_T}
v_add_u32 v{V_RQ}, v{V_RQ}, v{V_T}
v_add_u32 v{V_RQ}, {L_QKV}, v{V_RQ}""")
    a(f"""v_bfe_u32 v{V_RV}, v{V_LANE}, 5, 1
v_lshlrev_b32 v{V_RV}, 5, v{V_RV}
v_bfe_u32 v{V_T}, v{V_LANE}, 4, 1
v_lshlrev_b32 v{V_T}, 3, v{V_T}
v_add_u32 v{V_RV}, v{V_RV}, v{V_T}
v_bfe_u32 v{V_T}, v{V_LANE}, 2, 1
v_add_u32 v{V_RV}, v{V_RV}, v{V_T}
v_bfe_u32 v{V_T}, v{V_LANE}, 3, 1
v_lshlrev_b32 v{V_T}, 4, v{V_T}
v_add_u32 v{V_RV}, v{V_RV}, v{V_T}
v_bfe_u32 v{V_T}, v{V_LANE}, 1, 1
v_lshlrev_b32 v{V_T}, 1, v{V_T}
v_add_u32 v{V_RV}, v{V_RV}, v{V_T}
v_lshlrev_b32 v{V_RV}, 4, v{V_RV}
v_and_b32 v{V_T}, 1, v{V_LANE}
v_lshlrev_b32 v{V_T}, 3, v{V_T}
v_add_u32 v{V_RV}, v{V_RV}, v{V_T}
v_add_u32 v{V_RV}, {L_QKV+6144}, v{V_RV}""")
    rs_lane(a, V_RSO)
    rs_local_lane(a, V_RSOL)
    for P in range(nt//2):
        a(f"""s_lshr_b32 s{76+P}, s{S_J}, 5
s_mul_i32 s{76+P}, s{76+P}, 81920
s_mul_i32 s{S_T}, s{S_C}, {5*4096}
s_add_u32 s{76+P}, s{76+P}, s{S_T}
s_add_u32 s{76+P}, s{76+P}, {(P0[w]+P)*4096}""")
        smap(a, 76+P, S_T)
    a(f"""s_mul_i32 s{S_RSB}, s{S_C}, {5*32768}
s_add_u32 s{S_RSB}, s{S_RSB}, {nearmap(RS_LOG) + P0[w]*32768}
s_mul_i32 s{S_T}, s{S_H}, 12288
s_add_u32 s{S_KVG}, s{S_T}, {(KX + w*6144) if OPT('UXRD', 0) else (KX if w == 0 else VX)}
s_mul_i32 s{S_T}, s{S_H}, 40
s_mul_i32 s{S_T2}, s{S_C}, 10
s_add_u32 s{S_T}, s{S_T}, s{S_T2}
s_add_u32 s{S_T}, s{S_T}, {T0[w]}
s_lshl_b32 s{S_UXG}, s{S_T}, 10
s_add_u32 s{S_UXG}, s{S_UXG}, {UX}
s_lshl_b32 s{S_UYG}, s{S_T}, 8
s_add_u32 s{S_UYG}, s{S_UYG}, {UY}
s_mul_i32 s{S_KMG}, s{S_H}, 3072
s_add_u32 s{S_KMG}, s{S_KMG}, {KM}
s_mov_b32 s{S_KVL}, {L_KV}
s_mov_b32 s{S_KVR}, {L_KV}
s_lshl_b32 s{S_FLG}, s{S_J}, 7
s_add_u32 s{S_FLG}, s{S_FLG}, {F_REC}""")
    if w == 2:
        a(f"""s_and_b32 s{S_COL}, s{S_J}, 31
s_cmp_lt_u32 s{S_COL}, 16
s_cselect_b32 s{S_RED}, 1, 0
s_add_u32 s{S_COL}, s{S_COL}, 64""")
        blk_off(a, S_COL, S_RSP, S_T)
        loc_off(a, S_COL, 72, S_T)
        a(f"""s_lshr_b32 s{S_T}, s{S_J}, 5
s_mul_i32 s{S_T}, s{S_T}, 10240
s_add_u32 s{S_T}, s{S_T}, {AG_LOG}
s_lshl_b32 s{S_T3}, s{S_COL}, 7
s_add_u32 s{S_T}, s{S_T}, s{S_T3}
v_add_u32 v{V_AGS}, s{S_T}, v{V_L16}""")
        nearmap_v(a, V_AGS, V_T)
        oob_mask(a, V_AGS, 8)
        sel_setup(a, 240)
    if flags:
        a(f"""s_mul_i32 s{S_T}, s{S_H}, 6
s_lshr_b32 s{S_T2}, s{S_T}, 3
s_add_u32 s{S_T}, s{S_T}, 5
s_lshr_b32 s{S_T}, s{S_T}, 3
v_mov_b32 v{V_KVA}, s{S_T}
v_mov_b32 v{V_T}, s{S_T2}
v_and_b32 v{V_T2}, 1, v{V_LANE}
v_cmp_eq_u32 vcc, 0, v{V_T2}
v_cndmask_b32 v{V_KVA}, v{V_KVA}, v{V_T}, vcc
v_cmp_lt_u32 vcc, 1, v{V_LANE}
v_mov_b32 v{V_T}, {R_V0 if not OPT('UXRD', 0) else 0}
v_cndmask_b32 v{V_T}, 0, v{V_T}, vcc
v_add_u32 v{V_KVA}, v{V_KVA}, v{V_T}
v_lshlrev_b32 v{V_KVA}, {PSH}, v{V_KVA}
v_add_u32 v{V_KVA}, {F_PROG}, v{V_KVA}
s_mov_b32 s{S_KVT}, 0
s_mov_b32 s22, 0
s_add_u32 s{S_T}, s{S_H}, {R_U0}
s_lshl_b32 s{S_T}, s{S_T}, {PSH}
s_add_u32 s{S_T}, s{S_T}, {F_PROG}
v_mov_b32 v{V_UXA}, s{S_T}""")
    if flags and w == 0: trace(a, 1, S_J)
    read_polarity(a, pfx)
    if flags and w == 0: trace(a, 2, S_J)
    a("s_barrier")
    mem0_stage(a, w)
    a(f"s_mov_b32 s{S_UXT}, 0\ns_mov_b32 s{S_UXC}, 0")
    kv_dma(a, flags, pfx, w)
    if flags and w == 0: trace(a, 3, S_J)
    a("s_waitcnt vmcnt(0) lgkmcnt(0)")
    a("s_barrier")
    idle_phase(a, w, woq)
    if flags and w == 0:
        dbgt(a, 40, op="max")
        trace(a, 4, S_J)
        if int(os.environ.get('TRACE', 0)):
            a("s_memtime s[86:87]\ns_waitcnt lgkmcnt(0)")
            trace(a, 6, S_J, val=86)
    stamp(a, 0)
    if OPT('STAMP', 0): a(f"s_waitcnt lgkmcnt(0)\ns_sub_u32 s101, s{S_TS}, s100")
    pfx0 = pfx
    a(f"s_cmp_eq_u32 s{S_MODE}, 0")
    a(f"s_cbranch_scc1 {pfx0}S_B0")
    a(f"s_branch {pfx0}F_B0")
    for mode in (1, 0):
        CURMODE[0] = mode
        pfx = pfx0 + ("F" if mode else "S")
        main_loop(a, w, flags, pfx, nt, w8, woq)
    CURMODE[0] = None

def main_loop(a, w, flags, pfx, nt, w8, woq):
    wo8 = lambda t, K: ar((40 + t*6 + 2*K)*4, 8)
    a.label(f"{pfx}_LOOP")
    stamp(a, 0)
    if w == 2 or OPT('D4', 1): ag_poll(a, pfx, w)
    a.label(f"{pfx}_B0")
    if w < 2 and OPT('EARLYDMA', 0): a("s_waitcnt vmcnt(0)")
    a("s_waitcnt lgkmcnt(0)")
    a("s_barrier")
    mark(a, S_REF0)
    stamp(a, 1)
    if OPT('STEPTR', 0) and w == 1:
        a("s_waitcnt lgkmcnt(0)")
        a(f"v_mov_b32 v250, s{S_REF0}")
        a(f"s_lshl_b32 s86, s{S_J}, 8")
        a(f"s_lshl_b32 s87, s{S_STEP}, 2")
        a(f"s_add_u32 s86, s86, s87")
        a(f"s_add_u32 s86, s86, {TRACE + 65536}")
        a("v_mov_b32 v251, s86")
        a("s_mov_b64 exec, 1")
        a(f"buffer_store_dword v250, v251, s[{S_WS}:{S_WS+3}], 0 offen")
        a("s_mov_b64 exec, -1")
    proj_stage(a, 2, w8)
    for x in pack_pair(V_ACC, V_ACC+4, V_PK): a(x)
    store_mode(a, [f"buffer_store_dwordx2 {vr(V_PK,2)}, v{V_AST}, s[{S_WS}:{S_WS+3}], s{S_CUR} offen SCX"])
    stamp(a, 2)
    ED = OPT('EARLYDMA', 0)
    if ED and w < 2:
        a(f"s_cmp_lg_u32 s{S_STEP}, 0")
        a(f"s_cbranch_scc1 {pfx}_NOS1")
        kv_dma(a, flags, pfx, w)
        a("s_waitcnt vmcnt(0)")
        a.label(f"{pfx}_NOS1")
        a(f"s_cmp_ge_u32 s{S_STEP}, 62")
        a(f"s_cbranch_scc1 {pfx}_NOS2")
        kv_dma(a, flags, pfx, w)
        a.label(f"{pfx}_NOS2")
    elif not ED and (w < 2 or OPT('UXRD', 0)):
        a(f"s_cmp_lg_u32 s{S_STEP}, 0")
        a(f"s_cbranch_scc1 {pfx}_NOS1")
        if w < 2: kv_dma(a, flags, pfx, w)
        if OPT('UXRD', 0): ux_load(a, w, flags, pfx)
        a.label(f"{pfx}_NOS1")
    for t in range(nt):
        for r in range(4): a(f"v_mov_b32 v{V_Y+4*t+r}, 0")
    if ED:
        if w == 2:
            wait_mode(a, S_REF0, OPT('T_AF', 0), OPT('T_A', 1150))
            lds6 = [f"buffer_load_dwordx4 {vr(V_POLL+4*k) if k < 4 else vr(V_RSP+4*(k-4))}, v{AP6[k]}, s[{S_WS}:{S_WS+3}], s{S_CUR} offen sc1" for k in range(6)]
            a(f"s_mov_b32 s{S_RETRY}, 0")
            a.label(f"{pfx}_AP")
            for x in lds6: a(x)
            a("s_waitcnt vmcnt(0)")
            poll_check(a, list(range(V_POLL, V_POLL+16)) + list(range(V_RSP, V_RSP+8)), V_T)
            a(f"""s_cbranch_vccz {pfx}_AP_OK
s_add_u32 s{S_RETRY}, s{S_RETRY}, 1
s_cmp_lt_u32 s{S_RETRY}, s{S_MAXR}
s_cbranch_scc1 {pfx}_AP
s_mov_b32 s{S_MAXR}, 0""")
            a.label(f"{pfx}_AP_OK")
            racc(a, 93)
            for k in range(6):
                a(f"ds_write_b128 v{V_L16}, {vr(V_POLL+4*k) if k < 4 else vr(V_RSP+4*(k-4))} offset:{L_QKV + k*1024}")
    else:
        wait_mode(a, S_REF0, OPT('T_AF', 0), OPT('T_A', 1150))
        def mkA(b): return [f"buffer_load_dwordx4 {vr(b+4*k)}, v{V_APO+k}, s[{S_WS}:{S_WS+3}], s{S_CUR} offen sc1" for k in range(2)]
        def stA(b):
            a(f"ds_write_b128 v{V_APL}, {vr(b)}")
            a(f"ds_write_b128 v{V_APL}, {vr(b+4)} offset:1024")
        poll_loop(a, f"{pfx}_AP", mkA(V_POLL), 8, 93)
        stA(V_POLL)
    a("s_waitcnt lgkmcnt(0)")
    stamp(a, 3)
    a("s_barrier")
    stamp(a, 4)
    reads = []
    for p in range(6):
        for (reg, typ) in ((V_QF, 0), (V_KF, 1)):
            for k in range(2):
                reads.append(f"ds_read_b64_tr_b16 {vr(reg+4*p+2*k,2)}, v{V_RQ} offset:{typ*3072 + (2*p+k)*256}")
    vreads = [f"ds_read_b64_tr_b16 {vr(V_VF+4*K+2*k,2)}, v{V_RV} offset:{K*1024 + k*64}" for K in range(3) for k in range(2)]
    TWOB = OPT('TWOB', 1)
    if not TWOB: reads += vreads
    issued = 0
    def iss(n):
        nonlocal issued
        for _ in range(n):
            if issued < len(reads): a(reads[issued]); issued += 1
    iss(12)
    for p in range(6):
        a(f"s_waitcnt lgkmcnt({issued - (4*p+4)})")
        for u, A_ in enumerate((vr(V_KXF+4*p), vr(V_KXF+4*(6+p)), vr(V_KF+4*p))):
            d = V_S + (4 if u == 0 else 8 if u == 1 else 0)
            c = "0" if p == 0 else vr(d)
            a(f"v_mfma_f32_16x16x32_bf16 {vr(d)}, {A_}, {vr(V_QF+4*p)}, {c}")
        iss(4)
    if TWOB:
        a("s_barrier")
        if w == 2 or OPT('T_DMA', 0) > 0 or OPT('T_DMA2', 0) > 0 or OPT('D4', 1): mark(a, 96)
        for x in vreads: a(x)
    stamp(a, 5)
    ym = []
    for K in range(3):
        for t in range(nt):
            pre = f"s_waitcnt lgkmcnt({6 - (2*K + 2)})\n" if t == 0 else ""
            ym.append(pre + f"v_smfmac_f32_16x16x64_bf16 {vr(V_Y+4*t)}, {vr(V_VF+4*K)}, {wo8(t,K)}, v{V_IDX}")
    PT, PM, RS_, L1, L2 = softmax_lists()
    yc = [f"v_cvt_pk_bf16_f32 v{V_YF+2*t+k}, v{V_Y+4*t+2*k}, v{V_Y+4*t+2*k+1}" for t in range(nt) for k in range(2)]
    Y0 = OPT('Y0', 2)
    for i, x in enumerate(L1):
        if ym and i >= Y0: a(ym.pop(0))
        a(x)
    while ym: a(ym.pop(0))
    for t in range(nt):
        a(f"v_mfma_f32_16x16x32_bf16 {vr(V_PU+4*t)}, {vr(V_UXF+4*t)}, {vr(PT)}, 0")
        for _ in range(2):
            if yc: a(yc.pop(0))
    for t in range(nt):
        a(f"v_mfma_f32_16x16x16_bf16 {vr(V_PU+4*t)}, {vr(V_YF+2*t,2)}, {vr(PM,2)}, {vr(V_PU+4*t)}")
        for _ in range(4):
            if L2: a(L2.pop(0))
    while L2: a(L2.pop(0))
    a(f"v_mov_b32 v{RS_+1}, v{RS_}")
    for t in range(nt):
        for r in range(0, 4, 2): a(f"v_pk_mul_f32 {vr(V_PU+4*t+r,2)}, {vr(V_PU+4*t+r,2)}, {vr(RS_,2)}")
    for t in range(nt):
        a(f"v_cvt_pk_bf16_f32 v{V_RSP+2*t}, v{V_PU+4*t}, v{V_PU+4*t+1}")
        a(f"v_cvt_pk_bf16_f32 v{V_RSP+2*t+1}, v{V_PU+4*t+2}, v{V_PU+4*t+3}")
    a(f"s_add_u32 s{S_T}, s{S_CUR}, s{S_RSB}")
    a(f"s_mov_b64 exec, s[{S_M8}:{S_M8+1}]")
    for P in range(nt//2):
        if P > 0: a(f"s_add_u32 s{S_T}, s{S_T}, 32768")
        a(f"buffer_store_dwordx4 {vr(V_RSP+4*P)}, v{V_RSO}, s[{S_WS}:{S_WS+3}], s{S_T} offen sc1")
    if CURMODE[0] and RSLOC():
        a(f"s_xor_b32 s74, s{S_CUR}, 8192")
        for P in range(nt//2):
            a(f"s_add_u32 s{S_T}, s{76+P}, s74")
            a(f"buffer_store_dwordx4 {vr(V_RSP+4*P)}, v{V_RSOL}, s[{S_WS}:{S_WS+3}], s{S_T} offen")
    stamp(a, 6)
    a("s_mov_b64 exec, -1")
    LATEDMA = OPT('T_DMA', 0) > 0
    if (w < 2 or OPT('UXRD', 0)) and not OPT('NODMA', 0) and not LATEDMA and not OPT('EARLYDMA', 0) and not OPT('SVCDMA', 0):
        if not OPT('T_DMA2', 0):
            a(f"s_cmp_eq_u32 s{S_STEP}, 63")
            a(f"s_cbranch_scc1 {pfx}_NODMA")
            if OPT('UXRD', 0): ux_load(a, w, flags, pfx)
            if w < 2: kv_dma(a, flags, pfx, w)
            a.label(f"{pfx}_NODMA")
    a(f"s_mov_b64 exec, s[{S_M8}:{S_M8+1}]")
    a(f"s_cmp_lg_u32 s{S_C}, 0")
    a(f"s_cbranch_scc1 {pfx}_NOKM")
    for k in range(2 if not OPT('NOKM', 0) else 0):
        a(f"buffer_store_dwordx4 {vr(V_KF+4*(2*w+k))}, v{V_KMS}, s[{S_WS}:{S_WS+3}], s{S_KMG} offen offset:{k*512} sc1")
    a.label(f"{pfx}_NOKM")
    a("s_mov_b64 exec, -1")
    a(f"s_add_u32 s{S_KMG}, s{S_KMG}, {32*3072}")
    for t in range(nt):
        for r in range(4): a(f"v_mov_b32 v{V_PU+r}, v{V_Y+4*t+r}")
        for r in range(4): a(f"v_permlane32_swap_b32 v{V_Y+4*t+r}, v{V_PU+r}")
        for r in range(4): a(f"v_add_f32 v{V_Y+4*t+r}, v{V_Y+4*t+r}, v{V_PU+r}")
        a(f"v_cvt_pk_bf16_f32 v{V_YF+2*t}, v{V_Y+4*t}, v{V_Y+4*t+1}")
        a(f"v_cvt_pk_bf16_f32 v{V_YF+2*t+1}, v{V_Y+4*t+2}, v{V_Y+4*t+3}")
    a("s_mov_b32 exec_hi, 0")
    for t in range(nt if not OPT('NOUY', 0) else 0):
        a(f"buffer_store_dwordx2 {vr(V_YF+2*t,2)}, v{V_L4}, s[{S_WS}:{S_WS+3}], s{S_UYG} offen offset:{t*256} sc1")
    a("s_mov_b64 exec, -1")
    a(f"s_add_u32 s{S_UYG}, s{S_UYG}, {32*40*256}")
    if w == OPT('FLGW', 1) and not OPT('NOFLG', 0):
        a(f"v_mov_b32 v{V_T}, s{S_STEP}")
        a("s_mov_b64 exec, 1")
        a(f"buffer_store_dword v{V_T}, v{V_ZERO}, s[{S_WS}:{S_WS+3}], s{S_FLG} offen sc1")
        a(f"s_cmp_lg_u32 s{S_J}, 0")
        a(f"s_cbranch_scc1 {pfx}_NOPROG")
        a(f"s_mov_b32 s{S_T}, {F_RPROG}")
        a(f"buffer_store_dword v{V_T}, v{V_ZERO}, s[{S_WS}:{S_WS+3}], s{S_T} offen sc1")
        a.label(f"{pfx}_NOPROG")
        a("s_mov_b64 exec, -1")
    a(f"s_add_u32 s{S_STEP}, s{S_STEP}, 1")
    a(f"s_cmp_ge_u32 s{S_STEP}, 64")
    a(f"s_cbranch_scc1 {pfx}_DONE")
    if w < 2 and OPT('T_DMA2', 0):
        wait_until(a, 96, OPT('T_DMA2', 0))
        kv_dma(a, flags, pfx, w)
    stamp(a, 7)
    idle_phase(a, w, woq)
    if w < 2 and LATEDMA:
        wait_until(a, 96, OPT('T_DMA', 0))
        kv_dma(a, flags, pfx, w)
    if w == 2:
        a(f"s_cmp_eq_u32 s{S_RED}, 0")
        a(f"s_cbranch_scc1 {pfx}_NORED")
        wait_until(a, 96, OPT('T_RS', 1150))
        a(f"s_add_u32 s{S_T2}, s{S_CUR}, s{S_RSP}")
        reduce_blocks(a, pfx, 1, 240, 48, (S_T2,), V_AGS, 64, 80, s_loc0=(72,), s_loc=(74,), sqbase=64)
        a.label(f"{pfx}_NORED")
    rotate_slots(a)
    stamp_acc(a)
    if w == 2: mark(a, S_REF2)
    a(f"s_branch {pfx}_LOOP")
    a.label(f"{pfx}_DONE")
    a("s_waitcnt vmcnt(0)")
    a("s_barrier")
    if flags and w == 0:
        dbgt(a, 44, op="max")
        trace(a, 5, S_J)
        if int(os.environ.get('TRACE', 0)):
            a("s_memtime s[86:87]\ns_waitcnt lgkmcnt(0)")
            trace(a, 7, S_J, val=86)
    if w == OPT('FLGW', 1):
        a(f"v_mov_b32 v{V_T}, 64")
        a("s_mov_b64 exec, 1")
        a(f"buffer_store_dword v{V_T}, v{V_ZERO}, s[{S_WS}:{S_WS+3}], s{S_FLG} offen sc1")
        a(f"s_cmp_lg_u32 s{S_J}, 0")
        a(f"s_cbranch_scc1 {pfx}_NOPROG2")
        a(f"s_mov_b32 s{S_T}, {F_RPROG}")
        a(f"buffer_store_dword v{V_T}, v{V_ZERO}, s[{S_WS}:{S_WS+3}], s{S_T} offen sc1")
        a.label(f"{pfx}_NOPROG2")
        a("s_waitcnt vmcnt(0)")
        a("s_mov_b64 exec, -1")
    stamp_out(a, w)
    a("s_endpgm")

def stamp_acc(a):
    if not OPT('STAMP', 0): return
    a(f"s_memtime s[{S_TS+16}:{S_TS+17}]")
    a("s_waitcnt lgkmcnt(0)")
    for k in range(8):
        a(f"s_sub_u32 s{S_T}, s{S_TS+2*k+2}, s{S_TS+2*k}")
        a(f"s_add_u32 s{80+k}, s{80+k}, s{S_T}")

def stamp_out(a, w):
    if not OPT('STAMP', 0): return
    a.uid += 1
    L = f"STO_{w}_{a.uid}"
    a(f"""s_cmp_lg_u32 s{S_J}, {OPT('STAMPROLE', 0)}
s_cbranch_scc1 {L}
s_waitcnt lgkmcnt(0)
s_load_dwordx2 s[96:97], s[0:1], {KA['dbg']}
s_waitcnt lgkmcnt(0)
s_mov_b64 exec, 1""")
    for k in range(8):
        a(f"v_mov_b32 v10, s{80+k}\nv_mov_b32 v11, {64 + w*48 + k*4}\nglobal_store_dword v11, v10, s[96:97]\ns_waitcnt vmcnt(0)")
    if w == 0:
        a(f"v_mov_b32 v10, s95\nv_mov_b32 v11, 40\nglobal_store_dword v11, v10, s[96:97]\ns_waitcnt vmcnt(0)")
        a(f"v_mov_b32 v10, s101\nv_mov_b32 v11, 44\nglobal_store_dword v11, v10, s[96:97]\ns_waitcnt vmcnt(0)")
    for k in range(3):
        a(f"v_mov_b32 v10, s{92+k}\nv_mov_b32 v11, {64 + w*48 + 32 + k*4}\nglobal_store_dword v11, v10, s[96:97]\ns_waitcnt vmcnt(0)")
    a.label(L)

def common_setup(a, w):
    a(f"""v_lshlrev_b32 v{V_L16}, 4, v{V_LANE}
v_lshlrev_b32 v{V_L4}, 3, v{V_LANE}
v_mov_b32 v{V_ZERO}, 0
s_mov_b32 s{S_M8}, 0x00ff00ff
s_mov_b32 s{S_M8+1}, 0x00ff00ff
s_mov_b32 s{S_H8}, 0xff00ff00
s_mov_b32 s{S_H8+1}, 0xff00ff00
s_mov_b32 s{S_HI32}, 0
s_mov_b32 s{S_HI32+1}, -1
v_mov_b32 v{V_NINF}, 0xff800000
s_mov_b32 s{S_MQ}, 0x0000ffff
s_mov_b32 s{S_MQ+1}, 0x0000ffff
v_mov_b32 v{V_IDX}, 0x44444444
v_mov_b32 v{V_T}, 0xeeeeeeee
v_cndmask_b32 v{V_IDX}, v{V_IDX}, v{V_T}, s[{S_H8}:{S_H8+1}]
s_mov_b32 s{S_SCALE}, 0x{f2u(192**-0.5*1.4426950408889634):08x}
s_mov_b32 s{S_MAXR}, {OPT('MAXRETRY', 400000)}
s_mov_b32 s{S_STEP}, 0""")
    for k in range(8): a(f"s_mov_b32 s{80+k}, 0")
    for k in range(92, 95): a(f"s_mov_b32 s{k}, 0")
    if OPT('D4', 1):
        a(f"s_lshr_b32 s{S_T}, s{S_J}, 5")
        a(f"s_mul_i32 s{S_T}, s{S_T}, 10240")
        a(f"s_add_u32 s{S_T}, s{S_T}, {AG_LOG + w*2560}")
        for k in range(3):
            a(f"v_add_u32 v{V_AGP+k}, s{S_T}, v{V_L16}")
            if k: a(f"v_add_u32 v{V_AGP+k}, {k*1024}, v{V_AGP+k}")
            nearmap_v(a, V_AGP+k, V_T2)
        oob_mask(a, V_AGP+2, 32)
    elif w >= 2:
        a(f"s_lshr_b32 s{S_T}, s{S_J}, 5")
        a(f"s_mul_i32 s{S_T}, s{S_T}, 10240")
        a(f"s_add_u32 s{S_T}, s{S_T}, {AG_LOG + (w-2)*5120}")
        for k in range(5):
            a(f"v_add_u32 v{V_AGP+k}, s{S_T}, v{V_L16}")
            if k: a(f"v_add_u32 v{V_AGP+k}, {k*1024}, v{V_AGP+k}")
            nearmap_v(a, V_AGP+k, V_T2)
    a(f"v_add_u32 v{V_AGL}, {L_MEM + w*2560}, v{V_L16}")

V_M0 = 200
def mem0_stage(a, w):
    a(f"ds_write_b128 v{V_AGL}, {vr(V_M0)}")
    a(f"ds_write_b128 v{V_AGL}, {vr(V_M0+4)} offset:1024")
    a("s_mov_b32 exec_hi, 0")
    a(f"ds_write_b128 v{V_AGL}, {vr(V_M0+8)} offset:2048")
    a("s_mov_b64 exec, -1")

def mem0_load(a, w):
    for k in range(3):
        a(f"""v_add_u32 v{V_T}, {160*w + 64*k}, v{V_LANE}
v_and_b32 v{V_T2}, 7, v{V_T}
v_mul_u32_u24 v{V_T2}, 1280, v{V_T2}
v_lshrrev_b32 v{V_M0+12}, 5, v{V_T}
v_lshlrev_b32 v{V_M0+12}, 6, v{V_M0+12}
v_add_u32 v{V_T2}, v{V_T2}, v{V_M0+12}
v_bfe_u32 v{V_T}, v{V_T}, 3, 2
v_lshlrev_b32 v{V_T}, 3, v{V_T}
v_add_u32 v{V_T}, v{V_T}, v{V_T2}""")
        a(f"buffer_load_dwordx2 {vr(V_M0+4*k,2)}, v{V_T}, s[{S_M0}:{S_M0+3}], 0 offen")
        a(f"buffer_load_dwordx2 {vr(V_M0+4*k+2,2)}, v{V_T}, s[{S_M0}:{S_M0+3}], 0 offen offset:32")

def service_wave(a):
    w = 3; pfx = "RS3"
    wreg = WReg(0, 256, 0)
    mem0_load(a, w)
    a(f"s_lshl_b32 s{S_LB}, s{S_WAVE}, 15")
    if OPT('COOP', 1):
        coop_load(a, w, wreg)
    else:
        a(f"""s_mul_i32 s{S_COL}, s{S_H}, 384
s_mul_i32 s{S_T}, s{S_C}, 96
s_add_u32 s{S_COL}, s{S_COL}, s{S_T}""")
        units = [(S_WV, S_COL, t*32 + p*32*H*E*2) for p in range(20) for t in range(3)]
        load_w2(a, units, lambda u, T, k: wreg.pair((u % 3)*20 + u // 3, k), 1, H*E*2, 2, V_LANE, V_POLL, V_POLL+1, V_T, S_T, S_LB)
    common_setup(a, w)
    PQ = V_KXF; PV_ = V_KXF+2; R = V_KXF+6; SEL = V_KXF+8; ONES = V_KXF+12; AGZ = V_KXF+7; RSO2 = V_KXF+5
    a(f"""v_lshrrev_b32 v{V_AST}, 1, v{V_G}
v_lshlrev_b32 v{V_AST}, 8, v{V_AST}
v_lshlrev_b32 v{V_T}, 4, v{V_N}
v_add_u32 v{V_AST}, v{V_AST}, v{V_T}
v_and_b32 v{V_T}, 1, v{V_G}
v_lshlrev_b32 v{V_T}, 3, v{V_T}
v_add_u32 v{V_AST}, v{V_AST}, v{V_T}
v_lshlrev_b32 v{V_AST+1}, 4, v{V_N}
v_add_u32 v{V_AST+1}, v{V_AST+1}, v{V_T}
s_mul_i32 s{S_T2}, s{S_H}, 9216
s_mul_i32 s{S_T}, s{S_C}, 768
s_add_u32 s{S_T}, s{S_T}, s{S_T2}
v_add_u32 v{PQ}, s{S_T}, v{V_L16}
v_add_u32 v{PQ+1}, 3072, v{PQ}
v_add_u32 v{PV_}, 6144, v{PQ}
s_add_u32 s{S_T}, s{S_T}, 6144
v_add_u32 v{V_AST}, s{S_T}, v{V_AST}
v_add_u32 v{V_AST+1}, s{S_T}, v{V_AST+1}
v_add_u32 v{V_AST+1}, 512, v{V_AST+1}""")
    for r in (V_AST, V_AST+1, PV_, PQ, PQ+1): nearmap_v(a, r, V_T)
    oob_mask(a, PV_, 48); oob_mask(a, PQ+1, 48); oob_mask(a, PQ, 48); oob_mask(a, V_AST+1, 32)
    for k in range(3):
        a(f"v_add_u32 v{V_APO+k}, s{S_T2}, v{V_L16}")
        a(f"v_add_u32 v{V_APO+k}, {6144 + k*1024}, v{V_APO+k}")
        nearmap_v(a, V_APO+k, V_T)
    a(f"v_add_u32 v{V_APL}, {L_QKV + 6144}, v{V_L16}")
    rs_lane(a, R)
    a(f"""s_mul_i32 s{S_RSB}, s{S_C}, {5*32768}
s_add_u32 s{S_RSB}, s{S_RSB}, {nearmap(RS_LOG)}
s_and_b32 s{S_COL}, s{S_J}, 31""")
    blk_off(a, S_COL, S_RSP, S_T)
    loc_off(a, S_COL, 72, S_T)
    a(f"s_add_u32 s{S_COL}, s{S_COL}, 32")
    blk_off(a, S_COL, S_RED, S_T)
    loc_off(a, S_COL, 73, S_T)
    rs_local_lane(a, V_RSOL)
    a(f"""s_lshr_b32 s77, s{S_J}, 5
s_mul_i32 s77, s77, 81920
s_mul_i32 s{S_T}, s{S_C}, {5*4096}
s_add_u32 s77, s77, s{S_T}""")
    a(f"""s_lshr_b32 s{S_T}, s{S_J}, 5
s_mul_i32 s{S_T}, s{S_T}, 10240
s_add_u32 s{S_T}, s{S_T}, {AG_LOG}
s_and_b32 s{S_T2}, s{S_J}, 31
s_lshl_b32 s{S_T3}, s{S_T2}, 7
s_add_u32 s{S_T}, s{S_T}, s{S_T3}
v_lshrrev_b32 v{V_AGS}, 3, v{V_LANE}
v_lshlrev_b32 v{V_AGS}, 12, v{V_AGS}
v_and_b32 v{V_T}, 7, v{V_LANE}
v_lshlrev_b32 v{V_T}, 4, v{V_T}
v_add_u32 v{V_AGS}, v{V_AGS}, v{V_T}
v_add_u32 v{V_AGS}, s{S_T}, v{V_AGS}""")
    nearmap_v(a, V_AGS, V_T)
    a(f"v_mov_b32 v{AGZ}, v{V_AGS}")
    a(f"""v_bfe_u32 v{V_AGS}, v{V_LANE}, 3, 1
v_lshlrev_b32 v{V_AGS}, 12, v{V_AGS}
v_and_b32 v{V_T}, 7, v{V_LANE}
v_lshlrev_b32 v{V_T}, 4, v{V_T}
v_add_u32 v{V_AGS}, v{V_AGS}, v{V_T}
v_lshlrev_b32 v{V_T}, 3, v{V_G}
v_add_u32 v{V_AGS}, v{V_AGS}, v{V_T}
s_lshr_b32 s{S_T}, s{S_J}, 5
s_mul_i32 s{S_T}, s{S_T}, 10240
s_add_u32 s{S_T}, s{S_T}, {AG_LOG}
s_add_u32 s{S_T}, s{S_T}, s{S_T3}
v_add_u32 v{V_AGS}, s{S_T}, v{V_AGS}""")
    nearmap_v(a, V_AGS, V_T)
    oob_mask(a, V_AGS, 32)
    a(f"""v_mov_b32 v{RSO2}, s{S_RSP}
v_mov_b32 v{V_T}, s{S_RED}
v_cndmask_b32 v{RSO2}, v{RSO2}, v{V_T}, s[{S_H8}:{S_H8+1}]
v_lshlrev_b32 v{V_T}, 7, v{V_G}
v_add_u32 v{RSO2}, v{RSO2}, v{V_T}
v_and_b32 v{V_T}, 7, v{V_LANE}
v_lshlrev_b32 v{V_T}, 4, v{V_T}
v_add_u32 v{RSO2}, v{RSO2}, v{V_T}""")
    a(f"s_cmp_lt_u32 s{S_T2}, 16")
    a(f"s_cselect_b32 s{S_T}, 24, 16")
    a(f"v_mov_b32 v{V_T}, 0x80000000")
    a(f"v_cmp_gt_u32 vcc, s{S_T}, v{V_LANE}")
    a(f"v_cndmask_b32 v{AGZ}, v{V_T}, v{AGZ}, vcc")
    sel_setup(a, SEL)
    for k in range(4): a(f"v_mov_b32 v{ONES+k}, -1")
    a(f"v_mov_b32 v{ONES+4}, 1")
    if OPT('SVCDMA', 0):
        a(f"""s_mul_i32 s{S_T}, s{S_H}, 6
s_lshr_b32 s{S_T2}, s{S_T}, 3
s_add_u32 s{S_T}, s{S_T}, 5
s_lshr_b32 s{S_T}, s{S_T}, 3
v_mov_b32 v{V_KVA}, s{S_T}
v_mov_b32 v{V_T}, s{S_T2}
v_and_b32 v{V_T2}, 1, v{V_LANE}
v_cmp_eq_u32 vcc, 0, v{V_T2}
v_cndmask_b32 v{V_KVA}, v{V_KVA}, v{V_T}, vcc
v_cmp_lt_u32 vcc, 1, v{V_LANE}
v_mov_b32 v{V_T}, {R_V0}
v_cndmask_b32 v{V_T}, 0, v{V_T}, vcc
v_add_u32 v{V_KVA}, v{V_KVA}, v{V_T}
v_lshlrev_b32 v{V_KVA}, {PSH}, v{V_KVA}
v_add_u32 v{V_KVA}, {F_PROG}, v{V_KVA}
s_mov_b32 s{S_KVT}, 4
s_mov_b32 s22, 0
s_mul_i32 s{S_T}, s{S_H}, 12288
s_add_u32 s{S_KVG}, s{S_T}, {KX + 2*32*12288}
s_mov_b32 s{S_KVL}, {L_KV}""")
    read_polarity(a, pfx)
    a("s_barrier")
    mem0_stage(a, w)
    a("s_waitcnt vmcnt(0) lgkmcnt(0)")
    a("s_barrier")
    stamp(a, 0)
    pfx0 = pfx
    a(f"s_cmp_eq_u32 s{S_MODE}, 0")
    a(f"s_cbranch_scc1 {pfx0}S_B0")
    a(f"s_branch {pfx0}F_B0")
    for mode in (1, 0):
        CURMODE[0] = mode
        pfx = pfx0 + ("F" if mode else "S")
        service_loop(a, pfx, PQ, PV_, R, SEL, ONES, AGZ, RSO2)
    CURMODE[0] = None

def service_loop(a, pfx, PQ, PV_, R, SEL, ONES, AGZ, RSO2):
    a.label(f"{pfx}_LOOP")
    stamp(a, 0)
    ag_poll(a, pfx, 3)
    a.label(f"{pfx}_B0")
    a("s_waitcnt lgkmcnt(0)")
    a("s_barrier")
    mark(a, S_REF0)
    stamp(a, 1)
    SP = 140
    w8s = lambda t, K: ar((t*20 + 2*K)*4, 8)
    for K in range(10):
        a(f"ds_read_b128 {vr(V_RING+4*K)}, v{V_L16} offset:{L_MEM + K*1024}")
    for r in range(12): a(f"v_mov_b32 v{V_ACC+r}, 0")
    for K in range(10):
        a(f"s_waitcnt lgkmcnt({9-K})")
        for t in range(2):
            a(f"v_smfmac_f32_16x16x64_bf16 {vr(V_ACC+4*t)}, {vr(V_RING+4*K)}, {w8s(t,K)}, v{V_IDX}")
    P01 = pack_pair(V_ACC, V_ACC+4, SP)
    for K in range(10):
        a(f"v_smfmac_f32_16x16x64_bf16 {vr(V_ACC+8)}, {vr(V_RING+4*K)}, {w8s(2,K)}, v{V_IDX}")
        if K >= 2 and P01: a(P01.pop(0))
        if K >= 6 and P01: a(P01.pop(0))
    while P01: a(P01.pop(0))
    store_mode(a, [f"buffer_store_dwordx2 {vr(SP,2)}, v{V_AST}, s[{S_WS}:{S_WS+3}], s{S_CUR} offen SCX"])
    for r in range(4): a(f"v_mov_b32 v{SP+8+r}, v{V_ACC+8+r}")
    for x in pack_pair(V_ACC+8, SP+8, SP+4): a(x)
    store_mode(a, [f"buffer_store_dwordx2 {vr(SP+4,2)}, v{V_AST+1}, s[{S_WS}:{S_WS+3}], s{S_CUR} offen SCX"])
    stamp(a, 2)
    wait_mode(a, S_REF0, OPT('T_VF', 1300), OPT('T_V', 1500))
    loads = [f"buffer_load_dwordx4 {vr(V_POLL+4*k)}, v{V_APO+k}, s[{S_WS}:{S_WS+3}], s{S_CUR} offen sc1" for k in range(3)]
    if OPT('TWOB', 1):
        for x in loads: a(x)
        stamp(a, 3)
        a("s_barrier")
        stamp(a, 4)
        def stV():
            for k in range(3):
                a(f"ds_write_b128 v{V_APL}, {vr(V_POLL+4*k)} offset:{k*1024}")
        if OPT('SPEC', 0): poll_loop(a, f"{pfx}_VP", loads, 12, 93, pre_issued=True, spec=stV)
        else:
            poll_loop(a, f"{pfx}_VP", loads, 12, 93, pre_issued=True)
            stV()
        a("s_waitcnt lgkmcnt(0)")
        a("s_barrier")
        mark(a, 96)
        stamp(a, 5)
    else:
        poll_loop(a, f"{pfx}_VP", loads, 12, 93)
        for k in range(3):
            a(f"ds_write_b128 v{V_APL}, {vr(V_POLL+4*k)} offset:{k*1024}")
        a("s_waitcnt lgkmcnt(0)")
        stamp(a, 3)
        a("s_barrier")
        mark(a, 96)
        stamp(a, 4)
        stamp(a, 5)
    a(f"s_cmp_eq_u32 s{S_STEP}, 63")
    a(f"s_cbranch_scc1 {pfx}_DONE")
    if OPT('SVCDMA', 0):
        a(f"s_cmp_ge_u32 s{S_STEP}, 62")
        a(f"s_cbranch_scc1 {pfx}_NOSD")
        kv_dma_svc(a, pfx)
        a.label(f"{pfx}_NOSD")
    store_mode(a, [f"buffer_store_dwordx4 {vr(ONES)}, v{r}, s[{S_WS}:{S_WS+3}], s{S_NN} offen SCX" for r in (PQ, PQ+1, PV_)])
    a(f"s_add_u32 s{S_T}, s{S_NN}, s{S_RSB}")
    a(f"s_mov_b64 exec, s[{S_M8}:{S_M8+1}]")
    for P in range(5):
        if P > 0: a(f"s_add_u32 s{S_T}, s{S_T}, 32768")
        a(f"buffer_store_dwordx4 {vr(ONES)}, v{R}, s[{S_WS}:{S_WS+3}], s{S_T} offen sc1")
    if CURMODE[0] and RSLOC():
        a(f"s_xor_b32 s74, s{S_NN}, 8192")
        for P in range(5):
            a(f"s_add_u32 s{S_T}, s77, {P*4096}")
            smap(a, S_T, S_T2)
            a(f"s_add_u32 s{S_T}, s{S_T}, s74")
            a(f"buffer_store_dwordx4 {vr(ONES)}, v{V_RSOL}, s[{S_WS}:{S_WS+3}], s{S_T} offen")
    a("s_mov_b64 exec, -1")
    store_mode(a, [f"buffer_store_dwordx4 {vr(ONES)}, v{AGZ}, s[{S_WS}:{S_WS+3}], s{S_NN} offen SCX"])
    stamp(a, 6)
    wait_until(a, 96, OPT('T_RS', 1150))
    if OPT('RED2', 1):
        reduce2(a, pfx, SEL, 32, RSO2, V_AGS, 64, 160)
    else:
        raise SystemExit("RED2=0 no longer supported")
    a(f"s_add_u32 s{S_STEP}, s{S_STEP}, 1")
    a(f"s_cmp_ge_u32 s{S_STEP}, 64")
    a(f"s_cbranch_scc1 {pfx}_DONE")
    rotate_slots(a)
    stamp_acc(a)
    mark(a, S_REF2)
    a(f"s_branch {pfx}_LOOP")
    a.label(f"{pfx}_DONE")
    a("s_waitcnt vmcnt(0)")
    a("s_barrier")
    stamp_out(a, 3)
    a("s_endpgm")

def rec_entry(a):
    a(f"""s_load_dwordx4 s[64:67], s[0:1], {KA['wq']}
s_load_dwordx4 s[68:71], s[0:1], {KA['wv']}
s_load_dwordx2 s[72:73], s[0:1], {KA['mem0']}
s_waitcnt lgkmcnt(0)""")
    srd(a, S_WQ, 64, D*H*E*2); srd(a, S_WK, 66, D*H*E*2); srd(a, S_WV, 68, D*H*E*2); srd(a, S_WO, 70, D*H*E*2)
    srd(a, S_M0, 72, M*D*2)
    a(f"s_lshr_b32 s{S_H}, s{S_J}, 2\ns_and_b32 s{S_C}, s{S_J}, 3")

def probe(a, s_k, s_xcc, lbl, s_dbg):
    a(f"""s_mov_b64 exec, 1
v_mov_b32 v10, -1
s_lshl_b32 s{S_T}, s{s_k}, 21
s_add_u32 s{S_T}, s{S_T}, {RING + PROBE_OFF}
v_mov_b32 v11, s{S_T}
v_add_u32 v13, 8192, v11
s_mov_b32 s{S_T2}, 0
s_mov_b32 s84, -1
s_mov_b32 s85, -1""")
    a.label(f"{lbl}_R")
    a(f"""buffer_store_dword v10, v11, s[{S_WS}:{S_WS+3}], 0 offen sc1
buffer_store_dword v10, v13, s[{S_WS}:{S_WS+3}], 0 offen sc1
s_waitcnt vmcnt(0)
s_sleep 6""")
    for hsel in range(2):
        a(f"""s_memtime s[80:81]
s_waitcnt lgkmcnt(0)
buffer_load_dword v12, v{11 if hsel == 0 else 13}, s[{S_WS}:{S_WS+3}], 0 offen sc1
s_waitcnt vmcnt(0)
s_memtime s[82:83]
s_waitcnt lgkmcnt(0)
s_sub_u32 s{86+hsel}, s82, s80""")
    a(f"""s_min_u32 s84, s84, s86
s_min_u32 s85, s85, s87
s_add_u32 s{S_T2}, s{S_T2}, 1
s_cmp_lt_u32 s{S_T2}, {OPT('PROBE_N', 7)}
s_cbranch_scc1 {lbl}_R
s_cmp_lt_u32 s85, s84
s_cselect_b32 s{S_T3}, 1, 0
s_lshr_b32 s{S_T}, s{s_xcc}, 2
s_xor_b32 s{S_T3}, s{S_T3}, s{S_T}
s_and_b32 s{S_T3}, s{S_T3}, 1
s_or_b32 s{S_T3}, s{S_T3}, 2
s_lshl_b32 s{S_T}, s{s_k}, 1
s_lshl_b32 s{S_T3}, s{S_T3}, s{S_T}
v_mov_b32 v10, s{S_T3}
v_mov_b32 v11, {DB_POL}
global_atomic_or v11, v10, s[{s_dbg}:{s_dbg+1}] sc1
s_waitcnt vmcnt(0)
s_mov_b64 exec, -1""")

def rec_dispatch(a, flags=False):
    a(f"""s_cmp_eq_u32 s{S_WAVE}, 0
s_cbranch_scc1 RK_W0
s_cmp_eq_u32 s{S_WAVE}, 1
s_cbranch_scc1 RK_W1
s_cmp_eq_u32 s{S_WAVE}, 2
s_cbranch_scc1 RK_W2
s_branch RK_W3""")
    for w in range(3):
        a.label(f"RK_W{w}")
        main_wave(a, w, flags)
    a.label("RK_W3")
    service_wave(a)

def gen_rec_kernel():
    a = Asm(); name = "rec_kernel"
    kernel_header(a, name)
    if OPT('STAMP', 0): a("s_memtime s[100:101]")
    a(f"""s_cmp_ge_u32 s2, 256
s_cbranch_scc1 RK_END
s_load_dwordx2 s[74:75], s[0:1], {KA['ws']}
s_load_dwordx2 s[76:77], s[0:1], {KA['dbg']}
s_getreg_b32 s78, hwreg(HW_REG_XCC_ID)
s_and_b32 s78, s78, 15
s_waitcnt lgkmcnt(0)""")
    srd(a, S_WS, 74, WS_SIZE)
    lane_setup(a, V_LANE, V_G, V_N, S_WAVE)
    a(f"""s_cmp_lg_u32 s{S_WAVE}, 0
s_cbranch_scc1 RK_NORANK
v_mov_b32 v10, 1
s_lshl_b32 s79, s78, 2
v_mov_b32 v11, s79
s_mov_b64 exec, 1
global_atomic_add v12, v11, v10, s[76:77] sc0 sc1
s_waitcnt vmcnt(0)
v_mov_b32 v11, 0
ds_write_b32 v11, v12
s_waitcnt lgkmcnt(0)
s_mov_b64 exec, -1""")
    a.label("RK_NORANK")
    a(f"""s_barrier
v_mov_b32 v11, 0
ds_read_b32 v12, v11
s_waitcnt lgkmcnt(0)
v_readfirstlane_b32 s79, v12
s_barrier
s_cmp_lt_u32 s78, 4
s_cbranch_scc1 RK_REC
s_cmp_lg_u32 s78, 4
s_cbranch_scc1 RK_END
s_cmp_ge_u32 s79, 4
s_cbranch_scc1 RK_END
s_cmp_lg_u32 s{S_WAVE}, 0
s_cbranch_scc1 RK_END""")
    probe(a, 79, 78, "RK_PR", 76)
    a("s_endpgm")
    a.label("RK_REC")
    a(f"""s_cmp_ge_u32 s79, 32
s_cbranch_scc1 RK_END
s_lshl_b32 s{S_J}, s78, 5
s_add_u32 s{S_J}, s{S_J}, s79""")
    rec_entry(a)
    rec_dispatch(a)
    a.label("RK_END")
    a("s_endpgm")
    return name, a.finalize(), kernel_desc(name, 512, 102, 256)

def read_polarity(a, pfx):
    a(f"s_load_dwordx2 s[96:97], s[0:1], {KA['dbg']}")
    a(f"v_and_b32 v{V_T2}, 15, v{V_LANE}")
    a(f"v_lshlrev_b32 v{V_T2}, 2, v{V_T2}")
    a(f"s_mov_b32 s{S_RETRY}, 0")
    a("s_waitcnt lgkmcnt(0)")
    a.label(f"{pfx}_MD")
    a(f"global_load_dword v{V_T}, v{V_T2}, s[96:97] sc1")
    a("s_waitcnt vmcnt(0)")
    a(f"s_mov_b32 s{S_T}, 0")
    a(f"s_mov_b32 s{S_MODE}, 1")
    for x in range(8):
        a(f"v_readlane_b32 s{S_T2}, v{V_T}, {x}")
        a(f"s_add_u32 s{S_T}, s{S_T}, s{S_T2}")
        a(f"s_cmp_eq_u32 s{S_T2}, 32")
        a(f"s_cselect_b32 s{S_MODE}, s{S_MODE}, 0")
    a(f"v_readlane_b32 s{S_T2}, v{V_T}, {DB_INIT//4}")
    a(f"v_readlane_b32 s{S_T3}, v{V_T}, {DB_POL//4}")
    a(f"s_cmp_ge_u32 s{S_T}, 256")
    a(f"s_cbranch_scc0 {pfx}_MDN")
    if INITWAIT[0]:
        a(f"s_cmp_ge_u32 s{S_T2}, 80")
        a(f"s_cbranch_scc0 {pfx}_MDN")
    a(f"s_and_b32 s{S_T}, s{S_T3}, 0xaa")
    a(f"s_cmp_eq_u32 s{S_T}, 0xaa")
    a(f"s_cbranch_scc1 {pfx}_POLOK")
    a.label(f"{pfx}_MDN")
    a(f"""s_sleep 4
s_add_u32 s{S_RETRY}, s{S_RETRY}, 1
s_cmp_lt_u32 s{S_RETRY}, 0x200000
s_cbranch_scc1 {pfx}_MD
s_mov_b32 s{S_MODE}, 0""")
    a.label(f"{pfx}_POLOK")
    if OPT('FORCESLOW', 0): a(f"s_mov_b32 s{S_MODE}, 0")
    a(f"""s_and_b32 s{S_T}, s{S_T3}, 0x55
s_xor_b32 s{S_T}, s{S_T}, 0x44
s_bcnt1_i32_b32 s{S_T2}, s{S_T}
s_cmp_ge_u32 s{S_T2}, 3
s_cselect_b32 s{S_T}, 0x55, s{S_T}
s_cmp_le_u32 s{S_T2}, 1
s_cselect_b32 s{S_T}, 0, s{S_T}
s_xor_b32 s{S_T3}, s{S_T}, 0x44""")
    if OPT('FLIPPOL', 0): a(f"s_xor_b32 s{S_T3}, s{S_T3}, 0x55")
    for k, s in enumerate((S_CUR, S_N, S_NN, S_P)):
        a(f"""s_bfe_u32 s{S_T}, s{S_T3}, {(1<<16) | (2*k)}
s_lshl_b32 s{S_T}, s{S_T}, 13
s_add_u32 s{s}, s{S_T}, {RING + k*RING_SLOT}""")
```
